```python
import torch

def _softmax(x, axis=-1):
    return torch.softmax(x, dim=axis)
def _gelu(x):
    return torch.nn.functional.gelu(x, approximate="tanh")
def _silu(x):
    return torch.nn.functional.silu(x)
def _sigmoid(x):
    return torch.sigmoid(x)
def _layernorm(x, axis=-1, eps=1e-5):
    m = x.mean(dim=axis, keepdim=True)
    v = x.var(dim=axis, keepdim=True, unbiased=False)
    return (x - m) / torch.sqrt(v + eps)
def _scatter_add(tgt, idx, src, axis=0):
    return tgt.clone().index_add_(axis, idx, src)
def _segment_sum(src, seg, n):
    out = torch.zeros((n,) + src.shape[1:], dtype=src.dtype)
    return out.index_add_(0, seg, src)
def _pad(x, pw):
    flat = tuple(v for pair in reversed(pw) for v in pair)
    return torch.nn.functional.pad(x, flat)

kernel_name = 'gated_mix__mha_block__mha_block__prompt'

def setup_inputs():

    _w = (lambda a: (lambda t: t.to(torch.bfloat16) if t.is_floating_point() else t)(torch.as_tensor(a)))
    def _A_setup():
        B, S, D, H = 1, 2048, 576, 32
        return {
            "x": _w((lambda *s: torch.randn(*s, dtype=torch.bfloat16) * 0.05)(B, S, D)),
            "wqkv": _w((lambda *s: torch.randn(*s, dtype=torch.bfloat16) * 0.8)(D, 3 * D)),
            "wo": _w((lambda *s: torch.randn(*s, dtype=torch.bfloat16) * 0.05)(D, D)),
        }
    _A_in = _A_setup()

    def _B_setup():
        B, S, D, H = 1, 2048, 576, 32
        return {
            "x": _w((lambda *s: torch.randn(*s, dtype=torch.bfloat16) * 0.05)(B, S, D)),
            "wqkv": _w((lambda *s: torch.randn(*s, dtype=torch.bfloat16) * 0.8)(D, 3 * D)),
            "wo": _w((lambda *s: torch.randn(*s, dtype=torch.bfloat16) * 0.05)(D, D)),
        }
    _B_in = _B_setup()

    return {
        "A_x": _A_in["x"],
        "A_wqkv": _A_in["wqkv"],
        "A_wo": _A_in["wo"],
        "B_x": _B_in["x"],
        "B_wqkv": _B_in["wqkv"],
        "B_wo": _B_in["wo"],
        "gate_w": _w((lambda *s: torch.randn(*s, dtype=torch.bfloat16) * 0.05)(576) * 16.0),
    }

def reference(A_x, A_wqkv, A_wo, B_x, B_wqkv, B_wo, gate_w):
    def _A_ref(x, wqkv, wo):
        B, S, D = x.shape
        H = 32
        Dh = D // H
        qkv = (lambda x, *d: x.permute(*d))((x @ wqkv).reshape(B, S, 3, H, Dh), 2, 0, 3, 1, 4)
        q, k, v = qkv[0], qkv[1], qkv[2]
        scores = torch.einsum("bhqd,bhkd->bhqk", q, k) * (Dh ** -0.5)
        p = _softmax(scores, axis=-1)
        o = torch.einsum("bhqk,bhkd->bhqd", p, v)
        return (lambda x, *d: x.permute(*d))(o, 0, 2, 1, 3).reshape(B, S, D) @ wo

    def _B_ref(x, wqkv, wo):
        B, S, D = x.shape
        H = 32
        Dh = D // H
        qkv = (lambda x, *d: x.permute(*d))((x @ wqkv).reshape(B, S, 3, H, Dh), 2, 0, 3, 1, 4)
        q, k, v = qkv[0], qkv[1], qkv[2]
        scores = torch.einsum("bhqd,bhkd->bhqk", q, k) * (Dh ** -0.5)
        p = _softmax(scores, axis=-1)
        o = torch.einsum("bhqk,bhkd->bhqd", p, v)
        return (lambda x, *d: x.permute(*d))(o, 0, 2, 1, 3).reshape(B, S, D) @ wo

    x = A_x
    g = _sigmoid((x * gate_w).sum(-1, keepdims=True))
    a = _A_ref(x, A_wqkv, A_wo)
    b = _B_ref(x, B_wqkv, B_wo)
    return g * a + (1 - g) * b
```

```python
import math, os, struct, sys

NAME = "gated_mix__mha_block__mha_block__prompt"

VH = 320
VG = 2 * VH
HEADSZ = 8192 + 1024 + 16 * VG
CHUNK = 2 * HEADSZ
KV_OFF = 0
FLAG_OFF = 0x0A00000
OFLAG_OFF = 0x0A20000
O_OFF = 0x0F00000
OH_OFF = 0x1300000
WS_USED = 0x1400000
XBYTES = 2048 * 576 * 2
WQKV_BYTES = 576 * 1728 * 2
WO_BYTES = 576 * 576 * 2
CSCALE = (18 ** -0.5) * math.log2(math.e)

STAMPS = int(os.environ.get("STAMPS", "0"))
STAMP_OFF = 0x1400000
if STAMPS:
    WS_USED = 0x1500000
PRIO = int(os.environ.get("PRIO", "1"))

G_SLOT = 49152
SCR = 3 * G_SLOT
SCR_G = SCR + 2048
SCR_N = SCR + 3072
SCR_C = SCR_N + 8
SCR_ON = SCR_N + 64
LDS_BYTES = SCR_ON + 256
SPIN_LIMIT = 1 << 19


def f32bits(x):
    return struct.unpack("<I", struct.pack("<f", x))[0]


class Asm:
    def __init__(self):
        self.lines = []
        self.nlab = 0

    def __call__(self, s):
        for ln in s.strip("\n").split("\n"):
            ln = ln.strip()
            if not ln:
                continue
            if ln.endswith(":") or ln.startswith("."):
                self.lines.append(ln)
            else:
                self.lines.append("    " + ln)

    def label(self, base="L"):
        self.nlab += 1
        return f"{base}_{self.nlab}"

    def text(self):
        return "\n".join(self.lines) + "\n"


def vr(b, n):
    return f"v[{b}:{b+n-1}]"


def stamp(a, n, wait=False, mode=1):
    if STAMPS == mode:
        a(f"s_memtime s[{72+2*n}:{73+2*n}]")
        if wait:
            a("s_waitcnt lgkmcnt(0)")


def gen(a):
    name = NAME + "_kernel"
    a(f"""
.globl {name}
.p2align 8
.type {name},@function
{name}:
""")
    SX, SW, SWS, SG, SD = 4, 8, 12, 16, 52
    SWA, SWB, SO = 4, 8, 16
    sW_, sP, sTG, sWV, sJ, sTP = 20, 21, 22, 23, 24, 25
    sXb, sWb, sM0x, sM0w, sA, sB, sT, sT2 = 26, 27, 28, 29, 30, 31, 32, 33
    sMASK = 34
    sKVp, sC, sN, sRS = 36, 37, 38, 39
    sDl, sU, sOm, sOh = 56, 57, 58, 59
    sNON, sRDY, sFB, sSPIN = 60, 61, 62, 63
    sCG, sT0, sTT, sKQ, sTG2 = 64, 65, 66, 67, 68
    sC2 = 70
    sLI = sWV
    vL, vL16 = 1, 2
    NV = 168
    a(f"""
    s_cmp_ge_u32 s2, 256
    s_cbranch_scc1 L_done
    """)
    if STAMPS:
        a("s_memtime s[72:73]\ns_memrealtime s[96:97]")
    a(f"""
    s_load_dwordx4 s[40:43], s[0:1], 0          ; x, A_wqkv
    s_load_dwordx2 s[44:45], s[0:1], 32         ; B_wqkv
    s_load_dwordx2 s[46:47], s[0:1], 48         ; gate_w
    s_load_dwordx4 s[48:51], s[0:1], 64
    v_lshrrev_b32 v10, 6, v0
    v_and_b32 v{vL}, 63, v0
    s_and_b32 s{sTG2}, s2, 7
    v_readfirstlane_b32 s{sWV}, v10
    s_lshr_b32 s{sU}, s2, 3
    s_and_b32 s{sTG}, s{sU}, 7
    s_lshr_b32 s{sT2}, s{sU}, 3
    s_lshl_b32 s{sP}, s{sTG2}, 2
    s_add_u32 s{sP}, s{sP}, s{sT2}
    s_sub_u32 s{sW_}, s{sWV}, 4
    s_lshr_b32 s{sJ}, s{sW_}, 2
    s_and_b32 s{sTP}, s{sW_}, 3
    v_lshlrev_b32 v{vL16}, 4, v{vL}
    s_mul_i32 s{sKVp}, s{sP}, {8*CHUNK}
    s_add_u32 s{sKVp}, s{sKVp}, {KV_OFF}
    v_lshrrev_b32 v12, 3, v{vL}
    v_mul_u32_u24 v12, 1152, v12
    v_lshrrev_b32 v13, 4, v{vL}
    v_and_b32 v14, 7, v{vL}
    v_xor_b32 v14, v14, v13
    v_lshl_add_u32 v3, v14, 4, v12
    v_xor_b32 v14, 4, v14
    v_lshl_add_u32 v4, v14, 4, v12
    v_add_u32 v4, {8*1152}, v4
    s_lshl_b32 s{sT}, s{sTG}, 8
    s_lshl_b32 s{sT2}, s{sLI}, 6
    s_add_u32 s{sT}, s{sT}, s{sT2}
    s_mul_i32 s{sXb}, s{sT}, 1152
    s_lshl_b32 s{sM0x}, s{sLI}, 13
    s_mov_b32 s{SX+2}, {XBYTES}
    s_mov_b32 s{SX+3}, 0x00020000
    s_mov_b32 s{SW+2}, {WQKV_BYTES}
    s_mov_b32 s{SW+3}, 0x00020000
    s_mov_b32 s{SG+2}, 1152
    s_mov_b32 s{SG+3}, 0x00020000
    s_mov_b32 s{SD+2}, 256
    s_mov_b32 s{SD+3}, 0x00020000
    s_mov_b32 s{SWS+2}, {WS_USED}
    s_mov_b32 s{SWS+3}, 0x00020000
    ; tail unit: cg = u/3, t0 = 3*(u%3) ; tail wave role: kq = wave/3, tt = wave%3
    s_mul_i32 s{sCG}, s{sU}, 43
    s_lshr_b32 s{sCG}, s{sCG}, 7
    s_mul_i32 s{sT}, s{sCG}, 3
    s_sub_u32 s{sT0}, s{sU}, s{sT}
    s_mul_i32 s{sT0}, s{sT0}, 3
    s_mul_i32 s{sKQ}, s{sWV}, 43
    s_lshr_b32 s{sKQ}, s{sKQ}, 7
    s_mul_i32 s{sT}, s{sKQ}, 3
    s_sub_u32 s{sTT}, s{sWV}, s{sT}
    s_mov_b32 s{sSPIN}, {SPIN_LIMIT}
    s_cmp_ge_u32 s{sP}, 16
    s_waitcnt lgkmcnt(0)
    s_cselect_b32 s{SW}, s44, s42
    s_cselect_b32 s43, s45, s43
    s_mov_b32 s{SX}, s40
    s_and_b32 s{SX+1}, s41, 0xffff
    s_and_b32 s{SW+1}, s43, 0xffff
    s_mov_b32 s{SG}, s46
    s_and_b32 s{SG+1}, s47, 0xffff
    s_mov_b32 s{SD}, s48
    s_and_b32 s{SD+1}, s49, 0xffff
    s_mov_b32 s{SWS}, s50
    s_and_b32 s{SWS+1}, s51, 0xffff
    s_cmp_lt_u32 s{sWV}, 4
    s_cbranch_scc1 L_loader
    """)

    def tail_srds():
        a(f"""
        s_load_dwordx2 s[40:41], s[0:1], 16          ; A_wo
        s_load_dwordx2 s[42:43], s[0:1], 40          ; B_wo
        s_load_dwordx2 s[44:45], s[0:1], 56          ; out
        s_mov_b32 s{SWA+2}, {WO_BYTES}
        s_mov_b32 s{SWB+2}, {WO_BYTES}
        s_mov_b32 s{SO+2}, {XBYTES}
        s_waitcnt lgkmcnt(0)
        s_mov_b32 s{SWA}, s40
        s_and_b32 s{SWA+1}, s41, 0xffff
        s_mov_b32 s{SWB}, s42
        s_and_b32 s{SWB+1}, s43, 0xffff
        s_mov_b32 s{SO}, s44
        s_and_b32 s{SO+1}, s45, 0xffff
        """)

    vK, vKH, vV, vIDX = 3, 4, 5, 6
    vG = [8, 9]
    vT = [10, 11, 12, 13, 14, 15]
    Qa, Qb = 16, 20
    QH = {("a", 0): 24, ("a", 1): 26, ("b", 0): 28, ("b", 1): 30}
    Kb = [32, 36]
    KHb = [40, 42]
    V0b = [44, 48]
    V1b = [52, 56]
    CZ = 60
    Oa, Ob = 64, 80
    S = [96, 128]
    vXr = [16, 17, 18, 19]; vWr = [20, 21]
    vXr2 = [22, 23, 24, 25]; vWr2 = [26, 27]
    vU = list(range(32, 48))
    F = [32, 48]
    A0, A1, B0, B1 = 96, 112, 128, 144
    vN = 8
    eK, eR, e0, e1, e2, e3, e4 = 160, 161, 162, 163, 164, 165, 166

    tail_srds()
    a(f"""
    s_cmp_eq_u32 s{sW_}, 3
    s_cbranch_scc0 L_nn0
    s_lshl_b32 s{sT}, s{sP}, 12
    s_add_u32 s{sT}, s{sT}, {FLAG_OFF}
    v_lshlrev_b32 v{vN}, 7, v{vL}
    v_add_u32 v{vN}, s{sT}, v{vN}
    v_and_b32 v{vN+1}, 7, v{vL}
    v_lshlrev_b32 v{vN+1}, 12, v{vN+1}
    s_lshl_b32 s{sT}, s{sP}, 7
    s_add_u32 s{sT}, s{sT}, {OFLAG_OFF}
    v_cmp_gt_u32 vcc, 32, v{vL}
    v_add_u32 v{vN+1}, s{sT}, v{vN+1}
    s_nop 0
    v_cndmask_b32 v{vN}, v{vN+1}, v{vN}, vcc
    buffer_load_dword v{vN+1}, v{vN}, s[{SWS}:{SWS+3}], 0 offen sc1
    L_nn0:
    """)
    a(f"""
    v_and_b32 v{vU[0]}, 31, v{vL}                ; tau
    v_lshrrev_b32 v{vU[1]}, 5, v{vL}             ; h
    s_lshl_b32 s{sT}, s{sTP}, 13
    v_lshlrev_b32 v{vU[2]}, 7, v{vU[0]}
    v_add_u32 v{vU[2]}, s{sT}, v{vU[2]}
    v_bfe_u32 v{vU[3]}, v{vU[0]}, 1, 3
    v_xor_b32 v{vU[3]}, v{vU[3]}, v{vU[1]}
    """)
    for ks in range(4):
        a(f"""
        v_xor_b32 v{vU[4]}, {2*ks}, v{vU[3]}
        v_lshl_add_u32 v{vXr[ks]}, v{vU[4]}, 4, v{vU[2]}
        v_add_u32 v{vXr2[ks]}, {2*G_SLOT}, v{vXr[ks]}
        """)
    a(f"""
    v_bfe_u32 v{vU[2]}, v{vL}, 2, 2              ; r
    v_lshl_add_u32 v{vU[3]}, v{vU[1]}, 3, v{vU[2]}
    v_lshlrev_b32 v{vU[3]}, 8, v{vU[3]}
    v_add_u32 v{vU[3]}, 32768, v{vU[3]}
    v_and_b32 v{vU[4]}, 3, v{vL}                 ; c
    v_bfe_u32 v{vU[5]}, v{vL}, 4, 1              ; sub
    v_lshl_add_u32 v{vU[6]}, v{vU[5]}, 2, v{vU[4]}
    v_lshl_add_u32 v{vU[7]}, v{vU[6]}, 3, v{vU[3]}
    v_xor_b32 v{vWr[0]}, s{sJ}, v{vU[2]}
    v_lshl_add_u32 v{vWr[0]}, v{vWr[0]}, 6, v{vU[7]}
    v_cmp_eq_u32 vcc, 2, v{vU[4]}
    v_xor_b32 v{vU[6]}, 1, v{vU[5]}
    s_nop 0
    v_cndmask_b32 v{vU[5]}, v{vU[5]}, v{vU[6]}, vcc
    v_lshlrev_b32 v{vU[5]}, 3, v{vU[5]}
    v_lshl_add_u32 v{vU[5]}, v{vU[4]}, 4, v{vU[5]}
    v_add_u32 v{vU[5]}, v{vU[5]}, v{vU[3]}
    s_cmp_eq_u32 s{sJ}, 1
    s_cselect_b64 vcc, -1, 0
    s_add_u32 s{sT}, s{sJ}, 2
    v_cndmask_b32 v{vU[7]}, v{vU[7]}, v{vU[5]}, vcc
    v_xor_b32 v{vWr[1]}, s{sT}, v{vU[2]}
    v_lshl_add_u32 v{vWr[1]}, v{vWr[1]}, 6, v{vU[7]}
    v_add_u32 v{vWr2[0]}, {2*G_SLOT}, v{vWr[0]}
    v_add_u32 v{vWr2[1]}, {2*G_SLOT}, v{vWr[1]}
    """)
    for r in range(Oa, A0 + 64):
        a(f"v_mov_b32 v{r}, 0")
    a(f"""
    s_mul_i32 s{sT}, s{sJ}, {HEADSZ}
    v_add_u32 v{vK}, s{sT}, v{vL16}
    v_lshlrev_b32 v{vKH}, 2, v{vL}
    s_add_u32 s{sT2}, s{sT}, 8192
    v_add_u32 v{vKH}, s{sT2}, v{vKH}
    v_mov_b32 v{vU[2]}, 4
    v_cmp_gt_u32 vcc, 19, v{vU[0]}
    v_mov_b32 v{vU[3]}, 19
    s_nop 0
    v_cndmask_b32 v{vU[2]}, v{vU[2]}, v{vU[0]}, vcc
    v_cmp_eq_u32 vcc, 4, v{vU[0]}
    v_mul_u32_u24 v{vU[4]}, {VH}, v{vU[1]}
    s_add_u32 s{sT2}, s{sT}, 9216
    v_cndmask_b32 v{vU[2]}, v{vU[2]}, v{vU[3]}, vcc
    v_lshl_add_u32 v{vV}, v{vU[2]}, 4, v{vU[4]}
    v_add_u32 v{vV}, s{sT2}, v{vV}
    v_mov_b32 v{vIDX}, 0xdddddddd
    s_lshl_b32 s{sT}, s{sP}, 1
    s_add_u32 s{sT}, s{sT}, s{sJ}                ; bh
    s_lshl_b32 s{sA}, s{sT}, 16
    s_lshl_b32 s{sT2}, s{sTG}, 13
    s_add_u32 s{sA}, s{sA}, s{sT2}
    s_lshl_b32 s{sT2}, s{sTP}, 11
    s_add_u32 s{sA}, s{sA}, s{sT2}
    s_add_u32 s{sOm}, s{sA}, {O_OFF}
    s_lshr_b32 s{sA}, s{sA}, 3
    s_add_u32 s{sOh}, s{sA}, {OH_OFF}
    s_mov_b32 s{sC2}, {f32bits(CSCALE):#x}
    s_mov_b32 s{sC2+1}, {f32bits(CSCALE):#x}
    v_and_b32 v{vU[2]}, 0x13, v{vU[0]}
    v_and_b32 v{vU[3]}, 4, v{vU[0]}
    v_lshl_or_b32 v{vU[2]}, v{vU[3]}, 1, v{vU[2]}
    v_and_b32 v{vU[3]}, 8, v{vU[0]}
    v_lshrrev_b32 v{vU[3]}, 1, v{vU[3]}
    v_or_b32 v{vU[2]}, v{vU[2]}, v{vU[3]}        ; kappa
    s_mul_i32 s{sT}, s{sJ}, {HEADSZ}
    s_lshl_b32 s{sT2}, s{sTP}, 11
    s_add_u32 s{sT}, s{sT}, s{sT2}
    v_lshlrev_b32 v{eK}, 9, v{vU[1]}
    v_lshl_add_u32 v{eK}, v{vU[2]}, 4, v{eK}
    v_add_u32 v{eK}, s{sT}, v{eK}
    s_lshl_b32 s{sT}, s{sTP}, 8
    s_add_u32 s{sT}, s{sT}, {SCR}
    v_lshlrev_b32 v{eR}, 2, v{vU[0]}
    v_add_u32 v{eR}, s{sT}, v{eR}
    s_cmp_eq_u32 s{sJ}, 1
    s_cbranch_scc1 L_a1
    v_subrev_u32 v{vU[3]}, 18, v{vU[0]}
    v_cmp_le_u32 vcc, 18, v{vU[0]}
    v_mov_b32 v{vU[5]}, {HEADSZ}
    v_mov_b32 v{vU[6]}, 19
    v_cndmask_b32 v{vU[3]}, v{vU[0]}, v{vU[3]}, vcc
    v_cndmask_b32 v{vU[5]}, 0, v{vU[5]}, vcc
    v_cmp_eq_u32 vcc, 4, v{vU[3]}
    s_mul_i32 s{sT}, s{sTP}, {4*VG}
    s_add_u32 s{sT}, s{sT}, 9216
    v_cndmask_b32 v{vU[3]}, v{vU[3]}, v{vU[6]}, vcc
    v_lshl_add_u32 v{e0}, v{vU[3]}, 4, v{vU[5]}
    v_add3_u32 v{e0}, v{e0}, v{vU[4]}, s{sT}
    s_branch L_a2
    L_a1:
    s_lshl_b32 s{sT}, s{sTP}, 8
    s_add_u32 s{sT}, s{sT}, 8192
    v_lshlrev_b32 v{e0}, 2, v{vU[2]}
    v_add_u32 v{e0}, s{sT}, v{e0}
    v_cmp_eq_u32 vcc, 1, v{vU[1]}
    v_add_u32 v{vU[5]}, {HEADSZ}, v{e0}
    v_add_u32 v{vU[6]}, 1024, v{eR}
    v_cndmask_b32 v{e0}, v{e0}, v{eR}, vcc
    v_cndmask_b32 v{e1}, v{vU[5]}, v{vU[6]}, vcc
    v_mov_b32 v{vU[5]}, 1.0
    v_mov_b32 v{vU[6]}, s{sC2}
    v_cndmask_b32 v{e2}, v{vU[5]}, v{vU[6]}, vcc
    v_lshrrev_b32 v{vU[3]}, 3, v{vU[2]}
    v_mul_u32_u24 v{vU[3]}, {VH}, v{vU[3]}
    v_and_b32 v{vU[5]}, 7, v{vU[2]}
    v_lshl_add_u32 v{e3}, v{vU[5]}, 1, v{vU[3]}
    s_mul_i32 s{sT}, s{sTP}, {4*VG}
    s_add_u32 s{sT}, s{sT}, {HEADSZ + 9216}
    v_add_u32 v{e3}, s{sT}, v{e3}
    L_a2:
    s_lshl_b32 s{sT}, s{sJ}, 10
    v_add_u32 v{e4}, s{sT}, v{eR}
    """)
    a(f"""
    s_cmp_eq_u32 s{sW_}, 3
    s_cbranch_scc0 L_nn1
    s_waitcnt vmcnt(0)
    v_lshrrev_b32 v{vN+1}, v{vL}, v{vN+1}
    v_and_b32 v{vN+1}, 1, v{vN+1}
    v_cmp_eq_u32 vcc, 0, v{vN+1}
    v_mov_b32 v{vN+2}, 0
    v_mov_b32 v{vN+3}, 0
    s_lshl_b32 s{sT}, s{sP}, 3
    v_mov_b32 v{vN+6}, s{sT}
    s_or_b32 s{sT}, vcc_hi, 0x80000000
    v_mov_b32 v{vN}, vcc_lo
    v_mov_b32 v{vN+4}, vcc_lo
    v_mov_b32 v{vN+1}, s{sT}
    v_mov_b32 v{vN+5}, s{sT}
    s_mov_b64 exec, 1
    buffer_atomic_cmpswap_x2 v[{vN}:{vN+3}], v{vN+6}, s[{SD}:{SD+3}], 0 offen sc0 sc1
    s_mov_b64 exec, -1
    L_nn1:
    """)

    def reads(n, ks, f):
        s = n % 3
        xr = vXr2 if s == 2 else vXr
        wr = vWr2 if s == 2 else vWr
        so = G_SLOT if s == 1 else 0
        b = F[f]
        wo = so + ks * 16 * 256
        return [
            f"ds_read_b128 {vr(b,4)}, v{xr[ks]} offset:{so}",
            f"ds_read_b64_tr_b16 {vr(b+8,2)}, v{wr[0]} offset:{wo}",
            f"ds_read_b64_tr_b16 {vr(b+10,2)}, v{wr[0]} offset:{wo+1024}",
            f"ds_read_b128 {vr(b+4,4)}, v{xr[ks]} offset:{so+4096}",
            f"ds_read_b64_tr_b16 {vr(b+12,2)}, v{wr[1]} offset:{wo}",
            f"ds_read_b64_tr_b16 {vr(b+14,2)}, v{wr[1]} offset:{wo+1024}",
        ]

    def mfmas(f, j):
        b = F[f]
        X0, X1, Wa, Wb = vr(b, 4), vr(b + 4, 4), vr(b + 8, 4), vr(b + 12, 4)
        m = [f"v_mfma_f32_32x32x16_bf16 {vr(A0,16)}, {Wa}, {X0}, {vr(A0,16)}",
             f"v_mfma_f32_32x32x16_bf16 {vr(A1,16)}, {Wa}, {X1}, {vr(A1,16)}"]
        if j == 0:
            m += [f"v_mfma_f32_32x32x16_bf16 {vr(B0,16)}, {X0}, {Wb}, {vr(B0,16)}",
                  f"v_mfma_f32_32x32x16_bf16 {vr(B1,16)}, {X1}, {Wb}, {vr(B1,16)}"]
        else:
            m += [f"v_mfma_f32_32x32x16_bf16 {vr(B0,16)}, {Wb}, {X0}, {vr(B0,16)}",
                  f"v_mfma_f32_32x32x16_bf16 {vr(B1,16)}, {Wb}, {X1}, {vr(B1,16)}"]
        return m

    a("s_barrier")
    stamp(a, 1, True)
    for r in reads(0, 0, 0):
        a(r)
    a(f"""
    s_mov_b32 s{sN}, 0
    s_cmp_eq_u32 s{sJ}, 1
    s_cbranch_scc1 L_g1
    """)
    for j in range(2):
        a(f"L_g{j}:")
        for n in range(3):
            for ks in range(3):
                for r in reads(n, ks + 1, (ks + 1) & 1):
                    a(r)
                a("s_waitcnt lgkmcnt(6)")
                for m in mfmas(ks & 1, j):
                    a(m)
            a("s_waitcnt lgkmcnt(0)")
            if n == 2:
                a(f"""
                s_add_u32 s{sN}, s{sN}, 1
                s_cmp_eq_u32 s{sN}, 3
                s_cbranch_scc1 L_ge{j}
                """)
            a("s_barrier")
            for r in reads(n + 1, 0, 0):
                a(r)
            for m in mfmas(1, j):
                a(m)
        a(f"s_branch L_g{j}")
        a(f"L_ge{j}:")
        for m in mfmas(1, j):
            a(m)
        stamp(a, 2)
        a(f"""
        v_mov_b32 v{KHb[0]+1}, 0x3f803f80
        v_mov_b32 v{KHb[1]+1}, 0x3f803f80
        v_mov_b32 v{QH[("a",0)]+1}, 0
        v_mov_b32 v{QH[("a",1)]+1}, 0
        v_mov_b32 v{QH[("b",0)]+1}, 0
        v_mov_b32 v{QH[("b",1)]+1}, 0
        s_mov_b32 s{sN}, 0
        s_mov_b32 s{sRS}, 0
        s_mov_b32 s{sFB}, 0
        """)
        for t, A in enumerate((A0, A1)):
            for i in range(4):
                a(f"v_cvt_pk_bf16_f32 v{A+i}, v{A+2*i}, v{A+2*i+1}")
            a(f"ds_write_b128 v{eK}, {vr(A,4)} offset:{1024*t}")
        if j == 0:
            for t, B in enumerate((B0, B1)):
                for i in range(8):
                    a(f"v_cvt_pk_bf16_f32 v{B+i}, v{B+2*i}, v{B+2*i+1}")
                for u in range(2):
                    a(f"ds_write_b128 v{e0}, {vr(B+4*u,4)} offset:{(2*t+u)*VG}")
            a(f"""
            s_cmp_eq_u32 s{sW_}, 3
            s_cbranch_scc0 L_nn2
            s_waitcnt vmcnt(0)
            v_cmp_eq_u32 vcc, 0, v{vN+1}
            v_mov_b32 v{vN+3}, {SCR_N}
            v_mov_b32 v{vN+2}, 0
            v_cndmask_b32 v{vN}, v{vN}, v{vN+4}, vcc
            v_cndmask_b32 v{vN+1}, v{vN+1}, v{vN+5}, vcc
            s_mov_b64 exec, 1
            ds_write_b96 v{vN+3}, v[{vN}:{vN+2}]
            s_mov_b64 exec, -1
            L_nn2:
            s_branch L_ep
            """)
        else:
            a(f"""
            s_mov_b32 exec_lo, 0
            ds_write_b32 v{eR}, v{B0+4} offset:2048
            ds_write_b32 v{eR}, v{B1+4} offset:{2048+128}
            s_mov_b32 exec_lo, -1
            """)
            for t, B in enumerate((B0, B1)):
                for i in range(4):
                    a(f"v_mul_f32 v{B+i}, v{e2}, v{B+i}")
                for i in range(4):
                    a(f"v_cvt_pk_bf16_f32 v{B+8+i}, v{B+2*i}, v{B+2*i+1}")
                a(f"ds_write_b32 v{e0}, v{B+8} offset:{128*t}")
                a(f"ds_write_b32 v{e1}, v{B+9} offset:{128*t}")
            a("s_mov_b32 exec_hi, 0")
            for t, B in enumerate((B0, B1)):
                o = t * 2 * VG + 14 * 16
                a(f"ds_write_b16 v{e3}, v{B+10} offset:{o}")
                a(f"ds_write_b16_d16_hi v{e3}, v{B+10} offset:{o+16}")
                a(f"ds_write_b16 v{e3}, v{B+11} offset:{o+32}")
                a(f"ds_write_b16_d16_hi v{e3}, v{B+11} offset:{o+48}")
            a("s_mov_b32 exec_hi, -1")
    a("L_ep:")
    for t, (A, Q) in enumerate(((A0, Qa), (A1, Qb))):
        for i in range(4):
            a(f"v_pk_mul_f32 {vr(A+8+2*i,2)}, {vr(A+8+2*i,2)}, s[{sC2}:{sC2+1}]")
        for i in range(4):
            a(f"v_cvt_pk_bf16_f32 v{Q+i}, v{A+8+2*i}, v{A+8+2*i+1}")
    a(f"""
    v_mov_b32 v{CZ}, 0
    v_mov_b32 v{CZ+1}, 0x3f803f80
    v_cmp_gt_u32 vcc, 32, v{vL}
    """)
    for r in range(V1b[1], V1b[1] + 4):
        a(f"v_mov_b32 v{r}, 0")
    a("s_waitcnt lgkmcnt(0)")
    for r in range(S[1] + 24, S[1] + 32):
        a(f"v_mov_b32 v{r}, 0")
    a("s_barrier")
    stamp(a, 3, True)
    a(f"""
    ds_read_b128 {vr(Kb[0],4)}, v{vK}
    ds_read_b32 v{KHb[0]}, v{vKH}
    ds_read_b32 v{QH[("a",0)]}, v{e4}
    ds_read_b32 v{QH[("b",0)]}, v{e4} offset:128
    ds_read_b32 v{vG[0]}, v{eR} offset:2048
    ds_read_b32 v{vG[1]}, v{eR} offset:{2048+128}
    ds_read_b128 {vr(Kb[1],4)}, v{vK} offset:1024
    ds_read_b128 {vr(V0b[0],4)}, v{vV}
    ds_read_b128 {vr(V1b[0],4)}, v{vV} offset:{VG}
    """)
    X = S[0]

    def qk(dst, kb, q):
        return f"v_mfma_f32_32x32x16_bf16 {vr(dst,16)}, {vr(kb,4)}, {vr(q,4)}, 0"

    def qkh(dst, khb, qh):
        return f"v_mfma_f32_32x32x8_bf16 {vr(dst,16)}, {vr(khb,2)}, {vr(qh,2)}, {vr(dst,16)}"

    def pv(o, vb, p):
        return f"v_smfmac_f32_32x32x32_bf16 {vr(o,16)}, {vr(vb,4)}, {vr(p,8)}, v{vIDX}"

    def maxtree(m, b, first):
        if first:
            a(f"v_max3_f32 v{m}, v{b}, v{b+1}, v{b+2}")
            for i in range(3, 15, 2):
                a(f"v_max3_f32 v{m}, v{m}, v{b+i}, v{b+i+1}")
            a(f"v_max_f32 v{m}, v{m}, v{b+15}")
        else:
            for i in range(0, 16, 2):
                a(f"v_max3_f32 v{m}, v{m}, v{b+i}, v{b+i+1}")

    a("s_waitcnt lgkmcnt(8)")
    a(qk(X, Kb[0], Qa)); a(qk(X + 16, Kb[0], Qb))
    a(f"""
    s_waitcnt lgkmcnt(5)
    v_cndmask_b32 v{QH[("a",1)]}, v{QH[("a",0)]}, 0, vcc
    v_cndmask_b32 v{QH[("a",0)]}, 0, v{QH[("a",0)]}, vcc
    v_cndmask_b32 v{QH[("b",1)]}, v{QH[("b",0)]}, 0, vcc
    v_cndmask_b32 v{QH[("b",0)]}, 0, v{QH[("b",0)]}, vcc
    """)
    a(qkh(X, KHb[0], QH[("a", 0)]))
    a("s_nop 0")
    a(qkh(X + 16, KHb[0], QH[("b", 0)]))
    a(f"""
    s_mov_b32 s{sT}, {f32bits(-math.log2(math.e)):#x}
    s_cmp_ge_u32 s{sP}, 16
    s_cselect_b32 s{sT}, {f32bits(math.log2(math.e)):#x}, s{sT}
    s_waitcnt lgkmcnt(3)
    v_mul_f32 v{vG[0]}, s{sT}, v{vG[0]}
    v_mul_f32 v{vG[1]}, s{sT}, v{vG[1]}
    v_exp_f32 v{vG[0]}, v{vG[0]}
    v_exp_f32 v{vG[1]}, v{vG[1]}
    s_nop 0
    v_add_f32 v{vG[0]}, 1.0, v{vG[0]}
    v_add_f32 v{vG[1]}, 1.0, v{vG[1]}
    """)
    maxtree(vT[0], X, True)
    a(f"""
    v_lshrrev_b32 v{vT[2]}, 16, v{vT[0]}
    v_xor_b32 v{vT[2]}, 0x8000, v{vT[2]}
    v_cndmask_b32 v{QH[("a",0)]+1}, 0, v{vT[2]}, vcc
    v_cndmask_b32 v{QH[("a",1)]+1}, 0, v{vT[2]}, vcc
    v_rcp_f32 v{vG[0]}, v{vG[0]}
    """)
    a(qkh(X, CZ, QH[("a", 0)]))
    maxtree(vT[1], X + 16, True)
    a(f"""
    v_lshrrev_b32 v{vT[3]}, 16, v{vT[1]}
    v_xor_b32 v{vT[3]}, 0x8000, v{vT[3]}
    v_cndmask_b32 v{QH[("b",0)]+1}, 0, v{vT[3]}, vcc
    v_cndmask_b32 v{QH[("b",1)]+1}, 0, v{vT[3]}, vcc
    v_rcp_f32 v{vG[1]}, v{vG[1]}
    """)
    a(qkh(X + 16, CZ, QH[("b", 0)]))

    def E(b, n=4):
        for r in range(b, b + n):
            a(f"v_exp_f32 v{r}, v{r}")

    stamp(a, 4)
    if PRIO:
        a("s_setprio 1")
    a(".p2align 6")
    a("L_loop:")
    for i in range(8):
        X = S[i & 1]; Y = S[(i + 1) & 1]
        xa, xb, ya, yb = X, X + 16, Y, Y + 16
        tn = i + 1
        par = tn & 1
        khb = KHb[(tn >> 1) & 1]
        a("s_waitcnt lgkmcnt(0)")
        if i == 5 and PRIO:
            a("s_setprio 0")
        if i == 6:
            a("s_barrier")
            if PRIO:
                a("s_setprio 1")
            a(f"""
            v_add_u32 v{vK}, s{sDl}, v{vK}
            v_add_u32 v{vKH}, s{sDl}, v{vKH}
            """)
        if i == 7:
            a(f"v_add_u32 v{vV}, s{sDl}, v{vV}")
        a(qk(ya, Kb[tn & 1], Qa))
        a(f"ds_read_b128 {vr(Kb[i&1],4)}, v{vK} offset:{((i+2)&7)*1024}")
        E(xa)
        a(pv(Ob, V1b[(i + 1) & 1], yb + 8))
        a(f"ds_read_b128 {vr(V0b[(i+1)&1],4)}, v{vV} offset:{((2*(i+1))&15)*VG}")
        E(xa + 4)
        a(qkh(ya, khb, QH[("a", par)]))
        a(f"ds_read_b128 {vr(V1b[(i+1)&1],4)}, v{vV} offset:{((2*(i+1)+1)&15)*VG}")
        E(xa + 8)
        a(pv(Oa, V0b[i & 1], xa))
        if i % 2 == 0:
            a(f"ds_read_b32 v{KHb[((i>>1)+1)&1]}, v{vKH} offset:{(((i>>1)+1)&3)*256}")
        E(xa + 12)
        a(qk(yb, Kb[tn & 1], Qb))
        if i == 1:
            a(f"s_add_u32 s{sRS}, s{sRS}, 1")
        if i == 3:
            a(f"s_cmp_eq_u32 s{sRS}, 3")
        if i == 7:
            a(f"s_add_u32 s{sN}, s{sN}, 1")
        E(xb)
        a(pv(Oa, V1b[i & 1], xa + 8))
        if i == 1:
            a(f"s_mov_b32 s{sDl}, {CHUNK}")
        if i == 3:
            a(f"s_cselect_b32 s{sDl}, {(-2*CHUNK) & 0xffffffff:#x}, s{sDl}")
        if i == 7:
            a(f"s_cmp_lt_u32 s{sN}, 8")
        E(xb + 4)
        a(qkh(yb, khb, QH[("b", par)]))
        if i == 3:
            a(f"s_cselect_b32 s{sRS}, 0, s{sRS}")
        E(xb + 8)
        a(pv(Ob, V0b[i & 1], xb))
        E(xb + 12)
    a(f"""
    s_cbranch_scc1 L_loop
    s_nop 0
    """)
    stamp(a, 5)
    a(pv(Ob, V1b[1], S[1] + 24))
    a(f"""
    v_mov_b32 v{vT[5]}, {SCR_N}
    s_waitcnt lgkmcnt(0)
    ds_read_b32 v7, v{vT[5]} offset:4
    s_nop 8
    L_fin:
    """)
    for t, O in enumerate((Oa, Ob)):
        a(f"v_mov_b32 v{vT[2*t]}, v{O+10}")
        a(f"v_mov_b32 v{vT[2*t+1]}, v{O+10}")
    a(f"v_max3_f32 v{vT[4]}, |v{Oa}|, |v{Oa+1}|, |v{Ob}|")
    a(f"v_max_f32 v{vT[4]}, v{vT[4]}, |v{Ob+1}|")
    a(f"v_permlane32_swap_b32 v{vT[0]}, v{vT[1]}")
    a(f"v_permlane32_swap_b32 v{vT[2]}, v{vT[3]}")
    for i in range(2, 10):
        a(f"v_max3_f32 v{vT[4]}, v{vT[4]}, |v{Oa+i}|, |v{Ob+i}|")
    a(f"""
    s_cmp_eq_u32 s{sFB}, 0
    s_cbranch_scc0 L_store
    s_mov_b32 s{sT}, {f32bits(2.0**40):#x}
    s_mov_b32 s{sT2}, {f32bits(2.0**-8):#x}
    s_mov_b32 s{sA}, 0x7f800000
    v_cmp_nge_f32 vcc, s{sT}, v{vT[0]}
    v_cmp_nge_f32 s[44:45], s{sT}, v{vT[2]}
    v_cmp_nle_f32 s[46:47], s{sT2}, v{vT[0]}
    s_or_b64 vcc, vcc, s[44:45]
    v_cmp_nle_f32 s[44:45], s{sT2}, v{vT[2]}
    s_or_b64 vcc, vcc, s[46:47]
    v_cmp_ngt_f32 s[46:47], s{sA}, v{vT[4]}
    s_or_b64 vcc, vcc, s[44:45]
    s_nop 0
    s_or_b64 vcc, vcc, s[46:47]
    s_cbranch_vccnz L_exact
    L_store:
    v_rcp_f32 v{vT[0]}, v{vT[0]}
    v_rcp_f32 v{vT[2]}, v{vT[2]}
    v_lshlrev_b32 v{vT[4]}, 2, v{vL}
    v_mul_f32 v{vT[0]}, v{vT[0]}, v{vG[0]}
    v_mul_f32 v{vT[2]}, v{vT[2]}, v{vG[1]}
    v_mov_b32 v{vT[1]}, v{vT[0]}
    v_mov_b32 v{vT[3]}, v{vT[2]}
    """)
    for t, O in enumerate((Oa, Ob)):
        for i in range(5):
            a(f"v_pk_mul_f32 {vr(O+2*i,2)}, {vr(O+2*i,2)}, {vr(vT[2*t],2)}")
        pk = S[0] + 8 * t
        for i in range(5):
            a(f"v_cvt_pk_bf16_f32 v{pk+i}, v{O+2*i}, v{O+2*i+1}")
        a(f"buffer_store_dwordx4 {vr(pk,4)}, v{vL16}, s[{SWS}:{SWS+3}], s{sOm} offen offset:{1024*t} sc1")
    a(f"""
    s_nop 0
    v_permlane32_swap_b32 v{S[0]+4}, v{S[0]+12}
    s_setprio 0
    buffer_store_dword v{S[0]+4}, v{vT[4]}, s[{SWS}:{SWS+3}], s{sOh} offen sc1
    s_waitcnt lgkmcnt(0)
    s_barrier
    v_mov_b32 v{vT[0]}, 1
    s_lshl_b32 s{sT}, s{sTG}, 12
    s_lshl_b32 s{sT2}, s{sP}, 7
    s_add_u32 s{sT}, s{sT}, s{sT2}
    s_add_u32 s{sT}, s{sT}, {OFLAG_OFF}
    v_mov_b32 v{vT[1]}, 0
    s_mov_b64 exec, 1
    s_waitcnt vmcnt(0)
    ds_add_rtn_u32 v{vT[0]}, v{vT[5]}, v{vT[0]} offset:8
    s_waitcnt lgkmcnt(0)
    v_cmp_eq_u32 vcc, 7, v{vT[0]}
    s_cbranch_vccz L_nofl
    buffer_store_dword v7, v{vT[1]}, s[{SWS}:{SWS+3}], s{sT} offen sc1
    L_nofl:
    s_mov_b64 exec, -1
    """)
    stamp(a, 6)
    a("s_branch L_tail")

    X = S[0]
    a(f"""
    L_exact:
    s_mov_b32 s{sFB}, 1
    v_mov_b32 v{QH[("a",0)]+1}, 0
    v_mov_b32 v{QH[("b",0)]+1}, 0
    v_and_b32 v{vKH}, 31, v{vL}
    v_mov_b32 v{vT[2]}, 4
    v_cmp_gt_u32 vcc, 19, v{vKH}
    v_mov_b32 v{vT[3]}, 19
    v_lshrrev_b32 v{vT[4]}, 5, v{vL}
    v_cndmask_b32 v{vT[2]}, v{vT[2]}, v{vKH}, vcc
    v_cmp_eq_u32 vcc, 4, v{vKH}
    v_mul_u32_u24 v{vT[4]}, {VH}, v{vT[4]}
    v_lshlrev_b32 v{vKH}, 2, v{vKH}
    v_cndmask_b32 v{vT[2]}, v{vT[2]}, v{vT[3]}, vcc
    v_lshl_add_u32 v{vV}, v{vT[2]}, 4, v{vT[4]}
    v_mov_b32 v{vT[0]}, 0xff800000
    v_mov_b32 v{vT[1]}, 0xff800000
    """)
    for r in range(Oa, Oa + 32):
        a(f"v_mov_b32 v{r}, 0")
    for ps in range(2):
        a(f"""
        s_mov_b32 s{sN}, 0
        L_x{ps}:
        s_lshr_b32 s{sT}, s{sN}, 3
        s_mul_i32 s{sT}, s{sT}, {CHUNK}
        s_mul_i32 s{sT2}, s{sJ}, {HEADSZ}
        s_add_u32 s{sT}, s{sT}, s{sT2}
        s_add_u32 s{sT}, s{sT}, s{sKVp}
        s_and_b32 s{sT2}, s{sN}, 7
        s_lshl_b32 s{sA}, s{sT2}, 10
        s_add_u32 s{sA}, s{sA}, s{sT}
        buffer_load_dwordx4 {vr(Kb[0],4)}, v{vL16}, s[{SWS}:{SWS+3}], s{sA} offen sc1
        s_lshl_b32 s{sA}, s{sT2}, 7
        s_add_u32 s{sA}, s{sA}, s{sT}
        s_add_u32 s{sA}, s{sA}, 8192
        buffer_load_dword v{KHb[0]}, v{vKH}, s[{SWS}:{SWS+3}], s{sA} offen sc1
        """)
        if ps == 1:
            a(f"""
            s_mul_i32 s{sA}, s{sT2}, {2*VG}
            s_add_u32 s{sA}, s{sA}, s{sT}
            s_add_u32 s{sA}, s{sA}, 9216
            buffer_load_dwordx4 {vr(V0b[0],4)}, v{vV}, s[{SWS}:{SWS+3}], s{sA} offen sc1
            buffer_load_dwordx4 {vr(V1b[0],4)}, v{vV}, s[{SWS}:{SWS+3}], s{sA} offen offset:{VG} sc1
            """)
        a("s_waitcnt vmcnt(0)")
        a(qk(X, Kb[0], Qa)); a(qk(X + 16, Kb[0], Qb))
        a(qkh(X, KHb[0], QH[("a", 0)])); a(qkh(X + 16, KHb[0], QH[("b", 0)]))
        a("s_nop 15")
        if ps == 0:
            maxtree(vT[0], X, False)
            maxtree(vT[1], X + 16, False)
        else:
            for i in range(16):
                a(f"v_sub_f32 v{X+i}, v{X+i}, v{vT[0]}")
                a(f"v_sub_f32 v{X+16+i}, v{X+16+i}, v{vT[1]}")
            E(X, 32)
            a("s_nop 1")
            a(pv(Oa, V0b[0], X)); a(pv(Oa, V1b[0], X + 8))
            a(pv(Ob, V0b[0], X + 16)); a(pv(Ob, V1b[0], X + 24))
        a(f"""
        s_add_u32 s{sN}, s{sN}, 1
        s_cmp_lt_u32 s{sN}, 64
        s_cbranch_scc1 L_x{ps}
        """)
        if ps == 0:
            a(f"""
            v_mov_b32 v{vT[2]}, v{vT[0]}
            v_mov_b32 v{vT[3]}, v{vT[1]}
            s_nop 1
            v_permlane32_swap_b32 v{vT[0]}, v{vT[2]}
            v_permlane32_swap_b32 v{vT[1]}, v{vT[3]}
            s_nop 1
            v_max_f32 v{vT[0]}, v{vT[0]}, v{vT[2]}
            v_max_f32 v{vT[1]}, v{vT[1]}, v{vT[3]}
            """)
    a("""
    s_nop 15
    s_branch L_fin
    """)

    vXE, vXO, vWS = 3, 4, 5
    vGt = [6, 7, 8]
    vGA, vF, vFo = 9, 10, 11
    vT = [12, 13, 14, 15, 16, 17, 18, 19]
    vWO = 20
    CP = 32

    def dma_x(n):
        slot = (n % 3) * G_SLOT
        s = ""
        for i in range(8):
            s += f"s_add_u32 m0, s{sM0x}, {slot + 1024*i}\n"
            if i % 2 == 0:
                s += f"s_add_u32 s{sT}, s{sXb}, {(i//2)*16*1152 + n*128}\n"
            else:
                s += "s_nop 0\n"
            s += f"buffer_load_dwordx4 v{vXE if i % 2 == 0 else vXO}, s[{SX}:{SX+3}], s{sT} offen lds\n"
        return s

    def dma_w(n):
        slot = (n % 3) * G_SLOT
        s = f"s_mov_b64 exec, s[{sMASK}:{sMASK+1}]\n"
        for i in range(4):
            s += f"s_add_u32 m0, s{sM0w}, {slot + 32768 + 1024*i}\n"
            s += f"s_add_u32 s{sT}, s{sWb}, {(n*64 + i*4)*3456}\n"
            s += f"buffer_load_dwordx4 v{vWS}, s[{SW}:{SW+3}], s{sT} offen lds\n"
        s += "s_mov_b64 exec, -1\n"
        return s

    def gate_write(n):
        slot = (n % 3) * G_SLOT
        lab = a.label("L_gw")
        reg = vGt[n // 4]
        if slot < 65536:
            w = f"ds_write_b16 v{vGA}, v{reg} offset:{slot}"
        else:
            w = f"v_add_u32 v{vT[7]}, {slot}, v{vGA}\nds_write_b16 v{vT[7]}, v{reg}"
        return f"""
        s_cmp_eq_u32 s{sLI}, {n % 4}
        s_cbranch_scc0 {lab}
        {w}
        {lab}:
        """

    def wo_load(q0, q1):
        assert q1 <= 72 or q0 >= 72
        srd_, base = (SWA, 0) if q1 <= 72 else (SWB, 72)
        lab = a.label("L_wo")
        a(f"""
        s_add_u32 s{sA}, s{sLI}, {q0}
        {lab}:
        s_lshl_b32 m0, s{sA}, 10
        s_sub_u32 s{sT}, s{sA}, {base}
        s_mul_i32 s{sT}, s{sT}, {8*1152}
        buffer_load_dwordx4 v{vWO}, s[{srd_}:{srd_+3}], s{sT} offen lds
        s_add_u32 s{sA}, s{sA}, 4
        s_cmp_lt_u32 s{sA}, {q1}
        s_cbranch_scc1 {lab}
        """)

    a("L_loader:")
    a("s_setprio 3")
    a(dma_x(0))
    a(f"""
    v_lshlrev_b32 v{vT[0]}, 1, v{vL}
    s_lshl_b32 s{sT}, s{sLI}, 7
    buffer_load_ushort v{vGt[0]}, v{vT[0]}, s[{SG}:{SG+3}], s{sT} offen
    buffer_load_ushort v{vGt[1]}, v{vT[0]}, s[{SG}:{SG+3}], s{sT} offen offset:512
    buffer_load_ushort v{vGt[2]}, v{vT[0]}, s[{SG}:{SG+3}], s{sT} offen offset:1024
    """)
    mask = ~((1 << 15) | (1 << 27) | (1 << 39) | (1 << 51)) & ((1 << 64) - 1)
    a(f"""
    v_bfe_u32 v{vT[2]}, v{vL}, 2, 2
    v_xor_b32 v{vT[2]}, v{vT[2]}, v{vT[1]}       ; blk
    v_and_b32 v{vT[3]}, 3, v{vL}                 ; e
    v_and_b32 v{vT[4]}, 1, v{vT[3]}
    v_lshlrev_b32 v{vT[4]}, 3, v{vT[4]}
    v_mul_u32_u24 v{vT[5]}, 20, v{vT[2]}
    v_add_u32 v{vT[4]}, v{vT[4]}, v{vT[5]}
    v_add_u32 v{vT[5]}, 576, v{vT[4]}
    v_cmp_gt_u32 vcc, 2, v{vT[3]}
    s_mov_b32 s{sMASK}, {mask & 0xffffffff:#x}
    s_mov_b32 s{sMASK+1}, {mask >> 32:#x}
    v_cndmask_b32 v{vT[4]}, v{vT[4]}, v{vT[5]}, vcc
    v_lshlrev_b32 v{vT[5]}, 3, v{vT[3]}
    v_add_u32 v{vT[5]}, 1152, v{vT[5]}
    v_cmp_eq_u32 vcc, 2, v{vT[2]}
    s_and_b32 s{sT}, s{sP}, 15
    s_mul_i32 s{sT}, s{sT}, 72
    v_cndmask_b32 v{vT[4]}, v{vT[4]}, v{vT[5]}, vcc
    v_mov_b32 v{vT[5]}, 592
    v_mov_b32 v{vT[6]}, 16
    v_cmp_eq_u32 vcc, 1, v{vT[3]}
    s_mul_i32 s{sT2}, s{sLI}, {16*3456}
    s_add_u32 s{sWb}, s{sT}, s{sT2}
    v_cndmask_b32 v{vT[5]}, v{vT[5]}, v{vT[6]}, vcc
    v_mov_b32 v{vT[6]}, 1180
    v_cmp_eq_u32 vcc, 2, v{vT[3]}
    s_lshl_b32 s{sM0w}, s{sLI}, 12
    s_nop 0
    v_cndmask_b32 v{vT[5]}, v{vT[5]}, v{vT[6]}, vcc
    v_cmp_eq_u32 vcc, 3, v{vT[2]}
    s_nop 1
    v_cndmask_b32 v{vT[4]}, v{vT[4]}, v{vT[5]}, vcc
    v_mul_u32_u24 v{vT[5]}, 3456, v{vT[1]}
    v_lshl_add_u32 v{vWS}, v{vT[4]}, 1, v{vT[5]}
    """)
    a(dma_w(0))
    a(f"""
    v_and_b32 v{vT[2]}, 3, v{vL}
    v_xor_b32 v{vT[2]}, 3, v{vT[2]}
    v_lshlrev_b32 v{vT[2]}, 6, v{vT[2]}
    v_lshl_add_u32 v{vGA}, v{vL}, 8, v{vT[2]}
    v_add_u32 v{vGA}, {32768 + 48}, v{vGA}
    """)
    a(dma_x(1)); a(dma_w(1))
    a("s_waitcnt vmcnt(16)")
    for n in range(3):
        a(gate_write(n))
    a("s_waitcnt vmcnt(12) lgkmcnt(0)")
    a("s_barrier")
    stamp(a, 1)
    a(dma_x(2)); a(dma_w(2))
    for n in range(8):
        a(f"s_waitcnt vmcnt({12 if n + 2 <= 8 else 0}) lgkmcnt(0)")
        a("s_barrier")
        if n + 3 <= 8:
            a(gate_write(n + 3))
            a(dma_x(n + 3)); a(dma_w(n + 3))
        if n == 6:
            lab = a.label("L_cr")
            a(f"""
            s_cmp_ge_u32 s{sLI}, 2
            s_cbranch_scc1 {lab}
            s_cmp_eq_u32 s{sLI}, 0
            s_cselect_b32 s{sT}, 0x3f803f80, 0
            s_cselect_b32 s{sT2}, {14*16}, 0
            s_add_u32 s{sT2}, s{sT2}, {9216 + 4*16}
            v_lshrrev_b32 v{vT[0]}, 5, v{vL}
            v_mul_u32_u24 v{vT[0]}, {HEADSZ}, v{vT[0]}
            v_and_b32 v{vT[1]}, 31, v{vL}
            v_mul_u32_u24 v{vT[1]}, {VH}, v{vT[1]}
            v_add3_u32 v{vT[0]}, v{vT[0]}, v{vT[1]}, s{sT2}
            v_mov_b32 v{CP}, s{sT}
            v_mov_b32 v{CP+1}, s{sT}
            v_mov_b32 v{CP+2}, s{sT}
            v_mov_b32 v{CP+3}, s{sT}
            ds_write_b128 v{vT[0]}, {vr(CP,4)}
            {lab}:
            """)
    tail_srds()
    a(f"""
    s_lshl_b32 s{sT}, s{sLI}, 10
    v_add_u32 v{vT[0]}, s{sT}, v{vL16}
    s_add_u32 s{sKVp}, s{sKVp}, s{sT}
    s_mov_b32 s{sM0x}, s{sT}
    s_mul_i32 s{sA}, s{sTG}, {CHUNK}
    s_add_u32 s{sA}, s{sA}, s{sKVp}
    s_lshl_b32 s{sB}, s{sP}, 12
    s_add_u32 s{sB}, s{sB}, s{sT}
    s_add_u32 s{sWb}, s{sB}, {FLAG_OFF}
    v_and_b32 v{vFo}, 7, v{vL}
    v_lshlrev_b32 v{vFo}, 7, v{vFo}
    v_mov_b32 v{vT[1]}, {SCR_N}
    s_lshl_b32 s{sT}, s{sTG}, 7
    v_mov_b32 v{vT[2]}, s{sT}
    v_lshrrev_b32 v{vT[3]}, 3, v{vL}
    v_mul_u32_u24 v{vT[3]}, 1152, v{vT[3]}
    v_bfe_u32 v{vT[4]}, v{vL}, 4, 1
    v_lshlrev_b32 v{vT[4]}, 2, v{vT[4]}
    v_and_b32 v{vT[5]}, 7, v{vL}
    v_xor_b32 v{vT[5]}, v{vT[5]}, v{vT[4]}
    v_lshl_add_u32 v{vWO}, v{vT[5]}, 4, v{vT[3]}
    s_lshl_b32 s{sT}, s{sCG}, 7
    v_add_u32 v{vWO}, s{sT}, v{vWO}
    s_waitcnt lgkmcnt(0)
    s_barrier
    """)
    stamp(a, 3, True)
    for i in range(10):
        a(f"ds_read_b128 {vr(CP+4*i,4)}, v{vT[0]} offset:{4096*i}")
    a(f"ds_read_b32 v{vF}, v{vT[1]}")
    for i in range(10):
        if i == 9:
            a(f"s_cmp_ge_u32 s{sLI}, 2\ns_cbranch_scc1 L_c9")
        a(f"s_waitcnt lgkmcnt({10-i})")
        a(f"s_add_u32 s{sT}, s{sA}, {4096*i}")
        a(f"buffer_store_dwordx4 {vr(CP+4*i,4)}, v{vL16}, s[{SWS}:{SWS+3}], s{sT} offen sc1")
    a(f"""
    L_c9:
    s_waitcnt vmcnt(0) lgkmcnt(0)
    v_readfirstlane_b32 s{sNON}, v{vF}
    s_mov_b64 exec, 1
    buffer_store_dword v{vF}, v{vT[2]}, s[{SWS}:{SWS+3}], s{sWb} offen sc1
    s_mov_b64 exec, -1
    s_mov_b32 s{sRDY}, 0
    s_mov_b32 s{sN}, 0
    s_mov_b32 s{sC}, s{sTG}
    L_ll:
    s_add_u32 s{sC}, s{sC}, 1
    s_and_b32 s{sC}, s{sC}, 7
    s_add_u32 s{sM0x}, s{sM0x}, {CHUNK}
    s_sub_u32 s{sT}, s{sM0x}, {3*CHUNK}
    s_cmp_ge_u32 s{sM0x}, {3*CHUNK}
    s_cselect_b32 s{sM0x}, s{sT}, s{sM0x}
    L_poll:
    s_bitcmp1_b32 s{sRDY}, s{sC}
    s_cbranch_scc1 L_rdy
    buffer_load_dword v{vF}, v{vFo}, s[{SWS}:{SWS+3}], s{sWb} offen sc1
    s_waitcnt vmcnt(0)
    v_cmp_eq_u32 vcc, s{sNON}, v{vF}
    s_sub_u32 s{sSPIN}, s{sSPIN}, 1
    s_nop 0
    s_cselect_b32 s{sRDY}, -1, vcc_lo
    s_bitcmp1_b32 s{sRDY}, s{sC}
    s_cbranch_scc1 L_rdy
    s_sleep 1
    s_branch L_poll
    L_rdy:
    s_mul_i32 s{sA}, s{sC}, {CHUNK}
    s_add_u32 s{sA}, s{sA}, s{sKVp}
    """)
    for i in range(10):
        if i == 9:
            a(f"s_cmp_ge_u32 s{sLI}, 2\ns_cbranch_scc1 L_d9")
        a(f"""
        s_add_u32 m0, s{sM0x}, {4096*i}
        s_add_u32 s{sT}, s{sA}, {4096*i}
        buffer_load_dwordx4 v{vL16}, s[{SWS}:{SWS+3}], s{sT} offen sc1 lds
        """)
    a(f"""
    L_d9:
    s_waitcnt vmcnt(0)
    """)
    if STAMPS == 1:
        a(f"s_cmp_eq_u32 s{sN}, 0\ns_cbranch_scc0 L_st4")
        stamp(a, 4)
        a("L_st4:")
    a(f"""
    s_barrier
    s_add_u32 s{sN}, s{sN}, 1
    s_cmp_lt_u32 s{sN}, 7
    s_cbranch_scc1 L_ll
    s_mov_b32 s{sSPIN}, {SPIN_LIMIT}
    s_cmp_ge_u32 s{sU}, 27
    s_cbranch_scc1 L_end
    """)
    wo_load(76, 144)
    a(f"""
    s_cmp_eq_u32 s{sLI}, 0
    s_cbranch_scc0 L_on1
    v_lshlrev_b32 v{vT[0]}, 2, v{vL}
    v_add_u32 v{vT[1]}, {SCR_ON}, v{vT[0]}
    L_on0:
    buffer_load_dword v{vF}, v{vT[0]}, s[{SD}:{SD+3}], 0 offen sc1
    s_waitcnt vmcnt(0)
    v_cmp_gt_i32 vcc, 0, v{vF}
    s_sub_u32 s{sSPIN}, s{sSPIN}, 1
    s_cbranch_scc1 L_on2
    s_and_b32 s{sT}, vcc_lo, vcc_hi
    s_and_b32 s{sT}, s{sT}, 0xaaaaaaaa
    s_cmp_eq_u32 s{sT}, 0xaaaaaaaa
    s_cbranch_scc1 L_on2
    s_sleep 8
    s_branch L_on0
    L_on2:
    ds_write_b32 v{vT[1]}, v{vF}
    s_mov_b32 s{sSPIN}, {SPIN_LIMIT}
    L_on1:
    s_waitcnt lgkmcnt(0)
    s_barrier                                    ; B_7
    """)
    wo_load(0, 38)
    a("s_barrier                                    ; BT1")
    wo_load(38, 72)
    wo_load(72, 76)
    stamp(a, 6)

    vFo, vEx, vOH = 3, 4, 5
    vWm = [6, 7]; vWh = [8, 9]
    vT = [10, 11, 12, 13, 14, 15]
    WF = [32, 40]
    OF = 64
    ACC = [136, 152]
    a(f"""
    L_tail:
    s_cmp_ge_u32 s{sU}, 27
    s_cbranch_scc1 L_end
    v_and_b32 v{vT[0]}, 31, v{vL}                ; tau
    v_lshrrev_b32 v{vT[1]}, 5, v{vL}             ; h
    s_add_u32 s{sT0}, s{sT0}, s{sTT}
    s_cmp_ge_u32 s{sT0}, 8
    s_cbranch_scc1 L_tidle
    v_and_b32 v{vT[2]}, 7, v{vL}
    v_lshlrev_b32 v{vFo}, 7, v{vT[2]}
    s_lshl_b32 s{sT}, s{sKQ}, 6
    s_add_u32 s{sT}, s{sT}, {SCR_ON + 4}
    v_lshlrev_b32 v{vT[2]}, 3, v{vT[2]}
    v_add_u32 v{vT[2]}, s{sT}, v{vT[2]}
    ds_read_b32 v{vEx}, v{vT[2]}
    s_lshl_b32 s{sB}, s{sTG2}, 12
    s_lshl_b32 s{sT}, s{sKQ}, 10
    s_add_u32 s{sB}, s{sB}, s{sT}
    s_add_u32 s{sB}, s{sB}, {OFLAG_OFF}
    ; O offsets
    s_lshl_b32 s{sOm}, s{sKQ}, 20
    s_lshl_b32 s{sT}, s{sTG2}, 13
    s_add_u32 s{sOm}, s{sOm}, s{sT}
    s_lshl_b32 s{sT}, s{sT0}, 10
    s_add_u32 s{sOm}, s{sOm}, s{sT}
    s_lshr_b32 s{sOh}, s{sOm}, 3
    s_add_u32 s{sOm}, s{sOm}, {O_OFF}
    s_add_u32 s{sOh}, s{sOh}, {OH_OFF}
    v_lshlrev_b32 v{vOH}, 13, v{vT[1]}
    v_lshl_add_u32 v{vOH}, v{vT[0]}, 2, v{vOH}
    s_waitcnt lgkmcnt(0)
    L_tp:
    buffer_load_dword v{vT[2]}, v{vFo}, s[{SWS}:{SWS+3}], s{sB} offen sc1
    s_waitcnt vmcnt(0)
    v_cmp_ne_u32 vcc, v{vEx}, v{vT[2]}
    s_sub_u32 s{sSPIN}, s{sSPIN}, 1
    s_cbranch_scc1 L_tr
    s_cbranch_vccz L_tr
    s_sleep 1
    s_branch L_tp
    L_tr:
    """)
    stamp(a, 7)
    def ofrag(ks):
        return OF + 4 * ks
    for half in range(2):
        for m in range(8):
            a(f"s_add_u32 s{sT}, s{sOm}, {(half*8+m)*65536}")
            a(f"buffer_load_dwordx4 {vr(ofrag(half*9+m),4)}, v{vL16}, s[{SWS}:{SWS+3}], s{sT} offen sc1")
        for rr in range(4):
            a(f"s_add_u32 s{sT}, s{sOh}, {(half*8+2*rr)*8192}")
            a(f"buffer_load_dword v{ofrag(half*9+8)+rr}, v{vOH}, s[{SWS}:{SWS+3}], s{sT} offen sc1")
    a(f"""
    v_bfe_u32 v{vT[2]}, v{vL}, 2, 2              ; r
    v_and_b32 v{vT[3]}, 3, v{vL}                 ; c
    v_bfe_u32 v{vT[4]}, v{vL}, 4, 1              ; sub
    v_lshlrev_b32 v{vT[3]}, 3, v{vT[3]}
    v_lshl_add_u32 v{vT[3]}, v{vT[4]}, 5, v{vT[3]}
    s_mul_i32 s{sT}, s{sKQ}, {288*128}
    v_add_u32 v{vT[3]}, s{sT}, v{vT[3]}
    v_lshrrev_b32 v{vT[4]}, 1, v{vT[2]}          ; r>>1
    v_lshl_add_u32 v{vT[5]}, v{vT[1]}, 2, v{vT[2]}
    v_lshl_add_u32 v{vT[5]}, v{vT[5]}, 7, v{vT[3]}
    v_lshl_add_u32 v{vWm[0]}, v{vT[4]}, 6, v{vT[5]}
    v_xor_b32 v{vWm[1]}, 64, v{vWm[0]}
    v_lshl_add_u32 v{vT[5]}, v{vT[4]}, 1, v{vT[1]}
    v_mul_u32_u24 v{vT[5]}, 18, v{vT[5]}
    v_and_b32 v{vT[2]}, 1, v{vT[2]}
    v_add3_u32 v{vT[5]}, v{vT[5]}, v{vT[2]}, 16
    v_lshl_add_u32 v{vT[5]}, v{vT[5]}, 7, v{vT[3]}
    v_lshl_add_u32 v{vWh[0]}, v{vT[1]}, 6, v{vT[5]}
    v_xor_b32 v{vWh[1]}, 64, v{vWh[0]}
    s_barrier
    """)

    def wreads(ks, f):
        b = WF[f]
        half, m = divmod(ks, 9)
        out = []
        for ct in range(2):
            if m < 8:
                ad = vWm[ct ^ (m & 1)]
                o0 = (half * 8 + m) * 18 * 128; o1 = o0 + 8 * 128
            else:
                ad = vWh[ct]
                o0 = half * 8 * 18 * 128; o1 = o0 + 4 * 18 * 128
            out.append(f"ds_read_b64_tr_b16 {vr(b+4*ct,2)}, v{ad} offset:{o0}")
            out.append(f"ds_read_b64_tr_b16 {vr(b+4*ct+2,2)}, v{ad} offset:{o1}")
        return out

    for r in wreads(0, 0):
        a(r)
    for ks in range(18):
        half, m = divmod(ks, 9)
        done_loads = half * 12 + (m + 1 if m < 8 else 12)
        if ks < 17:
            for r in wreads(ks + 1, (ks + 1) & 1):
                a(r)
            a(f"s_waitcnt vmcnt({24-done_loads}) lgkmcnt(4)")
        else:
            a("s_waitcnt vmcnt(0) lgkmcnt(0)")
        b = WF[ks & 1]
        for ct in range(2):
            c = "0" if ks == 0 else vr(ACC[ct], 16)
            a(f"v_mfma_f32_32x32x16_bf16 {vr(ACC[ct],16)}, {vr(b+4*ct,4)}, {vr(ofrag(ks),4)}, {c}")
    stamp(a, 8)
    a(f"""
    s_barrier
    s_lshl_b32 s{sT}, s{sTT}, 15
    s_lshl_b32 s{sT2}, s{sKQ}, 13
    s_add_u32 s{sA}, s{sT}, s{sT2}
    v_add_u32 v{vT[2]}, s{sA}, v{vL16}
    s_lshl_b32 s{sT2}, s{sKQ}, 11
    s_add_u32 s{sA}, s{sT}, s{sT2}
    v_add_u32 v{vT[3]}, s{sA}, v{vL16}
    s_lshl_b32 s{sT}, s{sTG2}, 8
    s_lshl_b32 s{sT2}, s{sT0}, 5
    s_add_u32 s{sT}, s{sT}, s{sT2}
    s_mul_i32 s{sA}, s{sT}, 1152
    s_lshl_b32 s{sT}, s{sCG}, 7
    s_add_u32 s{sA}, s{sA}, s{sT}
    s_lshl_b32 s{sT}, s{sKQ}, 5
    s_add_u32 s{sA}, s{sA}, s{sT}
    v_mul_u32_u24 v{vT[4]}, 1152, v{vT[0]}
    v_lshl_add_u32 v{vT[4]}, v{vT[1]}, 4, v{vT[4]}
    """)
    for i in range(8):
        a(f"ds_write_b128 v{vT[2]}, {vr(ACC[0]+4*i,4)} offset:{1024*i}")
    a("s_waitcnt lgkmcnt(0)")
    a("s_barrier                                    ; BT4")
    for src in range(4):
        for g in range(2):
            a(f"ds_read_b128 {vr(OF+8*src+4*g,4)}, v{vT[3]} offset:{src*8192 + g*1024}")
    a("s_waitcnt lgkmcnt(4)")
    for q in range(8):
        a(f"v_add_f32 v{OF+q}, v{OF+q}, v{OF+8+q}")
    a("s_waitcnt lgkmcnt(0)")
    for q in range(8):
        a(f"v_add_f32 v{OF+16+q}, v{OF+16+q}, v{OF+24+q}")
    for q in range(8):
        a(f"v_add_f32 v{OF+q}, v{OF+q}, v{OF+16+q}")
    for i in range(4):
        a(f"v_cvt_pk_bf16_f32 v{WF[0]+i}, v{OF+2*i}, v{OF+2*i+1}")
    a(f"""
    s_nop 1
    v_permlane32_swap_b32 v{WF[0]}, v{WF[0]+2}
    v_permlane32_swap_b32 v{WF[0]+1}, v{WF[0]+3}
    buffer_store_dwordx4 {vr(WF[0],4)}, v{vT[4]}, s[{SO}:{SO+3}], s{sA} offen
    s_branch L_end
    L_tidle:
    s_waitcnt vmcnt(0)
    s_barrier
    L_end:
    """)
    if STAMPS:
        a(f"""
        s_waitcnt vmcnt(0) lgkmcnt(0)
        s_memtime s[92:93]
        s_memrealtime s[98:99]
        s_waitcnt lgkmcnt(0)
        s_mov_b64 exec, 1
        s_lshl_b32 s{sT}, s2, 4
        s_add_u32 s{sT}, s{sT}, s{sWV}
        s_lshl_b32 s{sT}, s{sT}, 6
        s_add_u32 s{sT}, s{sT}, {STAMP_OFF}
        v_mov_b32 v0, 0
        """)
        for n in range(14):
            a(f"v_mov_b32 v1, s{72+2*n}")
            a(f"buffer_store_dword v1, v0, s[{SWS}:{SWS+3}], s{sT} offen offset:{4*n}")
            a("s_nop 0")
    a("""
    L_done:
    s_endpgm
    """)
    return name, NV


def main():
    out = sys.argv[1] if len(sys.argv) > 1 else f"cdna_kernels/{NAME}.s"
    a = Asm()
    k, nv = gen(a)
    hdr = open(f"cdna_kernels/{NAME}.s.ref").read().split("\n")
    hdr = [l for l in hdr if l.startswith(";") and "@launch" not in l]
    txt = "\n".join(hdr) + "\n"
    txt += f"; @launch grid=(256,1,1) block=(768,1,1) lds={LDS_BYTES}\n"
    txt += '.amdgcn_target "amdgcn-amd-amdhsa--gfx950"\n.text\n'
    txt += a.text()
    txt += f""".section .rodata,"a"
.p2align 6
.amdhsa_kernel {k}
  .amdhsa_next_free_vgpr {nv}
  .amdhsa_next_free_sgpr {102 if STAMPS else 72}
  .amdhsa_accum_offset {(nv + 3) // 4 * 4}
  .amdhsa_group_segment_fixed_size 0
  .amdhsa_kernarg_size 80
  .amdhsa_user_sgpr_count 2
  .amdhsa_user_sgpr_kernarg_segment_ptr 1
  .amdhsa_system_sgpr_workgroup_id_x 1
.end_amdhsa_kernel
"""
    open(out, "w").write(txt)


if __name__ == "__main__":
    main()
```

```python
import math, os, struct, sys

NAME = "gated_mix__mha_block__mha_block__prompt"

VH = 320
VG = 2 * VH
HEADSZ = 8192 + 1024 + 16 * VG
CHUNK = 2 * HEADSZ
KV_OFF = 0
FLAG_OFF = 0x0A00000
OFLAG_OFF = 0x0A20000
O_OFF = 0x0F00000
OH_OFF = 0x1300000
WS_USED = 0x1400000
XBYTES = 2048 * 576 * 2
WQKV_BYTES = 576 * 1728 * 2
WO_BYTES = 576 * 576 * 2
CSCALE = (18 ** -0.5) * math.log2(math.e)

STAMPS = int(os.environ.get("STAMPS", "0"))
STAMP_OFF = 0x1400000
if STAMPS:
    WS_USED = 0x1500000
PRIO = int(os.environ.get("PRIO", "1"))
CPF = int(os.environ.get("CPF", "1"))
DPF = int(os.environ.get("DPF", "1"))

G_SLOT = 49152
SCR = 3 * G_SLOT
SCR_G = SCR + 2048
SCR_N = SCR + 3072
SCR_C = SCR_N + 8
SCR_ON = SCR_N + 64
LDS_BYTES = SCR_ON + 256
SPIN_LIMIT = 1 << 19


def f32bits(x):
    return struct.unpack("<I", struct.pack("<f", x))[0]


class Asm:
    def __init__(self):
        self.secs = {"entry": []}
        self.lines = self.secs["entry"]
        self.nlab = 0

    def sec(self, name):
        self.lines = self.secs.setdefault(name, [])

    def __call__(self, s):
        for ln in s.strip("\n").split("\n"):
            ln = ln.strip()
            if not ln:
                continue
            if ln.endswith(":") or ln.startswith("."):
                self.lines.append(ln)
            else:
                self.lines.append("    " + ln)

    def label(self, base="L"):
        self.nlab += 1
        return f"{base}_{self.nlab}"

    def text(self):
        order = ["entry", "loader", "compute", "tail", "exact", "end"]
        assert sorted(order) == sorted(self.secs)
        return "\n".join("\n".join(self.secs[k]) for k in order) + "\n"


def vr(b, n):
    return f"v[{b}:{b+n-1}]"


def stamp(a, n, wait=False, mode=1):
    if STAMPS == mode:
        a(f"s_memtime s[{72+2*n}:{73+2*n}]")
        if wait:
            a("s_waitcnt lgkmcnt(0)")


def gen(a):
    name = NAME + "_kernel"
    a(f"""
.globl {name}
.p2align 8
.type {name},@function
{name}:
""")
    SX, SW, SWS, SG, SD = 4, 8, 12, 16, 52
    SWA, SWB, SO = 4, 8, 16
    sW_, sP, sTG, sWV, sJ, sTP = 20, 21, 22, 23, 24, 25
    sXb, sWb, sM0x, sM0w, sA, sB, sT, sT2 = 26, 27, 28, 29, 30, 31, 32, 33
    sMASK = 34
    sKVp, sC, sN, sRS = 36, 37, 38, 39
    sDl, sU, sOm, sOh = 56, 57, 58, 59
    sNON, sRDY, sFB, sSPIN = 60, 61, 62, 63
    sCG, sT0, sTT, sKQ, sTG2 = 64, 65, 66, 67, 68
    sC2 = 70
    sLI = sWV
    vL, vL16 = 1, 2
    NV = 168
    a(f"""
    s_cmp_ge_u32 s2, 256
    s_cbranch_scc1 L_done
    """)
    if STAMPS:
        a("s_memtime s[72:73]\ns_memrealtime s[96:97]")
    a(f"""
    s_load_dwordx4 s[40:43], s[0:1], 0          ; x, A_wqkv
    s_load_dwordx2 s[44:45], s[0:1], 32         ; B_wqkv
    s_load_dwordx2 s[46:47], s[0:1], 48         ; gate_w
    s_load_dwordx4 s[48:51], s[0:1], 64
    """)
    if CPF:
        a(f"""
        s_getpc_b64 s[{sA}:{sA+1}]
        v_subrev_u32 v10, 256, v0
        v_lshlrev_b32 v10, 7, v10
        v_cmp_gt_u32 vcc, L_done - {name} - 64, v10
        s_and_saveexec_b64 s[{sT}:{sT+1}], vcc
        s_cbranch_execz L_cpf
        global_load_dword v7, v10, s[{sA}:{sA+1}]
        L_cpf:
        s_mov_b64 exec, -1
        """)
    a(f"""
    v_lshrrev_b32 v10, 6, v0
    v_and_b32 v{vL}, 63, v0
    s_and_b32 s{sTG2}, s2, 7
    v_readfirstlane_b32 s{sWV}, v10
    s_lshr_b32 s{sU}, s2, 3
    s_and_b32 s{sTG}, s{sU}, 7
    s_lshr_b32 s{sT2}, s{sU}, 3
    s_lshl_b32 s{sP}, s{sTG2}, 2
    s_add_u32 s{sP}, s{sP}, s{sT2}
    s_sub_u32 s{sW_}, s{sWV}, 4
    s_lshr_b32 s{sJ}, s{sW_}, 2
    s_and_b32 s{sTP}, s{sW_}, 3
    v_lshlrev_b32 v{vL16}, 4, v{vL}
    s_mul_i32 s{sKVp}, s{sP}, {8*CHUNK}
    s_add_u32 s{sKVp}, s{sKVp}, {KV_OFF}
    v_lshrrev_b32 v12, 3, v{vL}
    v_mul_u32_u24 v12, 1152, v12
    v_lshrrev_b32 v13, 4, v{vL}
    v_and_b32 v14, 7, v{vL}
    v_xor_b32 v14, v14, v13
    v_lshl_add_u32 v3, v14, 4, v12
    v_xor_b32 v14, 4, v14
    v_lshl_add_u32 v4, v14, 4, v12
    v_add_u32 v4, {8*1152}, v4
    s_lshl_b32 s{sT}, s{sTG}, 8
    s_lshl_b32 s{sT2}, s{sLI}, 6
    s_add_u32 s{sT}, s{sT}, s{sT2}
    s_mul_i32 s{sXb}, s{sT}, 1152
    s_lshl_b32 s{sM0x}, s{sLI}, 13
    s_mov_b32 s{SX+2}, {XBYTES}
    s_mov_b32 s{SX+3}, 0x00020000
    s_mov_b32 s{SW+2}, {WQKV_BYTES}
    s_mov_b32 s{SW+3}, 0x00020000
    s_mov_b32 s{SG+2}, 1152
    s_mov_b32 s{SG+3}, 0x00020000
    s_mov_b32 s{SD+2}, 256
    s_mov_b32 s{SD+3}, 0x00020000
    s_mov_b32 s{SWS+2}, {WS_USED}
    s_mov_b32 s{SWS+3}, 0x00020000
    ; tail unit: cg = u/3, t0 = 3*(u%3) ; tail wave role: kq = wave/3, tt = wave%3
    s_mul_i32 s{sCG}, s{sU}, 43
    s_lshr_b32 s{sCG}, s{sCG}, 7
    s_mul_i32 s{sT}, s{sCG}, 3
    s_sub_u32 s{sT0}, s{sU}, s{sT}
    s_mul_i32 s{sT0}, s{sT0}, 3
    s_mul_i32 s{sKQ}, s{sWV}, 43
    s_lshr_b32 s{sKQ}, s{sKQ}, 7
    s_mul_i32 s{sT}, s{sKQ}, 3
    s_sub_u32 s{sTT}, s{sWV}, s{sT}
    s_mov_b32 s{sSPIN}, {SPIN_LIMIT}
    s_cmp_ge_u32 s{sP}, 16
    s_waitcnt lgkmcnt(0)
    s_cselect_b32 s{SW}, s44, s42
    s_cselect_b32 s43, s45, s43
    s_mov_b32 s{SX}, s40
    s_and_b32 s{SX+1}, s41, 0xffff
    s_and_b32 s{SW+1}, s43, 0xffff
    s_mov_b32 s{SG}, s46
    s_and_b32 s{SG+1}, s47, 0xffff
    s_mov_b32 s{SD}, s48
    s_and_b32 s{SD+1}, s49, 0xffff
    s_mov_b32 s{SWS}, s50
    s_and_b32 s{SWS+1}, s51, 0xffff
    s_cmp_lt_u32 s{sWV}, 4
    s_cbranch_scc0 L_compute
    """)

    def tail_srds():
        a(f"""
        s_load_dwordx2 s[40:41], s[0:1], 16          ; A_wo
        s_load_dwordx2 s[42:43], s[0:1], 40          ; B_wo
        s_load_dwordx2 s[44:45], s[0:1], 56          ; out
        s_mov_b32 s{SWA+2}, {WO_BYTES}
        s_mov_b32 s{SWB+2}, {WO_BYTES}
        s_mov_b32 s{SO+2}, {XBYTES}
        s_waitcnt lgkmcnt(0)
        s_mov_b32 s{SWA}, s40
        s_and_b32 s{SWA+1}, s41, 0xffff
        s_mov_b32 s{SWB}, s42
        s_and_b32 s{SWB+1}, s43, 0xffff
        s_mov_b32 s{SO}, s44
        s_and_b32 s{SO+1}, s45, 0xffff
        """)

    vK, vKH, vV, vIDX = 3, 4, 5, 6
    vG = [8, 9]
    vT = [10, 11, 12, 13, 14, 15]
    Qa, Qb = 16, 20
    QH = {("a", 0): 24, ("a", 1): 26, ("b", 0): 28, ("b", 1): 30}
    Kb = [32, 36]
    KHb = [40, 42]
    V0b = [44, 48]
    V1b = [52, 56]
    CZ = 60
    Oa, Ob = 64, 80
    S = [96, 128]
    vXr = [16, 17, 18, 19]; vWr = [20, 21]
    vXr2 = [22, 23, 24, 25]; vWr2 = [26, 27]
    vU = list(range(32, 48))
    F = [32, 48]
    A0, A1, B0, B1 = 96, 112, 128, 144
    vN = 8
    eK, eR, e0, e1, e2, e3, e4 = 160, 161, 162, 163, 164, 165, 166

    a.sec("compute")
    a("L_compute:")
    a(f"""
    s_load_dwordx2 s[44:45], s[0:1], 56          ; out
    s_mov_b32 s{SO+2}, {XBYTES}
    """)
    def dpf(c0, c1, wx, ww, tag):
        nl = (c1 - c0) * 64 * 27 // 128 + 1
        assert nl <= 64
        a(f"""
        s_cmp_eq_u32 s{sW_}, {wx}
        s_cbranch_scc0 L_dpf{tag}a
        v_and_b32 v{vT[5]}, 7, v{vL}
        v_cmp_gt_u32 vcc, {c1-c0}, v{vT[5]}
        v_lshrrev_b32 v{vT[4]}, 3, v{vL}
        v_mul_u32_u24 v{vT[4]}, 1152, v{vT[4]}
        v_lshl_add_u32 v{vT[5]}, v{vT[5]}, 7, v{vT[4]}
        s_mul_i32 s{sT}, s2, {8*1152}
        s_mov_b64 exec, vcc
        buffer_load_dword v7, v{vT[5]}, s[{SX}:{SX+3}], s{sT} offen offset:{128*c0}
        s_mov_b64 exec, -1
        L_dpf{tag}a:
        s_cmp_eq_u32 s{sW_}, {ww}
        s_cbranch_scc0 L_dpf{tag}b
        v_lshlrev_b32 v{vT[5]}, 7, v{vL}
        s_and_b32 s{sT}, s2, 3
        s_lshl_b32 s{sT}, s{sT}, 5
        s_add_u32 s{sT}, s{sT}, s{sU}
        s_mul_i32 s{sT}, s{sT}, {(c1-c0)*64*27}
        s_add_u32 s{sT}, s{sT}, {c0*64*3456}
        s_mov_b64 exec, {hex((1 << nl) - 1) if nl < 32 else -1}
        s_mov_b32 exec_hi, {hex((1 << (nl - 32)) - 1) if nl >= 32 else 0}
        buffer_load_dword v7, v{vT[5]}, s[{SW}:{SW+3}], s{sT} offen
        s_mov_b64 exec, -1
        L_dpf{tag}b:
        """)
    if DPF == 1:
        dpf(2, 5, 0, 1, 0)
    if DPF == 2:
        dpf(2, 4, 0, 1, 0)
    a(f"""
    s_cmp_eq_u32 s{sW_}, 3
    s_cbranch_scc0 L_nn0
    s_lshl_b32 s{sT}, s{sP}, 12
    s_add_u32 s{sT}, s{sT}, {FLAG_OFF}
    v_lshlrev_b32 v{vN}, 7, v{vL}
    v_add_u32 v{vN}, s{sT}, v{vN}
    v_and_b32 v{vN+1}, 7, v{vL}
    v_lshlrev_b32 v{vN+1}, 12, v{vN+1}
    s_lshl_b32 s{sT}, s{sP}, 7
    s_add_u32 s{sT}, s{sT}, {OFLAG_OFF}
    v_cmp_gt_u32 vcc, 32, v{vL}
    v_add_u32 v{vN+1}, s{sT}, v{vN+1}
    s_nop 0
    v_cndmask_b32 v{vN}, v{vN+1}, v{vN}, vcc
    buffer_load_dword v{vN+1}, v{vN}, s[{SWS}:{SWS+3}], 0 offen sc1
    L_nn0:
    """)
    a(f"""
    v_and_b32 v{vU[0]}, 31, v{vL}                ; tau
    v_lshrrev_b32 v{vU[1]}, 5, v{vL}             ; h
    s_lshl_b32 s{sT}, s{sTP}, 13
    v_lshlrev_b32 v{vU[2]}, 7, v{vU[0]}
    v_add_u32 v{vU[2]}, s{sT}, v{vU[2]}
    v_bfe_u32 v{vU[3]}, v{vU[0]}, 1, 3
    v_xor_b32 v{vU[3]}, v{vU[3]}, v{vU[1]}
    """)
    for ks in range(4):
        a(f"""
        v_xor_b32 v{vU[4]}, {2*ks}, v{vU[3]}
        v_lshl_add_u32 v{vXr[ks]}, v{vU[4]}, 4, v{vU[2]}
        v_add_u32 v{vXr2[ks]}, {2*G_SLOT}, v{vXr[ks]}
        """)
    a(f"""
    v_bfe_u32 v{vU[2]}, v{vL}, 2, 2              ; r
    v_lshl_add_u32 v{vU[3]}, v{vU[1]}, 3, v{vU[2]}
    v_lshlrev_b32 v{vU[3]}, 8, v{vU[3]}
    v_add_u32 v{vU[3]}, 32768, v{vU[3]}
    v_and_b32 v{vU[4]}, 3, v{vL}                 ; c
    v_bfe_u32 v{vU[5]}, v{vL}, 4, 1              ; sub
    v_lshl_add_u32 v{vU[6]}, v{vU[5]}, 2, v{vU[4]}
    v_lshl_add_u32 v{vU[7]}, v{vU[6]}, 3, v{vU[3]}
    v_xor_b32 v{vWr[0]}, s{sJ}, v{vU[2]}
    v_lshl_add_u32 v{vWr[0]}, v{vWr[0]}, 6, v{vU[7]}
    v_cmp_eq_u32 vcc, 2, v{vU[4]}
    v_xor_b32 v{vU[6]}, 1, v{vU[5]}
    s_nop 0
    v_cndmask_b32 v{vU[5]}, v{vU[5]}, v{vU[6]}, vcc
    v_lshlrev_b32 v{vU[5]}, 3, v{vU[5]}
    v_lshl_add_u32 v{vU[5]}, v{vU[4]}, 4, v{vU[5]}
    v_add_u32 v{vU[5]}, v{vU[5]}, v{vU[3]}
    s_cmp_eq_u32 s{sJ}, 1
    s_cselect_b64 vcc, -1, 0
    s_add_u32 s{sT}, s{sJ}, 2
    v_cndmask_b32 v{vU[7]}, v{vU[7]}, v{vU[5]}, vcc
    v_xor_b32 v{vWr[1]}, s{sT}, v{vU[2]}
    v_lshl_add_u32 v{vWr[1]}, v{vWr[1]}, 6, v{vU[7]}
    v_add_u32 v{vWr2[0]}, {2*G_SLOT}, v{vWr[0]}
    v_add_u32 v{vWr2[1]}, {2*G_SLOT}, v{vWr[1]}
    """)
    for r in range(Oa, A0 + 64):
        a(f"v_mov_b32 v{r}, 0")
    a(f"""
    s_mul_i32 s{sT}, s{sJ}, {HEADSZ}
    v_add_u32 v{vK}, s{sT}, v{vL16}
    v_lshlrev_b32 v{vKH}, 2, v{vL}
    s_add_u32 s{sT2}, s{sT}, 8192
    v_add_u32 v{vKH}, s{sT2}, v{vKH}
    v_mov_b32 v{vU[2]}, 4
    v_cmp_gt_u32 vcc, 19, v{vU[0]}
    v_mov_b32 v{vU[3]}, 19
    s_nop 0
    v_cndmask_b32 v{vU[2]}, v{vU[2]}, v{vU[0]}, vcc
    v_cmp_eq_u32 vcc, 4, v{vU[0]}
    v_mul_u32_u24 v{vU[4]}, {VH}, v{vU[1]}
    s_add_u32 s{sT2}, s{sT}, 9216
    v_cndmask_b32 v{vU[2]}, v{vU[2]}, v{vU[3]}, vcc
    v_lshl_add_u32 v{vV}, v{vU[2]}, 4, v{vU[4]}
    v_add_u32 v{vV}, s{sT2}, v{vV}
    v_mov_b32 v{vIDX}, 0xdddddddd
    s_lshl_b32 s{sT}, s{sP}, 1
    s_add_u32 s{sT}, s{sT}, s{sJ}                ; bh
    s_lshl_b32 s{sA}, s{sT}, 16
    s_lshl_b32 s{sT2}, s{sTG}, 13
    s_add_u32 s{sA}, s{sA}, s{sT2}
    s_lshl_b32 s{sT2}, s{sTP}, 11
    s_add_u32 s{sA}, s{sA}, s{sT2}
    s_add_u32 s{sOm}, s{sA}, {O_OFF}
    s_lshr_b32 s{sA}, s{sA}, 3
    s_add_u32 s{sOh}, s{sA}, {OH_OFF}
    s_mov_b32 s{sC2}, {f32bits(CSCALE):#x}
    s_mov_b32 s{sC2+1}, {f32bits(CSCALE):#x}
    v_and_b32 v{vU[2]}, 0x13, v{vU[0]}
    v_and_b32 v{vU[3]}, 4, v{vU[0]}
    v_lshl_or_b32 v{vU[2]}, v{vU[3]}, 1, v{vU[2]}
    v_and_b32 v{vU[3]}, 8, v{vU[0]}
    v_lshrrev_b32 v{vU[3]}, 1, v{vU[3]}
    v_or_b32 v{vU[2]}, v{vU[2]}, v{vU[3]}        ; kappa
    s_mul_i32 s{sT}, s{sJ}, {HEADSZ}
    s_lshl_b32 s{sT2}, s{sTP}, 11
    s_add_u32 s{sT}, s{sT}, s{sT2}
    v_lshlrev_b32 v{eK}, 9, v{vU[1]}
    v_lshl_add_u32 v{eK}, v{vU[2]}, 4, v{eK}
    v_add_u32 v{eK}, s{sT}, v{eK}
    s_lshl_b32 s{sT}, s{sTP}, 8
    s_add_u32 s{sT}, s{sT}, {SCR}
    v_lshlrev_b32 v{eR}, 2, v{vU[0]}
    v_add_u32 v{eR}, s{sT}, v{eR}
    s_cmp_eq_u32 s{sJ}, 1
    s_cbranch_scc1 L_a1
    v_subrev_u32 v{vU[3]}, 18, v{vU[0]}
    v_cmp_le_u32 vcc, 18, v{vU[0]}
    v_mov_b32 v{vU[5]}, {HEADSZ}
    v_mov_b32 v{vU[6]}, 19
    v_cndmask_b32 v{vU[3]}, v{vU[0]}, v{vU[3]}, vcc
    v_cndmask_b32 v{vU[5]}, 0, v{vU[5]}, vcc
    v_cmp_eq_u32 vcc, 4, v{vU[3]}
    s_mul_i32 s{sT}, s{sTP}, {4*VG}
    s_add_u32 s{sT}, s{sT}, 9216
    v_cndmask_b32 v{vU[3]}, v{vU[3]}, v{vU[6]}, vcc
    v_lshl_add_u32 v{e0}, v{vU[3]}, 4, v{vU[5]}
    v_add3_u32 v{e0}, v{e0}, v{vU[4]}, s{sT}
    s_branch L_a2
    L_a1:
    s_lshl_b32 s{sT}, s{sTP}, 8
    s_add_u32 s{sT}, s{sT}, 8192
    v_lshlrev_b32 v{e0}, 2, v{vU[2]}
    v_add_u32 v{e0}, s{sT}, v{e0}
    v_cmp_eq_u32 vcc, 1, v{vU[1]}
    v_add_u32 v{vU[5]}, {HEADSZ}, v{e0}
    v_add_u32 v{vU[6]}, 1024, v{eR}
    v_cndmask_b32 v{e0}, v{e0}, v{eR}, vcc
    v_cndmask_b32 v{e1}, v{vU[5]}, v{vU[6]}, vcc
    v_mov_b32 v{vU[5]}, 1.0
    v_mov_b32 v{vU[6]}, s{sC2}
    v_cndmask_b32 v{e2}, v{vU[5]}, v{vU[6]}, vcc
    v_lshrrev_b32 v{vU[3]}, 3, v{vU[2]}
    v_mul_u32_u24 v{vU[3]}, {VH}, v{vU[3]}
    v_and_b32 v{vU[5]}, 7, v{vU[2]}
    v_lshl_add_u32 v{e3}, v{vU[5]}, 1, v{vU[3]}
    s_mul_i32 s{sT}, s{sTP}, {4*VG}
    s_add_u32 s{sT}, s{sT}, {HEADSZ + 9216}
    v_add_u32 v{e3}, s{sT}, v{e3}
    L_a2:
    s_lshl_b32 s{sT}, s{sJ}, 10
    v_add_u32 v{e4}, s{sT}, v{eR}
    """)
    a(f"""
    s_waitcnt lgkmcnt(0)
    s_mov_b32 s{SO}, s44
    s_and_b32 s{SO+1}, s45, 0xffff
    """)
    a(f"""
    s_cmp_eq_u32 s{sW_}, 3
    s_cbranch_scc0 L_nn1
    s_waitcnt vmcnt(0)
    v_lshrrev_b32 v{vN+1}, v{vL}, v{vN+1}
    v_and_b32 v{vN+1}, 1, v{vN+1}
    v_cmp_eq_u32 vcc, 0, v{vN+1}
    v_mov_b32 v{vN+2}, 0
    v_mov_b32 v{vN+3}, 0
    s_lshl_b32 s{sT}, s{sP}, 3
    v_mov_b32 v{vN+6}, s{sT}
    s_or_b32 s{sT}, vcc_hi, 0x80000000
    v_mov_b32 v{vN}, vcc_lo
    v_mov_b32 v{vN+4}, vcc_lo
    v_mov_b32 v{vN+1}, s{sT}
    v_mov_b32 v{vN+5}, s{sT}
    s_mov_b64 exec, 1
    buffer_atomic_cmpswap_x2 v[{vN}:{vN+3}], v{vN+6}, s[{SD}:{SD+3}], 0 offen sc0 sc1
    s_mov_b64 exec, -1
    L_nn1:
    """)

    def reads(n, ks, f):
        s = n % 3
        xr = vXr2 if s == 2 else vXr
        wr = vWr2 if s == 2 else vWr
        so = G_SLOT if s == 1 else 0
        b = F[f]
        wo = so + ks * 16 * 256
        return [
            f"ds_read_b128 {vr(b,4)}, v{xr[ks]} offset:{so}",
            f"ds_read_b64_tr_b16 {vr(b+8,2)}, v{wr[0]} offset:{wo}",
            f"ds_read_b64_tr_b16 {vr(b+10,2)}, v{wr[0]} offset:{wo+1024}",
            f"ds_read_b128 {vr(b+4,4)}, v{xr[ks]} offset:{so+4096}",
            f"ds_read_b64_tr_b16 {vr(b+12,2)}, v{wr[1]} offset:{wo}",
            f"ds_read_b64_tr_b16 {vr(b+14,2)}, v{wr[1]} offset:{wo+1024}",
        ]

    def mfmas(f, j):
        b = F[f]
        X0, X1, Wa, Wb = vr(b, 4), vr(b + 4, 4), vr(b + 8, 4), vr(b + 12, 4)
        m = [f"v_mfma_f32_32x32x16_bf16 {vr(A0,16)}, {Wa}, {X0}, {vr(A0,16)}",
             f"v_mfma_f32_32x32x16_bf16 {vr(A1,16)}, {Wa}, {X1}, {vr(A1,16)}"]
        if j == 0:
            m += [f"v_mfma_f32_32x32x16_bf16 {vr(B0,16)}, {X0}, {Wb}, {vr(B0,16)}",
                  f"v_mfma_f32_32x32x16_bf16 {vr(B1,16)}, {X1}, {Wb}, {vr(B1,16)}"]
        else:
            m += [f"v_mfma_f32_32x32x16_bf16 {vr(B0,16)}, {Wb}, {X0}, {vr(B0,16)}",
                  f"v_mfma_f32_32x32x16_bf16 {vr(B1,16)}, {Wb}, {X1}, {vr(B1,16)}"]
        return m

    a("s_barrier")
    stamp(a, 1, True)
    for r in reads(0, 0, 0):
        a(r)
    if DPF == 1:
        dpf(5, 9, 4, 5, 1)
    if DPF == 2:
        dpf(4, 7, 4, 5, 1)
        dpf(7, 9, 6, 7, 2)
    if DPF == 3:
        dpf(2, 5, 4, 5, 1)
        dpf(5, 9, 6, 7, 2)
    a(f"""
    s_mov_b32 s{sN}, 0
    s_cmp_eq_u32 s{sJ}, 1
    s_cbranch_scc1 L_g1
    """)
    for j in range(2):
        a(f"L_g{j}:")
        for n in range(3):
            for ks in range(3):
                for r in reads(n, ks + 1, (ks + 1) & 1):
                    a(r)
                a("s_waitcnt lgkmcnt(6)")
                for m in mfmas(ks & 1, j):
                    a(m)
            a("s_waitcnt lgkmcnt(0)")
            if n == 2:
                a(f"""
                s_add_u32 s{sN}, s{sN}, 1
                s_cmp_eq_u32 s{sN}, 3
                s_cbranch_scc1 L_ge{j}
                """)
            a("s_barrier")
            for r in reads(n + 1, 0, 0):
                a(r)
            for m in mfmas(1, j):
                a(m)
        a(f"s_branch L_g{j}")
        a(f"L_ge{j}:")
        for m in mfmas(1, j):
            a(m)
        stamp(a, 2)
        a(f"""
        v_mov_b32 v{KHb[0]+1}, 0x3f803f80
        v_mov_b32 v{KHb[1]+1}, 0x3f803f80
        v_mov_b32 v{QH[("a",0)]+1}, 0
        v_mov_b32 v{QH[("a",1)]+1}, 0
        v_mov_b32 v{QH[("b",0)]+1}, 0
        v_mov_b32 v{QH[("b",1)]+1}, 0
        s_mov_b32 s{sN}, 0
        s_mov_b32 s{sRS}, 0
        s_mov_b32 s{sFB}, 0
        """)
        for t, A in enumerate((A0, A1)):
            for i in range(4):
                a(f"v_cvt_pk_bf16_f32 v{A+i}, v{A+2*i}, v{A+2*i+1}")
            a(f"ds_write_b128 v{eK}, {vr(A,4)} offset:{1024*t}")
        if j == 0:
            for t, B in enumerate((B0, B1)):
                for i in range(8):
                    a(f"v_cvt_pk_bf16_f32 v{B+i}, v{B+2*i}, v{B+2*i+1}")
                for u in range(2):
                    a(f"ds_write_b128 v{e0}, {vr(B+4*u,4)} offset:{(2*t+u)*VG}")
            a(f"""
            s_cmp_eq_u32 s{sW_}, 3
            s_cbranch_scc0 L_nn2
            s_waitcnt vmcnt(0)
            v_cmp_eq_u32 vcc, 0, v{vN+1}
            v_mov_b32 v{vN+3}, {SCR_N}
            v_mov_b32 v{vN+2}, 0
            v_cndmask_b32 v{vN}, v{vN}, v{vN+4}, vcc
            v_cndmask_b32 v{vN+1}, v{vN+1}, v{vN+5}, vcc
            s_mov_b64 exec, 1
            ds_write_b96 v{vN+3}, v[{vN}:{vN+2}]
            s_mov_b64 exec, -1
            L_nn2:
            s_branch L_ep
            """)
        else:
            a(f"""
            s_mov_b32 exec_lo, 0
            ds_write_b32 v{eR}, v{B0+4} offset:2048
            ds_write_b32 v{eR}, v{B1+4} offset:{2048+128}
            s_mov_b32 exec_lo, -1
            """)
            for t, B in enumerate((B0, B1)):
                for i in range(4):
                    a(f"v_mul_f32 v{B+i}, v{e2}, v{B+i}")
                for i in range(4):
                    a(f"v_cvt_pk_bf16_f32 v{B+8+i}, v{B+2*i}, v{B+2*i+1}")
                a(f"ds_write_b32 v{e0}, v{B+8} offset:{128*t}")
                a(f"ds_write_b32 v{e1}, v{B+9} offset:{128*t}")
            a("s_mov_b32 exec_hi, 0")
            for t, B in enumerate((B0, B1)):
                o = t * 2 * VG + 14 * 16
                a(f"ds_write_b16 v{e3}, v{B+10} offset:{o}")
                a(f"ds_write_b16_d16_hi v{e3}, v{B+10} offset:{o+16}")
                a(f"ds_write_b16 v{e3}, v{B+11} offset:{o+32}")
                a(f"ds_write_b16_d16_hi v{e3}, v{B+11} offset:{o+48}")
            a("s_mov_b32 exec_hi, -1")
    a("L_ep:")
    for t, (A, Q) in enumerate(((A0, Qa), (A1, Qb))):
        for i in range(4):
            a(f"v_pk_mul_f32 {vr(A+8+2*i,2)}, {vr(A+8+2*i,2)}, s[{sC2}:{sC2+1}]")
        for i in range(4):
            a(f"v_cvt_pk_bf16_f32 v{Q+i}, v{A+8+2*i}, v{A+8+2*i+1}")
    a(f"""
    v_mov_b32 v{CZ}, 0
    v_mov_b32 v{CZ+1}, 0x3f803f80
    v_cmp_gt_u32 vcc, 32, v{vL}
    """)
    for r in range(V1b[1], V1b[1] + 4):
        a(f"v_mov_b32 v{r}, 0")
    a("s_waitcnt vmcnt(0) lgkmcnt(0)")
    for r in range(S[1] + 24, S[1] + 32):
        a(f"v_mov_b32 v{r}, 0")
    a("s_barrier")
    stamp(a, 3, True)
    a(f"""
    ds_read_b128 {vr(Kb[0],4)}, v{vK}
    ds_read_b32 v{KHb[0]}, v{vKH}
    ds_read_b32 v{QH[("a",0)]}, v{e4}
    ds_read_b32 v{QH[("b",0)]}, v{e4} offset:128
    ds_read_b32 v{vG[0]}, v{eR} offset:2048
    ds_read_b32 v{vG[1]}, v{eR} offset:{2048+128}
    ds_read_b128 {vr(Kb[1],4)}, v{vK} offset:1024
    ds_read_b128 {vr(V0b[0],4)}, v{vV}
    ds_read_b128 {vr(V1b[0],4)}, v{vV} offset:{VG}
    """)
    X = S[0]

    def qk(dst, kb, q):
        return f"v_mfma_f32_32x32x16_bf16 {vr(dst,16)}, {vr(kb,4)}, {vr(q,4)}, 0"

    def qkh(dst, khb, qh):
        return f"v_mfma_f32_32x32x8_bf16 {vr(dst,16)}, {vr(khb,2)}, {vr(qh,2)}, {vr(dst,16)}"

    def pv(o, vb, p):
        return f"v_smfmac_f32_32x32x32_bf16 {vr(o,16)}, {vr(vb,4)}, {vr(p,8)}, v{vIDX}"

    def maxtree(m, b, first):
        if first:
            a(f"v_max3_f32 v{m}, v{b}, v{b+1}, v{b+2}")
            for i in range(3, 15, 2):
                a(f"v_max3_f32 v{m}, v{m}, v{b+i}, v{b+i+1}")
            a(f"v_max_f32 v{m}, v{m}, v{b+15}")
        else:
            for i in range(0, 16, 2):
                a(f"v_max3_f32 v{m}, v{m}, v{b+i}, v{b+i+1}")

    a("s_waitcnt lgkmcnt(8)")
    a(qk(X, Kb[0], Qa)); a(qk(X + 16, Kb[0], Qb))
    a(f"""
    s_waitcnt lgkmcnt(5)
    v_cndmask_b32 v{QH[("a",1)]}, v{QH[("a",0)]}, 0, vcc
    v_cndmask_b32 v{QH[("a",0)]}, 0, v{QH[("a",0)]}, vcc
    v_cndmask_b32 v{QH[("b",1)]}, v{QH[("b",0)]}, 0, vcc
    v_cndmask_b32 v{QH[("b",0)]}, 0, v{QH[("b",0)]}, vcc
    """)
    a(qkh(X, KHb[0], QH[("a", 0)]))
    a("s_nop 0")
    a(qkh(X + 16, KHb[0], QH[("b", 0)]))
    a(f"""
    s_mov_b32 s{sT}, {f32bits(-math.log2(math.e)):#x}
    s_cmp_ge_u32 s{sP}, 16
    s_cselect_b32 s{sT}, {f32bits(math.log2(math.e)):#x}, s{sT}
    s_waitcnt lgkmcnt(3)
    v_mul_f32 v{vG[0]}, s{sT}, v{vG[0]}
    v_mul_f32 v{vG[1]}, s{sT}, v{vG[1]}
    v_exp_f32 v{vG[0]}, v{vG[0]}
    v_exp_f32 v{vG[1]}, v{vG[1]}
    s_nop 0
    v_add_f32 v{vG[0]}, 1.0, v{vG[0]}
    v_add_f32 v{vG[1]}, 1.0, v{vG[1]}
    """)
    maxtree(vT[0], X, True)
    a(f"""
    v_lshrrev_b32 v{vT[2]}, 16, v{vT[0]}
    v_xor_b32 v{vT[2]}, 0x8000, v{vT[2]}
    v_cndmask_b32 v{QH[("a",0)]+1}, 0, v{vT[2]}, vcc
    v_cndmask_b32 v{QH[("a",1)]+1}, 0, v{vT[2]}, vcc
    v_rcp_f32 v{vG[0]}, v{vG[0]}
    """)
    a(qkh(X, CZ, QH[("a", 0)]))
    maxtree(vT[1], X + 16, True)
    a(f"""
    v_lshrrev_b32 v{vT[3]}, 16, v{vT[1]}
    v_xor_b32 v{vT[3]}, 0x8000, v{vT[3]}
    v_cndmask_b32 v{QH[("b",0)]+1}, 0, v{vT[3]}, vcc
    v_cndmask_b32 v{QH[("b",1)]+1}, 0, v{vT[3]}, vcc
    v_rcp_f32 v{vG[1]}, v{vG[1]}
    """)
    a(qkh(X + 16, CZ, QH[("b", 0)]))

    def E(b, n=4):
        for r in range(b, b + n):
            a(f"v_exp_f32 v{r}, v{r}")

    stamp(a, 4)
    if PRIO:
        a("s_setprio 1")
    a(".p2align 6")
    a("L_loop:")
    for i in range(8):
        X = S[i & 1]; Y = S[(i + 1) & 1]
        xa, xb, ya, yb = X, X + 16, Y, Y + 16
        tn = i + 1
        par = tn & 1
        khb = KHb[(tn >> 1) & 1]
        a("s_waitcnt lgkmcnt(0)")
        if i == 5 and PRIO:
            a("s_setprio 0")
        if i == 6:
            a("s_barrier")
            if PRIO:
                a("s_setprio 1")
            a(f"""
            v_add_u32 v{vK}, s{sDl}, v{vK}
            v_add_u32 v{vKH}, s{sDl}, v{vKH}
            """)
        if i == 7:
            a(f"v_add_u32 v{vV}, s{sDl}, v{vV}")
        a(qk(ya, Kb[tn & 1], Qa))
        a(f"ds_read_b128 {vr(Kb[i&1],4)}, v{vK} offset:{((i+2)&7)*1024}")
        E(xa)
        a(pv(Ob, V1b[(i + 1) & 1], yb + 8))
        a(f"ds_read_b128 {vr(V0b[(i+1)&1],4)}, v{vV} offset:{((2*(i+1))&15)*VG}")
        E(xa + 4)
        a(qkh(ya, khb, QH[("a", par)]))
        a(f"ds_read_b128 {vr(V1b[(i+1)&1],4)}, v{vV} offset:{((2*(i+1)+1)&15)*VG}")
        E(xa + 8)
        a(pv(Oa, V0b[i & 1], xa))
        if i % 2 == 0:
            a(f"ds_read_b32 v{KHb[((i>>1)+1)&1]}, v{vKH} offset:{(((i>>1)+1)&3)*256}")
        E(xa + 12)
        a(qk(yb, Kb[tn & 1], Qb))
        if i == 1:
            a(f"s_add_u32 s{sRS}, s{sRS}, 1")
        if i == 3:
            a(f"s_cmp_eq_u32 s{sRS}, 3")
        if i == 7:
            a(f"s_add_u32 s{sN}, s{sN}, 1")
        E(xb)
        a(pv(Oa, V1b[i & 1], xa + 8))
        if i == 1:
            a(f"s_mov_b32 s{sDl}, {CHUNK}")
        if i == 3:
            a(f"s_cselect_b32 s{sDl}, {(-2*CHUNK) & 0xffffffff:#x}, s{sDl}")
        if i == 7:
            a(f"s_cmp_lt_u32 s{sN}, 8")
        E(xb + 4)
        a(qkh(yb, khb, QH[("b", par)]))
        if i == 3:
            a(f"s_cselect_b32 s{sRS}, 0, s{sRS}")
        E(xb + 8)
        a(pv(Ob, V0b[i & 1], xb))
        E(xb + 12)
    a(f"""
    s_cbranch_scc1 L_loop
    s_nop 0
    """)
    stamp(a, 5)
    a(pv(Ob, V1b[1], S[1] + 24))
    a(f"""
    v_mov_b32 v{vT[5]}, {SCR_N}
    s_waitcnt lgkmcnt(0)
    ds_read_b32 v7, v{vT[5]} offset:4
    s_nop 8
    L_fin:
    """)
    for t, O in enumerate((Oa, Ob)):
        a(f"v_mov_b32 v{vT[2*t]}, v{O+10}")
        a(f"v_mov_b32 v{vT[2*t+1]}, v{O+10}")
    a(f"v_max3_f32 v{vT[4]}, |v{Oa}|, |v{Oa+1}|, |v{Ob}|")
    a(f"v_max_f32 v{vT[4]}, v{vT[4]}, |v{Ob+1}|")
    a(f"v_permlane32_swap_b32 v{vT[0]}, v{vT[1]}")
    a(f"v_permlane32_swap_b32 v{vT[2]}, v{vT[3]}")
    for i in range(2, 10):
        a(f"v_max3_f32 v{vT[4]}, v{vT[4]}, |v{Oa+i}|, |v{Ob+i}|")
    a(f"""
    s_cmp_eq_u32 s{sFB}, 0
    s_cbranch_scc0 L_store
    s_mov_b32 s{sT}, {f32bits(2.0**40):#x}
    s_mov_b32 s{sT2}, {f32bits(2.0**-8):#x}
    s_mov_b32 s{sA}, 0x7f800000
    v_cmp_nge_f32 vcc, s{sT}, v{vT[0]}
    v_cmp_nge_f32 s[44:45], s{sT}, v{vT[2]}
    v_cmp_nle_f32 s[46:47], s{sT2}, v{vT[0]}
    s_or_b64 vcc, vcc, s[44:45]
    v_cmp_nle_f32 s[44:45], s{sT2}, v{vT[2]}
    s_or_b64 vcc, vcc, s[46:47]
    v_cmp_ngt_f32 s[46:47], s{sA}, v{vT[4]}
    s_or_b64 vcc, vcc, s[44:45]
    s_nop 0
    s_or_b64 vcc, vcc, s[46:47]
    s_cbranch_vccnz L_exact
    L_store:
    v_rcp_f32 v{vT[0]}, v{vT[0]}
    v_rcp_f32 v{vT[2]}, v{vT[2]}
    v_lshlrev_b32 v{vT[4]}, 2, v{vL}
    v_mul_f32 v{vT[0]}, v{vT[0]}, v{vG[0]}
    v_mul_f32 v{vT[2]}, v{vT[2]}, v{vG[1]}
    v_mov_b32 v{vT[1]}, v{vT[0]}
    v_mov_b32 v{vT[3]}, v{vT[2]}
    """)
    for t, O in enumerate((Oa, Ob)):
        for i in range(5):
            a(f"v_pk_mul_f32 {vr(O+2*i,2)}, {vr(O+2*i,2)}, {vr(vT[2*t],2)}")
        pk = S[0] + 8 * t
        for i in range(5):
            a(f"v_cvt_pk_bf16_f32 v{pk+i}, v{O+2*i}, v{O+2*i+1}")
        a(f"buffer_store_dwordx4 {vr(pk,4)}, v{vL16}, s[{SWS}:{SWS+3}], s{sOm} offen offset:{1024*t} sc1")
    a(f"""
    s_nop 0
    v_permlane32_swap_b32 v{S[0]+4}, v{S[0]+12}
    s_setprio 0
    buffer_store_dword v{S[0]+4}, v{vT[4]}, s[{SWS}:{SWS+3}], s{sOh} offen sc1
    s_waitcnt lgkmcnt(0)
    s_barrier
    v_mov_b32 v{vT[0]}, 1
    s_lshl_b32 s{sT}, s{sTG}, 12
    s_lshl_b32 s{sT2}, s{sP}, 7
    s_add_u32 s{sT}, s{sT}, s{sT2}
    s_add_u32 s{sT}, s{sT}, {OFLAG_OFF}
    v_mov_b32 v{vT[1]}, 0
    s_mov_b64 exec, 1
    s_waitcnt vmcnt(0)
    ds_add_rtn_u32 v{vT[0]}, v{vT[5]}, v{vT[0]} offset:8
    s_waitcnt lgkmcnt(0)
    v_cmp_eq_u32 vcc, 7, v{vT[0]}
    s_cbranch_vccz L_nofl
    buffer_store_dword v7, v{vT[1]}, s[{SWS}:{SWS+3}], s{sT} offen sc1
    L_nofl:
    s_mov_b64 exec, -1
    """)
    stamp(a, 6)

    a.sec("exact")
    X = S[0]
    a(f"""
    L_exact:
    s_mov_b32 s{sFB}, 1
    v_mov_b32 v{QH[("a",0)]+1}, 0
    v_mov_b32 v{QH[("b",0)]+1}, 0
    v_and_b32 v{vKH}, 31, v{vL}
    v_mov_b32 v{vT[2]}, 4
    v_cmp_gt_u32 vcc, 19, v{vKH}
    v_mov_b32 v{vT[3]}, 19
    v_lshrrev_b32 v{vT[4]}, 5, v{vL}
    v_cndmask_b32 v{vT[2]}, v{vT[2]}, v{vKH}, vcc
    v_cmp_eq_u32 vcc, 4, v{vKH}
    v_mul_u32_u24 v{vT[4]}, {VH}, v{vT[4]}
    v_lshlrev_b32 v{vKH}, 2, v{vKH}
    v_cndmask_b32 v{vT[2]}, v{vT[2]}, v{vT[3]}, vcc
    v_lshl_add_u32 v{vV}, v{vT[2]}, 4, v{vT[4]}
    v_mov_b32 v{vT[0]}, 0xff800000
    v_mov_b32 v{vT[1]}, 0xff800000
    """)
    for r in range(Oa, Oa + 32):
        a(f"v_mov_b32 v{r}, 0")
    for ps in range(2):
        a(f"""
        s_mov_b32 s{sN}, 0
        L_x{ps}:
        s_lshr_b32 s{sT}, s{sN}, 3
        s_mul_i32 s{sT}, s{sT}, {CHUNK}
        s_mul_i32 s{sT2}, s{sJ}, {HEADSZ}
        s_add_u32 s{sT}, s{sT}, s{sT2}
        s_add_u32 s{sT}, s{sT}, s{sKVp}
        s_and_b32 s{sT2}, s{sN}, 7
        s_lshl_b32 s{sA}, s{sT2}, 10
        s_add_u32 s{sA}, s{sA}, s{sT}
        buffer_load_dwordx4 {vr(Kb[0],4)}, v{vL16}, s[{SWS}:{SWS+3}], s{sA} offen sc1
        s_lshl_b32 s{sA}, s{sT2}, 7
        s_add_u32 s{sA}, s{sA}, s{sT}
        s_add_u32 s{sA}, s{sA}, 8192
        buffer_load_dword v{KHb[0]}, v{vKH}, s[{SWS}:{SWS+3}], s{sA} offen sc1
        """)
        if ps == 1:
            a(f"""
            s_mul_i32 s{sA}, s{sT2}, {2*VG}
            s_add_u32 s{sA}, s{sA}, s{sT}
            s_add_u32 s{sA}, s{sA}, 9216
            buffer_load_dwordx4 {vr(V0b[0],4)}, v{vV}, s[{SWS}:{SWS+3}], s{sA} offen sc1
            buffer_load_dwordx4 {vr(V1b[0],4)}, v{vV}, s[{SWS}:{SWS+3}], s{sA} offen offset:{VG} sc1
            """)
        a("s_waitcnt vmcnt(0)")
        a(qk(X, Kb[0], Qa)); a(qk(X + 16, Kb[0], Qb))
        a(qkh(X, KHb[0], QH[("a", 0)])); a(qkh(X + 16, KHb[0], QH[("b", 0)]))
        a("s_nop 15")
        if ps == 0:
            maxtree(vT[0], X, False)
            maxtree(vT[1], X + 16, False)
        else:
            for i in range(16):
                a(f"v_sub_f32 v{X+i}, v{X+i}, v{vT[0]}")
                a(f"v_sub_f32 v{X+16+i}, v{X+16+i}, v{vT[1]}")
            E(X, 32)
            a("s_nop 1")
            a(pv(Oa, V0b[0], X)); a(pv(Oa, V1b[0], X + 8))
            a(pv(Ob, V0b[0], X + 16)); a(pv(Ob, V1b[0], X + 24))
        a(f"""
        s_add_u32 s{sN}, s{sN}, 1
        s_cmp_lt_u32 s{sN}, 64
        s_cbranch_scc1 L_x{ps}
        """)
        if ps == 0:
            a(f"""
            v_mov_b32 v{vT[2]}, v{vT[0]}
            v_mov_b32 v{vT[3]}, v{vT[1]}
            s_nop 1
            v_permlane32_swap_b32 v{vT[0]}, v{vT[2]}
            v_permlane32_swap_b32 v{vT[1]}, v{vT[3]}
            s_nop 1
            v_max_f32 v{vT[0]}, v{vT[0]}, v{vT[2]}
            v_max_f32 v{vT[1]}, v{vT[1]}, v{vT[3]}
            """)
    a("""
    s_nop 15
    s_branch L_fin
    """)

    vXE, vXO, vWS = 3, 4, 5
    vGt = [6, 7, 8]
    vGA, vF, vFo = 9, 10, 11
    vT = [12, 13, 14, 15, 16, 17, 18, 19]
    vWO = 20
    CP = 32

    def dma_x(n):
        slot = (n % 3) * G_SLOT
        s = ""
        for i in range(8):
            s += f"s_add_u32 m0, s{sM0x}, {slot + 1024*i}\n"
            if i % 2 == 0:
                s += f"s_add_u32 s{sT}, s{sXb}, {(i//2)*16*1152 + n*128}\n"
            else:
                s += "s_nop 0\n"
            s += f"buffer_load_dwordx4 v{vXE if i % 2 == 0 else vXO}, s[{SX}:{SX+3}], s{sT} offen lds\n"
        return s

    def dma_w(n):
        slot = (n % 3) * G_SLOT
        s = f"s_mov_b64 exec, s[{sMASK}:{sMASK+1}]\n"
        for i in range(4):
            s += f"s_add_u32 m0, s{sM0w}, {slot + 32768 + 1024*i}\n"
            s += f"s_add_u32 s{sT}, s{sWb}, {(n*64 + i*4)*3456}\n"
            s += f"buffer_load_dwordx4 v{vWS}, s[{SW}:{SW+3}], s{sT} offen lds\n"
        s += "s_mov_b64 exec, -1\n"
        return s

    def gate_write(n):
        slot = (n % 3) * G_SLOT
        lab = a.label("L_gw")
        reg = vGt[n // 4]
        if slot < 65536:
            w = f"ds_write_b16 v{vGA}, v{reg} offset:{slot}"
        else:
            w = f"v_add_u32 v{vT[7]}, {slot}, v{vGA}\nds_write_b16 v{vT[7]}, v{reg}"
        return f"""
        s_cmp_eq_u32 s{sLI}, {n % 4}
        s_cbranch_scc0 {lab}
        {w}
        {lab}:
        """

    def wo_load(q0, q1):
        assert q1 <= 72 or q0 >= 72
        srd_, base = (SWA, 0) if q1 <= 72 else (SWB, 72)
        lab = a.label("L_wo")
        a(f"""
        s_add_u32 s{sA}, s{sLI}, {q0}
        {lab}:
        s_lshl_b32 m0, s{sA}, 10
        s_sub_u32 s{sT}, s{sA}, {base}
        s_mul_i32 s{sT}, s{sT}, {8*1152}
        buffer_load_dwordx4 v{vWO}, s[{srd_}:{srd_+3}], s{sT} offen lds
        s_add_u32 s{sA}, s{sA}, 4
        s_cmp_lt_u32 s{sA}, {q1}
        s_cbranch_scc1 {lab}
        """)

    a.sec("loader")
    a("s_setprio 3")
    a(dma_x(0))
    a(f"""
    v_lshlrev_b32 v{vT[0]}, 1, v{vL}
    s_lshl_b32 s{sT}, s{sLI}, 7
    buffer_load_ushort v{vGt[0]}, v{vT[0]}, s[{SG}:{SG+3}], s{sT} offen
    buffer_load_ushort v{vGt[1]}, v{vT[0]}, s[{SG}:{SG+3}], s{sT} offen offset:512
    buffer_load_ushort v{vGt[2]}, v{vT[0]}, s[{SG}:{SG+3}], s{sT} offen offset:1024
    """)
    mask = ~((1 << 15) | (1 << 27) | (1 << 39) | (1 << 51)) & ((1 << 64) - 1)
    a(f"""
    v_bfe_u32 v{vT[2]}, v{vL}, 2, 2
    v_xor_b32 v{vT[2]}, v{vT[2]}, v{vT[1]}       ; blk
    v_and_b32 v{vT[3]}, 3, v{vL}                 ; e
    v_and_b32 v{vT[4]}, 1, v{vT[3]}
    v_lshlrev_b32 v{vT[4]}, 3, v{vT[4]}
    v_mul_u32_u24 v{vT[5]}, 20, v{vT[2]}
    v_add_u32 v{vT[4]}, v{vT[4]}, v{vT[5]}
    v_add_u32 v{vT[5]}, 576, v{vT[4]}
    v_cmp_gt_u32 vcc, 2, v{vT[3]}
    s_mov_b32 s{sMASK}, {mask & 0xffffffff:#x}
    s_mov_b32 s{sMASK+1}, {mask >> 32:#x}
    v_cndmask_b32 v{vT[4]}, v{vT[4]}, v{vT[5]}, vcc
    v_lshlrev_b32 v{vT[5]}, 3, v{vT[3]}
    v_add_u32 v{vT[5]}, 1152, v{vT[5]}
    v_cmp_eq_u32 vcc, 2, v{vT[2]}
    s_and_b32 s{sT}, s{sP}, 15
    s_mul_i32 s{sT}, s{sT}, 72
    v_cndmask_b32 v{vT[4]}, v{vT[4]}, v{vT[5]}, vcc
    v_mov_b32 v{vT[5]}, 592
    v_mov_b32 v{vT[6]}, 16
    v_cmp_eq_u32 vcc, 1, v{vT[3]}
    s_mul_i32 s{sT2}, s{sLI}, {16*3456}
    s_add_u32 s{sWb}, s{sT}, s{sT2}
    v_cndmask_b32 v{vT[5]}, v{vT[5]}, v{vT[6]}, vcc
    v_mov_b32 v{vT[6]}, 1180
    v_cmp_eq_u32 vcc, 2, v{vT[3]}
    s_lshl_b32 s{sM0w}, s{sLI}, 12
    s_nop 0
    v_cndmask_b32 v{vT[5]}, v{vT[5]}, v{vT[6]}, vcc
    v_cmp_eq_u32 vcc, 3, v{vT[2]}
    s_nop 1
    v_cndmask_b32 v{vT[4]}, v{vT[4]}, v{vT[5]}, vcc
    v_mul_u32_u24 v{vT[5]}, 3456, v{vT[1]}
    v_lshl_add_u32 v{vWS}, v{vT[4]}, 1, v{vT[5]}
    """)
    a(dma_w(0))
    a(f"""
    v_and_b32 v{vT[2]}, 3, v{vL}
    v_xor_b32 v{vT[2]}, 3, v{vT[2]}
    v_lshlrev_b32 v{vT[2]}, 6, v{vT[2]}
    v_lshl_add_u32 v{vGA}, v{vL}, 8, v{vT[2]}
    v_add_u32 v{vGA}, {32768 + 48}, v{vGA}
    """)
    a(dma_x(1)); a(dma_w(1))
    a("s_waitcnt vmcnt(16)")
    for n in range(3):
        a(gate_write(n))
    a("s_waitcnt vmcnt(12) lgkmcnt(0)")
    a("s_barrier")
    stamp(a, 1)
    a(dma_x(2)); a(dma_w(2))
    for n in range(8):
        a(f"s_waitcnt vmcnt({12 if n + 2 <= 8 else 0}) lgkmcnt(0)")
        a("s_barrier")
        if n + 3 <= 8:
            a(gate_write(n + 3))
            a(dma_x(n + 3)); a(dma_w(n + 3))
        if n == 6:
            lab = a.label("L_cr")
            a(f"""
            s_cmp_ge_u32 s{sLI}, 2
            s_cbranch_scc1 {lab}
            s_cmp_eq_u32 s{sLI}, 0
            s_cselect_b32 s{sT}, 0x3f803f80, 0
            s_cselect_b32 s{sT2}, {14*16}, 0
            s_add_u32 s{sT2}, s{sT2}, {9216 + 4*16}
            v_lshrrev_b32 v{vT[0]}, 5, v{vL}
            v_mul_u32_u24 v{vT[0]}, {HEADSZ}, v{vT[0]}
            v_and_b32 v{vT[1]}, 31, v{vL}
            v_mul_u32_u24 v{vT[1]}, {VH}, v{vT[1]}
            v_add3_u32 v{vT[0]}, v{vT[0]}, v{vT[1]}, s{sT2}
            v_mov_b32 v{CP}, s{sT}
            v_mov_b32 v{CP+1}, s{sT}
            v_mov_b32 v{CP+2}, s{sT}
            v_mov_b32 v{CP+3}, s{sT}
            ds_write_b128 v{vT[0]}, {vr(CP,4)}
            {lab}:
            """)
    tail_srds()
    a(f"""
    s_lshl_b32 s{sT}, s{sLI}, 10
    v_add_u32 v{vT[0]}, s{sT}, v{vL16}
    s_add_u32 s{sKVp}, s{sKVp}, s{sT}
    s_mov_b32 s{sM0x}, s{sT}
    s_mul_i32 s{sA}, s{sTG}, {CHUNK}
    s_add_u32 s{sA}, s{sA}, s{sKVp}
    s_lshl_b32 s{sB}, s{sP}, 12
    s_add_u32 s{sB}, s{sB}, s{sT}
    s_add_u32 s{sWb}, s{sB}, {FLAG_OFF}
    v_and_b32 v{vFo}, 7, v{vL}
    v_lshlrev_b32 v{vFo}, 7, v{vFo}
    v_mov_b32 v{vT[1]}, {SCR_N}
    s_lshl_b32 s{sT}, s{sTG}, 7
    v_mov_b32 v{vT[2]}, s{sT}
    v_lshrrev_b32 v{vT[3]}, 3, v{vL}
    v_mul_u32_u24 v{vT[3]}, 1152, v{vT[3]}
    v_bfe_u32 v{vT[4]}, v{vL}, 4, 1
    v_lshlrev_b32 v{vT[4]}, 2, v{vT[4]}
    v_and_b32 v{vT[5]}, 7, v{vL}
    v_xor_b32 v{vT[5]}, v{vT[5]}, v{vT[4]}
    v_lshl_add_u32 v{vWO}, v{vT[5]}, 4, v{vT[3]}
    s_lshl_b32 s{sT}, s{sCG}, 7
    v_add_u32 v{vWO}, s{sT}, v{vWO}
    s_waitcnt lgkmcnt(0)
    s_barrier
    """)
    stamp(a, 3, True)
    for i in range(10):
        a(f"ds_read_b128 {vr(CP+4*i,4)}, v{vT[0]} offset:{4096*i}")
    a(f"ds_read_b32 v{vF}, v{vT[1]}")
    for i in range(10):
        if i == 9:
            a(f"s_cmp_ge_u32 s{sLI}, 2\ns_cbranch_scc1 L_c9")
        a(f"s_waitcnt lgkmcnt({10-i})")
        a(f"s_add_u32 s{sT}, s{sA}, {4096*i}")
        a(f"buffer_store_dwordx4 {vr(CP+4*i,4)}, v{vL16}, s[{SWS}:{SWS+3}], s{sT} offen sc1")
    a(f"""
    L_c9:
    s_waitcnt vmcnt(0) lgkmcnt(0)
    v_readfirstlane_b32 s{sNON}, v{vF}
    s_mov_b64 exec, 1
    buffer_store_dword v{vF}, v{vT[2]}, s[{SWS}:{SWS+3}], s{sWb} offen sc1
    s_mov_b64 exec, -1
    s_mov_b32 s{sRDY}, 0
    s_mov_b32 s{sN}, 0
    s_mov_b32 s{sC}, s{sTG}
    L_ll:
    s_add_u32 s{sC}, s{sC}, 1
    s_and_b32 s{sC}, s{sC}, 7
    s_add_u32 s{sM0x}, s{sM0x}, {CHUNK}
    s_sub_u32 s{sT}, s{sM0x}, {3*CHUNK}
    s_cmp_ge_u32 s{sM0x}, {3*CHUNK}
    s_cselect_b32 s{sM0x}, s{sT}, s{sM0x}
    L_poll:
    s_bitcmp1_b32 s{sRDY}, s{sC}
    s_cbranch_scc1 L_rdy
    buffer_load_dword v{vF}, v{vFo}, s[{SWS}:{SWS+3}], s{sWb} offen sc1
    s_waitcnt vmcnt(0)
    v_cmp_eq_u32 vcc, s{sNON}, v{vF}
    s_sub_u32 s{sSPIN}, s{sSPIN}, 1
    s_nop 0
    s_cselect_b32 s{sRDY}, -1, vcc_lo
    s_bitcmp1_b32 s{sRDY}, s{sC}
    s_cbranch_scc1 L_rdy
    s_sleep 1
    s_branch L_poll
    L_rdy:
    s_mul_i32 s{sA}, s{sC}, {CHUNK}
    s_add_u32 s{sA}, s{sA}, s{sKVp}
    """)
    for i in range(10):
        if i == 9:
            a(f"s_cmp_ge_u32 s{sLI}, 2\ns_cbranch_scc1 L_d9")
        a(f"""
        s_add_u32 m0, s{sM0x}, {4096*i}
        s_add_u32 s{sT}, s{sA}, {4096*i}
        buffer_load_dwordx4 v{vL16}, s[{SWS}:{SWS+3}], s{sT} offen sc1 lds
        """)
    a(f"""
    L_d9:
    s_waitcnt vmcnt(0)
    """)
    if STAMPS == 1:
        a(f"s_cmp_eq_u32 s{sN}, 0\ns_cbranch_scc0 L_st4")
        stamp(a, 4)
        a("L_st4:")
    a(f"""
    s_barrier
    s_add_u32 s{sN}, s{sN}, 1
    s_cmp_lt_u32 s{sN}, 7
    s_cbranch_scc1 L_ll
    s_mov_b32 s{sSPIN}, {SPIN_LIMIT}
    s_cmp_ge_u32 s{sU}, 27
    s_cbranch_scc1 L_end
    """)
    wo_load(76, 144)
    a(f"""
    s_cmp_eq_u32 s{sLI}, 0
    s_cbranch_scc0 L_on1
    v_lshlrev_b32 v{vT[0]}, 2, v{vL}
    v_add_u32 v{vT[1]}, {SCR_ON}, v{vT[0]}
    L_on0:
    buffer_load_dword v{vF}, v{vT[0]}, s[{SD}:{SD+3}], 0 offen sc1
    s_waitcnt vmcnt(0)
    v_cmp_gt_i32 vcc, 0, v{vF}
    s_sub_u32 s{sSPIN}, s{sSPIN}, 1
    s_cbranch_scc1 L_on2
    s_and_b32 s{sT}, vcc_lo, vcc_hi
    s_and_b32 s{sT}, s{sT}, 0xaaaaaaaa
    s_cmp_eq_u32 s{sT}, 0xaaaaaaaa
    s_cbranch_scc1 L_on2
    s_sleep 8
    s_branch L_on0
    L_on2:
    ds_write_b32 v{vT[1]}, v{vF}
    s_mov_b32 s{sSPIN}, {SPIN_LIMIT}
    L_on1:
    s_waitcnt lgkmcnt(0)
    s_barrier                                    ; B_7
    """)
    wo_load(0, 38)
    a("s_barrier                                    ; BT1")
    wo_load(38, 72)
    wo_load(72, 76)
    stamp(a, 6)
    a("s_branch L_tail")
    a.sec("tail")

    vFo, vEx, vOH = 3, 4, 5
    vWm = [6, 7]; vWh = [8, 9]
    vT = [10, 11, 12, 13, 14, 15]
    WF = [32, 40]
    OF = 64
    ACC = [136, 152]
    a(f"""
    L_tail:
    s_cmp_ge_u32 s{sU}, 27
    s_cbranch_scc1 L_end
    v_and_b32 v{vT[0]}, 31, v{vL}                ; tau
    v_lshrrev_b32 v{vT[1]}, 5, v{vL}             ; h
    s_add_u32 s{sT0}, s{sT0}, s{sTT}
    s_cmp_ge_u32 s{sT0}, 8
    s_cbranch_scc1 L_tidle
    v_and_b32 v{vT[2]}, 7, v{vL}
    v_lshlrev_b32 v{vFo}, 7, v{vT[2]}
    s_lshl_b32 s{sT}, s{sKQ}, 6
    s_add_u32 s{sT}, s{sT}, {SCR_ON + 4}
    v_lshlrev_b32 v{vT[2]}, 3, v{vT[2]}
    v_add_u32 v{vT[2]}, s{sT}, v{vT[2]}
    ds_read_b32 v{vEx}, v{vT[2]}
    s_lshl_b32 s{sB}, s{sTG2}, 12
    s_lshl_b32 s{sT}, s{sKQ}, 10
    s_add_u32 s{sB}, s{sB}, s{sT}
    s_add_u32 s{sB}, s{sB}, {OFLAG_OFF}
    ; O offsets
    s_lshl_b32 s{sOm}, s{sKQ}, 20
    s_lshl_b32 s{sT}, s{sTG2}, 13
    s_add_u32 s{sOm}, s{sOm}, s{sT}
    s_lshl_b32 s{sT}, s{sT0}, 10
    s_add_u32 s{sOm}, s{sOm}, s{sT}
    s_lshr_b32 s{sOh}, s{sOm}, 3
    s_add_u32 s{sOm}, s{sOm}, {O_OFF}
    s_add_u32 s{sOh}, s{sOh}, {OH_OFF}
    v_lshlrev_b32 v{vOH}, 13, v{vT[1]}
    v_lshl_add_u32 v{vOH}, v{vT[0]}, 2, v{vOH}
    s_waitcnt lgkmcnt(0)
    L_tp:
    buffer_load_dword v{vT[2]}, v{vFo}, s[{SWS}:{SWS+3}], s{sB} offen sc1
    s_waitcnt vmcnt(0)
    v_cmp_ne_u32 vcc, v{vEx}, v{vT[2]}
    s_sub_u32 s{sSPIN}, s{sSPIN}, 1
    s_cbranch_scc1 L_tr
    s_cbranch_vccz L_tr
    s_sleep 1
    s_branch L_tp
    L_tr:
    """)
    stamp(a, 7)
    def ofrag(ks):
        return OF + 4 * ks
    for half in range(2):
        for m in range(8):
            a(f"s_add_u32 s{sT}, s{sOm}, {(half*8+m)*65536}")
            a(f"buffer_load_dwordx4 {vr(ofrag(half*9+m),4)}, v{vL16}, s[{SWS}:{SWS+3}], s{sT} offen sc1")
        for rr in range(4):
            a(f"s_add_u32 s{sT}, s{sOh}, {(half*8+2*rr)*8192}")
            a(f"buffer_load_dword v{ofrag(half*9+8)+rr}, v{vOH}, s[{SWS}:{SWS+3}], s{sT} offen sc1")
    a(f"""
    v_bfe_u32 v{vT[2]}, v{vL}, 2, 2              ; r
    v_and_b32 v{vT[3]}, 3, v{vL}                 ; c
    v_bfe_u32 v{vT[4]}, v{vL}, 4, 1              ; sub
    v_lshlrev_b32 v{vT[3]}, 3, v{vT[3]}
    v_lshl_add_u32 v{vT[3]}, v{vT[4]}, 5, v{vT[3]}
    s_mul_i32 s{sT}, s{sKQ}, {288*128}
    v_add_u32 v{vT[3]}, s{sT}, v{vT[3]}
    v_lshrrev_b32 v{vT[4]}, 1, v{vT[2]}          ; r>>1
    v_lshl_add_u32 v{vT[5]}, v{vT[1]}, 2, v{vT[2]}
    v_lshl_add_u32 v{vT[5]}, v{vT[5]}, 7, v{vT[3]}
    v_lshl_add_u32 v{vWm[0]}, v{vT[4]}, 6, v{vT[5]}
    v_xor_b32 v{vWm[1]}, 64, v{vWm[0]}
    v_lshl_add_u32 v{vT[5]}, v{vT[4]}, 1, v{vT[1]}
    v_mul_u32_u24 v{vT[5]}, 18, v{vT[5]}
    v_and_b32 v{vT[2]}, 1, v{vT[2]}
    v_add3_u32 v{vT[5]}, v{vT[5]}, v{vT[2]}, 16
    v_lshl_add_u32 v{vT[5]}, v{vT[5]}, 7, v{vT[3]}
    v_lshl_add_u32 v{vWh[0]}, v{vT[1]}, 6, v{vT[5]}
    v_xor_b32 v{vWh[1]}, 64, v{vWh[0]}
    s_barrier
    """)

    def wreads(ks, f):
        b = WF[f]
        half, m = divmod(ks, 9)
        out = []
        for ct in range(2):
            if m < 8:
                ad = vWm[ct ^ (m & 1)]
                o0 = (half * 8 + m) * 18 * 128; o1 = o0 + 8 * 128
            else:
                ad = vWh[ct]
                o0 = half * 8 * 18 * 128; o1 = o0 + 4 * 18 * 128
            out.append(f"ds_read_b64_tr_b16 {vr(b+4*ct,2)}, v{ad} offset:{o0}")
            out.append(f"ds_read_b64_tr_b16 {vr(b+4*ct+2,2)}, v{ad} offset:{o1}")
        return out

    for r in wreads(0, 0):
        a(r)
    for ks in range(18):
        half, m = divmod(ks, 9)
        done_loads = half * 12 + (m + 1 if m < 8 else 12)
        if ks < 17:
            for r in wreads(ks + 1, (ks + 1) & 1):
                a(r)
            a(f"s_waitcnt vmcnt({24-done_loads}) lgkmcnt(4)")
        else:
            a("s_waitcnt vmcnt(0) lgkmcnt(0)")
        b = WF[ks & 1]
        for ct in range(2):
            c = "0" if ks == 0 else vr(ACC[ct], 16)
            a(f"v_mfma_f32_32x32x16_bf16 {vr(ACC[ct],16)}, {vr(b+4*ct,4)}, {vr(ofrag(ks),4)}, {c}")
    stamp(a, 8)
    a(f"""
    s_barrier
    s_lshl_b32 s{sT}, s{sTT}, 15
    s_lshl_b32 s{sT2}, s{sKQ}, 13
    s_add_u32 s{sA}, s{sT}, s{sT2}
    v_add_u32 v{vT[2]}, s{sA}, v{vL16}
    s_lshl_b32 s{sT2}, s{sKQ}, 11
    s_add_u32 s{sA}, s{sT}, s{sT2}
    v_add_u32 v{vT[3]}, s{sA}, v{vL16}
    s_lshl_b32 s{sT}, s{sTG2}, 8
    s_lshl_b32 s{sT2}, s{sT0}, 5
    s_add_u32 s{sT}, s{sT}, s{sT2}
    s_mul_i32 s{sA}, s{sT}, 1152
    s_lshl_b32 s{sT}, s{sCG}, 7
    s_add_u32 s{sA}, s{sA}, s{sT}
    s_lshl_b32 s{sT}, s{sKQ}, 5
    s_add_u32 s{sA}, s{sA}, s{sT}
    v_mul_u32_u24 v{vT[4]}, 1152, v{vT[0]}
    v_lshl_add_u32 v{vT[4]}, v{vT[1]}, 4, v{vT[4]}
    """)
    for i in range(8):
        a(f"ds_write_b128 v{vT[2]}, {vr(ACC[0]+4*i,4)} offset:{1024*i}")
    a("s_waitcnt lgkmcnt(0)")
    a("s_barrier                                    ; BT4")
    for src in range(4):
        for g in range(2):
            a(f"ds_read_b128 {vr(OF+8*src+4*g,4)}, v{vT[3]} offset:{src*8192 + g*1024}")
    a("s_waitcnt lgkmcnt(4)")
    for q in range(8):
        a(f"v_add_f32 v{OF+q}, v{OF+q}, v{OF+8+q}")
    a("s_waitcnt lgkmcnt(0)")
    for q in range(8):
        a(f"v_add_f32 v{OF+16+q}, v{OF+16+q}, v{OF+24+q}")
    for q in range(8):
        a(f"v_add_f32 v{OF+q}, v{OF+q}, v{OF+16+q}")
    for i in range(4):
        a(f"v_cvt_pk_bf16_f32 v{WF[0]+i}, v{OF+2*i}, v{OF+2*i+1}")
    a(f"""
    s_nop 1
    v_permlane32_swap_b32 v{WF[0]}, v{WF[0]+2}
    v_permlane32_swap_b32 v{WF[0]+1}, v{WF[0]+3}
    buffer_store_dwordx4 {vr(WF[0],4)}, v{vT[4]}, s[{SO}:{SO+3}], s{sA} offen
    s_branch L_end
    L_tidle:
    s_waitcnt vmcnt(0)
    s_barrier
    s_branch L_end
    """)
    a.sec("end")
    a("L_end:")
    if STAMPS:
        a(f"""
        s_waitcnt vmcnt(0) lgkmcnt(0)
        s_memtime s[92:93]
        s_memrealtime s[98:99]
        s_waitcnt lgkmcnt(0)
        s_mov_b64 exec, 1
        s_lshl_b32 s{sT}, s2, 4
        s_add_u32 s{sT}, s{sT}, s{sWV}
        s_lshl_b32 s{sT}, s{sT}, 6
        s_add_u32 s{sT}, s{sT}, {STAMP_OFF}
        v_mov_b32 v0, 0
        """)
        for n in range(14):
            a(f"v_mov_b32 v1, s{72+2*n}")
            a(f"buffer_store_dword v1, v0, s[{SWS}:{SWS+3}], s{sT} offen offset:{4*n}")
            a("s_nop 0")
    a("""
    L_done:
    s_endpgm
    """)
    return name, NV


def main():
    out = sys.argv[1] if len(sys.argv) > 1 else f"cdna_kernels/{NAME}.s"
    a = Asm()
    k, nv = gen(a)
    hdr = open(f"cdna_kernels/{NAME}.s.ref").read().split("\n")
    hdr = [l for l in hdr if l.startswith(";") and "@launch" not in l]
    txt = "\n".join(hdr) + "\n"
    txt += f"; @launch grid=(256,1,1) block=(768,1,1) lds={LDS_BYTES}\n"
    txt += '.amdgcn_target "amdgcn-amd-amdhsa--gfx950"\n.text\n'
    txt += a.text()
    txt += f""".section .rodata,"a"
.p2align 6
.amdhsa_kernel {k}
  .amdhsa_next_free_vgpr {nv}
  .amdhsa_next_free_sgpr {102 if STAMPS else 72}
  .amdhsa_accum_offset {(nv + 3) // 4 * 4}
  .amdhsa_group_segment_fixed_size 0
  .amdhsa_kernarg_size 80
  .amdhsa_user_sgpr_count 2
  .amdhsa_user_sgpr_kernarg_segment_ptr 1
  .amdhsa_system_sgpr_workgroup_id_x 1
.end_amdhsa_kernel
"""
    open(out, "w").write(txt)


if __name__ == "__main__":
    main()
```

```python
import math, os, struct, sys

NAME = "gated_mix__mha_block__mha_block__prompt"

VH = 320
VG = 2 * VH
TILE = 2048 + 4 * VG
TPAIR = 512 + 2 * TILE
CHUNK = 4 * TPAIR


def toff(t):
    return (t >> 1) * TPAIR + (t & 1) * TILE
KV_OFF = 0
FLAG_OFF = 0x0A00000
OFLAG_OFF = 0x0A20000
O_OFF = 0x0B00000
OPAIR = 2304
OTILE = 32 * OPAIR
WS_USED = 0x1000000
XBYTES = 2048 * 576 * 2
WQKV_BYTES = 576 * 1728 * 2
WO_BYTES = 576 * 576 * 2
CSCALE = (18 ** -0.5) * math.log2(math.e)

STAMPS = int(os.environ.get("STAMPS", "0"))
STAMP_OFF = 0x1000000
if STAMPS:
    WS_USED = 0x1100000
PRIO = int(os.environ.get("PRIO", "2"))
ALIGN = int(os.environ.get("ALIGN", "1"))
WPOS = int(os.environ.get("WPOS", "1"))
STEAL = int(os.environ.get("STEAL", "1"))
CPF = int(os.environ.get("CPF", "1"))
DPF = int(os.environ.get("DPF", "4"))

G_SLOT = 49152
LDS_BYTES = 163840
SCR = CHUNK
SCR_N = SCR + 3072
SYNC = LDS_BYTES - 1024
RING = [0, SYNC - CHUNK, CHUNK + 4096]
SPIN_LIMIT = 1 << 19


def f32bits(x):
    return struct.unpack("<I", struct.pack("<f", x))[0]


class Asm:
    def __init__(self):
        self.secs = {"entry": []}
        self.lines = self.secs["entry"]
        self.nlab = 0

    def sec(self, name):
        self.lines = self.secs.setdefault(name, [])

    def __call__(self, s):
        for ln in s.strip("\n").split("\n"):
            ln = ln.strip()
            if not ln:
                continue
            if ln.endswith(":") or ln.startswith("."):
                self.lines.append(ln)
            else:
                self.lines.append("    " + ln)

    def label(self, base="L"):
        self.nlab += 1
        return f"{base}_{self.nlab}"

    def text(self):
        order = ["entry", "loader", "compute", "tail", "exact", "end"]
        assert sorted(order) == sorted(self.secs)
        return "\n".join("\n".join(self.secs[k]) for k in order) + "\n"


def isize(ln):
    t = ln.split(";")[0].strip()
    if not t or t.endswith(":"):
        return 0
    op = t.split()[0]
    if op.startswith(("v_mfma", "v_smfmac", "ds_", "buffer_")) or op.endswith("_e64"):
        return 8
    assert op in ("v_exp_f32", "v_add_u32", "v_mov_b32") or op.startswith("s_"), t
    assert "0x" not in t, t
    return 4


def align8(lines):
    out, off = [], 0
    for ln in lines:
        n = isize(ln)
        if n == 8 and off % 8:
            o = off
            for k in range(len(out) - 1, -1, -1):
                m = isize(out[k])
                if m == 8:
                    k = -1
                    break
                o -= m
                if m == 4 and o % 8 == 0 and out[k].split()[0] == "v_exp_f32":
                    out[k] = out[k].replace("v_exp_f32", "v_exp_f32_e64")
                    break
            else:
                k = -1
            if k == -1:
                out.append("    s_nop 0")
            off += 4
        out.append(ln)
        off += n
    return out


def vr(b, n):
    return f"v[{b}:{b+n-1}]"


def stamp(a, n, wait=False, mode=1):
    if STAMPS == mode:
        a(f"{'s_memtime' if mode == 1 else 's_memrealtime'} s[{72+2*n}:{73+2*n}]")
        if wait:
            a("s_waitcnt lgkmcnt(0)")


def gen(a):
    name = NAME + "_kernel"
    a(f"""
.globl {name}
.p2align 8
.type {name},@function
{name}:
""")
    SX, SW, SWS, SG, SD = 4, 8, 12, 16, 52
    SWA, SWB, SO = 4, 8, 16
    sW_, sP, sTG, sWV, sJ, sTP = 20, 21, 22, 23, 24, 25
    sXb, sWb, sM0x, sM0w, sA, sB, sT, sT2 = 26, 27, 28, 29, 30, 31, 32, 33
    sMASK = 34
    sKVp, sC, sN, sRS = 36, 37, 38, 39
    sDl, sU, sOm, sOh = 56, 57, 58, 59
    sNON, sRDY, sFB, sSPIN = 60, 61, 62, 63
    sCG, sT0, sTT, sKQ, sTG2 = 64, 65, 66, 67, 68
    sC2 = 70
    sD3 = 48
    sLI = sWV
    vL, vL16 = 1, 2
    NV = 168
    a(f"""
    s_cmp_ge_u32 s2, 256
    s_cbranch_scc1 L_done
    """)
    if STAMPS:
        a("s_memtime s[72:73]\ns_memrealtime s[96:97]")
    a(f"""
    s_load_dwordx2 s[{SX}:{SX+1}], s[0:1], 0            ; x
    s_bitcmp1_b32 s2, 2
    s_cselect_b32 s{sT}, 32, 8
    s_load_dwordx2 s[{SW}:{SW+1}], s[0:1], s{sT}
    s_load_dwordx2 s[{SG}:{SG+1}], s[0:1], 48           ; gate_w
    s_load_dwordx2 s[{SD}:{SD+1}], s[0:1], 64           ; debug
    s_load_dwordx2 s[{SWS}:{SWS+1}], s[0:1], 72         ; ws
    """)
    if CPF:
        a(f"""
        s_getpc_b64 s[{sA}:{sA+1}]
        v_subrev_u32 v10, 256, v0
        v_lshlrev_b32 v10, 7, v10
        v_cmp_gt_u32 vcc, L_done - {name} - 64, v10
        s_and_saveexec_b64 s[{sT}:{sT+1}], vcc
        s_cbranch_execz L_cpf
        global_load_dword v7, v10, s[{sA}:{sA+1}]
        L_cpf:
        s_mov_b64 exec, -1
        """)
    a(f"""
    v_lshrrev_b32 v10, 6, v0
    v_and_b32 v{vL}, 63, v0
    s_bfe_u32 s{sTG}, s2, 0x30003
    v_readfirstlane_b32 s{sWV}, v10
    s_and_b32 s{sP}, s2, 7
    s_lshl_b32 s{sP}, s{sP}, 2
    s_lshr_b32 s{sT2}, s2, 6
    s_add_u32 s{sP}, s{sP}, s{sT2}
    s_mov_b32 s{SX+2}, {XBYTES}
    s_mov_b32 s{SX+3}, 0x00020000
    s_mov_b32 s{SW+3}, s{SX+3}
    s_mov_b32 s{SG+3}, s{SX+3}
    s_mov_b32 s{SD+3}, s{SX+3}
    s_mov_b32 s{SWS+3}, s{SX+3}
    s_cmp_lt_u32 s{sWV}, 4
    s_cbranch_scc0 L_compute
    v_lshrrev_b32 v12, 3, v{vL}
    v_mul_u32_u24 v12, 1152, v12
    v_lshrrev_b32 v13, 4, v{vL}
    v_and_b32 v14, 7, v{vL}
    v_xor_b32 v14, v14, v13
    v_lshl_add_u32 v3, v14, 4, v12
    v_xor_b32 v14, 4, v14
    v_lshl_add_u32 v4, v14, 4, v12
    v_add_u32 v4, {8*1152}, v4
    s_lshl_b32 s{sT}, s{sTG}, 2
    s_add_u32 s{sT}, s{sT}, s{sLI}
    s_mul_i32 s{sXb}, s{sT}, {64*1152}
    s_lshl_b32 s{sM0x}, s{sLI}, 13
    s_waitcnt lgkmcnt(0)
    """)

    def common():
        a(f"""
        s_mov_b32 s{SW+2}, {WQKV_BYTES}
        s_movk_i32 s{SG+2}, 1152
        s_movk_i32 s{SD+2}, 256
        s_mov_b32 s{SWS+2}, {WS_USED}
        v_lshlrev_b32 v{vL16}, 4, v{vL}
        s_mul_i32 s{sKVp}, s{sP}, {8*CHUNK}
        s_mul_i32 s{sKQ}, s{sWV}, 43
        s_lshr_b32 s{sKQ}, s{sKQ}, 7
        s_mul_i32 s{sT}, s{sKQ}, 3
        s_sub_u32 s{sTT}, s{sWV}, s{sT}
        s_mov_b32 s{sSPIN}, {SPIN_LIMIT}
        """)

    sFl, sI, sPd, sBt, sCur, sMode, sWS = 69, 40, 41, 42, 43, 39, 3

    def unit_decode(v):
        a(f"""
        v_readfirstlane_b32 s{sU}, v{v}
        s_nop 3
        s_lshr_b32 s{sTG2}, s{sU}, 8
        s_and_b32 s{sTG2}, s{sTG2}, 7
        s_and_b32 s{sU}, s{sU}, 0xff
        s_lshr_b32 s{sCG}, s{sU}, 1
        s_and_b32 s{sT0}, s{sU}, 1
        s_mul_i32 s{sT0}, s{sT0}, 3
        s_sub_u32 s{sT}, s{sU}, 18
        s_cmp_ge_u32 s{sU}, 18
        s_cselect_b32 s{sCG}, s{sT}, s{sCG}
        s_cselect_b32 s{sT0}, 6, s{sT0}
        s_add_u32 s{sT0}, s{sT0}, s{sTT}
        s_lshl_b32 s{sT}, s{sTG2}, 3
        s_add_u32 s{sT}, s{sT}, s{sT0}
        s_mul_i32 s{sFl}, s{sT}, {OTILE}
        s_mul_i32 s{sT}, s{sKQ}, {8*OPAIR}
        s_add_u32 s{sFl}, s{sFl}, s{sT}
        s_add_u32 s{sFl}, s{sFl}, {O_OFF}
        """)

    vK, vKH, vV, vIDX = 3, 4, 5, 6
    vG = [8, 9]
    vT = [10, 11, 12, 13, 14, 15]
    Qa, Qb = 16, 20
    QH = {("a", 0): 24, ("a", 1): 26, ("b", 0): 28, ("b", 1): 30}
    Kb = [32, 36]
    KHb = [40, 42]
    V0b = [44, 48]
    V1b = [52, 56]
    CZ = 60
    Oa, Ob = 64, 80
    S = [96, 128]
    vXr = [16, 17, 18, 19]; vWr = [20, 21]
    vXr2 = [22, 23, 24, 25]; vWr2 = [26, 27]
    vU = list(range(32, 48))
    F = [32, 48]
    A0, A1, B0, B1 = 96, 112, 128, 144
    vN = 8
    eK, eR, e0, e1, e2, e3, e4 = 160, 161, 162, 163, 164, 165, 166

    a.sec("compute")
    a("L_compute:")
    common()
    a(f"""
    s_sub_u32 s{sW_}, s{sWV}, 4
    s_lshr_b32 s{sJ}, s{sW_}, 2
    s_and_b32 s{sTP}, s{sW_}, 3
    s_waitcnt lgkmcnt(0)
    s_load_dwordx2 s[{SO}:{SO+1}], s[0:1], 56    ; out
    s_mov_b32 s{SO+2}, {XBYTES}
    """)
    if DPF:
        a(f"""
        s_cmp_eq_u32 s{sW_}, 0
        s_cbranch_scc0 L_dpfa
        v_and_b32 v{vT[5]}, 1, v{vL}
        v_bfe_u32 v{vT[4]}, v{vL}, 1, 3
        v_mul_u32_u24 v{vT[4]}, 1152, v{vT[4]}
        v_lshl_add_u32 v{vT[5]}, v{vT[5]}, 7, v{vT[4]}
        s_mul_i32 s{sT}, s2, {8*1152}
        s_mov_b64 exec, 0xffff
        buffer_load_dword v7, v{vT[5]}, s[{SX}:{SX+3}], s{sT} offen offset:256
        s_mov_b64 exec, -1
        L_dpfa:
        s_cmp_eq_u32 s{sW_}, 1
        s_cbranch_scc0 L_dpfb
        v_lshlrev_b32 v{vT[5]}, 7, v{vL}
        s_and_b32 s{sT}, s{sP}, 15
        s_lshl_b32 s{sT}, s{sT}, 3
        s_add_u32 s{sT}, s{sT}, s{sTG}
        s_mul_i32 s{sT}, s{sT}, 3456
        s_add_u32 s{sT}, s{sT}, {128*3456}
        s_mov_b64 exec, 0x7ffffff
        buffer_load_dword v7, v{vT[5]}, s[{SW}:{SW+3}], s{sT} offen
        s_mov_b64 exec, -1
        L_dpfb:
        """)
    a(f"""
    s_cmp_eq_u32 s{sW_}, 3
    s_cbranch_scc0 L_nn0
    s_lshl_b32 s{sT}, s{sP}, 12
    s_add_u32 s{sT}, s{sT}, {FLAG_OFF}
    v_lshlrev_b32 v{vN}, 7, v{vL}
    v_add_u32 v{vN}, s{sT}, v{vN}
    v_and_b32 v{vN+1}, 7, v{vL}
    v_lshlrev_b32 v{vN+1}, 12, v{vN+1}
    s_lshl_b32 s{sT}, s{sP}, 7
    s_add_u32 s{sT}, s{sT}, {OFLAG_OFF}
    v_cmp_gt_u32 vcc, 32, v{vL}
    v_add_u32 v{vN+1}, s{sT}, v{vN+1}
    s_nop 0
    v_cndmask_b32 v{vN}, v{vN+1}, v{vN}, vcc
    buffer_load_dword v{vN+1}, v{vN}, s[{SWS}:{SWS+3}], 0 offen sc1
    L_nn0:
    """)
    a(f"""
    v_and_b32 v{vU[0]}, 31, v{vL}                ; tau
    v_lshrrev_b32 v{vU[1]}, 5, v{vL}             ; h
    s_lshl_b32 s{sT}, s{sTP}, 13
    v_lshlrev_b32 v{vU[2]}, 7, v{vU[0]}
    v_add_u32 v{vU[2]}, s{sT}, v{vU[2]}
    v_bfe_u32 v{vU[3]}, v{vU[0]}, 1, 3
    v_xor_b32 v{vU[3]}, v{vU[3]}, v{vU[1]}
    """)
    for ks in range(4):
        a(f"""
        v_xor_b32 v{vU[4]}, {2*ks}, v{vU[3]}
        v_lshl_add_u32 v{vXr[ks]}, v{vU[4]}, 4, v{vU[2]}
        v_add_u32 v{vXr2[ks]}, {2*G_SLOT}, v{vXr[ks]}
        """)
    a(f"""
    v_bfe_u32 v{vU[2]}, v{vL}, 2, 2              ; r
    v_lshl_add_u32 v{vU[3]}, v{vU[1]}, 3, v{vU[2]}
    v_lshlrev_b32 v{vU[3]}, 8, v{vU[3]}
    v_add_u32 v{vU[3]}, 32768, v{vU[3]}
    v_and_b32 v{vU[4]}, 3, v{vL}                 ; c
    v_bfe_u32 v{vU[5]}, v{vL}, 4, 1              ; sub
    v_lshl_add_u32 v{vU[6]}, v{vU[5]}, 2, v{vU[4]}
    v_lshl_add_u32 v{vU[7]}, v{vU[6]}, 3, v{vU[3]}
    v_xor_b32 v{vWr[0]}, s{sJ}, v{vU[2]}
    v_lshl_add_u32 v{vWr[0]}, v{vWr[0]}, 6, v{vU[7]}
    v_cmp_eq_u32 vcc, 2, v{vU[4]}
    v_lshlrev_b32 v{vU[6]}, 4, v{vU[4]}
    v_mov_b32 v{vU[8]}, 40
    v_cndmask_b32 v{vU[6]}, v{vU[6]}, v{vU[8]}, vcc
    v_cmp_eq_u32 vcc, 1, v{vU[5]}
    v_mov_b32 v{vU[8]}, 56
    s_nop 0
    v_cndmask_b32 v{vU[5]}, v{vU[6]}, v{vU[8]}, vcc
    v_add_u32 v{vU[5]}, v{vU[5]}, v{vU[3]}
    s_cmp_eq_u32 s{sJ}, 1
    s_cselect_b64 vcc, -1, 0
    s_add_u32 s{sT}, s{sJ}, 2
    v_cndmask_b32 v{vU[7]}, v{vU[7]}, v{vU[5]}, vcc
    v_xor_b32 v{vWr[1]}, s{sT}, v{vU[2]}
    v_lshl_add_u32 v{vWr[1]}, v{vWr[1]}, 6, v{vU[7]}
    v_add_u32 v{vWr2[0]}, {2*G_SLOT}, v{vWr[0]}
    v_add_u32 v{vWr2[1]}, {2*G_SLOT}, v{vWr[1]}
    """)
    for r in range(Oa, A0 + 64):
        a(f"v_mov_b32 v{r}, 0")
    a(f"""
    s_lshl_b32 s{sT}, s{sJ}, 10
    s_add_u32 s{sT}, s{sT}, 512
    v_add_u32 v{vK}, s{sT}, v{vL16}
    v_lshlrev_b32 v{vKH}, 2, v{vL}
    s_lshl_b32 s{sT2}, s{sJ}, 8
    v_add_u32 v{vKH}, s{sT2}, v{vKH}
    v_mov_b32 v{vU[2]}, 4
    v_cmp_gt_u32 vcc, 19, v{vU[0]}
    v_mov_b32 v{vU[3]}, 19
    s_nop 0
    v_cndmask_b32 v{vU[2]}, v{vU[2]}, v{vU[0]}, vcc
    v_cmp_eq_u32 vcc, 4, v{vU[0]}
    v_mul_u32_u24 v{vU[4]}, {VH}, v{vU[1]}
    s_mul_i32 s{sT2}, s{sJ}, {2*VG}
    s_add_u32 s{sT2}, s{sT2}, 2560
    v_cndmask_b32 v{vU[2]}, v{vU[2]}, v{vU[3]}, vcc
    v_lshl_add_u32 v{vV}, v{vU[2]}, 4, v{vU[4]}
    v_add_u32 v{vV}, s{sT2}, v{vV}
    v_mov_b32 v{vIDX}, 0xdddddddd
    s_lshl_b32 s{sT}, s{sTG}, 3
    s_lshl_b32 s{sT2}, s{sTP}, 1
    s_add_u32 s{sT}, s{sT}, s{sT2}
    s_mul_i32 s{sA}, s{sT}, {OTILE}
    s_mul_i32 s{sT}, s{sP}, {OPAIR}
    s_add_u32 s{sA}, s{sA}, s{sT}
    s_add_u32 s{sA}, s{sA}, {O_OFF}
    s_lshl_b32 s{sT}, s{sJ}, 10
    s_add_u32 s{sOm}, s{sA}, s{sT}
    s_lshl_b32 s{sT}, s{sJ}, 7
    s_add_u32 s{sOh}, s{sA}, s{sT}
    s_mov_b32 s{sD3}, {(RING[1]-RING[0]) & 0xffffffff:#x}
    s_mov_b32 s{sD3+1}, {(RING[2]-RING[1]) & 0xffffffff:#x}
    s_mov_b32 s{sD3+2}, {(RING[0]-RING[2]) & 0xffffffff:#x}
    s_mov_b32 s{sC2}, {f32bits(CSCALE):#x}
    s_mov_b32 s{sC2+1}, {f32bits(CSCALE):#x}
    v_and_b32 v{vU[2]}, 0x13, v{vU[0]}
    v_and_b32 v{vU[3]}, 4, v{vU[0]}
    v_lshl_or_b32 v{vU[2]}, v{vU[3]}, 1, v{vU[2]}
    v_and_b32 v{vU[3]}, 8, v{vU[0]}
    v_lshrrev_b32 v{vU[3]}, 1, v{vU[3]}
    v_or_b32 v{vU[2]}, v{vU[2]}, v{vU[3]}        ; kappa
    s_lshl_b32 s{sT}, s{sJ}, 10
    s_mul_i32 s{sB}, s{sTP}, {TPAIR}
    s_add_u32 s{sT}, s{sT}, s{sB}
    s_add_u32 s{sT}, s{sT}, 512
    v_lshlrev_b32 v{eK}, 9, v{vU[1]}
    v_lshl_add_u32 v{eK}, v{vU[2]}, 4, v{eK}
    v_add_u32 v{eK}, s{sT}, v{eK}
    s_lshl_b32 s{sT}, s{sTP}, 8
    s_add_u32 s{sT}, s{sT}, {SCR}
    v_lshlrev_b32 v{eR}, 2, v{vU[0]}
    v_add_u32 v{eR}, s{sT}, v{eR}
    s_cmp_eq_u32 s{sJ}, 1
    s_cbranch_scc1 L_a1
    v_subrev_u32 v{vU[3]}, 18, v{vU[0]}
    v_cmp_le_u32 vcc, 18, v{vU[0]}
    v_mov_b32 v{vU[5]}, {2*VG}
    v_mov_b32 v{vU[6]}, 19
    v_cndmask_b32 v{vU[3]}, v{vU[0]}, v{vU[3]}, vcc
    v_cndmask_b32 v{vU[5]}, 0, v{vU[5]}, vcc
    v_cmp_eq_u32 vcc, 4, v{vU[3]}
    s_add_u32 s{sT}, s{sB}, 2560
    s_nop 0
    v_cndmask_b32 v{vU[3]}, v{vU[3]}, v{vU[6]}, vcc
    v_lshl_add_u32 v{e0}, v{vU[3]}, 4, v{vU[5]}
    v_add3_u32 v{e0}, v{e0}, v{vU[4]}, s{sT}
    s_branch L_a2
    L_a1:
    v_lshlrev_b32 v{e0}, 2, v{vU[2]}
    v_add_u32 v{e0}, s{sB}, v{e0}
    v_cmp_eq_u32 vcc, 1, v{vU[1]}
    v_add_u32 v{vU[5]}, 256, v{e0}
    v_add_u32 v{vU[6]}, 1024, v{eR}
    v_cndmask_b32 v{e0}, v{e0}, v{eR}, vcc
    v_cndmask_b32 v{e1}, v{vU[5]}, v{vU[6]}, vcc
    v_mov_b32 v{vU[5]}, 1.0
    v_mov_b32 v{vU[6]}, s{sC2}
    v_cndmask_b32 v{e2}, v{vU[5]}, v{vU[6]}, vcc
    v_lshrrev_b32 v{vU[3]}, 3, v{vU[2]}
    v_mul_u32_u24 v{vU[3]}, {VH}, v{vU[3]}
    v_and_b32 v{vU[5]}, 7, v{vU[2]}
    v_lshl_add_u32 v{e3}, v{vU[5]}, 1, v{vU[3]}
    s_add_u32 s{sT}, s{sB}, {2560 + 2*VG}
    v_add_u32 v{e3}, s{sT}, v{e3}
    L_a2:
    s_lshl_b32 s{sT}, s{sJ}, 10
    v_add_u32 v{e4}, s{sT}, v{eR}
    s_lshl_b32 s{sT}, s{sW_}, 2
    s_add_u32 s{sT}, s{sT}, {SYNC}
    v_mov_b32 v167, s{sT}
    """)
    a("s_waitcnt lgkmcnt(0)")
    a(f"""
    s_cmp_eq_u32 s{sW_}, 3
    s_cbranch_scc0 L_nn1
    s_mov_b32 s44, -1
    s_movk_i32 s45, 0xff
    s_brev_b32 s{sA}, 1
    s_waitcnt vmcnt(0)
    """)
    for b in range(6):
        a(f"""
        v_and_b32 v{vN}, {1 << b}, v{vN+1}
        v_cmp_ne_u32 vcc, 0, v{vN}
        s_nop 0
        s_and_b64 s[46:47], s[44:45], vcc
        s_andn2_b64 s[44:45], s[44:45], vcc
        s_bcnt1_i32_b64 s{sT}, s[46:47]
        s_bcnt1_i32_b64 s{sT2}, s[44:45]
        s_cmp_lt_u32 s{sT}, s{sT2}
        s_cselect_b64 s[44:45], s[46:47], s[44:45]
        s_cselect_b32 s{sT}, {1 << b}, 0
        s_or_b32 s{sA}, s{sA}, s{sT}
        """)
    a(f"""
    v_mov_b32 v{vN}, s{sA}
    v_mov_b32 v{vN+1}, 0
    v_mov_b32 v{vN+2}, s{sA}
    s_lshl_b32 s{sT}, s{sP}, 2
    v_mov_b32 v{vN+3}, s{sT}
    s_mov_b64 exec, 1
    buffer_atomic_cmpswap v[{vN}:{vN+1}], v{vN+3}, s[{SD}:{SD+3}], 0 offen sc0 sc1
    s_mov_b64 exec, -1
    L_nn1:
    """)

    def reads(n, ks, f):
        s = n % 3
        xr = vXr2 if s == 2 else vXr
        wr = vWr2 if s == 2 else vWr
        so = G_SLOT if s == 1 else 0
        b = F[f]
        wo = so + ks * 16 * 256
        return [
            f"ds_read_b128 {vr(b,4)}, v{xr[ks]} offset:{so}",
            f"ds_read_b64_tr_b16 {vr(b+8,2)}, v{wr[0]} offset:{wo}",
            f"ds_read_b64_tr_b16 {vr(b+10,2)}, v{wr[0]} offset:{wo+1024}",
            f"ds_read_b128 {vr(b+4,4)}, v{xr[ks]} offset:{so+4096}",
            f"ds_read_b64_tr_b16 {vr(b+12,2)}, v{wr[1]} offset:{wo}",
            f"ds_read_b64_tr_b16 {vr(b+14,2)}, v{wr[1]} offset:{wo+1024}",
        ]

    def mfmas(f, j):
        b = F[f]
        X0, X1, Wa, Wb = vr(b, 4), vr(b + 4, 4), vr(b + 8, 4), vr(b + 12, 4)
        m = [f"v_mfma_f32_32x32x16_bf16 {vr(A0,16)}, {Wa}, {X0}, {vr(A0,16)}",
             f"v_mfma_f32_32x32x16_bf16 {vr(A1,16)}, {Wa}, {X1}, {vr(A1,16)}"]
        if j == 0:
            m += [f"v_mfma_f32_32x32x16_bf16 {vr(B0,16)}, {X0}, {Wb}, {vr(B0,16)}",
                  f"v_mfma_f32_32x32x16_bf16 {vr(B1,16)}, {X1}, {Wb}, {vr(B1,16)}"]
        else:
            m += [f"v_mfma_f32_32x32x16_bf16 {vr(B0,16)}, {Wb}, {X0}, {vr(B0,16)}",
                  f"v_mfma_f32_32x32x16_bf16 {vr(B1,16)}, {Wb}, {X1}, {vr(B1,16)}"]
        return m

    a("s_barrier")
    stamp(a, 1, True)
    stamp(a, 1, True, mode=4)
    for r in reads(0, 0, 0):
        a(r)
    a(f"""
    s_mov_b32 s{sN}, 0
    s_cmp_eq_u32 s{sJ}, 1
    s_cbranch_scc1 L_g1
    """)
    for j in range(2):
        a(f"L_g{j}:")
        for n in range(3):
            for ks in range(3):
                for r in reads(n, ks + 1, (ks + 1) & 1):
                    a(r)
                a("s_waitcnt lgkmcnt(6)")
                for m in mfmas(ks & 1, j):
                    a(m)
            a("s_waitcnt lgkmcnt(0)")
            if n == 2:
                a(f"""
                s_add_u32 s{sN}, s{sN}, 1
                s_cmp_eq_u32 s{sN}, 3
                s_cbranch_scc1 L_ge{j}
                """)
            a("s_barrier")
            for r in reads(n + 1, 0, 0):
                a(r)
            for m in mfmas(1, j):
                a(m)
        a(f"s_branch L_g{j}")
        a(f"L_ge{j}:")
        for m in mfmas(1, j):
            a(m)
        stamp(a, 2)
        stamp(a, 2, mode=4)
        a(f"""
        v_mov_b32 v{KHb[0]+1}, 0x3f803f80
        v_mov_b32 v{KHb[1]+1}, 0x3f803f80
        v_mov_b32 v{QH[("a",0)]+1}, 0
        v_mov_b32 v{QH[("a",1)]+1}, 0
        v_mov_b32 v{QH[("b",0)]+1}, 0
        v_mov_b32 v{QH[("b",1)]+1}, 0
        s_mov_b32 s{sN}, 0
        s_mov_b32 s{sFB}, 0
        s_nop 0
        """)
        for t, A in enumerate((A0, A1)):
            for i in range(4):
                a(f"v_cvt_pk_bf16_f32 v{A+i}, v{A+2*i}, v{A+2*i+1}")
            a(f"ds_write_b128 v{eK}, {vr(A,4)} offset:{TILE*t}")
        if j == 0:
            for t, B in enumerate((B0, B1)):
                for i in range(8):
                    a(f"v_cvt_pk_bf16_f32 v{B+i}, v{B+2*i}, v{B+2*i+1}")
                for u in range(2):
                    a(f"ds_write_b128 v{e0}, {vr(B+4*u,4)} offset:{t*TILE + u*VG}")
            a(f"""
            s_cmp_eq_u32 s{sW_}, 3
            s_cbranch_scc0 L_nn2
            s_waitcnt vmcnt(0)
            v_cmp_eq_u32 vcc, 0, v{vN}
            v_mov_b32 v{vN+3}, {SCR_N}
            s_nop 0
            v_cndmask_b32 v{vN}, v{vN}, v{vN+2}, vcc
            s_mov_b64 exec, 1
            ds_write_b32 v{vN+3}, v{vN}
            s_mov_b64 exec, -1
            L_nn2:
            s_branch L_ep
            """)
        else:
            a(f"""
            s_mov_b32 exec_lo, 0
            ds_write_b32 v{eR}, v{B0+4} offset:2048
            ds_write_b32 v{eR}, v{B1+4} offset:{2048+128}
            s_mov_b32 exec_lo, -1
            """)
            for t, B in enumerate((B0, B1)):
                for i in range(4):
                    a(f"v_mul_f32 v{B+i}, v{e2}, v{B+i}")
                for i in range(4):
                    a(f"v_cvt_pk_bf16_f32 v{B+8+i}, v{B+2*i}, v{B+2*i+1}")
                a(f"ds_write_b32 v{e0}, v{B+8} offset:{128*t}")
                a(f"ds_write_b32 v{e1}, v{B+9} offset:{128*t}")
            a("s_mov_b32 exec_hi, 0")
            for t, B in enumerate((B0, B1)):
                o = t * TILE + 14 * 16
                a(f"ds_write_b16 v{e3}, v{B+10} offset:{o}")
                a(f"ds_write_b16_d16_hi v{e3}, v{B+10} offset:{o+16}")
                a(f"ds_write_b16 v{e3}, v{B+11} offset:{o+32}")
                a(f"ds_write_b16_d16_hi v{e3}, v{B+11} offset:{o+48}")
            a("s_mov_b32 exec_hi, -1")
    a("L_ep:")
    for t, (A, Q) in enumerate(((A0, Qa), (A1, Qb))):
        for i in range(4):
            a(f"v_pk_mul_f32 {vr(A+8+2*i,2)}, {vr(A+8+2*i,2)}, s[{sC2}:{sC2+1}]")
        for i in range(4):
            a(f"v_cvt_pk_bf16_f32 v{Q+i}, v{A+8+2*i}, v{A+8+2*i+1}")
    a(f"""
    v_mov_b32 v{CZ}, 0
    v_mov_b32 v{CZ+1}, 0x3f803f80
    v_cmp_gt_u32 vcc, 32, v{vL}
    """)
    for r in range(V1b[1], V1b[1] + 4):
        a(f"v_mov_b32 v{r}, 0")
    a("s_waitcnt vmcnt(0) lgkmcnt(0)")
    for r in range(S[1] + 24, S[1] + 32):
        a(f"v_mov_b32 v{r}, 0")
    a("s_barrier")
    stamp(a, 3, True)
    a(f"""
    ds_read_b128 {vr(Kb[0],4)}, v{vK}
    ds_read_b32 v{KHb[0]}, v{vKH}
    ds_read_b32 v{QH[("a",0)]}, v{e4}
    ds_read_b32 v{QH[("b",0)]}, v{e4} offset:128
    ds_read_b32 v{vG[0]}, v{eR} offset:2048
    ds_read_b32 v{vG[1]}, v{eR} offset:{2048+128}
    ds_read_b128 {vr(Kb[1],4)}, v{vK} offset:{TILE}
    ds_read_b128 {vr(V0b[0],4)}, v{vV}
    ds_read_b128 {vr(V1b[0],4)}, v{vV} offset:{VG}
    """)
    X = S[0]

    def qk(dst, kb, q):
        return f"v_mfma_f32_32x32x16_bf16 {vr(dst,16)}, {vr(kb,4)}, {vr(q,4)}, 0"

    def qkh(dst, khb, qh):
        return f"v_mfma_f32_32x32x8_bf16 {vr(dst,16)}, {vr(khb,2)}, {vr(qh,2)}, {vr(dst,16)}"

    def pv(o, vb, p):
        return f"v_smfmac_f32_32x32x32_bf16 {vr(o,16)}, {vr(vb,4)}, {vr(p,8)}, v{vIDX}"

    def maxtree(m, b, first):
        if first:
            a(f"v_max3_f32 v{m}, v{b}, v{b+1}, v{b+2}")
            for i in range(3, 15, 2):
                a(f"v_max3_f32 v{m}, v{m}, v{b+i}, v{b+i+1}")
            a(f"v_max_f32 v{m}, v{m}, v{b+15}")
        else:
            for i in range(0, 16, 2):
                a(f"v_max3_f32 v{m}, v{m}, v{b+i}, v{b+i+1}")

    a("s_waitcnt lgkmcnt(8)")
    a(qk(X, Kb[0], Qa)); a(qk(X + 16, Kb[0], Qb))
    a(f"""
    s_waitcnt lgkmcnt(5)
    v_cndmask_b32 v{QH[("a",1)]}, v{QH[("a",0)]}, 0, vcc
    v_cndmask_b32 v{QH[("a",0)]}, 0, v{QH[("a",0)]}, vcc
    v_cndmask_b32 v{QH[("b",1)]}, v{QH[("b",0)]}, 0, vcc
    v_cndmask_b32 v{QH[("b",0)]}, 0, v{QH[("b",0)]}, vcc
    """)
    a(qkh(X, KHb[0], QH[("a", 0)]))
    a("s_nop 0")
    a(qkh(X + 16, KHb[0], QH[("b", 0)]))
    a(f"""
    s_mov_b32 s{sT}, {f32bits(-math.log2(math.e)):#x}
    s_cmp_ge_u32 s{sP}, 16
    s_cselect_b32 s{sT}, {f32bits(math.log2(math.e)):#x}, s{sT}
    s_waitcnt lgkmcnt(3)
    v_mul_f32 v{vG[0]}, s{sT}, v{vG[0]}
    v_mul_f32 v{vG[1]}, s{sT}, v{vG[1]}
    v_exp_f32 v{vG[0]}, v{vG[0]}
    v_exp_f32 v{vG[1]}, v{vG[1]}
    s_nop 0
    v_add_f32 v{vG[0]}, 1.0, v{vG[0]}
    v_add_f32 v{vG[1]}, 1.0, v{vG[1]}
    """)
    maxtree(vT[0], X, True)
    a(f"""
    v_lshrrev_b32 v{vT[2]}, 16, v{vT[0]}
    v_xor_b32 v{vT[2]}, 0x8000, v{vT[2]}
    v_cndmask_b32 v{QH[("a",0)]+1}, 0, v{vT[2]}, vcc
    v_cndmask_b32 v{QH[("a",1)]+1}, 0, v{vT[2]}, vcc
    v_rcp_f32 v{vG[0]}, v{vG[0]}
    """)
    a(qkh(X, CZ, QH[("a", 0)]))
    maxtree(vT[1], X + 16, True)
    a(f"""
    v_lshrrev_b32 v{vT[3]}, 16, v{vT[1]}
    v_xor_b32 v{vT[3]}, 0x8000, v{vT[3]}
    v_cndmask_b32 v{QH[("b",0)]+1}, 0, v{vT[3]}, vcc
    v_cndmask_b32 v{QH[("b",1)]+1}, 0, v{vT[3]}, vcc
    v_rcp_f32 v{vG[1]}, v{vG[1]}
    """)
    a(qkh(X + 16, CZ, QH[("b", 0)]))

    def E(b, n=4):
        for r in range(b, b + n):
            a(f"v_exp_f32 v{r}, v{r}")

    stamp(a, 4)
    stamp(a, 3, mode=4)
    if PRIO:
        a("s_setprio 1")
    a("s_waitcnt lgkmcnt(0)")
    a(".p2align 6")
    if ALIGN and not WPOS:
        a("s_nop 0")
    a("L_loop:")
    loop0 = len(a.lines) - (1 if WPOS else 2)
    for i in range(8):
        X = S[i & 1]; Y = S[(i + 1) & 1]
        xa, xb, ya, yb = X, X + 16, Y, Y + 16
        tn = i + 1
        par = tn & 1
        khb = KHb[(tn >> 1) & 1]
        if not WPOS:
            a("s_waitcnt lgkmcnt(0)")
        if PRIO and i == (5 if PRIO == 1 else 4 if PRIO == 2 else 3 if PRIO == 4 else 2 if PRIO == 5 else 99):
            a("s_setprio 0")
        if i == 6:
            a("s_cbranch_scc1 L_nb7")
            a("s_barrier")
            a("L_nb7:")
            if PRIO:
                a("s_setprio 1")
            a(f"""
            v_add_u32 v{vK}, s{sDl}, v{vK}
            v_add_u32 v{vKH}, s{sDl}, v{vKH}
            """)
        if i == 7:
            a(f"v_add_u32 v{vV}, s{sDl}, v{vV}")
        a(qk(ya, Kb[tn & 1], Qa))
        a(f"ds_read_b128 {vr(Kb[i&1],4)}, v{vK} offset:{toff((i+2)&7)}")
        if i == 4:
            a("ds_write_b32 v167, v7")
        E(xa)
        a(pv(Ob, V1b[(i + 1) & 1], yb + 8))
        a(f"ds_read_b128 {vr(V0b[(i+1)&1],4)}, v{vV} offset:{toff((i+1)&7)}")
        E(xa + 4)
        a(qkh(ya, khb, QH[("a", par)]))
        a(f"ds_read_b128 {vr(V1b[(i+1)&1],4)}, v{vV} offset:{toff((i+1)&7) + VG}")
        E(xa + 8)
        a(pv(Oa, V0b[i & 1], xa))
        if i % 2 == 0:
            a(f"ds_read_b32 v{KHb[((i>>1)+1)&1]}, v{vKH} offset:{(((i>>1)+1)&3)*TPAIR}")

        E(xa + 12)
        a(qk(yb, Kb[tn & 1], Qb))
        if PRIO == 3 and i == 5:
            a("s_setprio 0")
        if i == 1:
            a(f"s_mov_b32 s{sDl}, s{sD3}")
        if i == 3:
            a(f"s_mov_b32 s{sD3+1}, s{sD3+2}")
        if i == 3:
            a(f"v_mov_b32 v7, s{sN}")
        if i == 7:
            a(f"s_add_u32 s{sN}, s{sN}, 1")
        E(xb)
        a(pv(Oa, V1b[i & 1], xa + 8))
        if i == 1:
            a(f"s_mov_b32 s{sD3}, s{sD3+1}")
        if i == 3:
            a(f"s_mov_b32 s{sD3+2}, s{sDl}")
        if i == 5:
            a(f"s_cmp_eq_u32 s{sN}, 7")
        if i == 7:
            a(f"s_cmp_lt_u32 s{sN}, 8")
        E(xb + 4)
        a(qkh(yb, khb, QH[("b", par)]))
        E(xb + 8)
        a(pv(Ob, V0b[i & 1], xb))
        if WPOS:
            a("s_waitcnt lgkmcnt(0)")
        E(xb + 12)
    if ALIGN:
        a.lines[loop0:] = align8(a.lines[loop0:])
    a(f"""
    s_cbranch_scc1 L_loop
    s_nop 0
    """)
    stamp(a, 5)
    stamp(a, 1, mode=3)
    stamp(a, 4, mode=4)
    a(pv(Ob, V1b[1], S[1] + 24))
    a(f"""
    v_mov_b32 v{vT[5]}, {SYNC + 48}
    ds_read_b32 v160, v{vT[5]}
    s_nop 9
    L_fin:
    """)
    for t, O in enumerate((Oa, Ob)):
        a(f"v_mov_b32 v{vT[2*t]}, v{O+10}")
        a(f"v_mov_b32 v{vT[2*t+1]}, v{O+10}")
    a(f"v_max3_f32 v{vT[4]}, |v{Oa}|, |v{Oa+1}|, |v{Ob}|")
    a(f"v_max_f32 v{vT[4]}, v{vT[4]}, |v{Ob+1}|")
    a(f"v_permlane32_swap_b32 v{vT[0]}, v{vT[1]}")
    a(f"v_permlane32_swap_b32 v{vT[2]}, v{vT[3]}")
    for i in range(2, 10):
        a(f"v_max3_f32 v{vT[4]}, v{vT[4]}, |v{Oa+i}|, |v{Ob+i}|")
    a(f"""
    s_cmp_eq_u32 s{sFB}, 0
    s_cbranch_scc0 L_store
    s_mov_b32 s{sT}, {f32bits(2.0**40):#x}
    s_mov_b32 s{sT2}, {f32bits(2.0**-8):#x}
    s_mov_b32 s{sA}, 0x7f800000
    v_cmp_nge_f32 vcc, s{sT}, v{vT[0]}
    v_cmp_nge_f32 s[44:45], s{sT}, v{vT[2]}
    v_cmp_nle_f32 s[46:47], s{sT2}, v{vT[0]}
    s_or_b64 vcc, vcc, s[44:45]
    v_cmp_nle_f32 s[44:45], s{sT2}, v{vT[2]}
    s_or_b64 vcc, vcc, s[46:47]
    v_cmp_ngt_f32 s[46:47], s{sA}, v{vT[4]}
    s_or_b64 vcc, vcc, s[44:45]
    s_nop 0
    s_or_b64 vcc, vcc, s[46:47]
    s_cbranch_vccnz L_exact
    L_store:
    v_rcp_f32 v{vT[0]}, v{vT[0]}
    v_rcp_f32 v{vT[2]}, v{vT[2]}
    v_lshrrev_b32 v{vT[4]}, 5, v{vL}
    v_mul_u32_u24 v{vT[4]}, {OTILE - 128}, v{vT[4]}
    v_lshl_add_u32 v{vT[4]}, v{vL}, 2, v{vT[4]}
    s_add_u32 s{sB}, s{sOm}, {OTILE}
    v_mul_f32 v{vT[0]}, v{vT[0]}, v{vG[0]}
    v_mul_f32 v{vT[2]}, v{vT[2]}, v{vG[1]}
    v_mov_b32 v{vT[1]}, v{vT[0]}
    v_mov_b32 v{vT[3]}, v{vT[2]}
    """)
    for t, O in enumerate((Oa, Ob)):
        for i in range(5):
            a(f"v_pk_mul_f32 {vr(O+2*i,2)}, {vr(O+2*i,2)}, {vr(vT[2*t],2)}")
        pk = 16 + 4 * t
        for i in range(4):
            a(f"v_cvt_pk_bf16_f32 v{pk+i}, v{O+2*i}, v{O+2*i+1}")
        a(f"v_cvt_pk_bf16_f32 v{24+t}, v{O+8}, v{O+9}")
        for r in list(range(pk, pk + 4)) + [24 + t]:
            a(f"v_min_u32 v{r}, -2, v{r}")
        a(f"buffer_store_dwordx4 {vr(pk,4)}, v{vL16}, s[{SWS}:{SWS+3}], s{sOm if t == 0 else sB} offen sc1")
    a(f"""
    s_nop 0
    v_permlane32_swap_b32 v24, v25
    s_setprio 0
    buffer_store_dword v24, v{vT[4]}, s[{SWS}:{SWS+3}], s{sOh} offen offset:2048 sc1
    v_mov_b32 v7, 8
    ds_write_b32 v167, v7
    s_mov_b32 s{sMode}, 0
    s_waitcnt lgkmcnt(1)
    """)
    unit_decode(160)
    stamp(a, 6)
    stamp(a, 2, mode=3)

    a.sec("exact")
    X = S[0]
    a(f"""
    L_exact:
    s_mov_b32 s{sFB}, 1
    v_mov_b32 v{QH[("a",0)]+1}, 0
    v_mov_b32 v{QH[("b",0)]+1}, 0
    v_and_b32 v{vKH}, 31, v{vL}
    v_mov_b32 v{vT[2]}, 4
    v_cmp_gt_u32 vcc, 19, v{vKH}
    v_mov_b32 v{vT[3]}, 19
    v_lshrrev_b32 v{vT[4]}, 5, v{vL}
    v_cndmask_b32 v{vT[2]}, v{vT[2]}, v{vKH}, vcc
    v_cmp_eq_u32 vcc, 4, v{vKH}
    v_mul_u32_u24 v{vT[4]}, {VH}, v{vT[4]}
    v_lshlrev_b32 v{vKH}, 2, v{vKH}
    v_cndmask_b32 v{vT[2]}, v{vT[2]}, v{vT[3]}, vcc
    v_lshl_add_u32 v{vV}, v{vT[2]}, 4, v{vT[4]}
    v_mov_b32 v{vT[0]}, 0xff800000
    v_mov_b32 v{vT[1]}, 0xff800000
    """)
    for r in range(Oa, Oa + 32):
        a(f"v_mov_b32 v{r}, 0")
    for ps in range(2):
        a(f"""
        s_mov_b32 s{sN}, 0
        L_x{ps}:
        s_lshr_b32 s{sT}, s{sN}, 1
        s_mul_i32 s{sT}, s{sT}, {TPAIR}
        s_add_u32 s{sT}, s{sT}, s{sKVp}
        s_and_b32 s{sT2}, s{sN}, 1
        s_mul_i32 s{sB}, s{sT2}, {TILE}
        s_add_u32 s{sB}, s{sB}, s{sT}                ; + tile
        s_lshl_b32 s{sA}, s{sJ}, 10
        s_add_u32 s{sA}, s{sA}, s{sB}
        buffer_load_dwordx4 {vr(Kb[0],4)}, v{vL16}, s[{SWS}:{SWS+3}], s{sA} offen offset:512 sc1
        s_lshl_b32 s{sA}, s{sT2}, 7
        s_add_u32 s{sA}, s{sA}, s{sT}
        s_lshl_b32 s{sT2}, s{sJ}, 8
        s_add_u32 s{sA}, s{sA}, s{sT2}
        buffer_load_dword v{KHb[0]}, v{vKH}, s[{SWS}:{SWS+3}], s{sA} offen sc1
        """)
        if ps == 1:
            a(f"""
            s_mul_i32 s{sA}, s{sJ}, {2*VG}
            s_add_u32 s{sA}, s{sA}, s{sB}
            s_add_u32 s{sA}, s{sA}, 2560
            buffer_load_dwordx4 {vr(V0b[0],4)}, v{vV}, s[{SWS}:{SWS+3}], s{sA} offen sc1
            buffer_load_dwordx4 {vr(V1b[0],4)}, v{vV}, s[{SWS}:{SWS+3}], s{sA} offen offset:{VG} sc1
            """)
        a("s_waitcnt vmcnt(0)")
        a(qk(X, Kb[0], Qa)); a(qk(X + 16, Kb[0], Qb))
        a(qkh(X, KHb[0], QH[("a", 0)])); a(qkh(X + 16, KHb[0], QH[("b", 0)]))
        a("s_nop 15")
        if ps == 0:
            maxtree(vT[0], X, False)
            maxtree(vT[1], X + 16, False)
        else:
            for i in range(16):
                a(f"v_sub_f32 v{X+i}, v{X+i}, v{vT[0]}")
                a(f"v_sub_f32 v{X+16+i}, v{X+16+i}, v{vT[1]}")
            E(X, 32)
            a("s_nop 1")
            a(pv(Oa, V0b[0], X)); a(pv(Oa, V1b[0], X + 8))
            a(pv(Ob, V0b[0], X + 16)); a(pv(Ob, V1b[0], X + 24))
        a(f"""
        s_add_u32 s{sN}, s{sN}, 1
        s_cmp_lt_u32 s{sN}, 64
        s_cbranch_scc1 L_x{ps}
        """)
        if ps == 0:
            a(f"""
            v_mov_b32 v{vT[2]}, v{vT[0]}
            v_mov_b32 v{vT[3]}, v{vT[1]}
            s_nop 1
            v_permlane32_swap_b32 v{vT[0]}, v{vT[2]}
            v_permlane32_swap_b32 v{vT[1]}, v{vT[3]}
            s_nop 1
            v_max_f32 v{vT[0]}, v{vT[0]}, v{vT[2]}
            v_max_f32 v{vT[1]}, v{vT[1]}, v{vT[3]}
            """)
    a("""
    s_nop 15
    s_branch L_fin
    """)

    vXE, vXO, vWS = 3, 4, 5
    vGt = [6, 7, 8]
    vGA, vF, vFo = 9, 10, 11
    vT = [12, 13, 14, 15, 16, 17, 18, 19]
    vWO = 20
    CP = 32

    def dma_x(n):
        slot = (n % 3) * G_SLOT
        s = ""
        for i in range(8):
            s += f"s_add_u32 m0, s{sM0x}, {slot + 1024*i}\n"
            if i % 2 == 0:
                s += f"s_add_u32 s{sT}, s{sXb}, {(i//2)*16*1152 + n*128}\n"
            else:
                s += "s_nop 0\n"
            s += f"buffer_load_dwordx4 v{vXE if i % 2 == 0 else vXO}, s[{SX}:{SX+3}], s{sT} offen lds\n"
        return s

    def dma_w(n):
        slot = (n % 3) * G_SLOT
        s = f"s_mov_b64 exec, s[{sMASK}:{sMASK+1}]\n"
        for i in range(4):
            s += f"s_add_u32 m0, s{sM0w}, {slot + 32768 + 1024*i}\n"
            s += f"s_add_u32 s{sT}, s{sWb}, {(n*64 + i*4)*3456}\n"
            s += f"buffer_load_dwordx4 v{vWS}, s[{SW}:{SW+3}], s{sT} offen lds\n"
        s += "s_mov_b64 exec, -1\n"
        return s

    def gate_write(n):
        slot = (n % 3) * G_SLOT
        lab = a.label("L_gw")
        reg = vGt[n // 4]
        if slot < 65536:
            w = f"ds_write_b16 v{vGA}, v{reg} offset:{slot}"
        else:
            w = f"v_add_u32 v{vT[7]}, {slot}, v{vGA}\nds_write_b16 v{vT[7]}, v{reg}"
        return f"""
        s_cmp_eq_u32 s{sLI}, {n % 4}
        s_cbranch_scc0 {lab}
        {w}
        {lab}:
        """

    def wo_load(q0, q1):
        assert q1 <= 72 or q0 >= 72
        srd_, base = (SWA, 0) if q1 <= 72 else (SWB, 72)
        lab = a.label("L_wo")
        a(f"""
        s_add_u32 s{sA}, s{sLI}, {q0}
        {lab}:
        s_lshl_b32 m0, s{sA}, 10
        s_sub_u32 s{sT}, s{sA}, {base}
        s_mul_i32 s{sT}, s{sT}, {8*1152}
        buffer_load_dwordx4 v{vWO}, s[{srd_}:{srd_+3}], s{sT} offen lds
        s_add_u32 s{sA}, s{sA}, 4
        s_cmp_lt_u32 s{sA}, {q1}
        s_cbranch_scc1 {lab}
        """)

    a.sec("loader")
    a("s_setprio 3")
    a(dma_x(0))
    common()
    a(f"""
    v_lshlrev_b32 v{vT[0]}, 1, v{vL}
    s_lshl_b32 s{sT}, s{sLI}, 7
    buffer_load_ushort v{vGt[0]}, v{vT[0]}, s[{SG}:{SG+3}], s{sT} offen
    buffer_load_ushort v{vGt[1]}, v{vT[0]}, s[{SG}:{SG+3}], s{sT} offen offset:512
    buffer_load_ushort v{vGt[2]}, v{vT[0]}, s[{SG}:{SG+3}], s{sT} offen offset:1024
    """)
    mask = ~((1 << 15) | (1 << 27) | (1 << 39) | (1 << 51)) & ((1 << 64) - 1)
    a(f"""
    v_bfe_u32 v{vT[2]}, v{vL}, 2, 2
    v_xor_b32 v{vT[2]}, v{vT[2]}, v{vT[1]}       ; blk
    v_and_b32 v{vT[3]}, 3, v{vL}                 ; e
    v_and_b32 v{vT[4]}, 1, v{vT[3]}
    v_lshlrev_b32 v{vT[4]}, 3, v{vT[4]}
    v_mul_u32_u24 v{vT[5]}, 20, v{vT[2]}
    v_add_u32 v{vT[4]}, v{vT[4]}, v{vT[5]}
    v_add_u32 v{vT[5]}, 576, v{vT[4]}
    v_cmp_gt_u32 vcc, 2, v{vT[3]}
    s_mov_b32 s{sMASK}, {mask & 0xffffffff:#x}
    s_mov_b32 s{sMASK+1}, {mask >> 32:#x}
    v_cndmask_b32 v{vT[4]}, v{vT[4]}, v{vT[5]}, vcc
    v_lshlrev_b32 v{vT[5]}, 3, v{vT[3]}
    v_add_u32 v{vT[5]}, 1152, v{vT[5]}
    v_cmp_eq_u32 vcc, 2, v{vT[2]}
    s_and_b32 s{sT}, s{sP}, 15
    s_mul_i32 s{sT}, s{sT}, 72
    v_cndmask_b32 v{vT[4]}, v{vT[4]}, v{vT[5]}, vcc
    v_mov_b32 v{vT[5]}, 592
    v_mov_b32 v{vT[6]}, 16
    v_cmp_eq_u32 vcc, 1, v{vT[3]}
    s_mul_i32 s{sT2}, s{sLI}, {16*3456}
    s_add_u32 s{sWb}, s{sT}, s{sT2}
    v_cndmask_b32 v{vT[5]}, v{vT[5]}, v{vT[6]}, vcc
    v_mov_b32 v{vT[6]}, 1180
    v_cmp_eq_u32 vcc, 2, v{vT[3]}
    s_lshl_b32 s{sM0w}, s{sLI}, 12
    s_nop 0
    v_cndmask_b32 v{vT[5]}, v{vT[5]}, v{vT[6]}, vcc
    v_cmp_eq_u32 vcc, 3, v{vT[2]}
    s_nop 1
    v_cndmask_b32 v{vT[4]}, v{vT[4]}, v{vT[5]}, vcc
    v_mul_u32_u24 v{vT[5]}, 3456, v{vT[1]}
    v_lshl_add_u32 v{vWS}, v{vT[4]}, 1, v{vT[5]}
    """)
    a(dma_w(0))
    a(f"""
    v_and_b32 v{vT[2]}, 3, v{vL}
    v_xor_b32 v{vT[2]}, 3, v{vT[2]}
    v_lshlrev_b32 v{vT[2]}, 6, v{vT[2]}
    v_lshl_add_u32 v{vGA}, v{vL}, 8, v{vT[2]}
    v_add_u32 v{vGA}, {32768 + 48}, v{vGA}
    """)
    a(dma_x(1)); a(dma_w(1))
    a(f"""
    v_lshlrev_b32 v{vT[2]}, 2, v{vL}
    v_add_u32 v{vT[2]}, {SYNC}, v{vT[2]}
    v_mov_b32 v{CP}, 0
    v_mov_b32 v{CP+1}, 0
    v_mov_b32 v{CP+2}, 0
    v_mov_b32 v{CP+3}, 0
    ds_write_b32 v{vT[2]}, v{CP}
    s_min_u32 s{sT}, s{sLI}, 2
    s_mul_i32 s{sT}, s{sT}, {G_SLOT}
    v_add_u32 v{vT[2]}, s{sT}, v{vGA}
    s_cmp_eq_u32 s{sLI}, 3
    s_cbranch_scc1 L_nz
    ds_write_b128 v{vT[2]}, {vr(CP,4)}
    L_nz:
    s_waitcnt vmcnt(16)
    """)
    for n in range(3):
        a(gate_write(n))
    a("s_waitcnt vmcnt(12) lgkmcnt(0)")
    a("s_barrier")
    stamp(a, 1)
    a(dma_x(2)); a(dma_w(2))
    if DPF:
        a(f"""
        s_cmp_eq_u32 s{sLI}, 0
        s_cbranch_scc0 L_lp1
        v_and_b32 v{vT[5]}, 7, v{vL}
        v_min_u32 v{vT[5]}, 4, v{vT[5]}
        v_lshrrev_b32 v{vT[4]}, 3, v{vL}
        v_mul_u32_u24 v{vT[4]}, 1152, v{vT[4]}
        v_lshl_add_u32 v{vT[5]}, v{vT[5]}, 7, v{vT[4]}
        s_mul_i32 s{sT}, s2, {8*1152}
        buffer_load_dword v{vT[6]}, v{vT[5]}, s[{SX}:{SX+3}], s{sT} offen offset:512
        s_branch L_lp2
        L_lp1:
        v_min_u32 v{vT[5]}, 23, v{vL}
        v_lshlrev_b32 v{vT[5]}, 7, v{vT[5]}
        s_and_b32 s{sT}, s{sP}, 15
        s_lshl_b32 s{sT}, s{sT}, 3
        s_add_u32 s{sT}, s{sT}, s{sTG}
        s_mul_i32 s{sT}, s{sT}, 3
        s_add_u32 s{sT}, s{sT}, s{sLI}
        s_mul_i32 s{sT}, s{sT}, {320*3456 // 384}
        s_add_u32 s{sT}, s{sT}, {256*3456 - 320*3456 // 384}
        buffer_load_dword v{vT[6]}, v{vT[5]}, s[{SW}:{SW+3}], s{sT} offen
        L_lp2:
        """)
    for n in range(8):
        a(f"s_waitcnt vmcnt({(13 if DPF and n < 2 else 12) if n + 2 <= 8 else 0}) lgkmcnt(0)")
        if STAMPS == 7:
            a(f"s_memtime s[90:91]\ns_waitcnt lgkmcnt(0)\ns_barrier\ns_memtime s[94:95]\ns_waitcnt lgkmcnt(0)\ns_sub_u32 s90, s94, s90\ns_add_u32 s{74+2*n}, s90, s72")
        elif STAMPS == 8:
            a(f"s_barrier\ns_memtime s[{74+2*n}:{75+2*n}]")
        else:
            a("s_barrier")
        if n + 3 <= 8:
            a(gate_write(n + 3))
            a(dma_x(n + 3)); a(dma_w(n + 3))
        if n == 6:
            lab = a.label("L_cr")
            a(f"""
            s_cmp_ge_u32 s{sLI}, 2
            s_cbranch_scc1 {lab}
            s_cmp_eq_u32 s{sLI}, 0
            s_cselect_b32 s{sT}, 0x3f803f80, 0
            s_cselect_b32 s{sT2}, {14*16}, 0
            s_add_u32 s{sT2}, s{sT2}, {2560 + 4*16}
            v_and_b32 v{vT[0]}, 7, v{vL}
            v_mul_u32_u24 v{vT[0]}, {VH}, v{vT[0]}
            v_lshrrev_b32 v{vT[2]}, 3, v{vL}
            v_mul_u32_u24 v{vT[2]}, {TILE}, v{vT[2]}
            v_lshrrev_b32 v{vT[3]}, 4, v{vL}
            v_lshl_add_u32 v{vT[2]}, v{vT[3]}, 9, v{vT[2]}
            v_add3_u32 v{vT[0]}, v{vT[0]}, v{vT[2]}, s{sT2}
            v_mov_b32 v{CP}, s{sT}
            v_mov_b32 v{CP+1}, s{sT}
            v_mov_b32 v{CP+2}, s{sT}
            v_mov_b32 v{CP+3}, s{sT}
            ds_write_b128 v{vT[0]}, {vr(CP,4)}
            {lab}:
            """)
    a(f"""
    s_load_dwordx2 s[{SWA}:{SWA+1}], s[0:1], 16          ; A_wo
    s_load_dwordx2 s[{SWB}:{SWB+1}], s[0:1], 40          ; B_wo
    s_load_dwordx2 s[{SO}:{SO+1}], s[0:1], 56            ; out
    s_mov_b32 s{SWA+2}, {WO_BYTES}
    s_mov_b32 s{SWB+2}, {WO_BYTES}
    s_mov_b32 s{SO+2}, {XBYTES}
    s_mov_b32 s{sU}, 0
    s_mov_b32 s{sD3}, {(RING[1]-RING[0]) & 0xffffffff:#x}
    s_mov_b32 s{sD3+1}, {(RING[2]-RING[1]) & 0xffffffff:#x}
    s_mov_b32 s{sD3+2}, {(RING[0]-RING[2]) & 0xffffffff:#x}
    s_mul_i32 s{sT}, s{sLI}, {TPAIR}
    v_add_u32 v{vT[0]}, s{sT}, v{vL16}
    s_add_u32 s{sKVp}, s{sKVp}, s{sT}
    s_mov_b32 s{sM0x}, s{sT}
    s_mul_i32 s{sA}, s{sTG}, {CHUNK}
    s_add_u32 s{sA}, s{sA}, s{sKVp}
    s_lshl_b32 s{sT}, s{sLI}, 10
    s_lshl_b32 s{sB}, s{sP}, 12
    s_add_u32 s{sB}, s{sB}, s{sT}
    s_add_u32 s{sWb}, s{sB}, {FLAG_OFF}
    v_and_b32 v{vFo}, 7, v{vL}
    v_lshlrev_b32 v{vFo}, 7, v{vFo}
    v_mov_b32 v{vT[1]}, {SCR_N}
    s_lshl_b32 s{sT}, s{sTG}, 7
    v_mov_b32 v{vT[2]}, s{sT}
    v_lshrrev_b32 v{vT[3]}, 3, v{vL}
    v_mul_u32_u24 v{vT[3]}, 1152, v{vT[3]}
    v_bfe_u32 v{vT[4]}, v{vL}, 4, 1
    v_lshlrev_b32 v{vT[4]}, 2, v{vT[4]}
    v_and_b32 v{vT[5]}, 7, v{vL}
    v_xor_b32 v{vT[5]}, v{vT[5]}, v{vT[4]}
    v_lshl_add_u32 v{vWO}, v{vT[5]}, 4, v{vT[3]}
    s_waitcnt lgkmcnt(0)
    s_barrier
    """)
    stamp(a, 3, True)
    for i in range(10):
        a(f"ds_read_b128 {vr(CP+4*i,4)}, v{vT[0]} offset:{1024*i}")
    a(f"ds_read_b32 v{vF}, v{vT[1]}")
    for i in range(10):
        if i == 9:
            a("s_mov_b32 exec_hi, 0")
        if i in (4, 8):
            a(f"s_add_u32 s{sA}, s{sA}, 4096")
        a(f"s_waitcnt lgkmcnt({10-i})")
        a(f"buffer_store_dwordx4 {vr(CP+4*i,4)}, v{vL16}, s[{SWS}:{SWS+3}], s{sA} offen offset:{1024*(i&3)} sc1")
    a(f"""
    s_waitcnt vmcnt(0) lgkmcnt(0)
    v_readfirstlane_b32 s{sNON}, v{vF}
    s_mov_b64 exec, 1
    buffer_store_dword v{vF}, v{vT[2]}, s[{SWS}:{SWS+3}], s{sWb} offen sc1
    s_mov_b64 exec, -1
    s_mov_b32 s{sRDY}, 0
    s_mov_b32 s{sN}, 0
    s_lshl_b32 s{sXb}, 1, s{sTG}
    L_ll:
    s_add_u32 s{sM0x}, s{sM0x}, s{sD3}
    s_mov_b32 s{sT}, s{sD3}
    s_mov_b32 s{sD3}, s{sD3+1}
    s_mov_b32 s{sD3+1}, s{sD3+2}
    s_mov_b32 s{sD3+2}, s{sT}
    L_poll:
    s_andn2_b32 s{sT}, s{sRDY}, s{sXb}
    s_cbranch_scc1 L_rdy
    buffer_load_dword v{vF}, v{vFo}, s[{SWS}:{SWS+3}], s{sWb} offen sc1
    s_waitcnt vmcnt(0)
    v_cmp_eq_u32 vcc, s{sNON}, v{vF}
    s_sub_u32 s{sSPIN}, s{sSPIN}, 1
    s_nop 0
    s_cselect_b32 s{sRDY}, -1, vcc_lo
    s_and_b32 s{sRDY}, s{sRDY}, 0xff
    s_branch L_poll
    L_rdy:
    s_ff1_i32_b32 s{sC}, s{sT}
    s_bitset1_b32 s{sXb}, s{sC}
    s_mul_i32 s{sA}, s{sC}, {CHUNK}
    s_add_u32 s{sA}, s{sA}, s{sKVp}
    """)
    for i in range(10):
        if i % 4 == 0:
            a(f"s_add_u32 m0, s{sM0x}, {1024*i}")
            a(f"s_add_u32 s{sT}, s{sA}, {1024*i}")
        if i == 9:
            a("s_mov_b32 exec_hi, 0")
        if True:
            a(f"buffer_load_dwordx4 v{vL16}, s[{SWS}:{SWS+3}], s{sT} offen offset:{1024*(i&3)} sc1 lds")
    a(f"""
    s_mov_b32 exec_hi, -1
    L_d9:
    s_cmp_eq_u32 s{sN}, 1
    s_cbranch_scc0 L_ncl
    s_lshl_b32 s{sT}, s{sTG}, 3
    s_lshl_b32 s{sT2}, s{sLI}, 1
    s_add_u32 s{sT}, s{sT}, s{sT2}
    s_mul_i32 s{sA}, s{sT}, {OTILE}
    s_mul_i32 s{sT}, s{sP}, {OPAIR}
    s_add_u32 s{sA}, s{sA}, s{sT}
    s_add_u32 s{sA}, s{sA}, {O_OFF}
    s_add_u32 s{sB}, s{sA}, {OTILE}
    v_mov_b32 v{CP}, -1
    v_mov_b32 v{CP+1}, -1
    v_mov_b32 v{CP+2}, -1
    v_mov_b32 v{CP+3}, -1
    buffer_store_dwordx4 {vr(CP,4)}, v{vL16}, s[{SWS}:{SWS+3}], s{sA} offen sc1
    buffer_store_dwordx4 {vr(CP,4)}, v{vL16}, s[{SWS}:{SWS+3}], s{sA} offen offset:1024 sc1
    buffer_store_dwordx4 {vr(CP,4)}, v{vL16}, s[{SWS}:{SWS+3}], s{sB} offen sc1
    buffer_store_dwordx4 {vr(CP,4)}, v{vL16}, s[{SWS}:{SWS+3}], s{sB} offen offset:1024 sc1
    s_mov_b64 exec, 0xffff
    buffer_store_dwordx4 {vr(CP,4)}, v{vL16}, s[{SWS}:{SWS+3}], s{sA} offen offset:2048 sc1
    buffer_store_dwordx4 {vr(CP,4)}, v{vL16}, s[{SWS}:{SWS+3}], s{sB} offen offset:2048 sc1
    s_mov_b64 exec, -1
    L_ncl:
    s_cmp_eq_u32 s{sLI}, 0
    s_cbranch_scc0 L_nfl
    s_cmp_eq_u32 s{sN}, 2
    s_cbranch_scc0 L_n2
    s_lshl_b32 s{sT}, s{sTG}, 12
    s_lshl_b32 s{sT2}, s{sP}, 7
    s_add_u32 s{sT}, s{sT}, s{sT2}
    s_add_u32 s{sT}, s{sT}, {OFLAG_OFF}
    v_mov_b32 v{vT[3]}, 0
    v_mov_b32 v{vF}, s{sNON}
    s_mov_b64 exec, 1
    buffer_store_dword v{vF}, v{vT[3]}, s[{SWS}:{SWS+3}], s{sT} offen sc1
    s_mov_b64 exec, -1
    L_n2:
    s_cmp_eq_u32 s{sN}, 4
    s_cbranch_scc0 L_nfl
    s_and_b32 s{sA}, s2, 7
    v_and_b32 v{vT[5]}, 7, v{vL}
    v_lshlrev_b32 v{vT[4]}, 2, v{vT[5]}
    L_cl:
    s_lshl_b32 s{sT}, s{sA}, 2
    v_mov_b32 v{vT[3]}, s{sT}
    v_mov_b32 v{vF}, 1
    s_mov_b64 exec, 1
    buffer_atomic_add v{vF}, v{vT[3]}, s[{SD}:{SD+3}], 0 offen offset:128 sc0 sc1
    s_mov_b64 exec, -1
    s_waitcnt vmcnt(0)
    v_readfirstlane_b32 s{sB}, v{vF}
    s_nop 3
    s_cmp_lt_u32 s{sB}, 27
    s_cbranch_scc1 L_cl2
    """)
    if STEAL:
        a(f"""
        buffer_load_dword v{vF}, v{vT[4]}, s[{SD}:{SD+3}], 0 offen offset:128 sc1
        s_waitcnt vmcnt(0)
        v_lshl_or_b32 v{vF}, v{vF}, 3, v{vT[5]}
        s_nop 0
        v_readlane_b32 s{sA}, v{vF}, 0
        """)
        for q in range(1, 8):
            a(f"v_readlane_b32 s{sT}, v{vF}, {q}\ns_nop 3\ns_min_u32 s{sA}, s{sA}, s{sT}")
        a(f"""
        s_lshr_b32 s{sT}, s{sA}, 3
        s_and_b32 s{sA}, s{sA}, 7
        s_sub_u32 s{sSPIN}, s{sSPIN}, 1
        s_cselect_b32 s{sT}, 27, s{sT}
        s_cmp_lt_u32 s{sT}, 27
        s_cbranch_scc1 L_cl
        s_mov_b32 s{sSPIN}, {SPIN_LIMIT}
        """)
    a(f"""
    s_movk_i32 s{sB}, 0xff
    L_cl2:
    s_lshl_b32 s{sA}, s{sA}, 8
    s_or_b32 s{sA}, s{sA}, s{sB}
    v_mov_b32 v{vF}, s{sA}
    v_mov_b32 v{vT[3]}, {SYNC + 48}
    ds_write_b32 v{vT[3]}, v{vF}
    s_waitcnt lgkmcnt(0)
    L_nfl:
    s_cmp_eq_u32 s{sN}, 5
    s_cbranch_scc0 L_nw3
    v_mov_b32 v{vT[3]}, {SYNC + 48}
    ds_read_b32 v{vF}, v{vT[3]}
    s_waitcnt lgkmcnt(0)
    """)
    unit_decode(vF)
    a(f"""
    s_cmp_ge_u32 s{sU}, 27
    s_cbranch_scc1 L_on1
    s_lshl_b32 s{sT}, s{sCG}, 7
    v_add_u32 v{vWO}, s{sT}, v{vWO}
    """)
    wo_load(38, 42)
    wo_load(80, 121)
    a(f"""
    L_nw3:
    s_cmp_eq_u32 s{sN}, 6
    s_cbranch_scc0 L_on1
    s_cmp_ge_u32 s{sU}, 27
    s_cbranch_scc1 L_on1
    v_mul_u32_u24 v{vT[3]}, 1152, v{vL}
    s_lshl_b32 s{sT}, s{sCG}, 7
    s_mul_i32 s{sT2}, s{sLI}, {48*1152}
    s_add_u32 s{sT2}, s{sT2}, s{sT}
    s_add_u32 s{sT2}, s{sT2}, {392*1152}
    buffer_load_dword v{vT[4]}, v{vT[3]}, s[{SWB}:{SWB+3}], s{sT2} offen
    s_add_u32 s{sT}, s{sT}, {256*1152}
    buffer_load_dword v{vT[4]}, v{vT[3]}, s[{SWA}:{SWA+3}], s{sT} offen
    v_and_b32 v{vT[0]}, 31, v{vL}
    v_lshlrev_b32 v{vT[3]}, 7, v{vT[0]}
    v_lshlrev_b32 v{vT[0]}, 2, v{vT[0]}
    s_lshl_b32 s{sB}, s{sTG2}, 12
    s_add_u32 s{sB}, s{sB}, {OFLAG_OFF}
    L_on0:
    buffer_load_dword v{vF}, v{vT[0]}, s[{SD}:{SD+3}], 0 offen sc1
    buffer_load_dword v{vT[4]}, v{vT[3]}, s[{SWS}:{SWS+3}], s{sB} offen sc1
    s_waitcnt vmcnt(0)
    v_cmp_le_i32 vcc, 0, v{vF}
    v_cmp_ne_u32 s[44:45], v{vF}, v{vT[4]}
    s_sub_u32 s{sSPIN}, s{sSPIN}, 1
    s_cbranch_scc1 L_on1
    s_or_b64 vcc, vcc, s[44:45]
    s_cbranch_vccz L_on1
    s_sleep 8
    s_branch L_on0
    L_on1:
    s_waitcnt vmcnt(0)
    """)
    if STAMPS == 1:
        a(f"s_cmp_eq_u32 s{sN}, 0\ns_cbranch_scc0 L_st4")
        stamp(a, 4)
        a("L_st4:")
    if STAMPS == 6:
        a("s_barrier\ns_memtime s[88:89]\ns_waitcnt lgkmcnt(0)")
        for q in range(7):
            a(f"s_cmp_eq_u32 s{sN}, {q}\ns_cselect_b32 s{74+2*q}, s88, s{74+2*q}")
    elif STAMPS == 5:
        a("s_memtime s[88:89]\ns_waitcnt lgkmcnt(0)\ns_barrier\ns_memtime s[90:91]\ns_waitcnt lgkmcnt(0)\ns_sub_u32 s88, s90, s88\ns_add_u32 s88, s88, s72")
        for q in range(7):
            a(f"s_cmp_eq_u32 s{sN}, {q}\ns_cselect_b32 s{74+2*q}, s88, s{74+2*q}")
    else:
        a("s_barrier")
    a(f"""
    s_add_u32 s{sN}, s{sN}, 1
    s_cmp_lt_u32 s{sN}, 7
    s_cbranch_scc1 L_ll
    s_mov_b32 s{sSPIN}, {SPIN_LIMIT}
    s_cmp_ge_u32 s{sU}, 27
    s_cbranch_scc1 L_end
    """)
    wo_load(0, 35)
    wo_load(42, 72)
    wo_load(72, 80)
    a(f"""
    s_mov_b32 s{sMode}, 1
    s_branch L_tail
    """)

    def loader_b7(tag):
        a(f"""
        s_cmp_eq_u32 s{sMode}, 1
        s_cbranch_scc0 L_nb{tag}
        v_and_b32 v12, 7, v{vL}
        v_lshlrev_b32 v12, 2, v12
        v_add_u32 v12, {SYNC}, v12
        L_pg{tag}:
        s_sleep 2
        ds_read_b32 v13, v12
        s_waitcnt lgkmcnt(0)
        v_cmp_gt_u32 vcc, 7, v13
        s_cbranch_vccnz L_pg{tag}
        s_cmp_eq_u32 s{sLI}, 3
        s_cbranch_scc1 L_p3{tag}
        """)
        wo_load(35, 38)
        a(f"L_p3{tag}:")
        wo_load(121, 144)
        a(f"""
        s_lshl_b32 s{sT}, s{sLI}, 2
        s_add_u32 s{sT}, s{sT}, {SYNC + 32}
        v_mov_b32 v12, s{sT}
        v_mov_b32 v13, 1
        s_waitcnt vmcnt(0)
        ds_write_b32 v12, v13
        s_setprio 0
        L_nb{tag}:
        """)
    a.sec("tail")

    vOH = 5
    vWm = [3, 4]; vWh = [8, 9]
    vT = [10, 11, 12, 13, 14, 6]
    vPw, vPr, vOut, vPr2, vDw, vDr = 163, 164, 165, 166, 167, 7
    WF = [32, 40]
    OF = 56
    ACC = [128, 144]

    def omain(i, j):
        return OF + 8 * i + 4 * j
    OHI = OF + 64

    a(f"""
    L_tail:
    s_cmp_ge_u32 s{sU}, 27
    s_cbranch_scc1 L_tnone
    s_cmp_ge_u32 s{sT0}, 8
    s_cbranch_scc1 L_tnone
    s_mov_b32 s{sCur}, -1
    v_lshlrev_b32 v{vOH}, 2, v{vL}
    s_mov_b32 s{sI}, 0
    s_mov_b32 s{sWS}, 0
    s_cmp_eq_u32 s{sMode}, 1
    s_cbranch_scc1 L_issue
    L_round:
    """)
    stamp(a, 5, mode=3)
    a(f"""
    s_cmp_eq_u32 s{sWS}, 1
    s_cbranch_scc1 L_issue
    v_and_b32 v{vT[2]}, 7, v{vL}
    v_lshlrev_b32 v{vT[2]}, 2, v{vT[2]}
    v_add_u32 v{vT[2]}, {SYNC}, v{vT[2]}
    s_mov_b32 s{sWS}, 1
    L_ws1:
    ds_read_b32 v{vT[3]}, v{vT[2]}
    s_waitcnt lgkmcnt(0)
    v_cmp_gt_u32 vcc, 8, v{vT[3]}
    s_cbranch_vccz L_issue
    s_sleep 1
    s_branch L_ws1
    L_issue:
    s_andn2_b32 s{sBt}, 0xff, s{sI}
    s_bcnt1_i32_b32 s{sPd}, s{sBt}
    """)
    for i in range(8):
        a(f"""
        s_bitcmp1_b32 s{sBt}, {i}
        s_cbranch_scc0 L_ni{i}
        s_add_u32 s{sT}, s{sFl}, {i*OPAIR}
        buffer_load_dwordx4 {vr(omain(i,0),4)}, v{vL16}, s[{SWS}:{SWS+3}], s{sT} offen sc1
        buffer_load_dwordx4 {vr(omain(i,1),4)}, v{vL16}, s[{SWS}:{SWS+3}], s{sT} offen offset:1024 sc1
        buffer_load_dword v{OHI+i}, v{vOH}, s[{SWS}:{SWS+3}], s{sT} offen offset:2048 sc1
        L_ni{i}:
        """)
    a(f"""
    s_cmp_eq_u32 s{sMode}, 2
    s_cbranch_scc1 L_pass
    v_and_b32 v{vT[0]}, 31, v{vL}                ; tau
    v_lshrrev_b32 v{vT[1]}, 5, v{vL}             ; h
    v_bfe_u32 v{vT[2]}, v{vL}, 2, 2              ; r
    v_and_b32 v{vT[3]}, 3, v{vL}                 ; c
    v_bfe_u32 v{vT[4]}, v{vL}, 4, 1              ; sub
    v_lshlrev_b32 v{vT[3]}, 3, v{vT[3]}
    v_lshl_add_u32 v{vT[3]}, v{vT[4]}, 5, v{vT[3]}
    s_mul_i32 s{sT}, s{sKQ}, {288*128}
    v_add_u32 v{vT[3]}, s{sT}, v{vT[3]}
    v_lshrrev_b32 v{vT[4]}, 1, v{vT[2]}          ; r>>1
    v_lshl_add_u32 v{vT[5]}, v{vT[1]}, 2, v{vT[2]}
    v_lshl_add_u32 v{vT[5]}, v{vT[5]}, 7, v{vT[3]}
    v_lshl_add_u32 v{vWm[0]}, v{vT[4]}, 6, v{vT[5]}
    v_xor_b32 v{vWm[1]}, 64, v{vWm[0]}
    v_lshl_add_u32 v{vT[5]}, v{vT[4]}, 1, v{vT[1]}
    v_mul_u32_u24 v{vT[5]}, 18, v{vT[5]}
    v_and_b32 v{vT[2]}, 1, v{vT[2]}
    v_add3_u32 v{vT[5]}, v{vT[5]}, v{vT[2]}, 16
    v_lshl_add_u32 v{vT[5]}, v{vT[5]}, 7, v{vT[3]}
    v_lshl_add_u32 v{vWh[0]}, v{vT[1]}, 6, v{vT[5]}
    v_xor_b32 v{vWh[1]}, 64, v{vWh[0]}
    s_lshl_b32 s{sT}, s{sTT}, 13
    s_mul_i32 s{sT2}, s{sKQ}, {288*128}
    s_add_u32 s{sA}, s{sT}, s{sT2}
    v_add_u32 v{vPw}, s{sA}, v{vL16}
    s_lshl_b32 s{sT2}, s{sKQ}, 11
    s_add_u32 s{sA}, s{sT}, s{sT2}
    v_add_u32 v{vPr}, s{sA}, v{vL16}
    v_add_u32 v{vPr2}, {2*288*128}, v{vPr}
    s_lshl_b32 s{sT}, s{sWV}, 2
    s_add_u32 s{sT}, s{sT}, {SYNC + 64}
    v_mov_b32 v{vDw}, s{sT}
    s_sub_u32 s{sT}, s{sT0}, s{sTT}
    s_cmp_eq_u32 s{sT}, 6
    s_cselect_b32 s{sT}, 1, 2
    v_min_u32 v{vDr}, s{sT}, v{vL}
    s_mul_i32 s{sT}, s{sKQ}, 12
    s_add_u32 s{sT}, s{sT}, {SYNC + 64}
    v_lshlrev_b32 v{vDr}, 2, v{vDr}
    v_add_u32 v{vDr}, s{sT}, v{vDr}
    s_lshl_b32 s{sT}, s{sTG2}, 8
    s_lshl_b32 s{sT2}, s{sT0}, 5
    s_add_u32 s{sT}, s{sT}, s{sT2}
    s_mul_i32 s{sOm}, s{sT}, 1152
    s_lshl_b32 s{sT}, s{sCG}, 7
    s_add_u32 s{sOm}, s{sOm}, s{sT}
    s_lshl_b32 s{sT}, s{sKQ}, 5
    s_add_u32 s{sOm}, s{sOm}, s{sT}
    v_mul_u32_u24 v{vOut}, 1152, v{vT[0]}
    v_lshl_add_u32 v{vOut}, v{vT[1]}, 4, v{vOut}
    """)
    for r in range(ACC[0], ACC[0] + 32):
        a(f"v_mov_b32 v{r}, 0")
    loader_b7(0)
    a(f"""
    v_and_b32 v{vT[2]}, 3, v{vL}
    v_lshlrev_b32 v{vT[2]}, 2, v{vT[2]}
    v_add_u32 v{vT[2]}, {SYNC + 32}, v{vT[2]}
    L_wr:
    ds_read_b32 v{vT[3]}, v{vT[2]}
    s_waitcnt lgkmcnt(0)
    v_cmp_eq_u32 vcc, 0, v{vT[3]}
    s_cbranch_vccnz L_wr
    """)
    stamp(a, 3, mode=3)
    a(f"""
    s_mov_b32 s{sMode}, 2
    """)
    stamp(a, 7)
    stamp(a, 4, mode=3)
    a(f"""
    L_pass:
    """)

    def wreads(m, f):
        b = WF[f]
        out = []
        for ct in range(2):
            if m < 16:
                ad = vWm[ct ^ (m & 1)]
                o0 = m * 18 * 128; o1 = o0 + 8 * 128
            else:
                ad = vWh[ct]
                o0 = (m - 16) * 8 * 18 * 128; o1 = o0 + 4 * 18 * 128
            out.append(f"ds_read_b64_tr_b16 {vr(b+4*ct,2)}, v{ad} offset:{o0}")
            out.append(f"ds_read_b64_tr_b16 {vr(b+4*ct+2,2)}, v{ad} offset:{o1}")
        return out

    def two_steps(m0, o0, o1, check=None):
        for r in wreads(m0, 0) + wreads(m0 + 1, 1):
            a(r)
        if check is not None:
            i = check
            a(f"""
            s_sub_u32 s{sPd}, s{sPd}, 1
            s_cmp_lg_u32 s{sPd}, {7-i}
            s_cbranch_scc1 L_sw{i}
            L_bk{i}:
            s_waitcnt vmcnt({3*(7-i)})
            v_max3_u32 v{vT[2]}, v{o0}, v{o0+1}, v{o0+2}
            v_max3_u32 v{vT[3]}, v{o0+3}, v{o1}, v{o1+1}
            v_max3_u32 v{vT[2]}, v{vT[2]}, v{o1+2}, v{o1+3}
            v_max3_u32 v{vT[2]}, v{vT[2]}, v{vT[3]}, v{OHI+i}
            v_cmp_eq_u32 vcc, s{sCur}, v{vT[2]}
            s_cbranch_vccnz L_nc{i}
            s_bitset1_b32 s{sI}, {i}
            """)
        for f, o in ((0, o0), (1, o1)):
            for ct in range(2):
                a(f"s_waitcnt lgkmcnt({6 - 4*f - 2*ct})")
                a(f"v_mfma_f32_32x32x16_bf16 {vr(ACC[ct],16)}, {vr(WF[f]+4*ct,4)}, {vr(o,4)}, {vr(ACC[ct],16)}")

    for i in range(8):
        a(f"s_bitcmp1_b32 s{sBt}, {i}")
        a(f"s_cbranch_scc0 L_nc{i}")
        two_steps(2 * i, omain(i, 0), omain(i, 1), i)
        a(f"L_nc{i}:")
    a(f"""
    s_cmp_eq_u32 s{sI}, 0xff
    s_cbranch_scc1 L_hi
    s_sub_u32 s{sSPIN}, s{sSPIN}, 1
    s_cbranch_scc0 L_round
    s_branch L_hi
    """)
    for i in range(7):
        a(f"""
        L_sw{i}:
        s_cmp_ge_u32 s{sPd}, 2
        s_cbranch_scc1 L_sx{i}
        s_waitcnt vmcnt(0)
        L_sx{i}:
        s_waitcnt vmcnt(6)
        s_branch L_bk{i}
        """)
    a("L_sw7:")
    a("s_branch L_bk7")
    a("L_hi:")
    two_steps(16, OHI, OHI + 4)
    stamp(a, 8)
    stamp(a, 7, mode=3)
    a(f"""
    v_mov_b32 v{vT[2]}, 1
    ds_write_b32 v{vDw}, v{vT[2]}
    L_qs:
    ds_read_b32 v{vT[3]}, v{vDr}
    s_waitcnt lgkmcnt(0)
    v_cmp_eq_u32 vcc, 0, v{vT[3]}
    s_cbranch_vccnz L_qs
    s_nop 4
    """)
    for i in range(8):
        a(f"ds_write_b128 v{vPw}, {vr(ACC[0]+4*i,4)} offset:{1024*i}")
    a("s_waitcnt lgkmcnt(0)")
    a("s_barrier                                    ; BT4")
    stamp(a, 8, True, mode=3)
    for src in range(4):
        for g in range(2):
            a(f"ds_read_b128 {vr(OF+8*src+4*g,4)}, v{vPr if src < 2 else vPr2} offset:{(src&1)*288*128 + g*1024}")
    a("s_waitcnt lgkmcnt(4)")
    for q in range(8):
        a(f"v_add_f32 v{OF+q}, v{OF+q}, v{OF+8+q}")
    a("s_waitcnt lgkmcnt(0)")
    for q in range(8):
        a(f"v_add_f32 v{OF+16+q}, v{OF+16+q}, v{OF+24+q}")
    for q in range(8):
        a(f"v_add_f32 v{OF+q}, v{OF+q}, v{OF+16+q}")
    for i in range(4):
        a(f"v_cvt_pk_bf16_f32 v{WF[0]+i}, v{OF+2*i}, v{OF+2*i+1}")
    a(f"""
    s_nop 1
    v_permlane32_swap_b32 v{WF[0]}, v{WF[0]+2}
    v_permlane32_swap_b32 v{WF[0]+1}, v{WF[0]+3}
    buffer_store_dwordx4 {vr(WF[0],4)}, v{vOut}, s[{SO}:{SO+3}], s{sOm} offen
    """)
    stamp(a, 9, mode=3)
    a(f"""
    s_branch L_end
    L_tnone:
    """)
    loader_b7(1)
    a("""
    s_branch L_end
    """)
    a.sec("end")
    a("L_end:")
    if STAMPS:
        a(f"""
        s_waitcnt vmcnt(0) lgkmcnt(0)
        s_memtime s[92:93]
        s_memrealtime s[98:99]
        s_waitcnt lgkmcnt(0)
        s_mov_b64 exec, 1
        s_lshl_b32 s{sT}, s2, 4
        s_add_u32 s{sT}, s{sT}, s{sWV}
        s_lshl_b32 s{sT}, s{sT}, 6
        s_add_u32 s{sT}, s{sT}, {STAMP_OFF}
        v_mov_b32 v0, 0
        """)
        for n in range(14):
            a(f"v_mov_b32 v1, s{72+2*n}")
            a(f"buffer_store_dword v1, v0, s[{SWS}:{SWS+3}], s{sT} offen offset:{4*n}")
            a("s_nop 0")
    a("""
    L_done:
    s_endpgm
    """)
    return name, NV


def main():
    out = sys.argv[1] if len(sys.argv) > 1 else f"cdna_kernels/{NAME}.s"
    a = Asm()
    k, nv = gen(a)
    hdr = open(f"cdna_kernels/{NAME}.s.ref").read().split("\n")
    hdr = [l for l in hdr if l.startswith(";") and "@launch" not in l]
    txt = "\n".join(hdr) + "\n"
    txt += f"; @launch grid=(256,1,1) block=(768,1,1) lds={LDS_BYTES}\n"
    txt += '.amdgcn_target "amdgcn-amd-amdhsa--gfx950"\n.text\n'
    txt += a.text()
    txt += f""".section .rodata,"a"
.p2align 6
.amdhsa_kernel {k}
  .amdhsa_next_free_vgpr {nv}
  .amdhsa_next_free_sgpr {102 if STAMPS else 72}
  .amdhsa_accum_offset {(nv + 3) // 4 * 4}
  .amdhsa_group_segment_fixed_size 0
  .amdhsa_kernarg_size 80
  .amdhsa_user_sgpr_count 2
  .amdhsa_user_sgpr_kernarg_segment_ptr 1
  .amdhsa_system_sgpr_workgroup_id_x 1
.end_amdhsa_kernel
"""
    open(out, "w").write(txt)


if __name__ == "__main__":
    main()
```

```python
import math, os, struct, sys

NAME = "gated_mix__mha_block__mha_block__prompt"

VH = 320
VG = 2 * VH
TILE = 2048 + 4 * VG
TPAIR = 512 + 2 * TILE
CHUNK = 4 * TPAIR


def toff(t):
    return (t >> 1) * TPAIR + (t & 1) * TILE
KV_OFF = 0
FLAG_OFF = 0x0A00000
OFLAG_OFF = 0x0A20000
O_OFF = 0x0B00000
OPAIR = 2304
OTILE = 32 * OPAIR
WS_USED = 0x1000000
XBYTES = 2048 * 576 * 2
WQKV_BYTES = 576 * 1728 * 2
WO_BYTES = 576 * 576 * 2
CSCALE = (18 ** -0.5) * math.log2(math.e)

STAMPS = int(os.environ.get("STAMPS", "0"))
STAMP_OFF = 0x1000000
if STAMPS:
    WS_USED = 0x1100000
PRIO = int(os.environ.get("PRIO", "2"))
ALIGN = int(os.environ.get("ALIGN", "1"))
WPOS = int(os.environ.get("WPOS", "1"))
STEAL = int(os.environ.get("STEAL", "1"))
TLBW = int(os.environ.get("TLBW", "1"))
CPF = int(os.environ.get("CPF", "1"))
DPF = int(os.environ.get("DPF", "4"))

G_SLOT = 49152
LDS_BYTES = 163840
SCR = CHUNK
SCR_N = SCR + 3072
SYNC = LDS_BYTES - 1024
RING = [0, SYNC - CHUNK, CHUNK + 4096]
SPIN_LIMIT = 1 << 19


def f32bits(x):
    return struct.unpack("<I", struct.pack("<f", x))[0]


class Asm:
    def __init__(self):
        self.secs = {"entry": []}
        self.lines = self.secs["entry"]
        self.nlab = 0

    def sec(self, name):
        self.lines = self.secs.setdefault(name, [])

    def __call__(self, s):
        for ln in s.strip("\n").split("\n"):
            ln = ln.strip()
            if not ln:
                continue
            if ln.endswith(":") or ln.startswith("."):
                self.lines.append(ln)
            else:
                self.lines.append("    " + ln)

    def label(self, base="L"):
        self.nlab += 1
        return f"{base}_{self.nlab}"

    def text(self):
        order = ["entry", "loader", "compute", "tail", "exact", "end"]
        assert sorted(order) == sorted(self.secs)
        return "\n".join("\n".join(self.secs[k]) for k in order) + "\n"


def isize(ln):
    t = ln.split(";")[0].strip()
    if not t or t.endswith(":"):
        return 0
    op = t.split()[0]
    if op.startswith(("v_mfma", "v_smfmac", "ds_", "buffer_")) or op.endswith("_e64"):
        return 8
    assert op in ("v_exp_f32", "v_add_u32", "v_mov_b32") or op.startswith("s_"), t
    assert "0x" not in t, t
    return 4


def align8(lines):
    out, off = [], 0
    for ln in lines:
        n = isize(ln)
        if n == 8 and off % 8:
            o = off
            for k in range(len(out) - 1, -1, -1):
                m = isize(out[k])
                if m == 8:
                    k = -1
                    break
                o -= m
                if m == 4 and o % 8 == 0 and out[k].split()[0] == "v_exp_f32":
                    out[k] = out[k].replace("v_exp_f32", "v_exp_f32_e64")
                    break
            else:
                k = -1
            if k == -1:
                out.append("    s_nop 0")
            off += 4
        out.append(ln)
        off += n
    return out


def vr(b, n):
    return f"v[{b}:{b+n-1}]"


def stamp(a, n, wait=False, mode=1):
    if STAMPS == mode:
        a(f"{'s_memtime' if mode == 1 else 's_memrealtime'} s[{72+2*n}:{73+2*n}]")
        if wait:
            a("s_waitcnt lgkmcnt(0)")


def gen(a):
    name = NAME + "_kernel"
    a(f"""
.globl {name}
.p2align 8
.type {name},@function
{name}:
""")
    SX, SW, SWS, SG, SD = 4, 8, 12, 16, 52
    SWA, SWB, SO = 4, 8, 16
    sW_, sP, sTG, sWV, sJ, sTP = 20, 21, 22, 23, 24, 25
    sXb, sWb, sM0x, sM0w, sA, sB, sT, sT2 = 26, 27, 28, 29, 30, 31, 32, 33
    sMASK = 34
    sKVp, sC, sN, sRS = 36, 37, 38, 39
    sDl, sU, sOm, sOh = 56, 57, 58, 59
    sNON, sRDY, sFB, sSPIN = 60, 61, 62, 63
    sCG, sT0, sTT, sKQ, sTG2 = 64, 65, 66, 67, 68
    sC2 = 70
    sD3 = 48
    sLI = sWV
    vL, vL16 = 1, 2
    NV = 168
    a(f"""
    s_cmp_ge_u32 s2, 256
    s_cbranch_scc1 L_done
    """)
    if STAMPS:
        a("s_memtime s[72:73]\ns_memrealtime s[96:97]")
    a(f"""
    s_load_dwordx2 s[{SX}:{SX+1}], s[0:1], 0            ; x
    s_bitcmp1_b32 s2, 2
    s_cselect_b32 s{sT}, 32, 8
    s_load_dwordx2 s[{SW}:{SW+1}], s[0:1], s{sT}
    s_load_dwordx2 s[{SG}:{SG+1}], s[0:1], 48           ; gate_w
    s_load_dwordx2 s[{SD}:{SD+1}], s[0:1], 64           ; debug
    s_load_dwordx2 s[{SWS}:{SWS+1}], s[0:1], 72         ; ws
    """)
    if CPF:
        a(f"""
        s_getpc_b64 s[{sA}:{sA+1}]
        v_subrev_u32 v10, 256, v0
        v_lshlrev_b32 v10, 7, v10
        v_cmp_gt_u32 vcc, L_done - {name} - 64, v10
        s_and_saveexec_b64 s[{sT}:{sT+1}], vcc
        s_cbranch_execz L_cpf
        global_load_dword v7, v10, s[{sA}:{sA+1}]
        L_cpf:
        s_mov_b64 exec, -1
        """)
    a(f"""
    v_lshrrev_b32 v10, 6, v0
    v_and_b32 v{vL}, 63, v0
    s_bfe_u32 s{sTG}, s2, 0x30003
    v_readfirstlane_b32 s{sWV}, v10
    s_and_b32 s{sP}, s2, 7
    s_lshl_b32 s{sP}, s{sP}, 2
    s_lshr_b32 s{sT2}, s2, 6
    s_add_u32 s{sP}, s{sP}, s{sT2}
    s_mov_b32 s{SX+2}, {XBYTES}
    s_mov_b32 s{SX+3}, 0x00020000
    s_mov_b32 s{SW+3}, s{SX+3}
    s_mov_b32 s{SG+3}, s{SX+3}
    s_mov_b32 s{SD+3}, s{SX+3}
    s_mov_b32 s{SWS+3}, s{SX+3}
    s_cmp_lt_u32 s{sWV}, 4
    s_cbranch_scc0 L_compute
    v_lshrrev_b32 v12, 3, v{vL}
    v_mul_u32_u24 v12, 1152, v12
    v_lshrrev_b32 v13, 4, v{vL}
    v_and_b32 v14, 7, v{vL}
    v_xor_b32 v14, v14, v13
    v_lshl_add_u32 v3, v14, 4, v12
    v_xor_b32 v14, 4, v14
    v_lshl_add_u32 v4, v14, 4, v12
    v_add_u32 v4, {8*1152}, v4
    s_lshl_b32 s{sT}, s{sTG}, 2
    s_add_u32 s{sT}, s{sT}, s{sLI}
    s_mul_i32 s{sXb}, s{sT}, {64*1152}
    s_lshl_b32 s{sM0x}, s{sLI}, 13
    s_waitcnt lgkmcnt(0)
    """)

    def common():
        a(f"""
        s_mov_b32 s{SW+2}, {WQKV_BYTES}
        s_movk_i32 s{SG+2}, 1152
        s_movk_i32 s{SD+2}, 256
        s_mov_b32 s{SWS+2}, {WS_USED}
        v_lshlrev_b32 v{vL16}, 4, v{vL}
        s_mul_i32 s{sKVp}, s{sP}, {8*CHUNK}
        s_mul_i32 s{sKQ}, s{sWV}, 43
        s_lshr_b32 s{sKQ}, s{sKQ}, 7
        s_mul_i32 s{sT}, s{sKQ}, 3
        s_sub_u32 s{sTT}, s{sWV}, s{sT}
        s_mov_b32 s{sSPIN}, {SPIN_LIMIT}
        """)

    sFl, sI, sPd, sBt, sCur, sMode, sWS = 69, 40, 41, 42, 43, 39, 3

    def unit_decode(v):
        a(f"""
        v_readfirstlane_b32 s{sU}, v{v}
        s_nop 3
        s_lshr_b32 s{sTG2}, s{sU}, 8
        s_and_b32 s{sTG2}, s{sTG2}, 7
        s_and_b32 s{sU}, s{sU}, 0xff
        s_lshr_b32 s{sCG}, s{sU}, 1
        s_and_b32 s{sT0}, s{sU}, 1
        s_mul_i32 s{sT0}, s{sT0}, 3
        s_sub_u32 s{sT}, s{sU}, 18
        s_cmp_ge_u32 s{sU}, 18
        s_cselect_b32 s{sCG}, s{sT}, s{sCG}
        s_cselect_b32 s{sT0}, 6, s{sT0}
        s_add_u32 s{sT0}, s{sT0}, s{sTT}
        s_lshl_b32 s{sT}, s{sTG2}, 3
        s_add_u32 s{sT}, s{sT}, s{sT0}
        s_mul_i32 s{sFl}, s{sT}, {OTILE}
        s_mul_i32 s{sT}, s{sKQ}, {8*OPAIR}
        s_add_u32 s{sFl}, s{sFl}, s{sT}
        s_add_u32 s{sFl}, s{sFl}, {O_OFF}
        """)

    vK, vKH, vV, vIDX = 3, 4, 5, 6
    vG = [8, 9]
    vT = [10, 11, 12, 13, 14, 15]
    Qa, Qb = 16, 20
    QH = {("a", 0): 24, ("a", 1): 26, ("b", 0): 28, ("b", 1): 30}
    Kb = [32, 36]
    KHb = [40, 42]
    V0b = [44, 48]
    V1b = [52, 56]
    CZ = 60
    Oa, Ob = 64, 80
    S = [96, 128]
    vXr = [16, 17, 18, 19]; vWr = [20, 21]
    vXr2 = [22, 23, 24, 25]; vWr2 = [26, 27]
    vU = list(range(32, 48))
    F = [32, 48]
    A0, A1, B0, B1 = 96, 112, 128, 144
    vN = 8
    eK, eR, e0, e1, e2, e3, e4 = 160, 161, 162, 163, 164, 165, 166

    a.sec("compute")
    a("L_compute:")
    common()
    a(f"""
    s_sub_u32 s{sW_}, s{sWV}, 4
    s_lshr_b32 s{sJ}, s{sW_}, 2
    s_and_b32 s{sTP}, s{sW_}, 3
    s_waitcnt lgkmcnt(0)
    s_load_dwordx2 s[{SO}:{SO+1}], s[0:1], 56    ; out
    s_mov_b32 s{SO+2}, {XBYTES}
    """)
    if DPF:
        a(f"""
        s_cmp_eq_u32 s{sW_}, 0
        s_cbranch_scc0 L_dpfa
        v_and_b32 v{vT[5]}, 1, v{vL}
        v_bfe_u32 v{vT[4]}, v{vL}, 1, 3
        v_mul_u32_u24 v{vT[4]}, 1152, v{vT[4]}
        v_lshl_add_u32 v{vT[5]}, v{vT[5]}, 7, v{vT[4]}
        s_mul_i32 s{sT}, s2, {8*1152}
        s_mov_b64 exec, 0xffff
        buffer_load_dword v7, v{vT[5]}, s[{SX}:{SX+3}], s{sT} offen offset:256
        s_mov_b64 exec, -1
        L_dpfa:
        s_cmp_eq_u32 s{sW_}, 1
        s_cbranch_scc0 L_dpfb
        v_lshlrev_b32 v{vT[5]}, 7, v{vL}
        s_and_b32 s{sT}, s{sP}, 15
        s_lshl_b32 s{sT}, s{sT}, 3
        s_add_u32 s{sT}, s{sT}, s{sTG}
        s_mul_i32 s{sT}, s{sT}, 3456
        s_add_u32 s{sT}, s{sT}, {128*3456}
        s_mov_b64 exec, 0x7ffffff
        buffer_load_dword v7, v{vT[5]}, s[{SW}:{SW+3}], s{sT} offen
        s_mov_b64 exec, -1
        L_dpfb:
        """)
    a(f"""
    s_cmp_eq_u32 s{sW_}, 3
    s_cbranch_scc0 L_nn0
    s_lshl_b32 s{sT}, s{sP}, 12
    s_add_u32 s{sT}, s{sT}, {FLAG_OFF}
    v_lshlrev_b32 v{vN}, 7, v{vL}
    v_add_u32 v{vN}, s{sT}, v{vN}
    v_and_b32 v{vN+1}, 7, v{vL}
    v_lshlrev_b32 v{vN+1}, 12, v{vN+1}
    s_lshl_b32 s{sT}, s{sP}, 7
    s_add_u32 s{sT}, s{sT}, {OFLAG_OFF}
    v_cmp_gt_u32 vcc, 32, v{vL}
    v_add_u32 v{vN+1}, s{sT}, v{vN+1}
    s_nop 0
    v_cndmask_b32 v{vN}, v{vN+1}, v{vN}, vcc
    buffer_load_dword v{vN+1}, v{vN}, s[{SWS}:{SWS+3}], 0 offen sc1
    L_nn0:
    """)
    a(f"""
    v_and_b32 v{vU[0]}, 31, v{vL}                ; tau
    v_lshrrev_b32 v{vU[1]}, 5, v{vL}             ; h
    s_lshl_b32 s{sT}, s{sTP}, 13
    v_lshlrev_b32 v{vU[2]}, 7, v{vU[0]}
    v_add_u32 v{vU[2]}, s{sT}, v{vU[2]}
    v_bfe_u32 v{vU[3]}, v{vU[0]}, 1, 3
    v_xor_b32 v{vU[3]}, v{vU[3]}, v{vU[1]}
    """)
    for ks in range(4):
        a(f"""
        v_xor_b32 v{vU[4]}, {2*ks}, v{vU[3]}
        v_lshl_add_u32 v{vXr[ks]}, v{vU[4]}, 4, v{vU[2]}
        v_add_u32 v{vXr2[ks]}, {2*G_SLOT}, v{vXr[ks]}
        """)
    a(f"""
    v_bfe_u32 v{vU[2]}, v{vL}, 2, 2              ; r
    v_lshl_add_u32 v{vU[3]}, v{vU[1]}, 3, v{vU[2]}
    v_lshlrev_b32 v{vU[3]}, 8, v{vU[3]}
    v_add_u32 v{vU[3]}, 32768, v{vU[3]}
    v_and_b32 v{vU[4]}, 3, v{vL}                 ; c
    v_bfe_u32 v{vU[5]}, v{vL}, 4, 1              ; sub
    v_lshl_add_u32 v{vU[6]}, v{vU[5]}, 2, v{vU[4]}
    v_lshl_add_u32 v{vU[7]}, v{vU[6]}, 3, v{vU[3]}
    v_xor_b32 v{vWr[0]}, s{sJ}, v{vU[2]}
    v_lshl_add_u32 v{vWr[0]}, v{vWr[0]}, 6, v{vU[7]}
    v_cmp_eq_u32 vcc, 2, v{vU[4]}
    v_lshlrev_b32 v{vU[6]}, 4, v{vU[4]}
    v_mov_b32 v{vU[8]}, 40
    v_cndmask_b32 v{vU[6]}, v{vU[6]}, v{vU[8]}, vcc
    v_cmp_eq_u32 vcc, 1, v{vU[5]}
    v_mov_b32 v{vU[8]}, 56
    s_nop 0
    v_cndmask_b32 v{vU[5]}, v{vU[6]}, v{vU[8]}, vcc
    v_add_u32 v{vU[5]}, v{vU[5]}, v{vU[3]}
    s_cmp_eq_u32 s{sJ}, 1
    s_cselect_b64 vcc, -1, 0
    s_add_u32 s{sT}, s{sJ}, 2
    v_cndmask_b32 v{vU[7]}, v{vU[7]}, v{vU[5]}, vcc
    v_xor_b32 v{vWr[1]}, s{sT}, v{vU[2]}
    v_lshl_add_u32 v{vWr[1]}, v{vWr[1]}, 6, v{vU[7]}
    v_add_u32 v{vWr2[0]}, {2*G_SLOT}, v{vWr[0]}
    v_add_u32 v{vWr2[1]}, {2*G_SLOT}, v{vWr[1]}
    """)
    for r in range(Oa, A0 + 64):
        a(f"v_mov_b32 v{r}, 0")
    a(f"""
    s_lshl_b32 s{sT}, s{sJ}, 10
    s_add_u32 s{sT}, s{sT}, 512
    v_add_u32 v{vK}, s{sT}, v{vL16}
    v_lshlrev_b32 v{vKH}, 2, v{vL}
    s_lshl_b32 s{sT2}, s{sJ}, 8
    v_add_u32 v{vKH}, s{sT2}, v{vKH}
    v_mov_b32 v{vU[2]}, 4
    v_cmp_gt_u32 vcc, 19, v{vU[0]}
    v_mov_b32 v{vU[3]}, 19
    s_nop 0
    v_cndmask_b32 v{vU[2]}, v{vU[2]}, v{vU[0]}, vcc
    v_cmp_eq_u32 vcc, 4, v{vU[0]}
    v_mul_u32_u24 v{vU[4]}, {VH}, v{vU[1]}
    s_mul_i32 s{sT2}, s{sJ}, {2*VG}
    s_add_u32 s{sT2}, s{sT2}, 2560
    v_cndmask_b32 v{vU[2]}, v{vU[2]}, v{vU[3]}, vcc
    v_lshl_add_u32 v{vV}, v{vU[2]}, 4, v{vU[4]}
    v_add_u32 v{vV}, s{sT2}, v{vV}
    v_mov_b32 v{vIDX}, 0xdddddddd
    s_lshl_b32 s{sT}, s{sTG}, 3
    s_lshl_b32 s{sT2}, s{sTP}, 1
    s_add_u32 s{sT}, s{sT}, s{sT2}
    s_mul_i32 s{sA}, s{sT}, {OTILE}
    s_mul_i32 s{sT}, s{sP}, {OPAIR}
    s_add_u32 s{sA}, s{sA}, s{sT}
    s_add_u32 s{sA}, s{sA}, {O_OFF}
    s_lshl_b32 s{sT}, s{sJ}, 10
    s_add_u32 s{sOm}, s{sA}, s{sT}
    s_lshl_b32 s{sT}, s{sJ}, 7
    s_add_u32 s{sOh}, s{sA}, s{sT}
    s_mov_b32 s{sD3}, {(RING[1]-RING[0]) & 0xffffffff:#x}
    s_mov_b32 s{sD3+1}, {(RING[2]-RING[1]) & 0xffffffff:#x}
    s_mov_b32 s{sD3+2}, {(RING[0]-RING[2]) & 0xffffffff:#x}
    s_mov_b32 s{sC2}, {f32bits(CSCALE):#x}
    s_mov_b32 s{sC2+1}, {f32bits(CSCALE):#x}
    v_and_b32 v{vU[2]}, 0x13, v{vU[0]}
    v_and_b32 v{vU[3]}, 4, v{vU[0]}
    v_lshl_or_b32 v{vU[2]}, v{vU[3]}, 1, v{vU[2]}
    v_and_b32 v{vU[3]}, 8, v{vU[0]}
    v_lshrrev_b32 v{vU[3]}, 1, v{vU[3]}
    v_or_b32 v{vU[2]}, v{vU[2]}, v{vU[3]}        ; kappa
    s_lshl_b32 s{sT}, s{sJ}, 10
    s_mul_i32 s{sB}, s{sTP}, {TPAIR}
    s_add_u32 s{sT}, s{sT}, s{sB}
    s_add_u32 s{sT}, s{sT}, 512
    v_lshlrev_b32 v{eK}, 9, v{vU[1]}
    v_lshl_add_u32 v{eK}, v{vU[2]}, 4, v{eK}
    v_add_u32 v{eK}, s{sT}, v{eK}
    s_lshl_b32 s{sT}, s{sTP}, 8
    s_add_u32 s{sT}, s{sT}, {SCR}
    v_lshlrev_b32 v{eR}, 2, v{vU[0]}
    v_add_u32 v{eR}, s{sT}, v{eR}
    s_cmp_eq_u32 s{sJ}, 1
    s_cbranch_scc1 L_a1
    v_subrev_u32 v{vU[3]}, 18, v{vU[0]}
    v_cmp_le_u32 vcc, 18, v{vU[0]}
    v_mov_b32 v{vU[5]}, {2*VG}
    v_mov_b32 v{vU[6]}, 19
    v_cndmask_b32 v{vU[3]}, v{vU[0]}, v{vU[3]}, vcc
    v_cndmask_b32 v{vU[5]}, 0, v{vU[5]}, vcc
    v_cmp_eq_u32 vcc, 4, v{vU[3]}
    s_add_u32 s{sT}, s{sB}, 2560
    s_nop 0
    v_cndmask_b32 v{vU[3]}, v{vU[3]}, v{vU[6]}, vcc
    v_lshl_add_u32 v{e0}, v{vU[3]}, 4, v{vU[5]}
    v_add3_u32 v{e0}, v{e0}, v{vU[4]}, s{sT}
    s_branch L_a2
    L_a1:
    v_lshlrev_b32 v{e0}, 2, v{vU[2]}
    v_add_u32 v{e0}, s{sB}, v{e0}
    v_cmp_eq_u32 vcc, 1, v{vU[1]}
    v_add_u32 v{vU[5]}, 256, v{e0}
    v_add_u32 v{vU[6]}, 1024, v{eR}
    v_cndmask_b32 v{e0}, v{e0}, v{eR}, vcc
    v_cndmask_b32 v{e1}, v{vU[5]}, v{vU[6]}, vcc
    v_mov_b32 v{vU[5]}, 1.0
    v_mov_b32 v{vU[6]}, s{sC2}
    v_cndmask_b32 v{e2}, v{vU[5]}, v{vU[6]}, vcc
    v_lshrrev_b32 v{vU[3]}, 3, v{vU[2]}
    v_mul_u32_u24 v{vU[3]}, {VH}, v{vU[3]}
    v_and_b32 v{vU[5]}, 7, v{vU[2]}
    v_lshl_add_u32 v{e3}, v{vU[5]}, 1, v{vU[3]}
    s_add_u32 s{sT}, s{sB}, {2560 + 2*VG}
    v_add_u32 v{e3}, s{sT}, v{e3}
    L_a2:
    s_lshl_b32 s{sT}, s{sJ}, 10
    v_add_u32 v{e4}, s{sT}, v{eR}
    s_lshl_b32 s{sT}, s{sW_}, 2
    s_add_u32 s{sT}, s{sT}, {SYNC}
    v_mov_b32 v167, s{sT}
    """)
    a("s_waitcnt lgkmcnt(0)")
    if TLBW:
        a(f"""
        s_cmp_eq_u32 s{sW_}, 2
        s_cbranch_scc0 L_tlb
        v_lshlrev_b32 v{vT[5]}, 20, v{vL}
        s_lshl_b32 s{sT}, s2, 7
        s_mov_b64 exec, 0xffff
        buffer_load_dword v7, v{vT[5]}, s[{SWS}:{SWS+3}], s{sT} offen sc1
        s_mov_b64 exec, 7
        buffer_load_dword v7, v{vT[5]}, s[{SO}:{SO+3}], s{sT} offen
        s_mov_b64 exec, -1
        L_tlb:
        """)
    a(f"""
    s_cmp_eq_u32 s{sW_}, 3
    s_cbranch_scc0 L_nn1
    s_mov_b32 s44, -1
    s_movk_i32 s45, 0xff
    s_brev_b32 s{sA}, 1
    s_waitcnt vmcnt(0)
    """)
    for b in range(6):
        a(f"""
        v_and_b32 v{vN}, {1 << b}, v{vN+1}
        v_cmp_ne_u32 vcc, 0, v{vN}
        s_nop 0
        s_and_b64 s[46:47], s[44:45], vcc
        s_andn2_b64 s[44:45], s[44:45], vcc
        s_bcnt1_i32_b64 s{sT}, s[46:47]
        s_bcnt1_i32_b64 s{sT2}, s[44:45]
        s_cmp_lt_u32 s{sT}, s{sT2}
        s_cselect_b64 s[44:45], s[46:47], s[44:45]
        s_cselect_b32 s{sT}, {1 << b}, 0
        s_or_b32 s{sA}, s{sA}, s{sT}
        """)
    a(f"""
    v_mov_b32 v{vN}, s{sA}
    v_mov_b32 v{vN+1}, 0
    v_mov_b32 v{vN+2}, s{sA}
    s_lshl_b32 s{sT}, s{sP}, 2
    v_mov_b32 v{vN+3}, s{sT}
    s_mov_b64 exec, 1
    buffer_atomic_cmpswap v[{vN}:{vN+1}], v{vN+3}, s[{SD}:{SD+3}], 0 offen sc0 sc1
    s_mov_b64 exec, -1
    L_nn1:
    """)

    def reads(n, ks, f):
        s = n % 3
        xr = vXr2 if s == 2 else vXr
        wr = vWr2 if s == 2 else vWr
        so = G_SLOT if s == 1 else 0
        b = F[f]
        wo = so + ks * 16 * 256
        return [
            f"ds_read_b128 {vr(b,4)}, v{xr[ks]} offset:{so}",
            f"ds_read_b64_tr_b16 {vr(b+8,2)}, v{wr[0]} offset:{wo}",
            f"ds_read_b64_tr_b16 {vr(b+10,2)}, v{wr[0]} offset:{wo+1024}",
            f"ds_read_b128 {vr(b+4,4)}, v{xr[ks]} offset:{so+4096}",
            f"ds_read_b64_tr_b16 {vr(b+12,2)}, v{wr[1]} offset:{wo}",
            f"ds_read_b64_tr_b16 {vr(b+14,2)}, v{wr[1]} offset:{wo+1024}",
        ]

    def mfmas(f, j):
        b = F[f]
        X0, X1, Wa, Wb = vr(b, 4), vr(b + 4, 4), vr(b + 8, 4), vr(b + 12, 4)
        m = [f"v_mfma_f32_32x32x16_bf16 {vr(A0,16)}, {Wa}, {X0}, {vr(A0,16)}",
             f"v_mfma_f32_32x32x16_bf16 {vr(A1,16)}, {Wa}, {X1}, {vr(A1,16)}"]
        if j == 0:
            m += [f"v_mfma_f32_32x32x16_bf16 {vr(B0,16)}, {X0}, {Wb}, {vr(B0,16)}",
                  f"v_mfma_f32_32x32x16_bf16 {vr(B1,16)}, {X1}, {Wb}, {vr(B1,16)}"]
        else:
            m += [f"v_mfma_f32_32x32x16_bf16 {vr(B0,16)}, {Wb}, {X0}, {vr(B0,16)}",
                  f"v_mfma_f32_32x32x16_bf16 {vr(B1,16)}, {Wb}, {X1}, {vr(B1,16)}"]
        return m

    a("s_barrier")
    stamp(a, 1, True)
    stamp(a, 1, True, mode=4)
    for r in reads(0, 0, 0):
        a(r)
    a(f"""
    s_mov_b32 s{sN}, 0
    s_cmp_eq_u32 s{sJ}, 1
    s_cbranch_scc1 L_g1
    """)
    for j in range(2):
        a(f"L_g{j}:")
        for n in range(3):
            for ks in range(3):
                for r in reads(n, ks + 1, (ks + 1) & 1):
                    a(r)
                a("s_waitcnt lgkmcnt(6)")
                for m in mfmas(ks & 1, j):
                    a(m)
            a("s_waitcnt lgkmcnt(0)")
            if n == 2:
                a(f"""
                s_add_u32 s{sN}, s{sN}, 1
                s_cmp_eq_u32 s{sN}, 3
                s_cbranch_scc1 L_ge{j}
                """)
            a("s_barrier")
            for r in reads(n + 1, 0, 0):
                a(r)
            for m in mfmas(1, j):
                a(m)
        a(f"s_branch L_g{j}")
        a(f"L_ge{j}:")
        for m in mfmas(1, j):
            a(m)
        stamp(a, 2)
        stamp(a, 2, mode=4)
        a(f"""
        v_mov_b32 v{KHb[0]+1}, 0x3f803f80
        v_mov_b32 v{KHb[1]+1}, 0x3f803f80
        v_mov_b32 v{QH[("a",0)]+1}, 0
        v_mov_b32 v{QH[("a",1)]+1}, 0
        v_mov_b32 v{QH[("b",0)]+1}, 0
        v_mov_b32 v{QH[("b",1)]+1}, 0
        s_mov_b32 s{sN}, 0
        s_mov_b32 s{sFB}, 0
        s_nop 0
        """)
        for t, A in enumerate((A0, A1)):
            for i in range(4):
                a(f"v_cvt_pk_bf16_f32 v{A+i}, v{A+2*i}, v{A+2*i+1}")
            a(f"ds_write_b128 v{eK}, {vr(A,4)} offset:{TILE*t}")
        if j == 0:
            for t, B in enumerate((B0, B1)):
                for i in range(8):
                    a(f"v_cvt_pk_bf16_f32 v{B+i}, v{B+2*i}, v{B+2*i+1}")
                for u in range(2):
                    a(f"ds_write_b128 v{e0}, {vr(B+4*u,4)} offset:{t*TILE + u*VG}")
            a(f"""
            s_cmp_eq_u32 s{sW_}, 3
            s_cbranch_scc0 L_nn2
            s_waitcnt vmcnt(0)
            v_cmp_eq_u32 vcc, 0, v{vN}
            v_mov_b32 v{vN+3}, {SCR_N}
            s_nop 0
            v_cndmask_b32 v{vN}, v{vN}, v{vN+2}, vcc
            s_mov_b64 exec, 1
            ds_write_b32 v{vN+3}, v{vN}
            s_mov_b64 exec, -1
            L_nn2:
            s_branch L_ep
            """)
        else:
            a(f"""
            s_mov_b32 exec_lo, 0
            ds_write_b32 v{eR}, v{B0+4} offset:2048
            ds_write_b32 v{eR}, v{B1+4} offset:{2048+128}
            s_mov_b32 exec_lo, -1
            """)
            for t, B in enumerate((B0, B1)):
                for i in range(4):
                    a(f"v_mul_f32 v{B+i}, v{e2}, v{B+i}")
                for i in range(4):
                    a(f"v_cvt_pk_bf16_f32 v{B+8+i}, v{B+2*i}, v{B+2*i+1}")
                a(f"ds_write_b32 v{e0}, v{B+8} offset:{128*t}")
                a(f"ds_write_b32 v{e1}, v{B+9} offset:{128*t}")
            a("s_mov_b32 exec_hi, 0")
            for t, B in enumerate((B0, B1)):
                o = t * TILE + 14 * 16
                a(f"ds_write_b16 v{e3}, v{B+10} offset:{o}")
                a(f"ds_write_b16_d16_hi v{e3}, v{B+10} offset:{o+16}")
                a(f"ds_write_b16 v{e3}, v{B+11} offset:{o+32}")
                a(f"ds_write_b16_d16_hi v{e3}, v{B+11} offset:{o+48}")
            a("s_mov_b32 exec_hi, -1")
    a("L_ep:")
    for t, (A, Q) in enumerate(((A0, Qa), (A1, Qb))):
        for i in range(4):
            a(f"v_pk_mul_f32 {vr(A+8+2*i,2)}, {vr(A+8+2*i,2)}, s[{sC2}:{sC2+1}]")
        for i in range(4):
            a(f"v_cvt_pk_bf16_f32 v{Q+i}, v{A+8+2*i}, v{A+8+2*i+1}")
    a(f"""
    v_mov_b32 v{CZ}, 0
    v_mov_b32 v{CZ+1}, 0x3f803f80
    v_cmp_gt_u32 vcc, 32, v{vL}
    """)
    for r in range(V1b[1], V1b[1] + 4):
        a(f"v_mov_b32 v{r}, 0")
    a("s_waitcnt vmcnt(0) lgkmcnt(0)")
    for r in range(S[1] + 24, S[1] + 32):
        a(f"v_mov_b32 v{r}, 0")
    a("s_barrier")
    stamp(a, 3, True)
    a(f"""
    ds_read_b128 {vr(Kb[0],4)}, v{vK}
    ds_read_b32 v{KHb[0]}, v{vKH}
    ds_read_b32 v{QH[("a",0)]}, v{e4}
    ds_read_b32 v{QH[("b",0)]}, v{e4} offset:128
    ds_read_b32 v{vG[0]}, v{eR} offset:2048
    ds_read_b32 v{vG[1]}, v{eR} offset:{2048+128}
    ds_read_b128 {vr(Kb[1],4)}, v{vK} offset:{TILE}
    ds_read_b128 {vr(V0b[0],4)}, v{vV}
    ds_read_b128 {vr(V1b[0],4)}, v{vV} offset:{VG}
    """)
    X = S[0]

    def qk(dst, kb, q):
        return f"v_mfma_f32_32x32x16_bf16 {vr(dst,16)}, {vr(kb,4)}, {vr(q,4)}, 0"

    def qkh(dst, khb, qh):
        return f"v_mfma_f32_32x32x8_bf16 {vr(dst,16)}, {vr(khb,2)}, {vr(qh,2)}, {vr(dst,16)}"

    def pv(o, vb, p):
        return f"v_smfmac_f32_32x32x32_bf16 {vr(o,16)}, {vr(vb,4)}, {vr(p,8)}, v{vIDX}"

    def maxtree(m, b, first):
        if first:
            a(f"v_max3_f32 v{m}, v{b}, v{b+1}, v{b+2}")
            for i in range(3, 15, 2):
                a(f"v_max3_f32 v{m}, v{m}, v{b+i}, v{b+i+1}")
            a(f"v_max_f32 v{m}, v{m}, v{b+15}")
        else:
            for i in range(0, 16, 2):
                a(f"v_max3_f32 v{m}, v{m}, v{b+i}, v{b+i+1}")

    a("s_waitcnt lgkmcnt(8)")
    a(qk(X, Kb[0], Qa)); a(qk(X + 16, Kb[0], Qb))
    a(f"""
    s_waitcnt lgkmcnt(5)
    v_cndmask_b32 v{QH[("a",1)]}, v{QH[("a",0)]}, 0, vcc
    v_cndmask_b32 v{QH[("a",0)]}, 0, v{QH[("a",0)]}, vcc
    v_cndmask_b32 v{QH[("b",1)]}, v{QH[("b",0)]}, 0, vcc
    v_cndmask_b32 v{QH[("b",0)]}, 0, v{QH[("b",0)]}, vcc
    """)
    a(qkh(X, KHb[0], QH[("a", 0)]))
    a("s_nop 0")
    a(qkh(X + 16, KHb[0], QH[("b", 0)]))
    a(f"""
    s_mov_b32 s{sT}, {f32bits(-math.log2(math.e)):#x}
    s_cmp_ge_u32 s{sP}, 16
    s_cselect_b32 s{sT}, {f32bits(math.log2(math.e)):#x}, s{sT}
    s_waitcnt lgkmcnt(3)
    v_mul_f32 v{vG[0]}, s{sT}, v{vG[0]}
    v_mul_f32 v{vG[1]}, s{sT}, v{vG[1]}
    v_exp_f32 v{vG[0]}, v{vG[0]}
    v_exp_f32 v{vG[1]}, v{vG[1]}
    s_nop 0
    v_add_f32 v{vG[0]}, 1.0, v{vG[0]}
    v_add_f32 v{vG[1]}, 1.0, v{vG[1]}
    """)
    maxtree(vT[0], X, True)
    a(f"""
    v_lshrrev_b32 v{vT[2]}, 16, v{vT[0]}
    v_xor_b32 v{vT[2]}, 0x8000, v{vT[2]}
    v_cndmask_b32 v{QH[("a",0)]+1}, 0, v{vT[2]}, vcc
    v_cndmask_b32 v{QH[("a",1)]+1}, 0, v{vT[2]}, vcc
    v_rcp_f32 v{vG[0]}, v{vG[0]}
    """)
    a(qkh(X, CZ, QH[("a", 0)]))
    maxtree(vT[1], X + 16, True)
    a(f"""
    v_lshrrev_b32 v{vT[3]}, 16, v{vT[1]}
    v_xor_b32 v{vT[3]}, 0x8000, v{vT[3]}
    v_cndmask_b32 v{QH[("b",0)]+1}, 0, v{vT[3]}, vcc
    v_cndmask_b32 v{QH[("b",1)]+1}, 0, v{vT[3]}, vcc
    v_rcp_f32 v{vG[1]}, v{vG[1]}
    """)
    a(qkh(X + 16, CZ, QH[("b", 0)]))

    def E(b, n=4):
        for r in range(b, b + n):
            a(f"v_exp_f32 v{r}, v{r}")

    stamp(a, 4)
    stamp(a, 3, mode=4)
    if PRIO:
        a("s_setprio 1")
    a("s_waitcnt lgkmcnt(0)")
    a(".p2align 6")
    if ALIGN and not WPOS:
        a("s_nop 0")
    a("L_loop:")
    loop0 = len(a.lines) - (1 if WPOS else 2)
    for i in range(8):
        X = S[i & 1]; Y = S[(i + 1) & 1]
        xa, xb, ya, yb = X, X + 16, Y, Y + 16
        tn = i + 1
        par = tn & 1
        khb = KHb[(tn >> 1) & 1]
        if not WPOS:
            a("s_waitcnt lgkmcnt(0)")
        if PRIO and i == (5 if PRIO == 1 else 4 if PRIO == 2 else 3 if PRIO == 4 else 2 if PRIO == 5 else 99):
            a("s_setprio 0")
        if i == 6:
            a("s_cbranch_scc1 L_nb7")
            a("s_barrier")
            a("L_nb7:")
            if PRIO:
                a("s_setprio 1")
            a(f"""
            v_add_u32 v{vK}, s{sDl}, v{vK}
            v_add_u32 v{vKH}, s{sDl}, v{vKH}
            """)
        if i == 7:
            a(f"v_add_u32 v{vV}, s{sDl}, v{vV}")
        a(qk(ya, Kb[tn & 1], Qa))
        a(f"ds_read_b128 {vr(Kb[i&1],4)}, v{vK} offset:{toff((i+2)&7)}")
        if i == 4:
            a("ds_write_b32 v167, v7")
        E(xa)
        a(pv(Ob, V1b[(i + 1) & 1], yb + 8))
        a(f"ds_read_b128 {vr(V0b[(i+1)&1],4)}, v{vV} offset:{toff((i+1)&7)}")
        E(xa + 4)
        a(qkh(ya, khb, QH[("a", par)]))
        a(f"ds_read_b128 {vr(V1b[(i+1)&1],4)}, v{vV} offset:{toff((i+1)&7) + VG}")
        E(xa + 8)
        a(pv(Oa, V0b[i & 1], xa))
        if i % 2 == 0:
            a(f"ds_read_b32 v{KHb[((i>>1)+1)&1]}, v{vKH} offset:{(((i>>1)+1)&3)*TPAIR}")

        E(xa + 12)
        a(qk(yb, Kb[tn & 1], Qb))
        if PRIO == 3 and i == 5:
            a("s_setprio 0")
        if i == 1:
            a(f"s_mov_b32 s{sDl}, s{sD3}")
        if i == 3:
            a(f"s_mov_b32 s{sD3+1}, s{sD3+2}")
        if i == 3:
            a(f"v_mov_b32 v7, s{sN}")
        if i == 7:
            a(f"s_add_u32 s{sN}, s{sN}, 1")
        E(xb)
        a(pv(Oa, V1b[i & 1], xa + 8))
        if i == 1:
            a(f"s_mov_b32 s{sD3}, s{sD3+1}")
        if i == 3:
            a(f"s_mov_b32 s{sD3+2}, s{sDl}")
        if i == 5:
            a(f"s_cmp_eq_u32 s{sN}, 7")
        if i == 7:
            a(f"s_cmp_lt_u32 s{sN}, 8")
        E(xb + 4)
        a(qkh(yb, khb, QH[("b", par)]))
        E(xb + 8)
        a(pv(Ob, V0b[i & 1], xb))
        if WPOS:
            a("s_waitcnt lgkmcnt(0)")
        E(xb + 12)
    if ALIGN:
        a.lines[loop0:] = align8(a.lines[loop0:])
    a(f"""
    s_cbranch_scc1 L_loop
    s_nop 0
    """)
    stamp(a, 5)
    stamp(a, 1, mode=3)
    stamp(a, 4, mode=4)
    a(pv(Ob, V1b[1], S[1] + 24))
    a(f"""
    v_mov_b32 v{vT[5]}, {SYNC + 48}
    ds_read_b32 v160, v{vT[5]}
    s_nop 9
    L_fin:
    """)
    for t, O in enumerate((Oa, Ob)):
        a(f"v_mov_b32 v{vT[2*t]}, v{O+10}")
        a(f"v_mov_b32 v{vT[2*t+1]}, v{O+10}")
    a(f"v_max3_f32 v{vT[4]}, |v{Oa}|, |v{Oa+1}|, |v{Ob}|")
    a(f"v_max_f32 v{vT[4]}, v{vT[4]}, |v{Ob+1}|")
    a(f"v_permlane32_swap_b32 v{vT[0]}, v{vT[1]}")
    a(f"v_permlane32_swap_b32 v{vT[2]}, v{vT[3]}")
    for i in range(2, 10):
        a(f"v_max3_f32 v{vT[4]}, v{vT[4]}, |v{Oa+i}|, |v{Ob+i}|")
    a(f"""
    s_cmp_eq_u32 s{sFB}, 0
    s_cbranch_scc0 L_store
    s_mov_b32 s{sT}, {f32bits(2.0**40):#x}
    s_mov_b32 s{sT2}, {f32bits(2.0**-8):#x}
    s_mov_b32 s{sA}, 0x7f800000
    v_cmp_nge_f32 vcc, s{sT}, v{vT[0]}
    v_cmp_nge_f32 s[44:45], s{sT}, v{vT[2]}
    v_cmp_nle_f32 s[46:47], s{sT2}, v{vT[0]}
    s_or_b64 vcc, vcc, s[44:45]
    v_cmp_nle_f32 s[44:45], s{sT2}, v{vT[2]}
    s_or_b64 vcc, vcc, s[46:47]
    v_cmp_ngt_f32 s[46:47], s{sA}, v{vT[4]}
    s_or_b64 vcc, vcc, s[44:45]
    s_nop 0
    s_or_b64 vcc, vcc, s[46:47]
    s_cbranch_vccnz L_exact
    L_store:
    v_rcp_f32 v{vT[0]}, v{vT[0]}
    v_rcp_f32 v{vT[2]}, v{vT[2]}
    v_lshrrev_b32 v{vT[4]}, 5, v{vL}
    v_mul_u32_u24 v{vT[4]}, {OTILE - 128}, v{vT[4]}
    v_lshl_add_u32 v{vT[4]}, v{vL}, 2, v{vT[4]}
    s_add_u32 s{sB}, s{sOm}, {OTILE}
    v_mul_f32 v{vT[0]}, v{vT[0]}, v{vG[0]}
    v_mul_f32 v{vT[2]}, v{vT[2]}, v{vG[1]}
    v_mov_b32 v{vT[1]}, v{vT[0]}
    v_mov_b32 v{vT[3]}, v{vT[2]}
    """)
    for t, O in enumerate((Oa, Ob)):
        for i in range(5):
            a(f"v_pk_mul_f32 {vr(O+2*i,2)}, {vr(O+2*i,2)}, {vr(vT[2*t],2)}")
        pk = 16 + 4 * t
        for i in range(4):
            a(f"v_cvt_pk_bf16_f32 v{pk+i}, v{O+2*i}, v{O+2*i+1}")
        a(f"v_cvt_pk_bf16_f32 v{24+t}, v{O+8}, v{O+9}")
        for r in list(range(pk, pk + 4)) + [24 + t]:
            a(f"v_min_u32 v{r}, -2, v{r}")
        a(f"buffer_store_dwordx4 {vr(pk,4)}, v{vL16}, s[{SWS}:{SWS+3}], s{sOm if t == 0 else sB} offen sc1")
    a(f"""
    s_nop 0
    v_permlane32_swap_b32 v24, v25
    s_setprio 0
    buffer_store_dword v24, v{vT[4]}, s[{SWS}:{SWS+3}], s{sOh} offen offset:2048 sc1
    v_mov_b32 v7, 8
    ds_write_b32 v167, v7
    s_mov_b32 s{sMode}, 0
    s_waitcnt lgkmcnt(1)
    """)
    unit_decode(160)
    stamp(a, 6)
    stamp(a, 2, mode=3)

    a.sec("exact")
    X = S[0]
    a(f"""
    L_exact:
    s_mov_b32 s{sFB}, 1
    v_mov_b32 v{QH[("a",0)]+1}, 0
    v_mov_b32 v{QH[("b",0)]+1}, 0
    v_and_b32 v{vKH}, 31, v{vL}
    v_mov_b32 v{vT[2]}, 4
    v_cmp_gt_u32 vcc, 19, v{vKH}
    v_mov_b32 v{vT[3]}, 19
    v_lshrrev_b32 v{vT[4]}, 5, v{vL}
    v_cndmask_b32 v{vT[2]}, v{vT[2]}, v{vKH}, vcc
    v_cmp_eq_u32 vcc, 4, v{vKH}
    v_mul_u32_u24 v{vT[4]}, {VH}, v{vT[4]}
    v_lshlrev_b32 v{vKH}, 2, v{vKH}
    v_cndmask_b32 v{vT[2]}, v{vT[2]}, v{vT[3]}, vcc
    v_lshl_add_u32 v{vV}, v{vT[2]}, 4, v{vT[4]}
    v_mov_b32 v{vT[0]}, 0xff800000
    v_mov_b32 v{vT[1]}, 0xff800000
    """)
    for r in range(Oa, Oa + 32):
        a(f"v_mov_b32 v{r}, 0")
    for ps in range(2):
        a(f"""
        s_mov_b32 s{sN}, 0
        L_x{ps}:
        s_lshr_b32 s{sT}, s{sN}, 1
        s_mul_i32 s{sT}, s{sT}, {TPAIR}
        s_add_u32 s{sT}, s{sT}, s{sKVp}
        s_and_b32 s{sT2}, s{sN}, 1
        s_mul_i32 s{sB}, s{sT2}, {TILE}
        s_add_u32 s{sB}, s{sB}, s{sT}                ; + tile
        s_lshl_b32 s{sA}, s{sJ}, 10
        s_add_u32 s{sA}, s{sA}, s{sB}
        buffer_load_dwordx4 {vr(Kb[0],4)}, v{vL16}, s[{SWS}:{SWS+3}], s{sA} offen offset:512 sc1
        s_lshl_b32 s{sA}, s{sT2}, 7
        s_add_u32 s{sA}, s{sA}, s{sT}
        s_lshl_b32 s{sT2}, s{sJ}, 8
        s_add_u32 s{sA}, s{sA}, s{sT2}
        buffer_load_dword v{KHb[0]}, v{vKH}, s[{SWS}:{SWS+3}], s{sA} offen sc1
        """)
        if ps == 1:
            a(f"""
            s_mul_i32 s{sA}, s{sJ}, {2*VG}
            s_add_u32 s{sA}, s{sA}, s{sB}
            s_add_u32 s{sA}, s{sA}, 2560
            buffer_load_dwordx4 {vr(V0b[0],4)}, v{vV}, s[{SWS}:{SWS+3}], s{sA} offen sc1
            buffer_load_dwordx4 {vr(V1b[0],4)}, v{vV}, s[{SWS}:{SWS+3}], s{sA} offen offset:{VG} sc1
            """)
        a("s_waitcnt vmcnt(0)")
        a(qk(X, Kb[0], Qa)); a(qk(X + 16, Kb[0], Qb))
        a(qkh(X, KHb[0], QH[("a", 0)])); a(qkh(X + 16, KHb[0], QH[("b", 0)]))
        a("s_nop 15")
        if ps == 0:
            maxtree(vT[0], X, False)
            maxtree(vT[1], X + 16, False)
        else:
            for i in range(16):
                a(f"v_sub_f32 v{X+i}, v{X+i}, v{vT[0]}")
                a(f"v_sub_f32 v{X+16+i}, v{X+16+i}, v{vT[1]}")
            E(X, 32)
            a("s_nop 1")
            a(pv(Oa, V0b[0], X)); a(pv(Oa, V1b[0], X + 8))
            a(pv(Ob, V0b[0], X + 16)); a(pv(Ob, V1b[0], X + 24))
        a(f"""
        s_add_u32 s{sN}, s{sN}, 1
        s_cmp_lt_u32 s{sN}, 64
        s_cbranch_scc1 L_x{ps}
        """)
        if ps == 0:
            a(f"""
            v_mov_b32 v{vT[2]}, v{vT[0]}
            v_mov_b32 v{vT[3]}, v{vT[1]}
            s_nop 1
            v_permlane32_swap_b32 v{vT[0]}, v{vT[2]}
            v_permlane32_swap_b32 v{vT[1]}, v{vT[3]}
            s_nop 1
            v_max_f32 v{vT[0]}, v{vT[0]}, v{vT[2]}
            v_max_f32 v{vT[1]}, v{vT[1]}, v{vT[3]}
            """)
    a("""
    s_nop 15
    s_branch L_fin
    """)

    vXE, vXO, vWS = 3, 4, 5
    vGt = [6, 7, 8]
    vGA, vF, vFo = 9, 10, 11
    vT = [12, 13, 14, 15, 16, 17, 18, 19]
    vWO = 20
    CP = 32

    def dma_x(n):
        slot = (n % 3) * G_SLOT
        s = ""
        for i in range(8):
            s += f"s_add_u32 m0, s{sM0x}, {slot + 1024*i}\n"
            if i % 2 == 0:
                s += f"s_add_u32 s{sT}, s{sXb}, {(i//2)*16*1152 + n*128}\n"
            else:
                s += "s_nop 0\n"
            s += f"buffer_load_dwordx4 v{vXE if i % 2 == 0 else vXO}, s[{SX}:{SX+3}], s{sT} offen lds\n"
        return s

    def dma_w(n):
        slot = (n % 3) * G_SLOT
        s = f"s_mov_b64 exec, s[{sMASK}:{sMASK+1}]\n"
        for i in range(4):
            s += f"s_add_u32 m0, s{sM0w}, {slot + 32768 + 1024*i}\n"
            s += f"s_add_u32 s{sT}, s{sWb}, {(n*64 + i*4)*3456}\n"
            s += f"buffer_load_dwordx4 v{vWS}, s[{SW}:{SW+3}], s{sT} offen lds\n"
        s += "s_mov_b64 exec, -1\n"
        return s

    def gate_write(n):
        slot = (n % 3) * G_SLOT
        lab = a.label("L_gw")
        reg = vGt[n // 4]
        if slot < 65536:
            w = f"ds_write_b16 v{vGA}, v{reg} offset:{slot}"
        else:
            w = f"v_add_u32 v{vT[7]}, {slot}, v{vGA}\nds_write_b16 v{vT[7]}, v{reg}"
        return f"""
        s_cmp_eq_u32 s{sLI}, {n % 4}
        s_cbranch_scc0 {lab}
        {w}
        {lab}:
        """

    def wo_load(q0, q1):
        assert q1 <= 72 or q0 >= 72
        srd_, base = (SWA, 0) if q1 <= 72 else (SWB, 72)
        lab = a.label("L_wo")
        a(f"""
        s_add_u32 s{sA}, s{sLI}, {q0}
        {lab}:
        s_lshl_b32 m0, s{sA}, 10
        s_sub_u32 s{sT}, s{sA}, {base}
        s_mul_i32 s{sT}, s{sT}, {8*1152}
        buffer_load_dwordx4 v{vWO}, s[{srd_}:{srd_+3}], s{sT} offen lds
        s_add_u32 s{sA}, s{sA}, 4
        s_cmp_lt_u32 s{sA}, {q1}
        s_cbranch_scc1 {lab}
        """)

    a.sec("loader")
    a("s_setprio 3")
    a(dma_x(0))
    common()
    a(f"""
    v_lshlrev_b32 v{vT[0]}, 1, v{vL}
    s_lshl_b32 s{sT}, s{sLI}, 7
    buffer_load_ushort v{vGt[0]}, v{vT[0]}, s[{SG}:{SG+3}], s{sT} offen
    buffer_load_ushort v{vGt[1]}, v{vT[0]}, s[{SG}:{SG+3}], s{sT} offen offset:512
    buffer_load_ushort v{vGt[2]}, v{vT[0]}, s[{SG}:{SG+3}], s{sT} offen offset:1024
    """)
    mask = ~((1 << 15) | (1 << 27) | (1 << 39) | (1 << 51)) & ((1 << 64) - 1)
    a(f"""
    v_bfe_u32 v{vT[2]}, v{vL}, 2, 2
    v_xor_b32 v{vT[2]}, v{vT[2]}, v{vT[1]}       ; blk
    v_and_b32 v{vT[3]}, 3, v{vL}                 ; e
    v_and_b32 v{vT[4]}, 1, v{vT[3]}
    v_lshlrev_b32 v{vT[4]}, 3, v{vT[4]}
    v_mul_u32_u24 v{vT[5]}, 20, v{vT[2]}
    v_add_u32 v{vT[4]}, v{vT[4]}, v{vT[5]}
    v_add_u32 v{vT[5]}, 576, v{vT[4]}
    v_cmp_gt_u32 vcc, 2, v{vT[3]}
    s_mov_b32 s{sMASK}, {mask & 0xffffffff:#x}
    s_mov_b32 s{sMASK+1}, {mask >> 32:#x}
    v_cndmask_b32 v{vT[4]}, v{vT[4]}, v{vT[5]}, vcc
    v_lshlrev_b32 v{vT[5]}, 3, v{vT[3]}
    v_add_u32 v{vT[5]}, 1152, v{vT[5]}
    v_cmp_eq_u32 vcc, 2, v{vT[2]}
    s_and_b32 s{sT}, s{sP}, 15
    s_mul_i32 s{sT}, s{sT}, 72
    v_cndmask_b32 v{vT[4]}, v{vT[4]}, v{vT[5]}, vcc
    v_mov_b32 v{vT[5]}, 592
    v_mov_b32 v{vT[6]}, 16
    v_cmp_eq_u32 vcc, 1, v{vT[3]}
    s_mul_i32 s{sT2}, s{sLI}, {16*3456}
    s_add_u32 s{sWb}, s{sT}, s{sT2}
    v_cndmask_b32 v{vT[5]}, v{vT[5]}, v{vT[6]}, vcc
    v_mov_b32 v{vT[6]}, 1180
    v_cmp_eq_u32 vcc, 2, v{vT[3]}
    s_lshl_b32 s{sM0w}, s{sLI}, 12
    s_nop 0
    v_cndmask_b32 v{vT[5]}, v{vT[5]}, v{vT[6]}, vcc
    v_cmp_eq_u32 vcc, 3, v{vT[2]}
    s_nop 1
    v_cndmask_b32 v{vT[4]}, v{vT[4]}, v{vT[5]}, vcc
    v_mul_u32_u24 v{vT[5]}, 3456, v{vT[1]}
    v_lshl_add_u32 v{vWS}, v{vT[4]}, 1, v{vT[5]}
    """)
    a(dma_w(0))
    a(f"""
    v_and_b32 v{vT[2]}, 3, v{vL}
    v_xor_b32 v{vT[2]}, 3, v{vT[2]}
    v_lshlrev_b32 v{vT[2]}, 6, v{vT[2]}
    v_lshl_add_u32 v{vGA}, v{vL}, 8, v{vT[2]}
    v_add_u32 v{vGA}, {32768 + 48}, v{vGA}
    """)
    a(dma_x(1)); a(dma_w(1))
    a(f"""
    v_lshlrev_b32 v{vT[2]}, 2, v{vL}
    v_add_u32 v{vT[2]}, {SYNC}, v{vT[2]}
    v_mov_b32 v{CP}, 0
    v_mov_b32 v{CP+1}, 0
    v_mov_b32 v{CP+2}, 0
    v_mov_b32 v{CP+3}, 0
    ds_write_b32 v{vT[2]}, v{CP}
    s_min_u32 s{sT}, s{sLI}, 2
    s_mul_i32 s{sT}, s{sT}, {G_SLOT}
    v_add_u32 v{vT[2]}, s{sT}, v{vGA}
    s_cmp_eq_u32 s{sLI}, 3
    s_cbranch_scc1 L_nz
    ds_write_b128 v{vT[2]}, {vr(CP,4)}
    L_nz:
    s_waitcnt vmcnt(16)
    """)
    for n in range(3):
        a(gate_write(n))
    a("s_waitcnt vmcnt(12) lgkmcnt(0)")
    a("s_barrier")
    stamp(a, 1)
    a(dma_x(2)); a(dma_w(2))
    if DPF:
        a(f"""
        s_cmp_eq_u32 s{sLI}, 0
        s_cbranch_scc0 L_lp1
        v_and_b32 v{vT[5]}, 7, v{vL}
        v_min_u32 v{vT[5]}, 4, v{vT[5]}
        v_lshrrev_b32 v{vT[4]}, 3, v{vL}
        v_mul_u32_u24 v{vT[4]}, 1152, v{vT[4]}
        v_lshl_add_u32 v{vT[5]}, v{vT[5]}, 7, v{vT[4]}
        s_mul_i32 s{sT}, s2, {8*1152}
        buffer_load_dword v{vT[6]}, v{vT[5]}, s[{SX}:{SX+3}], s{sT} offen offset:512
        s_branch L_lp2
        L_lp1:
        v_min_u32 v{vT[5]}, 23, v{vL}
        v_lshlrev_b32 v{vT[5]}, 7, v{vT[5]}
        s_and_b32 s{sT}, s{sP}, 15
        s_lshl_b32 s{sT}, s{sT}, 3
        s_add_u32 s{sT}, s{sT}, s{sTG}
        s_mul_i32 s{sT}, s{sT}, 3
        s_add_u32 s{sT}, s{sT}, s{sLI}
        s_mul_i32 s{sT}, s{sT}, {320*3456 // 384}
        s_add_u32 s{sT}, s{sT}, {256*3456 - 320*3456 // 384}
        buffer_load_dword v{vT[6]}, v{vT[5]}, s[{SW}:{SW+3}], s{sT} offen
        L_lp2:
        """)
    for n in range(8):
        a(f"s_waitcnt vmcnt({(13 if DPF and n < 2 else 12) if n + 2 <= 8 else 0}) lgkmcnt(0)")
        if STAMPS == 7:
            a(f"s_memtime s[90:91]\ns_waitcnt lgkmcnt(0)\ns_barrier\ns_memtime s[94:95]\ns_waitcnt lgkmcnt(0)\ns_sub_u32 s90, s94, s90\ns_add_u32 s{74+2*n}, s90, s72")
        elif STAMPS == 8:
            a(f"s_barrier\ns_memtime s[{74+2*n}:{75+2*n}]")
        else:
            a("s_barrier")
        if n + 3 <= 8:
            a(gate_write(n + 3))
            a(dma_x(n + 3)); a(dma_w(n + 3))
        if n == 6:
            lab = a.label("L_cr")
            a(f"""
            s_cmp_ge_u32 s{sLI}, 2
            s_cbranch_scc1 {lab}
            s_cmp_eq_u32 s{sLI}, 0
            s_cselect_b32 s{sT}, 0x3f803f80, 0
            s_cselect_b32 s{sT2}, {14*16}, 0
            s_add_u32 s{sT2}, s{sT2}, {2560 + 4*16}
            v_and_b32 v{vT[0]}, 7, v{vL}
            v_mul_u32_u24 v{vT[0]}, {VH}, v{vT[0]}
            v_lshrrev_b32 v{vT[2]}, 3, v{vL}
            v_mul_u32_u24 v{vT[2]}, {TILE}, v{vT[2]}
            v_lshrrev_b32 v{vT[3]}, 4, v{vL}
            v_lshl_add_u32 v{vT[2]}, v{vT[3]}, 9, v{vT[2]}
            v_add3_u32 v{vT[0]}, v{vT[0]}, v{vT[2]}, s{sT2}
            v_mov_b32 v{CP}, s{sT}
            v_mov_b32 v{CP+1}, s{sT}
            v_mov_b32 v{CP+2}, s{sT}
            v_mov_b32 v{CP+3}, s{sT}
            ds_write_b128 v{vT[0]}, {vr(CP,4)}
            {lab}:
            """)
    a(f"""
    s_load_dwordx2 s[{SWA}:{SWA+1}], s[0:1], 16          ; A_wo
    s_load_dwordx2 s[{SWB}:{SWB+1}], s[0:1], 40          ; B_wo
    s_load_dwordx2 s[{SO}:{SO+1}], s[0:1], 56            ; out
    s_mov_b32 s{SWA+2}, {WO_BYTES}
    s_mov_b32 s{SWB+2}, {WO_BYTES}
    s_mov_b32 s{SO+2}, {XBYTES}
    s_mov_b32 s{sU}, 0
    s_mov_b32 s{sD3}, {(RING[1]-RING[0]) & 0xffffffff:#x}
    s_mov_b32 s{sD3+1}, {(RING[2]-RING[1]) & 0xffffffff:#x}
    s_mov_b32 s{sD3+2}, {(RING[0]-RING[2]) & 0xffffffff:#x}
    s_mul_i32 s{sT}, s{sLI}, {TPAIR}
    v_add_u32 v{vT[0]}, s{sT}, v{vL16}
    s_add_u32 s{sKVp}, s{sKVp}, s{sT}
    s_mov_b32 s{sM0x}, s{sT}
    s_mul_i32 s{sA}, s{sTG}, {CHUNK}
    s_add_u32 s{sA}, s{sA}, s{sKVp}
    s_lshl_b32 s{sT}, s{sLI}, 10
    s_lshl_b32 s{sB}, s{sP}, 12
    s_add_u32 s{sB}, s{sB}, s{sT}
    s_add_u32 s{sWb}, s{sB}, {FLAG_OFF}
    v_and_b32 v{vFo}, 7, v{vL}
    v_lshlrev_b32 v{vFo}, 7, v{vFo}
    v_mov_b32 v{vT[1]}, {SCR_N}
    s_lshl_b32 s{sT}, s{sTG}, 7
    v_mov_b32 v{vT[2]}, s{sT}
    v_lshrrev_b32 v{vT[3]}, 3, v{vL}
    v_mul_u32_u24 v{vT[3]}, 1152, v{vT[3]}
    v_bfe_u32 v{vT[4]}, v{vL}, 4, 1
    v_lshlrev_b32 v{vT[4]}, 2, v{vT[4]}
    v_and_b32 v{vT[5]}, 7, v{vL}
    v_xor_b32 v{vT[5]}, v{vT[5]}, v{vT[4]}
    v_lshl_add_u32 v{vWO}, v{vT[5]}, 4, v{vT[3]}
    s_waitcnt lgkmcnt(0)
    s_barrier
    """)
    stamp(a, 3, True)
    for i in range(10):
        a(f"ds_read_b128 {vr(CP+4*i,4)}, v{vT[0]} offset:{1024*i}")
    a(f"ds_read_b32 v{vF}, v{vT[1]}")
    for i in range(10):
        if i == 9:
            a("s_mov_b32 exec_hi, 0")
        if i in (4, 8):
            a(f"s_add_u32 s{sA}, s{sA}, 4096")
        a(f"s_waitcnt lgkmcnt({10-i})")
        a(f"buffer_store_dwordx4 {vr(CP+4*i,4)}, v{vL16}, s[{SWS}:{SWS+3}], s{sA} offen offset:{1024*(i&3)} sc1")
    a(f"""
    s_waitcnt vmcnt(0) lgkmcnt(0)
    v_readfirstlane_b32 s{sNON}, v{vF}
    s_mov_b64 exec, 1
    buffer_store_dword v{vF}, v{vT[2]}, s[{SWS}:{SWS+3}], s{sWb} offen sc1
    s_mov_b64 exec, -1
    s_mov_b32 s{sRDY}, 0
    s_mov_b32 s{sN}, 0
    s_lshl_b32 s{sXb}, 1, s{sTG}
    L_ll:
    s_add_u32 s{sM0x}, s{sM0x}, s{sD3}
    s_mov_b32 s{sT}, s{sD3}
    s_mov_b32 s{sD3}, s{sD3+1}
    s_mov_b32 s{sD3+1}, s{sD3+2}
    s_mov_b32 s{sD3+2}, s{sT}
    L_poll:
    s_andn2_b32 s{sT}, s{sRDY}, s{sXb}
    s_cbranch_scc1 L_rdy
    buffer_load_dword v{vF}, v{vFo}, s[{SWS}:{SWS+3}], s{sWb} offen sc1
    s_waitcnt vmcnt(0)
    v_cmp_eq_u32 vcc, s{sNON}, v{vF}
    s_sub_u32 s{sSPIN}, s{sSPIN}, 1
    s_nop 0
    s_cselect_b32 s{sRDY}, -1, vcc_lo
    s_and_b32 s{sRDY}, s{sRDY}, 0xff
    s_branch L_poll
    L_rdy:
    s_ff1_i32_b32 s{sC}, s{sT}
    s_bitset1_b32 s{sXb}, s{sC}
    s_mul_i32 s{sA}, s{sC}, {CHUNK}
    s_add_u32 s{sA}, s{sA}, s{sKVp}
    """)
    for i in range(10):
        if i % 4 == 0:
            a(f"s_add_u32 m0, s{sM0x}, {1024*i}")
            a(f"s_add_u32 s{sT}, s{sA}, {1024*i}")
        if i == 9:
            a("s_mov_b32 exec_hi, 0")
        if True:
            a(f"buffer_load_dwordx4 v{vL16}, s[{SWS}:{SWS+3}], s{sT} offen offset:{1024*(i&3)} sc1 lds")
    a(f"""
    s_mov_b32 exec_hi, -1
    L_d9:
    s_cmp_eq_u32 s{sN}, 1
    s_cbranch_scc0 L_ncl
    s_lshl_b32 s{sT}, s{sTG}, 3
    s_lshl_b32 s{sT2}, s{sLI}, 1
    s_add_u32 s{sT}, s{sT}, s{sT2}
    s_mul_i32 s{sA}, s{sT}, {OTILE}
    s_mul_i32 s{sT}, s{sP}, {OPAIR}
    s_add_u32 s{sA}, s{sA}, s{sT}
    s_add_u32 s{sA}, s{sA}, {O_OFF}
    s_add_u32 s{sB}, s{sA}, {OTILE}
    v_mov_b32 v{CP}, -1
    v_mov_b32 v{CP+1}, -1
    v_mov_b32 v{CP+2}, -1
    v_mov_b32 v{CP+3}, -1
    buffer_store_dwordx4 {vr(CP,4)}, v{vL16}, s[{SWS}:{SWS+3}], s{sA} offen sc1
    buffer_store_dwordx4 {vr(CP,4)}, v{vL16}, s[{SWS}:{SWS+3}], s{sA} offen offset:1024 sc1
    buffer_store_dwordx4 {vr(CP,4)}, v{vL16}, s[{SWS}:{SWS+3}], s{sB} offen sc1
    buffer_store_dwordx4 {vr(CP,4)}, v{vL16}, s[{SWS}:{SWS+3}], s{sB} offen offset:1024 sc1
    s_mov_b64 exec, 0xffff
    buffer_store_dwordx4 {vr(CP,4)}, v{vL16}, s[{SWS}:{SWS+3}], s{sA} offen offset:2048 sc1
    buffer_store_dwordx4 {vr(CP,4)}, v{vL16}, s[{SWS}:{SWS+3}], s{sB} offen offset:2048 sc1
    s_mov_b64 exec, -1
    L_ncl:
    s_cmp_eq_u32 s{sLI}, 0
    s_cbranch_scc0 L_nfl
    s_cmp_eq_u32 s{sN}, 2
    s_cbranch_scc0 L_n2
    s_lshl_b32 s{sT}, s{sTG}, 12
    s_lshl_b32 s{sT2}, s{sP}, 7
    s_add_u32 s{sT}, s{sT}, s{sT2}
    s_add_u32 s{sT}, s{sT}, {OFLAG_OFF}
    v_mov_b32 v{vT[3]}, 0
    v_mov_b32 v{vF}, s{sNON}
    s_mov_b64 exec, 1
    buffer_store_dword v{vF}, v{vT[3]}, s[{SWS}:{SWS+3}], s{sT} offen sc1
    s_mov_b64 exec, -1
    L_n2:
    s_cmp_eq_u32 s{sN}, 4
    s_cbranch_scc0 L_nfl
    s_and_b32 s{sA}, s2, 7
    v_and_b32 v{vT[5]}, 7, v{vL}
    v_lshlrev_b32 v{vT[4]}, 2, v{vT[5]}
    L_cl:
    s_lshl_b32 s{sT}, s{sA}, 2
    v_mov_b32 v{vT[3]}, s{sT}
    v_mov_b32 v{vF}, 1
    s_mov_b64 exec, 1
    buffer_atomic_add v{vF}, v{vT[3]}, s[{SD}:{SD+3}], 0 offen offset:128 sc0 sc1
    s_mov_b64 exec, -1
    s_waitcnt vmcnt(0)
    v_readfirstlane_b32 s{sB}, v{vF}
    s_nop 3
    s_cmp_lt_u32 s{sB}, 27
    s_cbranch_scc1 L_cl2
    """)
    if STEAL:
        a(f"""
        buffer_load_dword v{vF}, v{vT[4]}, s[{SD}:{SD+3}], 0 offen offset:128 sc1
        s_waitcnt vmcnt(0)
        v_lshl_or_b32 v{vF}, v{vF}, 3, v{vT[5]}
        s_nop 0
        v_readlane_b32 s{sA}, v{vF}, 0
        """)
        for q in range(1, 8):
            a(f"v_readlane_b32 s{sT}, v{vF}, {q}\ns_nop 3\ns_min_u32 s{sA}, s{sA}, s{sT}")
        a(f"""
        s_lshr_b32 s{sT}, s{sA}, 3
        s_and_b32 s{sA}, s{sA}, 7
        s_sub_u32 s{sSPIN}, s{sSPIN}, 1
        s_cselect_b32 s{sT}, 27, s{sT}
        s_cmp_lt_u32 s{sT}, 27
        s_cbranch_scc1 L_cl
        s_mov_b32 s{sSPIN}, {SPIN_LIMIT}
        """)
    a(f"""
    s_movk_i32 s{sB}, 0xff
    L_cl2:
    s_lshl_b32 s{sA}, s{sA}, 8
    s_or_b32 s{sA}, s{sA}, s{sB}
    v_mov_b32 v{vF}, s{sA}
    v_mov_b32 v{vT[3]}, {SYNC + 48}
    ds_write_b32 v{vT[3]}, v{vF}
    s_waitcnt lgkmcnt(0)
    L_nfl:
    s_cmp_eq_u32 s{sN}, 5
    s_cbranch_scc0 L_nw3
    v_mov_b32 v{vT[3]}, {SYNC + 48}
    ds_read_b32 v{vF}, v{vT[3]}
    s_waitcnt lgkmcnt(0)
    """)
    unit_decode(vF)
    a(f"""
    s_cmp_ge_u32 s{sU}, 27
    s_cbranch_scc1 L_on1
    s_lshl_b32 s{sT}, s{sCG}, 7
    v_add_u32 v{vWO}, s{sT}, v{vWO}
    """)
    wo_load(38, 42)
    wo_load(80, 121)
    a(f"""
    L_nw3:
    s_cmp_eq_u32 s{sN}, 6
    s_cbranch_scc0 L_on1
    s_cmp_ge_u32 s{sU}, 27
    s_cbranch_scc1 L_on1
    v_mul_u32_u24 v{vT[3]}, 1152, v{vL}
    s_lshl_b32 s{sT}, s{sCG}, 7
    s_mul_i32 s{sT2}, s{sLI}, {48*1152}
    s_add_u32 s{sT2}, s{sT2}, s{sT}
    s_add_u32 s{sT2}, s{sT2}, {392*1152}
    buffer_load_dword v{vT[4]}, v{vT[3]}, s[{SWB}:{SWB+3}], s{sT2} offen
    s_add_u32 s{sT}, s{sT}, {256*1152}
    buffer_load_dword v{vT[4]}, v{vT[3]}, s[{SWA}:{SWA+3}], s{sT} offen
    """)
    if TLBW:
        a(f"""
        s_mul_i32 s{sT}, s{sTG2}, {256*1152}
        v_lshlrev_b32 v{vT[3]}, 2, v{vT[3]}
        buffer_load_dword v{vT[4]}, v{vT[3]}, s[{SO}:{SO+3}], s{sT} offen
        """)
    a(f"""
    v_and_b32 v{vT[0]}, 31, v{vL}
    v_lshlrev_b32 v{vT[3]}, 7, v{vT[0]}
    v_lshlrev_b32 v{vT[0]}, 2, v{vT[0]}
    s_lshl_b32 s{sB}, s{sTG2}, 12
    s_add_u32 s{sB}, s{sB}, {OFLAG_OFF}
    L_on0:
    buffer_load_dword v{vF}, v{vT[0]}, s[{SD}:{SD+3}], 0 offen sc1
    buffer_load_dword v{vT[4]}, v{vT[3]}, s[{SWS}:{SWS+3}], s{sB} offen sc1
    s_waitcnt vmcnt(0)
    v_cmp_le_i32 vcc, 0, v{vF}
    v_cmp_ne_u32 s[44:45], v{vF}, v{vT[4]}
    s_sub_u32 s{sSPIN}, s{sSPIN}, 1
    s_cbranch_scc1 L_on1
    s_or_b64 vcc, vcc, s[44:45]
    s_cbranch_vccz L_on1
    s_sleep 8
    s_branch L_on0
    L_on1:
    s_waitcnt vmcnt(0)
    """)
    if STAMPS == 1:
        a(f"s_cmp_eq_u32 s{sN}, 0\ns_cbranch_scc0 L_st4")
        stamp(a, 4)
        a("L_st4:")
    if STAMPS == 6:
        a("s_barrier\ns_memtime s[88:89]\ns_waitcnt lgkmcnt(0)")
        for q in range(7):
            a(f"s_cmp_eq_u32 s{sN}, {q}\ns_cselect_b32 s{74+2*q}, s88, s{74+2*q}")
    elif STAMPS == 5:
        a("s_memtime s[88:89]\ns_waitcnt lgkmcnt(0)\ns_barrier\ns_memtime s[90:91]\ns_waitcnt lgkmcnt(0)\ns_sub_u32 s88, s90, s88\ns_add_u32 s88, s88, s72")
        for q in range(7):
            a(f"s_cmp_eq_u32 s{sN}, {q}\ns_cselect_b32 s{74+2*q}, s88, s{74+2*q}")
    else:
        a("s_barrier")
    a(f"""
    s_add_u32 s{sN}, s{sN}, 1
    s_cmp_lt_u32 s{sN}, 7
    s_cbranch_scc1 L_ll
    s_mov_b32 s{sSPIN}, {SPIN_LIMIT}
    s_cmp_ge_u32 s{sU}, 27
    s_cbranch_scc1 L_end
    """)
    wo_load(0, 35)
    wo_load(42, 72)
    wo_load(72, 80)
    a(f"""
    s_mov_b32 s{sMode}, 1
    s_branch L_tail
    """)

    def loader_b7(tag):
        a(f"""
        s_cmp_eq_u32 s{sMode}, 1
        s_cbranch_scc0 L_nb{tag}
        v_and_b32 v12, 7, v{vL}
        v_lshlrev_b32 v12, 2, v12
        v_add_u32 v12, {SYNC}, v12
        L_pg{tag}:
        s_sleep 2
        ds_read_b32 v13, v12
        s_waitcnt lgkmcnt(0)
        v_cmp_gt_u32 vcc, 7, v13
        s_cbranch_vccnz L_pg{tag}
        s_cmp_eq_u32 s{sLI}, 3
        s_cbranch_scc1 L_p3{tag}
        """)
        wo_load(35, 38)
        a(f"L_p3{tag}:")
        wo_load(121, 144)
        a(f"""
        s_lshl_b32 s{sT}, s{sLI}, 2
        s_add_u32 s{sT}, s{sT}, {SYNC + 32}
        v_mov_b32 v12, s{sT}
        v_mov_b32 v13, 1
        s_waitcnt vmcnt(0)
        ds_write_b32 v12, v13
        s_setprio 0
        L_nb{tag}:
        """)
    a.sec("tail")

    vOH = 5
    vWm = [3, 4]; vWh = [8, 9]
    vT = [10, 11, 12, 13, 14, 6]
    vPw, vPr, vOut, vPr2, vDw, vDr = 163, 164, 165, 166, 167, 7
    WF = [32, 40]
    OF = 56
    ACC = [128, 144]

    def omain(i, j):
        return OF + 8 * i + 4 * j
    OHI = OF + 64

    a(f"""
    L_tail:
    s_cmp_ge_u32 s{sU}, 27
    s_cbranch_scc1 L_tnone
    s_cmp_ge_u32 s{sT0}, 8
    s_cbranch_scc1 L_tnone
    s_mov_b32 s{sCur}, -1
    v_lshlrev_b32 v{vOH}, 2, v{vL}
    s_mov_b32 s{sI}, 0
    s_mov_b32 s{sWS}, 0
    s_cmp_eq_u32 s{sMode}, 1
    s_cbranch_scc1 L_issue
    L_round:
    """)
    stamp(a, 5, mode=3)
    a(f"""
    s_cmp_eq_u32 s{sWS}, 1
    s_cbranch_scc1 L_issue
    v_and_b32 v{vT[2]}, 7, v{vL}
    v_lshlrev_b32 v{vT[2]}, 2, v{vT[2]}
    v_add_u32 v{vT[2]}, {SYNC}, v{vT[2]}
    s_mov_b32 s{sWS}, 1
    L_ws1:
    ds_read_b32 v{vT[3]}, v{vT[2]}
    s_waitcnt lgkmcnt(0)
    v_cmp_gt_u32 vcc, 8, v{vT[3]}
    s_cbranch_vccz L_issue
    s_sleep 1
    s_branch L_ws1
    L_issue:
    s_andn2_b32 s{sBt}, 0xff, s{sI}
    s_bcnt1_i32_b32 s{sPd}, s{sBt}
    """)
    for i in range(8):
        a(f"""
        s_bitcmp1_b32 s{sBt}, {i}
        s_cbranch_scc0 L_ni{i}
        s_add_u32 s{sT}, s{sFl}, {i*OPAIR}
        buffer_load_dwordx4 {vr(omain(i,0),4)}, v{vL16}, s[{SWS}:{SWS+3}], s{sT} offen sc1
        buffer_load_dwordx4 {vr(omain(i,1),4)}, v{vL16}, s[{SWS}:{SWS+3}], s{sT} offen offset:1024 sc1
        buffer_load_dword v{OHI+i}, v{vOH}, s[{SWS}:{SWS+3}], s{sT} offen offset:2048 sc1
        L_ni{i}:
        """)
    a(f"""
    s_cmp_eq_u32 s{sMode}, 2
    s_cbranch_scc1 L_pass
    v_and_b32 v{vT[0]}, 31, v{vL}                ; tau
    v_lshrrev_b32 v{vT[1]}, 5, v{vL}             ; h
    v_bfe_u32 v{vT[2]}, v{vL}, 2, 2              ; r
    v_and_b32 v{vT[3]}, 3, v{vL}                 ; c
    v_bfe_u32 v{vT[4]}, v{vL}, 4, 1              ; sub
    v_lshlrev_b32 v{vT[3]}, 3, v{vT[3]}
    v_lshl_add_u32 v{vT[3]}, v{vT[4]}, 5, v{vT[3]}
    s_mul_i32 s{sT}, s{sKQ}, {288*128}
    v_add_u32 v{vT[3]}, s{sT}, v{vT[3]}
    v_lshrrev_b32 v{vT[4]}, 1, v{vT[2]}          ; r>>1
    v_lshl_add_u32 v{vT[5]}, v{vT[1]}, 2, v{vT[2]}
    v_lshl_add_u32 v{vT[5]}, v{vT[5]}, 7, v{vT[3]}
    v_lshl_add_u32 v{vWm[0]}, v{vT[4]}, 6, v{vT[5]}
    v_xor_b32 v{vWm[1]}, 64, v{vWm[0]}
    v_lshl_add_u32 v{vT[5]}, v{vT[4]}, 1, v{vT[1]}
    v_mul_u32_u24 v{vT[5]}, 18, v{vT[5]}
    v_and_b32 v{vT[2]}, 1, v{vT[2]}
    v_add3_u32 v{vT[5]}, v{vT[5]}, v{vT[2]}, 16
    v_lshl_add_u32 v{vT[5]}, v{vT[5]}, 7, v{vT[3]}
    v_lshl_add_u32 v{vWh[0]}, v{vT[1]}, 6, v{vT[5]}
    v_xor_b32 v{vWh[1]}, 64, v{vWh[0]}
    s_lshl_b32 s{sT}, s{sTT}, 13
    s_mul_i32 s{sT2}, s{sKQ}, {288*128}
    s_add_u32 s{sA}, s{sT}, s{sT2}
    v_add_u32 v{vPw}, s{sA}, v{vL16}
    s_lshl_b32 s{sT2}, s{sKQ}, 11
    s_add_u32 s{sA}, s{sT}, s{sT2}
    v_add_u32 v{vPr}, s{sA}, v{vL16}
    v_add_u32 v{vPr2}, {2*288*128}, v{vPr}
    s_lshl_b32 s{sT}, s{sWV}, 2
    s_add_u32 s{sT}, s{sT}, {SYNC + 64}
    v_mov_b32 v{vDw}, s{sT}
    s_sub_u32 s{sT}, s{sT0}, s{sTT}
    s_cmp_eq_u32 s{sT}, 6
    s_cselect_b32 s{sT}, 1, 2
    v_min_u32 v{vDr}, s{sT}, v{vL}
    s_mul_i32 s{sT}, s{sKQ}, 12
    s_add_u32 s{sT}, s{sT}, {SYNC + 64}
    v_lshlrev_b32 v{vDr}, 2, v{vDr}
    v_add_u32 v{vDr}, s{sT}, v{vDr}
    s_lshl_b32 s{sT}, s{sTG2}, 8
    s_lshl_b32 s{sT2}, s{sT0}, 5
    s_add_u32 s{sT}, s{sT}, s{sT2}
    s_mul_i32 s{sOm}, s{sT}, 1152
    s_lshl_b32 s{sT}, s{sCG}, 7
    s_add_u32 s{sOm}, s{sOm}, s{sT}
    s_lshl_b32 s{sT}, s{sKQ}, 5
    s_add_u32 s{sOm}, s{sOm}, s{sT}
    v_mul_u32_u24 v{vOut}, 1152, v{vT[0]}
    v_lshl_add_u32 v{vOut}, v{vT[1]}, 4, v{vOut}
    """)
    for r in range(ACC[0], ACC[0] + 32):
        a(f"v_mov_b32 v{r}, 0")
    loader_b7(0)
    a(f"""
    v_and_b32 v{vT[2]}, 3, v{vL}
    v_lshlrev_b32 v{vT[2]}, 2, v{vT[2]}
    v_add_u32 v{vT[2]}, {SYNC + 32}, v{vT[2]}
    L_wr:
    ds_read_b32 v{vT[3]}, v{vT[2]}
    s_waitcnt lgkmcnt(0)
    v_cmp_eq_u32 vcc, 0, v{vT[3]}
    s_cbranch_vccnz L_wr
    """)
    stamp(a, 3, mode=3)
    a(f"""
    s_mov_b32 s{sMode}, 2
    """)
    stamp(a, 7)
    stamp(a, 4, mode=3)
    a(f"""
    L_pass:
    """)

    def wreads(m, f):
        b = WF[f]
        out = []
        for ct in range(2):
            if m < 16:
                ad = vWm[ct ^ (m & 1)]
                o0 = m * 18 * 128; o1 = o0 + 8 * 128
            else:
                ad = vWh[ct]
                o0 = (m - 16) * 8 * 18 * 128; o1 = o0 + 4 * 18 * 128
            out.append(f"ds_read_b64_tr_b16 {vr(b+4*ct,2)}, v{ad} offset:{o0}")
            out.append(f"ds_read_b64_tr_b16 {vr(b+4*ct+2,2)}, v{ad} offset:{o1}")
        return out

    def two_steps(m0, o0, o1, check=None):
        for r in wreads(m0, 0) + wreads(m0 + 1, 1):
            a(r)
        if check is not None:
            i = check
            a(f"""
            s_sub_u32 s{sPd}, s{sPd}, 1
            s_cmp_lg_u32 s{sPd}, {7-i}
            s_cbranch_scc1 L_sw{i}
            L_bk{i}:
            s_waitcnt vmcnt({3*(7-i)})
            v_max3_u32 v{vT[2]}, v{o0}, v{o0+1}, v{o0+2}
            v_max3_u32 v{vT[3]}, v{o0+3}, v{o1}, v{o1+1}
            v_max3_u32 v{vT[2]}, v{vT[2]}, v{o1+2}, v{o1+3}
            v_max3_u32 v{vT[2]}, v{vT[2]}, v{vT[3]}, v{OHI+i}
            v_cmp_eq_u32 vcc, s{sCur}, v{vT[2]}
            s_cbranch_vccnz L_nc{i}
            s_bitset1_b32 s{sI}, {i}
            """)
        for f, o in ((0, o0), (1, o1)):
            for ct in range(2):
                a(f"s_waitcnt lgkmcnt({6 - 4*f - 2*ct})")
                a(f"v_mfma_f32_32x32x16_bf16 {vr(ACC[ct],16)}, {vr(WF[f]+4*ct,4)}, {vr(o,4)}, {vr(ACC[ct],16)}")

    for i in range(8):
        a(f"s_bitcmp1_b32 s{sBt}, {i}")
        a(f"s_cbranch_scc0 L_nc{i}")
        two_steps(2 * i, omain(i, 0), omain(i, 1), i)
        a(f"L_nc{i}:")
    a(f"""
    s_cmp_eq_u32 s{sI}, 0xff
    s_cbranch_scc1 L_hi
    s_sub_u32 s{sSPIN}, s{sSPIN}, 1
    s_cbranch_scc0 L_round
    s_branch L_hi
    """)
    for i in range(7):
        a(f"""
        L_sw{i}:
        s_cmp_ge_u32 s{sPd}, 2
        s_cbranch_scc1 L_sx{i}
        s_waitcnt vmcnt(0)
        L_sx{i}:
        s_waitcnt vmcnt(6)
        s_branch L_bk{i}
        """)
    a("L_sw7:")
    a("s_branch L_bk7")
    a("L_hi:")
    two_steps(16, OHI, OHI + 4)
    stamp(a, 8)
    stamp(a, 7, mode=3)
    a(f"""
    v_mov_b32 v{vT[2]}, 1
    ds_write_b32 v{vDw}, v{vT[2]}
    L_qs:
    ds_read_b32 v{vT[3]}, v{vDr}
    s_waitcnt lgkmcnt(0)
    v_cmp_eq_u32 vcc, 0, v{vT[3]}
    s_cbranch_vccnz L_qs
    s_nop 4
    """)
    for i in range(8):
        a(f"ds_write_b128 v{vPw}, {vr(ACC[0]+4*i,4)} offset:{1024*i}")
    a("s_waitcnt lgkmcnt(0)")
    a("s_barrier                                    ; BT4")
    stamp(a, 8, True, mode=3)
    for src in range(4):
        for g in range(2):
            a(f"ds_read_b128 {vr(OF+8*src+4*g,4)}, v{vPr if src < 2 else vPr2} offset:{(src&1)*288*128 + g*1024}")
    a("s_waitcnt lgkmcnt(4)")
    for q in range(8):
        a(f"v_add_f32 v{OF+q}, v{OF+q}, v{OF+8+q}")
    a("s_waitcnt lgkmcnt(0)")
    for q in range(8):
        a(f"v_add_f32 v{OF+16+q}, v{OF+16+q}, v{OF+24+q}")
    for q in range(8):
        a(f"v_add_f32 v{OF+q}, v{OF+q}, v{OF+16+q}")
    for i in range(4):
        a(f"v_cvt_pk_bf16_f32 v{WF[0]+i}, v{OF+2*i}, v{OF+2*i+1}")
    a(f"""
    s_nop 1
    v_permlane32_swap_b32 v{WF[0]}, v{WF[0]+2}
    v_permlane32_swap_b32 v{WF[0]+1}, v{WF[0]+3}
    buffer_store_dwordx4 {vr(WF[0],4)}, v{vOut}, s[{SO}:{SO+3}], s{sOm} offen
    """)
    stamp(a, 9, mode=3)
    a(f"""
    s_branch L_end
    L_tnone:
    """)
    loader_b7(1)
    a("""
    s_branch L_end
    """)
    a.sec("end")
    a("L_end:")
    if STAMPS:
        a(f"""
        s_waitcnt vmcnt(0) lgkmcnt(0)
        s_memtime s[92:93]
        s_memrealtime s[98:99]
        s_waitcnt lgkmcnt(0)
        s_mov_b64 exec, 1
        s_lshl_b32 s{sT}, s2, 4
        s_add_u32 s{sT}, s{sT}, s{sWV}
        s_lshl_b32 s{sT}, s{sT}, 6
        s_add_u32 s{sT}, s{sT}, {STAMP_OFF}
        v_mov_b32 v0, 0
        """)
        for n in range(14):
            a(f"v_mov_b32 v1, s{72+2*n}")
            a(f"buffer_store_dword v1, v0, s[{SWS}:{SWS+3}], s{sT} offen offset:{4*n}")
            a("s_nop 0")
    a("""
    L_done:
    s_endpgm
    """)
    return name, NV


def main():
    out = sys.argv[1] if len(sys.argv) > 1 else f"cdna_kernels/{NAME}.s"
    a = Asm()
    k, nv = gen(a)
    hdr = open(f"cdna_kernels/{NAME}.s.ref").read().split("\n")
    hdr = [l for l in hdr if l.startswith(";") and "@launch" not in l]
    txt = "\n".join(hdr) + "\n"
    txt += f"; @launch grid=(256,1,1) block=(768,1,1) lds={LDS_BYTES}\n"
    txt += '.amdgcn_target "amdgcn-amd-amdhsa--gfx950"\n.text\n'
    txt += a.text()
    txt += f""".section .rodata,"a"
.p2align 6
.amdhsa_kernel {k}
  .amdhsa_next_free_vgpr {nv}
  .amdhsa_next_free_sgpr {102 if STAMPS else 72}
  .amdhsa_accum_offset {(nv + 3) // 4 * 4}
  .amdhsa_group_segment_fixed_size 0
  .amdhsa_kernarg_size 80
  .amdhsa_user_sgpr_count 2
  .amdhsa_user_sgpr_kernarg_segment_ptr 1
  .amdhsa_system_sgpr_workgroup_id_x 1
.end_amdhsa_kernel
"""
    open(out, "w").write(txt)


if __name__ == "__main__":
    main()
```

```python
import math, os, struct, sys

NAME = "gated_mix__mha_block__mha_block__prompt"

VH = 320
VG = 2 * VH
TILE = 2048 + 4 * VG
TPAIR = 512 + 2 * TILE
CHUNK = 4 * TPAIR


def toff(t):
    return (t >> 1) * TPAIR + (t & 1) * TILE
KV_OFF = 0
FLAG_OFF = 0x0A00000
OFLAG_OFF = 0x0A20000
O_OFF = 0x0B00000
OPAIR = 2304
OTILE = 32 * OPAIR
WS_USED = 0x1000000
XBYTES = 2048 * 576 * 2
WQKV_BYTES = 576 * 1728 * 2
WO_BYTES = 576 * 576 * 2
CSCALE = (18 ** -0.5) * math.log2(math.e)

STAMPS = int(os.environ.get("STAMPS", "0"))
STAMP_OFF = 0x1000000
if STAMPS:
    WS_USED = 0x1100000
ALIGN = int(os.environ.get("ALIGN", "1"))
STEAL = int(os.environ.get("STEAL", "1"))
TLBW = int(os.environ.get("TLBW", "1"))
DIAG = int(os.environ.get("DIAG", "-1"))
PRIOI = int(os.environ.get("PRIOI", "6"))
VMASK = int(os.environ.get("VMASK", "1"))
VPOS = int(os.environ.get("VPOS", "3"))
CLAIM = int(os.environ.get("CLAIM", "4"))
LEARLY = int(os.environ.get("LEARLY", "0"))
CPF = int(os.environ.get("CPF", "1"))
DPF = int(os.environ.get("DPF", "4"))

G_SLOT = 49152
LDS_BYTES = 163840
SCR = CHUNK
SCR_N = SCR + 3072
SYNC = LDS_BYTES - 1024
RING = [0, SYNC - CHUNK, CHUNK + 4096]
SPIN_LIMIT = 1 << 19


def f32bits(x):
    return struct.unpack("<I", struct.pack("<f", x))[0]


class Asm:
    def __init__(self):
        self.secs = {"entry": []}
        self.lines = self.secs["entry"]
        self.nlab = 0

    def sec(self, name):
        self.lines = self.secs.setdefault(name, [])

    def __call__(self, s):
        for ln in s.strip("\n").split("\n"):
            ln = ln.strip()
            if not ln:
                continue
            if ln.endswith(":") or ln.startswith("."):
                self.lines.append(ln)
            else:
                self.lines.append("    " + ln)

    def label(self, base="L"):
        self.nlab += 1
        return f"{base}_{self.nlab}"

    def text(self):
        order = ["entry", "loader", "compute", "tail", "exact", "end"]
        assert sorted(order) == sorted(self.secs)
        return "\n".join("\n".join(self.secs[k]) for k in order) + "\n"


def isize(ln):
    t = ln.split(";")[0].strip()
    if not t or t.endswith(":"):
        return 0
    op = t.split()[0]
    if op.startswith(("v_mfma", "v_smfmac", "ds_", "buffer_")) or op.endswith("_e64"):
        return 8
    assert op in ("v_exp_f32", "v_add_u32", "v_mov_b32") or op.startswith("s_"), t
    assert "0x" not in t, t
    return 4


def align8(lines):
    out, off = [], 0
    for ln in lines:
        n = isize(ln)
        if n == 8 and off % 8:
            o = off
            for k in range(len(out) - 1, -1, -1):
                m = isize(out[k])
                if m == 8:
                    k = -1
                    break
                o -= m
                if m == 4 and o % 8 == 0 and out[k].split()[0] == "v_exp_f32":
                    out[k] = out[k].replace("v_exp_f32", "v_exp_f32_e64")
                    break
            else:
                k = -1
            if k != -1:
                off += 4
        out.append(ln)
        off += n
    return out


def vr(b, n):
    return f"v[{b}:{b+n-1}]"


def stamp(a, n, wait=False, mode=1):
    if STAMPS == mode:
        a(f"{'s_memtime' if mode == 1 else 's_memrealtime'} s[{72+2*n}:{73+2*n}]")
        if wait:
            a("s_waitcnt lgkmcnt(0)")


def gen(a):
    name = NAME + "_kernel"
    a(f"""
.globl {name}
.p2align 8
.type {name},@function
{name}:
""")
    SX, SW, SWS, SG, SD = 4, 8, 12, 16, 52
    SWA, SWB, SO = 4, 8, 16
    sW_, sP, sTG, sWV, sJ, sTP = 20, 21, 22, 23, 24, 25
    sXb, sWb, sM0x, sM0w, sA, sB, sT, sT2 = 26, 27, 28, 29, 30, 31, 32, 33
    sMASK = 34
    sKVp, sC, sN, sRS = 36, 37, 38, 39
    sDl, sU, sOm, sOh = 56, 57, 58, 59
    sNON, sRDY, sFB, sSPIN = 60, 61, 62, 63
    sCG, sT0, sTT, sKQ, sTG2 = 64, 65, 66, 67, 68
    sC2 = 70
    sD3 = 48
    sLI = sWV
    vL, vL16 = 1, 2
    NV = 168
    a(f"""
    s_cmp_ge_u32 s2, 256
    s_cbranch_scc1 L_done
    """)
    if STAMPS:
        a("s_memtime s[72:73]\ns_memrealtime s[96:97]")
    a(f"""
    s_load_dwordx2 s[{SX}:{SX+1}], s[0:1], 0            ; x
    s_bitcmp1_b32 s2, 2
    s_cselect_b32 s{sT}, 32, 8
    s_load_dwordx2 s[{SW}:{SW+1}], s[0:1], s{sT}
    s_load_dwordx2 s[{SG}:{SG+1}], s[0:1], 48           ; gate_w
    s_load_dwordx2 s[{SD}:{SD+1}], s[0:1], 64           ; debug
    s_load_dwordx2 s[{SWS}:{SWS+1}], s[0:1], 72         ; ws
    """)
    if CPF:
        a(f"""
        s_getpc_b64 s[{sA}:{sA+1}]
        v_subrev_u32 v10, 256, v0
        v_lshlrev_b32 v10, 7, v10
        v_cmp_gt_u32 vcc, L_done - {name} - 64, v10
        s_and_saveexec_b64 s[{sT}:{sT+1}], vcc
        s_cbranch_execz L_cpf
        global_load_dword v7, v10, s[{sA}:{sA+1}]
        L_cpf:
        s_mov_b64 exec, -1
        """)
    a(f"""
    v_lshrrev_b32 v10, 6, v0
    v_and_b32 v{vL}, 63, v0
    s_bfe_u32 s{sTG}, s2, 0x30003
    v_readfirstlane_b32 s{sWV}, v10
    s_and_b32 s{sP}, s2, 7
    s_lshl_b32 s{sP}, s{sP}, 2
    s_lshr_b32 s{sT2}, s2, 6
    s_add_u32 s{sP}, s{sP}, s{sT2}
    s_mov_b32 s{SX+2}, {XBYTES}
    s_mov_b32 s{SX+3}, 0x00020000
    s_mov_b32 s{SW+3}, s{SX+3}
    s_mov_b32 s{SG+3}, s{SX+3}
    s_mov_b32 s{SD+3}, s{SX+3}
    s_mov_b32 s{SWS+3}, s{SX+3}
    s_cmp_lt_u32 s{sWV}, 4
    s_cbranch_scc0 L_compute
    v_lshrrev_b32 v12, 3, v{vL}
    v_mul_u32_u24 v12, 1152, v12
    v_lshrrev_b32 v13, 4, v{vL}
    v_and_b32 v14, 7, v{vL}
    v_xor_b32 v14, v14, v13
    v_lshl_add_u32 v3, v14, 4, v12
    v_xor_b32 v14, 4, v14
    v_lshl_add_u32 v4, v14, 4, v12
    v_add_u32 v4, {8*1152}, v4
    s_lshl_b32 s{sT}, s{sTG}, 2
    s_add_u32 s{sT}, s{sT}, s{sLI}
    s_mul_i32 s{sXb}, s{sT}, {64*1152}
    s_lshl_b32 s{sM0x}, s{sLI}, 13
    s_waitcnt lgkmcnt(0)
    """)

    def common():
        a(f"""
        s_mov_b32 s{SW+2}, {WQKV_BYTES}
        s_movk_i32 s{SG+2}, 1152
        s_movk_i32 s{SD+2}, 256
        s_mov_b32 s{SWS+2}, {WS_USED}
        v_lshlrev_b32 v{vL16}, 4, v{vL}
        s_mul_i32 s{sKVp}, s{sP}, {8*CHUNK}
        s_mul_i32 s{sKQ}, s{sWV}, 43
        s_lshr_b32 s{sKQ}, s{sKQ}, 7
        s_mul_i32 s{sT}, s{sKQ}, 3
        s_sub_u32 s{sTT}, s{sWV}, s{sT}
        s_mov_b32 s{sSPIN}, {SPIN_LIMIT}
        """)

    sFl, sI, sPd, sBt, sCur, sMode, sWS = 69, 40, 41, 42, 43, 39, 3

    def unit_decode(v):
        a(f"""
        v_readfirstlane_b32 s{sU}, v{v}
        s_nop 3
        s_lshr_b32 s{sTG2}, s{sU}, 8
        s_and_b32 s{sTG2}, s{sTG2}, 7
        s_and_b32 s{sU}, s{sU}, 0xff
        s_lshr_b32 s{sCG}, s{sU}, 1
        s_and_b32 s{sT0}, s{sU}, 1
        s_mul_i32 s{sT0}, s{sT0}, 3
        s_sub_u32 s{sT}, s{sU}, 18
        s_cmp_ge_u32 s{sU}, 18
        s_cselect_b32 s{sCG}, s{sT}, s{sCG}
        s_cselect_b32 s{sT0}, 6, s{sT0}
        s_add_u32 s{sT0}, s{sT0}, s{sTT}
        s_lshl_b32 s{sT}, s{sTG2}, 3
        s_add_u32 s{sT}, s{sT}, s{sT0}
        s_mul_i32 s{sFl}, s{sT}, {OTILE}
        s_mul_i32 s{sT}, s{sKQ}, {8*OPAIR}
        s_add_u32 s{sFl}, s{sFl}, s{sT}
        s_add_u32 s{sFl}, s{sFl}, {O_OFF}
        """)

    vK, vKH, vV, vIDX = 3, 4, 5, 6
    vG = [8, 9]
    vT = [10, 11, 12, 13, 14, 15]
    Qa, Qb = 16, 20
    QH = 24
    Kb = 32
    KHb = [40, 42]
    V0b = [44, 48]
    V1b = [52, 56]
    Oa, Ob = 64, 80
    S = [96, 128]
    vXr = [16, 17, 18, 19]; vWr = [20, 21]
    vXr2 = [22, 23, 24, 25]; vWr2 = [26, 27]
    vU = list(range(32, 48))
    F = [32, 48]
    A0, A1, B0, B1 = 96, 112, 128, 144
    vN = 8
    eK, eR, e0, e1, e2, e3, e4 = 160, 161, 162, 163, 164, 165, 166

    a.sec("compute")
    a("L_compute:")
    common()
    a(f"""
    s_sub_u32 s{sW_}, s{sWV}, 4
    s_lshr_b32 s{sJ}, s{sW_}, 2
    s_and_b32 s{sTP}, s{sW_}, 3
    s_waitcnt lgkmcnt(0)
    s_load_dwordx2 s[{SO}:{SO+1}], s[0:1], 56    ; out
    s_mov_b32 s{SO+2}, {XBYTES}
    """)
    if DPF:
        a(f"""
        s_cmp_eq_u32 s{sW_}, 0
        s_cbranch_scc0 L_dpfa
        v_and_b32 v{vT[5]}, 1, v{vL}
        v_bfe_u32 v{vT[4]}, v{vL}, 1, 3
        v_mul_u32_u24 v{vT[4]}, 1152, v{vT[4]}
        v_lshl_add_u32 v{vT[5]}, v{vT[5]}, 7, v{vT[4]}
        s_mul_i32 s{sT}, s2, {8*1152}
        s_mov_b64 exec, 0xffff
        buffer_load_dword v7, v{vT[5]}, s[{SX}:{SX+3}], s{sT} offen offset:256
        s_mov_b64 exec, -1
        L_dpfa:
        s_cmp_eq_u32 s{sW_}, 1
        s_cbranch_scc0 L_dpfb
        v_lshlrev_b32 v{vT[5]}, 7, v{vL}
        s_and_b32 s{sT}, s{sP}, 15
        s_lshl_b32 s{sT}, s{sT}, 3
        s_add_u32 s{sT}, s{sT}, s{sTG}
        s_mul_i32 s{sT}, s{sT}, 3456
        s_add_u32 s{sT}, s{sT}, {128*3456}
        s_mov_b64 exec, 0x7ffffff
        buffer_load_dword v7, v{vT[5]}, s[{SW}:{SW+3}], s{sT} offen
        s_mov_b64 exec, -1
        L_dpfb:
        """)
    a(f"""
    s_cmp_eq_u32 s{sW_}, 3
    s_cbranch_scc0 L_nn0
    s_lshl_b32 s{sT}, s{sP}, 12
    s_add_u32 s{sT}, s{sT}, {FLAG_OFF}
    v_lshlrev_b32 v{vN}, 7, v{vL}
    v_add_u32 v{vN}, s{sT}, v{vN}
    v_and_b32 v{vN+1}, 7, v{vL}
    v_lshlrev_b32 v{vN+1}, 12, v{vN+1}
    s_lshl_b32 s{sT}, s{sP}, 7
    s_add_u32 s{sT}, s{sT}, {OFLAG_OFF}
    v_cmp_gt_u32 vcc, 32, v{vL}
    v_add_u32 v{vN+1}, s{sT}, v{vN+1}
    s_nop 0
    v_cndmask_b32 v{vN}, v{vN+1}, v{vN}, vcc
    buffer_load_dword v{vN+1}, v{vN}, s[{SWS}:{SWS+3}], 0 offen sc1
    L_nn0:
    """)
    a(f"""
    v_and_b32 v{vU[0]}, 31, v{vL}                ; tau
    v_lshrrev_b32 v{vU[1]}, 5, v{vL}             ; h
    s_lshl_b32 s{sT}, s{sTP}, 13
    v_lshlrev_b32 v{vU[2]}, 7, v{vU[0]}
    v_add_u32 v{vU[2]}, s{sT}, v{vU[2]}
    v_bfe_u32 v{vU[3]}, v{vU[0]}, 1, 3
    v_xor_b32 v{vU[3]}, v{vU[3]}, v{vU[1]}
    """)
    for ks in range(4):
        a(f"""
        v_xor_b32 v{vU[4]}, {2*ks}, v{vU[3]}
        v_lshl_add_u32 v{vXr[ks]}, v{vU[4]}, 4, v{vU[2]}
        v_add_u32 v{vXr2[ks]}, {2*G_SLOT}, v{vXr[ks]}
        """)
    a(f"""
    v_bfe_u32 v{vU[2]}, v{vL}, 2, 2              ; r
    v_lshl_add_u32 v{vU[3]}, v{vU[1]}, 3, v{vU[2]}
    v_lshlrev_b32 v{vU[3]}, 8, v{vU[3]}
    v_add_u32 v{vU[3]}, 32768, v{vU[3]}
    v_and_b32 v{vU[4]}, 3, v{vL}                 ; c
    v_bfe_u32 v{vU[5]}, v{vL}, 4, 1              ; sub
    v_lshl_add_u32 v{vU[6]}, v{vU[5]}, 2, v{vU[4]}
    v_lshl_add_u32 v{vU[7]}, v{vU[6]}, 3, v{vU[3]}
    v_xor_b32 v{vWr[0]}, s{sJ}, v{vU[2]}
    v_lshl_add_u32 v{vWr[0]}, v{vWr[0]}, 6, v{vU[7]}
    v_cmp_eq_u32 vcc, 2, v{vU[4]}
    v_lshlrev_b32 v{vU[6]}, 4, v{vU[4]}
    v_mov_b32 v{vU[8]}, 40
    v_cndmask_b32 v{vU[6]}, v{vU[6]}, v{vU[8]}, vcc
    v_cmp_eq_u32 vcc, 1, v{vU[5]}
    v_mov_b32 v{vU[8]}, 56
    s_nop 0
    v_cndmask_b32 v{vU[5]}, v{vU[6]}, v{vU[8]}, vcc
    v_add_u32 v{vU[5]}, v{vU[5]}, v{vU[3]}
    s_cmp_eq_u32 s{sJ}, 1
    s_cselect_b64 vcc, -1, 0
    s_add_u32 s{sT}, s{sJ}, 2
    v_cndmask_b32 v{vU[7]}, v{vU[7]}, v{vU[5]}, vcc
    v_xor_b32 v{vWr[1]}, s{sT}, v{vU[2]}
    v_lshl_add_u32 v{vWr[1]}, v{vWr[1]}, 6, v{vU[7]}
    v_add_u32 v{vWr2[0]}, {2*G_SLOT}, v{vWr[0]}
    v_add_u32 v{vWr2[1]}, {2*G_SLOT}, v{vWr[1]}
    """)
    for r in range(Oa, A0 + 64):
        a(f"v_mov_b32 v{r}, 0")
    a(f"""
    s_lshl_b32 s{sT}, s{sJ}, 10
    s_add_u32 s{sT}, s{sT}, 512
    v_add_u32 v{vK}, s{sT}, v{vL16}
    v_lshlrev_b32 v{vKH}, 2, v{vL}
    s_lshl_b32 s{sT2}, s{sJ}, 8
    v_add_u32 v{vKH}, s{sT2}, v{vKH}
    v_mov_b32 v{vU[2]}, 4
    v_cmp_gt_u32 vcc, 19, v{vU[0]}
    v_mov_b32 v{vU[3]}, 19
    s_nop 0
    v_cndmask_b32 v{vU[2]}, v{vU[2]}, v{vU[0]}, vcc
    v_cmp_eq_u32 vcc, 4, v{vU[0]}
    v_mul_u32_u24 v{vU[4]}, {VH}, v{vU[1]}
    s_mul_i32 s{sT2}, s{sJ}, {2*VG}
    s_add_u32 s{sT2}, s{sT2}, 2560
    v_cndmask_b32 v{vU[2]}, v{vU[2]}, v{vU[3]}, vcc
    v_lshl_add_u32 v{vV}, v{vU[2]}, 4, v{vU[4]}
    v_add_u32 v{vV}, s{sT2}, v{vV}
    v_mov_b32 v{vIDX}, 0xdddddddd
    s_lshl_b32 s{sT}, s{sTG}, 3
    s_lshl_b32 s{sT2}, s{sTP}, 1
    s_add_u32 s{sT}, s{sT}, s{sT2}
    s_mul_i32 s{sA}, s{sT}, {OTILE}
    s_mul_i32 s{sT}, s{sP}, {OPAIR}
    s_add_u32 s{sA}, s{sA}, s{sT}
    s_add_u32 s{sA}, s{sA}, {O_OFF}
    s_lshl_b32 s{sT}, s{sJ}, 10
    s_add_u32 s{sOm}, s{sA}, s{sT}
    s_lshl_b32 s{sT}, s{sJ}, 7
    s_add_u32 s{sOh}, s{sA}, s{sT}
    s_mov_b32 s{sD3}, {(RING[1]-RING[0]) & 0xffffffff:#x}
    s_mov_b32 s{sD3+1}, {(RING[2]-RING[1]) & 0xffffffff:#x}
    s_mov_b32 s{sD3+2}, {(RING[0]-RING[2]) & 0xffffffff:#x}
    s_mov_b32 s{sC2}, {f32bits(CSCALE):#x}
    s_mov_b32 s{sC2+1}, {f32bits(CSCALE):#x}
    v_and_b32 v{vU[2]}, 0x13, v{vU[0]}
    v_and_b32 v{vU[3]}, 4, v{vU[0]}
    v_lshl_or_b32 v{vU[2]}, v{vU[3]}, 1, v{vU[2]}
    v_and_b32 v{vU[3]}, 8, v{vU[0]}
    v_lshrrev_b32 v{vU[3]}, 1, v{vU[3]}
    v_or_b32 v{vU[2]}, v{vU[2]}, v{vU[3]}        ; kappa
    s_lshl_b32 s{sT}, s{sJ}, 10
    s_mul_i32 s{sB}, s{sTP}, {TPAIR}
    s_add_u32 s{sT}, s{sT}, s{sB}
    s_add_u32 s{sT}, s{sT}, 512
    v_lshlrev_b32 v{eK}, 9, v{vU[1]}
    v_lshl_add_u32 v{eK}, v{vU[2]}, 4, v{eK}
    v_add_u32 v{eK}, s{sT}, v{eK}
    s_lshl_b32 s{sT}, s{sTP}, 8
    s_add_u32 s{sT}, s{sT}, {SCR}
    v_lshlrev_b32 v{eR}, 2, v{vU[0]}
    v_add_u32 v{eR}, s{sT}, v{eR}
    s_cmp_eq_u32 s{sJ}, 1
    s_cbranch_scc1 L_a1
    v_subrev_u32 v{vU[3]}, 18, v{vU[0]}
    v_cmp_le_u32 vcc, 18, v{vU[0]}
    v_mov_b32 v{vU[5]}, {2*VG}
    v_mov_b32 v{vU[6]}, 19
    v_cndmask_b32 v{vU[3]}, v{vU[0]}, v{vU[3]}, vcc
    v_cndmask_b32 v{vU[5]}, 0, v{vU[5]}, vcc
    v_cmp_eq_u32 vcc, 4, v{vU[3]}
    s_add_u32 s{sT}, s{sB}, 2560
    s_nop 0
    v_cndmask_b32 v{vU[3]}, v{vU[3]}, v{vU[6]}, vcc
    v_lshl_add_u32 v{e0}, v{vU[3]}, 4, v{vU[5]}
    v_add3_u32 v{e0}, v{e0}, v{vU[4]}, s{sT}
    s_branch L_a2
    L_a1:
    v_lshlrev_b32 v{e0}, 2, v{vU[2]}
    v_add_u32 v{e0}, s{sB}, v{e0}
    v_cmp_eq_u32 vcc, 1, v{vU[1]}
    v_add_u32 v{vU[5]}, 256, v{e0}
    v_add_u32 v{vU[6]}, 1024, v{eR}
    v_cndmask_b32 v{e0}, v{e0}, v{eR}, vcc
    v_cndmask_b32 v{e1}, v{vU[5]}, v{vU[6]}, vcc
    v_mov_b32 v{vU[5]}, 1.0
    v_mov_b32 v{vU[6]}, s{sC2}
    v_cndmask_b32 v{e2}, v{vU[5]}, v{vU[6]}, vcc
    v_lshrrev_b32 v{vU[3]}, 3, v{vU[2]}
    v_mul_u32_u24 v{vU[3]}, {VH}, v{vU[3]}
    v_and_b32 v{vU[5]}, 7, v{vU[2]}
    v_lshl_add_u32 v{e3}, v{vU[5]}, 1, v{vU[3]}
    s_add_u32 s{sT}, s{sB}, {2560 + 2*VG}
    v_add_u32 v{e3}, s{sT}, v{e3}
    L_a2:
    s_lshl_b32 s{sT}, s{sJ}, 10
    v_lshl_add_u32 v{e4}, v{vU[1]}, 7, v{eR}
    v_add_u32 v{e4}, s{sT}, v{e4}
    s_mov_b32 s{sMASK}, 0x7ffff
    s_mov_b32 s{sMASK+1}, 0x7ffff
    s_lshl_b32 s{sT}, s{sW_}, 2
    s_add_u32 s{sT}, s{sT}, {SYNC}
    v_mov_b32 v167, s{sT}
    """)
    a("s_waitcnt lgkmcnt(0)")
    if TLBW:
        a(f"""
        s_cmp_eq_u32 s{sW_}, 2
        s_cbranch_scc0 L_tlb
        v_lshlrev_b32 v{vT[5]}, 20, v{vL}
        s_lshl_b32 s{sT}, s2, 7
        s_mov_b64 exec, 0xffff
        buffer_load_dword v7, v{vT[5]}, s[{SWS}:{SWS+3}], s{sT} offen sc1
        s_mov_b64 exec, 7
        buffer_load_dword v7, v{vT[5]}, s[{SO}:{SO+3}], s{sT} offen
        s_mov_b64 exec, -1
        L_tlb:
        """)
    a(f"""
    s_cmp_eq_u32 s{sW_}, 3
    s_cbranch_scc0 L_nn1
    s_mov_b32 s44, -1
    s_movk_i32 s45, 0xff
    s_brev_b32 s{sA}, 1
    s_waitcnt vmcnt(0)
    """)
    for b in range(6):
        a(f"""
        v_and_b32 v{vN}, {1 << b}, v{vN+1}
        v_cmp_ne_u32 vcc, 0, v{vN}
        s_nop 0
        s_and_b64 s[46:47], s[44:45], vcc
        s_andn2_b64 s[44:45], s[44:45], vcc
        s_bcnt1_i32_b64 s{sT}, s[46:47]
        s_bcnt1_i32_b64 s{sT2}, s[44:45]
        s_cmp_lt_u32 s{sT}, s{sT2}
        s_cselect_b64 s[44:45], s[46:47], s[44:45]
        s_cselect_b32 s{sT}, {1 << b}, 0
        s_or_b32 s{sA}, s{sA}, s{sT}
        """)
    a(f"""
    v_mov_b32 v{vN}, s{sA}
    v_mov_b32 v{vN+1}, 0
    v_mov_b32 v{vN+2}, s{sA}
    s_lshl_b32 s{sT}, s{sP}, 2
    v_mov_b32 v{vN+3}, s{sT}
    s_mov_b64 exec, 1
    buffer_atomic_cmpswap v[{vN}:{vN+1}], v{vN+3}, s[{SD}:{SD+3}], 0 offen sc0 sc1
    s_mov_b64 exec, -1
    L_nn1:
    """)

    def reads(n, ks, f):
        s = n % 3
        xr = vXr2 if s == 2 else vXr
        wr = vWr2 if s == 2 else vWr
        so = G_SLOT if s == 1 else 0
        b = F[f]
        wo = so + ks * 16 * 256
        return [
            f"ds_read_b128 {vr(b,4)}, v{xr[ks]} offset:{so}",
            f"ds_read_b64_tr_b16 {vr(b+8,2)}, v{wr[0]} offset:{wo}",
            f"ds_read_b64_tr_b16 {vr(b+10,2)}, v{wr[0]} offset:{wo+1024}",
            f"ds_read_b128 {vr(b+4,4)}, v{xr[ks]} offset:{so+4096}",
            f"ds_read_b64_tr_b16 {vr(b+12,2)}, v{wr[1]} offset:{wo}",
            f"ds_read_b64_tr_b16 {vr(b+14,2)}, v{wr[1]} offset:{wo+1024}",
        ]

    def mfmas(f, j):
        b = F[f]
        X0, X1, Wa, Wb = vr(b, 4), vr(b + 4, 4), vr(b + 8, 4), vr(b + 12, 4)
        m = [f"v_mfma_f32_32x32x16_bf16 {vr(A0,16)}, {Wa}, {X0}, {vr(A0,16)}",
             f"v_mfma_f32_32x32x16_bf16 {vr(A1,16)}, {Wa}, {X1}, {vr(A1,16)}"]
        if j == 0:
            m += [f"v_mfma_f32_32x32x16_bf16 {vr(B0,16)}, {X0}, {Wb}, {vr(B0,16)}",
                  f"v_mfma_f32_32x32x16_bf16 {vr(B1,16)}, {X1}, {Wb}, {vr(B1,16)}"]
        else:
            m += [f"v_mfma_f32_32x32x16_bf16 {vr(B0,16)}, {Wb}, {X0}, {vr(B0,16)}",
                  f"v_mfma_f32_32x32x16_bf16 {vr(B1,16)}, {Wb}, {X1}, {vr(B1,16)}"]
        x = int(os.environ.get("XDROP", "0"))
        if x == 1 and j == 1:
            m[3] = "s_nop 0"
        if x == 2:
            m[3] = "s_nop 0"
        if x == 4:
            m[1] = m[3] = "s_nop 0"
        return m

    a("s_barrier")
    stamp(a, 1, True)
    stamp(a, 1, True, mode=4)
    for r in reads(0, 0, 0):
        a(r)
    a(f"""
    s_mov_b32 s{sN}, 0
    s_cmp_eq_u32 s{sJ}, 1
    s_cbranch_scc1 L_g1
    """)
    for j in range(2):
        a(f"L_g{j}:")
        for n in range(3):
            for ks in range(3):
                for r in reads(n, ks + 1, (ks + 1) & 1):
                    a(r)
                a("s_waitcnt lgkmcnt(6)")
                for m in mfmas(ks & 1, j):
                    a(m)
            a("s_waitcnt lgkmcnt(0)")
            if n == 2:
                a(f"""
                s_add_u32 s{sN}, s{sN}, 1
                s_cmp_eq_u32 s{sN}, 3
                s_cbranch_scc1 L_ge{j}
                """)
            a("s_barrier")
            for r in reads(n + 1, 0, 0):
                a(r)
            for m in mfmas(1, j):
                a(m)
        a(f"s_branch L_g{j}")
        a(f"L_ge{j}:")
        for m in mfmas(1, j):
            a(m)
        stamp(a, 2)
        stamp(a, 2, mode=4)
        a(f"""
        v_mov_b32 v{KHb[0]+1}, 0x3f803f80
        v_mov_b32 v{KHb[1]+1}, 0x3f803f80
        v_mov_b32 v{V0b[0]}, 0
        v_mov_b32 v{V0b[0]+1}, 0
        v_mov_b32 v{V0b[0]+2}, 0
        v_mov_b32 v{V0b[0]+3}, 0
        s_mov_b32 s{sN}, 0
        s_mov_b32 s{sFB}, 0
        s_nop 0
        """)
        for t, A in enumerate((A0, A1)):
            for i in range(4):
                a(f"v_cvt_pk_bf16_f32 v{A+i}, v{A+2*i}, v{A+2*i+1}")
            a(f"ds_write_b128 v{eK}, {vr(A,4)} offset:{TILE*t}")
        if j == 0:
            for t, B in enumerate((B0, B1)):
                for i in range(8):
                    a(f"v_cvt_pk_bf16_f32 v{B+i}, v{B+2*i}, v{B+2*i+1}")
                for u in range(2):
                    a(f"ds_write_b128 v{e0}, {vr(B+4*u,4)} offset:{t*TILE + u*VG}")
            a(f"""
            s_cmp_eq_u32 s{sW_}, 3
            s_cbranch_scc0 L_nn2
            s_waitcnt vmcnt(0)
            v_cmp_eq_u32 vcc, 0, v{vN}
            v_mov_b32 v{vN+3}, {SCR_N}
            s_nop 0
            v_cndmask_b32 v{vN}, v{vN}, v{vN+2}, vcc
            s_mov_b64 exec, 1
            ds_write_b32 v{vN+3}, v{vN}
            s_mov_b64 exec, -1
            L_nn2:
            s_branch L_ep
            """)
        else:
            a(f"""
            s_mov_b32 exec_lo, 0
            ds_write_b32 v{eR}, v{B0+4} offset:2048
            ds_write_b32 v{eR}, v{B1+4} offset:{2048+128}
            s_mov_b32 exec_lo, -1
            """)
            for t, B in enumerate((B0, B1)):
                for i in range(4):
                    a(f"v_mul_f32 v{B+i}, v{e2}, v{B+i}")
                for i in range(4):
                    a(f"v_cvt_pk_bf16_f32 v{B+8+i}, v{B+2*i}, v{B+2*i+1}")
                a(f"ds_write_b32 v{e0}, v{B+8} offset:{128*t}")
                a(f"ds_write_b32 v{e1}, v{B+9} offset:{128*t}")
            a("s_mov_b32 exec_hi, 0")
            for t, B in enumerate((B0, B1)):
                o = t * TILE + 14 * 16
                a(f"ds_write_b16 v{e3}, v{B+10} offset:{o}")
                a(f"ds_write_b16_d16_hi v{e3}, v{B+10} offset:{o+16}")
                a(f"ds_write_b16 v{e3}, v{B+11} offset:{o+32}")
                a(f"ds_write_b16_d16_hi v{e3}, v{B+11} offset:{o+48}")
            a("s_mov_b32 exec_hi, -1")
    a("L_ep:")
    for t, (A, Q) in enumerate(((A0, Qa), (A1, Qb))):
        for i in range(4):
            a(f"v_pk_mul_f32 {vr(A+8+2*i,2)}, {vr(A+8+2*i,2)}, s[{sC2}:{sC2+1}]")
        for i in range(4):
            a(f"v_cvt_pk_bf16_f32 v{Q+i}, v{A+8+2*i}, v{A+8+2*i+1}")


    def qk(dst, kb, q, acc=True):
        return f"v_mfma_f32_32x32x16_bf16 {vr(dst,16)}, {vr(kb,4)}, {vr(q,4)}, {vr(dst,16) if acc else 0}"

    def qkh(dst, khb, par):
        return f"v_mfma_f32_32x32x4_2b_bf16 {vr(dst,32)}, {vr(khb,2)}, {vr(QH,2)}, 0 cbsz:1 abid:{par}"

    def pv(o, vb, p):
        return f"v_smfmac_f32_32x32x32_bf16 {vr(o,16)}, {vr(vb,4)}, {vr(p,8)}, v{vIDX}"

    def vread(t, buf):
        if not VMASK:
            return f"""
            ds_read_b128 {vr(V0b[buf],4)}, v{vV} offset:{toff(t)}
            ds_read_b128 {vr(V1b[buf],4)}, v{vV} offset:{toff(t) + VG}
            """
        return f"""
        s_mov_b64 exec, s[{sMASK}:{sMASK+1}]
        ds_read_b128 {vr(V0b[buf],4)}, v{vV} offset:{toff(t)}
        ds_read_b128 {vr(V1b[buf],4)}, v{vV} offset:{toff(t) + VG}
        s_mov_b64 exec, -1
        """

    a(f"v_cmp_gt_u32 vcc, 32, v{vL}")
    for r in range(V0b[1], V1b[1] + 4):
        a(f"v_mov_b32 v{r}, 0")
    a("s_waitcnt vmcnt(0) lgkmcnt(0)")
    X, Y = S
    a(qk(Y, A0, Qa, False)); a(qk(Y + 16, A0, Qb, False))
    a("s_barrier")
    stamp(a, 3, True)
    a(f"""
    ds_read_b32 v{vG[0]}, v{eR} offset:2048
    ds_read_b32 v{vG[1]}, v{eR} offset:{2048+128}
    ds_read_b32 v{KHb[0]}, v{vKH}
    ds_read_b32 v{QH}, v{e4}
    ds_read_b128 {vr(Kb,4)}, v{vK}
    """)
    a(vread(0, 0))
    a(f"""
    s_mov_b32 s{sT}, {f32bits(-math.log2(math.e)):#x}
    s_cmp_ge_u32 s{sP}, 16
    s_cselect_b32 s{sT}, {f32bits(math.log2(math.e)):#x}, s{sT}
    s_nop 0
    """)
    for t in range(2):
        b = Y + 16 * t
        a(f"v_max3_f32 v{vT[t]}, v{b}, v{b+1}, v{b+2}")
        for i in range(3, 9, 2):
            a(f"v_max3_f32 v{vT[t]}, v{vT[t]}, v{b+i}, v{b+i+1}")
    a(f"""
    v_cndmask_b32 v{vT[0]}, v{vT[1]}, v{vT[0]}, vcc
    v_lshrrev_b32 v{vT[0]}, 16, v{vT[0]}
    v_xor_b32 v{QH+1}, 0x8000, v{vT[0]}
    s_waitcnt lgkmcnt(3)
    v_mul_f32 v{vG[0]}, s{sT}, v{vG[0]}
    """)
    a(qkh(X, KHb[0], 0))
    a(f"""
    v_mul_f32 v{vG[1]}, s{sT}, v{vG[1]}
    v_exp_f32 v{vG[0]}, v{vG[0]}
    v_exp_f32 v{vG[1]}, v{vG[1]}
    """)
    for r in range(Y + 24, Y + 32):
        a(f"v_mov_b32 v{r}, 0")
    a(f"""
    v_add_f32 v{vG[0]}, 1.0, v{vG[0]}
    v_add_f32 v{vG[1]}, 1.0, v{vG[1]}
    v_rcp_f32 v{vG[0]}, v{vG[0]}
    v_rcp_f32 v{vG[1]}, v{vG[1]}
    s_waitcnt lgkmcnt(0)
    s_nop 1
    """)
    a(qk(X, Kb, Qa)); a(qk(X + 16, Kb, Qb))

    def E(b, n=4):
        for r in range(b, b + n):
            a(f"v_exp_f32 v{r}, v{r}")

    stamp(a, 4)
    stamp(a, 3, mode=4)
    a("s_setprio 1")
    a("s_nop 9")
    a(".p2align 6")
    a("L_loop:")
    loop0 = len(a.lines) - 1
    for i in range(8):
        X = S[i & 1]; Y = S[(i + 1) & 1]
        tn = (i + 1) & 7
        khb = KHb[(tn >> 1) & 1]
        if i == 7:
            a(f"""
            s_cbranch_scc1 L_nb7
            s_barrier
            L_nb7:
            s_setprio 1
            v_add_u32 v{vKH}, s{sDl}, v{vKH}
            v_add_u32 v{vK}, s{sDl}, v{vK}
            ds_read_b32 v{khb}, v{vKH}
            v_add_u32 v{vV}, s{sDl}, v{vV}
            """)
        E(X, 2)
        a(pv(Ob, V1b[(i + 1) & 1], Y + 24))
        if i == PRIOI:
            a("s_setprio 0")
        kread = f"ds_read_b128 {vr(Kb,4)}, v{vK} offset:{toff(tn)}"
        if i in (0, 2, 4):
            kread += f"\nds_read_b32 v{KHb[((i>>1)+1)&1]}, v{vKH} offset:{((i>>1)+1)*TPAIR}"
        vrd = vread(tn, (i + 1) & 1)
        a(vrd if VPOS == 1 else kread)
        E(X + 2, 4)
        if i == 7:
            a(f"s_waitcnt lgkmcnt({2 if VPOS == 1 else 1})")
        a(qkh(Y, khb, tn & 1))
        a(vrd if VPOS == 0 else kread if VPOS == 1 else "")
        E(X + 6, 8)
        a(pv(Oa, V0b[i & 1], X))
        if VPOS == 3:
            a("s_waitcnt lgkmcnt(0)")
        if VPOS >= 2:
            a(vrd)
        E(X + 14, 4)
        a(pv(Oa, V1b[i & 1], X + 8))
        if VPOS != 3:
            a(f"s_waitcnt lgkmcnt({2 if VPOS == 2 else 0})")
        if i == 1:
            a(f"s_mov_b32 s{sDl}, s{sD3}")
        if i == 3:
            a(f"s_mov_b32 s{sD3+1}, s{sD3+2}")
        if i == 7:
            a(f"s_add_u32 s{sN}, s{sN}, 1")
        E(X + 18, 4)
        a(qk(Y, Kb, Qa))
        if i == 1:
            a(f"s_mov_b32 s{sD3}, s{sD3+1}")
        if i == 2:
            a(f"v_mov_b32 v7, s{sN}")
        if i == 5:
            a(f"s_mov_b32 s{sD3+2}, s{sDl}")
        if i == 6:
            a(f"s_cmp_eq_u32 s{sN}, 7")
        if i == 7:
            a(f"s_cmp_lt_u32 s{sN}, 8")
        E(X + 22, 4)
        a(pv(Ob, V0b[i & 1], X + 16))
        if VPOS >= 2:
            a("s_waitcnt lgkmcnt(0)")
        E(X + 26, 3)
        a(qk(Y + 16, Kb, Qb))
        if i == 3:
            a("ds_write_b32 v167, v7")
        E(X + 29, 3)
    if ALIGN:
        a.lines[loop0:] = align8(a.lines[loop0:])
    a(f"""
    s_cbranch_scc1 L_loop
    s_nop 0
    """)
    stamp(a, 5)
    stamp(a, 1, mode=3)
    stamp(a, 4, mode=4)
    a(pv(Ob, V1b[1], S[1] + 24))
    a(f"""
    v_mov_b32 v{vT[5]}, {SYNC + 48}
    ds_read_b32 v160, v{vT[5]}
    s_nop 9
    L_fin:
    """)
    for t, O in enumerate((Oa, Ob)):
        a(f"v_mov_b32 v{vT[2*t]}, v{O+10}")
        a(f"v_mov_b32 v{vT[2*t+1]}, v{O+10}")
    a(f"v_max3_f32 v{vT[4]}, |v{Oa}|, |v{Oa+1}|, |v{Ob}|")
    a(f"v_max_f32 v{vT[4]}, v{vT[4]}, |v{Ob+1}|")
    a(f"v_permlane32_swap_b32 v{vT[0]}, v{vT[1]}")
    a(f"v_permlane32_swap_b32 v{vT[2]}, v{vT[3]}")
    for i in range(2, 10):
        a(f"v_max3_f32 v{vT[4]}, v{vT[4]}, |v{Oa+i}|, |v{Ob+i}|")
    a(f"""
    s_cmp_eq_u32 s{sFB}, 0
    s_cbranch_scc0 L_store
    s_mov_b32 s{sT}, {f32bits(2.0**40):#x}
    s_mov_b32 s{sT2}, {f32bits(2.0**-24):#x}
    s_mov_b32 s{sA}, 0x7f800000
    v_cmp_nge_f32 vcc, s{sT}, v{vT[0]}
    v_cmp_nge_f32 s[44:45], s{sT}, v{vT[2]}
    v_cmp_nle_f32 s[46:47], s{sT2}, v{vT[0]}
    s_or_b64 vcc, vcc, s[44:45]
    v_cmp_nle_f32 s[44:45], s{sT2}, v{vT[2]}
    s_or_b64 vcc, vcc, s[46:47]
    v_cmp_ngt_f32 s[46:47], s{sA}, v{vT[4]}
    s_or_b64 vcc, vcc, s[44:45]
    s_nop 0
    s_or_b64 vcc, vcc, s[46:47]
    s_cbranch_vccnz L_exact
    L_store:
    v_rcp_f32 v{vT[0]}, v{vT[0]}
    v_rcp_f32 v{vT[2]}, v{vT[2]}
    v_lshrrev_b32 v{vT[4]}, 5, v{vL}
    v_mul_u32_u24 v{vT[4]}, {OTILE - 128}, v{vT[4]}
    v_lshl_add_u32 v{vT[4]}, v{vL}, 2, v{vT[4]}
    s_add_u32 s{sB}, s{sOm}, {OTILE}
    v_mul_f32 v{vT[0]}, v{vT[0]}, v{vG[0]}
    v_mul_f32 v{vT[2]}, v{vT[2]}, v{vG[1]}
    v_mov_b32 v{vT[1]}, v{vT[0]}
    v_mov_b32 v{vT[3]}, v{vT[2]}
    """)
    for t, O in enumerate((Oa, Ob)):
        for i in range(5):
            a(f"v_pk_mul_f32 {vr(O+2*i,2)}, {vr(O+2*i,2)}, {vr(vT[2*t],2)}")
        pk = 16 + 4 * t
        for i in range(4):
            a(f"v_cvt_pk_bf16_f32 v{pk+i}, v{O+2*i}, v{O+2*i+1}")
        a(f"v_cvt_pk_bf16_f32 v{24+t}, v{O+8}, v{O+9}")
        for r in list(range(pk, pk + 4)) + [24 + t]:
            a(f"v_min_u32 v{r}, -2, v{r}")
        a(f"buffer_store_dwordx4 {vr(pk,4)}, v{vL16}, s[{SWS}:{SWS+3}], s{sOm if t == 0 else sB} offen sc1")
    a(f"""
    s_nop 0
    v_permlane32_swap_b32 v24, v25
    s_setprio 0
    buffer_store_dword v24, v{vT[4]}, s[{SWS}:{SWS+3}], s{sOh} offen offset:2048 sc1
    v_mov_b32 v7, 8
    ds_write_b32 v167, v7
    s_waitcnt lgkmcnt(1)
    """)
    unit_decode(160)
    stamp(a, 6)
    stamp(a, 2, mode=3)

    a.sec("exact")
    X = S[0]
    a(f"""
    L_exact:
    s_mov_b32 s{sFB}, 1
    v_mov_b32 v{QH+1}, 0
    v_and_b32 v{vKH}, 31, v{vL}
    v_mov_b32 v{vT[2]}, 4
    v_cmp_gt_u32 vcc, 19, v{vKH}
    v_mov_b32 v{vT[3]}, 19
    v_lshrrev_b32 v{vT[4]}, 5, v{vL}
    v_cndmask_b32 v{vT[2]}, v{vT[2]}, v{vKH}, vcc
    v_cmp_eq_u32 vcc, 4, v{vKH}
    v_mul_u32_u24 v{vT[4]}, {VH}, v{vT[4]}
    v_lshlrev_b32 v{vKH}, 2, v{vKH}
    v_cndmask_b32 v{vT[2]}, v{vT[2]}, v{vT[3]}, vcc
    v_lshl_add_u32 v{vV}, v{vT[2]}, 4, v{vT[4]}
    v_mov_b32 v{vT[0]}, 0xff800000
    v_mov_b32 v{vT[1]}, 0xff800000
    """)
    for r in range(Oa, Oa + 32):
        a(f"v_mov_b32 v{r}, 0")
    for ps in range(2):
        a(f"""
        s_mov_b32 s{sN}, 0
        L_x{ps}:
        s_lshr_b32 s{sT}, s{sN}, 1
        s_mul_i32 s{sT}, s{sT}, {TPAIR}
        s_add_u32 s{sT}, s{sT}, s{sKVp}
        s_and_b32 s{sT2}, s{sN}, 1
        s_mul_i32 s{sB}, s{sT2}, {TILE}
        s_add_u32 s{sB}, s{sB}, s{sT}                ; + tile
        s_lshl_b32 s{sA}, s{sJ}, 10
        s_add_u32 s{sA}, s{sA}, s{sB}
        buffer_load_dwordx4 {vr(Kb,4)}, v{vL16}, s[{SWS}:{SWS+3}], s{sA} offen offset:512 sc1
        s_lshl_b32 s{sA}, s{sT2}, 7
        s_add_u32 s{sA}, s{sA}, s{sT}
        s_lshl_b32 s{sT2}, s{sJ}, 8
        s_add_u32 s{sA}, s{sA}, s{sT2}
        buffer_load_dword v{KHb[0]}, v{vKH}, s[{SWS}:{SWS+3}], s{sA} offen sc1
        """)
        if ps == 1:
            a(f"""
            s_mul_i32 s{sA}, s{sJ}, {2*VG}
            s_add_u32 s{sA}, s{sA}, s{sB}
            s_add_u32 s{sA}, s{sA}, 2560
            buffer_load_dwordx4 {vr(V0b[0],4)}, v{vV}, s[{SWS}:{SWS+3}], s{sA} offen sc1
            buffer_load_dwordx4 {vr(V1b[0],4)}, v{vV}, s[{SWS}:{SWS+3}], s{sA} offen offset:{VG} sc1
            """)
        a("s_waitcnt vmcnt(0)")
        a(qkh(X, KHb[0], 0))
        a("s_nop 15\ns_nop 3")
        a(qk(X, Kb, Qa)); a(qk(X + 16, Kb, Qb))
        a("s_nop 15")
        if ps == 0:
            for t in range(2):
                for i in range(0, 16, 2):
                    a(f"v_max3_f32 v{vT[t]}, v{vT[t]}, v{X+16*t+i}, v{X+16*t+i+1}")
        else:
            for i in range(16):
                a(f"v_sub_f32 v{X+i}, v{X+i}, v{vT[0]}")
                a(f"v_sub_f32 v{X+16+i}, v{X+16+i}, v{vT[1]}")
            E(X, 32)
            a("s_nop 1")
            a(pv(Oa, V0b[0], X)); a(pv(Oa, V1b[0], X + 8))
            a(pv(Ob, V0b[0], X + 16)); a(pv(Ob, V1b[0], X + 24))
        a(f"""
        s_add_u32 s{sN}, s{sN}, 1
        s_cmp_lt_u32 s{sN}, 64
        s_cbranch_scc1 L_x{ps}
        """)
        if ps == 0:
            a(f"""
            v_mov_b32 v{vT[2]}, v{vT[0]}
            v_mov_b32 v{vT[3]}, v{vT[1]}
            s_nop 1
            v_permlane32_swap_b32 v{vT[0]}, v{vT[2]}
            v_permlane32_swap_b32 v{vT[1]}, v{vT[3]}
            s_nop 1
            v_max_f32 v{vT[0]}, v{vT[0]}, v{vT[2]}
            v_max_f32 v{vT[1]}, v{vT[1]}, v{vT[3]}
            """)
    a("""
    s_nop 15
    s_branch L_fin
    """)

    vXE, vXO, vWS = 3, 4, 5
    vGt = [6, 7, 8]
    vGA, vF, vFo = 9, 10, 11
    vT = [12, 13, 14, 15, 16, 17, 18, 19]
    vWO = 20
    CP = 32

    def dma_x(n):
        slot = (n % 3) * G_SLOT
        s = ""
        for i in range(8):
            s += f"s_add_u32 m0, s{sM0x}, {slot + 1024*i}\n"
            if i % 2 == 0:
                s += f"s_add_u32 s{sT}, s{sXb}, {(i//2)*16*1152 + n*128}\n"
            else:
                s += "s_nop 0\n"
            s += f"buffer_load_dwordx4 v{vXE if i % 2 == 0 else vXO}, s[{SX}:{SX+3}], s{sT} offen lds\n"
        return s

    def dma_w(n):
        slot = (n % 3) * G_SLOT
        s = f"s_mov_b64 exec, s[{sMASK}:{sMASK+1}]\n"
        for i in range(4):
            s += f"s_add_u32 m0, s{sM0w}, {slot + 32768 + 1024*i}\n"
            if n >= int(os.environ.get("WP0", "99")):
                s += f"s_and_b32 s{sT}, s{sP}, 7\ns_mul_i32 s{sT}, s{sT}, {147456}\ns_add_u32 s{sT}, s{sT}, s{sM0w}\ns_add_u32 s{sT}, s{sT}, {n*16384 + i*1024}\n"
                s += f"buffer_load_dwordx4 v{vL16}, s[{SW}:{SW+3}], s{sT} offen lds\n"
                continue
            s += f"s_add_u32 s{sT}, s{sWb}, {(n*64 + i*4)*3456}\n"
            s += f"buffer_load_dwordx4 v{vWS}, s[{SW}:{SW+3}], s{sT} offen lds\n"
        s += "s_mov_b64 exec, -1\n"
        return s

    def gate_write(n):
        slot = (n % 3) * G_SLOT
        lab = a.label("L_gw")
        reg = vGt[n // 4]
        if slot < 65536:
            w = f"ds_write_b16 v{vGA}, v{reg} offset:{slot}"
        else:
            w = f"v_add_u32 v{vT[7]}, {slot}, v{vGA}\nds_write_b16 v{vT[7]}, v{reg}"
        return f"""
        s_cmp_eq_u32 s{sLI}, {n % 4}
        s_cbranch_scc0 {lab}
        {w}
        {lab}:
        """

    def wo_load(q0, q1):
        assert q1 <= 72 or q0 >= 72
        srd_, base = (SWA, 0) if q1 <= 72 else (SWB, 72)
        lab = a.label("L_wo")
        a(f"""
        s_add_u32 s{sA}, s{sLI}, {q0}
        {lab}:
        s_lshl_b32 m0, s{sA}, 10
        s_sub_u32 s{sT}, s{sA}, {base}
        s_mul_i32 s{sT}, s{sT}, {8*1152}
        buffer_load_dwordx4 v{vWO}, s[{srd_}:{srd_+3}], s{sT} offen lds
        s_add_u32 s{sA}, s{sA}, 4
        s_cmp_lt_u32 s{sA}, {q1}
        s_cbranch_scc1 {lab}
        """)

    a.sec("loader")
    a("s_setprio 3")
    a(dma_x(0))
    common()
    a(f"""
    v_lshlrev_b32 v{vT[0]}, 1, v{vL}
    s_lshl_b32 s{sT}, s{sLI}, 7
    buffer_load_ushort v{vGt[0]}, v{vT[0]}, s[{SG}:{SG+3}], s{sT} offen
    buffer_load_ushort v{vGt[1]}, v{vT[0]}, s[{SG}:{SG+3}], s{sT} offen offset:512
    buffer_load_ushort v{vGt[2]}, v{vT[0]}, s[{SG}:{SG+3}], s{sT} offen offset:1024
    """)
    mask = ~((1 << 15) | (1 << 27) | (1 << 39) | (1 << 51)) & ((1 << 64) - 1)
    a(f"""
    v_bfe_u32 v{vT[2]}, v{vL}, 2, 2
    v_xor_b32 v{vT[2]}, v{vT[2]}, v{vT[1]}       ; blk
    v_and_b32 v{vT[3]}, 3, v{vL}                 ; e
    v_and_b32 v{vT[4]}, 1, v{vT[3]}
    v_lshlrev_b32 v{vT[4]}, 3, v{vT[4]}
    v_mul_u32_u24 v{vT[5]}, 20, v{vT[2]}
    v_add_u32 v{vT[4]}, v{vT[4]}, v{vT[5]}
    v_add_u32 v{vT[5]}, 576, v{vT[4]}
    v_cmp_gt_u32 vcc, 2, v{vT[3]}
    s_mov_b32 s{sMASK}, {mask & 0xffffffff:#x}
    s_mov_b32 s{sMASK+1}, {mask >> 32:#x}
    v_cndmask_b32 v{vT[4]}, v{vT[4]}, v{vT[5]}, vcc
    v_lshlrev_b32 v{vT[5]}, 3, v{vT[3]}
    v_add_u32 v{vT[5]}, 1152, v{vT[5]}
    v_cmp_eq_u32 vcc, 2, v{vT[2]}
    s_and_b32 s{sT}, s{sP}, 15
    s_mul_i32 s{sT}, s{sT}, 72
    v_cndmask_b32 v{vT[4]}, v{vT[4]}, v{vT[5]}, vcc
    v_mov_b32 v{vT[5]}, 592
    v_mov_b32 v{vT[6]}, 16
    v_cmp_eq_u32 vcc, 1, v{vT[3]}
    s_mul_i32 s{sT2}, s{sLI}, {16*3456}
    s_add_u32 s{sWb}, s{sT}, s{sT2}
    v_cndmask_b32 v{vT[5]}, v{vT[5]}, v{vT[6]}, vcc
    v_mov_b32 v{vT[6]}, 1180
    v_cmp_eq_u32 vcc, 2, v{vT[3]}
    s_lshl_b32 s{sM0w}, s{sLI}, 12
    s_nop 0
    v_cndmask_b32 v{vT[5]}, v{vT[5]}, v{vT[6]}, vcc
    v_cmp_eq_u32 vcc, 3, v{vT[2]}
    s_nop 1
    v_cndmask_b32 v{vT[4]}, v{vT[4]}, v{vT[5]}, vcc
    v_mul_u32_u24 v{vT[5]}, 3456, v{vT[1]}
    v_lshl_add_u32 v{vWS}, v{vT[4]}, 1, v{vT[5]}
    """)
    a(dma_w(0))
    a(f"""
    v_and_b32 v{vT[2]}, 3, v{vL}
    v_xor_b32 v{vT[2]}, 3, v{vT[2]}
    v_lshlrev_b32 v{vT[2]}, 6, v{vT[2]}
    v_lshl_add_u32 v{vGA}, v{vL}, 8, v{vT[2]}
    v_add_u32 v{vGA}, {32768 + 48}, v{vGA}
    """)
    a(dma_x(1)); a(dma_w(1))
    a(f"""
    v_lshlrev_b32 v{vT[2]}, 2, v{vL}
    v_add_u32 v{vT[2]}, {SYNC}, v{vT[2]}
    v_mov_b32 v{CP}, 0
    v_mov_b32 v{CP+1}, 0
    v_mov_b32 v{CP+2}, 0
    v_mov_b32 v{CP+3}, 0
    ds_write_b32 v{vT[2]}, v{CP}
    s_min_u32 s{sT}, s{sLI}, 2
    s_mul_i32 s{sT}, s{sT}, {G_SLOT}
    v_add_u32 v{vT[2]}, s{sT}, v{vGA}
    s_cmp_eq_u32 s{sLI}, 3
    s_cbranch_scc1 L_nz
    ds_write_b128 v{vT[2]}, {vr(CP,4)}
    L_nz:
    s_waitcnt vmcnt(16)
    """)
    for n in range(3):
        a(gate_write(n))
    a("s_waitcnt vmcnt(12) lgkmcnt(0)")
    a("s_barrier")
    stamp(a, 1)
    a(dma_x(2)); a(dma_w(2))
    if DPF:
        a(f"""
        s_cmp_eq_u32 s{sLI}, 0
        s_cbranch_scc0 L_lp1
        v_and_b32 v{vT[5]}, 7, v{vL}
        v_min_u32 v{vT[5]}, 4, v{vT[5]}
        v_lshrrev_b32 v{vT[4]}, 3, v{vL}
        v_mul_u32_u24 v{vT[4]}, 1152, v{vT[4]}
        v_lshl_add_u32 v{vT[5]}, v{vT[5]}, 7, v{vT[4]}
        s_mul_i32 s{sT}, s2, {8*1152}
        buffer_load_dword v{vT[6]}, v{vT[5]}, s[{SX}:{SX+3}], s{sT} offen offset:512
        s_branch L_lp2
        L_lp1:
        v_min_u32 v{vT[5]}, 23, v{vL}
        v_lshlrev_b32 v{vT[5]}, 7, v{vT[5]}
        s_and_b32 s{sT}, s{sP}, 15
        s_lshl_b32 s{sT}, s{sT}, 3
        s_add_u32 s{sT}, s{sT}, s{sTG}
        s_mul_i32 s{sT}, s{sT}, 3
        s_add_u32 s{sT}, s{sT}, s{sLI}
        s_mul_i32 s{sT}, s{sT}, {320*3456 // 384}
        s_add_u32 s{sT}, s{sT}, {256*3456 - 320*3456 // 384}
        buffer_load_dword v{vT[6]}, v{vT[5]}, s[{SW}:{SW+3}], s{sT} offen
        L_lp2:
        """)
    for n in range(8):
        a(f"s_waitcnt vmcnt({(13 if DPF and n < 2 else 12) if n + 2 <= 8 else 0}) lgkmcnt(0)")
        if STAMPS == 7:
            a(f"s_memtime s[90:91]\ns_waitcnt lgkmcnt(0)\ns_barrier\ns_memtime s[94:95]\ns_waitcnt lgkmcnt(0)\ns_sub_u32 s90, s94, s90\ns_add_u32 s{74+2*n}, s90, s72")
        elif STAMPS == 8:
            a(f"s_barrier\ns_memtime s[{74+2*n}:{75+2*n}]")
        else:
            a("s_barrier")
        if n + 3 <= 8:
            a(gate_write(n + 3))
            a(dma_x(n + 3)); a(dma_w(n + 3))
        if n == 6:
            lab = a.label("L_cr")
            a(f"""
            s_cmp_ge_u32 s{sLI}, 2
            s_cbranch_scc1 {lab}
            s_cmp_eq_u32 s{sLI}, 0
            s_cselect_b32 s{sT}, 0x3f803f80, 0
            s_cselect_b32 s{sT2}, {14*16}, 0
            s_add_u32 s{sT2}, s{sT2}, {2560 + 4*16}
            v_and_b32 v{vT[0]}, 7, v{vL}
            v_mul_u32_u24 v{vT[0]}, {VH}, v{vT[0]}
            v_lshrrev_b32 v{vT[2]}, 3, v{vL}
            v_mul_u32_u24 v{vT[2]}, {TILE}, v{vT[2]}
            v_lshrrev_b32 v{vT[3]}, 4, v{vL}
            v_lshl_add_u32 v{vT[2]}, v{vT[3]}, 9, v{vT[2]}
            v_add3_u32 v{vT[0]}, v{vT[0]}, v{vT[2]}, s{sT2}
            v_mov_b32 v{CP}, s{sT}
            v_mov_b32 v{CP+1}, s{sT}
            v_mov_b32 v{CP+2}, s{sT}
            v_mov_b32 v{CP+3}, s{sT}
            ds_write_b128 v{vT[0]}, {vr(CP,4)}
            {lab}:
            """)
    a(f"""
    s_load_dwordx2 s[{SWA}:{SWA+1}], s[0:1], 16          ; A_wo
    s_load_dwordx2 s[{SWB}:{SWB+1}], s[0:1], 40          ; B_wo
    s_load_dwordx2 s[{SO}:{SO+1}], s[0:1], 56            ; out
    s_mov_b32 s{SWA+2}, {WO_BYTES}
    s_mov_b32 s{SWB+2}, {WO_BYTES}
    s_mov_b32 s{SO+2}, {XBYTES}
    s_mov_b32 s{sU}, 0
    s_mov_b32 s{sD3}, {(RING[1]-RING[0]) & 0xffffffff:#x}
    s_mov_b32 s{sD3+1}, {(RING[2]-RING[1]) & 0xffffffff:#x}
    s_mov_b32 s{sD3+2}, {(RING[0]-RING[2]) & 0xffffffff:#x}
    s_mul_i32 s{sT}, s{sLI}, {TPAIR}
    v_add_u32 v{vT[0]}, s{sT}, v{vL16}
    s_add_u32 s{sKVp}, s{sKVp}, s{sT}
    s_mov_b32 s{sM0x}, s{sT}
    s_mul_i32 s{sA}, s{sTG}, {CHUNK}
    s_add_u32 s{sA}, s{sA}, s{sKVp}
    s_lshl_b32 s{sT}, s{sLI}, 10
    s_lshl_b32 s{sB}, s{sP}, 12
    s_add_u32 s{sB}, s{sB}, s{sT}
    s_add_u32 s{sWb}, s{sB}, {FLAG_OFF}
    v_and_b32 v{vFo}, 7, v{vL}
    v_lshlrev_b32 v{vFo}, 7, v{vFo}
    v_mov_b32 v{vT[1]}, {SCR_N}
    s_lshl_b32 s{sT}, s{sTG}, 7
    v_mov_b32 v{vT[2]}, s{sT}
    v_lshrrev_b32 v{vT[3]}, 3, v{vL}
    v_mul_u32_u24 v{vT[3]}, 1152, v{vT[3]}
    v_bfe_u32 v{vT[4]}, v{vL}, 4, 1
    v_lshlrev_b32 v{vT[4]}, 2, v{vT[4]}
    v_and_b32 v{vT[5]}, 7, v{vL}
    v_xor_b32 v{vT[5]}, v{vT[5]}, v{vT[4]}
    v_lshl_add_u32 v{vWO}, v{vT[5]}, 4, v{vT[3]}
    s_waitcnt lgkmcnt(0)
    s_barrier
    """)
    stamp(a, 3, True)
    for i in range(10):
        a(f"ds_read_b128 {vr(CP+4*i,4)}, v{vT[0]} offset:{1024*i}")
    a(f"ds_read_b32 v{vF}, v{vT[1]}")
    for i in range(10):
        if i == 9:
            a("s_mov_b32 exec_hi, 0")
        if i in (4, 8):
            a(f"s_add_u32 s{sA}, s{sA}, 4096")
        a(f"s_waitcnt lgkmcnt({10-i})")
        a(f"buffer_store_dwordx4 {vr(CP+4*i,4)}, v{vL16}, s[{SWS}:{SWS+3}], s{sA} offen offset:{1024*(i&3)} sc1")
    a(f"""
    s_waitcnt vmcnt(0) lgkmcnt(0)
    v_readfirstlane_b32 s{sNON}, v{vF}
    s_mov_b64 exec, 1
    buffer_store_dword v{vF}, v{vT[2]}, s[{SWS}:{SWS+3}], s{sWb} offen sc1
    s_mov_b64 exec, -1
    s_mov_b32 s{sRDY}, 0
    s_mov_b32 s{sN}, 0
    s_lshl_b32 s{sXb}, 1, s{sTG}
    L_ll:
    s_add_u32 s{sM0x}, s{sM0x}, s{sD3}
    s_mov_b32 s{sT}, s{sD3}
    s_mov_b32 s{sD3}, s{sD3+1}
    s_mov_b32 s{sD3+1}, s{sD3+2}
    s_mov_b32 s{sD3+2}, s{sT}
    L_poll:
    s_andn2_b32 s{sT}, s{sRDY}, s{sXb}
    s_cbranch_scc1 L_rdy
    buffer_load_dword v{vF}, v{vFo}, s[{SWS}:{SWS+3}], s{sWb} offen sc1
    s_waitcnt vmcnt(0)
    v_cmp_eq_u32 vcc, s{sNON}, v{vF}
    s_sub_u32 s{sSPIN}, s{sSPIN}, 1
    s_nop 0
    s_cselect_b32 s{sRDY}, -1, vcc_lo
    s_and_b32 s{sRDY}, s{sRDY}, 0xff
    s_branch L_poll
    L_rdy:
    s_ff1_i32_b32 s{sC}, s{sT}
    s_bitset1_b32 s{sXb}, s{sC}
    s_mul_i32 s{sA}, s{sC}, {CHUNK}
    s_add_u32 s{sA}, s{sA}, s{sKVp}
    """)
    for i in range(10):
        if i % 4 == 0:
            a(f"s_add_u32 m0, s{sM0x}, {1024*i}")
            a(f"s_add_u32 s{sT}, s{sA}, {1024*i}")
        if i == 9:
            a("s_mov_b32 exec_hi, 0")
        if True:
            a(f"buffer_load_dwordx4 v{vL16}, s[{SWS}:{SWS+3}], s{sT} offen offset:{1024*(i&3)} sc1 lds")
    a(f"""
    s_mov_b32 exec_hi, -1
    L_d9:
    s_cmp_eq_u32 s{sN}, 1
    s_cbranch_scc0 L_ncl
    s_lshl_b32 s{sT}, s{sTG}, 3
    s_lshl_b32 s{sT2}, s{sLI}, 1
    s_add_u32 s{sT}, s{sT}, s{sT2}
    s_mul_i32 s{sA}, s{sT}, {OTILE}
    s_mul_i32 s{sT}, s{sP}, {OPAIR}
    s_add_u32 s{sA}, s{sA}, s{sT}
    s_add_u32 s{sA}, s{sA}, {O_OFF}
    s_add_u32 s{sB}, s{sA}, {OTILE}
    v_mov_b32 v{CP}, -1
    v_mov_b32 v{CP+1}, -1
    v_mov_b32 v{CP+2}, -1
    v_mov_b32 v{CP+3}, -1
    buffer_store_dwordx4 {vr(CP,4)}, v{vL16}, s[{SWS}:{SWS+3}], s{sA} offen sc1
    buffer_store_dwordx4 {vr(CP,4)}, v{vL16}, s[{SWS}:{SWS+3}], s{sA} offen offset:1024 sc1
    buffer_store_dwordx4 {vr(CP,4)}, v{vL16}, s[{SWS}:{SWS+3}], s{sB} offen sc1
    buffer_store_dwordx4 {vr(CP,4)}, v{vL16}, s[{SWS}:{SWS+3}], s{sB} offen offset:1024 sc1
    s_mov_b64 exec, 0xffff
    buffer_store_dwordx4 {vr(CP,4)}, v{vL16}, s[{SWS}:{SWS+3}], s{sA} offen offset:2048 sc1
    buffer_store_dwordx4 {vr(CP,4)}, v{vL16}, s[{SWS}:{SWS+3}], s{sB} offen offset:2048 sc1
    s_mov_b64 exec, -1
    L_ncl:
    s_cmp_eq_u32 s{sLI}, 0
    s_cbranch_scc0 L_nfl
    s_cmp_eq_u32 s{sN}, 2
    s_cbranch_scc0 L_n2
    s_lshl_b32 s{sT}, s{sTG}, 12
    s_lshl_b32 s{sT2}, s{sP}, 7
    s_add_u32 s{sT}, s{sT}, s{sT2}
    s_add_u32 s{sT}, s{sT}, {OFLAG_OFF}
    v_mov_b32 v{vT[3]}, 0
    v_mov_b32 v{vF}, s{sNON}
    s_mov_b64 exec, 1
    buffer_store_dword v{vF}, v{vT[3]}, s[{SWS}:{SWS+3}], s{sT} offen sc1
    s_mov_b64 exec, -1
    L_n2:
    s_cmp_eq_u32 s{sN}, {CLAIM}
    s_cbranch_scc0 L_nfl
    s_and_b32 s{sA}, s2, 7
    v_and_b32 v{vT[5]}, 7, v{vL}
    v_lshlrev_b32 v{vT[4]}, 2, v{vT[5]}
    L_cl:
    s_lshl_b32 s{sT}, s{sA}, 2
    v_mov_b32 v{vT[3]}, s{sT}
    v_mov_b32 v{vF}, 1
    s_mov_b64 exec, 1
    buffer_atomic_add v{vF}, v{vT[3]}, s[{SD}:{SD+3}], 0 offen offset:128 sc0 sc1
    s_mov_b64 exec, -1
    s_waitcnt vmcnt(0)
    v_readfirstlane_b32 s{sB}, v{vF}
    s_nop 3
    s_cmp_lt_u32 s{sB}, 27
    s_cbranch_scc1 L_cl2
    """)
    if STEAL:
        a(f"""
        buffer_load_dword v{vF}, v{vT[4]}, s[{SD}:{SD+3}], 0 offen offset:128 sc1
        s_waitcnt vmcnt(0)
        v_lshl_or_b32 v{vF}, v{vF}, 3, v{vT[5]}
        s_nop 0
        v_readlane_b32 s{sA}, v{vF}, 0
        """)
        for q in range(1, 8):
            a(f"v_readlane_b32 s{sT}, v{vF}, {q}\ns_nop 3\ns_min_u32 s{sA}, s{sA}, s{sT}")
        a(f"""
        s_lshr_b32 s{sT}, s{sA}, 3
        s_and_b32 s{sA}, s{sA}, 7
        s_sub_u32 s{sSPIN}, s{sSPIN}, 1
        s_cselect_b32 s{sT}, 27, s{sT}
        s_cmp_lt_u32 s{sT}, 27
        s_cbranch_scc1 L_cl
        s_mov_b32 s{sSPIN}, {SPIN_LIMIT}
        """)
    a(f"""
    s_movk_i32 s{sB}, 0xff
    L_cl2:
    s_lshl_b32 s{sA}, s{sA}, 8
    s_or_b32 s{sA}, s{sA}, s{sB}
    v_mov_b32 v{vF}, s{sA}
    v_mov_b32 v{vT[3]}, {SYNC + 48}
    ds_write_b32 v{vT[3]}, v{vF}
    s_waitcnt lgkmcnt(0)
    L_nfl:
    s_cmp_eq_u32 s{sN}, {CLAIM + 1}
    s_cbranch_scc0 L_nw3
    v_mov_b32 v{vT[3]}, {SYNC + 48}
    ds_read_b32 v{vF}, v{vT[3]}
    s_waitcnt lgkmcnt(0)
    """)
    unit_decode(vF)
    a(f"""
    s_cmp_ge_u32 s{sU}, 27
    s_cbranch_scc1 L_on1
    s_lshl_b32 s{sT}, s{sCG}, 7
    v_add_u32 v{vWO}, s{sT}, v{vWO}
    """)
    wo_load(38, 42)
    wo_load(80, 121)
    a(f"""
    L_nw3:
    s_cmp_eq_u32 s{sN}, 6
    s_cbranch_scc0 L_on1
    s_cmp_ge_u32 s{sU}, 27
    s_cbranch_scc1 L_on1
    v_mul_u32_u24 v{vT[3]}, 1152, v{vL}
    s_lshl_b32 s{sT}, s{sCG}, 7
    s_mul_i32 s{sT2}, s{sLI}, {48*1152}
    s_add_u32 s{sT2}, s{sT2}, s{sT}
    s_add_u32 s{sT2}, s{sT2}, {392*1152}
    buffer_load_dword v{vT[4]}, v{vT[3]}, s[{SWB}:{SWB+3}], s{sT2} offen
    """)
    if TLBW:
        a(f"""
        s_mul_i32 s{sT}, s{sTG2}, {256*1152}
        v_lshlrev_b32 v{vT[3]}, 2, v{vT[3]}
        buffer_load_dword v{vT[4]}, v{vT[3]}, s[{SO}:{SO+3}], s{sT} offen
        """)
    a(f"""
    v_and_b32 v{vT[0]}, 31, v{vL}
    v_lshlrev_b32 v{vT[3]}, 7, v{vT[0]}
    v_lshlrev_b32 v{vT[0]}, 2, v{vT[0]}
    s_lshl_b32 s{sB}, s{sTG2}, 12
    s_add_u32 s{sB}, s{sB}, {OFLAG_OFF}
    L_on0:
    buffer_load_dword v{vF}, v{vT[0]}, s[{SD}:{SD+3}], 0 offen sc1
    buffer_load_dword v{vT[4]}, v{vT[3]}, s[{SWS}:{SWS+3}], s{sB} offen sc1
    s_waitcnt vmcnt(0)
    v_cmp_le_i32 vcc, 0, v{vF}
    v_cmp_ne_u32 s[44:45], v{vF}, v{vT[4]}
    s_sub_u32 s{sSPIN}, s{sSPIN}, 1
    s_cbranch_scc1 L_on1
    s_or_b64 vcc, vcc, s[44:45]
    s_cbranch_vccz L_on1
    s_sleep 8
    s_branch L_on0
    L_on1:
    s_waitcnt vmcnt(0)
    """)
    if STAMPS == 1:
        a(f"s_cmp_eq_u32 s{sN}, 0\ns_cbranch_scc0 L_st4")
        stamp(a, 4)
        a("L_st4:")
    if STAMPS == 6:
        a("s_barrier\ns_memtime s[88:89]\ns_waitcnt lgkmcnt(0)")
        for q in range(7):
            a(f"s_cmp_eq_u32 s{sN}, {q}\ns_cselect_b32 s{74+2*q}, s88, s{74+2*q}")
    elif STAMPS == 5:
        a("s_memtime s[88:89]\ns_waitcnt lgkmcnt(0)\ns_barrier\ns_memtime s[90:91]\ns_waitcnt lgkmcnt(0)\ns_sub_u32 s88, s90, s88\ns_add_u32 s88, s88, s72")
        for q in range(7):
            a(f"s_cmp_eq_u32 s{sN}, {q}\ns_cselect_b32 s{74+2*q}, s88, s{74+2*q}")
    else:
        a("s_barrier")
    a(f"""
    s_add_u32 s{sN}, s{sN}, 1
    s_cmp_lt_u32 s{sN}, 7
    s_cbranch_scc1 L_ll
    s_mov_b32 s{sSPIN}, {SPIN_LIMIT}
    s_cmp_ge_u32 s{sU}, 27
    s_cbranch_scc1 L_end
    """)
    wo_load(0, 38)
    wo_load(42, 72)
    wo_load(72, 80)
    a(f"""
    v_and_b32 v12, 7, v{vL}
    v_lshlrev_b32 v12, 2, v12
    v_add_u32 v12, {SYNC}, v12
    L_pg:
    s_sleep 2
    ds_read_b32 v13, v12
    s_waitcnt lgkmcnt(0)
    v_cmp_gt_u32 vcc, 7, v13
    s_cbranch_vccnz L_pg
    """)
    wo_load(121, 144)
    a(f"""
    s_lshl_b32 s{sT}, s{sLI}, 2
    s_add_u32 s{sT}, s{sT}, {SYNC + 32}
    v_mov_b32 v12, s{sT}
    v_mov_b32 v13, 8
    s_waitcnt vmcnt(0)
    ds_write_b32 v12, v13
    s_setprio 0
    s_branch L_tail
    """)
    a.sec("tail")

    vOH = 5
    vWm = [3, 4]; vWh = [8, 9]
    vT = [10, 11, 12, 13, 14, 6]
    vPw, vPr, vOut, vPr2, vDw, vDr = 163, 164, 165, 166, 167, 7
    WS_ = [16, 32]
    OF = 56
    ACC = [128, 144]
    DEPTH = int(os.environ.get("DEPTH", "2"))
    TPRIO = int(os.environ.get("TPRIO", "0"))

    def omain(i, j):
        return OF + 8 * i + 4 * j
    OHI = OF + 64

    def issue(i):
        a(f"""
        s_add_u32 s{sT}, s{sFl}, {i*OPAIR}
        buffer_load_dwordx4 {vr(omain(i,0),4)}, v{vL16}, s[{SWS}:{SWS+3}], s{sT} offen sc1
        buffer_load_dwordx4 {vr(omain(i,1),4)}, v{vL16}, s[{SWS}:{SWS+3}], s{sT} offen offset:1024 sc1
        buffer_load_dword v{OHI+i}, v{vOH}, s[{SWS}:{SWS+3}], s{sT} offen offset:2048 sc1
        """)

    a(f"""
    L_tail:
    s_cmp_ge_u32 s{sU}, 27
    s_cbranch_scc1 L_end
    s_cmp_ge_u32 s{sT0}, 8
    s_cbranch_scc1 L_end
    v_lshlrev_b32 v{vOH}, 2, v{vL}
    s_mov_b32 s{sI}, 0
    v_min_u32 v{vT[2]}, 11, v{vL}
    """)
    if LEARLY:
        a(f"""
        s_cmp_lt_u32 s{sWV}, 4
        s_cselect_b32 s{sT}, 8, 0
        v_max_u32 v{vT[2]}, s{sT}, v{vT[2]}
        """)
    a(f"""
    v_lshlrev_b32 v{vT[2]}, 2, v{vT[2]}
    v_add_u32 v{vT[2]}, {SYNC}, v{vT[2]}
    L_ws1:
    ds_read_b32 v{vT[3]}, v{vT[2]}
    s_waitcnt lgkmcnt(0)
    v_cmp_gt_u32 vcc, 8, v{vT[3]}
    s_cbranch_vccz L_go
    s_sleep 1
    s_branch L_ws1
    L_go:
    """)
    stamp(a, 3, mode=3)
    if TPRIO:
        a("s_setprio 3")
    for i in range(DEPTH):
        issue(i)
    a(f"""
    v_and_b32 v{vT[0]}, 31, v{vL}                ; tau
    v_lshrrev_b32 v{vT[1]}, 5, v{vL}             ; h
    v_bfe_u32 v{vT[2]}, v{vL}, 2, 2              ; r
    v_and_b32 v{vT[3]}, 3, v{vL}                 ; c
    v_bfe_u32 v{vT[4]}, v{vL}, 4, 1              ; sub
    v_lshlrev_b32 v{vT[3]}, 3, v{vT[3]}
    v_lshl_add_u32 v{vT[3]}, v{vT[4]}, 5, v{vT[3]}
    s_mul_i32 s{sT}, s{sKQ}, {288*128}
    v_add_u32 v{vT[3]}, s{sT}, v{vT[3]}
    v_lshrrev_b32 v{vT[4]}, 1, v{vT[2]}          ; r>>1
    v_lshl_add_u32 v{vT[5]}, v{vT[1]}, 2, v{vT[2]}
    v_lshl_add_u32 v{vT[5]}, v{vT[5]}, 7, v{vT[3]}
    v_lshl_add_u32 v{vWm[0]}, v{vT[4]}, 6, v{vT[5]}
    v_xor_b32 v{vWm[1]}, 64, v{vWm[0]}
    v_lshl_add_u32 v{vT[5]}, v{vT[4]}, 1, v{vT[1]}
    v_mul_u32_u24 v{vT[5]}, 18, v{vT[5]}
    v_and_b32 v{vT[2]}, 1, v{vT[2]}
    v_add3_u32 v{vT[5]}, v{vT[5]}, v{vT[2]}, 16
    v_lshl_add_u32 v{vT[5]}, v{vT[5]}, 7, v{vT[3]}
    v_lshl_add_u32 v{vWh[0]}, v{vT[1]}, 6, v{vT[5]}
    v_xor_b32 v{vWh[1]}, 64, v{vWh[0]}
    s_lshl_b32 s{sT}, s{sTT}, 13
    s_mul_i32 s{sT2}, s{sKQ}, {288*128}
    s_add_u32 s{sA}, s{sT}, s{sT2}
    v_add_u32 v{vPw}, s{sA}, v{vL16}
    s_lshl_b32 s{sT2}, s{sKQ}, 11
    s_add_u32 s{sA}, s{sT}, s{sT2}
    v_add_u32 v{vPr}, s{sA}, v{vL16}
    v_add_u32 v{vPr2}, {2*288*128}, v{vPr}
    s_lshl_b32 s{sT}, s{sWV}, 2
    s_add_u32 s{sT}, s{sT}, {SYNC + 64}
    v_mov_b32 v{vDw}, s{sT}
    s_sub_u32 s{sT}, s{sT0}, s{sTT}
    s_cmp_eq_u32 s{sT}, 6
    s_cselect_b32 s{sT}, 1, 2
    v_min_u32 v{vDr}, s{sT}, v{vL}
    s_mul_i32 s{sT}, s{sKQ}, 12
    s_add_u32 s{sT}, s{sT}, {SYNC + 64}
    v_lshlrev_b32 v{vDr}, 2, v{vDr}
    v_add_u32 v{vDr}, s{sT}, v{vDr}
    s_lshl_b32 s{sT}, s{sTG2}, 8
    s_lshl_b32 s{sT2}, s{sT0}, 5
    s_add_u32 s{sT}, s{sT}, s{sT2}
    s_mul_i32 s{sOm}, s{sT}, 1152
    s_lshl_b32 s{sT}, s{sCG}, 7
    s_add_u32 s{sOm}, s{sOm}, s{sT}
    s_lshl_b32 s{sT}, s{sKQ}, 5
    s_add_u32 s{sOm}, s{sOm}, s{sT}
    v_mul_u32_u24 v{vOut}, 1152, v{vT[0]}
    v_lshl_add_u32 v{vOut}, v{vT[1]}, 4, v{vOut}
    """)
    for r in range(ACC[0], ACC[0] + 32):
        a(f"v_mov_b32 v{r}, 0")
    stamp(a, 7)
    stamp(a, 4, mode=3)

    def wreads(blk, st):
        for f in range(2):
            b = WS_[st] + 8 * f
            m = 2 * blk + f
            for ct in range(2):
                if m < 16:
                    ad = vWm[ct ^ (m & 1)]
                    o0 = m * 18 * 128; o1 = o0 + 8 * 128
                else:
                    ad = vWh[ct]
                    o0 = (m - 16) * 8 * 18 * 128; o1 = o0 + 4 * 18 * 128
                a(f"ds_read_b64_tr_b16 {vr(b+4*ct,2)}, v{ad} offset:{o0}")
                a(f"ds_read_b64_tr_b16 {vr(b+4*ct+2,2)}, v{ad} offset:{o1}")

    def verify(i, skip):
        o0, o1 = omain(i, 0), omain(i, 1)
        a(f"""
        v_max3_u32 v{vT[2]}, v{o0}, v{o0+1}, v{o0+2}
        v_max3_u32 v{vT[3]}, v{o0+3}, v{o1}, v{o1+1}
        v_max3_u32 v{vT[2]}, v{vT[2]}, v{o1+2}, v{o1+3}
        v_max3_u32 v{vT[2]}, v{vT[2]}, v{vT[3]}, v{OHI+i}
        v_cmp_eq_u32 vcc, -1, v{vT[2]}
        s_cbranch_vccnz {skip}
        s_bitset1_b32 s{sI}, {i}
        """)

    def mm(st, o0, o1):
        for f, o in ((0, o0), (1, o1)):
            for ct in range(2):
                a(f"v_mfma_f32_32x32x16_bf16 {vr(ACC[ct],16)}, {vr(WS_[st]+8*f+4*ct,4)}, {vr(o,4)}, {vr(ACC[ct],16)}")

    wreads(0, 0)
    for i in range(8):
        a(f"s_waitcnt vmcnt({3*min(DEPTH-1, 7-i)}) lgkmcnt(0)")
        wreads(i + 1, (i + 1) & 1)
        verify(i, f"L_s{i}")
        mm(i & 1, omain(i, 0), omain(i, 1))
        a(f"L_s{i}:")
        if TPRIO and i in (0, 2, 4):
            a(f"s_setprio {2 - i // 2}")
        if i + DEPTH < 8:
            issue(i + DEPTH)
    a(f"""
    L_chk:
    s_cmp_eq_u32 s{sI}, 0xff
    s_cbranch_scc0 L_round
    L_hi:
    v_mov_b32 v{vT[2]}, 1
    s_waitcnt lgkmcnt(0)
    ds_write_b32 v{vDw}, v{vT[2]}
    """)
    mm(0, OHI, OHI + 4)
    stamp(a, 8)
    stamp(a, 7, mode=3)
    a(f"""
    L_qs:
    ds_read_b32 v{vT[3]}, v{vDr}
    s_waitcnt lgkmcnt(0)
    v_cmp_eq_u32 vcc, 0, v{vT[3]}
    s_cbranch_vccnz L_qs
    s_nop 6
    """)
    for i in range(8):
        a(f"ds_write_b128 v{vPw}, {vr(ACC[0]+4*i,4)} offset:{1024*i}")
    a("s_waitcnt lgkmcnt(0)")
    a("s_barrier                                    ; BT4")
    stamp(a, 8, True, mode=3)
    for src in range(4):
        for g in range(2):
            a(f"ds_read_b128 {vr(OF+8*src+4*g,4)}, v{vPr if src < 2 else vPr2} offset:{(src&1)*288*128 + g*1024}")
    a("s_waitcnt lgkmcnt(4)")
    for q in range(8):
        a(f"v_add_f32 v{OF+q}, v{OF+q}, v{OF+8+q}")
    a("s_waitcnt lgkmcnt(0)")
    for q in range(8):
        a(f"v_add_f32 v{OF+16+q}, v{OF+16+q}, v{OF+24+q}")
    for q in range(8):
        a(f"v_add_f32 v{OF+q}, v{OF+q}, v{OF+16+q}")
    for i in range(4):
        a(f"v_cvt_pk_bf16_f32 v{WS_[0]+i}, v{OF+2*i}, v{OF+2*i+1}")
    a(f"""
    s_nop 1
    v_permlane32_swap_b32 v{WS_[0]}, v{WS_[0]+2}
    v_permlane32_swap_b32 v{WS_[0]+1}, v{WS_[0]+3}
    buffer_store_dwordx4 {vr(WS_[0],4)}, v{vOut}, s[{SO}:{SO+3}], s{sOm} offen {os.environ.get('OUTF', '')}
    """)
    stamp(a, 9, mode=3)
    a("s_branch L_end")
    a(f"""
    L_round:
    s_sub_u32 s{sSPIN}, s{sSPIN}, 1
    s_cbranch_scc1 L_hi
    s_not_b32 s{sBt}, s{sI}
    """)
    stamp(a, 5, mode=3)
    for i in range(8):
        a(f"s_bitcmp1_b32 s{sBt}, {i}\ns_cbranch_scc0 L_ni{i}")
        issue(i)
        a(f"L_ni{i}:")
    for i in range(8):
        a(f"s_bitcmp1_b32 s{sBt}, {i}\ns_cbranch_scc0 L_nc{i}")
        wreads(i, 1)
        a("s_waitcnt vmcnt(0)")
        verify(i, f"L_nc{i}")
        a("s_waitcnt lgkmcnt(0)")
        mm(1, omain(i, 0), omain(i, 1))
        a(f"L_nc{i}:")
    a("s_branch L_chk")
    a.sec("end")
    a("L_end:")
    if DIAG >= 0:
        a(f"""
        s_cmp_eq_u32 s{sWV}, 9
        s_cbranch_scc0 L_done
        s_cmp_lt_u32 s2, {os.environ.get("DIAGWG", "256")}
        s_cbranch_scc0 L_done
        s_waitcnt vmcnt(0) lgkmcnt(0)
        s_memrealtime s[82:83]
        s_waitcnt lgkmcnt(0)
        s_mov_b32 s{sT}, 0
        """)
        if DIAG > 0:
            a(f"""
            s_sub_u32 s{sT}, s{72+2*DIAG}, s96
            s_lshl_b32 s{sT}, s{sT}, 2
            s_cmp_lt_u32 s{sWV}, 4
            s_cselect_b32 s{sT}, 0, s{sT}
            """)
        a(f"""
        s_add_u32 s{sT}, s{sT}, 10000
        L_dg:
        s_sleep 8
        s_memrealtime s[98:99]
        s_waitcnt lgkmcnt(0)
        s_sub_u32 s{sT2}, s98, s96
        s_cmp_lt_u32 s{sT2}, s{sT}
        s_cbranch_scc1 L_dg
        """)
    elif STAMPS:
        a(f"""
        s_waitcnt vmcnt(0) lgkmcnt(0)
        s_memtime s[92:93]
        s_memrealtime s[98:99]
        s_waitcnt lgkmcnt(0)
        s_mov_b64 exec, 1
        s_lshl_b32 s{sT}, s2, 4
        s_add_u32 s{sT}, s{sT}, s{sWV}
        s_lshl_b32 s{sT}, s{sT}, 6
        s_add_u32 s{sT}, s{sT}, {STAMP_OFF}
        v_mov_b32 v0, 0
        """)
        for n in range(14):
            a(f"v_mov_b32 v1, s{72+2*n}")
            a(f"buffer_store_dword v1, v0, s[{SWS}:{SWS+3}], s{sT} offen offset:{4*n}")
            a("s_nop 0")
    a("""
    L_done:
    s_endpgm
    """)
    return name, NV


def main():
    out = sys.argv[1] if len(sys.argv) > 1 else f"cdna_kernels/{NAME}.s"
    a = Asm()
    k, nv = gen(a)
    hdr = open(f"cdna_kernels/{NAME}.s.ref").read().split("\n")
    hdr = [l for l in hdr if l.startswith(";") and "@launch" not in l]
    txt = "\n".join(hdr) + "\n"
    txt += f"; @launch grid=(256,1,1) block=(768,1,1) lds={LDS_BYTES}\n"
    txt += '.amdgcn_target "amdgcn-amd-amdhsa--gfx950"\n.text\n'
    txt += a.text()
    txt += f""".section .rodata,"a"
.p2align 6
.amdhsa_kernel {k}
  .amdhsa_next_free_vgpr {nv}
  .amdhsa_next_free_sgpr {102 if STAMPS else 72}
  .amdhsa_accum_offset {(nv + 3) // 4 * 4}
  .amdhsa_group_segment_fixed_size 0
  .amdhsa_kernarg_size 80
  .amdhsa_user_sgpr_count 2
  .amdhsa_user_sgpr_kernarg_segment_ptr 1
  .amdhsa_system_sgpr_workgroup_id_x 1
.end_amdhsa_kernel
"""
    open(out, "w").write(txt)


if __name__ == "__main__":
    main()
```

```python
import math, os, struct, sys

NAME = "gated_mix__mha_block__mha_block__prompt"

VH = 320
VG = 2 * VH
TILE = 2048 + 4 * VG
TPAIR = 512 + 2 * TILE
CHUNK = 4 * TPAIR


def toff(t):
    return (t >> 1) * TPAIR + (t & 1) * TILE
KV_OFF = 0
FLAG_OFF = 0x0A00000
OFLAG_OFF = 0x0A20000
O_OFF = 0x0B00000
OPAIR = 2304
OTILE = 32 * OPAIR
WS_USED = 0x1000000
XBYTES = 2048 * 576 * 2
WQKV_BYTES = 576 * 1728 * 2
WO_BYTES = 576 * 576 * 2
CSCALE = (18 ** -0.5) * math.log2(math.e)

STAMPS = int(os.environ.get("STAMPS", "0"))
STAMP_OFF = 0x1000000
if STAMPS:
    WS_USED = 0x1100000
ALIGN = int(os.environ.get("ALIGN", "1"))
STEAL = int(os.environ.get("STEAL", "1"))
TLBW = int(os.environ.get("TLBW", "1"))
DIAG = int(os.environ.get("DIAG", "-1"))
PRIOI = int(os.environ.get("PRIOI", "6"))
VMASK = int(os.environ.get("VMASK", "1"))
VPOS = int(os.environ.get("VPOS", "3"))
CLAIM = int(os.environ.get("CLAIM", "4"))
LEARLY = int(os.environ.get("LEARLY", "0"))
CPF = int(os.environ.get("CPF", "1"))
DPF = int(os.environ.get("DPF", "4"))

G_SLOT = 49152
LDS_BYTES = 163840
SCR = CHUNK
SYNC = LDS_BYTES - 1024
RING = [0, SYNC - CHUNK, CHUNK + 4096]
SPIN_LIMIT = 1 << 19


WMASK = ~((1 << 15) | (1 << 27) | (1 << 39) | (1 << 51)) & ((1 << 64) - 1)


def f32bits(x):
    return struct.unpack("<I", struct.pack("<f", x))[0]


class Asm:
    def __init__(self):
        self.secs = {"entry": []}
        self.lines = self.secs["entry"]
        self.nlab = 0

    def sec(self, name):
        self.lines = self.secs.setdefault(name, [])

    def __call__(self, s):
        for ln in s.strip("\n").split("\n"):
            ln = ln.strip()
            if not ln:
                continue
            if ln.endswith(":") or ln.startswith("."):
                self.lines.append(ln)
            else:
                self.lines.append("    " + ln)

    def label(self, base="L"):
        self.nlab += 1
        return f"{base}_{self.nlab}"

    def text(self):
        order = ["entry", "loader", "compute", "tail", "exact", "end"]
        assert sorted(order) == sorted(self.secs)
        return "\n".join("\n".join(self.secs[k]) for k in order) + "\n"


def isize(ln):
    t = ln.split(";")[0].strip()
    if not t or t.endswith(":"):
        return 0
    op = t.split()[0]
    if op.startswith(("v_mfma", "v_smfmac", "ds_", "buffer_")) or op.endswith("_e64"):
        return 8
    assert op in ("v_exp_f32", "v_add_u32", "v_mov_b32") or op.startswith("s_"), t
    assert "0x" not in t, t
    return 4


def align8(lines):
    out, off = [], 0
    for ln in lines:
        n = isize(ln)
        if n == 8 and off % 8:
            o = off
            for k in range(len(out) - 1, -1, -1):
                m = isize(out[k])
                if m == 8:
                    k = -1
                    break
                o -= m
                if m == 4 and o % 8 == 0 and out[k].split()[0] == "v_exp_f32":
                    out[k] = out[k].replace("v_exp_f32", "v_exp_f32_e64")
                    break
            else:
                k = -1
            if k != -1:
                off += 4
        out.append(ln)
        off += n
    return out


def vr(b, n):
    return f"v[{b}:{b+n-1}]"


def stamp(a, n, wait=False, mode=1):
    if STAMPS == mode:
        a(f"{'s_memtime' if mode in (1, 9) else 's_memrealtime'} s[{72+2*n}:{73+2*n}]")
        if wait:
            a("s_waitcnt lgkmcnt(0)")


def gen(a):
    name = NAME + "_kernel"
    a(f"""
.globl {name}
.p2align 8
.type {name},@function
{name}:
""")
    SX, SW, SWS, SG, SD = 4, 8, 12, 16, 52
    SWA, SWB, SO = 4, 8, 16
    sW_, sP, sTG, sWV, sJ, sTP = 20, 21, 22, 23, 24, 25
    sXb, sWb, sM0x, sM0w, sA, sB, sT, sT2 = 26, 27, 28, 29, 30, 31, 32, 33
    sMASK = 34
    sKVp, sC, sN, sRS = 36, 37, 38, 39
    sDl, sU, sOm, sOh = 56, 57, 58, 59
    sNON, sRDY, sFB, sSPIN = 60, 61, 62, 63
    sCG, sT0, sTT, sKQ, sTG2 = 64, 65, 66, 67, 68
    sC2 = 70
    sD3 = 48
    sLI = sWV
    vL, vL16 = 1, 2
    NV = 168
    a(f"""
    s_cmp_ge_u32 s2, 256
    s_cbranch_scc1 L_done
    """)
    if STAMPS:
        a("s_memtime s[72:73]\ns_memrealtime s[96:97]")
    a(f"""
    s_load_dwordx2 s[{SX}:{SX+1}], s[0:1], 0            ; x
    s_bitcmp1_b32 s2, 2
    s_cselect_b32 s{sT}, 32, 8
    s_load_dwordx2 s[{SW}:{SW+1}], s[0:1], s{sT}
    s_load_dwordx2 s[{SG}:{SG+1}], s[0:1], 48           ; gate_w
    s_load_dwordx2 s[{SD}:{SD+1}], s[0:1], 64           ; debug
    s_load_dwordx2 s[{SWS}:{SWS+1}], s[0:1], 72         ; ws
    """)
    if CPF:
        a(f"""
        s_getpc_b64 s[{sA}:{sA+1}]
        v_subrev_u32 v10, 256, v0
        v_lshlrev_b32 v10, 7, v10
        v_cmp_gt_u32 vcc, L_done - {name} - 64, v10
        s_and_saveexec_b64 s[{sT}:{sT+1}], vcc
        s_cbranch_execz L_cpf
        global_load_dword v7, v10, s[{sA}:{sA+1}]
        L_cpf:
        s_mov_b64 exec, -1
        """)
    a(f"""
    v_lshrrev_b32 v10, 6, v0
    v_and_b32 v{vL}, 63, v0
    s_bfe_u32 s{sTG}, s2, 0x30003
    v_readfirstlane_b32 s{sWV}, v10
    s_and_b32 s{sP}, s2, 7
    s_lshl_b32 s{sP}, s{sP}, 2
    s_lshr_b32 s{sT2}, s2, 6
    s_add_u32 s{sP}, s{sP}, s{sT2}
    s_mov_b32 s{SX+2}, {XBYTES}
    s_mov_b32 s{SX+3}, 0x00020000
    s_mov_b32 s{SW+3}, s{SX+3}
    s_mov_b32 s{SG+3}, s{SX+3}
    s_mov_b32 s{SD+3}, s{SX+3}
    s_mov_b32 s{SWS+3}, s{SX+3}
    s_cmp_lt_u32 s{sWV}, 4
    s_cbranch_scc0 L_compute
    v_lshrrev_b32 v12, 3, v{vL}
    v_mul_u32_u24 v12, 1152, v12
    v_lshrrev_b32 v13, 4, v{vL}
    v_and_b32 v14, 7, v{vL}
    v_xor_b32 v14, v14, v13
    v_lshl_add_u32 v3, v14, 4, v12
    v_xor_b32 v14, 4, v14
    v_lshl_add_u32 v4, v14, 4, v12
    v_add_u32 v4, {8*1152 - 1024}, v4
    s_lshl_b32 s{sT}, s{sTG}, 2
    s_add_u32 s{sT}, s{sT}, s{sLI}
    s_mul_i32 s{sXb}, s{sT}, {64*1152}
    s_lshl_b32 s{sM0x}, s{sLI}, 13
    v_lshlrev_b32 v14, 2, v13
    v_xor_b32 v14, v14, v{vL}
    v_and_b32 v14, 15, v14
    v_lshlrev_b32 v15, 2, v14
    s_mov_b32 s{sA}, 0x75752020
    s_mov_b32 s{sA+1}, 0x7446420
    v_lshrrev_b64 v[16:17], v15, s[{sA}:{sA+1}]
    v_and_b32 v16, 15, v16
    v_lshlrev_b32 v14, 1, v14
    s_mov_b32 s{sT}, 0x21aa0505
    v_lshrrev_b32 v14, v14, s{sT}
    v_and_b32 v14, 3, v14
    v_mul_u32_u24 v15, 3, v13
    v_add_u32 v14, v14, v15
    v_mul_u32_u24 v14, 1152, v14
    v_lshl_add_u32 v5, v16, 3, v14
    s_and_b32 s{sT}, s{sP}, 15
    s_mul_i32 s{sT}, s{sT}, 72
    s_mul_i32 s{sWb}, s{sLI}, {16*3456}
    s_add_u32 s{sWb}, s{sWb}, s{sT}
    s_lshl_b32 s{sM0w}, s{sLI}, 12
    s_mov_b32 s{sMASK}, {WMASK & 0xffffffff:#x}
    s_mov_b32 s{sMASK+1}, {WMASK >> 32:#x}
    s_mov_b32 s{SW+2}, {WQKV_BYTES}
    s_waitcnt lgkmcnt(0)
    """)

    def common():
        a(f"""
        s_mov_b32 s{SW+2}, {WQKV_BYTES}
        s_movk_i32 s{SG+2}, 1152
        s_movk_i32 s{SD+2}, 256
        s_mov_b32 s{SWS+2}, {WS_USED}
        v_lshlrev_b32 v{vL16}, 4, v{vL}
        s_mul_i32 s{sKVp}, s{sP}, {8*CHUNK}
        s_mul_i32 s{sKQ}, s{sWV}, 43
        s_lshr_b32 s{sKQ}, s{sKQ}, 7
        s_mul_i32 s{sT}, s{sKQ}, 3
        s_sub_u32 s{sTT}, s{sWV}, s{sT}
        s_mov_b32 s{sSPIN}, {SPIN_LIMIT}
        """)

    sFl, sI, sPd, sBt, sCur, sMode, sWS = 69, 40, 41, 42, 43, 39, 3

    def unit_decode(v):
        a(f"""
        v_readfirstlane_b32 s{sU}, v{v}
        s_nop 3
        s_lshr_b32 s{sTG2}, s{sU}, 8
        s_and_b32 s{sTG2}, s{sTG2}, 7
        s_and_b32 s{sU}, s{sU}, 0xff
        s_lshr_b32 s{sCG}, s{sU}, 1
        s_and_b32 s{sT0}, s{sU}, 1
        s_mul_i32 s{sT0}, s{sT0}, 3
        s_sub_u32 s{sT}, s{sU}, 18
        s_cmp_ge_u32 s{sU}, 18
        s_cselect_b32 s{sCG}, s{sT}, s{sCG}
        s_cselect_b32 s{sT0}, 6, s{sT0}
        s_add_u32 s{sT0}, s{sT0}, s{sTT}
        s_lshl_b32 s{sT}, s{sTG2}, 3
        s_add_u32 s{sT}, s{sT}, s{sT0}
        s_mul_i32 s{sFl}, s{sT}, {OTILE}
        s_mul_i32 s{sT}, s{sKQ}, {8*OPAIR}
        s_add_u32 s{sFl}, s{sFl}, s{sT}
        s_add_u32 s{sFl}, s{sFl}, {O_OFF}
        """)

    vK, vKH, vV, vIDX = 3, 4, 5, 6
    vG = [8, 9]
    vT = [10, 11, 12, 13, 14, 15]
    Qa, Qb = 16, 20
    QH = 24
    Kb = 32
    KHb = [40, 42]
    V0b = [44, 48]
    V1b = [52, 56]
    Oa, Ob = 64, 80
    S = [96, 128]
    vXr = [16, 17, 18, 19]; vWr = [20, 21]
    vXr2 = [22, 23, 24, 25]; vWr2 = [26, 27]
    vU = list(range(32, 48))
    F = [32, 48]
    A0, A1, B0, B1 = 96, 112, 128, 144
    eK, eR, e0, e1, e2, e3, e4 = 160, 161, 162, 163, 164, 165, 166

    a.sec("compute")
    a("L_compute:")
    common()
    a(f"""
    s_sub_u32 s{sW_}, s{sWV}, 4
    s_lshr_b32 s{sJ}, s{sW_}, 2
    s_and_b32 s{sTP}, s{sW_}, 3
    s_load_dwordx2 s[44:45], s[0:1], 56          ; out
    s_mov_b32 s{SO+2}, {XBYTES}
    s_waitcnt lgkmcnt(0)
    s_mov_b64 s[{SO}:{SO+1}], s[44:45]
    """)
    if TLBW:
        a(f"""
        s_cmp_eq_u32 s{sW_}, 2
        s_cbranch_scc0 L_tlb
        v_lshlrev_b32 v{vT[5]}, 20, v{vL}
        s_lshl_b32 s{sT}, s2, 7
        s_mov_b64 exec, 0xffff
        buffer_load_dword v7, v{vT[5]}, s[{SWS}:{SWS+3}], s{sT} offen sc1
        s_mov_b64 exec, 7
        buffer_load_dword v7, v{vT[5]}, s[{SO}:{SO+3}], s{sT} offen
        s_mov_b64 exec, -1
        L_tlb:
        """)
    if DPF:
        a(f"""
        s_cmp_eq_u32 s{sW_}, 0
        s_cbranch_scc0 L_dpfa
        v_and_b32 v{vT[5]}, 1, v{vL}
        v_bfe_u32 v{vT[4]}, v{vL}, 1, 3
        v_mul_u32_u24 v{vT[4]}, 1152, v{vT[4]}
        v_lshl_add_u32 v{vT[5]}, v{vT[5]}, 7, v{vT[4]}
        s_mul_i32 s{sT}, s2, {8*1152}
        s_mov_b64 exec, 0xffff
        buffer_load_dword v7, v{vT[5]}, s[{SX}:{SX+3}], s{sT} offen offset:256
        s_mov_b64 exec, -1
        L_dpfa:
        s_cmp_eq_u32 s{sW_}, 1
        s_cbranch_scc0 L_dpfb
        v_lshlrev_b32 v{vT[5]}, 7, v{vL}
        s_and_b32 s{sT}, s{sP}, 15
        s_lshl_b32 s{sT}, s{sT}, 3
        s_add_u32 s{sT}, s{sT}, s{sTG}
        s_mul_i32 s{sT}, s{sT}, 3456
        s_add_u32 s{sT}, s{sT}, {128*3456}
        s_mov_b64 exec, 0x7ffffff
        buffer_load_dword v7, v{vT[5]}, s[{SW}:{SW+3}], s{sT} offen
        s_mov_b64 exec, -1
        L_dpfb:
        """)
    a(f"""
    v_and_b32 v{vU[0]}, 31, v{vL}                ; tau
    v_lshrrev_b32 v{vU[1]}, 5, v{vL}             ; h
    s_lshl_b32 s{sT}, s{sTP}, 13
    v_lshlrev_b32 v{vU[2]}, 7, v{vU[0]}
    v_add_u32 v{vU[2]}, s{sT}, v{vU[2]}
    v_bfe_u32 v{vU[3]}, v{vU[0]}, 1, 3
    v_xor_b32 v{vU[3]}, v{vU[3]}, v{vU[1]}
    """)
    for ks in range(4):
        a(f"""
        v_xor_b32 v{vU[4]}, {2*ks}, v{vU[3]}
        v_lshl_add_u32 v{vXr[ks]}, v{vU[4]}, 4, v{vU[2]}
        v_add_u32 v{vXr2[ks]}, {2*G_SLOT}, v{vXr[ks]}
        """)
    a(f"""
    v_bfe_u32 v{vU[2]}, v{vL}, 2, 2              ; r
    v_lshl_add_u32 v{vU[3]}, v{vU[1]}, 3, v{vU[2]}
    v_lshlrev_b32 v{vU[3]}, 8, v{vU[3]}
    v_add_u32 v{vU[3]}, 32768, v{vU[3]}
    v_and_b32 v{vU[4]}, 3, v{vL}                 ; c
    v_bfe_u32 v{vU[5]}, v{vL}, 4, 1              ; sub
    v_lshl_add_u32 v{vU[6]}, v{vU[5]}, 2, v{vU[4]}
    v_lshl_add_u32 v{vU[7]}, v{vU[6]}, 3, v{vU[3]}
    v_xor_b32 v{vWr[0]}, s{sJ}, v{vU[2]}
    v_lshl_add_u32 v{vWr[0]}, v{vWr[0]}, 6, v{vU[7]}
    v_cmp_eq_u32 vcc, 2, v{vU[4]}
    v_lshlrev_b32 v{vU[6]}, 4, v{vU[4]}
    v_mov_b32 v{vU[8]}, 40
    v_cndmask_b32 v{vU[6]}, v{vU[6]}, v{vU[8]}, vcc
    v_cmp_eq_u32 vcc, 1, v{vU[5]}
    v_mov_b32 v{vU[8]}, 56
    s_nop 0
    v_cndmask_b32 v{vU[5]}, v{vU[6]}, v{vU[8]}, vcc
    v_add_u32 v{vU[5]}, v{vU[5]}, v{vU[3]}
    s_cmp_eq_u32 s{sJ}, 1
    s_cselect_b64 vcc, -1, 0
    s_add_u32 s{sT}, s{sJ}, 2
    v_cndmask_b32 v{vU[7]}, v{vU[7]}, v{vU[5]}, vcc
    v_xor_b32 v{vWr[1]}, s{sT}, v{vU[2]}
    v_lshl_add_u32 v{vWr[1]}, v{vWr[1]}, 6, v{vU[7]}
    v_add_u32 v{vWr2[0]}, {2*G_SLOT}, v{vWr[0]}
    v_add_u32 v{vWr2[1]}, {2*G_SLOT}, v{vWr[1]}
    """)
    for r in range(Oa, A0 + 64):
        a(f"v_mov_b32 v{r}, 0")
    a(f"""
    s_lshl_b32 s{sT}, s{sJ}, 10
    s_add_u32 s{sT}, s{sT}, 512
    v_add_u32 v{vK}, s{sT}, v{vL16}
    v_lshlrev_b32 v{vKH}, 2, v{vL}
    s_lshl_b32 s{sT2}, s{sJ}, 8
    v_add_u32 v{vKH}, s{sT2}, v{vKH}
    v_mov_b32 v{vU[2]}, 4
    v_cmp_gt_u32 vcc, 19, v{vU[0]}
    v_mov_b32 v{vU[3]}, 19
    s_nop 0
    v_cndmask_b32 v{vU[2]}, v{vU[2]}, v{vU[0]}, vcc
    v_cmp_eq_u32 vcc, 4, v{vU[0]}
    v_mul_u32_u24 v{vU[4]}, {VH}, v{vU[1]}
    s_mul_i32 s{sT2}, s{sJ}, {2*VG}
    s_add_u32 s{sT2}, s{sT2}, 2560
    v_cndmask_b32 v{vU[2]}, v{vU[2]}, v{vU[3]}, vcc
    v_lshl_add_u32 v{vV}, v{vU[2]}, 4, v{vU[4]}
    v_add_u32 v{vV}, s{sT2}, v{vV}
    v_mov_b32 v{vIDX}, 0xdddddddd
    s_lshl_b32 s{sT}, s{sTG}, 3
    s_lshl_b32 s{sT2}, s{sTP}, 1
    s_add_u32 s{sT}, s{sT}, s{sT2}
    s_mul_i32 s{sA}, s{sT}, {OTILE}
    s_mul_i32 s{sT}, s{sP}, {OPAIR}
    s_add_u32 s{sA}, s{sA}, s{sT}
    s_add_u32 s{sA}, s{sA}, {O_OFF}
    s_lshl_b32 s{sT}, s{sJ}, 10
    s_add_u32 s{sOm}, s{sA}, s{sT}
    s_lshl_b32 s{sT}, s{sJ}, 7
    s_add_u32 s{sOh}, s{sA}, s{sT}
    s_mov_b32 s{sD3}, {(RING[1]-RING[0]) & 0xffffffff:#x}
    s_mov_b32 s{sD3+1}, {(RING[2]-RING[1]) & 0xffffffff:#x}
    s_mov_b32 s{sD3+2}, {(RING[0]-RING[2]) & 0xffffffff:#x}
    s_mov_b32 s{sC2}, {f32bits(CSCALE):#x}
    s_mov_b32 s{sC2+1}, {f32bits(CSCALE):#x}
    v_and_b32 v{vU[2]}, 0x13, v{vU[0]}
    v_and_b32 v{vU[3]}, 4, v{vU[0]}
    v_lshl_or_b32 v{vU[2]}, v{vU[3]}, 1, v{vU[2]}
    v_and_b32 v{vU[3]}, 8, v{vU[0]}
    v_lshrrev_b32 v{vU[3]}, 1, v{vU[3]}
    v_or_b32 v{vU[2]}, v{vU[2]}, v{vU[3]}        ; kappa
    s_lshl_b32 s{sT}, s{sJ}, 10
    s_mul_i32 s{sB}, s{sTP}, {TPAIR}
    s_add_u32 s{sT}, s{sT}, s{sB}
    s_add_u32 s{sT}, s{sT}, 512
    v_lshlrev_b32 v{eK}, 9, v{vU[1]}
    v_lshl_add_u32 v{eK}, v{vU[2]}, 4, v{eK}
    v_add_u32 v{eK}, s{sT}, v{eK}
    s_lshl_b32 s{sT}, s{sTP}, 8
    s_add_u32 s{sT}, s{sT}, {SCR}
    v_lshlrev_b32 v{eR}, 2, v{vU[0]}
    v_add_u32 v{eR}, s{sT}, v{eR}
    s_cmp_eq_u32 s{sJ}, 1
    s_cbranch_scc1 L_a1
    v_subrev_u32 v{vU[3]}, 18, v{vU[0]}
    v_cmp_le_u32 vcc, 18, v{vU[0]}
    v_mov_b32 v{vU[5]}, {2*VG}
    v_mov_b32 v{vU[6]}, 19
    v_cndmask_b32 v{vU[3]}, v{vU[0]}, v{vU[3]}, vcc
    v_cndmask_b32 v{vU[5]}, 0, v{vU[5]}, vcc
    v_cmp_eq_u32 vcc, 4, v{vU[3]}
    s_add_u32 s{sT}, s{sB}, 2560
    s_nop 0
    v_cndmask_b32 v{vU[3]}, v{vU[3]}, v{vU[6]}, vcc
    v_lshl_add_u32 v{e0}, v{vU[3]}, 4, v{vU[5]}
    v_add3_u32 v{e0}, v{e0}, v{vU[4]}, s{sT}
    s_branch L_a2
    L_a1:
    v_lshlrev_b32 v{e0}, 2, v{vU[2]}
    v_add_u32 v{e0}, s{sB}, v{e0}
    v_cmp_eq_u32 vcc, 1, v{vU[1]}
    v_add_u32 v{vU[5]}, 256, v{e0}
    v_add_u32 v{vU[6]}, 1024, v{eR}
    v_cndmask_b32 v{e0}, v{e0}, v{eR}, vcc
    v_cndmask_b32 v{e1}, v{vU[5]}, v{vU[6]}, vcc
    v_mov_b32 v{vU[5]}, 1.0
    v_mov_b32 v{vU[6]}, s{sC2}
    v_cndmask_b32 v{e2}, v{vU[5]}, v{vU[6]}, vcc
    v_lshrrev_b32 v{vU[3]}, 3, v{vU[2]}
    v_mul_u32_u24 v{vU[3]}, {VH}, v{vU[3]}
    v_and_b32 v{vU[5]}, 7, v{vU[2]}
    v_lshl_add_u32 v{e3}, v{vU[5]}, 1, v{vU[3]}
    s_add_u32 s{sT}, s{sB}, {2560 + 2*VG}
    v_add_u32 v{e3}, s{sT}, v{e3}
    L_a2:
    s_lshl_b32 s{sT}, s{sJ}, 10
    v_lshl_add_u32 v{e4}, v{vU[1]}, 7, v{eR}
    v_add_u32 v{e4}, s{sT}, v{e4}
    s_mov_b32 s{sMASK}, 0x7ffff
    s_mov_b32 s{sMASK+1}, 0x7ffff
    s_lshl_b32 s{sT}, s{sW_}, 2
    s_add_u32 s{sT}, s{sT}, {SYNC}
    v_mov_b32 v167, s{sT}
    """)
    a("s_waitcnt lgkmcnt(0)")

    def reads(n, ks, f):
        s = n % 3
        xr = vXr2 if s == 2 else vXr
        wr = vWr2 if s == 2 else vWr
        so = G_SLOT if s == 1 else 0
        b = F[f]
        wo = so + ks * 16 * 256
        return [
            f"ds_read_b128 {vr(b,4)}, v{xr[ks]} offset:{so}",
            f"ds_read_b64_tr_b16 {vr(b+8,2)}, v{wr[0]} offset:{wo}",
            f"ds_read_b64_tr_b16 {vr(b+10,2)}, v{wr[0]} offset:{wo+1024}",
            f"ds_read_b128 {vr(b+4,4)}, v{xr[ks]} offset:{so+4096}",
            f"ds_read_b64_tr_b16 {vr(b+12,2)}, v{wr[1]} offset:{wo}",
            f"ds_read_b64_tr_b16 {vr(b+14,2)}, v{wr[1]} offset:{wo+1024}",
        ]

    def mfmas(f, j):
        b = F[f]
        X0, X1, Wa, Wb = vr(b, 4), vr(b + 4, 4), vr(b + 8, 4), vr(b + 12, 4)
        m = [f"v_mfma_f32_32x32x16_bf16 {vr(A0,16)}, {Wa}, {X0}, {vr(A0,16)}",
             f"v_mfma_f32_32x32x16_bf16 {vr(A1,16)}, {Wa}, {X1}, {vr(A1,16)}"]
        if j == 0:
            m += [f"v_mfma_f32_32x32x16_bf16 {vr(B0,16)}, {X0}, {Wb}, {vr(B0,16)}",
                  f"v_mfma_f32_32x32x16_bf16 {vr(B1,16)}, {X1}, {Wb}, {vr(B1,16)}"]
        else:
            m += [f"v_mfma_f32_32x32x16_bf16 {vr(B0,16)}, {Wb}, {X0}, {vr(B0,16)}",
                  f"v_mfma_f32_32x32x16_bf16 {vr(B1,16)}, {Wb}, {X1}, {vr(B1,16)}"]
        x = int(os.environ.get("XDROP", "0"))
        if x == 1 and j == 1:
            m[3] = "s_nop 0"
        if x == 2:
            m[3] = "s_nop 0"
        if x == 4:
            m[1] = m[3] = "s_nop 0"
        return m

    stamp(a, 7, True, mode=9)
    a("s_barrier")
    stamp(a, 1, True)
    stamp(a, 1, True, mode=4)
    for r in reads(0, 0, 0):
        a(r)
    a(f"""
    s_mov_b32 s{sN}, 0
    s_cmp_eq_u32 s{sJ}, 1
    s_cbranch_scc1 L_g1
    """)
    for j in range(2):
        a(f"L_g{j}:")
        for n in range(3):
            for ks in range(3):
                for r in reads(n, ks + 1, (ks + 1) & 1):
                    a(r)
                a("s_waitcnt lgkmcnt(6)")
                for m in mfmas(ks & 1, j):
                    a(m)
            a("s_waitcnt lgkmcnt(0)")
            if n == 2:
                a(f"""
                s_add_u32 s{sN}, s{sN}, 1
                s_cmp_eq_u32 s{sN}, 3
                s_cbranch_scc1 L_ge{j}
                """)
            a("s_barrier")
            for r in reads(n + 1, 0, 0):
                a(r)
            for m in mfmas(1, j):
                a(m)
        a(f"s_branch L_g{j}")
        a(f"L_ge{j}:")
        for m in mfmas(1, j):
            a(m)
        stamp(a, 2)
        stamp(a, 2, mode=4)
        a(f"""
        v_mov_b32 v{KHb[0]+1}, 0x3f803f80
        v_mov_b32 v{KHb[1]+1}, 0x3f803f80
        v_mov_b32 v{V0b[0]}, 0
        v_mov_b32 v{V0b[0]+1}, 0
        v_mov_b32 v{V0b[0]+2}, 0
        v_mov_b32 v{V0b[0]+3}, 0
        s_mov_b32 s{sN}, 0
        s_mov_b32 s{sFB}, 0
        s_nop 0
        """)
        for t, A in enumerate((A0, A1)):
            for i in range(4):
                a(f"v_cvt_pk_bf16_f32 v{A+i}, v{A+2*i}, v{A+2*i+1}")
            a(f"ds_write_b128 v{eK}, {vr(A,4)} offset:{TILE*t}")
        if j == 0:
            for t, B in enumerate((B0, B1)):
                for i in range(8):
                    a(f"v_cvt_pk_bf16_f32 v{B+i}, v{B+2*i}, v{B+2*i+1}")
                for u in range(2):
                    a(f"ds_write_b128 v{e0}, {vr(B+4*u,4)} offset:{t*TILE + u*VG}")
            a("s_branch L_ep")
        else:
            a(f"""
            s_mov_b32 exec_lo, 0
            ds_write_b32 v{eR}, v{B0+4} offset:2048
            ds_write_b32 v{eR}, v{B1+4} offset:{2048+128}
            s_mov_b32 exec_lo, -1
            """)
            for t, B in enumerate((B0, B1)):
                for i in range(4):
                    a(f"v_mul_f32 v{B+i}, v{e2}, v{B+i}")
                for i in range(4):
                    a(f"v_cvt_pk_bf16_f32 v{B+8+i}, v{B+2*i}, v{B+2*i+1}")
                a(f"ds_write_b32 v{e0}, v{B+8} offset:{128*t}")
                a(f"ds_write_b32 v{e1}, v{B+9} offset:{128*t}")
            a("s_mov_b32 exec_hi, 0")
            for t, B in enumerate((B0, B1)):
                o = t * TILE + 14 * 16
                a(f"ds_write_b16 v{e3}, v{B+10} offset:{o}")
                a(f"ds_write_b16_d16_hi v{e3}, v{B+10} offset:{o+16}")
                a(f"ds_write_b16 v{e3}, v{B+11} offset:{o+32}")
                a(f"ds_write_b16_d16_hi v{e3}, v{B+11} offset:{o+48}")
            a("s_mov_b32 exec_hi, -1")
    a("L_ep:")
    for t, (A, Q) in enumerate(((A0, Qa), (A1, Qb))):
        for i in range(4):
            a(f"v_pk_mul_f32 {vr(A+8+2*i,2)}, {vr(A+8+2*i,2)}, s[{sC2}:{sC2+1}]")
        for i in range(4):
            a(f"v_cvt_pk_bf16_f32 v{Q+i}, v{A+8+2*i}, v{A+8+2*i+1}")


    def qk(dst, kb, q, acc=True):
        return f"v_mfma_f32_32x32x16_bf16 {vr(dst,16)}, {vr(kb,4)}, {vr(q,4)}, {vr(dst,16) if acc else 0}"

    def qkh(dst, khb, par):
        return f"v_mfma_f32_32x32x4_2b_bf16 {vr(dst,32)}, {vr(khb,2)}, {vr(QH,2)}, 0 cbsz:1 abid:{par}"

    def pv(o, vb, p):
        return f"v_smfmac_f32_32x32x32_bf16 {vr(o,16)}, {vr(vb,4)}, {vr(p,8)}, v{vIDX}"

    def vread(t, buf):
        if not VMASK:
            return f"""
            ds_read_b128 {vr(V0b[buf],4)}, v{vV} offset:{toff(t)}
            ds_read_b128 {vr(V1b[buf],4)}, v{vV} offset:{toff(t) + VG}
            """
        return f"""
        s_mov_b64 exec, s[{sMASK}:{sMASK+1}]
        ds_read_b128 {vr(V0b[buf],4)}, v{vV} offset:{toff(t)}
        ds_read_b128 {vr(V1b[buf],4)}, v{vV} offset:{toff(t) + VG}
        s_mov_b64 exec, -1
        """

    a(f"v_cmp_gt_u32 vcc, 32, v{vL}")
    for r in range(V0b[1], V1b[1] + 4):
        a(f"v_mov_b32 v{r}, 0")
    a("s_waitcnt vmcnt(0) lgkmcnt(0)")
    X, Y = S
    a(qk(Y, A0, Qa, False)); a(qk(Y + 16, A0, Qb, False))
    a("s_barrier")
    stamp(a, 3, True)
    a(f"""
    ds_read_b32 v{vG[0]}, v{eR} offset:2048
    ds_read_b32 v{vG[1]}, v{eR} offset:{2048+128}
    ds_read_b32 v{KHb[0]}, v{vKH}
    ds_read_b32 v{QH}, v{e4}
    ds_read_b128 {vr(Kb,4)}, v{vK}
    """)
    a(vread(0, 0))
    a(f"""
    s_mov_b32 s{sT}, {f32bits(-math.log2(math.e)):#x}
    s_cmp_ge_u32 s{sP}, 16
    s_cselect_b32 s{sT}, {f32bits(math.log2(math.e)):#x}, s{sT}
    s_nop 0
    """)
    for t in range(2):
        b = Y + 16 * t
        a(f"v_max3_f32 v{vT[t]}, v{b}, v{b+1}, v{b+2}")
        for i in range(3, 9, 2):
            a(f"v_max3_f32 v{vT[t]}, v{vT[t]}, v{b+i}, v{b+i+1}")
    a(f"""
    v_cndmask_b32 v{vT[0]}, v{vT[1]}, v{vT[0]}, vcc
    v_lshrrev_b32 v{vT[0]}, 16, v{vT[0]}
    v_xor_b32 v{QH+1}, 0x8000, v{vT[0]}
    s_waitcnt lgkmcnt(3)
    v_mul_f32 v{vG[0]}, s{sT}, v{vG[0]}
    """)
    a(qkh(X, KHb[0], 0))
    a(f"""
    v_mul_f32 v{vG[1]}, s{sT}, v{vG[1]}
    v_exp_f32 v{vG[0]}, v{vG[0]}
    v_exp_f32 v{vG[1]}, v{vG[1]}
    """)
    for r in range(Y + 24, Y + 32):
        a(f"v_mov_b32 v{r}, 0")
    a(f"""
    v_add_f32 v{vG[0]}, 1.0, v{vG[0]}
    v_add_f32 v{vG[1]}, 1.0, v{vG[1]}
    v_rcp_f32 v{vG[0]}, v{vG[0]}
    v_rcp_f32 v{vG[1]}, v{vG[1]}
    s_waitcnt lgkmcnt(0)
    s_nop 1
    """)
    a(qk(X, Kb, Qa)); a(qk(X + 16, Kb, Qb))

    def E(b, n=4):
        for r in range(b, b + n):
            a(f"v_exp_f32 v{r}, v{r}")

    stamp(a, 4)
    stamp(a, 3, mode=4)
    a("s_setprio 1")
    a("s_nop 9")
    a(".p2align 6")
    a("L_loop:")
    loop0 = len(a.lines) - 1
    for i in range(8):
        X = S[i & 1]; Y = S[(i + 1) & 1]
        tn = (i + 1) & 7
        khb = KHb[(tn >> 1) & 1]
        if i == 7:
            a(f"""
            s_cbranch_scc1 L_nb7
            s_barrier
            L_nb7:
            s_setprio 1
            v_add_u32 v{vKH}, s{sDl}, v{vKH}
            v_add_u32 v{vK}, s{sDl}, v{vK}
            ds_read_b32 v{khb}, v{vKH}
            v_add_u32 v{vV}, s{sDl}, v{vV}
            """)
        E(X, 2)
        a(pv(Ob, V1b[(i + 1) & 1], Y + 24))
        if i == PRIOI:
            a("s_setprio 0")
        kread = f"ds_read_b128 {vr(Kb,4)}, v{vK} offset:{toff(tn)}"
        if i in (0, 2, 4):
            kread += f"\nds_read_b32 v{KHb[((i>>1)+1)&1]}, v{vKH} offset:{((i>>1)+1)*TPAIR}"
        vrd = vread(tn, (i + 1) & 1)
        a(vrd if VPOS == 1 else kread)
        E(X + 2, 4)
        if i == 7:
            a(f"s_waitcnt lgkmcnt({2 if VPOS == 1 else 1})")
        a(qkh(Y, khb, tn & 1))
        a(vrd if VPOS == 0 else kread if VPOS == 1 else "")
        E(X + 6, 8)
        a(pv(Oa, V0b[i & 1], X))
        if VPOS == 3:
            a("s_waitcnt lgkmcnt(0)")
        if VPOS >= 2:
            a(vrd)
        E(X + 14, 4)
        a(pv(Oa, V1b[i & 1], X + 8))
        if VPOS != 3:
            a(f"s_waitcnt lgkmcnt({2 if VPOS == 2 else 0})")
        if i == 1:
            a(f"s_mov_b32 s{sDl}, s{sD3}")
        if i == 3:
            a(f"s_mov_b32 s{sD3+1}, s{sD3+2}")
        if i == 7:
            a(f"s_add_u32 s{sN}, s{sN}, 1")
        E(X + 18, 4)
        a(qk(Y, Kb, Qa))
        if i == 1:
            a(f"s_mov_b32 s{sD3}, s{sD3+1}")
        if i == 2:
            a(f"v_mov_b32 v7, s{sN}")
        if i == 5:
            a(f"s_mov_b32 s{sD3+2}, s{sDl}")
        if i == 6:
            a(f"s_cmp_eq_u32 s{sN}, 7")
        if i == 7:
            a(f"s_cmp_lt_u32 s{sN}, 8")
        E(X + 22, 4)
        a(pv(Ob, V0b[i & 1], X + 16))
        if VPOS >= 2:
            a("s_waitcnt lgkmcnt(0)")
        E(X + 26, 3)
        a(qk(Y + 16, Kb, Qb))
        if i == 3:
            a("ds_write_b32 v167, v7")
        E(X + 29, 3)
    if ALIGN:
        a.lines[loop0:] = align8(a.lines[loop0:])
    a(f"""
    s_cbranch_scc1 L_loop
    s_nop 0
    """)
    stamp(a, 5)
    stamp(a, 1, mode=3)
    stamp(a, 4, mode=4)
    a(pv(Ob, V1b[1], S[1] + 24))
    a(f"""
    v_mov_b32 v{vT[5]}, {SYNC + 48}
    ds_read_b32 v160, v{vT[5]}
    s_nop 9
    L_fin:
    """)
    for t, O in enumerate((Oa, Ob)):
        a(f"v_mov_b32 v{vT[2*t]}, v{O+10}")
        a(f"v_mov_b32 v{vT[2*t+1]}, v{O+10}")
    a(f"v_max3_f32 v{vT[4]}, |v{Oa}|, |v{Oa+1}|, |v{Ob}|")
    a(f"v_max_f32 v{vT[4]}, v{vT[4]}, |v{Ob+1}|")
    a(f"v_permlane32_swap_b32 v{vT[0]}, v{vT[1]}")
    a(f"v_permlane32_swap_b32 v{vT[2]}, v{vT[3]}")
    for i in range(2, 10):
        a(f"v_max3_f32 v{vT[4]}, v{vT[4]}, |v{Oa+i}|, |v{Ob+i}|")
    a(f"""
    s_cmp_eq_u32 s{sFB}, 0
    s_cbranch_scc0 L_store
    s_mov_b32 s{sT}, {f32bits(2.0**40):#x}
    s_mov_b32 s{sT2}, {f32bits(2.0**-24):#x}
    s_mov_b32 s{sA}, 0x7f800000
    v_cmp_nge_f32 vcc, s{sT}, v{vT[0]}
    v_cmp_nge_f32 s[44:45], s{sT}, v{vT[2]}
    v_cmp_nle_f32 s[46:47], s{sT2}, v{vT[0]}
    s_or_b64 vcc, vcc, s[44:45]
    v_cmp_nle_f32 s[44:45], s{sT2}, v{vT[2]}
    s_or_b64 vcc, vcc, s[46:47]
    v_cmp_ngt_f32 s[46:47], s{sA}, v{vT[4]}
    s_or_b64 vcc, vcc, s[44:45]
    s_nop 0
    s_or_b64 vcc, vcc, s[46:47]
    s_cbranch_vccnz L_exact
    L_store:
    v_rcp_f32 v{vT[0]}, v{vT[0]}
    v_rcp_f32 v{vT[2]}, v{vT[2]}
    v_lshrrev_b32 v{vT[4]}, 5, v{vL}
    v_mul_u32_u24 v{vT[4]}, {OTILE - 128}, v{vT[4]}
    v_lshl_add_u32 v{vT[4]}, v{vL}, 2, v{vT[4]}
    s_add_u32 s{sB}, s{sOm}, {OTILE}
    v_mul_f32 v{vT[0]}, v{vT[0]}, v{vG[0]}
    v_mul_f32 v{vT[2]}, v{vT[2]}, v{vG[1]}
    v_mov_b32 v{vT[1]}, v{vT[0]}
    v_mov_b32 v{vT[3]}, v{vT[2]}
    """)
    for t, O in enumerate((Oa, Ob)):
        for i in range(5):
            a(f"v_pk_mul_f32 {vr(O+2*i,2)}, {vr(O+2*i,2)}, {vr(vT[2*t],2)}")
        pk = 16 + 4 * t
        for i in range(4):
            a(f"v_cvt_pk_bf16_f32 v{pk+i}, v{O+2*i}, v{O+2*i+1}")
        a(f"v_cvt_pk_bf16_f32 v{24+t}, v{O+8}, v{O+9}")
        for r in list(range(pk, pk + 4)) + [24 + t]:
            a(f"v_min_u32 v{r}, -2, v{r}")
        a(f"buffer_store_dwordx4 {vr(pk,4)}, v{vL16}, s[{SWS}:{SWS+3}], s{sOm if t == 0 else sB} offen sc1")
    a(f"""
    s_nop 0
    v_permlane32_swap_b32 v24, v25
    s_setprio 0
    buffer_store_dword v24, v{vT[4]}, s[{SWS}:{SWS+3}], s{sOh} offen offset:2048 sc1
    v_mov_b32 v7, 8
    ds_write_b32 v167, v7
    s_waitcnt lgkmcnt(1)
    """)
    unit_decode(160)
    stamp(a, 6)
    stamp(a, 2, mode=3)

    a.sec("exact")
    X = S[0]
    a(f"""
    L_exact:
    s_mov_b32 s{sFB}, 1
    v_mov_b32 v{QH+1}, 0
    v_and_b32 v{vKH}, 31, v{vL}
    v_mov_b32 v{vT[2]}, 4
    v_cmp_gt_u32 vcc, 19, v{vKH}
    v_mov_b32 v{vT[3]}, 19
    v_lshrrev_b32 v{vT[4]}, 5, v{vL}
    v_cndmask_b32 v{vT[2]}, v{vT[2]}, v{vKH}, vcc
    v_cmp_eq_u32 vcc, 4, v{vKH}
    v_mul_u32_u24 v{vT[4]}, {VH}, v{vT[4]}
    v_lshlrev_b32 v{vKH}, 2, v{vKH}
    v_cndmask_b32 v{vT[2]}, v{vT[2]}, v{vT[3]}, vcc
    v_lshl_add_u32 v{vV}, v{vT[2]}, 4, v{vT[4]}
    v_mov_b32 v{vT[0]}, 0xff800000
    v_mov_b32 v{vT[1]}, 0xff800000
    """)
    for r in range(Oa, Oa + 32):
        a(f"v_mov_b32 v{r}, 0")
    for ps in range(2):
        a(f"""
        s_mov_b32 s{sN}, 0
        L_x{ps}:
        s_lshr_b32 s{sT}, s{sN}, 1
        s_mul_i32 s{sT}, s{sT}, {TPAIR}
        s_add_u32 s{sT}, s{sT}, s{sKVp}
        s_and_b32 s{sT2}, s{sN}, 1
        s_mul_i32 s{sB}, s{sT2}, {TILE}
        s_add_u32 s{sB}, s{sB}, s{sT}                ; + tile
        s_lshl_b32 s{sA}, s{sJ}, 10
        s_add_u32 s{sA}, s{sA}, s{sB}
        buffer_load_dwordx4 {vr(Kb,4)}, v{vL16}, s[{SWS}:{SWS+3}], s{sA} offen offset:512 sc1
        s_lshl_b32 s{sA}, s{sT2}, 7
        s_add_u32 s{sA}, s{sA}, s{sT}
        s_lshl_b32 s{sT2}, s{sJ}, 8
        s_add_u32 s{sA}, s{sA}, s{sT2}
        buffer_load_dword v{KHb[0]}, v{vKH}, s[{SWS}:{SWS+3}], s{sA} offen sc1
        """)
        if ps == 1:
            a(f"""
            s_mul_i32 s{sA}, s{sJ}, {2*VG}
            s_add_u32 s{sA}, s{sA}, s{sB}
            s_add_u32 s{sA}, s{sA}, 2560
            buffer_load_dwordx4 {vr(V0b[0],4)}, v{vV}, s[{SWS}:{SWS+3}], s{sA} offen sc1
            buffer_load_dwordx4 {vr(V1b[0],4)}, v{vV}, s[{SWS}:{SWS+3}], s{sA} offen offset:{VG} sc1
            """)
        a("s_waitcnt vmcnt(0)")
        a(qkh(X, KHb[0], 0))
        a("s_nop 15\ns_nop 3")
        a(qk(X, Kb, Qa)); a(qk(X + 16, Kb, Qb))
        a("s_nop 15")
        if ps == 0:
            for t in range(2):
                for i in range(0, 16, 2):
                    a(f"v_max3_f32 v{vT[t]}, v{vT[t]}, v{X+16*t+i}, v{X+16*t+i+1}")
        else:
            for i in range(16):
                a(f"v_sub_f32 v{X+i}, v{X+i}, v{vT[0]}")
                a(f"v_sub_f32 v{X+16+i}, v{X+16+i}, v{vT[1]}")
            E(X, 32)
            a("s_nop 1")
            a(pv(Oa, V0b[0], X)); a(pv(Oa, V1b[0], X + 8))
            a(pv(Ob, V0b[0], X + 16)); a(pv(Ob, V1b[0], X + 24))
        a(f"""
        s_add_u32 s{sN}, s{sN}, 1
        s_cmp_lt_u32 s{sN}, 64
        s_cbranch_scc1 L_x{ps}
        """)
        if ps == 0:
            a(f"""
            v_mov_b32 v{vT[2]}, v{vT[0]}
            v_mov_b32 v{vT[3]}, v{vT[1]}
            s_nop 1
            v_permlane32_swap_b32 v{vT[0]}, v{vT[2]}
            v_permlane32_swap_b32 v{vT[1]}, v{vT[3]}
            s_nop 1
            v_max_f32 v{vT[0]}, v{vT[0]}, v{vT[2]}
            v_max_f32 v{vT[1]}, v{vT[1]}, v{vT[3]}
            """)
    a("""
    s_nop 15
    s_branch L_fin
    """)

    vXE, vXO, vWS = 3, 4, 5
    vGt = [6, 7, 8]
    vGA, vF, vFo = 9, 10, 11
    vT = [12, 13, 14, 15, 16, 17, 18, 19]
    vWO = 20
    CP = 32

    def dma_x(n):
        slot = (n % 3) * G_SLOT
        s = f"s_add_u32 m0, s{sM0x}, {slot}\ns_add_u32 s{sT}, s{sXb}, {n*128}\n"
        for i in range(4):
            s += f"buffer_load_dwordx4 v{vXE}, s[{SX}:{SX+3}], s{sT} offen lds\n"
            s += f"buffer_load_dwordx4 v{vXO}, s[{SX}:{SX+3}], s{sT} offen offset:1024 lds\n"
            if i < 3:
                s += f"s_addk_i32 m0, 0x800\ns_addk_i32 s{sT}, {16*1152}\n"
        return s

    def dma_w(n):
        slot = (n % 3) * G_SLOT
        s = f"s_add_u32 m0, s{sM0w}, {slot + 32768}\ns_add_u32 s{sT}, s{sWb}, {n*64*3456}\n"
        s += f"s_mov_b64 exec, s[{sMASK}:{sMASK+1}]\n"
        for i in range(4):
            s += f"buffer_load_dwordx4 v{vWS}, s[{SW}:{SW+3}], s{sT} offen offset:{1024*i} lds\n"
            if i < 3:
                s += f"s_addk_i32 s{sT}, {4*3456 - 1024}\n"
        s += "s_mov_b64 exec, -1\n"
        return s

    def gate_write(n):
        slot = (n % 3) * G_SLOT
        lab = a.label("L_gw")
        reg = vGt[n // 4]
        if slot < 65536:
            w = f"ds_write_b16 v{vGA}, v{reg} offset:{slot}"
        else:
            w = f"v_add_u32 v{vT[7]}, {slot}, v{vGA}\nds_write_b16 v{vT[7]}, v{reg}"
        return f"""
        s_cmp_eq_u32 s{sLI}, {n % 4}
        s_cbranch_scc0 {lab}
        {w}
        {lab}:
        """

    def wo_load(q0, q1):
        assert q1 <= 72 or q0 >= 72
        srd_, base = (SWA, 0) if q1 <= 72 else (SWB, 72)
        lab = a.label("L_wo")
        a(f"""
        s_add_u32 s{sA}, s{sLI}, {q0}
        {lab}:
        s_lshl_b32 m0, s{sA}, 10
        s_sub_u32 s{sT}, s{sA}, {base}
        s_mul_i32 s{sT}, s{sT}, {8*1152}
        buffer_load_dwordx4 v{vWO}, s[{srd_}:{srd_+3}], s{sT} offen lds
        s_add_u32 s{sA}, s{sA}, 4
        s_cmp_lt_u32 s{sA}, {q1}
        s_cbranch_scc1 {lab}
        """)

    a.sec("loader")
    a("s_setprio 3")
    stamp(a, 1, mode=9)
    a(dma_x(0))
    stamp(a, 2, mode=9)
    stamp(a, 3, mode=9)
    a(dma_w(0))
    stamp(a, 4, mode=9)
    common()
    a(f"""
    v_lshlrev_b32 v{vT[0]}, 1, v{vL}
    s_lshl_b32 s{sT}, s{sLI}, 7
    buffer_load_ushort v{vGt[0]}, v{vT[0]}, s[{SG}:{SG+3}], s{sT} offen
    buffer_load_ushort v{vGt[1]}, v{vT[0]}, s[{SG}:{SG+3}], s{sT} offen offset:512
    buffer_load_ushort v{vGt[2]}, v{vT[0]}, s[{SG}:{SG+3}], s{sT} offen offset:1024
    """)
    a(f"""
    v_and_b32 v{vT[2]}, 3, v{vL}
    v_xor_b32 v{vT[2]}, 3, v{vT[2]}
    v_lshlrev_b32 v{vT[2]}, 6, v{vT[2]}
    v_lshl_add_u32 v{vGA}, v{vL}, 8, v{vT[2]}
    v_add_u32 v{vGA}, {32768 + 48}, v{vGA}
    """)
    a(dma_x(1)); a(dma_w(1))
    stamp(a, 5, mode=9)
    a(f"""
    v_lshlrev_b32 v{vT[2]}, 2, v{vL}
    v_add_u32 v{vT[2]}, {SYNC}, v{vT[2]}
    v_mov_b32 v{CP}, 0
    v_mov_b32 v{CP+1}, 0
    v_mov_b32 v{CP+2}, 0
    v_mov_b32 v{CP+3}, 0
    ds_write_b32 v{vT[2]}, v{CP}
    s_min_u32 s{sT}, s{sLI}, 2
    s_mul_i32 s{sT}, s{sT}, {G_SLOT}
    v_add_u32 v{vT[2]}, s{sT}, v{vGA}
    s_cmp_eq_u32 s{sLI}, 3
    s_cbranch_scc1 L_nz
    ds_write_b128 v{vT[2]}, {vr(CP,4)}
    L_nz:
    s_waitcnt vmcnt(12)
    """)
    for n in range(3):
        a(gate_write(n))
    stamp(a, 6, mode=9)
    a("s_waitcnt vmcnt(12) lgkmcnt(0)")
    stamp(a, 7, mode=9)
    a("s_barrier")
    stamp(a, 8, mode=9)
    stamp(a, 1)
    a(dma_x(2)); a(dma_w(2))
    if DPF:
        a(f"""
        s_cmp_eq_u32 s{sLI}, 0
        s_cbranch_scc0 L_lp1
        v_and_b32 v{vT[5]}, 7, v{vL}
        v_min_u32 v{vT[5]}, 4, v{vT[5]}
        v_lshrrev_b32 v{vT[4]}, 3, v{vL}
        v_mul_u32_u24 v{vT[4]}, 1152, v{vT[4]}
        v_lshl_add_u32 v{vT[5]}, v{vT[5]}, 7, v{vT[4]}
        s_mul_i32 s{sT}, s2, {8*1152}
        buffer_load_dword v{vT[6]}, v{vT[5]}, s[{SX}:{SX+3}], s{sT} offen offset:512
        s_branch L_lp2
        L_lp1:
        v_min_u32 v{vT[5]}, 23, v{vL}
        v_lshlrev_b32 v{vT[5]}, 7, v{vT[5]}
        s_and_b32 s{sT}, s{sP}, 15
        s_lshl_b32 s{sT}, s{sT}, 3
        s_add_u32 s{sT}, s{sT}, s{sTG}
        s_mul_i32 s{sT}, s{sT}, 3
        s_add_u32 s{sT}, s{sT}, s{sLI}
        s_mul_i32 s{sT}, s{sT}, {320*3456 // 384}
        s_add_u32 s{sT}, s{sT}, {256*3456 - 320*3456 // 384}
        buffer_load_dword v{vT[6]}, v{vT[5]}, s[{SW}:{SW+3}], s{sT} offen
        L_lp2:
        """)
    vN = 24
    a(f"""
    s_lshl_b32 s{sT}, s{sP}, 12
    s_add_u32 s{sT}, s{sT}, {FLAG_OFF}
    v_lshlrev_b32 v{vN}, 7, v{vL}
    v_add_u32 v{vN}, s{sT}, v{vN}
    v_and_b32 v{vN+1}, 7, v{vL}
    v_lshlrev_b32 v{vN+1}, 12, v{vN+1}
    s_lshl_b32 s{sT}, s{sP}, 7
    s_add_u32 s{sT}, s{sT}, {OFLAG_OFF}
    v_cmp_gt_u32 vcc, 32, v{vL}
    v_add_u32 v{vN+1}, s{sT}, v{vN+1}
    s_cmp_eq_u32 s{sLI}, 3
    v_cndmask_b32 v{vN}, v{vN+1}, v{vN}, vcc
    s_cselect_b32 exec_lo, -1, 1
    s_cselect_b32 exec_hi, 0xff, 0
    buffer_load_dword v{vN+1}, v{vN}, s[{SWS}:{SWS+3}], 0 offen sc1
    s_mov_b64 exec, -1
    """)
    for n in range(8):
        extra = (2 if DPF else 1) if n < 2 else 1 if n >= 6 else 0
        a(f"s_waitcnt vmcnt({(12 if n + 2 <= 8 else 0) + extra}) lgkmcnt(0)")
        if STAMPS == 7:
            a(f"s_memtime s[90:91]\ns_waitcnt lgkmcnt(0)\ns_barrier\ns_memtime s[94:95]\ns_waitcnt lgkmcnt(0)\ns_sub_u32 s90, s94, s90\ns_add_u32 s{74+2*n}, s90, s72")
        elif STAMPS == 8:
            a(f"s_barrier\ns_memtime s[{74+2*n}:{75+2*n}]")
        else:
            a("s_barrier")
        if n + 3 <= 8:
            a(gate_write(n + 3))
            a(dma_x(n + 3)); a(dma_w(n + 3))
        if n == 5:
            a(f"""
            s_brev_b32 s{sA}, 1
            s_movk_i32 s{sB}, 0x400
            s_cmp_eq_u32 s{sLI}, 3
            s_cbranch_scc0 L_nn1
            s_mov_b32 s44, -1
            s_movk_i32 s45, 0xff
            """)
            for b in range(6):
                a(f"""
                v_and_b32 v{vN}, {1 << b}, v{vN+1}
                v_cmp_ne_u32 vcc, 0, v{vN}
                s_nop 0
                s_and_b64 s[46:47], s[44:45], vcc
                s_andn2_b64 s[44:45], s[44:45], vcc
                s_bcnt1_i32_b64 s{sT}, s[46:47]
                s_bcnt1_i32_b64 s{sT2}, s[44:45]
                s_cmp_lt_u32 s{sT}, s{sT2}
                s_cselect_b64 s[44:45], s[46:47], s[44:45]
                s_cselect_b32 s{sT}, {1 << b}, 0
                s_or_b32 s{sA}, s{sA}, s{sT}
                """)
            a(f"""
            s_lshl_b32 s{sB}, s{sP}, 2
            L_nn1:
            v_mov_b32 v{vN}, s{sA}
            v_mov_b32 v{vN+1}, 0
            v_mov_b32 v{vN+2}, s{sA}
            v_mov_b32 v{vN+3}, s{sB}
            s_mov_b64 exec, 1
            buffer_atomic_cmpswap v[{vN}:{vN+1}], v{vN+3}, s[{SD}:{SD+3}], 0 offen sc0 sc1
            s_mov_b64 exec, -1
            """)
        if n == 6:
            lab = a.label("L_cr")
            a(f"""
            s_cmp_ge_u32 s{sLI}, 2
            s_cbranch_scc1 {lab}
            s_cmp_eq_u32 s{sLI}, 0
            s_cselect_b32 s{sT}, 0x3f803f80, 0
            s_cselect_b32 s{sT2}, {14*16}, 0
            s_add_u32 s{sT2}, s{sT2}, {2560 + 4*16}
            v_and_b32 v{vT[0]}, 7, v{vL}
            v_mul_u32_u24 v{vT[0]}, {VH}, v{vT[0]}
            v_lshrrev_b32 v{vT[2]}, 3, v{vL}
            v_mul_u32_u24 v{vT[2]}, {TILE}, v{vT[2]}
            v_lshrrev_b32 v{vT[3]}, 4, v{vL}
            v_lshl_add_u32 v{vT[2]}, v{vT[3]}, 9, v{vT[2]}
            v_add3_u32 v{vT[0]}, v{vT[0]}, v{vT[2]}, s{sT2}
            v_mov_b32 v{CP}, s{sT}
            v_mov_b32 v{CP+1}, s{sT}
            v_mov_b32 v{CP+2}, s{sT}
            v_mov_b32 v{CP+3}, s{sT}
            ds_write_b128 v{vT[0]}, {vr(CP,4)}
            {lab}:
            """)
    a(f"""
    s_load_dwordx2 s[{SWA}:{SWA+1}], s[0:1], 16          ; A_wo
    s_load_dwordx2 s[{SWB}:{SWB+1}], s[0:1], 40          ; B_wo
    s_load_dwordx2 s[{SO}:{SO+1}], s[0:1], 56            ; out
    s_mov_b32 s{SWA+2}, {WO_BYTES}
    s_mov_b32 s{SWB+2}, {WO_BYTES}
    s_mov_b32 s{SO+2}, {XBYTES}
    s_mov_b32 s{sU}, 0
    s_mov_b32 s{sD3}, {(RING[1]-RING[0]) & 0xffffffff:#x}
    s_mov_b32 s{sD3+1}, {(RING[2]-RING[1]) & 0xffffffff:#x}
    s_mov_b32 s{sD3+2}, {(RING[0]-RING[2]) & 0xffffffff:#x}
    s_mul_i32 s{sT}, s{sLI}, {TPAIR}
    v_add_u32 v{vT[0]}, s{sT}, v{vL16}
    s_add_u32 s{sKVp}, s{sKVp}, s{sT}
    s_mov_b32 s{sM0x}, s{sT}
    s_mul_i32 s{sA}, s{sTG}, {CHUNK}
    s_add_u32 s{sA}, s{sA}, s{sKVp}
    s_lshl_b32 s{sT}, s{sLI}, 10
    s_lshl_b32 s{sB}, s{sP}, 12
    s_add_u32 s{sB}, s{sB}, s{sT}
    s_add_u32 s{sWb}, s{sB}, {FLAG_OFF}
    v_and_b32 v{vFo}, 7, v{vL}
    v_lshlrev_b32 v{vFo}, 7, v{vFo}
    v_mov_b32 v{vT[1]}, {SYNC + 52}
    s_lshl_b32 s{sT}, s{sTG}, 7
    v_mov_b32 v{vT[2]}, s{sT}
    v_lshrrev_b32 v{vT[3]}, 3, v{vL}
    v_mul_u32_u24 v{vT[3]}, 1152, v{vT[3]}
    v_bfe_u32 v{vT[4]}, v{vL}, 4, 1
    v_lshlrev_b32 v{vT[4]}, 2, v{vT[4]}
    v_and_b32 v{vT[5]}, 7, v{vL}
    v_xor_b32 v{vT[5]}, v{vT[5]}, v{vT[4]}
    v_lshl_add_u32 v{vWO}, v{vT[5]}, 4, v{vT[3]}
    s_waitcnt lgkmcnt(0)
    s_barrier
    """)
    stamp(a, 3, True)
    for i in range(10):
        a(f"ds_read_b128 {vr(CP+4*i,4)}, v{vT[0]} offset:{1024*i}")
    for i in range(10):
        if i == 9:
            a("s_mov_b32 exec_hi, 0")
        if i in (4, 8):
            a(f"s_add_u32 s{sA}, s{sA}, 4096")
        a(f"s_waitcnt lgkmcnt({9-i})")
        a(f"buffer_store_dwordx4 {vr(CP+4*i,4)}, v{vL16}, s[{SWS}:{SWS+3}], s{sA} offen offset:{1024*(i&3)} sc1")
    a(f"""
    s_mov_b64 exec, 1
    s_cmp_eq_u32 s{sLI}, 3
    s_cbranch_scc0 L_nn2
    s_waitcnt vmcnt(10)
    v_cmp_eq_u32 vcc, 0, v{vN}
    s_nop 1
    v_cndmask_b32 v{vN}, v{vN}, v{vN+2}, vcc
    ds_write_b32 v{vT[1]}, v{vN}
    L_nn2:
    ds_read_b32 v{vF}, v{vT[1]}
    s_waitcnt lgkmcnt(0)
    v_cmp_eq_u32 vcc, 0, v{vF}
    s_cbranch_vccnz L_nn2
    v_readfirstlane_b32 s{sNON}, v{vF}
    s_waitcnt vmcnt(0)
    buffer_store_dword v{vF}, v{vT[2]}, s[{SWS}:{SWS+3}], s{sWb} offen sc1
    s_mov_b64 exec, -1
    s_mov_b32 s{sRDY}, 0
    s_mov_b32 s{sN}, 0
    s_lshl_b32 s{sXb}, 1, s{sTG}
    L_ll:
    s_add_u32 s{sM0x}, s{sM0x}, s{sD3}
    s_mov_b32 s{sT}, s{sD3}
    s_mov_b32 s{sD3}, s{sD3+1}
    s_mov_b32 s{sD3+1}, s{sD3+2}
    s_mov_b32 s{sD3+2}, s{sT}
    L_poll:
    s_andn2_b32 s{sT}, s{sRDY}, s{sXb}
    s_cbranch_scc1 L_rdy
    buffer_load_dword v{vF}, v{vFo}, s[{SWS}:{SWS+3}], s{sWb} offen sc1
    s_waitcnt vmcnt(0)
    v_cmp_eq_u32 vcc, s{sNON}, v{vF}
    s_sub_u32 s{sSPIN}, s{sSPIN}, 1
    s_nop 0
    s_cselect_b32 s{sRDY}, -1, vcc_lo
    s_and_b32 s{sRDY}, s{sRDY}, 0xff
    s_branch L_poll
    L_rdy:
    s_ff1_i32_b32 s{sC}, s{sT}
    s_bitset1_b32 s{sXb}, s{sC}
    s_mul_i32 s{sA}, s{sC}, {CHUNK}
    s_add_u32 s{sA}, s{sA}, s{sKVp}
    """)
    for i in range(10):
        if i % 4 == 0:
            a(f"s_add_u32 m0, s{sM0x}, {1024*i}")
            a(f"s_add_u32 s{sT}, s{sA}, {1024*i}")
        if i == 9:
            a("s_mov_b32 exec_hi, 0")
        if True:
            a(f"buffer_load_dwordx4 v{vL16}, s[{SWS}:{SWS+3}], s{sT} offen offset:{1024*(i&3)} sc1 lds")
    a(f"""
    s_mov_b32 exec_hi, -1
    L_d9:
    s_cmp_eq_u32 s{sN}, 1
    s_cbranch_scc0 L_ncl
    s_lshl_b32 s{sT}, s{sTG}, 3
    s_lshl_b32 s{sT2}, s{sLI}, 1
    s_add_u32 s{sT}, s{sT}, s{sT2}
    s_mul_i32 s{sA}, s{sT}, {OTILE}
    s_mul_i32 s{sT}, s{sP}, {OPAIR}
    s_add_u32 s{sA}, s{sA}, s{sT}
    s_add_u32 s{sA}, s{sA}, {O_OFF}
    s_add_u32 s{sB}, s{sA}, {OTILE}
    v_mov_b32 v{CP}, -1
    v_mov_b32 v{CP+1}, -1
    v_mov_b32 v{CP+2}, -1
    v_mov_b32 v{CP+3}, -1
    buffer_store_dwordx4 {vr(CP,4)}, v{vL16}, s[{SWS}:{SWS+3}], s{sA} offen sc1
    buffer_store_dwordx4 {vr(CP,4)}, v{vL16}, s[{SWS}:{SWS+3}], s{sA} offen offset:1024 sc1
    buffer_store_dwordx4 {vr(CP,4)}, v{vL16}, s[{SWS}:{SWS+3}], s{sB} offen sc1
    buffer_store_dwordx4 {vr(CP,4)}, v{vL16}, s[{SWS}:{SWS+3}], s{sB} offen offset:1024 sc1
    s_mov_b64 exec, 0xffff
    buffer_store_dwordx4 {vr(CP,4)}, v{vL16}, s[{SWS}:{SWS+3}], s{sA} offen offset:2048 sc1
    buffer_store_dwordx4 {vr(CP,4)}, v{vL16}, s[{SWS}:{SWS+3}], s{sB} offen offset:2048 sc1
    s_mov_b64 exec, -1
    L_ncl:
    s_cmp_eq_u32 s{sLI}, 0
    s_cbranch_scc0 L_nfl
    s_cmp_eq_u32 s{sN}, 2
    s_cbranch_scc0 L_n2
    s_lshl_b32 s{sT}, s{sTG}, 12
    s_lshl_b32 s{sT2}, s{sP}, 7
    s_add_u32 s{sT}, s{sT}, s{sT2}
    s_add_u32 s{sT}, s{sT}, {OFLAG_OFF}
    v_mov_b32 v{vT[3]}, 0
    v_mov_b32 v{vF}, s{sNON}
    s_mov_b64 exec, 1
    buffer_store_dword v{vF}, v{vT[3]}, s[{SWS}:{SWS+3}], s{sT} offen sc1
    s_mov_b64 exec, -1
    L_n2:
    s_cmp_eq_u32 s{sN}, {CLAIM}
    s_cbranch_scc0 L_nfl
    s_and_b32 s{sA}, s2, 7
    v_and_b32 v{vT[5]}, 7, v{vL}
    v_lshlrev_b32 v{vT[4]}, 2, v{vT[5]}
    L_cl:
    s_lshl_b32 s{sT}, s{sA}, 2
    v_mov_b32 v{vT[3]}, s{sT}
    v_mov_b32 v{vF}, 1
    s_mov_b64 exec, 1
    buffer_atomic_add v{vF}, v{vT[3]}, s[{SD}:{SD+3}], 0 offen offset:128 sc0 sc1
    s_mov_b64 exec, -1
    s_waitcnt vmcnt(0)
    v_readfirstlane_b32 s{sB}, v{vF}
    s_nop 3
    s_cmp_lt_u32 s{sB}, 27
    s_cbranch_scc1 L_cl2
    """)
    if STEAL:
        a(f"""
        buffer_load_dword v{vF}, v{vT[4]}, s[{SD}:{SD+3}], 0 offen offset:128 sc1
        s_waitcnt vmcnt(0)
        v_lshl_or_b32 v{vF}, v{vF}, 3, v{vT[5]}
        s_nop 0
        v_readlane_b32 s{sA}, v{vF}, 0
        """)
        for q in range(1, 8):
            a(f"v_readlane_b32 s{sT}, v{vF}, {q}\ns_nop 3\ns_min_u32 s{sA}, s{sA}, s{sT}")
        a(f"""
        s_lshr_b32 s{sT}, s{sA}, 3
        s_and_b32 s{sA}, s{sA}, 7
        s_sub_u32 s{sSPIN}, s{sSPIN}, 1
        s_cselect_b32 s{sT}, 27, s{sT}
        s_cmp_lt_u32 s{sT}, 27
        s_cbranch_scc1 L_cl
        s_mov_b32 s{sSPIN}, {SPIN_LIMIT}
        """)
    a(f"""
    s_movk_i32 s{sB}, 0xff
    L_cl2:
    s_lshl_b32 s{sA}, s{sA}, 8
    s_or_b32 s{sA}, s{sA}, s{sB}
    v_mov_b32 v{vF}, s{sA}
    v_mov_b32 v{vT[3]}, {SYNC + 48}
    ds_write_b32 v{vT[3]}, v{vF}
    s_waitcnt lgkmcnt(0)
    L_nfl:
    s_cmp_eq_u32 s{sN}, {CLAIM + 1}
    s_cbranch_scc0 L_nw3
    v_mov_b32 v{vT[3]}, {SYNC + 48}
    ds_read_b32 v{vF}, v{vT[3]}
    s_waitcnt lgkmcnt(0)
    """)
    unit_decode(vF)
    a(f"""
    s_cmp_ge_u32 s{sU}, 27
    s_cbranch_scc1 L_on1
    s_lshl_b32 s{sT}, s{sCG}, 7
    v_add_u32 v{vWO}, s{sT}, v{vWO}
    """)
    wo_load(38, 42)
    wo_load(80, 121)
    a(f"""
    L_nw3:
    s_cmp_eq_u32 s{sN}, 6
    s_cbranch_scc0 L_on1
    s_cmp_ge_u32 s{sU}, 27
    s_cbranch_scc1 L_on1
    v_mul_u32_u24 v{vT[3]}, 1152, v{vL}
    s_lshl_b32 s{sT}, s{sCG}, 7
    s_mul_i32 s{sT2}, s{sLI}, {48*1152}
    s_add_u32 s{sT2}, s{sT2}, s{sT}
    s_add_u32 s{sT2}, s{sT2}, {392*1152}
    buffer_load_dword v{vT[4]}, v{vT[3]}, s[{SWB}:{SWB+3}], s{sT2} offen
    """)
    if TLBW:
        a(f"""
        s_mul_i32 s{sT}, s{sTG2}, {256*1152}
        v_lshlrev_b32 v{vT[3]}, 2, v{vT[3]}
        buffer_load_dword v{vT[4]}, v{vT[3]}, s[{SO}:{SO+3}], s{sT} offen
        """)
    a(f"""
    v_and_b32 v{vT[0]}, 31, v{vL}
    v_lshlrev_b32 v{vT[3]}, 7, v{vT[0]}
    v_lshlrev_b32 v{vT[0]}, 2, v{vT[0]}
    s_lshl_b32 s{sB}, s{sTG2}, 12
    s_add_u32 s{sB}, s{sB}, {OFLAG_OFF}
    L_on0:
    buffer_load_dword v{vF}, v{vT[0]}, s[{SD}:{SD+3}], 0 offen sc1
    buffer_load_dword v{vT[4]}, v{vT[3]}, s[{SWS}:{SWS+3}], s{sB} offen sc1
    s_waitcnt vmcnt(0)
    v_cmp_le_i32 vcc, 0, v{vF}
    v_cmp_ne_u32 s[44:45], v{vF}, v{vT[4]}
    s_sub_u32 s{sSPIN}, s{sSPIN}, 1
    s_cbranch_scc1 L_on1
    s_or_b64 vcc, vcc, s[44:45]
    s_cbranch_vccz L_on1
    s_sleep 8
    s_branch L_on0
    L_on1:
    s_waitcnt vmcnt(0)
    """)
    if STAMPS == 1:
        a(f"s_cmp_eq_u32 s{sN}, 0\ns_cbranch_scc0 L_st4")
        stamp(a, 4)
        a("L_st4:")
    if STAMPS == 6:
        a("s_barrier\ns_memtime s[88:89]\ns_waitcnt lgkmcnt(0)")
        for q in range(7):
            a(f"s_cmp_eq_u32 s{sN}, {q}\ns_cselect_b32 s{74+2*q}, s88, s{74+2*q}")
    elif STAMPS == 5:
        a("s_memtime s[88:89]\ns_waitcnt lgkmcnt(0)\ns_barrier\ns_memtime s[90:91]\ns_waitcnt lgkmcnt(0)\ns_sub_u32 s88, s90, s88\ns_add_u32 s88, s88, s72")
        for q in range(7):
            a(f"s_cmp_eq_u32 s{sN}, {q}\ns_cselect_b32 s{74+2*q}, s88, s{74+2*q}")
    else:
        a("s_barrier")
    a(f"""
    s_add_u32 s{sN}, s{sN}, 1
    s_cmp_lt_u32 s{sN}, 7
    s_cbranch_scc1 L_ll
    s_mov_b32 s{sSPIN}, {SPIN_LIMIT}
    s_cmp_ge_u32 s{sU}, 27
    s_cbranch_scc1 L_end
    """)
    wo_load(0, 38)
    wo_load(42, 72)
    wo_load(72, 80)
    a(f"""
    v_and_b32 v12, 7, v{vL}
    v_lshlrev_b32 v12, 2, v12
    v_add_u32 v12, {SYNC}, v12
    L_pg:
    s_sleep 2
    ds_read_b32 v13, v12
    s_waitcnt lgkmcnt(0)
    v_cmp_gt_u32 vcc, 7, v13
    s_cbranch_vccnz L_pg
    """)
    wo_load(121, 144)
    a(f"""
    s_lshl_b32 s{sT}, s{sLI}, 2
    s_add_u32 s{sT}, s{sT}, {SYNC + 32}
    v_mov_b32 v12, s{sT}
    v_mov_b32 v13, 8
    s_waitcnt vmcnt(0)
    ds_write_b32 v12, v13
    s_setprio 0
    s_branch L_tail
    """)
    a.sec("tail")

    vOH = 5
    vWm = [3, 4]; vWh = [8, 9]
    vT = [10, 11, 12, 13, 14, 6]
    vPw, vPr, vOut, vPr2, vDw, vDr = 163, 164, 165, 166, 167, 7
    WS_ = [16, 32]
    OF = 56
    ACC = [128, 144]
    DEPTH = int(os.environ.get("DEPTH", "2"))
    TPRIO = int(os.environ.get("TPRIO", "0"))

    def omain(i, j):
        return OF + 8 * i + 4 * j
    OHI = OF + 64

    def issue(i):
        a(f"""
        s_add_u32 s{sT}, s{sFl}, {i*OPAIR}
        buffer_load_dwordx4 {vr(omain(i,0),4)}, v{vL16}, s[{SWS}:{SWS+3}], s{sT} offen sc1
        buffer_load_dwordx4 {vr(omain(i,1),4)}, v{vL16}, s[{SWS}:{SWS+3}], s{sT} offen offset:1024 sc1
        buffer_load_dword v{OHI+i}, v{vOH}, s[{SWS}:{SWS+3}], s{sT} offen offset:2048 sc1
        """)

    a(f"""
    L_tail:
    s_cmp_ge_u32 s{sU}, 27
    s_cbranch_scc1 L_end
    s_cmp_ge_u32 s{sT0}, 8
    s_cbranch_scc1 L_end
    v_lshlrev_b32 v{vOH}, 2, v{vL}
    s_mov_b32 s{sI}, 0
    v_min_u32 v{vT[2]}, 11, v{vL}
    """)
    if LEARLY:
        a(f"""
        s_cmp_lt_u32 s{sWV}, 4
        s_cselect_b32 s{sT}, 8, 0
        v_max_u32 v{vT[2]}, s{sT}, v{vT[2]}
        """)
    a(f"""
    v_lshlrev_b32 v{vT[2]}, 2, v{vT[2]}
    v_add_u32 v{vT[2]}, {SYNC}, v{vT[2]}
    L_ws1:
    ds_read_b32 v{vT[3]}, v{vT[2]}
    s_waitcnt lgkmcnt(0)
    v_cmp_gt_u32 vcc, 8, v{vT[3]}
    s_cbranch_vccz L_go
    s_sleep 1
    s_branch L_ws1
    L_go:
    """)
    stamp(a, 3, mode=3)
    if TPRIO:
        a("s_setprio 3")
    for i in range(DEPTH):
        issue(i)
    a(f"""
    v_and_b32 v{vT[0]}, 31, v{vL}                ; tau
    v_lshrrev_b32 v{vT[1]}, 5, v{vL}             ; h
    v_bfe_u32 v{vT[2]}, v{vL}, 2, 2              ; r
    v_and_b32 v{vT[3]}, 3, v{vL}                 ; c
    v_bfe_u32 v{vT[4]}, v{vL}, 4, 1              ; sub
    v_lshlrev_b32 v{vT[3]}, 3, v{vT[3]}
    v_lshl_add_u32 v{vT[3]}, v{vT[4]}, 5, v{vT[3]}
    s_mul_i32 s{sT}, s{sKQ}, {288*128}
    v_add_u32 v{vT[3]}, s{sT}, v{vT[3]}
    v_lshrrev_b32 v{vT[4]}, 1, v{vT[2]}          ; r>>1
    v_lshl_add_u32 v{vT[5]}, v{vT[1]}, 2, v{vT[2]}
    v_lshl_add_u32 v{vT[5]}, v{vT[5]}, 7, v{vT[3]}
    v_lshl_add_u32 v{vWm[0]}, v{vT[4]}, 6, v{vT[5]}
    v_xor_b32 v{vWm[1]}, 64, v{vWm[0]}
    v_lshl_add_u32 v{vT[5]}, v{vT[4]}, 1, v{vT[1]}
    v_mul_u32_u24 v{vT[5]}, 18, v{vT[5]}
    v_and_b32 v{vT[2]}, 1, v{vT[2]}
    v_add3_u32 v{vT[5]}, v{vT[5]}, v{vT[2]}, 16
    v_lshl_add_u32 v{vT[5]}, v{vT[5]}, 7, v{vT[3]}
    v_lshl_add_u32 v{vWh[0]}, v{vT[1]}, 6, v{vT[5]}
    v_xor_b32 v{vWh[1]}, 64, v{vWh[0]}
    s_lshl_b32 s{sT}, s{sTT}, 13
    s_mul_i32 s{sT2}, s{sKQ}, {288*128}
    s_add_u32 s{sA}, s{sT}, s{sT2}
    v_add_u32 v{vPw}, s{sA}, v{vL16}
    s_lshl_b32 s{sT2}, s{sKQ}, 11
    s_add_u32 s{sA}, s{sT}, s{sT2}
    v_add_u32 v{vPr}, s{sA}, v{vL16}
    v_add_u32 v{vPr2}, {2*288*128}, v{vPr}
    s_lshl_b32 s{sT}, s{sWV}, 2
    s_add_u32 s{sT}, s{sT}, {SYNC + 64}
    v_mov_b32 v{vDw}, s{sT}
    s_sub_u32 s{sT}, s{sT0}, s{sTT}
    s_cmp_eq_u32 s{sT}, 6
    s_cselect_b32 s{sT}, 1, 2
    v_min_u32 v{vDr}, s{sT}, v{vL}
    s_mul_i32 s{sT}, s{sKQ}, 12
    s_add_u32 s{sT}, s{sT}, {SYNC + 64}
    v_lshlrev_b32 v{vDr}, 2, v{vDr}
    v_add_u32 v{vDr}, s{sT}, v{vDr}
    s_lshl_b32 s{sT}, s{sTG2}, 8
    s_lshl_b32 s{sT2}, s{sT0}, 5
    s_add_u32 s{sT}, s{sT}, s{sT2}
    s_mul_i32 s{sOm}, s{sT}, 1152
    s_lshl_b32 s{sT}, s{sCG}, 7
    s_add_u32 s{sOm}, s{sOm}, s{sT}
    s_lshl_b32 s{sT}, s{sKQ}, 5
    s_add_u32 s{sOm}, s{sOm}, s{sT}
    v_mul_u32_u24 v{vOut}, 1152, v{vT[0]}
    v_lshl_add_u32 v{vOut}, v{vT[1]}, 4, v{vOut}
    """)
    for r in range(ACC[0], ACC[0] + 32):
        a(f"v_mov_b32 v{r}, 0")
    stamp(a, 7)
    stamp(a, 4, mode=3)

    def wreads(blk, st):
        for f in range(2):
            b = WS_[st] + 8 * f
            m = 2 * blk + f
            for ct in range(2):
                if m < 16:
                    ad = vWm[ct ^ (m & 1)]
                    o0 = m * 18 * 128; o1 = o0 + 8 * 128
                else:
                    ad = vWh[ct]
                    o0 = (m - 16) * 8 * 18 * 128; o1 = o0 + 4 * 18 * 128
                a(f"ds_read_b64_tr_b16 {vr(b+4*ct,2)}, v{ad} offset:{o0}")
                a(f"ds_read_b64_tr_b16 {vr(b+4*ct+2,2)}, v{ad} offset:{o1}")

    def verify(i, skip):
        o0, o1 = omain(i, 0), omain(i, 1)
        a(f"""
        v_max3_u32 v{vT[2]}, v{o0}, v{o0+1}, v{o0+2}
        v_max3_u32 v{vT[3]}, v{o0+3}, v{o1}, v{o1+1}
        v_max3_u32 v{vT[2]}, v{vT[2]}, v{o1+2}, v{o1+3}
        v_max3_u32 v{vT[2]}, v{vT[2]}, v{vT[3]}, v{OHI+i}
        v_cmp_eq_u32 vcc, -1, v{vT[2]}
        s_cbranch_vccnz {skip}
        s_bitset1_b32 s{sI}, {i}
        """)

    def mm(st, o0, o1):
        for f, o in ((0, o0), (1, o1)):
            for ct in range(2):
                a(f"v_mfma_f32_32x32x16_bf16 {vr(ACC[ct],16)}, {vr(WS_[st]+8*f+4*ct,4)}, {vr(o,4)}, {vr(ACC[ct],16)}")

    wreads(0, 0)
    for i in range(8):
        a(f"s_waitcnt vmcnt({3*min(DEPTH-1, 7-i)}) lgkmcnt(0)")
        wreads(i + 1, (i + 1) & 1)
        verify(i, f"L_s{i}")
        mm(i & 1, omain(i, 0), omain(i, 1))
        a(f"L_s{i}:")
        if TPRIO and i in (0, 2, 4):
            a(f"s_setprio {2 - i // 2}")
        if i + DEPTH < 8:
            issue(i + DEPTH)
    a(f"""
    L_chk:
    s_cmp_eq_u32 s{sI}, 0xff
    s_cbranch_scc0 L_round
    L_hi:
    v_mov_b32 v{vT[2]}, 1
    s_waitcnt lgkmcnt(0)
    ds_write_b32 v{vDw}, v{vT[2]}
    """)
    mm(0, OHI, OHI + 4)
    stamp(a, 8)
    stamp(a, 7, mode=3)
    a(f"""
    L_qs:
    ds_read_b32 v{vT[3]}, v{vDr}
    s_waitcnt lgkmcnt(0)
    v_cmp_eq_u32 vcc, 0, v{vT[3]}
    s_cbranch_vccnz L_qs
    s_nop 6
    """)
    for i in range(8):
        a(f"ds_write_b128 v{vPw}, {vr(ACC[0]+4*i,4)} offset:{1024*i}")
    a("s_waitcnt lgkmcnt(0)")
    a("s_barrier                                    ; BT4")
    stamp(a, 8, True, mode=3)
    for src in range(4):
        for g in range(2):
            a(f"ds_read_b128 {vr(OF+8*src+4*g,4)}, v{vPr if src < 2 else vPr2} offset:{(src&1)*288*128 + g*1024}")
    a("s_waitcnt lgkmcnt(4)")
    for q in range(8):
        a(f"v_add_f32 v{OF+q}, v{OF+q}, v{OF+8+q}")
    a("s_waitcnt lgkmcnt(0)")
    for q in range(8):
        a(f"v_add_f32 v{OF+16+q}, v{OF+16+q}, v{OF+24+q}")
    for q in range(8):
        a(f"v_add_f32 v{OF+q}, v{OF+q}, v{OF+16+q}")
    for i in range(4):
        a(f"v_cvt_pk_bf16_f32 v{WS_[0]+i}, v{OF+2*i}, v{OF+2*i+1}")
    a(f"""
    s_nop 1
    v_permlane32_swap_b32 v{WS_[0]}, v{WS_[0]+2}
    v_permlane32_swap_b32 v{WS_[0]+1}, v{WS_[0]+3}
    buffer_store_dwordx4 {vr(WS_[0],4)}, v{vOut}, s[{SO}:{SO+3}], s{sOm} offen {os.environ.get('OUTF', '')}
    """)
    stamp(a, 9, mode=3)
    a("s_branch L_end")
    a(f"""
    L_round:
    s_sub_u32 s{sSPIN}, s{sSPIN}, 1
    s_cbranch_scc1 L_hi
    s_not_b32 s{sBt}, s{sI}
    """)
    stamp(a, 5, mode=3)
    for i in range(8):
        a(f"s_bitcmp1_b32 s{sBt}, {i}\ns_cbranch_scc0 L_ni{i}")
        issue(i)
        a(f"L_ni{i}:")
    for i in range(8):
        a(f"s_bitcmp1_b32 s{sBt}, {i}\ns_cbranch_scc0 L_nc{i}")
        wreads(i, 1)
        a("s_waitcnt vmcnt(0)")
        verify(i, f"L_nc{i}")
        a("s_waitcnt lgkmcnt(0)")
        mm(1, omain(i, 0), omain(i, 1))
        a(f"L_nc{i}:")
    a("s_branch L_chk")
    a.sec("end")
    a("L_end:")
    if DIAG >= 0:
        a(f"""
        s_cmp_eq_u32 s{sWV}, 9
        s_cbranch_scc0 L_done
        s_cmp_lt_u32 s2, {os.environ.get("DIAGWG", "256")}
        s_cbranch_scc0 L_done
        s_waitcnt vmcnt(0) lgkmcnt(0)
        s_memrealtime s[82:83]
        s_waitcnt lgkmcnt(0)
        s_mov_b32 s{sT}, 0
        """)
        if DIAG > 0:
            a(f"""
            s_sub_u32 s{sT}, s{72+2*DIAG}, s96
            s_lshl_b32 s{sT}, s{sT}, 2
            s_cmp_lt_u32 s{sWV}, 4
            s_cselect_b32 s{sT}, 0, s{sT}
            """)
        a(f"""
        s_add_u32 s{sT}, s{sT}, 10000
        L_dg:
        s_sleep 8
        s_memrealtime s[98:99]
        s_waitcnt lgkmcnt(0)
        s_sub_u32 s{sT2}, s98, s96
        s_cmp_lt_u32 s{sT2}, s{sT}
        s_cbranch_scc1 L_dg
        """)
    elif STAMPS:
        a(f"""
        s_waitcnt vmcnt(0) lgkmcnt(0)
        s_memtime s[92:93]
        s_memrealtime s[98:99]
        s_waitcnt lgkmcnt(0)
        s_mov_b64 exec, 1
        s_lshl_b32 s{sT}, s2, 4
        s_add_u32 s{sT}, s{sT}, s{sWV}
        s_lshl_b32 s{sT}, s{sT}, 6
        s_add_u32 s{sT}, s{sT}, {STAMP_OFF}
        v_mov_b32 v0, 0
        """)
        for n in range(14):
            a(f"v_mov_b32 v1, s{72+2*n}")
            a(f"buffer_store_dword v1, v0, s[{SWS}:{SWS+3}], s{sT} offen offset:{4*n}")
            a("s_nop 0")
    a("""
    L_done:
    s_endpgm
    """)
    return name, NV


def main():
    out = sys.argv[1] if len(sys.argv) > 1 else f"cdna_kernels/{NAME}.s"
    a = Asm()
    k, nv = gen(a)
    hdr = open(f"cdna_kernels/{NAME}.s.ref").read().split("\n")
    hdr = [l for l in hdr if l.startswith(";") and "@launch" not in l]
    txt = "\n".join(hdr) + "\n"
    txt += f"; @launch grid=(256,1,1) block=(768,1,1) lds={LDS_BYTES}\n"
    txt += '.amdgcn_target "amdgcn-amd-amdhsa--gfx950"\n.text\n'
    txt += a.text()
    txt += f""".section .rodata,"a"
.p2align 6
.amdhsa_kernel {k}
  .amdhsa_next_free_vgpr {nv}
  .amdhsa_next_free_sgpr {102 if STAMPS else 72}
  .amdhsa_accum_offset {(nv + 3) // 4 * 4}
  .amdhsa_group_segment_fixed_size 0
  .amdhsa_kernarg_size 80
  .amdhsa_user_sgpr_count 2
  .amdhsa_user_sgpr_kernarg_segment_ptr 1
  .amdhsa_system_sgpr_workgroup_id_x 1
.end_amdhsa_kernel
"""
    open(out, "w").write(txt)


if __name__ == "__main__":
    main()
```

```python
import math, os, struct, sys

NAME = "gated_mix__mha_block__mha_block__prompt"

VH = 320
VG = 2 * VH
TILE = 2048 + 4 * VG
TPAIR = 512 + 2 * TILE
CHUNK = 4 * TPAIR


def toff(t):
    return (t >> 1) * TPAIR + (t & 1) * TILE
KV_OFF = 0
FLAG_OFF = 0x0A00000
OFLAG_OFF = 0x0A20000
O_OFF = 0x0B00000
OPAIR = 2304
OTILE = 32 * OPAIR
WS_USED = 0x1000000
XBYTES = 2048 * 576 * 2
WQKV_BYTES = 576 * 1728 * 2
WO_BYTES = 576 * 576 * 2
CSCALE = (18 ** -0.5) * math.log2(math.e)

STAMPS = int(os.environ.get("STAMPS", "0"))
STAMP_OFF = 0x1000000
if STAMPS:
    WS_USED = 0x1100000
ALIGN = int(os.environ.get("ALIGN", "1"))
STEAL = int(os.environ.get("STEAL", "1"))
TLBW = int(os.environ.get("TLBW", "1"))
DIAG = int(os.environ.get("DIAG", "-1"))
PRIOI = int(os.environ.get("PRIOI", "6"))
VMASK = int(os.environ.get("VMASK", "1"))
VPOS = int(os.environ.get("VPOS", "3"))
CLAIM = int(os.environ.get("CLAIM", "4"))
LEARLY = int(os.environ.get("LEARLY", "0"))
CPF = int(os.environ.get("CPF", "1"))
DPF = int(os.environ.get("DPF", "4"))

G_SLOT = 49152
LDS_BYTES = 163840
SCR = CHUNK
SYNC = LDS_BYTES - 1024
RING = [0, SYNC - CHUNK, CHUNK + 4096]
SPIN_LIMIT = 1 << 19


WMASK = ~((1 << 15) | (1 << 27) | (1 << 39) | (1 << 51)) & ((1 << 64) - 1)


def f32bits(x):
    return struct.unpack("<I", struct.pack("<f", x))[0]


class Asm:
    def __init__(self):
        self.secs = {"entry": []}
        self.lines = self.secs["entry"]
        self.nlab = 0

    def sec(self, name):
        self.lines = self.secs.setdefault(name, [])

    def __call__(self, s):
        for ln in s.strip("\n").split("\n"):
            ln = ln.strip()
            if not ln:
                continue
            if ln.endswith(":") or ln.startswith("."):
                self.lines.append(ln)
            else:
                self.lines.append("    " + ln)

    def label(self, base="L"):
        self.nlab += 1
        return f"{base}_{self.nlab}"

    def text(self):
        order = ["entry", "loader", "compute", "tail", "exact", "end"]
        assert sorted(order) == sorted(self.secs)
        return "\n".join("\n".join(self.secs[k]) for k in order) + "\n"


def isize(ln):
    t = ln.split(";")[0].strip()
    if not t or t.endswith(":"):
        return 0
    op = t.split()[0]
    if op.startswith(("v_mfma", "v_smfmac", "ds_", "buffer_")) or op.endswith("_e64"):
        return 8
    assert op in ("v_exp_f32", "v_add_u32", "v_mov_b32") or op.startswith("s_"), t
    assert "0x" not in t, t
    return 4


def align8(lines):
    out, off = [], 0
    for ln in lines:
        n = isize(ln)
        if n == 8 and off % 8:
            o = off
            for k in range(len(out) - 1, -1, -1):
                m = isize(out[k])
                if m == 8:
                    k = -1
                    break
                o -= m
                if m == 4 and o % 8 == 0 and out[k].split()[0] == "v_exp_f32":
                    out[k] = out[k].replace("v_exp_f32", "v_exp_f32_e64")
                    break
            else:
                k = -1
            if k != -1:
                off += 4
        out.append(ln)
        off += n
    return out


def vr(b, n):
    return f"v[{b}:{b+n-1}]"


def stamp(a, n, wait=False, mode=1):
    if STAMPS == mode:
        a(f"{'s_memtime' if mode in (1, 9) else 's_memrealtime'} s[{72+2*n}:{73+2*n}]")
        if wait:
            a("s_waitcnt lgkmcnt(0)")


def gen(a):
    name = NAME + "_kernel"
    a(f"""
.globl {name}
.p2align 8
.type {name},@function
{name}:
""")
    SX, SW, SWS, SG, SD = 4, 8, 12, 16, 52
    SWA, SWB, SO = 4, 8, 16
    sW_, sP, sTG, sWV, sJ, sTP = 20, 21, 22, 23, 24, 25
    sXb, sWb, sM0x, sM0w, sA, sB, sT, sT2 = 26, 27, 28, 29, 30, 31, 32, 33
    sMASK = 34
    sKVp, sC, sN, sRS = 36, 37, 38, 39
    sDl, sU, sOm, sOh = 56, 57, 58, 59
    sNON, sRDY, sFB, sSPIN = 60, 61, 62, 63
    sCG, sT0, sTT, sKQ, sTG2 = 64, 65, 66, 67, 68
    sC2 = 70
    sD3 = 48
    sLI = sWV
    vL, vL16 = 1, 2
    NV = 168
    a(f"""
    s_cmp_ge_u32 s2, 256
    s_cbranch_scc1 L_done
    """)
    if STAMPS:
        a("s_memtime s[72:73]\ns_memrealtime s[96:97]")
    a(f"""
    s_load_dwordx2 s[{SX}:{SX+1}], s[0:1], 0            ; x
    s_bitcmp1_b32 s2, 2
    s_cselect_b32 s{sT}, 32, 8
    s_load_dwordx2 s[{SW}:{SW+1}], s[0:1], s{sT}
    s_load_dwordx2 s[{SG}:{SG+1}], s[0:1], 48           ; gate_w
    s_load_dwordx2 s[{SD}:{SD+1}], s[0:1], 64           ; debug
    s_load_dwordx2 s[{SWS}:{SWS+1}], s[0:1], 72         ; ws
    """)
    if CPF:
        a(f"""
        s_getpc_b64 s[{sA}:{sA+1}]
        v_subrev_u32 v10, 256, v0
        v_lshlrev_b32 v10, 7, v10
        v_cmp_gt_u32 vcc, L_done - {name} - 64, v10
        s_and_saveexec_b64 s[{sT}:{sT+1}], vcc
        s_cbranch_execz L_cpf
        global_load_dword v7, v10, s[{sA}:{sA+1}]
        L_cpf:
        s_mov_b64 exec, -1
        """)
    a(f"""
    v_lshrrev_b32 v10, 6, v0
    v_and_b32 v{vL}, 63, v0
    s_bfe_u32 s{sTG}, s2, 0x30003
    v_readfirstlane_b32 s{sWV}, v10
    s_and_b32 s{sP}, s2, 7
    s_lshl_b32 s{sP}, s{sP}, 2
    s_lshr_b32 s{sT2}, s2, 6
    s_add_u32 s{sP}, s{sP}, s{sT2}
    s_mov_b32 s{SX+2}, {XBYTES}
    s_mov_b32 s{SX+3}, 0x00020000
    s_mov_b32 s{SW+3}, s{SX+3}
    s_mov_b32 s{SG+3}, s{SX+3}
    s_mov_b32 s{SD+3}, s{SX+3}
    s_mov_b32 s{SWS+3}, s{SX+3}
    s_cmp_lt_u32 s{sWV}, 4
    s_cbranch_scc0 L_compute
    v_lshrrev_b32 v12, 3, v{vL}
    v_mul_u32_u24 v12, 1152, v12
    v_lshrrev_b32 v13, 4, v{vL}
    v_and_b32 v14, 7, v{vL}
    v_xor_b32 v14, v14, v13
    v_lshl_add_u32 v3, v14, 4, v12
    v_xor_b32 v14, 4, v14
    v_lshl_add_u32 v4, v14, 4, v12
    v_add_u32 v4, {8*1152 - 1024}, v4
    s_lshl_b32 s{sT}, s{sTG}, 2
    s_add_u32 s{sT}, s{sT}, s{sLI}
    s_mul_i32 s{sXb}, s{sT}, {64*1152}
    s_lshl_b32 s{sM0x}, s{sLI}, 13
    v_lshlrev_b32 v14, 2, v13
    v_xor_b32 v14, v14, v{vL}
    v_and_b32 v14, 15, v14
    v_lshlrev_b32 v15, 2, v14
    s_mov_b32 s{sA}, 0x75752020
    s_mov_b32 s{sA+1}, 0x7446420
    v_lshrrev_b64 v[16:17], v15, s[{sA}:{sA+1}]
    v_and_b32 v16, 15, v16
    v_lshlrev_b32 v14, 1, v14
    s_mov_b32 s{sT}, 0x21aa0505
    v_lshrrev_b32 v14, v14, s{sT}
    v_and_b32 v14, 3, v14
    v_mul_u32_u24 v15, 3, v13
    v_add_u32 v14, v14, v15
    v_mul_u32_u24 v14, 1152, v14
    v_lshl_add_u32 v5, v16, 3, v14
    s_and_b32 s{sT}, s{sP}, 15
    s_mul_i32 s{sT}, s{sT}, 72
    s_mul_i32 s{sWb}, s{sLI}, {16*3456}
    s_add_u32 s{sWb}, s{sWb}, s{sT}
    s_lshl_b32 s{sM0w}, s{sLI}, 12
    s_mov_b32 s{sMASK}, {WMASK & 0xffffffff:#x}
    s_mov_b32 s{sMASK+1}, {WMASK >> 32:#x}
    s_mov_b32 s{SW+2}, {WQKV_BYTES}
    s_waitcnt lgkmcnt(0)
    """)

    def common():
        a(f"""
        s_mov_b32 s{SW+2}, {WQKV_BYTES}
        s_movk_i32 s{SG+2}, 1152
        s_movk_i32 s{SD+2}, 256
        s_mov_b32 s{SWS+2}, {WS_USED}
        v_lshlrev_b32 v{vL16}, 4, v{vL}
        s_mul_i32 s{sKVp}, s{sP}, {8*CHUNK}
        s_mul_i32 s{sKQ}, s{sWV}, 43
        s_lshr_b32 s{sKQ}, s{sKQ}, 7
        s_mul_i32 s{sT}, s{sKQ}, 3
        s_sub_u32 s{sTT}, s{sWV}, s{sT}
        s_mov_b32 s{sSPIN}, {SPIN_LIMIT}
        """)

    sFl, sI, sPd, sBt, sCur, sMode, sWS = 69, 40, 41, 42, 43, 39, 3

    def unit_decode(v):
        a(f"""
        v_readfirstlane_b32 s{sU}, v{v}
        s_nop 3
        s_lshr_b32 s{sTG2}, s{sU}, 8
        s_and_b32 s{sTG2}, s{sTG2}, 7
        s_and_b32 s{sU}, s{sU}, 0xff
        s_lshr_b32 s{sCG}, s{sU}, 1
        s_and_b32 s{sT0}, s{sU}, 1
        s_mul_i32 s{sT0}, s{sT0}, 3
        s_sub_u32 s{sT}, s{sU}, 18
        s_cmp_ge_u32 s{sU}, 18
        s_cselect_b32 s{sCG}, s{sT}, s{sCG}
        s_cselect_b32 s{sT0}, 6, s{sT0}
        s_add_u32 s{sT0}, s{sT0}, s{sTT}
        s_lshl_b32 s{sT}, s{sTG2}, 3
        s_add_u32 s{sT}, s{sT}, s{sT0}
        s_mul_i32 s{sFl}, s{sT}, {OTILE}
        s_mul_i32 s{sT}, s{sKQ}, {8*OPAIR}
        s_add_u32 s{sFl}, s{sFl}, s{sT}
        s_add_u32 s{sFl}, s{sFl}, {O_OFF}
        """)

    vK, vKH, vV, vIDX = 3, 4, 5, 6
    vG = [8, 9]
    vT = [10, 11, 12, 13, 14, 15]
    Qa, Qb = 16, 20
    QH = 24
    Kb = 32
    KHb = [40, 42]
    V0b = [44, 48]
    V1b = [52, 56]
    Oa, Ob = 64, 80
    S = [96, 128]
    vXr = [16, 17, 18, 19]; vWr = [20, 21]
    vXr2 = [22, 23, 24, 25]; vWr2 = [26, 27]
    vU = list(range(32, 48))
    F = [32, 48]
    A0, A1, B0, B1 = 96, 112, 128, 144
    eK, eR, e0, e1, e2, e3, e4 = 160, 161, 162, 163, 164, 165, 166

    a.sec("compute")
    a("L_compute:")
    common()
    a(f"""
    s_sub_u32 s{sW_}, s{sWV}, 4
    s_lshr_b32 s{sJ}, s{sW_}, 2
    s_and_b32 s{sTP}, s{sW_}, 3
    s_load_dwordx2 s[44:45], s[0:1], 56          ; out
    s_mov_b32 s{SO+2}, {XBYTES}
    s_waitcnt lgkmcnt(0)
    s_mov_b64 s[{SO}:{SO+1}], s[44:45]
    """)
    a(f"""
    v_and_b32 v{vU[0]}, 31, v{vL}                ; tau
    v_lshrrev_b32 v{vU[1]}, 5, v{vL}             ; h
    s_lshl_b32 s{sT}, s{sTP}, 13
    v_lshlrev_b32 v{vU[2]}, 7, v{vU[0]}
    v_add_u32 v{vU[2]}, s{sT}, v{vU[2]}
    v_bfe_u32 v{vU[3]}, v{vU[0]}, 1, 3
    v_xor_b32 v{vU[3]}, v{vU[3]}, v{vU[1]}
    """)
    for ks in range(4):
        a(f"""
        v_xor_b32 v{vU[4]}, {2*ks}, v{vU[3]}
        v_lshl_add_u32 v{vXr[ks]}, v{vU[4]}, 4, v{vU[2]}
        v_add_u32 v{vXr2[ks]}, {2*G_SLOT}, v{vXr[ks]}
        """)
    a(f"""
    v_bfe_u32 v{vU[2]}, v{vL}, 2, 2              ; r
    v_lshl_add_u32 v{vU[3]}, v{vU[1]}, 3, v{vU[2]}
    v_lshlrev_b32 v{vU[3]}, 8, v{vU[3]}
    v_add_u32 v{vU[3]}, 32768, v{vU[3]}
    v_and_b32 v{vU[4]}, 3, v{vL}                 ; c
    v_bfe_u32 v{vU[5]}, v{vL}, 4, 1              ; sub
    v_lshl_add_u32 v{vU[6]}, v{vU[5]}, 2, v{vU[4]}
    v_lshl_add_u32 v{vU[7]}, v{vU[6]}, 3, v{vU[3]}
    v_xor_b32 v{vWr[0]}, s{sJ}, v{vU[2]}
    v_lshl_add_u32 v{vWr[0]}, v{vWr[0]}, 6, v{vU[7]}
    v_cmp_eq_u32 vcc, 2, v{vU[4]}
    v_lshlrev_b32 v{vU[6]}, 4, v{vU[4]}
    v_mov_b32 v{vU[8]}, 40
    v_cndmask_b32 v{vU[6]}, v{vU[6]}, v{vU[8]}, vcc
    v_cmp_eq_u32 vcc, 1, v{vU[5]}
    v_mov_b32 v{vU[8]}, 56
    s_nop 0
    v_cndmask_b32 v{vU[5]}, v{vU[6]}, v{vU[8]}, vcc
    v_add_u32 v{vU[5]}, v{vU[5]}, v{vU[3]}
    s_cmp_eq_u32 s{sJ}, 1
    s_cselect_b64 vcc, -1, 0
    s_add_u32 s{sT}, s{sJ}, 2
    v_cndmask_b32 v{vU[7]}, v{vU[7]}, v{vU[5]}, vcc
    v_xor_b32 v{vWr[1]}, s{sT}, v{vU[2]}
    v_lshl_add_u32 v{vWr[1]}, v{vWr[1]}, 6, v{vU[7]}
    v_add_u32 v{vWr2[0]}, {2*G_SLOT}, v{vWr[0]}
    v_add_u32 v{vWr2[1]}, {2*G_SLOT}, v{vWr[1]}
    """)
    for r in range(Oa, A0 + 64):
        a(f"v_mov_b32 v{r}, 0")
    a(f"""
    s_lshl_b32 s{sT}, s{sJ}, 10
    s_add_u32 s{sT}, s{sT}, 512
    v_add_u32 v{vK}, s{sT}, v{vL16}
    v_lshlrev_b32 v{vKH}, 2, v{vL}
    s_lshl_b32 s{sT2}, s{sJ}, 8
    v_add_u32 v{vKH}, s{sT2}, v{vKH}
    v_mov_b32 v{vU[2]}, 4
    v_cmp_gt_u32 vcc, 19, v{vU[0]}
    v_mov_b32 v{vU[3]}, 19
    s_nop 0
    v_cndmask_b32 v{vU[2]}, v{vU[2]}, v{vU[0]}, vcc
    v_cmp_eq_u32 vcc, 4, v{vU[0]}
    v_mul_u32_u24 v{vU[4]}, {VH}, v{vU[1]}
    s_mul_i32 s{sT2}, s{sJ}, {2*VG}
    s_add_u32 s{sT2}, s{sT2}, 2560
    v_cndmask_b32 v{vU[2]}, v{vU[2]}, v{vU[3]}, vcc
    v_lshl_add_u32 v{vV}, v{vU[2]}, 4, v{vU[4]}
    v_add_u32 v{vV}, s{sT2}, v{vV}
    v_mov_b32 v{vIDX}, 0xdddddddd
    s_lshl_b32 s{sT}, s{sTG}, 3
    s_lshl_b32 s{sT2}, s{sTP}, 1
    s_add_u32 s{sT}, s{sT}, s{sT2}
    s_mul_i32 s{sA}, s{sT}, {OTILE}
    s_mul_i32 s{sT}, s{sP}, {OPAIR}
    s_add_u32 s{sA}, s{sA}, s{sT}
    s_add_u32 s{sA}, s{sA}, {O_OFF}
    s_lshl_b32 s{sT}, s{sJ}, 10
    s_add_u32 s{sOm}, s{sA}, s{sT}
    s_lshl_b32 s{sT}, s{sJ}, 7
    s_add_u32 s{sOh}, s{sA}, s{sT}
    s_mov_b32 s{sD3}, {(RING[1]-RING[0]) & 0xffffffff:#x}
    s_mov_b32 s{sD3+1}, {(RING[2]-RING[1]) & 0xffffffff:#x}
    s_mov_b32 s{sD3+2}, {(RING[0]-RING[2]) & 0xffffffff:#x}
    s_mov_b32 s{sC2}, {f32bits(CSCALE):#x}
    s_mov_b32 s{sC2+1}, {f32bits(CSCALE):#x}
    v_and_b32 v{vU[2]}, 0x13, v{vU[0]}
    v_and_b32 v{vU[3]}, 4, v{vU[0]}
    v_lshl_or_b32 v{vU[2]}, v{vU[3]}, 1, v{vU[2]}
    v_and_b32 v{vU[3]}, 8, v{vU[0]}
    v_lshrrev_b32 v{vU[3]}, 1, v{vU[3]}
    v_or_b32 v{vU[2]}, v{vU[2]}, v{vU[3]}        ; kappa
    s_lshl_b32 s{sT}, s{sJ}, 10
    s_mul_i32 s{sB}, s{sTP}, {TPAIR}
    s_add_u32 s{sT}, s{sT}, s{sB}
    s_add_u32 s{sT}, s{sT}, 512
    v_lshlrev_b32 v{eK}, 9, v{vU[1]}
    v_lshl_add_u32 v{eK}, v{vU[2]}, 4, v{eK}
    v_add_u32 v{eK}, s{sT}, v{eK}
    s_lshl_b32 s{sT}, s{sTP}, 8
    s_add_u32 s{sT}, s{sT}, {SCR}
    v_lshlrev_b32 v{eR}, 2, v{vU[0]}
    v_add_u32 v{eR}, s{sT}, v{eR}
    s_cmp_eq_u32 s{sJ}, 1
    s_cbranch_scc1 L_a1
    v_subrev_u32 v{vU[3]}, 18, v{vU[0]}
    v_cmp_le_u32 vcc, 18, v{vU[0]}
    v_mov_b32 v{vU[5]}, {2*VG}
    v_mov_b32 v{vU[6]}, 19
    v_cndmask_b32 v{vU[3]}, v{vU[0]}, v{vU[3]}, vcc
    v_cndmask_b32 v{vU[5]}, 0, v{vU[5]}, vcc
    v_cmp_eq_u32 vcc, 4, v{vU[3]}
    s_add_u32 s{sT}, s{sB}, 2560
    s_nop 0
    v_cndmask_b32 v{vU[3]}, v{vU[3]}, v{vU[6]}, vcc
    v_lshl_add_u32 v{e0}, v{vU[3]}, 4, v{vU[5]}
    v_add3_u32 v{e0}, v{e0}, v{vU[4]}, s{sT}
    s_branch L_a2
    L_a1:
    v_lshlrev_b32 v{e0}, 2, v{vU[2]}
    v_add_u32 v{e0}, s{sB}, v{e0}
    v_cmp_eq_u32 vcc, 1, v{vU[1]}
    v_add_u32 v{vU[5]}, 256, v{e0}
    v_add_u32 v{vU[6]}, 1024, v{eR}
    v_cndmask_b32 v{e0}, v{e0}, v{eR}, vcc
    v_cndmask_b32 v{e1}, v{vU[5]}, v{vU[6]}, vcc
    v_mov_b32 v{vU[5]}, 1.0
    v_mov_b32 v{vU[6]}, s{sC2}
    v_cndmask_b32 v{e2}, v{vU[5]}, v{vU[6]}, vcc
    v_lshrrev_b32 v{vU[3]}, 3, v{vU[2]}
    v_mul_u32_u24 v{vU[3]}, {VH}, v{vU[3]}
    v_and_b32 v{vU[5]}, 7, v{vU[2]}
    v_lshl_add_u32 v{e3}, v{vU[5]}, 1, v{vU[3]}
    s_add_u32 s{sT}, s{sB}, {2560 + 2*VG}
    v_add_u32 v{e3}, s{sT}, v{e3}
    L_a2:
    s_lshl_b32 s{sT}, s{sJ}, 10
    v_lshl_add_u32 v{e4}, v{vU[1]}, 7, v{eR}
    v_add_u32 v{e4}, s{sT}, v{e4}
    s_mov_b32 s{sMASK}, 0x7ffff
    s_mov_b32 s{sMASK+1}, 0x7ffff
    s_lshl_b32 s{sT}, s{sW_}, 2
    s_add_u32 s{sT}, s{sT}, {SYNC}
    v_mov_b32 v167, s{sT}
    """)
    a("s_waitcnt lgkmcnt(0)")

    def reads(n, ks, f):
        s = n % 3
        xr = vXr2 if s == 2 else vXr
        wr = vWr2 if s == 2 else vWr
        so = G_SLOT if s == 1 else 0
        b = F[f]
        wo = so + ks * 16 * 256
        return [
            f"ds_read_b128 {vr(b,4)}, v{xr[ks]} offset:{so}",
            f"ds_read_b64_tr_b16 {vr(b+8,2)}, v{wr[0]} offset:{wo}",
            f"ds_read_b64_tr_b16 {vr(b+10,2)}, v{wr[0]} offset:{wo+1024}",
            f"ds_read_b128 {vr(b+4,4)}, v{xr[ks]} offset:{so+4096}",
            f"ds_read_b64_tr_b16 {vr(b+12,2)}, v{wr[1]} offset:{wo}",
            f"ds_read_b64_tr_b16 {vr(b+14,2)}, v{wr[1]} offset:{wo+1024}",
        ]

    def mfmas(f, j):
        b = F[f]
        X0, X1, Wa, Wb = vr(b, 4), vr(b + 4, 4), vr(b + 8, 4), vr(b + 12, 4)
        m = [f"v_mfma_f32_32x32x16_bf16 {vr(A0,16)}, {Wa}, {X0}, {vr(A0,16)}",
             f"v_mfma_f32_32x32x16_bf16 {vr(A1,16)}, {Wa}, {X1}, {vr(A1,16)}"]
        if j == 0:
            m += [f"v_mfma_f32_32x32x16_bf16 {vr(B0,16)}, {X0}, {Wb}, {vr(B0,16)}",
                  f"v_mfma_f32_32x32x16_bf16 {vr(B1,16)}, {X1}, {Wb}, {vr(B1,16)}"]
        else:
            m += [f"v_mfma_f32_32x32x16_bf16 {vr(B0,16)}, {Wb}, {X0}, {vr(B0,16)}",
                  f"v_mfma_f32_32x32x16_bf16 {vr(B1,16)}, {Wb}, {X1}, {vr(B1,16)}"]
        x = int(os.environ.get("XDROP", "0"))
        if x == 1 and j == 1:
            m[3] = "s_nop 0"
        if x == 2:
            m[3] = "s_nop 0"
        if x == 4:
            m[1] = m[3] = "s_nop 0"
        return m

    if TLBW == 2:
        a(f"""
        s_cmp_eq_u32 s{sW_}, 7
        s_cbranch_scc0 L_tlb
        s_buffer_load_dword s3, s[{SWS}:{SWS+3}], s{sKVp}
        s_buffer_load_dword s3, s[{SWS}:{SWS+3}], s{sKVp} offset:{hex(8*CHUNK - 4)}
        s_mov_b32 s{sT}, {FLAG_OFF + 0x30000}
        s_buffer_load_dword s3, s[{SWS}:{SWS+3}], s{sT}
        s_buffer_load_dword s3, s[{SD}:{SD+3}], 0xfc
        L_tlb:
        """)
    stamp(a, 7, True, mode=9)
    a("s_barrier")
    stamp(a, 1, True)
    stamp(a, 1, True, mode=4)
    for r in reads(0, 0, 0):
        a(r)
    a(f"""
    s_mov_b32 s{sN}, 0
    s_cmp_eq_u32 s{sJ}, 1
    s_cbranch_scc1 L_g1
    """)
    for j in range(2):
        a(f"L_g{j}:")
        for n in range(3):
            for ks in range(3):
                for r in reads(n, ks + 1, (ks + 1) & 1):
                    a(r)
                a("s_waitcnt lgkmcnt(6)")
                for m in mfmas(ks & 1, j):
                    a(m)
            a("s_waitcnt lgkmcnt(0)")
            if n == 2:
                a(f"""
                s_add_u32 s{sN}, s{sN}, 1
                s_cmp_eq_u32 s{sN}, 3
                s_cbranch_scc1 L_ge{j}
                """)
            a("s_barrier")
            for r in reads(n + 1, 0, 0):
                a(r)
            for m in mfmas(1, j):
                a(m)
        a(f"s_branch L_g{j}")
        a(f"L_ge{j}:")
        for m in mfmas(1, j):
            a(m)
        stamp(a, 2)
        stamp(a, 2, mode=4)
        a(f"""
        v_mov_b32 v{KHb[0]+1}, 0x3f803f80
        v_mov_b32 v{KHb[1]+1}, 0x3f803f80
        v_mov_b32 v{V0b[0]}, 0
        v_mov_b32 v{V0b[0]+1}, 0
        v_mov_b32 v{V0b[0]+2}, 0
        v_mov_b32 v{V0b[0]+3}, 0
        s_mov_b32 s{sN}, 0
        s_mov_b32 s{sFB}, 0
        s_nop 0
        """)
        for t, A in enumerate((A0, A1)):
            for i in range(4):
                a(f"v_cvt_pk_bf16_f32 v{A+i}, v{A+2*i}, v{A+2*i+1}")
            a(f"ds_write_b128 v{eK}, {vr(A,4)} offset:{TILE*t}")
        if j == 0:
            for t, B in enumerate((B0, B1)):
                for i in range(8):
                    a(f"v_cvt_pk_bf16_f32 v{B+i}, v{B+2*i}, v{B+2*i+1}")
                for u in range(2):
                    a(f"ds_write_b128 v{e0}, {vr(B+4*u,4)} offset:{t*TILE + u*VG}")
            a("s_branch L_ep")
        else:
            a(f"""
            s_mov_b32 exec_lo, 0
            ds_write_b32 v{eR}, v{B0+4} offset:2048
            ds_write_b32 v{eR}, v{B1+4} offset:{2048+128}
            s_mov_b32 exec_lo, -1
            """)
            for t, B in enumerate((B0, B1)):
                for i in range(4):
                    a(f"v_mul_f32 v{B+i}, v{e2}, v{B+i}")
                for i in range(4):
                    a(f"v_cvt_pk_bf16_f32 v{B+8+i}, v{B+2*i}, v{B+2*i+1}")
                a(f"ds_write_b32 v{e0}, v{B+8} offset:{128*t}")
                a(f"ds_write_b32 v{e1}, v{B+9} offset:{128*t}")
            a("s_mov_b32 exec_hi, 0")
            for t, B in enumerate((B0, B1)):
                o = t * TILE + 14 * 16
                a(f"ds_write_b16 v{e3}, v{B+10} offset:{o}")
                a(f"ds_write_b16_d16_hi v{e3}, v{B+10} offset:{o+16}")
                a(f"ds_write_b16 v{e3}, v{B+11} offset:{o+32}")
                a(f"ds_write_b16_d16_hi v{e3}, v{B+11} offset:{o+48}")
            a("s_mov_b32 exec_hi, -1")
    a("L_ep:")
    for t, (A, Q) in enumerate(((A0, Qa), (A1, Qb))):
        for i in range(4):
            a(f"v_pk_mul_f32 {vr(A+8+2*i,2)}, {vr(A+8+2*i,2)}, s[{sC2}:{sC2+1}]")
        for i in range(4):
            a(f"v_cvt_pk_bf16_f32 v{Q+i}, v{A+8+2*i}, v{A+8+2*i+1}")


    def qk(dst, kb, q, acc=True):
        return f"v_mfma_f32_32x32x16_bf16 {vr(dst,16)}, {vr(kb,4)}, {vr(q,4)}, {vr(dst,16) if acc else 0}"

    def qkh(dst, khb, par):
        return f"v_mfma_f32_32x32x4_2b_bf16 {vr(dst,32)}, {vr(khb,2)}, {vr(QH,2)}, 0 cbsz:1 abid:{par}"

    def pv(o, vb, p):
        return f"v_smfmac_f32_32x32x32_bf16 {vr(o,16)}, {vr(vb,4)}, {vr(p,8)}, v{vIDX}"

    def vread(t, buf):
        if not VMASK:
            return f"""
            ds_read_b128 {vr(V0b[buf],4)}, v{vV} offset:{toff(t)}
            ds_read_b128 {vr(V1b[buf],4)}, v{vV} offset:{toff(t) + VG}
            """
        return f"""
        s_mov_b64 exec, s[{sMASK}:{sMASK+1}]
        ds_read_b128 {vr(V0b[buf],4)}, v{vV} offset:{toff(t)}
        ds_read_b128 {vr(V1b[buf],4)}, v{vV} offset:{toff(t) + VG}
        s_mov_b64 exec, -1
        """

    a(f"v_cmp_gt_u32 vcc, 32, v{vL}")
    for r in range(V0b[1], V1b[1] + 4):
        a(f"v_mov_b32 v{r}, 0")
    a("s_waitcnt vmcnt(0) lgkmcnt(0)")
    X, Y = S
    a(qk(Y, A0, Qa, False)); a(qk(Y + 16, A0, Qb, False))
    a("s_barrier")
    stamp(a, 3, True)
    a(f"""
    ds_read_b32 v{vG[0]}, v{eR} offset:2048
    ds_read_b32 v{vG[1]}, v{eR} offset:{2048+128}
    ds_read_b32 v{KHb[0]}, v{vKH}
    ds_read_b32 v{QH}, v{e4}
    ds_read_b128 {vr(Kb,4)}, v{vK}
    """)
    a(vread(0, 0))
    a(f"""
    s_mov_b32 s{sT}, {f32bits(-math.log2(math.e)):#x}
    s_cmp_ge_u32 s{sP}, 16
    s_cselect_b32 s{sT}, {f32bits(math.log2(math.e)):#x}, s{sT}
    s_nop 0
    """)
    for t in range(2):
        b = Y + 16 * t
        a(f"v_max3_f32 v{vT[t]}, v{b}, v{b+1}, v{b+2}")
        for i in range(3, 9, 2):
            a(f"v_max3_f32 v{vT[t]}, v{vT[t]}, v{b+i}, v{b+i+1}")
    a(f"""
    v_cndmask_b32 v{vT[0]}, v{vT[1]}, v{vT[0]}, vcc
    v_lshrrev_b32 v{vT[0]}, 16, v{vT[0]}
    v_xor_b32 v{QH+1}, 0x8000, v{vT[0]}
    s_waitcnt lgkmcnt(3)
    v_mul_f32 v{vG[0]}, s{sT}, v{vG[0]}
    """)
    a(qkh(X, KHb[0], 0))
    a(f"""
    v_mul_f32 v{vG[1]}, s{sT}, v{vG[1]}
    v_exp_f32 v{vG[0]}, v{vG[0]}
    v_exp_f32 v{vG[1]}, v{vG[1]}
    """)
    for r in range(Y + 24, Y + 32):
        a(f"v_mov_b32 v{r}, 0")
    a(f"""
    v_add_f32 v{vG[0]}, 1.0, v{vG[0]}
    v_add_f32 v{vG[1]}, 1.0, v{vG[1]}
    v_rcp_f32 v{vG[0]}, v{vG[0]}
    v_rcp_f32 v{vG[1]}, v{vG[1]}
    s_waitcnt lgkmcnt(0)
    s_nop 1
    """)
    a(qk(X, Kb, Qa)); a(qk(X + 16, Kb, Qb))

    def E(b, n=4):
        for r in range(b, b + n):
            a(f"v_exp_f32 v{r}, v{r}")

    stamp(a, 4)
    stamp(a, 3, mode=4)
    a("s_setprio 1")
    a("s_nop 9")
    a(".p2align 6")
    a("L_loop:")
    loop0 = len(a.lines) - 1
    for i in range(8):
        X = S[i & 1]; Y = S[(i + 1) & 1]
        tn = (i + 1) & 7
        khb = KHb[(tn >> 1) & 1]
        if i == 7:
            a(f"""
            s_cbranch_scc1 L_nb7
            s_barrier
            L_nb7:
            s_setprio 1
            v_add_u32 v{vKH}, s{sDl}, v{vKH}
            v_add_u32 v{vK}, s{sDl}, v{vK}
            ds_read_b32 v{khb}, v{vKH}
            v_add_u32 v{vV}, s{sDl}, v{vV}
            """)
        E(X, 2)
        a(pv(Ob, V1b[(i + 1) & 1], Y + 24))
        if i == PRIOI:
            a("s_setprio 0")
        kread = f"ds_read_b128 {vr(Kb,4)}, v{vK} offset:{toff(tn)}"
        if i in (0, 2, 4):
            kread += f"\nds_read_b32 v{KHb[((i>>1)+1)&1]}, v{vKH} offset:{((i>>1)+1)*TPAIR}"
        vrd = vread(tn, (i + 1) & 1)
        a(vrd if VPOS == 1 else kread)
        E(X + 2, 4)
        if i == 7:
            a(f"s_waitcnt lgkmcnt({2 if VPOS == 1 else 1})")
        a(qkh(Y, khb, tn & 1))
        a(vrd if VPOS == 0 else kread if VPOS == 1 else "")
        E(X + 6, 8)
        a(pv(Oa, V0b[i & 1], X))
        if VPOS == 3:
            a("s_waitcnt lgkmcnt(0)")
        if VPOS >= 2:
            a(vrd)
        E(X + 14, 4)
        a(pv(Oa, V1b[i & 1], X + 8))
        if VPOS != 3:
            a(f"s_waitcnt lgkmcnt({2 if VPOS == 2 else 0})")
        if i == 1:
            a(f"s_mov_b32 s{sDl}, s{sD3}")
        if i == 3:
            a(f"s_mov_b32 s{sD3+1}, s{sD3+2}")
        if i == 7:
            a(f"s_add_u32 s{sN}, s{sN}, 1")
        E(X + 18, 4)
        a(qk(Y, Kb, Qa))
        if i == 1:
            a(f"s_mov_b32 s{sD3}, s{sD3+1}")
        if i == 2:
            a(f"v_mov_b32 v7, s{sN}")
        if i == 5:
            a(f"s_mov_b32 s{sD3+2}, s{sDl}")
        if i == 6:
            a(f"s_cmp_eq_u32 s{sN}, 7")
        if i == 7:
            a(f"s_cmp_lt_u32 s{sN}, 8")
        E(X + 22, 4)
        a(pv(Ob, V0b[i & 1], X + 16))
        if VPOS >= 2:
            a("s_waitcnt lgkmcnt(0)")
        E(X + 26, 3)
        a(qk(Y + 16, Kb, Qb))
        if i == 3:
            a("ds_write_b32 v167, v7")
        E(X + 29, 3)
    if ALIGN:
        a.lines[loop0:] = align8(a.lines[loop0:])
    a(f"""
    s_cbranch_scc1 L_loop
    s_nop 0
    """)
    stamp(a, 5)
    stamp(a, 1, mode=3)
    stamp(a, 4, mode=4)
    a(pv(Ob, V1b[1], S[1] + 24))
    a(f"""
    v_mov_b32 v{vT[5]}, {SYNC + 48}
    ds_read_b32 v160, v{vT[5]}
    s_nop 9
    L_fin:
    """)
    for t, O in enumerate((Oa, Ob)):
        a(f"v_mov_b32 v{vT[2*t]}, v{O+10}")
        a(f"v_mov_b32 v{vT[2*t+1]}, v{O+10}")
    a(f"v_max3_f32 v{vT[4]}, |v{Oa}|, |v{Oa+1}|, |v{Ob}|")
    a(f"v_max_f32 v{vT[4]}, v{vT[4]}, |v{Ob+1}|")
    a(f"v_permlane32_swap_b32 v{vT[0]}, v{vT[1]}")
    a(f"v_permlane32_swap_b32 v{vT[2]}, v{vT[3]}")
    for i in range(2, 10):
        a(f"v_max3_f32 v{vT[4]}, v{vT[4]}, |v{Oa+i}|, |v{Ob+i}|")
    a(f"""
    s_cmp_eq_u32 s{sFB}, 0
    s_cbranch_scc0 L_store
    s_mov_b32 s{sT}, {f32bits(2.0**40):#x}
    s_mov_b32 s{sT2}, {f32bits(2.0**-24):#x}
    s_mov_b32 s{sA}, 0x7f800000
    v_cmp_nge_f32 vcc, s{sT}, v{vT[0]}
    v_cmp_nge_f32 s[44:45], s{sT}, v{vT[2]}
    v_cmp_nle_f32 s[46:47], s{sT2}, v{vT[0]}
    s_or_b64 vcc, vcc, s[44:45]
    v_cmp_nle_f32 s[44:45], s{sT2}, v{vT[2]}
    s_or_b64 vcc, vcc, s[46:47]
    v_cmp_ngt_f32 s[46:47], s{sA}, v{vT[4]}
    s_or_b64 vcc, vcc, s[44:45]
    s_nop 0
    s_or_b64 vcc, vcc, s[46:47]
    s_cbranch_vccnz L_exact
    L_store:
    v_rcp_f32 v{vT[0]}, v{vT[0]}
    v_rcp_f32 v{vT[2]}, v{vT[2]}
    v_lshrrev_b32 v{vT[4]}, 5, v{vL}
    v_mul_u32_u24 v{vT[4]}, {OTILE - 128}, v{vT[4]}
    v_lshl_add_u32 v{vT[4]}, v{vL}, 2, v{vT[4]}
    s_add_u32 s{sB}, s{sOm}, {OTILE}
    v_mul_f32 v{vT[0]}, v{vT[0]}, v{vG[0]}
    v_mul_f32 v{vT[2]}, v{vT[2]}, v{vG[1]}
    v_mov_b32 v{vT[1]}, v{vT[0]}
    v_mov_b32 v{vT[3]}, v{vT[2]}
    """)
    for t, O in enumerate((Oa, Ob)):
        for i in range(5):
            a(f"v_pk_mul_f32 {vr(O+2*i,2)}, {vr(O+2*i,2)}, {vr(vT[2*t],2)}")
        pk = 16 + 4 * t
        for i in range(4):
            a(f"v_cvt_pk_bf16_f32 v{pk+i}, v{O+2*i}, v{O+2*i+1}")
        a(f"v_cvt_pk_bf16_f32 v{24+t}, v{O+8}, v{O+9}")
        for r in list(range(pk, pk + 4)) + [24 + t]:
            a(f"v_min_u32 v{r}, -2, v{r}")
        a(f"buffer_store_dwordx4 {vr(pk,4)}, v{vL16}, s[{SWS}:{SWS+3}], s{sOm if t == 0 else sB} offen sc1")
    a(f"""
    s_nop 0
    v_permlane32_swap_b32 v24, v25
    s_setprio 0
    buffer_store_dword v24, v{vT[4]}, s[{SWS}:{SWS+3}], s{sOh} offen offset:2048 sc1
    v_mov_b32 v7, 8
    ds_write_b32 v167, v7
    s_waitcnt lgkmcnt(1)
    """)
    unit_decode(160)
    stamp(a, 6)
    stamp(a, 2, mode=3)

    a.sec("exact")
    X = S[0]
    a(f"""
    L_exact:
    s_mov_b32 s{sFB}, 1
    v_mov_b32 v{QH+1}, 0
    v_and_b32 v{vKH}, 31, v{vL}
    v_mov_b32 v{vT[2]}, 4
    v_cmp_gt_u32 vcc, 19, v{vKH}
    v_mov_b32 v{vT[3]}, 19
    v_lshrrev_b32 v{vT[4]}, 5, v{vL}
    v_cndmask_b32 v{vT[2]}, v{vT[2]}, v{vKH}, vcc
    v_cmp_eq_u32 vcc, 4, v{vKH}
    v_mul_u32_u24 v{vT[4]}, {VH}, v{vT[4]}
    v_lshlrev_b32 v{vKH}, 2, v{vKH}
    v_cndmask_b32 v{vT[2]}, v{vT[2]}, v{vT[3]}, vcc
    v_lshl_add_u32 v{vV}, v{vT[2]}, 4, v{vT[4]}
    v_mov_b32 v{vT[0]}, 0xff800000
    v_mov_b32 v{vT[1]}, 0xff800000
    """)
    for r in range(Oa, Oa + 32):
        a(f"v_mov_b32 v{r}, 0")
    for ps in range(2):
        a(f"""
        s_mov_b32 s{sN}, 0
        L_x{ps}:
        s_lshr_b32 s{sT}, s{sN}, 1
        s_mul_i32 s{sT}, s{sT}, {TPAIR}
        s_add_u32 s{sT}, s{sT}, s{sKVp}
        s_and_b32 s{sT2}, s{sN}, 1
        s_mul_i32 s{sB}, s{sT2}, {TILE}
        s_add_u32 s{sB}, s{sB}, s{sT}                ; + tile
        s_lshl_b32 s{sA}, s{sJ}, 10
        s_add_u32 s{sA}, s{sA}, s{sB}
        buffer_load_dwordx4 {vr(Kb,4)}, v{vL16}, s[{SWS}:{SWS+3}], s{sA} offen offset:512 sc1
        s_lshl_b32 s{sA}, s{sT2}, 7
        s_add_u32 s{sA}, s{sA}, s{sT}
        s_lshl_b32 s{sT2}, s{sJ}, 8
        s_add_u32 s{sA}, s{sA}, s{sT2}
        buffer_load_dword v{KHb[0]}, v{vKH}, s[{SWS}:{SWS+3}], s{sA} offen sc1
        """)
        if ps == 1:
            a(f"""
            s_mul_i32 s{sA}, s{sJ}, {2*VG}
            s_add_u32 s{sA}, s{sA}, s{sB}
            s_add_u32 s{sA}, s{sA}, 2560
            buffer_load_dwordx4 {vr(V0b[0],4)}, v{vV}, s[{SWS}:{SWS+3}], s{sA} offen sc1
            buffer_load_dwordx4 {vr(V1b[0],4)}, v{vV}, s[{SWS}:{SWS+3}], s{sA} offen offset:{VG} sc1
            """)
        a("s_waitcnt vmcnt(0)")
        a(qkh(X, KHb[0], 0))
        a("s_nop 15\ns_nop 3")
        a(qk(X, Kb, Qa)); a(qk(X + 16, Kb, Qb))
        a("s_nop 15")
        if ps == 0:
            for t in range(2):
                for i in range(0, 16, 2):
                    a(f"v_max3_f32 v{vT[t]}, v{vT[t]}, v{X+16*t+i}, v{X+16*t+i+1}")
        else:
            for i in range(16):
                a(f"v_sub_f32 v{X+i}, v{X+i}, v{vT[0]}")
                a(f"v_sub_f32 v{X+16+i}, v{X+16+i}, v{vT[1]}")
            E(X, 32)
            a("s_nop 1")
            a(pv(Oa, V0b[0], X)); a(pv(Oa, V1b[0], X + 8))
            a(pv(Ob, V0b[0], X + 16)); a(pv(Ob, V1b[0], X + 24))
        a(f"""
        s_add_u32 s{sN}, s{sN}, 1
        s_cmp_lt_u32 s{sN}, 64
        s_cbranch_scc1 L_x{ps}
        """)
        if ps == 0:
            a(f"""
            v_mov_b32 v{vT[2]}, v{vT[0]}
            v_mov_b32 v{vT[3]}, v{vT[1]}
            s_nop 1
            v_permlane32_swap_b32 v{vT[0]}, v{vT[2]}
            v_permlane32_swap_b32 v{vT[1]}, v{vT[3]}
            s_nop 1
            v_max_f32 v{vT[0]}, v{vT[0]}, v{vT[2]}
            v_max_f32 v{vT[1]}, v{vT[1]}, v{vT[3]}
            """)
    a("""
    s_nop 15
    s_branch L_fin
    """)

    vXE, vXO, vWS = 3, 4, 5
    vGt = [6, 7, 8]
    vGA, vF, vFo = 9, 10, 11
    vT = [12, 13, 14, 15, 16, 17, 18, 19]
    vWO = 20
    CP = 32

    def dma_x(n):
        slot = (n % 3) * G_SLOT
        s = f"s_add_u32 m0, s{sM0x}, {slot}\ns_add_u32 s{sT}, s{sXb}, {n*128}\n"
        for i in range(4):
            s += f"buffer_load_dwordx4 v{vXE}, s[{SX}:{SX+3}], s{sT} offen lds\n"
            s += f"buffer_load_dwordx4 v{vXO}, s[{SX}:{SX+3}], s{sT} offen offset:1024 lds\n"
            if i < 3:
                s += f"s_addk_i32 m0, 0x800\ns_addk_i32 s{sT}, {16*1152}\n"
        return s

    def dma_w(n):
        slot = (n % 3) * G_SLOT
        s = f"s_add_u32 m0, s{sM0w}, {slot + 32768}\ns_add_u32 s{sT}, s{sWb}, {n*64*3456}\n"
        s += f"s_mov_b64 exec, s[{sMASK}:{sMASK+1}]\n"
        for i in range(4):
            s += f"buffer_load_dwordx4 v{vWS}, s[{SW}:{SW+3}], s{sT} offen offset:{1024*i} lds\n"
            if i < 3:
                s += f"s_addk_i32 s{sT}, {4*3456 - 1024}\n"
        s += "s_mov_b64 exec, -1\n"
        return s

    def gate_write(n):
        slot = (n % 3) * G_SLOT
        lab = a.label("L_gw")
        reg = vGt[n // 4]
        if slot < 65536:
            w = f"ds_write_b16 v{vGA}, v{reg} offset:{slot}"
        else:
            w = f"v_add_u32 v{vT[7]}, {slot}, v{vGA}\nds_write_b16 v{vT[7]}, v{reg}"
        return f"""
        s_cmp_eq_u32 s{sLI}, {n % 4}
        s_cbranch_scc0 {lab}
        {w}
        {lab}:
        """

    def wo_load(q0, q1):
        assert q1 <= 72 or q0 >= 72
        srd_, base = (SWA, 0) if q1 <= 72 else (SWB, 72)
        lab = a.label("L_wo")
        a(f"""
        s_add_u32 s{sA}, s{sLI}, {q0}
        {lab}:
        s_lshl_b32 m0, s{sA}, 10
        s_sub_u32 s{sT}, s{sA}, {base}
        s_mul_i32 s{sT}, s{sT}, {8*1152}
        buffer_load_dwordx4 v{vWO}, s[{srd_}:{srd_+3}], s{sT} offen lds
        s_add_u32 s{sA}, s{sA}, 4
        s_cmp_lt_u32 s{sA}, {q1}
        s_cbranch_scc1 {lab}
        """)

    a.sec("loader")
    a("s_setprio 3")
    stamp(a, 1, mode=9)
    a(dma_x(0))
    stamp(a, 2, mode=9)
    stamp(a, 3, mode=9)
    a(dma_w(0))
    stamp(a, 4, mode=9)
    common()
    a(f"""
    v_lshlrev_b32 v{vT[0]}, 1, v{vL}
    s_lshl_b32 s{sT}, s{sLI}, 7
    buffer_load_ushort v{vGt[0]}, v{vT[0]}, s[{SG}:{SG+3}], s{sT} offen
    buffer_load_ushort v{vGt[1]}, v{vT[0]}, s[{SG}:{SG+3}], s{sT} offen offset:512
    buffer_load_ushort v{vGt[2]}, v{vT[0]}, s[{SG}:{SG+3}], s{sT} offen offset:1024
    """)
    a(f"""
    v_and_b32 v{vT[2]}, 3, v{vL}
    v_xor_b32 v{vT[2]}, 3, v{vT[2]}
    v_lshlrev_b32 v{vT[2]}, 6, v{vT[2]}
    v_lshl_add_u32 v{vGA}, v{vL}, 8, v{vT[2]}
    v_add_u32 v{vGA}, {32768 + 48}, v{vGA}
    """)
    if DPF == 7:
        a(f"""
        s_cmp_eq_u32 s{sLI}, 0
        s_cbranch_scc0 L_e1
        v_and_b32 v{vT[5]}, 7, v{vL}
        v_lshrrev_b32 v{vT[4]}, 3, v{vL}
        v_mul_u32_u24 v{vT[4]}, 1152, v{vT[4]}
        v_lshl_add_u32 v{vT[5]}, v{vT[5]}, 7, v{vT[4]}
        s_mul_i32 s{sT}, s2, {8*1152}
        buffer_load_dword v{vT[6]}, v{vT[5]}, s[{SX}:{SX+3}], s{sT} offen offset:128
        s_branch L_e4
        L_e1:
        s_cmp_eq_u32 s{sLI}, 3
        s_cbranch_scc1 L_e2
        v_lshlrev_b32 v{vT[5]}, 7, v{vL}
        s_and_b32 s{sT}, s{sP}, 15
        s_lshl_b32 s{sT}, s{sT}, 3
        s_add_u32 s{sT}, s{sT}, s{sTG}
        s_lshl_b32 s{sT}, s{sT}, 1
        s_add_u32 s{sT}, s{sT}, s{sLI}
        s_mul_i32 s{sT}, s{sT}, {2*3456}
        s_add_u32 s{sT}, s{sT}, {62*3456}
        s_mov_b32 exec_hi, 0x3fffff
        buffer_load_dword v{vT[6]}, v{vT[5]}, s[{SW}:{SW+3}], s{sT} offen
        s_branch L_e4
        L_e2:
        v_lshlrev_b32 v{vT[5]}, 20, v{vL}
        s_lshl_b32 s{sT}, s2, 7
        s_mov_b64 exec, 0xffff
        buffer_load_dword v{vT[6]}, v{vT[5]}, s[{SWS}:{SWS+3}], s{sT} offen sc1
        L_e4:
        s_mov_b64 exec, -1
        """)
        pre = int(os.environ.get("PRE", "0"))
        if pre:
            a(dma_x(1))
    else:
        a(f"""
        s_cmp_eq_u32 s{sLI}, 0
        s_cbranch_scc0 L_e1
        v_and_b32 v{vT[5]}, 1, v{vL}
        v_bfe_u32 v{vT[4]}, v{vL}, 1, 3
        v_mul_u32_u24 v{vT[4]}, 1152, v{vT[4]}
        v_lshl_add_u32 v{vT[5]}, v{vT[5]}, 7, v{vT[4]}
        s_mul_i32 s{sT}, s2, {8*1152}
        s_mov_b64 exec, 0xffff
        buffer_load_dword v{vT[6]}, v{vT[5]}, s[{SX}:{SX+3}], s{sT} offen offset:256
        s_branch L_e4
        L_e1:
        s_cmp_eq_u32 s{sLI}, 1
        s_cbranch_scc0 L_e2
        v_lshlrev_b32 v{vT[5]}, 7, v{vL}
        s_and_b32 s{sT}, s{sP}, 15
        s_lshl_b32 s{sT}, s{sT}, 3
        s_add_u32 s{sT}, s{sT}, s{sTG}
        s_mul_i32 s{sT}, s{sT}, 3456
        s_add_u32 s{sT}, s{sT}, {128*3456}
        s_mov_b64 exec, 0x7ffffff
        buffer_load_dword v{vT[6]}, v{vT[5]}, s[{SW}:{SW+3}], s{sT} offen
        s_branch L_e4
        L_e2:
        s_mov_b64 exec, 1
        buffer_load_ushort v{vT[6]}, v{vT[0]}, s[{SG}:{SG+3}], 0 offen
        L_e4:
        s_mov_b64 exec, -1
        """)
        a(dma_x(1)); a(dma_w(1))
    stamp(a, 5, mode=9)
    a(f"""
    v_lshlrev_b32 v{vT[2]}, 2, v{vL}
    v_add_u32 v{vT[2]}, {SYNC}, v{vT[2]}
    v_mov_b32 v{CP}, 0
    v_mov_b32 v{CP+1}, 0
    v_mov_b32 v{CP+2}, 0
    v_mov_b32 v{CP+3}, 0
    ds_write_b32 v{vT[2]}, v{CP}
    s_min_u32 s{sT}, s{sLI}, 2
    s_mul_i32 s{sT}, s{sT}, {G_SLOT}
    v_add_u32 v{vT[2]}, s{sT}, v{vGA}
    s_cmp_eq_u32 s{sLI}, 3
    s_cbranch_scc1 L_nz
    ds_write_b128 v{vT[2]}, {vr(CP,4)}
    L_nz:
    s_waitcnt vmcnt({13 if DPF != 7 else 9 if pre else 1})
    """)
    for n in range(3):
        a(gate_write(n))
    stamp(a, 6, mode=9)
    a("s_waitcnt lgkmcnt(0)")
    stamp(a, 7, mode=9)
    a("s_barrier")
    stamp(a, 8, mode=9)
    stamp(a, 1)
    if DPF == 7:
        if not pre:
            a(dma_x(1))
        a(dma_w(1))
    a(dma_x(2)); a(dma_w(2))
    if DPF == 4:
        a(f"""
        s_cmp_eq_u32 s{sLI}, 0
        s_cbranch_scc0 L_lp1
        v_and_b32 v{vT[5]}, 7, v{vL}
        v_min_u32 v{vT[5]}, 4, v{vT[5]}
        v_lshrrev_b32 v{vT[4]}, 3, v{vL}
        v_mul_u32_u24 v{vT[4]}, 1152, v{vT[4]}
        v_lshl_add_u32 v{vT[5]}, v{vT[5]}, 7, v{vT[4]}
        s_mul_i32 s{sT}, s2, {8*1152}
        buffer_load_dword v{vT[6]}, v{vT[5]}, s[{SX}:{SX+3}], s{sT} offen offset:512
        s_branch L_lp2
        L_lp1:
        v_min_u32 v{vT[5]}, 23, v{vL}
        v_lshlrev_b32 v{vT[5]}, 7, v{vT[5]}
        s_and_b32 s{sT}, s{sP}, 15
        s_lshl_b32 s{sT}, s{sT}, 3
        s_add_u32 s{sT}, s{sT}, s{sTG}
        s_mul_i32 s{sT}, s{sT}, 3
        s_add_u32 s{sT}, s{sT}, s{sLI}
        s_mul_i32 s{sT}, s{sT}, {320*3456 // 384}
        s_add_u32 s{sT}, s{sT}, {256*3456 - 320*3456 // 384}
        buffer_load_dword v{vT[6]}, v{vT[5]}, s[{SW}:{SW+3}], s{sT} offen
        L_lp2:
        """)
    vN = 24
    a(f"""
    s_lshl_b32 s{sT}, s{sP}, 12
    s_add_u32 s{sT}, s{sT}, {FLAG_OFF}
    v_lshlrev_b32 v{vN}, 7, v{vL}
    v_add_u32 v{vN}, s{sT}, v{vN}
    v_and_b32 v{vN+1}, 7, v{vL}
    v_lshlrev_b32 v{vN+1}, 12, v{vN+1}
    s_lshl_b32 s{sT}, s{sP}, 7
    s_add_u32 s{sT}, s{sT}, {OFLAG_OFF}
    v_cmp_gt_u32 vcc, 32, v{vL}
    v_add_u32 v{vN+1}, s{sT}, v{vN+1}
    s_cmp_eq_u32 s{sLI}, 3
    v_cndmask_b32 v{vN}, v{vN+1}, v{vN}, vcc
    s_cselect_b32 exec_lo, -1, 1
    s_cselect_b32 exec_hi, 0xff, 0
    buffer_load_dword v{vN+1}, v{vN}, s[{SWS}:{SWS+3}], 0 offen sc1
    s_mov_b64 exec, -1
    """)
    for n in range(8):
        extra = (2 if DPF == 4 else 1) if n < 2 else 1 if n >= 6 else 0
        a(f"s_waitcnt vmcnt({(12 if n + 2 <= 8 else 0) + extra}) lgkmcnt(0)")
        if STAMPS == 7:
            a(f"s_memtime s[90:91]\ns_waitcnt lgkmcnt(0)\ns_barrier\ns_memtime s[94:95]\ns_waitcnt lgkmcnt(0)\ns_sub_u32 s90, s94, s90\ns_add_u32 s{74+2*n}, s90, s72")
        elif STAMPS == 8:
            a(f"s_barrier\ns_memtime s[{74+2*n}:{75+2*n}]")
        else:
            a("s_barrier")
        if n + 3 <= 8:
            a(gate_write(n + 3))
            a(dma_x(n + 3)); a(dma_w(n + 3))
        if n == 5:
            a(f"""
            s_brev_b32 s{sA}, 1
            s_movk_i32 s{sB}, 0x400
            s_cmp_eq_u32 s{sLI}, 3
            s_cbranch_scc0 L_nn1
            s_mov_b32 s44, -1
            s_movk_i32 s45, 0xff
            """)
            for b in range(6):
                a(f"""
                v_and_b32 v{vN}, {1 << b}, v{vN+1}
                v_cmp_ne_u32 vcc, 0, v{vN}
                s_nop 0
                s_and_b64 s[46:47], s[44:45], vcc
                s_andn2_b64 s[44:45], s[44:45], vcc
                s_bcnt1_i32_b64 s{sT}, s[46:47]
                s_bcnt1_i32_b64 s{sT2}, s[44:45]
                s_cmp_lt_u32 s{sT}, s{sT2}
                s_cselect_b64 s[44:45], s[46:47], s[44:45]
                s_cselect_b32 s{sT}, {1 << b}, 0
                s_or_b32 s{sA}, s{sA}, s{sT}
                """)
            a(f"""
            s_lshl_b32 s{sB}, s{sP}, 2
            L_nn1:
            v_mov_b32 v{vN}, s{sA}
            v_mov_b32 v{vN+1}, 0
            v_mov_b32 v{vN+2}, s{sA}
            v_mov_b32 v{vN+3}, s{sB}
            s_mov_b64 exec, 1
            buffer_atomic_cmpswap v[{vN}:{vN+1}], v{vN+3}, s[{SD}:{SD+3}], 0 offen sc0 sc1
            s_mov_b64 exec, -1
            """)
        if n == 6:
            lab = a.label("L_cr")
            a(f"""
            s_cmp_ge_u32 s{sLI}, 2
            s_cbranch_scc1 {lab}
            s_cmp_eq_u32 s{sLI}, 0
            s_cselect_b32 s{sT}, 0x3f803f80, 0
            s_cselect_b32 s{sT2}, {14*16}, 0
            s_add_u32 s{sT2}, s{sT2}, {2560 + 4*16}
            v_and_b32 v{vT[0]}, 7, v{vL}
            v_mul_u32_u24 v{vT[0]}, {VH}, v{vT[0]}
            v_lshrrev_b32 v{vT[2]}, 3, v{vL}
            v_mul_u32_u24 v{vT[2]}, {TILE}, v{vT[2]}
            v_lshrrev_b32 v{vT[3]}, 4, v{vL}
            v_lshl_add_u32 v{vT[2]}, v{vT[3]}, 9, v{vT[2]}
            v_add3_u32 v{vT[0]}, v{vT[0]}, v{vT[2]}, s{sT2}
            v_mov_b32 v{CP}, s{sT}
            v_mov_b32 v{CP+1}, s{sT}
            v_mov_b32 v{CP+2}, s{sT}
            v_mov_b32 v{CP+3}, s{sT}
            ds_write_b128 v{vT[0]}, {vr(CP,4)}
            {lab}:
            """)
    a(f"""
    s_load_dwordx2 s[{SWA}:{SWA+1}], s[0:1], 16          ; A_wo
    s_load_dwordx2 s[{SWB}:{SWB+1}], s[0:1], 40          ; B_wo
    s_load_dwordx2 s[{SO}:{SO+1}], s[0:1], 56            ; out
    s_mov_b32 s{SWA+2}, {WO_BYTES}
    s_mov_b32 s{SWB+2}, {WO_BYTES}
    s_mov_b32 s{SO+2}, {XBYTES}
    s_mov_b32 s{sU}, 0
    s_mov_b32 s{sD3}, {(RING[1]-RING[0]) & 0xffffffff:#x}
    s_mov_b32 s{sD3+1}, {(RING[2]-RING[1]) & 0xffffffff:#x}
    s_mov_b32 s{sD3+2}, {(RING[0]-RING[2]) & 0xffffffff:#x}
    s_mul_i32 s{sT}, s{sLI}, {TPAIR}
    v_add_u32 v{vT[0]}, s{sT}, v{vL16}
    s_add_u32 s{sKVp}, s{sKVp}, s{sT}
    s_mov_b32 s{sM0x}, s{sT}
    s_mul_i32 s{sA}, s{sTG}, {CHUNK}
    s_add_u32 s{sA}, s{sA}, s{sKVp}
    s_lshl_b32 s{sT}, s{sLI}, 10
    s_lshl_b32 s{sB}, s{sP}, 12
    s_add_u32 s{sB}, s{sB}, s{sT}
    s_add_u32 s{sWb}, s{sB}, {FLAG_OFF}
    v_and_b32 v{vFo}, 7, v{vL}
    v_lshlrev_b32 v{vFo}, 7, v{vFo}
    v_mov_b32 v{vT[1]}, {SYNC + 52}
    s_lshl_b32 s{sT}, s{sTG}, 7
    v_mov_b32 v{vT[2]}, s{sT}
    v_lshrrev_b32 v{vT[3]}, 3, v{vL}
    v_mul_u32_u24 v{vT[3]}, 1152, v{vT[3]}
    v_bfe_u32 v{vT[4]}, v{vL}, 4, 1
    v_lshlrev_b32 v{vT[4]}, 2, v{vT[4]}
    v_and_b32 v{vT[5]}, 7, v{vL}
    v_xor_b32 v{vT[5]}, v{vT[5]}, v{vT[4]}
    v_lshl_add_u32 v{vWO}, v{vT[5]}, 4, v{vT[3]}
    s_waitcnt lgkmcnt(0)
    s_barrier
    """)
    stamp(a, 3, True)
    for i in range(10):
        a(f"ds_read_b128 {vr(CP+4*i,4)}, v{vT[0]} offset:{1024*i}")
    for i in range(10):
        if i == 9:
            a("s_mov_b32 exec_hi, 0")
        if i in (4, 8):
            a(f"s_add_u32 s{sA}, s{sA}, 4096")
        a(f"s_waitcnt lgkmcnt({9-i})")
        a(f"buffer_store_dwordx4 {vr(CP+4*i,4)}, v{vL16}, s[{SWS}:{SWS+3}], s{sA} offen offset:{1024*(i&3)} sc1")
    a(f"""
    s_mov_b64 exec, 1
    s_cmp_eq_u32 s{sLI}, 3
    s_cbranch_scc0 L_nn2
    s_waitcnt vmcnt(10)
    v_cmp_eq_u32 vcc, 0, v{vN}
    s_nop 1
    v_cndmask_b32 v{vN}, v{vN}, v{vN+2}, vcc
    ds_write_b32 v{vT[1]}, v{vN}
    L_nn2:
    ds_read_b32 v{vF}, v{vT[1]}
    s_waitcnt lgkmcnt(0)
    v_cmp_eq_u32 vcc, 0, v{vF}
    s_cbranch_vccnz L_nn2
    v_readfirstlane_b32 s{sNON}, v{vF}
    s_waitcnt vmcnt(0)
    buffer_store_dword v{vF}, v{vT[2]}, s[{SWS}:{SWS+3}], s{sWb} offen sc1
    s_mov_b64 exec, -1
    s_mov_b32 s{sRDY}, 0
    s_mov_b32 s{sN}, 0
    s_lshl_b32 s{sXb}, 1, s{sTG}
    L_ll:
    s_add_u32 s{sM0x}, s{sM0x}, s{sD3}
    s_mov_b32 s{sT}, s{sD3}
    s_mov_b32 s{sD3}, s{sD3+1}
    s_mov_b32 s{sD3+1}, s{sD3+2}
    s_mov_b32 s{sD3+2}, s{sT}
    L_poll:
    s_andn2_b32 s{sT}, s{sRDY}, s{sXb}
    s_cbranch_scc1 L_rdy
    buffer_load_dword v{vF}, v{vFo}, s[{SWS}:{SWS+3}], s{sWb} offen sc1
    s_waitcnt vmcnt(0)
    v_cmp_eq_u32 vcc, s{sNON}, v{vF}
    s_sub_u32 s{sSPIN}, s{sSPIN}, 1
    s_nop 0
    s_cselect_b32 s{sRDY}, -1, vcc_lo
    s_and_b32 s{sRDY}, s{sRDY}, 0xff
    s_branch L_poll
    L_rdy:
    s_ff1_i32_b32 s{sC}, s{sT}
    s_bitset1_b32 s{sXb}, s{sC}
    s_mul_i32 s{sA}, s{sC}, {CHUNK}
    s_add_u32 s{sA}, s{sA}, s{sKVp}
    """)
    for i in range(10):
        if i % 4 == 0:
            a(f"s_add_u32 m0, s{sM0x}, {1024*i}")
            a(f"s_add_u32 s{sT}, s{sA}, {1024*i}")
        if i == 9:
            a("s_mov_b32 exec_hi, 0")
        if True:
            a(f"buffer_load_dwordx4 v{vL16}, s[{SWS}:{SWS+3}], s{sT} offen offset:{1024*(i&3)} sc1 lds")
    a(f"""
    s_mov_b32 exec_hi, -1
    L_d9:
    s_cmp_eq_u32 s{sN}, 1
    s_cbranch_scc0 L_ncl
    s_lshl_b32 s{sT}, s{sTG}, 3
    s_lshl_b32 s{sT2}, s{sLI}, 1
    s_add_u32 s{sT}, s{sT}, s{sT2}
    s_mul_i32 s{sA}, s{sT}, {OTILE}
    s_mul_i32 s{sT}, s{sP}, {OPAIR}
    s_add_u32 s{sA}, s{sA}, s{sT}
    s_add_u32 s{sA}, s{sA}, {O_OFF}
    s_add_u32 s{sB}, s{sA}, {OTILE}
    v_mov_b32 v{CP}, -1
    v_mov_b32 v{CP+1}, -1
    v_mov_b32 v{CP+2}, -1
    v_mov_b32 v{CP+3}, -1
    buffer_store_dwordx4 {vr(CP,4)}, v{vL16}, s[{SWS}:{SWS+3}], s{sA} offen sc1
    buffer_store_dwordx4 {vr(CP,4)}, v{vL16}, s[{SWS}:{SWS+3}], s{sA} offen offset:1024 sc1
    buffer_store_dwordx4 {vr(CP,4)}, v{vL16}, s[{SWS}:{SWS+3}], s{sB} offen sc1
    buffer_store_dwordx4 {vr(CP,4)}, v{vL16}, s[{SWS}:{SWS+3}], s{sB} offen offset:1024 sc1
    s_mov_b64 exec, 0xffff
    buffer_store_dwordx4 {vr(CP,4)}, v{vL16}, s[{SWS}:{SWS+3}], s{sA} offen offset:2048 sc1
    buffer_store_dwordx4 {vr(CP,4)}, v{vL16}, s[{SWS}:{SWS+3}], s{sB} offen offset:2048 sc1
    s_mov_b64 exec, -1
    L_ncl:
    s_cmp_eq_u32 s{sLI}, 0
    s_cbranch_scc0 L_nfl
    s_cmp_eq_u32 s{sN}, 2
    s_cbranch_scc0 L_n2
    s_lshl_b32 s{sT}, s{sTG}, 12
    s_lshl_b32 s{sT2}, s{sP}, 7
    s_add_u32 s{sT}, s{sT}, s{sT2}
    s_add_u32 s{sT}, s{sT}, {OFLAG_OFF}
    v_mov_b32 v{vT[3]}, 0
    v_mov_b32 v{vF}, s{sNON}
    s_mov_b64 exec, 1
    buffer_store_dword v{vF}, v{vT[3]}, s[{SWS}:{SWS+3}], s{sT} offen sc1
    s_mov_b64 exec, -1
    L_n2:
    s_cmp_eq_u32 s{sN}, {CLAIM}
    s_cbranch_scc0 L_nfl
    s_and_b32 s{sA}, s2, 7
    v_and_b32 v{vT[5]}, 7, v{vL}
    v_lshlrev_b32 v{vT[4]}, 2, v{vT[5]}
    L_cl:
    s_lshl_b32 s{sT}, s{sA}, 2
    v_mov_b32 v{vT[3]}, s{sT}
    v_mov_b32 v{vF}, 1
    s_mov_b64 exec, 1
    buffer_atomic_add v{vF}, v{vT[3]}, s[{SD}:{SD+3}], 0 offen offset:128 sc0 sc1
    s_mov_b64 exec, -1
    s_waitcnt vmcnt(0)
    v_readfirstlane_b32 s{sB}, v{vF}
    s_nop 3
    s_cmp_lt_u32 s{sB}, 27
    s_cbranch_scc1 L_cl2
    """)
    if STEAL:
        a(f"""
        buffer_load_dword v{vF}, v{vT[4]}, s[{SD}:{SD+3}], 0 offen offset:128 sc1
        s_waitcnt vmcnt(0)
        v_lshl_or_b32 v{vF}, v{vF}, 3, v{vT[5]}
        s_nop 0
        v_readlane_b32 s{sA}, v{vF}, 0
        """)
        for q in range(1, 8):
            a(f"v_readlane_b32 s{sT}, v{vF}, {q}\ns_nop 3\ns_min_u32 s{sA}, s{sA}, s{sT}")
        a(f"""
        s_lshr_b32 s{sT}, s{sA}, 3
        s_and_b32 s{sA}, s{sA}, 7
        s_sub_u32 s{sSPIN}, s{sSPIN}, 1
        s_cselect_b32 s{sT}, 27, s{sT}
        s_cmp_lt_u32 s{sT}, 27
        s_cbranch_scc1 L_cl
        s_mov_b32 s{sSPIN}, {SPIN_LIMIT}
        """)
    a(f"""
    s_movk_i32 s{sB}, 0xff
    L_cl2:
    s_lshl_b32 s{sA}, s{sA}, 8
    s_or_b32 s{sA}, s{sA}, s{sB}
    v_mov_b32 v{vF}, s{sA}
    v_mov_b32 v{vT[3]}, {SYNC + 48}
    ds_write_b32 v{vT[3]}, v{vF}
    s_waitcnt lgkmcnt(0)
    L_nfl:
    s_cmp_eq_u32 s{sN}, {CLAIM + 1}
    s_cbranch_scc0 L_nw3
    v_mov_b32 v{vT[3]}, {SYNC + 48}
    ds_read_b32 v{vF}, v{vT[3]}
    s_waitcnt lgkmcnt(0)
    """)
    unit_decode(vF)
    a(f"""
    s_cmp_ge_u32 s{sU}, 27
    s_cbranch_scc1 L_on1
    s_lshl_b32 s{sT}, s{sCG}, 7
    v_add_u32 v{vWO}, s{sT}, v{vWO}
    """)
    wo_load(38, 42)
    wo_load(80, 121)
    a(f"""
    L_nw3:
    s_cmp_eq_u32 s{sN}, 6
    s_cbranch_scc0 L_on1
    s_cmp_ge_u32 s{sU}, 27
    s_cbranch_scc1 L_on1
    v_mul_u32_u24 v{vT[3]}, 1152, v{vL}
    s_lshl_b32 s{sT}, s{sCG}, 7
    s_mul_i32 s{sT2}, s{sLI}, {48*1152}
    s_add_u32 s{sT2}, s{sT2}, s{sT}
    s_add_u32 s{sT2}, s{sT2}, {392*1152}
    buffer_load_dword v{vT[4]}, v{vT[3]}, s[{SWB}:{SWB+3}], s{sT2} offen
    """)
    if TLBW:
        a(f"""
        s_mul_i32 s{sT}, s{sTG2}, {256*1152}
        v_lshlrev_b32 v{vT[3]}, 2, v{vT[3]}
        buffer_load_dword v{vT[4]}, v{vT[3]}, s[{SO}:{SO+3}], s{sT} offen
        """)
    a(f"""
    v_and_b32 v{vT[0]}, 31, v{vL}
    v_lshlrev_b32 v{vT[3]}, 7, v{vT[0]}
    v_lshlrev_b32 v{vT[0]}, 2, v{vT[0]}
    s_lshl_b32 s{sB}, s{sTG2}, 12
    s_add_u32 s{sB}, s{sB}, {OFLAG_OFF}
    L_on0:
    buffer_load_dword v{vF}, v{vT[0]}, s[{SD}:{SD+3}], 0 offen sc1
    buffer_load_dword v{vT[4]}, v{vT[3]}, s[{SWS}:{SWS+3}], s{sB} offen sc1
    s_waitcnt vmcnt(0)
    v_cmp_le_i32 vcc, 0, v{vF}
    v_cmp_ne_u32 s[44:45], v{vF}, v{vT[4]}
    s_sub_u32 s{sSPIN}, s{sSPIN}, 1
    s_cbranch_scc1 L_on1
    s_or_b64 vcc, vcc, s[44:45]
    s_cbranch_vccz L_on1
    s_sleep 8
    s_branch L_on0
    L_on1:
    s_waitcnt vmcnt(0)
    """)
    if STAMPS == 1:
        a(f"s_cmp_eq_u32 s{sN}, 0\ns_cbranch_scc0 L_st4")
        stamp(a, 4)
        a("L_st4:")
    if STAMPS == 6:
        a("s_barrier\ns_memtime s[88:89]\ns_waitcnt lgkmcnt(0)")
        for q in range(7):
            a(f"s_cmp_eq_u32 s{sN}, {q}\ns_cselect_b32 s{74+2*q}, s88, s{74+2*q}")
    elif STAMPS == 5:
        a("s_memtime s[88:89]\ns_waitcnt lgkmcnt(0)\ns_barrier\ns_memtime s[90:91]\ns_waitcnt lgkmcnt(0)\ns_sub_u32 s88, s90, s88\ns_add_u32 s88, s88, s72")
        for q in range(7):
            a(f"s_cmp_eq_u32 s{sN}, {q}\ns_cselect_b32 s{74+2*q}, s88, s{74+2*q}")
    else:
        a("s_barrier")
    a(f"""
    s_add_u32 s{sN}, s{sN}, 1
    s_cmp_lt_u32 s{sN}, 7
    s_cbranch_scc1 L_ll
    s_mov_b32 s{sSPIN}, {SPIN_LIMIT}
    s_cmp_ge_u32 s{sU}, 27
    s_cbranch_scc1 L_end
    """)
    wo_load(0, 38)
    wo_load(42, 72)
    wo_load(72, 80)
    a(f"""
    v_and_b32 v12, 7, v{vL}
    v_lshlrev_b32 v12, 2, v12
    v_add_u32 v12, {SYNC}, v12
    L_pg:
    s_sleep 2
    ds_read_b32 v13, v12
    s_waitcnt lgkmcnt(0)
    v_cmp_gt_u32 vcc, 7, v13
    s_cbranch_vccnz L_pg
    """)
    wo_load(121, 144)
    a(f"""
    s_lshl_b32 s{sT}, s{sLI}, 2
    s_add_u32 s{sT}, s{sT}, {SYNC + 32}
    v_mov_b32 v12, s{sT}
    v_mov_b32 v13, 8
    s_waitcnt vmcnt(0)
    ds_write_b32 v12, v13
    s_setprio 0
    s_branch L_tail
    """)
    a.sec("tail")

    vOH = 5
    vWm = [3, 4]; vWh = [8, 9]
    vT = [10, 11, 12, 13, 14, 6]
    vPw, vPr, vOut, vPr2, vDw, vDr = 163, 164, 165, 166, 167, 7
    WS_ = [16, 32]
    OF = 56
    ACC = [128, 144]
    DEPTH = int(os.environ.get("DEPTH", "2"))
    TPRIO = int(os.environ.get("TPRIO", "0"))

    def omain(i, j):
        return OF + 8 * i + 4 * j
    OHI = OF + 64

    def issue(i):
        a(f"""
        s_add_u32 s{sT}, s{sFl}, {i*OPAIR}
        buffer_load_dwordx4 {vr(omain(i,0),4)}, v{vL16}, s[{SWS}:{SWS+3}], s{sT} offen sc1
        buffer_load_dwordx4 {vr(omain(i,1),4)}, v{vL16}, s[{SWS}:{SWS+3}], s{sT} offen offset:1024 sc1
        buffer_load_dword v{OHI+i}, v{vOH}, s[{SWS}:{SWS+3}], s{sT} offen offset:2048 sc1
        """)

    a(f"""
    L_tail:
    s_cmp_ge_u32 s{sU}, 27
    s_cbranch_scc1 L_end
    s_cmp_ge_u32 s{sT0}, 8
    s_cbranch_scc1 L_end
    v_lshlrev_b32 v{vOH}, 2, v{vL}
    s_mov_b32 s{sI}, 0
    v_min_u32 v{vT[2]}, 11, v{vL}
    """)
    if LEARLY:
        a(f"""
        s_cmp_lt_u32 s{sWV}, 4
        s_cselect_b32 s{sT}, 8, 0
        v_max_u32 v{vT[2]}, s{sT}, v{vT[2]}
        """)
    a(f"""
    v_lshlrev_b32 v{vT[2]}, 2, v{vT[2]}
    v_add_u32 v{vT[2]}, {SYNC}, v{vT[2]}
    L_ws1:
    ds_read_b32 v{vT[3]}, v{vT[2]}
    s_waitcnt lgkmcnt(0)
    v_cmp_gt_u32 vcc, 8, v{vT[3]}
    s_cbranch_vccz L_go
    s_sleep 1
    s_branch L_ws1
    L_go:
    """)
    stamp(a, 3, mode=3)
    if TPRIO:
        a("s_setprio 3")
    for i in range(DEPTH):
        issue(i)
    a(f"""
    v_and_b32 v{vT[0]}, 31, v{vL}                ; tau
    v_lshrrev_b32 v{vT[1]}, 5, v{vL}             ; h
    v_bfe_u32 v{vT[2]}, v{vL}, 2, 2              ; r
    v_and_b32 v{vT[3]}, 3, v{vL}                 ; c
    v_bfe_u32 v{vT[4]}, v{vL}, 4, 1              ; sub
    v_lshlrev_b32 v{vT[3]}, 3, v{vT[3]}
    v_lshl_add_u32 v{vT[3]}, v{vT[4]}, 5, v{vT[3]}
    s_mul_i32 s{sT}, s{sKQ}, {288*128}
    v_add_u32 v{vT[3]}, s{sT}, v{vT[3]}
    v_lshrrev_b32 v{vT[4]}, 1, v{vT[2]}          ; r>>1
    v_lshl_add_u32 v{vT[5]}, v{vT[1]}, 2, v{vT[2]}
    v_lshl_add_u32 v{vT[5]}, v{vT[5]}, 7, v{vT[3]}
    v_lshl_add_u32 v{vWm[0]}, v{vT[4]}, 6, v{vT[5]}
    v_xor_b32 v{vWm[1]}, 64, v{vWm[0]}
    v_lshl_add_u32 v{vT[5]}, v{vT[4]}, 1, v{vT[1]}
    v_mul_u32_u24 v{vT[5]}, 18, v{vT[5]}
    v_and_b32 v{vT[2]}, 1, v{vT[2]}
    v_add3_u32 v{vT[5]}, v{vT[5]}, v{vT[2]}, 16
    v_lshl_add_u32 v{vT[5]}, v{vT[5]}, 7, v{vT[3]}
    v_lshl_add_u32 v{vWh[0]}, v{vT[1]}, 6, v{vT[5]}
    v_xor_b32 v{vWh[1]}, 64, v{vWh[0]}
    s_lshl_b32 s{sT}, s{sTT}, 13
    s_mul_i32 s{sT2}, s{sKQ}, {288*128}
    s_add_u32 s{sA}, s{sT}, s{sT2}
    v_add_u32 v{vPw}, s{sA}, v{vL16}
    s_lshl_b32 s{sT2}, s{sKQ}, 11
    s_add_u32 s{sA}, s{sT}, s{sT2}
    v_add_u32 v{vPr}, s{sA}, v{vL16}
    v_add_u32 v{vPr2}, {2*288*128}, v{vPr}
    s_lshl_b32 s{sT}, s{sWV}, 2
    s_add_u32 s{sT}, s{sT}, {SYNC + 64}
    v_mov_b32 v{vDw}, s{sT}
    s_sub_u32 s{sT}, s{sT0}, s{sTT}
    s_cmp_eq_u32 s{sT}, 6
    s_cselect_b32 s{sT}, 1, 2
    v_min_u32 v{vDr}, s{sT}, v{vL}
    s_mul_i32 s{sT}, s{sKQ}, 12
    s_add_u32 s{sT}, s{sT}, {SYNC + 64}
    v_lshlrev_b32 v{vDr}, 2, v{vDr}
    v_add_u32 v{vDr}, s{sT}, v{vDr}
    s_lshl_b32 s{sT}, s{sTG2}, 8
    s_lshl_b32 s{sT2}, s{sT0}, 5
    s_add_u32 s{sT}, s{sT}, s{sT2}
    s_mul_i32 s{sOm}, s{sT}, 1152
    s_lshl_b32 s{sT}, s{sCG}, 7
    s_add_u32 s{sOm}, s{sOm}, s{sT}
    s_lshl_b32 s{sT}, s{sKQ}, 5
    s_add_u32 s{sOm}, s{sOm}, s{sT}
    v_mul_u32_u24 v{vOut}, 1152, v{vT[0]}
    v_lshl_add_u32 v{vOut}, v{vT[1]}, 4, v{vOut}
    """)
    for r in range(ACC[0], ACC[0] + 32):
        a(f"v_mov_b32 v{r}, 0")
    stamp(a, 7)
    stamp(a, 4, mode=3)

    def wreads(blk, st):
        for f in range(2):
            b = WS_[st] + 8 * f
            m = 2 * blk + f
            for ct in range(2):
                if m < 16:
                    ad = vWm[ct ^ (m & 1)]
                    o0 = m * 18 * 128; o1 = o0 + 8 * 128
                else:
                    ad = vWh[ct]
                    o0 = (m - 16) * 8 * 18 * 128; o1 = o0 + 4 * 18 * 128
                a(f"ds_read_b64_tr_b16 {vr(b+4*ct,2)}, v{ad} offset:{o0}")
                a(f"ds_read_b64_tr_b16 {vr(b+4*ct+2,2)}, v{ad} offset:{o1}")

    def verify(i, skip):
        o0, o1 = omain(i, 0), omain(i, 1)
        a(f"""
        v_max3_u32 v{vT[2]}, v{o0}, v{o0+1}, v{o0+2}
        v_max3_u32 v{vT[3]}, v{o0+3}, v{o1}, v{o1+1}
        v_max3_u32 v{vT[2]}, v{vT[2]}, v{o1+2}, v{o1+3}
        v_max3_u32 v{vT[2]}, v{vT[2]}, v{vT[3]}, v{OHI+i}
        v_cmp_eq_u32 vcc, -1, v{vT[2]}
        s_cbranch_vccnz {skip}
        s_bitset1_b32 s{sI}, {i}
        """)

    def mm(st, o0, o1):
        for f, o in ((0, o0), (1, o1)):
            for ct in range(2):
                a(f"v_mfma_f32_32x32x16_bf16 {vr(ACC[ct],16)}, {vr(WS_[st]+8*f+4*ct,4)}, {vr(o,4)}, {vr(ACC[ct],16)}")

    wreads(0, 0)
    for i in range(8):
        a(f"s_waitcnt vmcnt({3*min(DEPTH-1, 7-i)}) lgkmcnt(0)")
        wreads(i + 1, (i + 1) & 1)
        verify(i, f"L_s{i}")
        mm(i & 1, omain(i, 0), omain(i, 1))
        a(f"L_s{i}:")
        if TPRIO and i in (0, 2, 4):
            a(f"s_setprio {2 - i // 2}")
        if i + DEPTH < 8:
            issue(i + DEPTH)
    a(f"""
    L_chk:
    s_cmp_eq_u32 s{sI}, 0xff
    s_cbranch_scc0 L_round
    L_hi:
    v_mov_b32 v{vT[2]}, 1
    s_waitcnt lgkmcnt(0)
    ds_write_b32 v{vDw}, v{vT[2]}
    """)
    mm(0, OHI, OHI + 4)
    stamp(a, 8)
    stamp(a, 7, mode=3)
    a(f"""
    L_qs:
    ds_read_b32 v{vT[3]}, v{vDr}
    s_waitcnt lgkmcnt(0)
    v_cmp_eq_u32 vcc, 0, v{vT[3]}
    s_cbranch_vccnz L_qs
    s_nop 6
    """)
    for i in range(8):
        a(f"ds_write_b128 v{vPw}, {vr(ACC[0]+4*i,4)} offset:{1024*i}")
    a("s_waitcnt lgkmcnt(0)")
    a("s_barrier                                    ; BT4")
    stamp(a, 8, True, mode=3)
    for src in range(4):
        for g in range(2):
            a(f"ds_read_b128 {vr(OF+8*src+4*g,4)}, v{vPr if src < 2 else vPr2} offset:{(src&1)*288*128 + g*1024}")
    a("s_waitcnt lgkmcnt(4)")
    for q in range(8):
        a(f"v_add_f32 v{OF+q}, v{OF+q}, v{OF+8+q}")
    a("s_waitcnt lgkmcnt(0)")
    for q in range(8):
        a(f"v_add_f32 v{OF+16+q}, v{OF+16+q}, v{OF+24+q}")
    for q in range(8):
        a(f"v_add_f32 v{OF+q}, v{OF+q}, v{OF+16+q}")
    for i in range(4):
        a(f"v_cvt_pk_bf16_f32 v{WS_[0]+i}, v{OF+2*i}, v{OF+2*i+1}")
    a(f"""
    s_nop 1
    v_permlane32_swap_b32 v{WS_[0]}, v{WS_[0]+2}
    v_permlane32_swap_b32 v{WS_[0]+1}, v{WS_[0]+3}
    buffer_store_dwordx4 {vr(WS_[0],4)}, v{vOut}, s[{SO}:{SO+3}], s{sOm} offen {os.environ.get('OUTF', '')}
    """)
    stamp(a, 9, mode=3)
    a("s_branch L_end")
    a(f"""
    L_round:
    s_sub_u32 s{sSPIN}, s{sSPIN}, 1
    s_cbranch_scc1 L_hi
    s_not_b32 s{sBt}, s{sI}
    """)
    stamp(a, 5, mode=3)
    for i in range(8):
        a(f"s_bitcmp1_b32 s{sBt}, {i}\ns_cbranch_scc0 L_ni{i}")
        issue(i)
        a(f"L_ni{i}:")
    for i in range(8):
        a(f"s_bitcmp1_b32 s{sBt}, {i}\ns_cbranch_scc0 L_nc{i}")
        wreads(i, 1)
        a("s_waitcnt vmcnt(0)")
        verify(i, f"L_nc{i}")
        a("s_waitcnt lgkmcnt(0)")
        mm(1, omain(i, 0), omain(i, 1))
        a(f"L_nc{i}:")
    a("s_branch L_chk")
    a.sec("end")
    a("L_end:")
    if DIAG >= 0:
        a(f"""
        s_cmp_eq_u32 s{sWV}, 9
        s_cbranch_scc0 L_done
        s_cmp_lt_u32 s2, {os.environ.get("DIAGWG", "256")}
        s_cbranch_scc0 L_done
        s_waitcnt vmcnt(0) lgkmcnt(0)
        s_memrealtime s[82:83]
        s_waitcnt lgkmcnt(0)
        s_mov_b32 s{sT}, 0
        """)
        if DIAG > 0:
            a(f"""
            s_sub_u32 s{sT}, s{72+2*DIAG}, s96
            s_lshl_b32 s{sT}, s{sT}, 2
            s_cmp_lt_u32 s{sWV}, 4
            s_cselect_b32 s{sT}, 0, s{sT}
            """)
        a(f"""
        s_add_u32 s{sT}, s{sT}, 10000
        L_dg:
        s_sleep 8
        s_memrealtime s[98:99]
        s_waitcnt lgkmcnt(0)
        s_sub_u32 s{sT2}, s98, s96
        s_cmp_lt_u32 s{sT2}, s{sT}
        s_cbranch_scc1 L_dg
        """)
    elif STAMPS:
        a(f"""
        s_waitcnt vmcnt(0) lgkmcnt(0)
        s_memtime s[92:93]
        s_memrealtime s[98:99]
        s_waitcnt lgkmcnt(0)
        s_mov_b64 exec, 1
        s_lshl_b32 s{sT}, s2, 4
        s_add_u32 s{sT}, s{sT}, s{sWV}
        s_lshl_b32 s{sT}, s{sT}, 6
        s_add_u32 s{sT}, s{sT}, {STAMP_OFF}
        v_mov_b32 v0, 0
        """)
        for n in range(14):
            a(f"v_mov_b32 v1, s{72+2*n}")
            a(f"buffer_store_dword v1, v0, s[{SWS}:{SWS+3}], s{sT} offen offset:{4*n}")
            a("s_nop 0")
    a("""
    L_done:
    s_endpgm
    """)
    return name, NV


def main():
    out = sys.argv[1] if len(sys.argv) > 1 else f"cdna_kernels/{NAME}.s"
    a = Asm()
    k, nv = gen(a)
    hdr = open(f"cdna_kernels/{NAME}.s.ref").read().split("\n")
    hdr = [l for l in hdr if l.startswith(";") and "@launch" not in l]
    txt = "\n".join(hdr) + "\n"
    txt += f"; @launch grid=(256,1,1) block=(768,1,1) lds={LDS_BYTES}\n"
    txt += '.amdgcn_target "amdgcn-amd-amdhsa--gfx950"\n.text\n'
    txt += a.text()
    txt += f""".section .rodata,"a"
.p2align 6
.amdhsa_kernel {k}
  .amdhsa_next_free_vgpr {nv}
  .amdhsa_next_free_sgpr {102 if STAMPS else 72}
  .amdhsa_accum_offset {(nv + 3) // 4 * 4}
  .amdhsa_group_segment_fixed_size 0
  .amdhsa_kernarg_size 80
  .amdhsa_user_sgpr_count 2
  .amdhsa_user_sgpr_kernarg_segment_ptr 1
  .amdhsa_system_sgpr_workgroup_id_x 1
.end_amdhsa_kernel
"""
    open(out, "w").write(txt)


if __name__ == "__main__":
    main()
```

```python
import math, os, struct, sys

NAME = "gated_mix__mha_block__mha_block__prompt"

VH = 320
VG = 2 * VH
TILE = 2048 + 4 * VG
TPAIR = 512 + 2 * TILE
CHUNK = 4 * TPAIR


def toff(t):
    return (t >> 1) * TPAIR + (t & 1) * TILE
KV_OFF = 0
FLAG_OFF = 0x0A00000
OFLAG_OFF = 0x0A20000
O_OFF = 0x0B00000
OPAIR = 2304
OTILE = 32 * OPAIR
WS_USED = 0x1000000
XBYTES = 2048 * 576 * 2
WQKV_BYTES = 576 * 1728 * 2
WO_BYTES = 576 * 576 * 2
CSCALE = (18 ** -0.5) * math.log2(math.e)

STAMPS = int(os.environ.get("STAMPS", "0"))
STAMP_OFF = 0x1000000
if STAMPS:
    WS_USED = 0x1100000
ALIGN = int(os.environ.get("ALIGN", "1"))
STEAL = int(os.environ.get("STEAL", "1"))
TLBW = int(os.environ.get("TLBW", "2"))
DIAG = int(os.environ.get("DIAG", "-1"))
PRIOI = int(os.environ.get("PRIOI", "6"))
VMASK = int(os.environ.get("VMASK", "1"))
VPOS = int(os.environ.get("VPOS", "3"))
CLAIM = int(os.environ.get("CLAIM", "4"))
LEARLY = int(os.environ.get("LEARLY", "0"))
GMIX = int(os.environ.get("GMIX", "1"))
CPF = int(os.environ.get("CPF", "1"))
DPF = int(os.environ.get("DPF", "4"))

G_SLOT = 49152
LDS_BYTES = 163840
SCR = CHUNK
SYNC = LDS_BYTES - 1024
RING = [0, SYNC - CHUNK, CHUNK + 4096]
SPIN_LIMIT = 1 << 19


WMASK = ~((1 << 15) | (1 << 27) | (1 << 39) | (1 << 51)) & ((1 << 64) - 1)


def f32bits(x):
    return struct.unpack("<I", struct.pack("<f", x))[0]


class Asm:
    def __init__(self):
        self.secs = {"entry": []}
        self.lines = self.secs["entry"]
        self.nlab = 0

    def sec(self, name):
        self.lines = self.secs.setdefault(name, [])

    def __call__(self, s):
        for ln in s.strip("\n").split("\n"):
            ln = ln.strip()
            if not ln:
                continue
            if ln.endswith(":") or ln.startswith("."):
                self.lines.append(ln)
            else:
                self.lines.append("    " + ln)

    def label(self, base="L"):
        self.nlab += 1
        return f"{base}_{self.nlab}"

    def text(self):
        order = ["entry", "loader", "compute", "tail", "exact", "end"]
        assert sorted(order) == sorted(self.secs)
        return "\n".join("\n".join(self.secs[k]) for k in order) + "\n"


def isize(ln):
    t = ln.split(";")[0].strip()
    if not t or t.endswith(":"):
        return 0
    op = t.split()[0]
    if op.startswith(("v_mfma", "v_smfmac", "ds_", "buffer_")) or op.endswith("_e64"):
        return 8
    assert op in ("v_exp_f32", "v_add_u32", "v_mov_b32") or op.startswith("s_"), t
    assert "0x" not in t, t
    return 4


def align8(lines):
    out, off = [], 0
    for ln in lines:
        n = isize(ln)
        if n == 8 and off % 8:
            o = off
            for k in range(len(out) - 1, -1, -1):
                m = isize(out[k])
                if m == 8:
                    k = -1
                    break
                o -= m
                if m == 4 and o % 8 == 0 and out[k].split()[0] == "v_exp_f32":
                    out[k] = out[k].replace("v_exp_f32", "v_exp_f32_e64")
                    break
            else:
                k = -1
            if k != -1:
                off += 4
        out.append(ln)
        off += n
    return out


def vr(b, n):
    return f"v[{b}:{b+n-1}]"


def stamp(a, n, wait=False, mode=1):
    if STAMPS == mode:
        a(f"{'s_memtime' if mode in (1, 9) else 's_memrealtime'} s[{72+2*n}:{73+2*n}]")
        if wait:
            a("s_waitcnt lgkmcnt(0)")


def gen(a):
    name = NAME + "_kernel"
    a(f"""
.globl {name}
.p2align 8
.type {name},@function
{name}:
""")
    SX, SW, SWS, SG, SD = 4, 8, 12, 16, 52
    SWA, SWB, SO = 4, 8, 16
    sW_, sP, sTG, sWV, sJ, sTP = 20, 21, 22, 23, 24, 25
    sXb, sWb, sM0x, sM0w, sA, sB, sT, sT2 = 26, 27, 28, 29, 30, 31, 32, 33
    sMASK = 34
    sKVp, sC, sN, sRS = 36, 37, 38, 39
    sDl, sU, sOm, sOh = 56, 57, 58, 59
    sNON, sRDY, sFB, sSPIN = 60, 61, 62, 63
    sCG, sT0, sTT, sKQ, sTG2 = 64, 65, 66, 67, 68
    sC2 = 70
    sD3 = 48
    sLI = sWV
    vL, vL16 = 1, 2
    NV = 168
    a(f"""
    s_cmp_ge_u32 s2, 256
    s_cbranch_scc1 L_done
    """)
    if STAMPS:
        a("s_memtime s[72:73]\ns_memrealtime s[96:97]")
    a(f"""
    s_load_dwordx2 s[{SX}:{SX+1}], s[0:1], 0            ; x
    s_bitcmp1_b32 s2, 2
    s_cselect_b32 s{sT}, 32, 8
    s_load_dwordx2 s[{SW}:{SW+1}], s[0:1], s{sT}
    s_load_dwordx2 s[{SG}:{SG+1}], s[0:1], 48           ; gate_w
    s_load_dwordx2 s[{SD}:{SD+1}], s[0:1], 64           ; debug
    s_load_dwordx2 s[{SWS}:{SWS+1}], s[0:1], 72         ; ws
    """)
    if CPF:
        a(f"""
        s_getpc_b64 s[{sA}:{sA+1}]
        v_subrev_u32 v10, 256, v0
        v_lshlrev_b32 v10, 7, v10
        v_cmp_gt_u32 vcc, L_done - {name} - 64, v10
        s_and_saveexec_b64 s[{sT}:{sT+1}], vcc
        s_cbranch_execz L_cpf
        global_load_dword v7, v10, s[{sA}:{sA+1}]
        L_cpf:
        s_mov_b64 exec, -1
        """)
    a(f"""
    v_lshrrev_b32 v10, 6, v0
    v_and_b32 v{vL}, 63, v0
    s_bfe_u32 s{sTG}, s2, 0x30003
    v_readfirstlane_b32 s{sWV}, v10
    s_and_b32 s{sP}, s2, 7
    s_lshl_b32 s{sP}, s{sP}, 2
    s_lshr_b32 s{sT2}, s2, 6
    s_add_u32 s{sP}, s{sP}, s{sT2}
    s_mov_b32 s{SX+2}, {XBYTES}
    s_mov_b32 s{SX+3}, 0x00020000
    s_mov_b32 s{SW+3}, s{SX+3}
    s_mov_b32 s{SG+3}, s{SX+3}
    s_mov_b32 s{SD+3}, s{SX+3}
    s_mov_b32 s{SWS+3}, s{SX+3}
    s_cmp_lt_u32 s{sWV}, 4
    s_cbranch_scc0 L_compute
    v_lshrrev_b32 v12, 3, v{vL}
    v_mul_u32_u24 v12, 1152, v12
    v_lshrrev_b32 v13, 4, v{vL}
    v_and_b32 v14, 7, v{vL}
    v_xor_b32 v14, v14, v13
    v_lshl_add_u32 v3, v14, 4, v12
    v_xor_b32 v14, 4, v14
    v_lshl_add_u32 v4, v14, 4, v12
    v_add_u32 v4, {8*1152 - 1024}, v4
    s_lshl_b32 s{sT}, s{sTG}, 2
    s_add_u32 s{sT}, s{sT}, s{sLI}
    s_mul_i32 s{sXb}, s{sT}, {64*1152}
    s_lshl_b32 s{sM0x}, s{sLI}, 13
    v_lshlrev_b32 v14, 2, v13
    v_xor_b32 v14, v14, v{vL}
    v_and_b32 v14, 15, v14
    s_mov_b32 s{sA}, 0x75752020
    s_mov_b32 s{sA+1}, 0x7446420
    s_mov_b32 s{sT}, 0x21aa0505
    v_mul_u32_u24 v18, 3, v13
    v_lshlrev_b32 v15, 2, v14
    v_lshrrev_b64 v[16:17], v15, s[{sA}:{sA+1}]
    v_lshlrev_b32 v19, 1, v14
    v_lshrrev_b32 v19, v19, s{sT}
    v_and_b32 v16, 15, v16
    v_and_b32 v19, 3, v19
    v_add_u32 v19, v19, v18
    v_mul_u32_u24 v19, 1152, v19
    v_lshl_add_u32 v5, v16, 3, v19
    v_xor_b32 v15, 8, v15
    v_lshrrev_b64 v[16:17], v15, s[{sA}:{sA+1}]
    v_lshrrev_b32 v19, 1, v15
    v_lshrrev_b32 v19, v19, s{sT}
    v_and_b32 v16, 15, v16
    v_and_b32 v19, 3, v19
    v_add_u32 v19, v19, v18
    v_mul_u32_u24 v19, 1152, v19
    v_lshl_add_u32 v21, v16, 3, v19
    s_and_b32 s{sT}, s{sP}, 15
    s_mul_i32 s{sT}, s{sT}, 72
    s_mul_i32 s{sWb}, s{sLI}, {16*3456}
    s_add_u32 s{sWb}, s{sWb}, s{sT}
    s_lshl_b32 s{sM0w}, s{sLI}, 12
    s_mov_b32 s{sMASK}, {WMASK & 0xffffffff:#x}
    s_mov_b32 s{sMASK+1}, {WMASK >> 32:#x}
    s_lshr_b64 s[{sC2}:{sC2+1}], s[{sMASK}:{sMASK+1}], 2
    s_or_b32 s{sC2+1}, s{sC2+1}, 0xc0000000
    s_mov_b32 s{SW+2}, {WQKV_BYTES}
    s_waitcnt lgkmcnt(0)
    """)

    def common():
        a(f"""
        s_mov_b32 s{SW+2}, {WQKV_BYTES}
        s_movk_i32 s{SG+2}, 1152
        s_movk_i32 s{SD+2}, 256
        s_mov_b32 s{SWS+2}, {WS_USED}
        v_lshlrev_b32 v{vL16}, 4, v{vL}
        s_mul_i32 s{sKVp}, s{sP}, {8*CHUNK}
        s_mul_i32 s{sKQ}, s{sWV}, 43
        s_lshr_b32 s{sKQ}, s{sKQ}, 7
        s_mul_i32 s{sT}, s{sKQ}, 3
        s_sub_u32 s{sTT}, s{sWV}, s{sT}
        s_mov_b32 s{sSPIN}, {SPIN_LIMIT}
        """)

    sFl, sI, sPd, sBt, sCur, sMode, sWS = 69, 40, 41, 42, 43, 39, 3

    def unit_decode(v):
        a(f"""
        v_readfirstlane_b32 s{sU}, v{v}
        s_nop 3
        s_lshr_b32 s{sTG2}, s{sU}, 8
        s_and_b32 s{sTG2}, s{sTG2}, 7
        s_and_b32 s{sU}, s{sU}, 0xff
        s_lshr_b32 s{sCG}, s{sU}, 1
        s_and_b32 s{sT0}, s{sU}, 1
        s_mul_i32 s{sT0}, s{sT0}, 3
        s_sub_u32 s{sT}, s{sU}, 18
        s_cmp_ge_u32 s{sU}, 18
        s_cselect_b32 s{sCG}, s{sT}, s{sCG}
        s_cselect_b32 s{sT0}, 6, s{sT0}
        s_add_u32 s{sT0}, s{sT0}, s{sTT}
        s_lshl_b32 s{sT}, s{sTG2}, 3
        s_add_u32 s{sT}, s{sT}, s{sT0}
        s_mul_i32 s{sFl}, s{sT}, {OTILE}
        s_mul_i32 s{sT}, s{sKQ}, {8*OPAIR}
        s_add_u32 s{sFl}, s{sFl}, s{sT}
        s_add_u32 s{sFl}, s{sFl}, {O_OFF}
        """)

    vK, vKH, vV, vIDX = 3, 4, 5, 6
    vG = [8, 9]
    vT = [10, 11, 12, 13, 14, 15]
    Qa, Qb = 16, 20
    QH = 24
    Kb = 32
    KHb = [40, 42]
    V0b = [44, 48]
    V1b = [52, 56]
    Oa, Ob = 64, 80
    S = [96, 128]
    vXr = [16, 17]; vWr = [18, 19, 20, 21]
    vXr2 = [22, 23]; vWr2 = [24, 25, 26, 27]
    vU = list(range(32, 48))
    F = [64, 32]
    AC = [96, 112, 128, 144]
    eK, eR, e0, e1, e2, e3, e4 = 160, 161, 162, 163, 164, 165, 166

    a.sec("compute")
    a("L_compute:")
    common()
    a(f"""
    s_sub_u32 s{sW_}, s{sWV}, 4
    s_lshr_b32 s{sJ}, s{sW_}, 2
    s_and_b32 s{sTP}, s{sW_}, 3
    s_load_dwordx2 s[44:45], s[0:1], 56          ; out
    s_mov_b32 s{SO+2}, {XBYTES}
    s_waitcnt lgkmcnt(0)
    s_mov_b64 s[{SO}:{SO+1}], s[44:45]
    """)
    a(f"""
    v_and_b32 v{vU[0]}, 31, v{vL}                ; tau
    v_lshrrev_b32 v{vU[1]}, 5, v{vL}             ; h
    v_and_b32 v{vU[9]}, 15, v{vL}                ; l&15
    v_lshrrev_b32 v{vU[10]}, 4, v{vL}            ; g
    s_lshl_b32 s{sT}, s{sTP}, 13
    v_lshlrev_b32 v{vU[2]}, 7, v{vU[9]}
    v_add_u32 v{vU[2]}, s{sT}, v{vU[2]}
    v_lshrrev_b32 v{vU[3]}, 1, v{vU[9]}
    v_xor_b32 v{vU[3]}, v{vU[3]}, v{vU[10]}
    v_lshl_add_u32 v{vXr[0]}, v{vU[3]}, 4, v{vU[2]}
    v_xor_b32 v{vXr[1]}, 64, v{vXr[0]}
    v_bfe_u32 v{vU[2]}, v{vL}, 2, 2              ; r
    v_lshl_add_u32 v{vU[3]}, v{vU[10]}, 3, v{vU[2]}
    v_lshlrev_b32 v{vU[3]}, 8, v{vU[3]}
    v_add_u32 v{vU[3]}, 32768, v{vU[3]}
    v_and_b32 v{vU[4]}, 3, v{vL}                 ; c
    v_lshlrev_b32 v{vU[4]}, 3, v{vU[4]}
    v_and_b32 v{vU[5]}, 16, v{vL}
    v_lshlrev_b32 v{vU[5]}, 1, v{vU[5]}          ; (g&1)*32
    v_add3_u32 v{vU[7]}, v{vU[3]}, v{vU[4]}, v{vU[5]}
    v_xor_b32 v{vWr[0]}, s{sJ}, v{vU[2]}
    v_lshl_add_u32 v{vWr[0]}, v{vWr[0]}, 6, v{vU[7]}
    v_xor_b32 v{vWr[1]}, 32, v{vWr[0]}
    s_mov_b32 s{sT}, 0x38102800
    s_cmp_eq_u32 s{sJ}, 1
    s_cselect_b32 s{sT}, s{sT}, 0x18100800
    v_lshrrev_b32 v{vU[6]}, v{vU[4]}, s{sT}
    v_and_b32 v{vU[6]}, 0xff, v{vU[6]}
    v_xor_b32 v{vU[6]}, v{vU[6]}, v{vU[5]}
    v_add_u32 v{vU[7]}, v{vU[3]}, v{vU[6]}
    s_add_u32 s{sT}, s{sJ}, 2
    v_xor_b32 v{vWr[2]}, s{sT}, v{vU[2]}
    v_lshl_add_u32 v{vWr[2]}, v{vWr[2]}, 6, v{vU[7]}
    v_xor_b32 v{vWr[3]}, 32, v{vWr[2]}
    """)
    for r0, r1 in zip(vXr + vWr, vXr2 + vWr2):
        a(f"v_add_u32 v{r1}, {2*G_SLOT}, v{r0}")
    for r in range(AC[0], AC[0] + 64):
        a(f"v_mov_b32 v{r}, 0")
    a(f"""
    s_lshl_b32 s{sT}, s{sJ}, 10
    s_add_u32 s{sT}, s{sT}, 512
    v_add_u32 v{vK}, s{sT}, v{vL16}
    v_lshlrev_b32 v{vKH}, 2, v{vL}
    s_lshl_b32 s{sT2}, s{sJ}, 8
    v_add_u32 v{vKH}, s{sT2}, v{vKH}
    v_mov_b32 v{vU[2]}, 4
    v_cmp_gt_u32 vcc, 19, v{vU[0]}
    v_mov_b32 v{vU[3]}, 19
    s_nop 0
    v_cndmask_b32 v{vU[2]}, v{vU[2]}, v{vU[0]}, vcc
    v_cmp_eq_u32 vcc, 4, v{vU[0]}
    v_mul_u32_u24 v{vU[4]}, {VH}, v{vU[1]}
    s_mul_i32 s{sT2}, s{sJ}, {2*VG}
    s_add_u32 s{sT2}, s{sT2}, 2560
    v_cndmask_b32 v{vU[2]}, v{vU[2]}, v{vU[3]}, vcc
    v_lshl_add_u32 v{vV}, v{vU[2]}, 4, v{vU[4]}
    v_add_u32 v{vV}, s{sT2}, v{vV}
    v_mov_b32 v{vIDX}, 0xdddddddd
    s_lshl_b32 s{sT}, s{sTG}, 3
    s_lshl_b32 s{sT2}, s{sTP}, 1
    s_add_u32 s{sT}, s{sT}, s{sT2}
    s_mul_i32 s{sA}, s{sT}, {OTILE}
    s_mul_i32 s{sT}, s{sP}, {OPAIR}
    s_add_u32 s{sA}, s{sA}, s{sT}
    s_add_u32 s{sA}, s{sA}, {O_OFF}
    s_lshl_b32 s{sT}, s{sJ}, 10
    s_add_u32 s{sOm}, s{sA}, s{sT}
    s_lshl_b32 s{sT}, s{sJ}, 7
    s_add_u32 s{sOh}, s{sA}, s{sT}
    s_mov_b32 s{sD3}, {(RING[1]-RING[0]) & 0xffffffff:#x}
    s_mov_b32 s{sD3+1}, {(RING[2]-RING[1]) & 0xffffffff:#x}
    s_mov_b32 s{sD3+2}, {(RING[0]-RING[2]) & 0xffffffff:#x}
    s_mov_b32 s{sC2}, {f32bits(CSCALE):#x}
    s_mov_b32 s{sC2+1}, {f32bits(CSCALE):#x}
    v_and_b32 v{vU[2]}, 3, v{vU[0]}
    v_and_b32 v{vU[3]}, 12, v{vU[0]}
    v_lshl_or_b32 v{vU[2]}, v{vU[3]}, 1, v{vU[2]}
    v_and_b32 v{vU[3]}, 16, v{vU[0]}
    v_lshrrev_b32 v{vU[3]}, 2, v{vU[3]}
    v_or_b32 v{vU[2]}, v{vU[2]}, v{vU[3]}        ; kappa
    s_lshl_b32 s{sT}, s{sJ}, 10
    s_mul_i32 s{sB}, s{sTP}, {TPAIR}
    s_add_u32 s{sT}, s{sT}, s{sB}
    s_add_u32 s{sT}, s{sT}, 512
    v_lshlrev_b32 v{eK}, 9, v{vU[1]}
    v_lshl_add_u32 v{eK}, v{vU[2]}, 4, v{eK}
    v_add_u32 v{eK}, s{sT}, v{eK}
    s_lshl_b32 s{sT}, s{sTP}, 8
    s_add_u32 s{sT}, s{sT}, {SCR}
    v_lshlrev_b32 v{eR}, 2, v{vU[0]}
    v_add_u32 v{eR}, s{sT}, v{eR}
    s_cmp_eq_u32 s{sJ}, 1
    s_cbranch_scc1 L_a1
    v_mul_u32_u24 v{vU[4]}, {VH}, v{vU[10]}
    s_add_u32 s{sT}, s{sB}, 2560
    v_add_u32 v{vU[4]}, s{sT}, v{vU[4]}
    v_mov_b32 v{vU[6]}, 19
    v_cmp_eq_u32 vcc, 4, v{vU[9]}
    v_add_u32 v{vU[3]}, 16, v{vU[9]}
    v_add_u32 v{vU[5]}, {2*VG // 16 - 2}, v{vU[9]}
    v_cndmask_b32 v{vU[6]}, v{vU[9]}, v{vU[6]}, vcc
    v_cmp_le_u32 vcc, 2, v{vU[9]}
    v_lshl_add_u32 v{e0}, v{vU[6]}, 4, v{vU[4]}
    v_mov_b32 v{vU[6]}, {2*VG // 16 + 19}
    v_cndmask_b32 v{vU[3]}, v{vU[3]}, v{vU[5]}, vcc
    v_cmp_eq_u32 vcc, 6, v{vU[9]}
    s_nop 1
    v_cndmask_b32 v{vU[3]}, v{vU[3]}, v{vU[6]}, vcc
    v_lshl_add_u32 v{e1}, v{vU[3]}, 4, v{vU[4]}
    s_branch L_a2
    L_a1:
    v_lshlrev_b32 v{e0}, 2, v{vU[2]}
    v_add_u32 v{e0}, s{sB}, v{e0}
    v_cmp_eq_u32 vcc, 1, v{vU[1]}
    v_add_u32 v{vU[5]}, 256, v{e0}
    v_add_u32 v{vU[6]}, 1024, v{eR}
    v_cndmask_b32 v{e0}, v{e0}, v{eR}, vcc
    v_cndmask_b32 v{e1}, v{vU[5]}, v{vU[6]}, vcc
    v_mov_b32 v{vU[5]}, 1.0
    v_mov_b32 v{vU[6]}, s{sC2}
    v_cndmask_b32 v{e2}, v{vU[5]}, v{vU[6]}, vcc
    v_lshrrev_b32 v{vU[3]}, 3, v{vU[2]}
    v_mul_u32_u24 v{vU[3]}, {VH}, v{vU[3]}
    v_and_b32 v{vU[5]}, 7, v{vU[2]}
    v_lshl_add_u32 v{e3}, v{vU[5]}, 1, v{vU[3]}
    s_add_u32 s{sT}, s{sB}, {2560 + 2*VG}
    v_add_u32 v{e3}, s{sT}, v{e3}
    L_a2:
    s_lshl_b32 s{sT}, s{sJ}, 10
    v_lshl_add_u32 v{e4}, v{vU[1]}, 7, v{eR}
    v_add_u32 v{e4}, s{sT}, v{e4}
    s_mov_b32 s{sMASK}, 0x7ffff
    s_mov_b32 s{sMASK+1}, 0x7ffff
    s_lshl_b32 s{sT}, s{sW_}, 2
    s_add_u32 s{sT}, s{sT}, {SYNC}
    v_mov_b32 v167, s{sT}
    """)
    a("s_waitcnt lgkmcnt(0)")

    def reads(n, ks, j):
        s = n % 3
        xr = vXr2 if s == 2 else vXr
        wr = vWr2 if s == 2 else vWr
        so = G_SLOT if s == 1 else 0
        b = F[ks]
        out = []
        for q in range(4):
            out.append(f"ds_read_b128 {vr(b+4*q,4)}, v{xr[ks]} offset:{so + 2048*q}")
            if q < 4 - j:
                out.append(f"ds_read_b64_tr_b16 {vr(b+16+4*q,2)}, v{wr[q]} offset:{so + ks*8192}")
                out.append(f"ds_read_b64_tr_b16 {vr(b+18+4*q,2)}, v{wr[q]} offset:{so + ks*8192 + 1024}")
        return out

    def mfmas(f, j):
        b = F[f]
        m = []
        for c in range(4 - j):
            for t in range(4):
                X, W, D = vr(b + 4 * t, 4), vr(b + 16 + 4 * c, 4), vr(AC[c] + 4 * t, 4)
                p, q = (X, W) if (j == 0 and c >= 2) else (W, X)
                m.append(f"v_mfma_f32_16x16x32_bf16 {D}, {p}, {q}, {D}")
        return m

    def mix(ms, rs, lead=0):
        rs = list(rs)
        for r in rs[:lead]:
            a(r)
        rs = rs[lead:]
        for i, m in enumerate(ms):
            a(m)
            k = -(-len(rs) // (len(ms) - i)) if GMIX == 2 else (1 if GMIX else 0)
            for r in rs[:k]:
                a(r)
            rs = rs[k:]
        for r in rs:
            a(r)

    if TLBW == 2:
        a(f"""
        s_cmp_eq_u32 s{sW_}, 7
        s_cbranch_scc0 L_tlb
        s_buffer_load_dword s3, s[{SWS}:{SWS+3}], s{sKVp}
        s_buffer_load_dword s3, s[{SWS}:{SWS+3}], s{sKVp} offset:{hex(8*CHUNK - 4)}
        s_mov_b32 s{sT}, {FLAG_OFF + 0x30000}
        s_buffer_load_dword s3, s[{SWS}:{SWS+3}], s{sT}
        s_buffer_load_dword s3, s[{SD}:{SD+3}], 0xfc
        L_tlb:
        """)
    stamp(a, 7, True, mode=9)
    a("s_barrier")
    stamp(a, 1, True)
    stamp(a, 1, True, mode=4)
    for r in reads(0, 0, 0):
        a(r)
    a(f"""
    s_mov_b32 s{sN}, 0
    s_cmp_eq_u32 s{sJ}, 1
    s_cbranch_scc1 L_g1
    """)
    for j in range(2):
        a(f"L_g{j}:")
        for n in range(3):
            a("s_waitcnt lgkmcnt(0)")
            mix(mfmas(0, j), reads(n, 1, j), 0 if GMIX else 99)
            a("s_waitcnt lgkmcnt(0)")
            if n == 2:
                a(f"""
                s_add_u32 s{sN}, s{sN}, 1
                s_cmp_eq_u32 s{sN}, 3
                s_cbranch_scc1 L_ge{j}
                """)
            a("s_barrier")
            mix(mfmas(1, j), reads(n + 1, 0, j), 0 if GMIX else 99)
        a(f"s_branch L_g{j}")
        a(f"L_ge{j}:")
        ms = mfmas(1, j)
        zs = [f"v_mov_b32 v{r}, 0" for r in range(Oa, Oa + 32)]
        for i, m in enumerate(ms):
            a(m)
            k = -(-len(zs) // (len(ms) - i))
            for z in zs[:k]:
                a(z)
            zs = zs[k:]
        stamp(a, 2)
        stamp(a, 2, mode=4)
        a(f"""
        s_mov_b32 s{sN}, 0
        s_mov_b32 s{sFB}, 0
        """)
        KP = [AC[0], AC[0] + 8]
        for A in KP:
            for i in range(4):
                a(f"v_cvt_pk_bf16_f32 v{A+i}, v{A+2*i}, v{A+2*i+1}")
        a(f"v_mov_b32 v{KHb[0]+1}, 0x3f803f80")
        for t, A in enumerate(KP):
            a(f"v_permlane16_swap_b32 v{A}, v{A+2}")
            a(f"v_permlane16_swap_b32 v{A+1}, v{A+3}")
            a(f"ds_write_b128 v{eK}, {vr(A,4)} offset:{TILE*t}")
        B0, B1 = AC[2], AC[2] + 8
        if j == 0:
            for cc in range(2):
                for t in range(2):
                    B = AC[2 + cc] + 8 * t
                    for i in range(4):
                        a(f"v_cvt_pk_bf16_f32 v{B+i}, v{B+2*i}, v{B+2*i+1}")
                    a(f"ds_write_b128 v{(e0, e1)[cc]}, {vr(B,4)} offset:{t*TILE}")
            a("s_branch L_ep")
        else:
            for B in (B0, B1):
                for i in range(4):
                    a(f"v_permlane16_swap_b32 v{B+i}, v{B+4+i}")
            a(f"""
            s_mov_b32 exec_lo, 0
            ds_write_b32 v{eR}, v{B0+4} offset:2048
            ds_write_b32 v{eR}, v{B1+4} offset:{2048+128}
            s_mov_b32 exec_lo, -1
            """)
            for t, B in enumerate((B0, B1)):
                for i in range(4):
                    a(f"v_mul_f32 v{B+i}, v{e2}, v{B+i}")
                for i in range(4):
                    a(f"v_cvt_pk_bf16_f32 v{B+16+i}, v{B+2*i}, v{B+2*i+1}")
                a(f"ds_write_b32 v{e0}, v{B+16} offset:{128*t}")
                a(f"ds_write_b32 v{e1}, v{B+17} offset:{128*t}")
            a("s_mov_b32 exec_hi, 0")
            for t, B in enumerate((B0, B1)):
                o = t * TILE + 14 * 16
                a(f"ds_write_b16 v{e3}, v{B+18} offset:{o}")
                a(f"ds_write_b16_d16_hi v{e3}, v{B+18} offset:{o+16}")
                a(f"ds_write_b16 v{e3}, v{B+19} offset:{o+32}")
                a(f"ds_write_b16_d16_hi v{e3}, v{B+19} offset:{o+48}")
            a("s_mov_b32 exec_hi, -1")
    a("L_ep:")
    for A, Q in ((AC[1], Qa), (AC[1] + 8, Qb)):
        for i in range(4):
            a(f"v_pk_mul_f32 {vr(A+2*i,2)}, {vr(A+2*i,2)}, s[{sC2}:{sC2+1}]")
        for i in range(4):
            a(f"v_cvt_pk_bf16_f32 v{Q+i}, v{A+2*i}, v{A+2*i+1}")
    a(f"v_mov_b32 v{KHb[1]+1}, 0x3f803f80")
    for Q in (Qa, Qb):
        a(f"v_permlane16_swap_b32 v{Q}, v{Q+2}")
        a(f"v_permlane16_swap_b32 v{Q+1}, v{Q+3}")

    def qk(dst, kb, q, acc=True):
        return f"v_mfma_f32_32x32x16_bf16 {vr(dst,16)}, {vr(kb,4)}, {vr(q,4)}, {vr(dst,16) if acc else 0}"

    def qkh(dst, khb, par):
        return f"v_mfma_f32_32x32x4_2b_bf16 {vr(dst,32)}, {vr(khb,2)}, {vr(QH,2)}, 0 cbsz:1 abid:{par}"

    def pv(o, vb, p):
        return f"v_smfmac_f32_32x32x32_bf16 {vr(o,16)}, {vr(vb,4)}, {vr(p,8)}, v{vIDX}"

    def vread(t, buf):
        if not VMASK:
            return f"""
            ds_read_b128 {vr(V0b[buf],4)}, v{vV} offset:{toff(t)}
            ds_read_b128 {vr(V1b[buf],4)}, v{vV} offset:{toff(t) + VG}
            """
        return f"""
        s_mov_b64 exec, s[{sMASK}:{sMASK+1}]
        ds_read_b128 {vr(V0b[buf],4)}, v{vV} offset:{toff(t)}
        ds_read_b128 {vr(V1b[buf],4)}, v{vV} offset:{toff(t) + VG}
        s_mov_b64 exec, -1
        """

    a(f"v_cmp_gt_u32 vcc, 32, v{vL}")
    for r in range(V0b[0], V1b[1] + 4):
        a(f"v_mov_b32 v{r}, 0")
    a("s_waitcnt vmcnt(0) lgkmcnt(0)")
    X, Y = S
    a(qk(Y, AC[0], Qa, False)); a(qk(Y + 16, AC[0], Qb, False))
    a("s_barrier")
    stamp(a, 3, True)
    a(f"""
    ds_read_b32 v{vG[0]}, v{eR} offset:2048
    ds_read_b32 v{vG[1]}, v{eR} offset:{2048+128}
    ds_read_b32 v{KHb[0]}, v{vKH}
    ds_read_b32 v{QH}, v{e4}
    ds_read_b128 {vr(Kb,4)}, v{vK}
    """)
    a(vread(0, 0))
    a(f"""
    s_mov_b32 s{sT}, {f32bits(-math.log2(math.e)):#x}
    s_cmp_ge_u32 s{sP}, 16
    s_cselect_b32 s{sT}, {f32bits(math.log2(math.e)):#x}, s{sT}
    s_nop 0
    """)
    for t in range(2):
        b = Y + 16 * t
        a(f"v_max3_f32 v{vT[t]}, v{b}, v{b+1}, v{b+2}")
        for i in range(3, 9, 2):
            a(f"v_max3_f32 v{vT[t]}, v{vT[t]}, v{b+i}, v{b+i+1}")
    a(f"""
    v_cndmask_b32 v{vT[0]}, v{vT[1]}, v{vT[0]}, vcc
    v_lshrrev_b32 v{vT[0]}, 16, v{vT[0]}
    v_xor_b32 v{QH+1}, 0x8000, v{vT[0]}
    s_waitcnt lgkmcnt(3)
    v_mul_f32 v{vG[0]}, s{sT}, v{vG[0]}
    """)
    a(qkh(X, KHb[0], 0))
    a(f"""
    v_mul_f32 v{vG[1]}, s{sT}, v{vG[1]}
    v_exp_f32 v{vG[0]}, v{vG[0]}
    v_exp_f32 v{vG[1]}, v{vG[1]}
    """)
    for r in range(Y + 24, Y + 32):
        a(f"v_mov_b32 v{r}, 0")
    a(f"""
    v_add_f32 v{vG[0]}, 1.0, v{vG[0]}
    v_add_f32 v{vG[1]}, 1.0, v{vG[1]}
    v_rcp_f32 v{vG[0]}, v{vG[0]}
    v_rcp_f32 v{vG[1]}, v{vG[1]}
    s_waitcnt lgkmcnt(0)
    s_nop 1
    """)
    a(qk(X, Kb, Qa)); a(qk(X + 16, Kb, Qb))

    def E(b, n=4):
        for r in range(b, b + n):
            a(f"v_exp_f32 v{r}, v{r}")

    stamp(a, 4)
    stamp(a, 3, mode=4)
    a("s_setprio 1")
    a("s_nop 9")
    a(".p2align 6")
    a("L_loop:")
    loop0 = len(a.lines) - 1
    for i in range(8):
        X = S[i & 1]; Y = S[(i + 1) & 1]
        tn = (i + 1) & 7
        khb = KHb[(tn >> 1) & 1]
        if i == 7:
            a(f"""
            s_cbranch_scc1 L_nb7
            s_barrier
            L_nb7:
            s_setprio 1
            v_add_u32 v{vKH}, s{sDl}, v{vKH}
            v_add_u32 v{vK}, s{sDl}, v{vK}
            ds_read_b32 v{khb}, v{vKH}
            v_add_u32 v{vV}, s{sDl}, v{vV}
            """)
        E(X, 2)
        a(pv(Ob, V1b[(i + 1) & 1], Y + 24))
        if i == PRIOI:
            a("s_setprio 0")
        kread = f"ds_read_b128 {vr(Kb,4)}, v{vK} offset:{toff(tn)}"
        if i in (0, 2, 4):
            kread += f"\nds_read_b32 v{KHb[((i>>1)+1)&1]}, v{vKH} offset:{((i>>1)+1)*TPAIR}"
        vrd = vread(tn, (i + 1) & 1)
        a(vrd if VPOS == 1 else kread)
        E(X + 2, 4)
        if i == 7:
            a(f"s_waitcnt lgkmcnt({2 if VPOS == 1 else 1})")
        a(qkh(Y, khb, tn & 1))
        a(vrd if VPOS == 0 else kread if VPOS == 1 else "")
        E(X + 6, 8)
        a(pv(Oa, V0b[i & 1], X))
        if VPOS == 3:
            a("s_waitcnt lgkmcnt(0)")
        if VPOS >= 2:
            a(vrd)
        E(X + 14, 4)
        a(pv(Oa, V1b[i & 1], X + 8))
        if VPOS != 3:
            a(f"s_waitcnt lgkmcnt({2 if VPOS == 2 else 0})")
        if i == 1:
            a(f"s_mov_b32 s{sDl}, s{sD3}")
        if i == 3:
            a(f"s_mov_b32 s{sD3+1}, s{sD3+2}")
        if i == 7:
            a(f"s_add_u32 s{sN}, s{sN}, 1")
        E(X + 18, 4)
        a(qk(Y, Kb, Qa))
        if i == 1:
            a(f"s_mov_b32 s{sD3}, s{sD3+1}")
        if i == 2:
            a(f"v_mov_b32 v7, s{sN}")
        if i == 5:
            a(f"s_mov_b32 s{sD3+2}, s{sDl}")
        if i == 6:
            a(f"s_cmp_eq_u32 s{sN}, 7")
        if i == 7:
            a(f"s_cmp_lt_u32 s{sN}, 8")
        E(X + 22, 4)
        a(pv(Ob, V0b[i & 1], X + 16))
        if VPOS >= 2:
            a("s_waitcnt lgkmcnt(0)")
        E(X + 26, 3)
        a(qk(Y + 16, Kb, Qb))
        if i == 3:
            a("ds_write_b32 v167, v7")
        E(X + 29, 3)
    if ALIGN:
        a.lines[loop0:] = align8(a.lines[loop0:])
    a(f"""
    s_cbranch_scc1 L_loop
    s_nop 0
    """)
    stamp(a, 5)
    stamp(a, 1, mode=3)
    stamp(a, 4, mode=4)
    a(pv(Ob, V1b[1], S[1] + 24))
    a(f"""
    v_mov_b32 v{vT[5]}, {SYNC + 48}
    ds_read_b32 v160, v{vT[5]}
    s_nop 9
    L_fin:
    """)
    for t, O in enumerate((Oa, Ob)):
        a(f"v_mov_b32 v{vT[2*t]}, v{O+10}")
        a(f"v_mov_b32 v{vT[2*t+1]}, v{O+10}")
    a(f"v_max3_f32 v{vT[4]}, |v{Oa}|, |v{Oa+1}|, |v{Ob}|")
    a(f"v_max_f32 v{vT[4]}, v{vT[4]}, |v{Ob+1}|")
    a(f"v_permlane32_swap_b32 v{vT[0]}, v{vT[1]}")
    a(f"v_permlane32_swap_b32 v{vT[2]}, v{vT[3]}")
    for i in range(2, 10):
        a(f"v_max3_f32 v{vT[4]}, v{vT[4]}, |v{Oa+i}|, |v{Ob+i}|")
    a(f"""
    s_cmp_eq_u32 s{sFB}, 0
    s_cbranch_scc0 L_store
    s_mov_b32 s{sT}, {f32bits(2.0**80):#x}
    s_mov_b32 s{sT2}, {f32bits(2.0**-24):#x}
    s_mov_b32 s{sA}, 0x7f800000
    v_cmp_nge_f32 vcc, s{sT}, v{vT[0]}
    v_cmp_nge_f32 s[44:45], s{sT}, v{vT[2]}
    v_cmp_nle_f32 s[46:47], s{sT2}, v{vT[0]}
    s_or_b64 vcc, vcc, s[44:45]
    v_cmp_nle_f32 s[44:45], s{sT2}, v{vT[2]}
    s_or_b64 vcc, vcc, s[46:47]
    v_cmp_ngt_f32 s[46:47], s{sA}, v{vT[4]}
    s_or_b64 vcc, vcc, s[44:45]
    s_nop 0
    s_or_b64 vcc, vcc, s[46:47]
    s_cbranch_vccnz L_exact
    L_store:
    v_rcp_f32 v{vT[0]}, v{vT[0]}
    v_rcp_f32 v{vT[2]}, v{vT[2]}
    v_lshrrev_b32 v{vT[4]}, 5, v{vL}
    v_mul_u32_u24 v{vT[4]}, {OTILE - 128}, v{vT[4]}
    v_lshl_add_u32 v{vT[4]}, v{vL}, 2, v{vT[4]}
    s_add_u32 s{sB}, s{sOm}, {OTILE}
    v_mul_f32 v{vT[0]}, v{vT[0]}, v{vG[0]}
    v_mul_f32 v{vT[2]}, v{vT[2]}, v{vG[1]}
    v_mov_b32 v{vT[1]}, v{vT[0]}
    v_mov_b32 v{vT[3]}, v{vT[2]}
    """)
    for t, O in enumerate((Oa, Ob)):
        for i in range(5):
            a(f"v_pk_mul_f32 {vr(O+2*i,2)}, {vr(O+2*i,2)}, {vr(vT[2*t],2)}")
        pk = 16 + 4 * t
        for i in range(4):
            a(f"v_cvt_pk_bf16_f32 v{pk+i}, v{O+2*i}, v{O+2*i+1}")
        a(f"v_cvt_pk_bf16_f32 v{24+t}, v{O+8}, v{O+9}")
        for r in list(range(pk, pk + 4)) + [24 + t]:
            a(f"v_min_u32 v{r}, -2, v{r}")
        a(f"buffer_store_dwordx4 {vr(pk,4)}, v{vL16}, s[{SWS}:{SWS+3}], s{sOm if t == 0 else sB} offen sc1")
    a(f"""
    s_nop 0
    v_permlane32_swap_b32 v24, v25
    s_setprio 0
    buffer_store_dword v24, v{vT[4]}, s[{SWS}:{SWS+3}], s{sOh} offen offset:2048 sc1
    v_mov_b32 v7, 8
    ds_write_b32 v167, v7
    s_waitcnt lgkmcnt(1)
    """)
    unit_decode(160)
    stamp(a, 6)
    stamp(a, 2, mode=3)

    a.sec("exact")
    X = S[0]
    a(f"""
    L_exact:
    s_mov_b32 s{sFB}, 1
    v_mov_b32 v{QH+1}, 0
    v_and_b32 v{vKH}, 31, v{vL}
    v_mov_b32 v{vT[2]}, 4
    v_cmp_gt_u32 vcc, 19, v{vKH}
    v_mov_b32 v{vT[3]}, 19
    v_lshrrev_b32 v{vT[4]}, 5, v{vL}
    v_cndmask_b32 v{vT[2]}, v{vT[2]}, v{vKH}, vcc
    v_cmp_eq_u32 vcc, 4, v{vKH}
    v_mul_u32_u24 v{vT[4]}, {VH}, v{vT[4]}
    v_lshlrev_b32 v{vKH}, 2, v{vKH}
    v_cndmask_b32 v{vT[2]}, v{vT[2]}, v{vT[3]}, vcc
    v_lshl_add_u32 v{vV}, v{vT[2]}, 4, v{vT[4]}
    v_mov_b32 v{vT[0]}, 0xff800000
    v_mov_b32 v{vT[1]}, 0xff800000
    """)
    for r in range(Oa, Oa + 32):
        a(f"v_mov_b32 v{r}, 0")
    for ps in range(2):
        a(f"""
        s_mov_b32 s{sN}, 0
        L_x{ps}:
        s_lshr_b32 s{sT}, s{sN}, 1
        s_mul_i32 s{sT}, s{sT}, {TPAIR}
        s_add_u32 s{sT}, s{sT}, s{sKVp}
        s_and_b32 s{sT2}, s{sN}, 1
        s_mul_i32 s{sB}, s{sT2}, {TILE}
        s_add_u32 s{sB}, s{sB}, s{sT}                ; + tile
        s_lshl_b32 s{sA}, s{sJ}, 10
        s_add_u32 s{sA}, s{sA}, s{sB}
        buffer_load_dwordx4 {vr(Kb,4)}, v{vL16}, s[{SWS}:{SWS+3}], s{sA} offen offset:512 sc1
        s_lshl_b32 s{sA}, s{sT2}, 7
        s_add_u32 s{sA}, s{sA}, s{sT}
        s_lshl_b32 s{sT2}, s{sJ}, 8
        s_add_u32 s{sA}, s{sA}, s{sT2}
        buffer_load_dword v{KHb[0]}, v{vKH}, s[{SWS}:{SWS+3}], s{sA} offen sc1
        """)
        if ps == 1:
            a(f"""
            s_mul_i32 s{sA}, s{sJ}, {2*VG}
            s_add_u32 s{sA}, s{sA}, s{sB}
            s_add_u32 s{sA}, s{sA}, 2560
            buffer_load_dwordx4 {vr(V0b[0],4)}, v{vV}, s[{SWS}:{SWS+3}], s{sA} offen sc1
            buffer_load_dwordx4 {vr(V1b[0],4)}, v{vV}, s[{SWS}:{SWS+3}], s{sA} offen offset:{VG} sc1
            """)
        a("s_waitcnt vmcnt(0)")
        a(qkh(X, KHb[0], 0))
        a("s_nop 15\ns_nop 3")
        a(qk(X, Kb, Qa)); a(qk(X + 16, Kb, Qb))
        a("s_nop 15")
        if ps == 0:
            for t in range(2):
                for i in range(0, 16, 2):
                    a(f"v_max3_f32 v{vT[t]}, v{vT[t]}, v{X+16*t+i}, v{X+16*t+i+1}")
        else:
            for i in range(16):
                a(f"v_sub_f32 v{X+i}, v{X+i}, v{vT[0]}")
                a(f"v_sub_f32 v{X+16+i}, v{X+16+i}, v{vT[1]}")
            E(X, 32)
            a("s_nop 1")
            a(pv(Oa, V0b[0], X)); a(pv(Oa, V1b[0], X + 8))
            a(pv(Ob, V0b[0], X + 16)); a(pv(Ob, V1b[0], X + 24))
        a(f"""
        s_add_u32 s{sN}, s{sN}, 1
        s_cmp_lt_u32 s{sN}, 64
        s_cbranch_scc1 L_x{ps}
        """)
        if ps == 0:
            a(f"""
            v_mov_b32 v{vT[2]}, v{vT[0]}
            v_mov_b32 v{vT[3]}, v{vT[1]}
            s_nop 1
            v_permlane32_swap_b32 v{vT[0]}, v{vT[2]}
            v_permlane32_swap_b32 v{vT[1]}, v{vT[3]}
            s_nop 1
            v_max_f32 v{vT[0]}, v{vT[0]}, v{vT[2]}
            v_max_f32 v{vT[1]}, v{vT[1]}, v{vT[3]}
            """)
    a("""
    s_nop 15
    s_branch L_fin
    """)

    vXE, vXO, vWS = 3, 4, 5
    vGt = [6, 7, 8]
    vGA, vF, vFo = 9, 10, 11
    vT = [12, 13, 14, 15, 16, 17, 18, 19]
    vWO = 20
    CP = 32

    def dma_x(n):
        slot = (n % 3) * G_SLOT
        s = f"s_add_u32 m0, s{sM0x}, {slot}\ns_add_u32 s{sT}, s{sXb}, {n*128}\n"
        for i in range(4):
            s += f"buffer_load_dwordx4 v{vXE}, s[{SX}:{SX+3}], s{sT} offen lds\n"
            s += f"buffer_load_dwordx4 v{vXO}, s[{SX}:{SX+3}], s{sT} offen offset:1024 lds\n"
            if i < 3:
                s += f"s_addk_i32 m0, 0x800\ns_addk_i32 s{sT}, {16*1152}\n"
        return s

    def dma_w(n):
        slot = (n % 3) * G_SLOT
        s = f"s_add_u32 m0, s{sM0w}, {slot + 32768}\ns_add_u32 s{sT}, s{sWb}, {n*64*3456}\n"
        s += f"s_mov_b64 exec, s[{sMASK}:{sMASK+1}]\n"
        for i in range(4):
            if i == 2:
                s += f"s_mov_b64 exec, s[{sC2}:{sC2+1}]\n"
            s += f"buffer_load_dwordx4 v{vWS if i < 2 else 21}, s[{SW}:{SW+3}], s{sT} offen offset:{1024*i} lds\n"
            if i < 3:
                s += f"s_addk_i32 s{sT}, {4*3456 - 1024}\n"
        s += "s_mov_b64 exec, -1\n"
        return s

    def gate_write(n):
        slot = (n % 3) * G_SLOT
        lab = a.label("L_gw")
        reg = vGt[n // 4]
        if slot < 65536:
            w = f"ds_write_b16 v{vGA}, v{reg} offset:{slot + 8}"
        else:
            w = f"v_add_u32 v{vT[7]}, {slot}, v{vGA}\nds_write_b16 v{vT[7]}, v{reg} offset:8"
        return f"""
        s_cmp_eq_u32 s{sLI}, {n % 4}
        s_cbranch_scc0 {lab}
        {w}
        {lab}:
        """

    def wo_load(q0, q1):
        assert q1 <= 72 or q0 >= 72
        srd_, base = (SWA, 0) if q1 <= 72 else (SWB, 72)
        lab = a.label("L_wo")
        a(f"""
        s_add_u32 s{sA}, s{sLI}, {q0}
        {lab}:
        s_lshl_b32 m0, s{sA}, 10
        s_sub_u32 s{sT}, s{sA}, {base}
        s_mul_i32 s{sT}, s{sT}, {8*1152}
        buffer_load_dwordx4 v{vWO}, s[{srd_}:{srd_+3}], s{sT} offen lds
        s_add_u32 s{sA}, s{sA}, 4
        s_cmp_lt_u32 s{sA}, {q1}
        s_cbranch_scc1 {lab}
        """)

    a.sec("loader")
    a("s_setprio 3")
    stamp(a, 1, mode=9)
    a(dma_x(0))
    stamp(a, 2, mode=9)
    stamp(a, 3, mode=9)
    a(dma_w(0))
    stamp(a, 4, mode=9)
    common()
    a(f"""
    v_lshlrev_b32 v{vT[0]}, 1, v{vL}
    s_lshl_b32 s{sT}, s{sLI}, 7
    buffer_load_ushort v{vGt[0]}, v{vT[0]}, s[{SG}:{SG+3}], s{sT} offen
    buffer_load_ushort v{vGt[1]}, v{vT[0]}, s[{SG}:{SG+3}], s{sT} offen offset:512
    buffer_load_ushort v{vGt[2]}, v{vT[0]}, s[{SG}:{SG+3}], s{sT} offen offset:1024
    """)
    a(f"""
    v_and_b32 v{vT[2]}, 3, v{vL}
    v_xor_b32 v{vT[2]}, 3, v{vT[2]}
    v_lshlrev_b32 v{vT[2]}, 6, v{vT[2]}
    v_lshl_add_u32 v{vGA}, v{vL}, 8, v{vT[2]}
    v_add_u32 v{vGA}, {32768 + 48}, v{vGA}
    v_and_b32 v{vT[2]}, 8, v{vL}
    v_lshlrev_b32 v{vT[2]}, 2, v{vT[2]}
    v_xor_b32 v{vGA}, v{vGA}, v{vT[2]}
    """)
    if DPF == 7:
        a(f"""
        s_cmp_eq_u32 s{sLI}, 0
        s_cbranch_scc0 L_e1
        v_and_b32 v{vT[5]}, 7, v{vL}
        v_lshrrev_b32 v{vT[4]}, 3, v{vL}
        v_mul_u32_u24 v{vT[4]}, 1152, v{vT[4]}
        v_lshl_add_u32 v{vT[5]}, v{vT[5]}, 7, v{vT[4]}
        s_mul_i32 s{sT}, s2, {8*1152}
        buffer_load_dword v{vT[6]}, v{vT[5]}, s[{SX}:{SX+3}], s{sT} offen offset:128
        s_branch L_e4
        L_e1:
        s_cmp_eq_u32 s{sLI}, 3
        s_cbranch_scc1 L_e2
        v_lshlrev_b32 v{vT[5]}, 7, v{vL}
        s_and_b32 s{sT}, s{sP}, 15
        s_lshl_b32 s{sT}, s{sT}, 3
        s_add_u32 s{sT}, s{sT}, s{sTG}
        s_lshl_b32 s{sT}, s{sT}, 1
        s_add_u32 s{sT}, s{sT}, s{sLI}
        s_mul_i32 s{sT}, s{sT}, {2*3456}
        s_add_u32 s{sT}, s{sT}, {62*3456}
        s_mov_b32 exec_hi, 0x3fffff
        buffer_load_dword v{vT[6]}, v{vT[5]}, s[{SW}:{SW+3}], s{sT} offen
        s_branch L_e4
        L_e2:
        v_lshlrev_b32 v{vT[5]}, 20, v{vL}
        s_lshl_b32 s{sT}, s2, 7
        s_mov_b64 exec, 0xffff
        buffer_load_dword v{vT[6]}, v{vT[5]}, s[{SWS}:{SWS+3}], s{sT} offen sc1
        L_e4:
        s_mov_b64 exec, -1
        """)
        pre = int(os.environ.get("PRE", "0"))
        if pre:
            a(dma_x(1))
    else:
        a(f"""
        s_cmp_eq_u32 s{sLI}, 0
        s_cbranch_scc0 L_e1
        v_and_b32 v{vT[5]}, 1, v{vL}
        v_bfe_u32 v{vT[4]}, v{vL}, 1, 3
        v_mul_u32_u24 v{vT[4]}, 1152, v{vT[4]}
        v_lshl_add_u32 v{vT[5]}, v{vT[5]}, 7, v{vT[4]}
        s_mul_i32 s{sT}, s2, {8*1152}
        s_mov_b64 exec, 0xffff
        buffer_load_dword v{vT[6]}, v{vT[5]}, s[{SX}:{SX+3}], s{sT} offen offset:256
        s_branch L_e4
        L_e1:
        s_cmp_eq_u32 s{sLI}, 1
        s_cbranch_scc0 L_e2
        v_lshlrev_b32 v{vT[5]}, 7, v{vL}
        s_and_b32 s{sT}, s{sP}, 15
        s_lshl_b32 s{sT}, s{sT}, 3
        s_add_u32 s{sT}, s{sT}, s{sTG}
        s_mul_i32 s{sT}, s{sT}, 3456
        s_add_u32 s{sT}, s{sT}, {128*3456}
        s_mov_b64 exec, 0x7ffffff
        buffer_load_dword v{vT[6]}, v{vT[5]}, s[{SW}:{SW+3}], s{sT} offen
        s_branch L_e4
        L_e2:
        s_mov_b64 exec, 1
        buffer_load_ushort v{vT[6]}, v{vT[0]}, s[{SG}:{SG+3}], 0 offen
        L_e4:
        s_mov_b64 exec, -1
        """)
        a(dma_x(1)); a(dma_w(1))
    stamp(a, 5, mode=9)
    a(f"""
    v_lshlrev_b32 v{vT[2]}, 2, v{vL}
    v_add_u32 v{vT[2]}, {SYNC}, v{vT[2]}
    v_mov_b32 v{CP}, 0
    v_mov_b32 v{CP+1}, 0
    v_mov_b32 v{CP+2}, 0
    v_mov_b32 v{CP+3}, 0
    ds_write_b32 v{vT[2]}, v{CP}
    s_min_u32 s{sT}, s{sLI}, 2
    s_mul_i32 s{sT}, s{sT}, {G_SLOT}
    v_add_u32 v{vT[2]}, s{sT}, v{vGA}
    s_cmp_eq_u32 s{sLI}, 3
    s_cbranch_scc1 L_nz
    ds_write_b128 v{vT[2]}, {vr(CP,4)}
    L_nz:
    s_waitcnt vmcnt({13 if DPF != 7 else 9 if pre else 1})
    """)
    for n in range(3):
        a(gate_write(n))
    stamp(a, 6, mode=9)
    a("s_waitcnt lgkmcnt(0)")
    stamp(a, 7, mode=9)
    a("s_barrier")
    stamp(a, 8, mode=9)
    stamp(a, 1)
    if DPF == 7:
        if not pre:
            a(dma_x(1))
        a(dma_w(1))
    a(dma_x(2)); a(dma_w(2))
    if DPF == 4:
        a(f"""
        s_cmp_eq_u32 s{sLI}, 0
        s_cbranch_scc0 L_lp1
        v_and_b32 v{vT[5]}, 7, v{vL}
        v_min_u32 v{vT[5]}, 4, v{vT[5]}
        v_lshrrev_b32 v{vT[4]}, 3, v{vL}
        v_mul_u32_u24 v{vT[4]}, 1152, v{vT[4]}
        v_lshl_add_u32 v{vT[5]}, v{vT[5]}, 7, v{vT[4]}
        s_mul_i32 s{sT}, s2, {8*1152}
        buffer_load_dword v{vT[6]}, v{vT[5]}, s[{SX}:{SX+3}], s{sT} offen offset:512
        s_branch L_lp2
        L_lp1:
        v_min_u32 v{vT[5]}, 23, v{vL}
        v_lshlrev_b32 v{vT[5]}, 7, v{vT[5]}
        s_and_b32 s{sT}, s{sP}, 15
        s_lshl_b32 s{sT}, s{sT}, 3
        s_add_u32 s{sT}, s{sT}, s{sTG}
        s_mul_i32 s{sT}, s{sT}, 3
        s_add_u32 s{sT}, s{sT}, s{sLI}
        s_mul_i32 s{sT}, s{sT}, {320*3456 // 384}
        s_add_u32 s{sT}, s{sT}, {256*3456 - 320*3456 // 384}
        buffer_load_dword v{vT[6]}, v{vT[5]}, s[{SW}:{SW+3}], s{sT} offen
        L_lp2:
        """)
    vN = 24
    a(f"""
    s_lshl_b32 s{sT}, s{sP}, 12
    s_add_u32 s{sT}, s{sT}, {FLAG_OFF}
    v_lshlrev_b32 v{vN}, 7, v{vL}
    v_add_u32 v{vN}, s{sT}, v{vN}
    v_and_b32 v{vN+1}, 7, v{vL}
    v_lshlrev_b32 v{vN+1}, 12, v{vN+1}
    s_lshl_b32 s{sT}, s{sP}, 7
    s_add_u32 s{sT}, s{sT}, {OFLAG_OFF}
    v_cmp_gt_u32 vcc, 32, v{vL}
    v_add_u32 v{vN+1}, s{sT}, v{vN+1}
    s_cmp_eq_u32 s{sLI}, 3
    v_cndmask_b32 v{vN}, v{vN+1}, v{vN}, vcc
    s_cselect_b32 exec_lo, -1, 1
    s_cselect_b32 exec_hi, 0xff, 0
    buffer_load_dword v{vN+1}, v{vN}, s[{SWS}:{SWS+3}], 0 offen sc1
    s_mov_b64 exec, -1
    """)
    for n in range(8):
        extra = (2 if DPF == 4 else 1) if n < 2 else 1 if n >= 6 else 0
        a(f"s_waitcnt vmcnt({(12 if n + 2 <= 8 else 0) + extra}) lgkmcnt(0)")
        if STAMPS == 7:
            a(f"s_memtime s[90:91]\ns_waitcnt lgkmcnt(0)\ns_barrier\ns_memtime s[94:95]\ns_waitcnt lgkmcnt(0)\ns_sub_u32 s90, s94, s90\ns_add_u32 s{74+2*n}, s90, s72")
        elif STAMPS == 8:
            a(f"s_barrier\ns_memtime s[{74+2*n}:{75+2*n}]")
        else:
            a("s_barrier")
        if n + 3 <= 8:
            a(gate_write(n + 3))
            a(dma_x(n + 3)); a(dma_w(n + 3))
        if n == 5:
            a(f"""
            s_brev_b32 s{sA}, 1
            s_movk_i32 s{sB}, 0x400
            s_cmp_eq_u32 s{sLI}, 3
            s_cbranch_scc0 L_nn1
            s_mov_b32 s44, -1
            s_movk_i32 s45, 0xff
            """)
            for b in range(6):
                a(f"""
                v_and_b32 v{vN}, {1 << b}, v{vN+1}
                v_cmp_ne_u32 vcc, 0, v{vN}
                s_nop 0
                s_and_b64 s[46:47], s[44:45], vcc
                s_andn2_b64 s[44:45], s[44:45], vcc
                s_bcnt1_i32_b64 s{sT}, s[46:47]
                s_bcnt1_i32_b64 s{sT2}, s[44:45]
                s_cmp_lt_u32 s{sT}, s{sT2}
                s_cselect_b64 s[44:45], s[46:47], s[44:45]
                s_cselect_b32 s{sT}, {1 << b}, 0
                s_or_b32 s{sA}, s{sA}, s{sT}
                """)
            a(f"""
            s_lshl_b32 s{sB}, s{sP}, 2
            L_nn1:
            v_mov_b32 v{vN}, s{sA}
            v_mov_b32 v{vN+1}, 0
            v_mov_b32 v{vN+2}, s{sA}
            v_mov_b32 v{vN+3}, s{sB}
            s_mov_b64 exec, 1
            buffer_atomic_cmpswap v[{vN}:{vN+1}], v{vN+3}, s[{SD}:{SD+3}], 0 offen sc0 sc1
            s_mov_b64 exec, -1
            """)
        if n == 6:
            lab = a.label("L_cr")
            a(f"""
            s_cmp_ge_u32 s{sLI}, 2
            s_cbranch_scc1 {lab}
            s_cmp_eq_u32 s{sLI}, 0
            s_cselect_b32 s{sT}, 0x3f803f80, 0
            s_cselect_b32 s{sT2}, {14*16}, 0
            s_add_u32 s{sT2}, s{sT2}, {2560 + 4*16}
            v_and_b32 v{vT[0]}, 7, v{vL}
            v_mul_u32_u24 v{vT[0]}, {VH}, v{vT[0]}
            v_lshrrev_b32 v{vT[2]}, 3, v{vL}
            v_mul_u32_u24 v{vT[2]}, {TILE}, v{vT[2]}
            v_lshrrev_b32 v{vT[3]}, 4, v{vL}
            v_lshl_add_u32 v{vT[2]}, v{vT[3]}, 9, v{vT[2]}
            v_add3_u32 v{vT[0]}, v{vT[0]}, v{vT[2]}, s{sT2}
            v_mov_b32 v{CP}, s{sT}
            v_mov_b32 v{CP+1}, s{sT}
            v_mov_b32 v{CP+2}, s{sT}
            v_mov_b32 v{CP+3}, s{sT}
            ds_write_b128 v{vT[0]}, {vr(CP,4)}
            {lab}:
            """)
    a(f"""
    s_load_dwordx2 s[{SWA}:{SWA+1}], s[0:1], 16          ; A_wo
    s_load_dwordx2 s[{SWB}:{SWB+1}], s[0:1], 40          ; B_wo
    s_load_dwordx2 s[{SO}:{SO+1}], s[0:1], 56            ; out
    s_mov_b32 s{SWA+2}, {WO_BYTES}
    s_mov_b32 s{SWB+2}, {WO_BYTES}
    s_mov_b32 s{SO+2}, {XBYTES}
    s_mov_b32 s{sU}, 0
    s_mov_b32 s{sD3}, {(RING[1]-RING[0]) & 0xffffffff:#x}
    s_mov_b32 s{sD3+1}, {(RING[2]-RING[1]) & 0xffffffff:#x}
    s_mov_b32 s{sD3+2}, {(RING[0]-RING[2]) & 0xffffffff:#x}
    s_mul_i32 s{sT}, s{sLI}, {TPAIR}
    v_add_u32 v{vT[0]}, s{sT}, v{vL16}
    s_add_u32 s{sKVp}, s{sKVp}, s{sT}
    s_mov_b32 s{sM0x}, s{sT}
    s_mul_i32 s{sA}, s{sTG}, {CHUNK}
    s_add_u32 s{sA}, s{sA}, s{sKVp}
    s_lshl_b32 s{sT}, s{sLI}, 10
    s_lshl_b32 s{sB}, s{sP}, 12
    s_add_u32 s{sB}, s{sB}, s{sT}
    s_add_u32 s{sWb}, s{sB}, {FLAG_OFF}
    v_and_b32 v{vFo}, 7, v{vL}
    v_lshlrev_b32 v{vFo}, 7, v{vFo}
    v_mov_b32 v{vT[1]}, {SYNC + 52}
    s_lshl_b32 s{sT}, s{sTG}, 7
    v_mov_b32 v{vT[2]}, s{sT}
    v_lshrrev_b32 v{vT[3]}, 3, v{vL}
    v_mul_u32_u24 v{vT[3]}, 1152, v{vT[3]}
    v_bfe_u32 v{vT[4]}, v{vL}, 4, 1
    v_lshlrev_b32 v{vT[4]}, 2, v{vT[4]}
    v_and_b32 v{vT[5]}, 7, v{vL}
    v_xor_b32 v{vT[5]}, v{vT[5]}, v{vT[4]}
    v_lshl_add_u32 v{vWO}, v{vT[5]}, 4, v{vT[3]}
    s_waitcnt lgkmcnt(0)
    s_barrier
    """)
    stamp(a, 3, True)
    for i in range(10):
        a(f"ds_read_b128 {vr(CP+4*i,4)}, v{vT[0]} offset:{1024*i}")
    for i in range(10):
        if i == 9:
            a("s_mov_b32 exec_hi, 0")
        if i in (4, 8):
            a(f"s_add_u32 s{sA}, s{sA}, 4096")
        a(f"s_waitcnt lgkmcnt({9-i})")
        a(f"buffer_store_dwordx4 {vr(CP+4*i,4)}, v{vL16}, s[{SWS}:{SWS+3}], s{sA} offen offset:{1024*(i&3)} sc1")
    a(f"""
    s_mov_b64 exec, 1
    s_cmp_eq_u32 s{sLI}, 3
    s_cbranch_scc0 L_nn2
    s_waitcnt vmcnt(10)
    v_cmp_eq_u32 vcc, 0, v{vN}
    s_nop 1
    v_cndmask_b32 v{vN}, v{vN}, v{vN+2}, vcc
    ds_write_b32 v{vT[1]}, v{vN}
    L_nn2:
    ds_read_b32 v{vF}, v{vT[1]}
    s_waitcnt lgkmcnt(0)
    v_cmp_eq_u32 vcc, 0, v{vF}
    s_cbranch_vccnz L_nn2
    v_readfirstlane_b32 s{sNON}, v{vF}
    s_waitcnt vmcnt(0)
    buffer_store_dword v{vF}, v{vT[2]}, s[{SWS}:{SWS+3}], s{sWb} offen sc1
    s_mov_b64 exec, -1
    s_mov_b32 s{sRDY}, 0
    s_mov_b32 s{sN}, 0
    s_lshl_b32 s{sXb}, 1, s{sTG}
    L_ll:
    s_add_u32 s{sM0x}, s{sM0x}, s{sD3}
    s_mov_b32 s{sT}, s{sD3}
    s_mov_b32 s{sD3}, s{sD3+1}
    s_mov_b32 s{sD3+1}, s{sD3+2}
    s_mov_b32 s{sD3+2}, s{sT}
    L_poll:
    s_andn2_b32 s{sT}, s{sRDY}, s{sXb}
    s_cbranch_scc1 L_rdy
    buffer_load_dword v{vF}, v{vFo}, s[{SWS}:{SWS+3}], s{sWb} offen sc1
    s_waitcnt vmcnt(0)
    v_cmp_eq_u32 vcc, s{sNON}, v{vF}
    s_sub_u32 s{sSPIN}, s{sSPIN}, 1
    s_nop 0
    s_cselect_b32 s{sRDY}, -1, vcc_lo
    s_and_b32 s{sRDY}, s{sRDY}, 0xff
    s_branch L_poll
    L_rdy:
    s_ff1_i32_b32 s{sC}, s{sT}
    s_bitset1_b32 s{sXb}, s{sC}
    s_mul_i32 s{sA}, s{sC}, {CHUNK}
    s_add_u32 s{sA}, s{sA}, s{sKVp}
    """)
    for i in range(10):
        if i % 4 == 0:
            a(f"s_add_u32 m0, s{sM0x}, {1024*i}")
            a(f"s_add_u32 s{sT}, s{sA}, {1024*i}")
        if i == 9:
            a("s_mov_b32 exec_hi, 0")
        if True:
            a(f"buffer_load_dwordx4 v{vL16}, s[{SWS}:{SWS+3}], s{sT} offen offset:{1024*(i&3)} sc1 lds")
    a(f"""
    s_mov_b32 exec_hi, -1
    L_d9:
    s_cmp_eq_u32 s{sN}, 1
    s_cbranch_scc0 L_ncl
    s_lshl_b32 s{sT}, s{sTG}, 3
    s_lshl_b32 s{sT2}, s{sLI}, 1
    s_add_u32 s{sT}, s{sT}, s{sT2}
    s_mul_i32 s{sA}, s{sT}, {OTILE}
    s_mul_i32 s{sT}, s{sP}, {OPAIR}
    s_add_u32 s{sA}, s{sA}, s{sT}
    s_add_u32 s{sA}, s{sA}, {O_OFF}
    s_add_u32 s{sB}, s{sA}, {OTILE}
    v_mov_b32 v{CP}, -1
    v_mov_b32 v{CP+1}, -1
    v_mov_b32 v{CP+2}, -1
    v_mov_b32 v{CP+3}, -1
    buffer_store_dwordx4 {vr(CP,4)}, v{vL16}, s[{SWS}:{SWS+3}], s{sA} offen sc1
    buffer_store_dwordx4 {vr(CP,4)}, v{vL16}, s[{SWS}:{SWS+3}], s{sA} offen offset:1024 sc1
    buffer_store_dwordx4 {vr(CP,4)}, v{vL16}, s[{SWS}:{SWS+3}], s{sB} offen sc1
    buffer_store_dwordx4 {vr(CP,4)}, v{vL16}, s[{SWS}:{SWS+3}], s{sB} offen offset:1024 sc1
    s_mov_b64 exec, 0xffff
    buffer_store_dwordx4 {vr(CP,4)}, v{vL16}, s[{SWS}:{SWS+3}], s{sA} offen offset:2048 sc1
    buffer_store_dwordx4 {vr(CP,4)}, v{vL16}, s[{SWS}:{SWS+3}], s{sB} offen offset:2048 sc1
    s_mov_b64 exec, -1
    L_ncl:
    s_cmp_eq_u32 s{sLI}, 0
    s_cbranch_scc0 L_nfl
    s_cmp_eq_u32 s{sN}, 2
    s_cbranch_scc0 L_n2
    s_lshl_b32 s{sT}, s{sTG}, 12
    s_lshl_b32 s{sT2}, s{sP}, 7
    s_add_u32 s{sT}, s{sT}, s{sT2}
    s_add_u32 s{sT}, s{sT}, {OFLAG_OFF}
    v_mov_b32 v{vT[3]}, 0
    v_mov_b32 v{vF}, s{sNON}
    s_mov_b64 exec, 1
    buffer_store_dword v{vF}, v{vT[3]}, s[{SWS}:{SWS+3}], s{sT} offen sc1
    s_mov_b64 exec, -1
    L_n2:
    s_cmp_eq_u32 s{sN}, {CLAIM}
    s_cbranch_scc0 L_nfl
    s_and_b32 s{sA}, s2, 7
    v_and_b32 v{vT[5]}, 7, v{vL}
    v_lshlrev_b32 v{vT[4]}, 2, v{vT[5]}
    L_cl:
    s_lshl_b32 s{sT}, s{sA}, 2
    v_mov_b32 v{vT[3]}, s{sT}
    v_mov_b32 v{vF}, 1
    s_mov_b64 exec, 1
    buffer_atomic_add v{vF}, v{vT[3]}, s[{SD}:{SD+3}], 0 offen offset:128 sc0 sc1
    s_mov_b64 exec, -1
    s_waitcnt vmcnt(0)
    v_readfirstlane_b32 s{sB}, v{vF}
    s_nop 3
    s_cmp_lt_u32 s{sB}, 27
    s_cbranch_scc1 L_cl2
    """)
    if STEAL:
        a(f"""
        buffer_load_dword v{vF}, v{vT[4]}, s[{SD}:{SD+3}], 0 offen offset:128 sc1
        s_waitcnt vmcnt(0)
        v_lshl_or_b32 v{vF}, v{vF}, 3, v{vT[5]}
        s_nop 0
        v_readlane_b32 s{sA}, v{vF}, 0
        """)
        for q in range(1, 8):
            a(f"v_readlane_b32 s{sT}, v{vF}, {q}\ns_nop 3\ns_min_u32 s{sA}, s{sA}, s{sT}")
        a(f"""
        s_lshr_b32 s{sT}, s{sA}, 3
        s_and_b32 s{sA}, s{sA}, 7
        s_sub_u32 s{sSPIN}, s{sSPIN}, 1
        s_cselect_b32 s{sT}, 27, s{sT}
        s_cmp_lt_u32 s{sT}, 27
        s_cbranch_scc1 L_cl
        s_mov_b32 s{sSPIN}, {SPIN_LIMIT}
        """)
    a(f"""
    s_movk_i32 s{sB}, 0xff
    L_cl2:
    s_lshl_b32 s{sA}, s{sA}, 8
    s_or_b32 s{sA}, s{sA}, s{sB}
    v_mov_b32 v{vF}, s{sA}
    v_mov_b32 v{vT[3]}, {SYNC + 48}
    ds_write_b32 v{vT[3]}, v{vF}
    s_waitcnt lgkmcnt(0)
    L_nfl:
    s_cmp_eq_u32 s{sN}, {CLAIM + 1}
    s_cbranch_scc0 L_nw3
    v_mov_b32 v{vT[3]}, {SYNC + 48}
    ds_read_b32 v{vF}, v{vT[3]}
    s_waitcnt lgkmcnt(0)
    """)
    unit_decode(vF)
    a(f"""
    s_cmp_ge_u32 s{sU}, 27
    s_cbranch_scc1 L_on1
    s_lshl_b32 s{sT}, s{sCG}, 7
    v_add_u32 v{vWO}, s{sT}, v{vWO}
    """)
    wo_load(38, 42)
    wo_load(80, 121)
    a(f"""
    L_nw3:
    s_cmp_eq_u32 s{sN}, 6
    s_cbranch_scc0 L_on1
    s_cmp_ge_u32 s{sU}, 27
    s_cbranch_scc1 L_on1
    v_mul_u32_u24 v{vT[3]}, 1152, v{vL}
    s_lshl_b32 s{sT}, s{sCG}, 7
    s_mul_i32 s{sT2}, s{sLI}, {48*1152}
    s_add_u32 s{sT2}, s{sT2}, s{sT}
    s_add_u32 s{sT2}, s{sT2}, {392*1152}
    buffer_load_dword v{vT[4]}, v{vT[3]}, s[{SWB}:{SWB+3}], s{sT2} offen
    """)
    if TLBW:
        a(f"""
        s_mul_i32 s{sT}, s{sTG2}, {256*1152}
        v_lshlrev_b32 v{vT[3]}, 2, v{vT[3]}
        buffer_load_dword v{vT[4]}, v{vT[3]}, s[{SO}:{SO+3}], s{sT} offen
        """)
    a(f"""
    v_and_b32 v{vT[0]}, 31, v{vL}
    v_lshlrev_b32 v{vT[3]}, 7, v{vT[0]}
    v_lshlrev_b32 v{vT[0]}, 2, v{vT[0]}
    s_lshl_b32 s{sB}, s{sTG2}, 12
    s_add_u32 s{sB}, s{sB}, {OFLAG_OFF}
    L_on0:
    buffer_load_dword v{vF}, v{vT[0]}, s[{SD}:{SD+3}], 0 offen sc1
    buffer_load_dword v{vT[4]}, v{vT[3]}, s[{SWS}:{SWS+3}], s{sB} offen sc1
    s_waitcnt vmcnt(0)
    v_cmp_le_i32 vcc, 0, v{vF}
    v_cmp_ne_u32 s[44:45], v{vF}, v{vT[4]}
    s_sub_u32 s{sSPIN}, s{sSPIN}, 1
    s_cbranch_scc1 L_on1
    s_or_b64 vcc, vcc, s[44:45]
    s_cbranch_vccz L_on1
    s_sleep 8
    s_branch L_on0
    L_on1:
    s_waitcnt vmcnt(0)
    """)
    if STAMPS == 1:
        a(f"s_cmp_eq_u32 s{sN}, 0\ns_cbranch_scc0 L_st4")
        stamp(a, 4)
        a("L_st4:")
    if STAMPS == 6:
        a("s_barrier\ns_memtime s[88:89]\ns_waitcnt lgkmcnt(0)")
        for q in range(7):
            a(f"s_cmp_eq_u32 s{sN}, {q}\ns_cselect_b32 s{74+2*q}, s88, s{74+2*q}")
    elif STAMPS == 5:
        a("s_memtime s[88:89]\ns_waitcnt lgkmcnt(0)\ns_barrier\ns_memtime s[90:91]\ns_waitcnt lgkmcnt(0)\ns_sub_u32 s88, s90, s88\ns_add_u32 s88, s88, s72")
        for q in range(7):
            a(f"s_cmp_eq_u32 s{sN}, {q}\ns_cselect_b32 s{74+2*q}, s88, s{74+2*q}")
    else:
        a("s_barrier")
    a(f"""
    s_add_u32 s{sN}, s{sN}, 1
    s_cmp_lt_u32 s{sN}, 7
    s_cbranch_scc1 L_ll
    s_mov_b32 s{sSPIN}, {SPIN_LIMIT}
    s_cmp_ge_u32 s{sU}, 27
    s_cbranch_scc1 L_end
    """)
    wo_load(0, 38)
    wo_load(42, 72)
    wo_load(72, 80)
    a(f"""
    v_and_b32 v12, 7, v{vL}
    v_lshlrev_b32 v12, 2, v12
    v_add_u32 v12, {SYNC}, v12
    L_pg:
    s_sleep 2
    ds_read_b32 v13, v12
    s_waitcnt lgkmcnt(0)
    v_cmp_gt_u32 vcc, 7, v13
    s_cbranch_vccnz L_pg
    """)
    wo_load(121, 144)
    a(f"""
    s_lshl_b32 s{sT}, s{sLI}, 2
    s_add_u32 s{sT}, s{sT}, {SYNC + 32}
    v_mov_b32 v12, s{sT}
    v_mov_b32 v13, 8
    s_waitcnt vmcnt(0)
    ds_write_b32 v12, v13
    s_setprio 0
    s_branch L_tail
    """)
    a.sec("tail")

    vOH = 5
    vWm = [3, 4]; vWh = [8, 9]
    vT = [10, 11, 12, 13, 14, 6]
    vPw, vPr, vOut, vPr2, vDw, vDr = 163, 164, 165, 166, 167, 7
    WS_ = [16, 32]
    OF = 56
    ACC = [128, 144]
    DEPTH = int(os.environ.get("DEPTH", "2"))
    TPRIO = int(os.environ.get("TPRIO", "0"))

    def omain(i, j):
        return OF + 8 * i + 4 * j
    OHI = OF + 64

    def issue(i):
        a(f"""
        s_add_u32 s{sT}, s{sFl}, {i*OPAIR}
        buffer_load_dwordx4 {vr(omain(i,0),4)}, v{vL16}, s[{SWS}:{SWS+3}], s{sT} offen sc1
        buffer_load_dwordx4 {vr(omain(i,1),4)}, v{vL16}, s[{SWS}:{SWS+3}], s{sT} offen offset:1024 sc1
        buffer_load_dword v{OHI+i}, v{vOH}, s[{SWS}:{SWS+3}], s{sT} offen offset:2048 sc1
        """)

    a(f"""
    L_tail:
    s_cmp_ge_u32 s{sU}, 27
    s_cbranch_scc1 L_end
    s_cmp_ge_u32 s{sT0}, 8
    s_cbranch_scc1 L_end
    v_lshlrev_b32 v{vOH}, 2, v{vL}
    s_mov_b32 s{sI}, 0
    v_min_u32 v{vT[2]}, 11, v{vL}
    """)
    if LEARLY:
        a(f"""
        s_cmp_lt_u32 s{sWV}, 4
        s_cselect_b32 s{sT}, 8, 0
        v_max_u32 v{vT[2]}, s{sT}, v{vT[2]}
        """)
    a(f"""
    v_lshlrev_b32 v{vT[2]}, 2, v{vT[2]}
    v_add_u32 v{vT[2]}, {SYNC}, v{vT[2]}
    L_ws1:
    ds_read_b32 v{vT[3]}, v{vT[2]}
    s_waitcnt lgkmcnt(0)
    v_cmp_gt_u32 vcc, 8, v{vT[3]}
    s_cbranch_vccz L_go
    s_sleep 1
    s_branch L_ws1
    L_go:
    """)
    stamp(a, 3, mode=3)
    if TPRIO:
        a("s_setprio 3")
    for i in range(DEPTH):
        issue(i)
    a(f"""
    v_and_b32 v{vT[0]}, 31, v{vL}                ; tau
    v_lshrrev_b32 v{vT[1]}, 5, v{vL}             ; h
    v_bfe_u32 v{vT[2]}, v{vL}, 2, 2              ; r
    v_and_b32 v{vT[3]}, 3, v{vL}                 ; c
    v_bfe_u32 v{vT[4]}, v{vL}, 4, 1              ; sub
    v_lshlrev_b32 v{vT[3]}, 3, v{vT[3]}
    v_lshl_add_u32 v{vT[3]}, v{vT[4]}, 5, v{vT[3]}
    s_mul_i32 s{sT}, s{sKQ}, {288*128}
    v_add_u32 v{vT[3]}, s{sT}, v{vT[3]}
    v_lshrrev_b32 v{vT[4]}, 1, v{vT[2]}          ; r>>1
    v_lshl_add_u32 v{vT[5]}, v{vT[1]}, 2, v{vT[2]}
    v_lshl_add_u32 v{vT[5]}, v{vT[5]}, 7, v{vT[3]}
    v_lshl_add_u32 v{vWm[0]}, v{vT[4]}, 6, v{vT[5]}
    v_xor_b32 v{vWm[1]}, 64, v{vWm[0]}
    v_lshl_add_u32 v{vT[5]}, v{vT[4]}, 1, v{vT[1]}
    v_mul_u32_u24 v{vT[5]}, 18, v{vT[5]}
    v_and_b32 v{vT[2]}, 1, v{vT[2]}
    v_add3_u32 v{vT[5]}, v{vT[5]}, v{vT[2]}, 16
    v_lshl_add_u32 v{vT[5]}, v{vT[5]}, 7, v{vT[3]}
    v_lshl_add_u32 v{vWh[0]}, v{vT[1]}, 6, v{vT[5]}
    v_xor_b32 v{vWh[1]}, 64, v{vWh[0]}
    s_lshl_b32 s{sT}, s{sTT}, 13
    s_mul_i32 s{sT2}, s{sKQ}, {288*128}
    s_add_u32 s{sA}, s{sT}, s{sT2}
    v_add_u32 v{vPw}, s{sA}, v{vL16}
    s_lshl_b32 s{sT2}, s{sKQ}, 11
    s_add_u32 s{sA}, s{sT}, s{sT2}
    v_add_u32 v{vPr}, s{sA}, v{vL16}
    v_add_u32 v{vPr2}, {2*288*128}, v{vPr}
    s_lshl_b32 s{sT}, s{sWV}, 2
    s_add_u32 s{sT}, s{sT}, {SYNC + 64}
    v_mov_b32 v{vDw}, s{sT}
    s_sub_u32 s{sT}, s{sT0}, s{sTT}
    s_cmp_eq_u32 s{sT}, 6
    s_cselect_b32 s{sT}, 1, 2
    v_min_u32 v{vDr}, s{sT}, v{vL}
    s_mul_i32 s{sT}, s{sKQ}, 12
    s_add_u32 s{sT}, s{sT}, {SYNC + 64}
    v_lshlrev_b32 v{vDr}, 2, v{vDr}
    v_add_u32 v{vDr}, s{sT}, v{vDr}
    s_lshl_b32 s{sT}, s{sTG2}, 8
    s_lshl_b32 s{sT2}, s{sT0}, 5
    s_add_u32 s{sT}, s{sT}, s{sT2}
    s_mul_i32 s{sOm}, s{sT}, 1152
    s_lshl_b32 s{sT}, s{sCG}, 7
    s_add_u32 s{sOm}, s{sOm}, s{sT}
    s_lshl_b32 s{sT}, s{sKQ}, 5
    s_add_u32 s{sOm}, s{sOm}, s{sT}
    v_mul_u32_u24 v{vOut}, 1152, v{vT[0]}
    v_lshl_add_u32 v{vOut}, v{vT[1]}, 4, v{vOut}
    """)
    for r in range(ACC[0], ACC[0] + 32):
        a(f"v_mov_b32 v{r}, 0")
    stamp(a, 7)
    stamp(a, 4, mode=3)

    def wreads(blk, st):
        for f in range(2):
            b = WS_[st] + 8 * f
            m = 2 * blk + f
            for ct in range(2):
                if m < 16:
                    ad = vWm[ct ^ (m & 1)]
                    o0 = m * 18 * 128; o1 = o0 + 8 * 128
                else:
                    ad = vWh[ct]
                    o0 = (m - 16) * 8 * 18 * 128; o1 = o0 + 4 * 18 * 128
                a(f"ds_read_b64_tr_b16 {vr(b+4*ct,2)}, v{ad} offset:{o0}")
                a(f"ds_read_b64_tr_b16 {vr(b+4*ct+2,2)}, v{ad} offset:{o1}")

    def verify(i, skip):
        o0, o1 = omain(i, 0), omain(i, 1)
        a(f"""
        v_max3_u32 v{vT[2]}, v{o0}, v{o0+1}, v{o0+2}
        v_max3_u32 v{vT[3]}, v{o0+3}, v{o1}, v{o1+1}
        v_max3_u32 v{vT[2]}, v{vT[2]}, v{o1+2}, v{o1+3}
        v_max3_u32 v{vT[2]}, v{vT[2]}, v{vT[3]}, v{OHI+i}
        v_cmp_eq_u32 vcc, -1, v{vT[2]}
        s_cbranch_vccnz {skip}
        s_bitset1_b32 s{sI}, {i}
        """)

    def mm(st, o0, o1):
        for f, o in ((0, o0), (1, o1)):
            for ct in range(2):
                a(f"v_mfma_f32_32x32x16_bf16 {vr(ACC[ct],16)}, {vr(WS_[st]+8*f+4*ct,4)}, {vr(o,4)}, {vr(ACC[ct],16)}")

    wreads(0, 0)
    for i in range(8):
        a(f"s_waitcnt vmcnt({3*min(DEPTH-1, 7-i)}) lgkmcnt(0)")
        wreads(i + 1, (i + 1) & 1)
        verify(i, f"L_s{i}")
        mm(i & 1, omain(i, 0), omain(i, 1))
        a(f"L_s{i}:")
        if TPRIO and i in (0, 2, 4):
            a(f"s_setprio {2 - i // 2}")
        if i + DEPTH < 8:
            issue(i + DEPTH)
    a(f"""
    L_chk:
    s_cmp_eq_u32 s{sI}, 0xff
    s_cbranch_scc0 L_round
    L_hi:
    v_mov_b32 v{vT[2]}, 1
    s_waitcnt lgkmcnt(0)
    ds_write_b32 v{vDw}, v{vT[2]}
    """)
    mm(0, OHI, OHI + 4)
    stamp(a, 8)
    stamp(a, 7, mode=3)
    a(f"""
    L_qs:
    ds_read_b32 v{vT[3]}, v{vDr}
    s_waitcnt lgkmcnt(0)
    v_cmp_eq_u32 vcc, 0, v{vT[3]}
    s_cbranch_vccnz L_qs
    s_nop 6
    """)
    for i in range(8):
        a(f"ds_write_b128 v{vPw}, {vr(ACC[0]+4*i,4)} offset:{1024*i}")
    a("s_waitcnt lgkmcnt(0)")
    a("s_barrier                                    ; BT4")
    stamp(a, 8, True, mode=3)
    for src in range(4):
        for g in range(2):
            a(f"ds_read_b128 {vr(OF+8*src+4*g,4)}, v{vPr if src < 2 else vPr2} offset:{(src&1)*288*128 + g*1024}")
    a("s_waitcnt lgkmcnt(4)")
    for q in range(8):
        a(f"v_add_f32 v{OF+q}, v{OF+q}, v{OF+8+q}")
    a("s_waitcnt lgkmcnt(0)")
    for q in range(8):
        a(f"v_add_f32 v{OF+16+q}, v{OF+16+q}, v{OF+24+q}")
    for q in range(8):
        a(f"v_add_f32 v{OF+q}, v{OF+q}, v{OF+16+q}")
    for i in range(4):
        a(f"v_cvt_pk_bf16_f32 v{WS_[0]+i}, v{OF+2*i}, v{OF+2*i+1}")
    a(f"""
    s_nop 1
    v_permlane32_swap_b32 v{WS_[0]}, v{WS_[0]+2}
    v_permlane32_swap_b32 v{WS_[0]+1}, v{WS_[0]+3}
    buffer_store_dwordx4 {vr(WS_[0],4)}, v{vOut}, s[{SO}:{SO+3}], s{sOm} offen {os.environ.get('OUTF', '')}
    """)
    stamp(a, 9, mode=3)
    a("s_branch L_end")
    a(f"""
    L_round:
    s_sub_u32 s{sSPIN}, s{sSPIN}, 1
    s_cbranch_scc1 L_hi
    {"s_sleep " + os.environ["TSLEEP"] if "TSLEEP" in os.environ else ""}
    s_not_b32 s{sBt}, s{sI}
    """)
    if int(os.environ.get("HINT", "0")):
        a(f"""
        v_and_b32 v{vT[2]}, 7, v{vL}
        v_mul_u32_u24 v{vT[2]}, {OPAIR}, v{vT[2]}
        v_bfe_u32 v{vT[3]}, v{vL}, 3, 1
        v_lshl_add_u32 v{vT[2]}, v{vT[3]}, 7, v{vT[2]}
        s_mov_b64 exec, 0xffff
        buffer_load_dword v{vT[3]}, v{vT[2]}, s[{SWS}:{SWS+3}], s{sFl} offen offset:2048 sc1
        s_waitcnt vmcnt(0)
        v_cmp_eq_u32 vcc, -1, v{vT[3]}
        s_mov_b64 exec, -1
        s_nop 0
        s_lshr_b32 s{sT}, vcc_lo, 8
        s_or_b32 s{sT}, s{sT}, vcc_lo
        s_andn2_b32 s{sBt}, s{sBt}, s{sT}
        s_and_b32 s{sBt}, s{sBt}, 0xff
        s_cbranch_scc0 L_round
        """)
    stamp(a, 5, mode=3)
    for i in range(8):
        a(f"s_bitcmp1_b32 s{sBt}, {i}\ns_cbranch_scc0 L_ni{i}")
        issue(i)
        a(f"L_ni{i}:")
    for i in range(8):
        a(f"s_bitcmp1_b32 s{sBt}, {i}\ns_cbranch_scc0 L_nc{i}")
        wreads(i, 1)
        a("s_waitcnt vmcnt(0)")
        verify(i, f"L_nc{i}")
        a("s_waitcnt lgkmcnt(0)")
        mm(1, omain(i, 0), omain(i, 1))
        a(f"L_nc{i}:")
    a("s_branch L_chk")
    a.sec("end")
    a("L_end:")
    if DIAG >= 0:
        a(f"""
        s_cmp_eq_u32 s{sWV}, 9
        s_cbranch_scc0 L_done
        s_cmp_lt_u32 s2, {os.environ.get("DIAGWG", "256")}
        s_cbranch_scc0 L_done
        s_waitcnt vmcnt(0) lgkmcnt(0)
        s_memrealtime s[82:83]
        s_waitcnt lgkmcnt(0)
        s_mov_b32 s{sT}, 0
        """)
        if DIAG > 0:
            a(f"""
            s_sub_u32 s{sT}, s{72+2*DIAG}, s96
            s_lshl_b32 s{sT}, s{sT}, 2
            s_cmp_lt_u32 s{sWV}, 4
            s_cselect_b32 s{sT}, 0, s{sT}
            """)
        a(f"""
        s_add_u32 s{sT}, s{sT}, 10000
        L_dg:
        s_sleep 8
        s_memrealtime s[98:99]
        s_waitcnt lgkmcnt(0)
        s_sub_u32 s{sT2}, s98, s96
        s_cmp_lt_u32 s{sT2}, s{sT}
        s_cbranch_scc1 L_dg
        """)
    elif STAMPS:
        a(f"""
        s_waitcnt vmcnt(0) lgkmcnt(0)
        s_memtime s[92:93]
        s_memrealtime s[98:99]
        s_waitcnt lgkmcnt(0)
        s_mov_b64 exec, 1
        s_lshl_b32 s{sT}, s2, 4
        s_add_u32 s{sT}, s{sT}, s{sWV}
        s_lshl_b32 s{sT}, s{sT}, 6
        s_add_u32 s{sT}, s{sT}, {STAMP_OFF}
        v_mov_b32 v0, 0
        """)
        for n in range(14):
            a(f"v_mov_b32 v1, s{72+2*n}")
            a(f"buffer_store_dword v1, v0, s[{SWS}:{SWS+3}], s{sT} offen offset:{4*n}")
            a("s_nop 0")
    a("""
    L_done:
    s_endpgm
    """)
    return name, NV


def main():
    out = sys.argv[1] if len(sys.argv) > 1 else f"cdna_kernels/{NAME}.s"
    a = Asm()
    k, nv = gen(a)
    hdr = open(f"cdna_kernels/{NAME}.s.ref").read().split("\n")
    hdr = [l for l in hdr if l.startswith(";") and "@launch" not in l]
    txt = "\n".join(hdr) + "\n"
    txt += f"; @launch grid=(256,1,1) block=(768,1,1) lds={LDS_BYTES}\n"
    txt += '.amdgcn_target "amdgcn-amd-amdhsa--gfx950"\n.text\n'
    txt += a.text()
    txt += f""".section .rodata,"a"
.p2align 6
.amdhsa_kernel {k}
  .amdhsa_next_free_vgpr {nv}
  .amdhsa_next_free_sgpr {102 if STAMPS else 72}
  .amdhsa_accum_offset {(nv + 3) // 4 * 4}
  .amdhsa_group_segment_fixed_size 0
  .amdhsa_kernarg_size 80
  .amdhsa_user_sgpr_count 2
  .amdhsa_user_sgpr_kernarg_segment_ptr 1
  .amdhsa_system_sgpr_workgroup_id_x 1
.end_amdhsa_kernel
"""
    open(out, "w").write(txt)


if __name__ == "__main__":
    main()
```

```python
import math, os, struct, sys

NAME = "gated_mix__mha_block__mha_block__prompt"

VH = 320
VG = 2 * VH
TILE = 2048 + 4 * VG
TPAIR = 512 + 2 * TILE
CHUNK = 4 * TPAIR


def toff(t):
    return (t >> 1) * TPAIR + (t & 1) * TILE
KV_OFF = 0
FLAG_OFF = 0x0A00000
OFLAG_OFF = 0x0A20000
O_OFF = 0x0B00000
OPAIR = 2304
OTILE = 32 * OPAIR
WS_USED = 0x1000000
XBYTES = 2048 * 576 * 2
WQKV_BYTES = 576 * 1728 * 2
WO_BYTES = 576 * 576 * 2
CSCALE = (18 ** -0.5) * math.log2(math.e)

STAMPS = int(os.environ.get("STAMPS", "0"))
STAMP_OFF = 0x1000000
if STAMPS:
    WS_USED = 0x1100000
ALIGN = int(os.environ.get("ALIGN", "1"))
STEAL = int(os.environ.get("STEAL", "1"))
TLBW = int(os.environ.get("TLBW", "2"))
DIAG = int(os.environ.get("DIAG", "-1"))
PRIOI = int(os.environ.get("PRIOI", "6"))
VMASK = int(os.environ.get("VMASK", "1"))
VPOS = int(os.environ.get("VPOS", "3"))
CLAIM = int(os.environ.get("CLAIM", "4"))
LEARLY = int(os.environ.get("LEARLY", "0"))
GMIX = int(os.environ.get("GMIX", "1"))
CPF = int(os.environ.get("CPF", "1"))
DPF = int(os.environ.get("DPF", "4"))

G_SLOT = 49152
LDS_BYTES = 163840
SCR = CHUNK
SYNC = LDS_BYTES - 1024
RING = [0, SYNC - CHUNK, CHUNK + 4096]
SPIN_LIMIT = 1 << 19


WMASK = ~((1 << 15) | (1 << 27) | (1 << 39) | (1 << 51)) & ((1 << 64) - 1)


def f32bits(x):
    return struct.unpack("<I", struct.pack("<f", x))[0]


class Asm:
    def __init__(self):
        self.secs = {"entry": []}
        self.lines = self.secs["entry"]
        self.nlab = 0

    def sec(self, name):
        self.lines = self.secs.setdefault(name, [])

    def __call__(self, s):
        for ln in s.strip("\n").split("\n"):
            ln = ln.strip()
            if not ln:
                continue
            if ln.endswith(":") or ln.startswith("."):
                self.lines.append(ln)
            else:
                self.lines.append("    " + ln)

    def label(self, base="L"):
        self.nlab += 1
        return f"{base}_{self.nlab}"

    def text(self):
        order = ["entry", "loader", "compute", "tail", "exact", "end"]
        assert sorted(order) == sorted(self.secs)
        return "\n".join("\n".join(self.secs[k]) for k in order) + "\n"


def isize(ln):
    t = ln.split(";")[0].strip()
    if not t or t.endswith(":"):
        return 0
    op = t.split()[0]
    if op.startswith(("v_mfma", "v_smfmac", "ds_", "buffer_")) or op.endswith("_e64"):
        return 8
    assert op in ("v_exp_f32", "v_add_u32", "v_mov_b32") or op.startswith("s_"), t
    assert "0x" not in t, t
    return 4


def align8(lines):
    out, off = [], 0
    for ln in lines:
        n = isize(ln)
        if n == 8 and off % 8:
            o = off
            for k in range(len(out) - 1, -1, -1):
                m = isize(out[k])
                if m == 8:
                    k = -1
                    break
                o -= m
                if m == 4 and o % 8 == 0 and out[k].split()[0] == "v_exp_f32":
                    out[k] = out[k].replace("v_exp_f32", "v_exp_f32_e64")
                    break
            else:
                k = -1
            if k != -1:
                off += 4
        out.append(ln)
        off += n
    return out


def vr(b, n):
    return f"v[{b}:{b+n-1}]"


def stamp(a, n, wait=False, mode=1):
    if STAMPS == mode:
        a(f"{'s_memtime' if mode in (1, 9) else 's_memrealtime'} s[{72+2*n}:{73+2*n}]")
        if wait:
            a("s_waitcnt lgkmcnt(0)")


def gen(a):
    name = NAME + "_kernel"
    a(f"""
.globl {name}
.p2align 8
.type {name},@function
{name}:
""")
    SX, SW, SWS, SG, SD = 4, 8, 12, 16, 52
    SWA, SWB, SO = 4, 8, 16
    sW_, sP, sTG, sWV, sJ, sTP = 20, 21, 22, 23, 24, 25
    sXb, sWb, sM0x, sM0w, sA, sB, sT, sT2 = 26, 27, 28, 29, 30, 31, 32, 33
    sMASK = 34
    sKVp, sC, sN, sRS = 36, 37, 38, 39
    sDl, sU, sOm, sOh = 56, 57, 58, 59
    sNON, sRDY, sFB, sSPIN = 60, 61, 62, 63
    sCG, sT0, sTT, sKQ, sTG2 = 64, 65, 66, 67, 68
    sC2 = 70
    sD3 = 48
    sLI = sWV
    vL, vL16 = 1, 2
    NV = 168
    a(f"""
    s_cmp_ge_u32 s2, 256
    s_cbranch_scc1 L_done
    """)
    if STAMPS:
        a("s_memtime s[72:73]\ns_memrealtime s[96:97]")
    a(f"""
    s_load_dwordx2 s[{SX}:{SX+1}], s[0:1], 0            ; x
    s_bitcmp1_b32 s2, 2
    s_cselect_b32 s{sT}, 32, 8
    s_load_dwordx2 s[{SW}:{SW+1}], s[0:1], s{sT}
    s_load_dwordx2 s[{SG}:{SG+1}], s[0:1], 48           ; gate_w
    s_load_dwordx2 s[{SD}:{SD+1}], s[0:1], 64           ; debug
    s_load_dwordx2 s[{SWS}:{SWS+1}], s[0:1], 72         ; ws
    """)
    if CPF:
        a(f"""
        s_getpc_b64 s[{sA}:{sA+1}]
        v_subrev_u32 v10, 256, v0
        v_lshlrev_b32 v10, 7, v10
        v_cmp_gt_u32 vcc, L_done - {name} - 64, v10
        s_and_saveexec_b64 s[{sT}:{sT+1}], vcc
        s_cbranch_execz L_cpf
        global_load_dword v7, v10, s[{sA}:{sA+1}]
        L_cpf:
        s_mov_b64 exec, -1
        """)
    a(f"""
    v_lshrrev_b32 v10, 6, v0
    v_and_b32 v{vL}, 63, v0
    s_bfe_u32 s{sTG}, s2, 0x30003
    v_readfirstlane_b32 s{sWV}, v10
    s_and_b32 s{sP}, s2, 7
    s_lshl_b32 s{sP}, s{sP}, 2
    s_lshr_b32 s{sT2}, s2, 6
    s_add_u32 s{sP}, s{sP}, s{sT2}
    s_mov_b32 s{SX+2}, {XBYTES}
    s_mov_b32 s{SX+3}, 0x00020000
    s_mov_b32 s{SW+3}, s{SX+3}
    s_mov_b32 s{SG+3}, s{SX+3}
    s_mov_b32 s{SD+3}, s{SX+3}
    s_mov_b32 s{SWS+3}, s{SX+3}
    s_cmp_lt_u32 s{sWV}, 4
    s_cbranch_scc0 L_compute
    v_lshrrev_b32 v12, 3, v{vL}
    v_mul_u32_u24 v12, 1152, v12
    v_lshrrev_b32 v13, 4, v{vL}
    v_and_b32 v14, 7, v{vL}
    v_xor_b32 v14, v14, v13
    v_lshl_add_u32 v3, v14, 4, v12
    v_xor_b32 v14, 4, v14
    v_lshl_add_u32 v4, v14, 4, v12
    v_add_u32 v4, {8*1152 - 1024}, v4
    s_lshl_b32 s{sT}, s{sTG}, 2
    s_add_u32 s{sT}, s{sT}, s{sLI}
    s_mul_i32 s{sXb}, s{sT}, {64*1152}
    s_lshl_b32 s{sM0x}, s{sLI}, 13
    v_lshlrev_b32 v14, 2, v13
    v_xor_b32 v14, v14, v{vL}
    v_and_b32 v14, 15, v14
    s_mov_b32 s{sA}, 0x75752020
    s_mov_b32 s{sA+1}, 0x7446420
    s_mov_b32 s{sT}, 0x21aa0505
    v_mul_u32_u24 v18, 3, v13
    v_lshlrev_b32 v15, 2, v14
    v_lshrrev_b64 v[16:17], v15, s[{sA}:{sA+1}]
    v_lshlrev_b32 v19, 1, v14
    v_lshrrev_b32 v19, v19, s{sT}
    v_and_b32 v16, 15, v16
    v_and_b32 v19, 3, v19
    v_add_u32 v19, v19, v18
    v_mul_u32_u24 v19, 1152, v19
    v_lshl_add_u32 v5, v16, 3, v19
    v_xor_b32 v15, 8, v15
    v_lshrrev_b64 v[16:17], v15, s[{sA}:{sA+1}]
    v_lshrrev_b32 v19, 1, v15
    v_lshrrev_b32 v19, v19, s{sT}
    v_and_b32 v16, 15, v16
    v_and_b32 v19, 3, v19
    v_add_u32 v19, v19, v18
    v_mul_u32_u24 v19, 1152, v19
    v_lshl_add_u32 v21, v16, 3, v19
    s_and_b32 s{sT}, s{sP}, 15
    s_mul_i32 s{sT}, s{sT}, 72
    s_mul_i32 s{sWb}, s{sLI}, {16*3456}
    s_add_u32 s{sWb}, s{sWb}, s{sT}
    s_lshl_b32 s{sM0w}, s{sLI}, 12
    s_mov_b32 s{sMASK}, {WMASK & 0xffffffff:#x}
    s_mov_b32 s{sMASK+1}, {WMASK >> 32:#x}
    s_lshr_b64 s[{sC2}:{sC2+1}], s[{sMASK}:{sMASK+1}], 2
    s_or_b32 s{sC2+1}, s{sC2+1}, 0xc0000000
    s_mov_b32 s{SW+2}, {WQKV_BYTES}
    s_waitcnt lgkmcnt(0)
    """)

    def common():
        a(f"""
        s_mov_b32 s{SW+2}, {WQKV_BYTES}
        s_movk_i32 s{SG+2}, 1152
        s_movk_i32 s{SD+2}, 256
        s_mov_b32 s{SWS+2}, {WS_USED}
        v_lshlrev_b32 v{vL16}, 4, v{vL}
        s_mul_i32 s{sKVp}, s{sP}, {8*CHUNK}
        s_mul_i32 s{sKQ}, s{sWV}, 43
        s_lshr_b32 s{sKQ}, s{sKQ}, 7
        s_mul_i32 s{sT}, s{sKQ}, 3
        s_sub_u32 s{sTT}, s{sWV}, s{sT}
        s_mov_b32 s{sSPIN}, {SPIN_LIMIT}
        """)

    sFl, sI, sPd, sBt, sCur, sMode, sWS = 69, 40, 41, 42, 43, 39, 3

    def unit_decode(v):
        a(f"""
        v_readfirstlane_b32 s{sU}, v{v}
        s_nop 3
        s_lshr_b32 s{sTG2}, s{sU}, 8
        s_and_b32 s{sTG2}, s{sTG2}, 7
        s_and_b32 s{sU}, s{sU}, 0xff
        s_lshr_b32 s{sCG}, s{sU}, 1
        s_and_b32 s{sT0}, s{sU}, 1
        s_mul_i32 s{sT0}, s{sT0}, 3
        s_sub_u32 s{sT}, s{sU}, 18
        s_cmp_ge_u32 s{sU}, 18
        s_cselect_b32 s{sCG}, s{sT}, s{sCG}
        s_cselect_b32 s{sT0}, 6, s{sT0}
        s_add_u32 s{sT0}, s{sT0}, s{sTT}
        s_lshl_b32 s{sT}, s{sTG2}, 3
        s_add_u32 s{sT}, s{sT}, s{sT0}
        s_mul_i32 s{sFl}, s{sT}, {OTILE}
        s_mul_i32 s{sT}, s{sKQ}, {8*OPAIR}
        s_add_u32 s{sFl}, s{sFl}, s{sT}
        s_add_u32 s{sFl}, s{sFl}, {O_OFF}
        """)

    vK, vKH, vV, vIDX = 3, 4, 5, 6
    vG = [8, 9]
    vT = [10, 11, 12, 13, 14, 15]
    Qa, Qb = 16, 20
    QH = 24
    Kb = 32
    KHb = [40, 42]
    V0b = [44, 48]
    V1b = [52, 56]
    Oa, Ob = 64, 80
    S = [96, 128]
    vXr = [16, 17]; vWr = [18, 19, 20, 21]
    vXr2 = [22, 23]; vWr2 = [24, 25, 26, 27]
    vU = list(range(32, 48))
    F = [64, 32]
    AC = [96, 112, 128, 144]
    eK, eR, e0, e1, e2, e3, e4 = 160, 161, 162, 163, 164, 165, 166

    a.sec("compute")
    a("L_compute:")
    common()
    a(f"""
    s_sub_u32 s{sW_}, s{sWV}, 4
    s_lshr_b32 s{sJ}, s{sW_}, 2
    s_and_b32 s{sTP}, s{sW_}, 3
    s_load_dwordx2 s[44:45], s[0:1], 56          ; out
    s_mov_b32 s{SO+2}, {XBYTES}
    s_waitcnt lgkmcnt(0)
    s_mov_b64 s[{SO}:{SO+1}], s[44:45]
    """)
    a(f"""
    v_and_b32 v{vU[0]}, 31, v{vL}                ; tau
    v_lshrrev_b32 v{vU[1]}, 5, v{vL}             ; h
    v_and_b32 v{vU[9]}, 15, v{vL}                ; l&15
    v_lshrrev_b32 v{vU[10]}, 4, v{vL}            ; g
    s_lshl_b32 s{sT}, s{sTP}, 13
    v_lshlrev_b32 v{vU[2]}, 7, v{vU[9]}
    v_add_u32 v{vU[2]}, s{sT}, v{vU[2]}
    v_lshrrev_b32 v{vU[3]}, 1, v{vU[9]}
    v_xor_b32 v{vU[3]}, v{vU[3]}, v{vU[10]}
    v_lshl_add_u32 v{vXr[0]}, v{vU[3]}, 4, v{vU[2]}
    v_xor_b32 v{vXr[1]}, 64, v{vXr[0]}
    v_bfe_u32 v{vU[2]}, v{vL}, 2, 2              ; r
    v_lshl_add_u32 v{vU[3]}, v{vU[10]}, 3, v{vU[2]}
    v_lshlrev_b32 v{vU[3]}, 8, v{vU[3]}
    v_add_u32 v{vU[3]}, 32768, v{vU[3]}
    v_and_b32 v{vU[4]}, 3, v{vL}                 ; c
    v_lshlrev_b32 v{vU[4]}, 3, v{vU[4]}
    v_and_b32 v{vU[5]}, 16, v{vL}
    v_lshlrev_b32 v{vU[5]}, 1, v{vU[5]}          ; (g&1)*32
    v_add3_u32 v{vU[7]}, v{vU[3]}, v{vU[4]}, v{vU[5]}
    v_xor_b32 v{vWr[0]}, s{sJ}, v{vU[2]}
    v_lshl_add_u32 v{vWr[0]}, v{vWr[0]}, 6, v{vU[7]}
    v_xor_b32 v{vWr[1]}, 32, v{vWr[0]}
    s_mov_b32 s{sT}, 0x38102800
    s_cmp_eq_u32 s{sJ}, 1
    s_cselect_b32 s{sT}, s{sT}, 0x18100800
    v_lshrrev_b32 v{vU[6]}, v{vU[4]}, s{sT}
    v_and_b32 v{vU[6]}, 0xff, v{vU[6]}
    v_xor_b32 v{vU[6]}, v{vU[6]}, v{vU[5]}
    v_add_u32 v{vU[7]}, v{vU[3]}, v{vU[6]}
    s_add_u32 s{sT}, s{sJ}, 2
    v_xor_b32 v{vWr[2]}, s{sT}, v{vU[2]}
    v_lshl_add_u32 v{vWr[2]}, v{vWr[2]}, 6, v{vU[7]}
    v_xor_b32 v{vWr[3]}, 32, v{vWr[2]}
    """)
    for r0, r1 in zip(vXr + vWr, vXr2 + vWr2):
        a(f"v_add_u32 v{r1}, {2*G_SLOT}, v{r0}")
    for r in range(AC[0], AC[0] + 64):
        a(f"v_mov_b32 v{r}, 0")
    a(f"""
    s_lshl_b32 s{sT}, s{sJ}, 10
    s_add_u32 s{sT}, s{sT}, 512
    v_add_u32 v{vK}, s{sT}, v{vL16}
    v_lshlrev_b32 v{vKH}, 2, v{vL}
    s_lshl_b32 s{sT2}, s{sJ}, 8
    v_add_u32 v{vKH}, s{sT2}, v{vKH}
    v_mov_b32 v{vU[2]}, 4
    v_cmp_gt_u32 vcc, 19, v{vU[0]}
    v_mov_b32 v{vU[3]}, 19
    s_nop 0
    v_cndmask_b32 v{vU[2]}, v{vU[2]}, v{vU[0]}, vcc
    v_cmp_eq_u32 vcc, 4, v{vU[0]}
    v_mul_u32_u24 v{vU[4]}, {VH}, v{vU[1]}
    s_mul_i32 s{sT2}, s{sJ}, {2*VG}
    s_add_u32 s{sT2}, s{sT2}, 2560
    v_cndmask_b32 v{vU[2]}, v{vU[2]}, v{vU[3]}, vcc
    v_lshl_add_u32 v{vV}, v{vU[2]}, 4, v{vU[4]}
    v_add_u32 v{vV}, s{sT2}, v{vV}
    v_mov_b32 v{vIDX}, 0xdddddddd
    s_lshl_b32 s{sT}, s{sTG}, 3
    s_lshl_b32 s{sT2}, s{sTP}, 1
    s_add_u32 s{sT}, s{sT}, s{sT2}
    s_mul_i32 s{sA}, s{sT}, {OTILE}
    s_mul_i32 s{sT}, s{sP}, {OPAIR}
    s_add_u32 s{sA}, s{sA}, s{sT}
    s_add_u32 s{sA}, s{sA}, {O_OFF}
    s_lshl_b32 s{sT}, s{sJ}, 10
    s_add_u32 s{sOm}, s{sA}, s{sT}
    s_lshl_b32 s{sT}, s{sJ}, 7
    s_add_u32 s{sOh}, s{sA}, s{sT}
    s_mov_b32 s{sD3}, {(RING[1]-RING[0]) & 0xffffffff:#x}
    s_mov_b32 s{sD3+1}, {(RING[2]-RING[1]) & 0xffffffff:#x}
    s_mov_b32 s{sD3+2}, {(RING[0]-RING[2]) & 0xffffffff:#x}
    s_mov_b32 s{sC2}, {f32bits(CSCALE):#x}
    s_mov_b32 s{sC2+1}, {f32bits(CSCALE):#x}
    v_and_b32 v{vU[2]}, 3, v{vU[0]}
    v_and_b32 v{vU[3]}, 12, v{vU[0]}
    v_lshl_or_b32 v{vU[2]}, v{vU[3]}, 1, v{vU[2]}
    v_and_b32 v{vU[3]}, 16, v{vU[0]}
    v_lshrrev_b32 v{vU[3]}, 2, v{vU[3]}
    v_or_b32 v{vU[2]}, v{vU[2]}, v{vU[3]}        ; kappa
    s_lshl_b32 s{sT}, s{sJ}, 10
    s_mul_i32 s{sB}, s{sTP}, {TPAIR}
    s_add_u32 s{sT}, s{sT}, s{sB}
    s_add_u32 s{sT}, s{sT}, 512
    v_lshlrev_b32 v{eK}, 9, v{vU[1]}
    v_lshl_add_u32 v{eK}, v{vU[2]}, 4, v{eK}
    v_add_u32 v{eK}, s{sT}, v{eK}
    s_lshl_b32 s{sT}, s{sTP}, 8
    s_add_u32 s{sT}, s{sT}, {SCR}
    v_lshlrev_b32 v{eR}, 2, v{vU[0]}
    v_add_u32 v{eR}, s{sT}, v{eR}
    s_cmp_eq_u32 s{sJ}, 1
    s_cbranch_scc1 L_a1
    v_mul_u32_u24 v{vU[4]}, {VH}, v{vU[10]}
    s_add_u32 s{sT}, s{sB}, 2560
    v_add_u32 v{vU[4]}, s{sT}, v{vU[4]}
    v_mov_b32 v{vU[6]}, 19
    v_cmp_eq_u32 vcc, 4, v{vU[9]}
    v_add_u32 v{vU[3]}, 16, v{vU[9]}
    v_add_u32 v{vU[5]}, {2*VG // 16 - 2}, v{vU[9]}
    v_cndmask_b32 v{vU[6]}, v{vU[9]}, v{vU[6]}, vcc
    v_cmp_le_u32 vcc, 2, v{vU[9]}
    v_lshl_add_u32 v{e0}, v{vU[6]}, 4, v{vU[4]}
    v_mov_b32 v{vU[6]}, {2*VG // 16 + 19}
    v_cndmask_b32 v{vU[3]}, v{vU[3]}, v{vU[5]}, vcc
    v_cmp_eq_u32 vcc, 6, v{vU[9]}
    s_nop 1
    v_cndmask_b32 v{vU[3]}, v{vU[3]}, v{vU[6]}, vcc
    v_lshl_add_u32 v{e1}, v{vU[3]}, 4, v{vU[4]}
    s_branch L_a2
    L_a1:
    v_lshlrev_b32 v{e0}, 2, v{vU[2]}
    v_add_u32 v{e0}, s{sB}, v{e0}
    v_cmp_eq_u32 vcc, 1, v{vU[1]}
    v_add_u32 v{vU[5]}, 256, v{e0}
    v_add_u32 v{vU[6]}, 1024, v{eR}
    v_cndmask_b32 v{e0}, v{e0}, v{eR}, vcc
    v_cndmask_b32 v{e1}, v{vU[5]}, v{vU[6]}, vcc
    v_mov_b32 v{vU[5]}, 1.0
    v_mov_b32 v{vU[6]}, s{sC2}
    v_cndmask_b32 v{e2}, v{vU[5]}, v{vU[6]}, vcc
    v_lshrrev_b32 v{vU[3]}, 3, v{vU[2]}
    v_mul_u32_u24 v{vU[3]}, {VH}, v{vU[3]}
    v_and_b32 v{vU[5]}, 7, v{vU[2]}
    v_lshl_add_u32 v{e3}, v{vU[5]}, 1, v{vU[3]}
    s_add_u32 s{sT}, s{sB}, {2560 + 2*VG}
    v_add_u32 v{e3}, s{sT}, v{e3}
    L_a2:
    s_lshl_b32 s{sT}, s{sJ}, 10
    v_lshl_add_u32 v{e4}, v{vU[1]}, 7, v{eR}
    v_add_u32 v{e4}, s{sT}, v{e4}
    s_mov_b32 s{sMASK}, 0x7ffff
    s_mov_b32 s{sMASK+1}, 0x7ffff
    s_lshl_b32 s{sT}, s{sW_}, 2
    s_add_u32 s{sT}, s{sT}, {SYNC}
    v_mov_b32 v167, s{sT}
    """)
    a("s_waitcnt lgkmcnt(0)")

    def reads(n, ks, j):
        s = n % 3
        xr = vXr2 if s == 2 else vXr
        wr = vWr2 if s == 2 else vWr
        so = G_SLOT if s == 1 else 0
        b = F[ks]
        out = []
        for q in range(4):
            out.append(f"ds_read_b128 {vr(b+4*q,4)}, v{xr[ks]} offset:{so + 2048*q}")
            if q < 4 - j:
                out.append(f"ds_read_b64_tr_b16 {vr(b+16+4*q,2)}, v{wr[q]} offset:{so + ks*8192}")
                out.append(f"ds_read_b64_tr_b16 {vr(b+18+4*q,2)}, v{wr[q]} offset:{so + ks*8192 + 1024}")
        return out

    def mfmas(f, j):
        b = F[f]
        m = []
        for c in range(4 - j):
            for t in range(4):
                X, W, D = vr(b + 4 * t, 4), vr(b + 16 + 4 * c, 4), vr(AC[c] + 4 * t, 4)
                p, q = (X, W) if (j == 0 and c >= 2) else (W, X)
                m.append(f"v_mfma_f32_16x16x32_bf16 {D}, {p}, {q}, {D}")
        return m

    def mix(ms, rs, lead=0):
        rs = list(rs)
        for r in rs[:lead]:
            a(r)
        rs = rs[lead:]
        for i, m in enumerate(ms):
            a(m)
            k = -(-len(rs) // (len(ms) - i)) if GMIX == 2 else (1 if GMIX else 0)
            for r in rs[:k]:
                a(r)
            rs = rs[k:]
        for r in rs:
            a(r)

    if TLBW == 2:
        a(f"""
        s_cmp_eq_u32 s{sW_}, 7
        s_cbranch_scc0 L_tlb
        s_buffer_load_dword s3, s[{SWS}:{SWS+3}], s{sKVp}
        s_buffer_load_dword s3, s[{SWS}:{SWS+3}], s{sKVp} offset:{hex(8*CHUNK - 4)}
        s_mov_b32 s{sT}, {FLAG_OFF + 0x30000}
        s_buffer_load_dword s3, s[{SWS}:{SWS+3}], s{sT}
        s_buffer_load_dword s3, s[{SD}:{SD+3}], 0xfc
        L_tlb:
        """)
    stamp(a, 7, True, mode=9)
    a("s_barrier")
    stamp(a, 1, True)
    stamp(a, 1, True, mode=4)
    for r in reads(0, 0, 0):
        a(r)
    a(f"""
    s_mov_b32 s{sN}, 0
    s_cmp_eq_u32 s{sJ}, 1
    s_cbranch_scc1 L_g1
    """)
    for j in range(2):
        a(f"L_g{j}:")
        for n in range(3):
            a("s_waitcnt lgkmcnt(0)")
            mix(mfmas(0, j), reads(n, 1, j), 0 if GMIX else 99)
            a("s_waitcnt lgkmcnt(0)")
            if n == 2:
                a(f"""
                s_add_u32 s{sN}, s{sN}, 1
                s_cmp_eq_u32 s{sN}, 3
                s_cbranch_scc1 L_ge{j}
                """)
            a("s_barrier")
            mix(mfmas(1, j), reads(n + 1, 0, j), 0 if GMIX else 99)
        a(f"s_branch L_g{j}")
        a(f"L_ge{j}:")
        ms = mfmas(1, j)
        zs = [f"v_mov_b32 v{r}, 0" for r in range(Oa, Oa + 32)]
        for i, m in enumerate(ms):
            a(m)
            k = -(-len(zs) // (len(ms) - i))
            for z in zs[:k]:
                a(z)
            zs = zs[k:]
        stamp(a, 2)
        stamp(a, 2, mode=4)
        a(f"""
        s_mov_b32 s{sN}, 0
        s_mov_b32 s{sFB}, 0
        """)
        KP = [AC[0], AC[0] + 8]
        for A in KP:
            for i in range(4):
                a(f"v_cvt_pk_bf16_f32 v{A+i}, v{A+2*i}, v{A+2*i+1}")
        a(f"v_mov_b32 v{KHb[0]+1}, 0x3f803f80")
        for t, A in enumerate(KP):
            a(f"v_permlane16_swap_b32 v{A}, v{A+2}")
            a(f"v_permlane16_swap_b32 v{A+1}, v{A+3}")
            a(f"ds_write_b128 v{eK}, {vr(A,4)} offset:{TILE*t}")
        B0, B1 = AC[2], AC[2] + 8
        if j == 0:
            for cc in range(2):
                for t in range(2):
                    B = AC[2 + cc] + 8 * t
                    for i in range(4):
                        a(f"v_cvt_pk_bf16_f32 v{B+i}, v{B+2*i}, v{B+2*i+1}")
                    a(f"ds_write_b128 v{(e0, e1)[cc]}, {vr(B,4)} offset:{t*TILE}")
            a("s_branch L_ep")
        else:
            for B in (B0, B1):
                for i in range(4):
                    a(f"v_permlane16_swap_b32 v{B+i}, v{B+4+i}")
            a(f"""
            s_mov_b32 exec_lo, 0
            ds_write_b32 v{eR}, v{B0+4} offset:2048
            ds_write_b32 v{eR}, v{B1+4} offset:{2048+128}
            s_mov_b32 exec_lo, -1
            """)
            for t, B in enumerate((B0, B1)):
                for i in range(4):
                    a(f"v_mul_f32 v{B+i}, v{e2}, v{B+i}")
                for i in range(4):
                    a(f"v_cvt_pk_bf16_f32 v{B+16+i}, v{B+2*i}, v{B+2*i+1}")
                a(f"ds_write_b32 v{e0}, v{B+16} offset:{128*t}")
                a(f"ds_write_b32 v{e1}, v{B+17} offset:{128*t}")
            a("s_mov_b32 exec_hi, 0")
            for t, B in enumerate((B0, B1)):
                o = t * TILE + 14 * 16
                a(f"ds_write_b16 v{e3}, v{B+18} offset:{o}")
                a(f"ds_write_b16_d16_hi v{e3}, v{B+18} offset:{o+16}")
                a(f"ds_write_b16 v{e3}, v{B+19} offset:{o+32}")
                a(f"ds_write_b16_d16_hi v{e3}, v{B+19} offset:{o+48}")
            a("s_mov_b32 exec_hi, -1")
    a("L_ep:")
    for A, Q in ((AC[1], Qa), (AC[1] + 8, Qb)):
        for i in range(4):
            a(f"v_pk_mul_f32 {vr(A+2*i,2)}, {vr(A+2*i,2)}, s[{sC2}:{sC2+1}]")
        for i in range(4):
            a(f"v_cvt_pk_bf16_f32 v{Q+i}, v{A+2*i}, v{A+2*i+1}")
    a(f"v_mov_b32 v{KHb[1]+1}, 0x3f803f80")
    for Q in (Qa, Qb):
        a(f"v_permlane16_swap_b32 v{Q}, v{Q+2}")
        a(f"v_permlane16_swap_b32 v{Q+1}, v{Q+3}")

    def qk(dst, kb, q, acc=True):
        return f"v_mfma_f32_32x32x16_bf16 {vr(dst,16)}, {vr(kb,4)}, {vr(q,4)}, {vr(dst,16) if acc else 0}"

    def qkh(dst, khb, par):
        return f"v_mfma_f32_32x32x4_2b_bf16 {vr(dst,32)}, {vr(khb,2)}, {vr(QH,2)}, 0 cbsz:1 abid:{par}"

    def pv(o, vb, p):
        return f"v_smfmac_f32_32x32x32_bf16 {vr(o,16)}, {vr(vb,4)}, {vr(p,8)}, v{vIDX}"

    def vread(t, buf):
        if not VMASK:
            return f"""
            ds_read_b128 {vr(V0b[buf],4)}, v{vV} offset:{toff(t)}
            ds_read_b128 {vr(V1b[buf],4)}, v{vV} offset:{toff(t) + VG}
            """
        return f"""
        s_mov_b64 exec, s[{sMASK}:{sMASK+1}]
        ds_read_b128 {vr(V0b[buf],4)}, v{vV} offset:{toff(t)}
        ds_read_b128 {vr(V1b[buf],4)}, v{vV} offset:{toff(t) + VG}
        s_mov_b64 exec, -1
        """

    a(f"v_cmp_gt_u32 vcc, 32, v{vL}")
    for r in range(V0b[0], V1b[1] + 4):
        a(f"v_mov_b32 v{r}, 0")
    a("s_waitcnt vmcnt(0) lgkmcnt(0)")
    X, Y = S
    a(qk(Y, AC[0], Qa, False)); a(qk(Y + 16, AC[0], Qb, False))
    a("s_barrier")
    stamp(a, 3, True)
    a(f"""
    ds_read_b32 v{vG[0]}, v{eR} offset:2048
    ds_read_b32 v{vG[1]}, v{eR} offset:{2048+128}
    ds_read_b32 v{KHb[0]}, v{vKH}
    ds_read_b32 v{QH}, v{e4}
    ds_read_b128 {vr(Kb,4)}, v{vK}
    """)
    a(vread(0, 0))
    a(f"""
    s_mov_b32 s{sT}, {f32bits(-math.log2(math.e)):#x}
    s_cmp_ge_u32 s{sP}, 16
    s_cselect_b32 s{sT}, {f32bits(math.log2(math.e)):#x}, s{sT}
    s_nop 0
    """)
    for t in range(2):
        b = Y + 16 * t
        a(f"v_max3_f32 v{vT[t]}, v{b}, v{b+1}, v{b+2}")
        for i in range(3, 9, 2):
            a(f"v_max3_f32 v{vT[t]}, v{vT[t]}, v{b+i}, v{b+i+1}")
    a(f"""
    v_cndmask_b32 v{vT[0]}, v{vT[1]}, v{vT[0]}, vcc
    v_lshrrev_b32 v{vT[0]}, 16, v{vT[0]}
    v_xor_b32 v{QH+1}, 0x8000, v{vT[0]}
    s_waitcnt lgkmcnt(3)
    v_mul_f32 v{vG[0]}, s{sT}, v{vG[0]}
    """)
    a(qkh(X, KHb[0], 0))
    a(f"""
    v_mul_f32 v{vG[1]}, s{sT}, v{vG[1]}
    v_exp_f32 v{vG[0]}, v{vG[0]}
    v_exp_f32 v{vG[1]}, v{vG[1]}
    """)
    for r in range(Y + 24, Y + 32):
        a(f"v_mov_b32 v{r}, 0")
    a(f"""
    v_add_f32 v{vG[0]}, 1.0, v{vG[0]}
    v_add_f32 v{vG[1]}, 1.0, v{vG[1]}
    v_rcp_f32 v{vG[0]}, v{vG[0]}
    v_rcp_f32 v{vG[1]}, v{vG[1]}
    s_waitcnt lgkmcnt(0)
    s_nop 1
    """)
    a(qk(X, Kb, Qa)); a(qk(X + 16, Kb, Qb))

    def E(b, n=4):
        for r in range(b, b + n):
            a(f"v_exp_f32 v{r}, v{r}")

    stamp(a, 4)
    stamp(a, 3, mode=4)
    a("s_setprio 1")
    a("s_nop 9")
    a(".p2align 6")
    a("L_loop:")
    loop0 = len(a.lines) - 1
    for i in range(8):
        X = S[i & 1]; Y = S[(i + 1) & 1]
        tn = (i + 1) & 7
        khb = KHb[(tn >> 1) & 1]
        if i == 7:
            a(f"""
            s_cbranch_scc1 L_nb7
            s_barrier
            L_nb7:
            s_setprio 1
            v_add_u32 v{vKH}, s{sDl}, v{vKH}
            v_add_u32 v{vK}, s{sDl}, v{vK}
            ds_read_b32 v{khb}, v{vKH}
            v_add_u32 v{vV}, s{sDl}, v{vV}
            """)
        E(X, 2)
        a(pv(Ob, V1b[(i + 1) & 1], Y + 24))
        if i == PRIOI:
            a("s_setprio 0")
        kread = f"ds_read_b128 {vr(Kb,4)}, v{vK} offset:{toff(tn)}"
        if i in (0, 2, 4):
            kread += f"\nds_read_b32 v{KHb[((i>>1)+1)&1]}, v{vKH} offset:{((i>>1)+1)*TPAIR}"
        vrd = vread(tn, (i + 1) & 1)
        a(vrd if VPOS == 1 else kread)
        E(X + 2, 4)
        if i == 7:
            a(f"s_waitcnt lgkmcnt({2 if VPOS == 1 else 1})")
        a(qkh(Y, khb, tn & 1))
        a(vrd if VPOS == 0 else kread if VPOS == 1 else "")
        E(X + 6, 8)
        a(pv(Oa, V0b[i & 1], X))
        if VPOS == 3:
            a("s_waitcnt lgkmcnt(0)")
        if VPOS >= 2:
            a(vrd)
        E(X + 14, 4)
        a(pv(Oa, V1b[i & 1], X + 8))
        if VPOS != 3:
            a(f"s_waitcnt lgkmcnt({2 if VPOS == 2 else 0})")
        if i == 1:
            a(f"s_mov_b32 s{sDl}, s{sD3}")
        if i == 3:
            a(f"s_mov_b32 s{sD3+1}, s{sD3+2}")
        if i == 7:
            a(f"s_add_u32 s{sN}, s{sN}, 1")
        E(X + 18, 4)
        a(qk(Y, Kb, Qa))
        if i == 1:
            a(f"s_mov_b32 s{sD3}, s{sD3+1}")
        if i == 2:
            a(f"v_mov_b32 v7, s{sN}")
        if i == 5:
            a(f"s_mov_b32 s{sD3+2}, s{sDl}")
        if i == 6:
            a(f"s_cmp_eq_u32 s{sN}, 7")
        if i == 7:
            a(f"s_cmp_lt_u32 s{sN}, 8")
        E(X + 22, 4)
        a(pv(Ob, V0b[i & 1], X + 16))
        if VPOS >= 2:
            a("s_waitcnt lgkmcnt(0)")
        E(X + 26, 3)
        a(qk(Y + 16, Kb, Qb))
        if i == 3:
            a("ds_write_b32 v167, v7")
        E(X + 29, 3)
    if ALIGN:
        a.lines[loop0:] = align8(a.lines[loop0:])
    a(f"""
    s_cbranch_scc1 L_loop
    s_nop 0
    """)
    stamp(a, 5)
    stamp(a, 1, mode=3)
    stamp(a, 4, mode=4)
    a(pv(Ob, V1b[1], S[1] + 24))
    a(f"""
    v_mov_b32 v{vT[5]}, {SYNC + 48}
    ds_read_b32 v160, v{vT[5]}
    s_nop 9
    L_fin:
    """)
    for t, O in enumerate((Oa, Ob)):
        a(f"v_mov_b32 v{vT[2*t]}, v{O+10}")
        a(f"v_mov_b32 v{vT[2*t+1]}, v{O+10}")
    a(f"v_max3_f32 v{vT[4]}, |v{Oa}|, |v{Oa+1}|, |v{Ob}|")
    a(f"v_max_f32 v{vT[4]}, v{vT[4]}, |v{Ob+1}|")
    a(f"v_permlane32_swap_b32 v{vT[0]}, v{vT[1]}")
    a(f"v_permlane32_swap_b32 v{vT[2]}, v{vT[3]}")
    for i in range(2, 10):
        a(f"v_max3_f32 v{vT[4]}, v{vT[4]}, |v{Oa+i}|, |v{Ob+i}|")
    a(f"""
    s_cmp_eq_u32 s{sFB}, 0
    s_cbranch_scc0 L_store
    s_mov_b32 s{sT}, {f32bits(2.0**80):#x}
    s_mov_b32 s{sT2}, {f32bits(2.0**-24):#x}
    s_mov_b32 s{sA}, 0x7f800000
    v_cmp_nge_f32 vcc, s{sT}, v{vT[0]}
    v_cmp_nge_f32 s[44:45], s{sT}, v{vT[2]}
    v_cmp_nle_f32 s[46:47], s{sT2}, v{vT[0]}
    s_or_b64 vcc, vcc, s[44:45]
    v_cmp_nle_f32 s[44:45], s{sT2}, v{vT[2]}
    s_or_b64 vcc, vcc, s[46:47]
    v_cmp_ngt_f32 s[46:47], s{sA}, v{vT[4]}
    s_or_b64 vcc, vcc, s[44:45]
    s_nop 0
    s_or_b64 vcc, vcc, s[46:47]
    s_cbranch_vccnz L_exact
    L_store:
    v_rcp_f32 v{vT[0]}, v{vT[0]}
    v_rcp_f32 v{vT[2]}, v{vT[2]}
    v_lshrrev_b32 v{vT[4]}, 5, v{vL}
    v_mul_u32_u24 v{vT[4]}, {OTILE - 128}, v{vT[4]}
    v_lshl_add_u32 v{vT[4]}, v{vL}, 2, v{vT[4]}
    s_add_u32 s{sB}, s{sOm}, {OTILE}
    v_mul_f32 v{vT[0]}, v{vT[0]}, v{vG[0]}
    v_mul_f32 v{vT[2]}, v{vT[2]}, v{vG[1]}
    v_mov_b32 v{vT[1]}, v{vT[0]}
    v_mov_b32 v{vT[3]}, v{vT[2]}
    """)
    for t, O in enumerate((Oa, Ob)):
        for i in range(5):
            a(f"v_pk_mul_f32 {vr(O+2*i,2)}, {vr(O+2*i,2)}, {vr(vT[2*t],2)}")
        pk = 16 + 4 * t
        for i in range(4):
            a(f"v_cvt_pk_bf16_f32 v{pk+i}, v{O+2*i}, v{O+2*i+1}")
        a(f"v_cvt_pk_bf16_f32 v{24+t}, v{O+8}, v{O+9}")
        for r in list(range(pk, pk + 4)) + [24 + t]:
            a(f"v_min_u32 v{r}, -2, v{r}")
        a(f"buffer_store_dwordx4 {vr(pk,4)}, v{vL16}, s[{SWS}:{SWS+3}], s{sOm if t == 0 else sB} offen sc1")
    a(f"""
    s_nop 0
    v_permlane32_swap_b32 v24, v25
    s_setprio 0
    buffer_store_dword v24, v{vT[4]}, s[{SWS}:{SWS+3}], s{sOh} offen offset:2048 sc1
    v_mov_b32 v7, 8
    ds_write_b32 v167, v7
    s_waitcnt lgkmcnt(1)
    """)
    unit_decode(160)
    stamp(a, 6)
    stamp(a, 2, mode=3)

    a.sec("exact")
    X = S[0]
    a(f"""
    L_exact:
    s_mov_b32 s{sFB}, 1
    v_mov_b32 v{QH+1}, 0
    v_and_b32 v{vKH}, 31, v{vL}
    v_mov_b32 v{vT[2]}, 4
    v_cmp_gt_u32 vcc, 19, v{vKH}
    v_mov_b32 v{vT[3]}, 19
    v_lshrrev_b32 v{vT[4]}, 5, v{vL}
    v_cndmask_b32 v{vT[2]}, v{vT[2]}, v{vKH}, vcc
    v_cmp_eq_u32 vcc, 4, v{vKH}
    v_mul_u32_u24 v{vT[4]}, {VH}, v{vT[4]}
    v_lshlrev_b32 v{vKH}, 2, v{vKH}
    v_cndmask_b32 v{vT[2]}, v{vT[2]}, v{vT[3]}, vcc
    v_lshl_add_u32 v{vV}, v{vT[2]}, 4, v{vT[4]}
    v_mov_b32 v{vT[0]}, 0xff800000
    v_mov_b32 v{vT[1]}, 0xff800000
    """)
    for r in range(Oa, Oa + 32):
        a(f"v_mov_b32 v{r}, 0")
    for ps in range(2):
        a(f"""
        s_mov_b32 s{sN}, 0
        L_x{ps}:
        s_lshr_b32 s{sT}, s{sN}, 1
        s_mul_i32 s{sT}, s{sT}, {TPAIR}
        s_add_u32 s{sT}, s{sT}, s{sKVp}
        s_and_b32 s{sT2}, s{sN}, 1
        s_mul_i32 s{sB}, s{sT2}, {TILE}
        s_add_u32 s{sB}, s{sB}, s{sT}                ; + tile
        s_lshl_b32 s{sA}, s{sJ}, 10
        s_add_u32 s{sA}, s{sA}, s{sB}
        buffer_load_dwordx4 {vr(Kb,4)}, v{vL16}, s[{SWS}:{SWS+3}], s{sA} offen offset:512 sc1
        s_lshl_b32 s{sA}, s{sT2}, 7
        s_add_u32 s{sA}, s{sA}, s{sT}
        s_lshl_b32 s{sT2}, s{sJ}, 8
        s_add_u32 s{sA}, s{sA}, s{sT2}
        buffer_load_dword v{KHb[0]}, v{vKH}, s[{SWS}:{SWS+3}], s{sA} offen sc1
        """)
        if ps == 1:
            a(f"""
            s_mul_i32 s{sA}, s{sJ}, {2*VG}
            s_add_u32 s{sA}, s{sA}, s{sB}
            s_add_u32 s{sA}, s{sA}, 2560
            buffer_load_dwordx4 {vr(V0b[0],4)}, v{vV}, s[{SWS}:{SWS+3}], s{sA} offen sc1
            buffer_load_dwordx4 {vr(V1b[0],4)}, v{vV}, s[{SWS}:{SWS+3}], s{sA} offen offset:{VG} sc1
            """)
        a("s_waitcnt vmcnt(0)")
        a(qkh(X, KHb[0], 0))
        a("s_nop 15\ns_nop 3")
        a(qk(X, Kb, Qa)); a(qk(X + 16, Kb, Qb))
        a("s_nop 15")
        if ps == 0:
            for t in range(2):
                for i in range(0, 16, 2):
                    a(f"v_max3_f32 v{vT[t]}, v{vT[t]}, v{X+16*t+i}, v{X+16*t+i+1}")
        else:
            for i in range(16):
                a(f"v_sub_f32 v{X+i}, v{X+i}, v{vT[0]}")
                a(f"v_sub_f32 v{X+16+i}, v{X+16+i}, v{vT[1]}")
            E(X, 32)
            a("s_nop 1")
            a(pv(Oa, V0b[0], X)); a(pv(Oa, V1b[0], X + 8))
            a(pv(Ob, V0b[0], X + 16)); a(pv(Ob, V1b[0], X + 24))
        a(f"""
        s_add_u32 s{sN}, s{sN}, 1
        s_cmp_lt_u32 s{sN}, 64
        s_cbranch_scc1 L_x{ps}
        """)
        if ps == 0:
            a(f"""
            v_mov_b32 v{vT[2]}, v{vT[0]}
            v_mov_b32 v{vT[3]}, v{vT[1]}
            s_nop 1
            v_permlane32_swap_b32 v{vT[0]}, v{vT[2]}
            v_permlane32_swap_b32 v{vT[1]}, v{vT[3]}
            s_nop 1
            v_max_f32 v{vT[0]}, v{vT[0]}, v{vT[2]}
            v_max_f32 v{vT[1]}, v{vT[1]}, v{vT[3]}
            """)
    a("""
    s_nop 15
    s_branch L_fin
    """)

    vXE, vXO, vWS = 3, 4, 5
    vGt = [6, 7, 8]
    vGA, vF, vFo = 9, 10, 11
    vT = [12, 13, 14, 15, 16, 17, 18, 19]
    vWO = 20
    CP = 32

    def dma_x(n):
        slot = (n % 3) * G_SLOT
        s = f"s_add_u32 m0, s{sM0x}, {slot}\ns_add_u32 s{sT}, s{sXb}, {n*128}\n"
        for i in range(4):
            s += f"buffer_load_dwordx4 v{vXE}, s[{SX}:{SX+3}], s{sT} offen lds\n"
            s += f"buffer_load_dwordx4 v{vXO}, s[{SX}:{SX+3}], s{sT} offen offset:1024 lds\n"
            if i < 3:
                s += f"s_addk_i32 m0, 0x800\ns_addk_i32 s{sT}, {16*1152}\n"
        return s

    def dma_w(n):
        slot = (n % 3) * G_SLOT
        if n >= int(os.environ.get("WP0", "99")):
            s = f"s_add_u32 m0, s{sM0w}, {slot + 32768}\ns_and_b32 s{sT}, s{sP}, 7\ns_mul_i32 s{sT}, s{sT}, 147456\ns_add_u32 s{sT}, s{sT}, s{sM0w}\ns_add_u32 s{sT}, s{sT}, {n*16384}\nv_lshlrev_b32 v22, 4, v{vL}\n"
            for i in range(4):
                s += f"buffer_load_dwordx4 v22, s[{SW}:{SW+3}], s{sT} offen offset:{1024*i} lds\n"
            return s
        s = f"s_add_u32 m0, s{sM0w}, {slot + 32768}\ns_add_u32 s{sT}, s{sWb}, {n*64*3456}\n"
        s += f"s_mov_b64 exec, s[{sMASK}:{sMASK+1}]\n"
        for i in range(4):
            if i == 2:
                s += f"s_mov_b64 exec, s[{sC2}:{sC2+1}]\n"
            s += f"buffer_load_dwordx4 v{vWS if i < 2 else 21}, s[{SW}:{SW+3}], s{sT} offen offset:{1024*i} lds\n"
            if i < 3:
                s += f"s_addk_i32 s{sT}, {4*3456 - 1024}\n"
        s += "s_mov_b64 exec, -1\n"
        return s

    def gate_write(n):
        slot = (n % 3) * G_SLOT
        lab = a.label("L_gw")
        reg = vGt[n // 4]
        if slot < 65536:
            w = f"ds_write_b16 v{vGA}, v{reg} offset:{slot + 8}"
        else:
            w = f"v_add_u32 v{vT[7]}, {slot}, v{vGA}\nds_write_b16 v{vT[7]}, v{reg} offset:8"
        return f"""
        s_cmp_eq_u32 s{sLI}, {n % 4}
        s_cbranch_scc0 {lab}
        {w}
        {lab}:
        """

    def wo_load(q0, q1):
        assert q1 <= 72 or q0 >= 72
        srd_, base = (SWA, 0) if q1 <= 72 else (SWB, 72)
        lab = a.label("L_wo")
        a(f"""
        s_add_u32 s{sA}, s{sLI}, {q0}
        {lab}:
        s_lshl_b32 m0, s{sA}, 10
        s_sub_u32 s{sT}, s{sA}, {base}
        s_mul_i32 s{sT}, s{sT}, {8*1152}
        buffer_load_dwordx4 v{vWO}, s[{srd_}:{srd_+3}], s{sT} offen lds
        s_add_u32 s{sA}, s{sA}, 4
        s_cmp_lt_u32 s{sA}, {q1}
        s_cbranch_scc1 {lab}
        """)

    a.sec("loader")
    a("s_setprio 3")
    stamp(a, 1, mode=9)
    a(dma_x(0))
    stamp(a, 2, mode=9)
    stamp(a, 3, mode=9)
    a(dma_w(0))
    stamp(a, 4, mode=9)
    common()
    a(f"""
    v_lshlrev_b32 v{vT[0]}, 1, v{vL}
    s_lshl_b32 s{sT}, s{sLI}, 7
    buffer_load_ushort v{vGt[0]}, v{vT[0]}, s[{SG}:{SG+3}], s{sT} offen
    buffer_load_ushort v{vGt[1]}, v{vT[0]}, s[{SG}:{SG+3}], s{sT} offen offset:512
    buffer_load_ushort v{vGt[2]}, v{vT[0]}, s[{SG}:{SG+3}], s{sT} offen offset:1024
    """)
    a(f"""
    v_and_b32 v{vT[2]}, 3, v{vL}
    v_xor_b32 v{vT[2]}, 3, v{vT[2]}
    v_lshlrev_b32 v{vT[2]}, 6, v{vT[2]}
    v_lshl_add_u32 v{vGA}, v{vL}, 8, v{vT[2]}
    v_add_u32 v{vGA}, {32768 + 48}, v{vGA}
    v_and_b32 v{vT[2]}, 8, v{vL}
    v_lshlrev_b32 v{vT[2]}, 2, v{vT[2]}
    v_xor_b32 v{vGA}, v{vGA}, v{vT[2]}
    """)
    if DPF == 7:
        a(f"""
        s_cmp_eq_u32 s{sLI}, 0
        s_cbranch_scc0 L_e1
        v_and_b32 v{vT[5]}, 7, v{vL}
        v_lshrrev_b32 v{vT[4]}, 3, v{vL}
        v_mul_u32_u24 v{vT[4]}, 1152, v{vT[4]}
        v_lshl_add_u32 v{vT[5]}, v{vT[5]}, 7, v{vT[4]}
        s_mul_i32 s{sT}, s2, {8*1152}
        buffer_load_dword v{vT[6]}, v{vT[5]}, s[{SX}:{SX+3}], s{sT} offen offset:128
        s_branch L_e4
        L_e1:
        s_cmp_eq_u32 s{sLI}, 3
        s_cbranch_scc1 L_e2
        v_lshlrev_b32 v{vT[5]}, 7, v{vL}
        s_and_b32 s{sT}, s{sP}, 15
        s_lshl_b32 s{sT}, s{sT}, 3
        s_add_u32 s{sT}, s{sT}, s{sTG}
        s_lshl_b32 s{sT}, s{sT}, 1
        s_add_u32 s{sT}, s{sT}, s{sLI}
        s_mul_i32 s{sT}, s{sT}, {2*3456}
        s_add_u32 s{sT}, s{sT}, {62*3456}
        s_mov_b32 exec_hi, 0x3fffff
        buffer_load_dword v{vT[6]}, v{vT[5]}, s[{SW}:{SW+3}], s{sT} offen
        s_branch L_e4
        L_e2:
        v_lshlrev_b32 v{vT[5]}, 20, v{vL}
        s_lshl_b32 s{sT}, s2, 7
        s_mov_b64 exec, 0xffff
        buffer_load_dword v{vT[6]}, v{vT[5]}, s[{SWS}:{SWS+3}], s{sT} offen sc1
        L_e4:
        s_mov_b64 exec, -1
        """)
        pre = int(os.environ.get("PRE", "0"))
        if pre:
            a(dma_x(1))
    else:
        a(f"""
        s_cmp_eq_u32 s{sLI}, 0
        s_cbranch_scc0 L_e1
        v_and_b32 v{vT[5]}, 1, v{vL}
        v_bfe_u32 v{vT[4]}, v{vL}, 1, 3
        v_mul_u32_u24 v{vT[4]}, 1152, v{vT[4]}
        v_lshl_add_u32 v{vT[5]}, v{vT[5]}, 7, v{vT[4]}
        s_mul_i32 s{sT}, s2, {8*1152}
        s_mov_b64 exec, 0xffff
        buffer_load_dword v{vT[6]}, v{vT[5]}, s[{SX}:{SX+3}], s{sT} offen offset:256
        s_branch L_e4
        L_e1:
        s_cmp_eq_u32 s{sLI}, 1
        s_cbranch_scc0 L_e2
        v_lshlrev_b32 v{vT[5]}, 7, v{vL}
        s_and_b32 s{sT}, s{sP}, 15
        s_lshl_b32 s{sT}, s{sT}, 3
        s_add_u32 s{sT}, s{sT}, s{sTG}
        s_mul_i32 s{sT}, s{sT}, 3456
        s_add_u32 s{sT}, s{sT}, {128*3456}
        s_mov_b64 exec, 0x7ffffff
        buffer_load_dword v{vT[6]}, v{vT[5]}, s[{SW}:{SW+3}], s{sT} offen
        s_branch L_e4
        L_e2:
        s_mov_b64 exec, 1
        buffer_load_ushort v{vT[6]}, v{vT[0]}, s[{SG}:{SG+3}], 0 offen
        L_e4:
        s_mov_b64 exec, -1
        """)
        a(dma_x(1)); a(dma_w(1))
    stamp(a, 5, mode=9)
    a(f"""
    v_lshlrev_b32 v{vT[2]}, 2, v{vL}
    v_add_u32 v{vT[2]}, {SYNC}, v{vT[2]}
    v_mov_b32 v{CP}, 0
    v_mov_b32 v{CP+1}, 0
    v_mov_b32 v{CP+2}, 0
    v_mov_b32 v{CP+3}, 0
    ds_write_b32 v{vT[2]}, v{CP}
    s_min_u32 s{sT}, s{sLI}, 2
    s_mul_i32 s{sT}, s{sT}, {G_SLOT}
    v_add_u32 v{vT[2]}, s{sT}, v{vGA}
    s_cmp_eq_u32 s{sLI}, 3
    s_cbranch_scc1 L_nz
    ds_write_b128 v{vT[2]}, {vr(CP,4)}
    L_nz:
    s_waitcnt vmcnt({13 if DPF != 7 else 9 if pre else 1})
    """)
    for n in range(3):
        a(gate_write(n))
    stamp(a, 6, mode=9)
    a("s_waitcnt lgkmcnt(0)")
    stamp(a, 7, mode=9)
    a("s_barrier")
    stamp(a, 8, mode=9)
    stamp(a, 1)
    if DPF == 7:
        if not pre:
            a(dma_x(1))
        a(dma_w(1))
    a(dma_x(2)); a(dma_w(2))
    if DPF == 4:
        a(f"""
        s_cmp_eq_u32 s{sLI}, 0
        s_cbranch_scc0 L_lp1
        v_and_b32 v{vT[5]}, 7, v{vL}
        v_min_u32 v{vT[5]}, 4, v{vT[5]}
        v_lshrrev_b32 v{vT[4]}, 3, v{vL}
        v_mul_u32_u24 v{vT[4]}, 1152, v{vT[4]}
        v_lshl_add_u32 v{vT[5]}, v{vT[5]}, 7, v{vT[4]}
        s_mul_i32 s{sT}, s2, {8*1152}
        buffer_load_dword v{vT[6]}, v{vT[5]}, s[{SX}:{SX+3}], s{sT} offen offset:512
        s_branch L_lp2
        L_lp1:
        v_min_u32 v{vT[5]}, 23, v{vL}
        v_lshlrev_b32 v{vT[5]}, 7, v{vT[5]}
        s_and_b32 s{sT}, s{sP}, 15
        s_lshl_b32 s{sT}, s{sT}, 3
        s_add_u32 s{sT}, s{sT}, s{sTG}
        s_mul_i32 s{sT}, s{sT}, 3
        s_add_u32 s{sT}, s{sT}, s{sLI}
        s_mul_i32 s{sT}, s{sT}, {320*3456 // 384}
        s_add_u32 s{sT}, s{sT}, {256*3456 - 320*3456 // 384}
        buffer_load_dword v{vT[6]}, v{vT[5]}, s[{SW}:{SW+3}], s{sT} offen
        L_lp2:
        """)
    vN = 24
    a(f"""
    s_lshl_b32 s{sT}, s{sP}, 12
    s_add_u32 s{sT}, s{sT}, {FLAG_OFF}
    v_lshlrev_b32 v{vN}, 7, v{vL}
    v_add_u32 v{vN}, s{sT}, v{vN}
    v_and_b32 v{vN+1}, 7, v{vL}
    v_lshlrev_b32 v{vN+1}, 12, v{vN+1}
    s_lshl_b32 s{sT}, s{sP}, 7
    s_add_u32 s{sT}, s{sT}, {OFLAG_OFF}
    v_cmp_gt_u32 vcc, 32, v{vL}
    v_add_u32 v{vN+1}, s{sT}, v{vN+1}
    s_cmp_eq_u32 s{sLI}, 3
    v_cndmask_b32 v{vN}, v{vN+1}, v{vN}, vcc
    s_cselect_b32 exec_lo, -1, 1
    s_cselect_b32 exec_hi, 0xff, 0
    buffer_load_dword v{vN+1}, v{vN}, s[{SWS}:{SWS+3}], 0 offen sc1
    s_mov_b64 exec, -1
    """)
    for n in range(8):
        extra = (2 if DPF == 4 else 1) if n < 2 else 1 if n >= 6 else 0
        a(f"s_waitcnt vmcnt({(12 if n + 2 <= 8 else 0) + extra}) lgkmcnt(0)")
        if STAMPS == 7:
            a(f"s_memtime s[90:91]\ns_waitcnt lgkmcnt(0)\ns_barrier\ns_memtime s[94:95]\ns_waitcnt lgkmcnt(0)\ns_sub_u32 s90, s94, s90\ns_add_u32 s{74+2*n}, s90, s72")
        elif STAMPS == 8:
            a(f"s_barrier\ns_memtime s[{74+2*n}:{75+2*n}]")
        else:
            a("s_barrier")
        if n + 3 <= 8:
            a(gate_write(n + 3))
            a(dma_x(n + 3)); a(dma_w(n + 3))
        if n == 5:
            a(f"""
            s_brev_b32 s{sA}, 1
            s_movk_i32 s{sB}, 0x400
            s_cmp_eq_u32 s{sLI}, 3
            s_cbranch_scc0 L_nn1
            s_mov_b32 s44, -1
            s_movk_i32 s45, 0xff
            """)
            for b in range(6):
                a(f"""
                v_and_b32 v{vN}, {1 << b}, v{vN+1}
                v_cmp_ne_u32 vcc, 0, v{vN}
                s_nop 0
                s_and_b64 s[46:47], s[44:45], vcc
                s_andn2_b64 s[44:45], s[44:45], vcc
                s_bcnt1_i32_b64 s{sT}, s[46:47]
                s_bcnt1_i32_b64 s{sT2}, s[44:45]
                s_cmp_lt_u32 s{sT}, s{sT2}
                s_cselect_b64 s[44:45], s[46:47], s[44:45]
                s_cselect_b32 s{sT}, {1 << b}, 0
                s_or_b32 s{sA}, s{sA}, s{sT}
                """)
            a(f"""
            s_lshl_b32 s{sB}, s{sP}, 2
            L_nn1:
            v_mov_b32 v{vN}, s{sA}
            v_mov_b32 v{vN+1}, 0
            v_mov_b32 v{vN+2}, s{sA}
            v_mov_b32 v{vN+3}, s{sB}
            s_mov_b64 exec, 1
            buffer_atomic_cmpswap v[{vN}:{vN+1}], v{vN+3}, s[{SD}:{SD+3}], 0 offen sc0 sc1
            s_mov_b64 exec, -1
            """)
        if n == 6:
            lab = a.label("L_cr")
            a(f"""
            s_cmp_ge_u32 s{sLI}, 2
            s_cbranch_scc1 {lab}
            s_cmp_eq_u32 s{sLI}, 0
            s_cselect_b32 s{sT}, 0x3f803f80, 0
            s_cselect_b32 s{sT2}, {14*16}, 0
            s_add_u32 s{sT2}, s{sT2}, {2560 + 4*16}
            v_and_b32 v{vT[0]}, 7, v{vL}
            v_mul_u32_u24 v{vT[0]}, {VH}, v{vT[0]}
            v_lshrrev_b32 v{vT[2]}, 3, v{vL}
            v_mul_u32_u24 v{vT[2]}, {TILE}, v{vT[2]}
            v_lshrrev_b32 v{vT[3]}, 4, v{vL}
            v_lshl_add_u32 v{vT[2]}, v{vT[3]}, 9, v{vT[2]}
            v_add3_u32 v{vT[0]}, v{vT[0]}, v{vT[2]}, s{sT2}
            v_mov_b32 v{CP}, s{sT}
            v_mov_b32 v{CP+1}, s{sT}
            v_mov_b32 v{CP+2}, s{sT}
            v_mov_b32 v{CP+3}, s{sT}
            ds_write_b128 v{vT[0]}, {vr(CP,4)}
            {lab}:
            """)
    a(f"""
    s_load_dwordx2 s[{SWA}:{SWA+1}], s[0:1], 16          ; A_wo
    s_load_dwordx2 s[{SWB}:{SWB+1}], s[0:1], 40          ; B_wo
    s_load_dwordx2 s[{SO}:{SO+1}], s[0:1], 56            ; out
    s_mov_b32 s{SWA+2}, {WO_BYTES}
    s_mov_b32 s{SWB+2}, {WO_BYTES}
    s_mov_b32 s{SO+2}, {XBYTES}
    s_mov_b32 s{sU}, 0
    s_mov_b32 s{sD3}, {(RING[1]-RING[0]) & 0xffffffff:#x}
    s_mov_b32 s{sD3+1}, {(RING[2]-RING[1]) & 0xffffffff:#x}
    s_mov_b32 s{sD3+2}, {(RING[0]-RING[2]) & 0xffffffff:#x}
    s_mul_i32 s{sT}, s{sLI}, {TPAIR}
    v_add_u32 v{vT[0]}, s{sT}, v{vL16}
    s_add_u32 s{sKVp}, s{sKVp}, s{sT}
    s_mov_b32 s{sM0x}, s{sT}
    s_mul_i32 s{sA}, s{sTG}, {CHUNK}
    s_add_u32 s{sA}, s{sA}, s{sKVp}
    s_lshl_b32 s{sT}, s{sLI}, 10
    s_lshl_b32 s{sB}, s{sP}, 12
    s_add_u32 s{sB}, s{sB}, s{sT}
    s_add_u32 s{sWb}, s{sB}, {FLAG_OFF}
    v_and_b32 v{vFo}, 7, v{vL}
    v_lshlrev_b32 v{vFo}, 7, v{vFo}
    v_mov_b32 v{vT[1]}, {SYNC + 52}
    s_lshl_b32 s{sT}, s{sTG}, 7
    v_mov_b32 v{vT[2]}, s{sT}
    v_lshrrev_b32 v{vT[3]}, 3, v{vL}
    v_mul_u32_u24 v{vT[3]}, 1152, v{vT[3]}
    v_bfe_u32 v{vT[4]}, v{vL}, 4, 1
    v_lshlrev_b32 v{vT[4]}, 2, v{vT[4]}
    v_and_b32 v{vT[5]}, 7, v{vL}
    v_xor_b32 v{vT[5]}, v{vT[5]}, v{vT[4]}
    v_lshl_add_u32 v{vWO}, v{vT[5]}, 4, v{vT[3]}
    s_waitcnt lgkmcnt(0)
    s_barrier
    """)
    stamp(a, 3, True)
    for i in range(10):
        a(f"ds_read_b128 {vr(CP+4*i,4)}, v{vT[0]} offset:{1024*i}")
    for i in range(10):
        if i == 9:
            a("s_mov_b32 exec_hi, 0")
        if i in (4, 8):
            a(f"s_add_u32 s{sA}, s{sA}, 4096")
        a(f"s_waitcnt lgkmcnt({9-i})")
        a(f"buffer_store_dwordx4 {vr(CP+4*i,4)}, v{vL16}, s[{SWS}:{SWS+3}], s{sA} offen offset:{1024*(i&3)} sc1")
    a(f"""
    s_mov_b64 exec, 1
    s_cmp_eq_u32 s{sLI}, 3
    s_cbranch_scc0 L_nn2
    s_waitcnt vmcnt(10)
    v_cmp_eq_u32 vcc, 0, v{vN}
    s_nop 1
    v_cndmask_b32 v{vN}, v{vN}, v{vN+2}, vcc
    ds_write_b32 v{vT[1]}, v{vN}
    L_nn2:
    ds_read_b32 v{vF}, v{vT[1]}
    s_waitcnt lgkmcnt(0)
    v_cmp_eq_u32 vcc, 0, v{vF}
    s_cbranch_vccnz L_nn2
    v_readfirstlane_b32 s{sNON}, v{vF}
    s_waitcnt vmcnt(0)
    buffer_store_dword v{vF}, v{vT[2]}, s[{SWS}:{SWS+3}], s{sWb} offen sc1
    s_mov_b64 exec, -1
    s_mov_b32 s{sRDY}, 0
    s_mov_b32 s{sN}, 0
    s_lshl_b32 s{sXb}, 1, s{sTG}
    L_ll:
    s_add_u32 s{sM0x}, s{sM0x}, s{sD3}
    s_mov_b32 s{sT}, s{sD3}
    s_mov_b32 s{sD3}, s{sD3+1}
    s_mov_b32 s{sD3+1}, s{sD3+2}
    s_mov_b32 s{sD3+2}, s{sT}
    L_poll:
    s_andn2_b32 s{sT}, s{sRDY}, s{sXb}
    s_cbranch_scc1 L_rdy
    buffer_load_dword v{vF}, v{vFo}, s[{SWS}:{SWS+3}], s{sWb} offen sc1
    s_waitcnt vmcnt(0)
    v_cmp_eq_u32 vcc, s{sNON}, v{vF}
    s_sub_u32 s{sSPIN}, s{sSPIN}, 1
    s_nop 0
    s_cselect_b32 s{sRDY}, -1, vcc_lo
    s_and_b32 s{sRDY}, s{sRDY}, 0xff
    s_branch L_poll
    L_rdy:
    s_ff1_i32_b32 s{sC}, s{sT}
    s_bitset1_b32 s{sXb}, s{sC}
    s_mul_i32 s{sA}, s{sC}, {CHUNK}
    s_add_u32 s{sA}, s{sA}, s{sKVp}
    """)
    for i in range(10):
        if i % 4 == 0:
            a(f"s_add_u32 m0, s{sM0x}, {1024*i}")
            a(f"s_add_u32 s{sT}, s{sA}, {1024*i}")
        if i == 9:
            a("s_mov_b32 exec_hi, 0")
        if True:
            a(f"buffer_load_dwordx4 v{vL16}, s[{SWS}:{SWS+3}], s{sT} offen offset:{1024*(i&3)} sc1 lds")
    a(f"""
    s_mov_b32 exec_hi, -1
    L_d9:
    s_cmp_eq_u32 s{sN}, 1
    s_cbranch_scc0 L_ncl
    s_lshl_b32 s{sT}, s{sTG}, 3
    s_lshl_b32 s{sT2}, s{sLI}, 1
    s_add_u32 s{sT}, s{sT}, s{sT2}
    s_mul_i32 s{sA}, s{sT}, {OTILE}
    s_mul_i32 s{sT}, s{sP}, {OPAIR}
    s_add_u32 s{sA}, s{sA}, s{sT}
    s_add_u32 s{sA}, s{sA}, {O_OFF}
    s_add_u32 s{sB}, s{sA}, {OTILE}
    v_mov_b32 v{CP}, -1
    v_mov_b32 v{CP+1}, -1
    v_mov_b32 v{CP+2}, -1
    v_mov_b32 v{CP+3}, -1
    buffer_store_dwordx4 {vr(CP,4)}, v{vL16}, s[{SWS}:{SWS+3}], s{sA} offen sc1
    buffer_store_dwordx4 {vr(CP,4)}, v{vL16}, s[{SWS}:{SWS+3}], s{sA} offen offset:1024 sc1
    buffer_store_dwordx4 {vr(CP,4)}, v{vL16}, s[{SWS}:{SWS+3}], s{sB} offen sc1
    buffer_store_dwordx4 {vr(CP,4)}, v{vL16}, s[{SWS}:{SWS+3}], s{sB} offen offset:1024 sc1
    s_mov_b64 exec, 0xffff
    buffer_store_dwordx4 {vr(CP,4)}, v{vL16}, s[{SWS}:{SWS+3}], s{sA} offen offset:2048 sc1
    buffer_store_dwordx4 {vr(CP,4)}, v{vL16}, s[{SWS}:{SWS+3}], s{sB} offen offset:2048 sc1
    s_mov_b64 exec, -1
    L_ncl:
    s_cmp_eq_u32 s{sLI}, 0
    s_cbranch_scc0 L_nfl
    s_cmp_eq_u32 s{sN}, 2
    s_cbranch_scc0 L_n2
    s_lshl_b32 s{sT}, s{sTG}, 12
    s_lshl_b32 s{sT2}, s{sP}, 7
    s_add_u32 s{sT}, s{sT}, s{sT2}
    s_add_u32 s{sT}, s{sT}, {OFLAG_OFF}
    v_mov_b32 v{vT[3]}, 0
    v_mov_b32 v{vF}, s{sNON}
    s_mov_b64 exec, 1
    buffer_store_dword v{vF}, v{vT[3]}, s[{SWS}:{SWS+3}], s{sT} offen sc1
    s_mov_b64 exec, -1
    L_n2:
    s_cmp_eq_u32 s{sN}, {CLAIM}
    s_cbranch_scc0 L_nfl
    s_and_b32 s{sA}, s2, 7
    v_and_b32 v{vT[5]}, 7, v{vL}
    v_lshlrev_b32 v{vT[4]}, 2, v{vT[5]}
    L_cl:
    s_lshl_b32 s{sT}, s{sA}, 2
    v_mov_b32 v{vT[3]}, s{sT}
    v_mov_b32 v{vF}, 1
    s_mov_b64 exec, 1
    buffer_atomic_add v{vF}, v{vT[3]}, s[{SD}:{SD+3}], 0 offen offset:128 sc0 sc1
    s_mov_b64 exec, -1
    s_waitcnt vmcnt(0)
    v_readfirstlane_b32 s{sB}, v{vF}
    s_nop 3
    s_cmp_lt_u32 s{sB}, 27
    s_cbranch_scc1 L_cl2
    """)
    if STEAL:
        a(f"""
        buffer_load_dword v{vF}, v{vT[4]}, s[{SD}:{SD+3}], 0 offen offset:128 sc1
        s_waitcnt vmcnt(0)
        v_lshl_or_b32 v{vF}, v{vF}, 3, v{vT[5]}
        s_nop 0
        v_readlane_b32 s{sA}, v{vF}, 0
        """)
        for q in range(1, 8):
            a(f"v_readlane_b32 s{sT}, v{vF}, {q}\ns_nop 3\ns_min_u32 s{sA}, s{sA}, s{sT}")
        a(f"""
        s_lshr_b32 s{sT}, s{sA}, 3
        s_and_b32 s{sA}, s{sA}, 7
        s_sub_u32 s{sSPIN}, s{sSPIN}, 1
        s_cselect_b32 s{sT}, 27, s{sT}
        s_cmp_lt_u32 s{sT}, 27
        s_cbranch_scc1 L_cl
        s_mov_b32 s{sSPIN}, {SPIN_LIMIT}
        """)
    a(f"""
    s_movk_i32 s{sB}, 0xff
    L_cl2:
    s_lshl_b32 s{sA}, s{sA}, 8
    s_or_b32 s{sA}, s{sA}, s{sB}
    v_mov_b32 v{vF}, s{sA}
    v_mov_b32 v{vT[3]}, {SYNC + 48}
    ds_write_b32 v{vT[3]}, v{vF}
    s_waitcnt lgkmcnt(0)
    L_nfl:
    s_cmp_eq_u32 s{sN}, {CLAIM + 1}
    s_cbranch_scc0 L_nw3
    v_mov_b32 v{vT[3]}, {SYNC + 48}
    ds_read_b32 v{vF}, v{vT[3]}
    s_waitcnt lgkmcnt(0)
    """)
    unit_decode(vF)
    a(f"""
    s_cmp_ge_u32 s{sU}, 27
    s_cbranch_scc1 L_on1
    s_lshl_b32 s{sT}, s{sCG}, 7
    v_add_u32 v{vWO}, s{sT}, v{vWO}
    """)
    wo_load(38, 42)
    wo_load(80, 121)
    a(f"""
    L_nw3:
    s_cmp_eq_u32 s{sN}, 6
    s_cbranch_scc0 L_on1
    s_cmp_ge_u32 s{sU}, 27
    s_cbranch_scc1 L_on1
    v_mul_u32_u24 v{vT[3]}, 1152, v{vL}
    s_lshl_b32 s{sT}, s{sCG}, 7
    s_mul_i32 s{sT2}, s{sLI}, {48*1152}
    s_add_u32 s{sT2}, s{sT2}, s{sT}
    s_add_u32 s{sT2}, s{sT2}, {392*1152}
    buffer_load_dword v{vT[4]}, v{vT[3]}, s[{SWB}:{SWB+3}], s{sT2} offen
    """)
    if TLBW:
        a(f"""
        s_mul_i32 s{sT}, s{sTG2}, {256*1152}
        v_lshlrev_b32 v{vT[3]}, 2, v{vT[3]}
        buffer_load_dword v{vT[4]}, v{vT[3]}, s[{SO}:{SO+3}], s{sT} offen
        """)
    a(f"""
    v_and_b32 v{vT[0]}, 31, v{vL}
    v_lshlrev_b32 v{vT[3]}, 7, v{vT[0]}
    v_lshlrev_b32 v{vT[0]}, 2, v{vT[0]}
    s_lshl_b32 s{sB}, s{sTG2}, 12
    s_add_u32 s{sB}, s{sB}, {OFLAG_OFF}
    L_on0:
    buffer_load_dword v{vF}, v{vT[0]}, s[{SD}:{SD+3}], 0 offen sc1
    buffer_load_dword v{vT[4]}, v{vT[3]}, s[{SWS}:{SWS+3}], s{sB} offen sc1
    s_waitcnt vmcnt(0)
    v_cmp_le_i32 vcc, 0, v{vF}
    v_cmp_ne_u32 s[44:45], v{vF}, v{vT[4]}
    s_sub_u32 s{sSPIN}, s{sSPIN}, 1
    s_cbranch_scc1 L_on1
    s_or_b64 vcc, vcc, s[44:45]
    s_cbranch_vccz L_on1
    s_sleep 8
    s_branch L_on0
    L_on1:
    s_waitcnt vmcnt(0)
    """)
    if STAMPS == 1:
        a(f"s_cmp_eq_u32 s{sN}, 0\ns_cbranch_scc0 L_st4")
        stamp(a, 4)
        a("L_st4:")
    if STAMPS == 6:
        a("s_barrier\ns_memtime s[88:89]\ns_waitcnt lgkmcnt(0)")
        for q in range(7):
            a(f"s_cmp_eq_u32 s{sN}, {q}\ns_cselect_b32 s{74+2*q}, s88, s{74+2*q}")
    elif STAMPS == 5:
        a("s_memtime s[88:89]\ns_waitcnt lgkmcnt(0)\ns_barrier\ns_memtime s[90:91]\ns_waitcnt lgkmcnt(0)\ns_sub_u32 s88, s90, s88\ns_add_u32 s88, s88, s72")
        for q in range(7):
            a(f"s_cmp_eq_u32 s{sN}, {q}\ns_cselect_b32 s{74+2*q}, s88, s{74+2*q}")
    else:
        a("s_barrier")
    a(f"""
    s_add_u32 s{sN}, s{sN}, 1
    s_cmp_lt_u32 s{sN}, 7
    s_cbranch_scc1 L_ll
    s_mov_b32 s{sSPIN}, {SPIN_LIMIT}
    s_cmp_ge_u32 s{sU}, 27
    s_cbranch_scc1 L_end
    """)
    wo_load(0, 38)
    wo_load(42, 72)
    wo_load(72, 80)
    a(f"""
    v_and_b32 v12, 7, v{vL}
    v_lshlrev_b32 v12, 2, v12
    v_add_u32 v12, {SYNC}, v12
    L_pg:
    s_sleep 2
    ds_read_b32 v13, v12
    s_waitcnt lgkmcnt(0)
    v_cmp_gt_u32 vcc, 7, v13
    s_cbranch_vccnz L_pg
    """)
    wo_load(121, 144)
    a(f"""
    s_lshl_b32 s{sT}, s{sLI}, 2
    s_add_u32 s{sT}, s{sT}, {SYNC + 32}
    v_mov_b32 v12, s{sT}
    v_mov_b32 v13, 8
    s_waitcnt vmcnt(0)
    ds_write_b32 v12, v13
    s_setprio 0
    s_branch L_tail
    """)
    a.sec("tail")

    vOH = 5
    vWm = [3, 4]; vWh = [8, 9]
    vT = [10, 11, 12, 13, 14, 6]
    vPw, vPr, vOut, vPr2, vDw, vDr = 163, 164, 165, 166, 167, 7
    WS_ = [16, 32]
    OF = 56
    ACC = [128, 144]
    DEPTH = int(os.environ.get("DEPTH", "2"))
    TPRIO = int(os.environ.get("TPRIO", "0"))

    def omain(i, j):
        return OF + 8 * i + 4 * j
    OHI = OF + 64

    def issue(i):
        a(f"""
        s_add_u32 s{sT}, s{sFl}, {i*OPAIR}
        buffer_load_dwordx4 {vr(omain(i,0),4)}, v{vL16}, s[{SWS}:{SWS+3}], s{sT} offen sc1
        buffer_load_dwordx4 {vr(omain(i,1),4)}, v{vL16}, s[{SWS}:{SWS+3}], s{sT} offen offset:1024 sc1
        buffer_load_dword v{OHI+i}, v{vOH}, s[{SWS}:{SWS+3}], s{sT} offen offset:2048 sc1
        """)

    a(f"""
    L_tail:
    s_cmp_ge_u32 s{sU}, 27
    s_cbranch_scc1 L_end
    s_cmp_ge_u32 s{sT0}, 8
    s_cbranch_scc1 L_end
    v_lshlrev_b32 v{vOH}, 2, v{vL}
    s_mov_b32 s{sI}, 0
    v_min_u32 v{vT[2]}, 11, v{vL}
    """)
    if LEARLY:
        a(f"""
        s_cmp_lt_u32 s{sWV}, 4
        s_cselect_b32 s{sT}, 8, 0
        v_max_u32 v{vT[2]}, s{sT}, v{vT[2]}
        """)
    a(f"""
    v_lshlrev_b32 v{vT[2]}, 2, v{vT[2]}
    v_add_u32 v{vT[2]}, {SYNC}, v{vT[2]}
    L_ws1:
    ds_read_b32 v{vT[3]}, v{vT[2]}
    s_waitcnt lgkmcnt(0)
    v_cmp_gt_u32 vcc, 8, v{vT[3]}
    s_cbranch_vccz L_go
    s_sleep 1
    s_branch L_ws1
    L_go:
    """)
    stamp(a, 3, mode=3)
    if TPRIO:
        a("s_setprio 3")
    for i in range(DEPTH):
        issue(i)
    a(f"""
    v_and_b32 v{vT[0]}, 31, v{vL}                ; tau
    v_lshrrev_b32 v{vT[1]}, 5, v{vL}             ; h
    v_bfe_u32 v{vT[2]}, v{vL}, 2, 2              ; r
    v_and_b32 v{vT[3]}, 3, v{vL}                 ; c
    v_bfe_u32 v{vT[4]}, v{vL}, 4, 1              ; sub
    v_lshlrev_b32 v{vT[3]}, 3, v{vT[3]}
    v_lshl_add_u32 v{vT[3]}, v{vT[4]}, 5, v{vT[3]}
    s_mul_i32 s{sT}, s{sKQ}, {288*128}
    v_add_u32 v{vT[3]}, s{sT}, v{vT[3]}
    v_lshrrev_b32 v{vT[4]}, 1, v{vT[2]}          ; r>>1
    v_lshl_add_u32 v{vT[5]}, v{vT[1]}, 2, v{vT[2]}
    v_lshl_add_u32 v{vT[5]}, v{vT[5]}, 7, v{vT[3]}
    v_lshl_add_u32 v{vWm[0]}, v{vT[4]}, 6, v{vT[5]}
    v_xor_b32 v{vWm[1]}, 64, v{vWm[0]}
    v_lshl_add_u32 v{vT[5]}, v{vT[4]}, 1, v{vT[1]}
    v_mul_u32_u24 v{vT[5]}, 18, v{vT[5]}
    v_and_b32 v{vT[2]}, 1, v{vT[2]}
    v_add3_u32 v{vT[5]}, v{vT[5]}, v{vT[2]}, 16
    v_lshl_add_u32 v{vT[5]}, v{vT[5]}, 7, v{vT[3]}
    v_lshl_add_u32 v{vWh[0]}, v{vT[1]}, 6, v{vT[5]}
    v_xor_b32 v{vWh[1]}, 64, v{vWh[0]}
    s_lshl_b32 s{sT}, s{sTT}, 13
    s_mul_i32 s{sT2}, s{sKQ}, {288*128}
    s_add_u32 s{sA}, s{sT}, s{sT2}
    v_add_u32 v{vPw}, s{sA}, v{vL16}
    s_lshl_b32 s{sT2}, s{sKQ}, 11
    s_add_u32 s{sA}, s{sT}, s{sT2}
    v_add_u32 v{vPr}, s{sA}, v{vL16}
    v_add_u32 v{vPr2}, {2*288*128}, v{vPr}
    s_lshl_b32 s{sT}, s{sWV}, 2
    s_add_u32 s{sT}, s{sT}, {SYNC + 64}
    v_mov_b32 v{vDw}, s{sT}
    s_sub_u32 s{sT}, s{sT0}, s{sTT}
    s_cmp_eq_u32 s{sT}, 6
    s_cselect_b32 s{sT}, 1, 2
    v_min_u32 v{vDr}, s{sT}, v{vL}
    s_mul_i32 s{sT}, s{sKQ}, 12
    s_add_u32 s{sT}, s{sT}, {SYNC + 64}
    v_lshlrev_b32 v{vDr}, 2, v{vDr}
    v_add_u32 v{vDr}, s{sT}, v{vDr}
    s_lshl_b32 s{sT}, s{sTG2}, 8
    s_lshl_b32 s{sT2}, s{sT0}, 5
    s_add_u32 s{sT}, s{sT}, s{sT2}
    s_mul_i32 s{sOm}, s{sT}, 1152
    s_lshl_b32 s{sT}, s{sCG}, 7
    s_add_u32 s{sOm}, s{sOm}, s{sT}
    s_lshl_b32 s{sT}, s{sKQ}, 5
    s_add_u32 s{sOm}, s{sOm}, s{sT}
    v_mul_u32_u24 v{vOut}, 1152, v{vT[0]}
    v_lshl_add_u32 v{vOut}, v{vT[1]}, 4, v{vOut}
    """)
    for r in range(ACC[0], ACC[0] + 32):
        a(f"v_mov_b32 v{r}, 0")
    stamp(a, 7)
    stamp(a, 4, mode=3)

    def wreads(blk, st):
        for f in range(2):
            b = WS_[st] + 8 * f
            m = 2 * blk + f
            for ct in range(2):
                if m < 16:
                    ad = vWm[ct ^ (m & 1)]
                    o0 = m * 18 * 128; o1 = o0 + 8 * 128
                else:
                    ad = vWh[ct]
                    o0 = (m - 16) * 8 * 18 * 128; o1 = o0 + 4 * 18 * 128
                a(f"ds_read_b64_tr_b16 {vr(b+4*ct,2)}, v{ad} offset:{o0}")
                a(f"ds_read_b64_tr_b16 {vr(b+4*ct+2,2)}, v{ad} offset:{o1}")

    def verify(i, skip):
        o0, o1 = omain(i, 0), omain(i, 1)
        a(f"""
        v_max3_u32 v{vT[2]}, v{o0}, v{o0+1}, v{o0+2}
        v_max3_u32 v{vT[3]}, v{o0+3}, v{o1}, v{o1+1}
        v_max3_u32 v{vT[2]}, v{vT[2]}, v{o1+2}, v{o1+3}
        v_max3_u32 v{vT[2]}, v{vT[2]}, v{vT[3]}, v{OHI+i}
        v_cmp_eq_u32 vcc, -1, v{vT[2]}
        s_cbranch_vccnz {skip}
        s_bitset1_b32 s{sI}, {i}
        """)

    def mm(st, o0, o1):
        for f, o in ((0, o0), (1, o1)):
            for ct in range(2):
                a(f"v_mfma_f32_32x32x16_bf16 {vr(ACC[ct],16)}, {vr(WS_[st]+8*f+4*ct,4)}, {vr(o,4)}, {vr(ACC[ct],16)}")

    wreads(0, 0)
    for i in range(8):
        a(f"s_waitcnt vmcnt({3*min(DEPTH-1, 7-i)}) lgkmcnt(0)")
        wreads(i + 1, (i + 1) & 1)
        verify(i, f"L_s{i}")
        mm(i & 1, omain(i, 0), omain(i, 1))
        a(f"L_s{i}:")
        if TPRIO and i in (0, 2, 4):
            a(f"s_setprio {2 - i // 2}")
        if i + DEPTH < 8:
            issue(i + DEPTH)
    a(f"""
    L_chk:
    s_cmp_eq_u32 s{sI}, 0xff
    s_cbranch_scc0 L_round
    L_hi:
    v_mov_b32 v{vT[2]}, 1
    s_waitcnt lgkmcnt(0)
    ds_write_b32 v{vDw}, v{vT[2]}
    """)
    mm(0, OHI, OHI + 4)
    stamp(a, 8)
    stamp(a, 7, mode=3)
    a(f"""
    L_qs:
    ds_read_b32 v{vT[3]}, v{vDr}
    s_waitcnt lgkmcnt(0)
    v_cmp_eq_u32 vcc, 0, v{vT[3]}
    s_cbranch_vccnz L_qs
    s_nop 6
    """)
    for i in range(8):
        a(f"ds_write_b128 v{vPw}, {vr(ACC[0]+4*i,4)} offset:{1024*i}")
    a("s_waitcnt lgkmcnt(0)")
    a("s_barrier                                    ; BT4")
    stamp(a, 8, True, mode=3)
    for src in range(4):
        for g in range(2):
            a(f"ds_read_b128 {vr(OF+8*src+4*g,4)}, v{vPr if src < 2 else vPr2} offset:{(src&1)*288*128 + g*1024}")
    a("s_waitcnt lgkmcnt(4)")
    for q in range(8):
        a(f"v_add_f32 v{OF+q}, v{OF+q}, v{OF+8+q}")
    a("s_waitcnt lgkmcnt(0)")
    for q in range(8):
        a(f"v_add_f32 v{OF+16+q}, v{OF+16+q}, v{OF+24+q}")
    for q in range(8):
        a(f"v_add_f32 v{OF+q}, v{OF+q}, v{OF+16+q}")
    for i in range(4):
        a(f"v_cvt_pk_bf16_f32 v{WS_[0]+i}, v{OF+2*i}, v{OF+2*i+1}")
    a(f"""
    s_nop 1
    v_permlane32_swap_b32 v{WS_[0]}, v{WS_[0]+2}
    v_permlane32_swap_b32 v{WS_[0]+1}, v{WS_[0]+3}
    buffer_store_dwordx4 {vr(WS_[0],4)}, v{vOut}, s[{SO}:{SO+3}], s{sOm} offen {os.environ.get('OUTF', '')}
    """)
    stamp(a, 9, mode=3)
    a("s_branch L_end")
    a(f"""
    L_round:
    s_sub_u32 s{sSPIN}, s{sSPIN}, 1
    s_cbranch_scc1 L_hi
    {"s_sleep " + os.environ["TSLEEP"] if "TSLEEP" in os.environ else ""}
    s_not_b32 s{sBt}, s{sI}
    """)
    if int(os.environ.get("HINT", "0")):
        a(f"""
        v_and_b32 v{vT[2]}, 7, v{vL}
        v_mul_u32_u24 v{vT[2]}, {OPAIR}, v{vT[2]}
        v_bfe_u32 v{vT[3]}, v{vL}, 3, 1
        v_lshl_add_u32 v{vT[2]}, v{vT[3]}, 7, v{vT[2]}
        s_mov_b64 exec, 0xffff
        buffer_load_dword v{vT[3]}, v{vT[2]}, s[{SWS}:{SWS+3}], s{sFl} offen offset:2048 sc1
        s_waitcnt vmcnt(0)
        v_cmp_eq_u32 vcc, -1, v{vT[3]}
        s_mov_b64 exec, -1
        s_nop 0
        s_lshr_b32 s{sT}, vcc_lo, 8
        s_or_b32 s{sT}, s{sT}, vcc_lo
        s_andn2_b32 s{sBt}, s{sBt}, s{sT}
        s_and_b32 s{sBt}, s{sBt}, 0xff
        s_cbranch_scc0 L_round
        """)
    stamp(a, 5, mode=3)
    for i in range(8):
        a(f"s_bitcmp1_b32 s{sBt}, {i}\ns_cbranch_scc0 L_ni{i}")
        issue(i)
        a(f"L_ni{i}:")
    for i in range(8):
        a(f"s_bitcmp1_b32 s{sBt}, {i}\ns_cbranch_scc0 L_nc{i}")
        wreads(i, 1)
        a("s_waitcnt vmcnt(0)")
        verify(i, f"L_nc{i}")
        a("s_waitcnt lgkmcnt(0)")
        mm(1, omain(i, 0), omain(i, 1))
        a(f"L_nc{i}:")
    a("s_branch L_chk")
    a.sec("end")
    a("L_end:")
    if DIAG >= 0:
        a(f"""
        s_cmp_eq_u32 s{sWV}, 9
        s_cbranch_scc0 L_done
        s_cmp_lt_u32 s2, {os.environ.get("DIAGWG", "256")}
        s_cbranch_scc0 L_done
        s_waitcnt vmcnt(0) lgkmcnt(0)
        s_memrealtime s[82:83]
        s_waitcnt lgkmcnt(0)
        s_mov_b32 s{sT}, 0
        """)
        if DIAG > 0:
            a(f"""
            s_sub_u32 s{sT}, s{72+2*DIAG}, s96
            s_lshl_b32 s{sT}, s{sT}, 2
            s_cmp_lt_u32 s{sWV}, 4
            s_cselect_b32 s{sT}, 0, s{sT}
            """)
        a(f"""
        s_add_u32 s{sT}, s{sT}, 10000
        L_dg:
        s_sleep 8
        s_memrealtime s[98:99]
        s_waitcnt lgkmcnt(0)
        s_sub_u32 s{sT2}, s98, s96
        s_cmp_lt_u32 s{sT2}, s{sT}
        s_cbranch_scc1 L_dg
        """)
    elif STAMPS:
        a(f"""
        s_waitcnt vmcnt(0) lgkmcnt(0)
        s_memtime s[92:93]
        s_memrealtime s[98:99]
        s_waitcnt lgkmcnt(0)
        s_mov_b64 exec, 1
        s_lshl_b32 s{sT}, s2, 4
        s_add_u32 s{sT}, s{sT}, s{sWV}
        s_lshl_b32 s{sT}, s{sT}, 6
        s_add_u32 s{sT}, s{sT}, {STAMP_OFF}
        v_mov_b32 v0, 0
        """)
        for n in range(14):
            a(f"v_mov_b32 v1, s{72+2*n}")
            a(f"buffer_store_dword v1, v0, s[{SWS}:{SWS+3}], s{sT} offen offset:{4*n}")
            a("s_nop 0")
    a("""
    L_done:
    s_endpgm
    """)
    return name, NV


def main():
    out = sys.argv[1] if len(sys.argv) > 1 else f"cdna_kernels/{NAME}.s"
    a = Asm()
    k, nv = gen(a)
    hdr = open(f"cdna_kernels/{NAME}.s.ref").read().split("\n")
    hdr = [l for l in hdr if l.startswith(";") and "@launch" not in l]
    txt = "\n".join(hdr) + "\n"
    txt += f"; @launch grid=(256,1,1) block=(768,1,1) lds={LDS_BYTES}\n"
    txt += '.amdgcn_target "amdgcn-amd-amdhsa--gfx950"\n.text\n'
    txt += a.text()
    txt += f""".section .rodata,"a"
.p2align 6
.amdhsa_kernel {k}
  .amdhsa_next_free_vgpr {nv}
  .amdhsa_next_free_sgpr {102 if STAMPS else 72}
  .amdhsa_accum_offset {(nv + 3) // 4 * 4}
  .amdhsa_group_segment_fixed_size 0
  .amdhsa_kernarg_size 80
  .amdhsa_user_sgpr_count 2
  .amdhsa_user_sgpr_kernarg_segment_ptr 1
  .amdhsa_system_sgpr_workgroup_id_x 1
.end_amdhsa_kernel
"""
    open(out, "w").write(txt)


if __name__ == "__main__":
    main()
```

```python
import math, os, struct, sys

NAME = "gated_mix__mha_block__mha_block__prompt"

VH = 320
VG = 2 * VH
TILE = 2048 + 4 * VG
TPAIR = 512 + 2 * TILE
CHUNK = 4 * TPAIR


def toff(t):
    return (t >> 1) * TPAIR + (t & 1) * TILE
KV_OFF = 0
FLAG_OFF = 0x0A00000
OFLAG_OFF = 0x0A20000
O_OFF = 0x0B00000
OPAIR = 2304
OTILE = 32 * OPAIR
WS_USED = 0x1000000
XBYTES = 2048 * 576 * 2
WQKV_BYTES = 576 * 1728 * 2
WO_BYTES = 576 * 576 * 2
CSCALE = (18 ** -0.5) * math.log2(math.e)

STAMPS = int(os.environ.get("STAMPS", "0"))
STAMP_OFF = 0x1000000
if STAMPS:
    WS_USED = 0x1100000
ALIGN = int(os.environ.get("ALIGN", "1"))
STEAL = int(os.environ.get("STEAL", "1"))
TLBW = int(os.environ.get("TLBW", "2"))
DIAG = int(os.environ.get("DIAG", "-1"))
PRIOI = int(os.environ.get("PRIOI", "6"))
VMASK = int(os.environ.get("VMASK", "1"))
VPOS = int(os.environ.get("VPOS", "3"))
CLAIM = int(os.environ.get("CLAIM", "4"))
LEARLY = int(os.environ.get("LEARLY", "0"))
GMIX = int(os.environ.get("GMIX", "0"))
SHIFT = float(os.environ.get("SHIFT", "50"))
CPF = int(os.environ.get("CPF", "1"))
DPF = int(os.environ.get("DPF", "4"))

G_SLOT = 49152
LDS_BYTES = 163840
SCR = CHUNK
SYNC = LDS_BYTES - 1024
RING = [0, SYNC - CHUNK, CHUNK + 4096]
SPIN_LIMIT = 1 << 19


WMASK = ~((1 << 15) | (1 << 27) | (1 << 39) | (1 << 51)) & ((1 << 64) - 1)


def f32bits(x):
    return struct.unpack("<I", struct.pack("<f", x))[0]


class Asm:
    def __init__(self):
        self.secs = {"entry": []}
        self.lines = self.secs["entry"]
        self.nlab = 0

    def sec(self, name):
        self.lines = self.secs.setdefault(name, [])

    def __call__(self, s):
        for ln in s.strip("\n").split("\n"):
            ln = ln.strip()
            if not ln:
                continue
            if ln.endswith(":") or ln.startswith("."):
                self.lines.append(ln)
            else:
                self.lines.append("    " + ln)

    def label(self, base="L"):
        self.nlab += 1
        return f"{base}_{self.nlab}"

    def text(self):
        order = ["entry", "loader", "compute", "tail", "exact", "end"]
        assert sorted(order) == sorted(self.secs)
        return "\n".join("\n".join(self.secs[k]) for k in order) + "\n"


def isize(ln):
    t = ln.split(";")[0].strip()
    if not t or t.endswith(":"):
        return 0
    op = t.split()[0]
    if op.startswith(("v_mfma", "v_smfmac", "ds_", "buffer_")) or op.endswith("_e64"):
        return 8
    assert op in ("v_exp_f32", "v_add_u32", "v_mov_b32") or op.startswith("s_"), t
    assert "0x" not in t, t
    return 4


def align8(lines):
    out, off = [], 0
    for ln in lines:
        n = isize(ln)
        if n == 8 and off % 8:
            o = off
            for k in range(len(out) - 1, -1, -1):
                m = isize(out[k])
                if m == 8:
                    k = -1
                    break
                o -= m
                if m == 4 and o % 8 == 0 and out[k].split()[0] == "v_exp_f32":
                    out[k] = out[k].replace("v_exp_f32", "v_exp_f32_e64")
                    break
            else:
                k = -1
            if k != -1:
                off += 4
        out.append(ln)
        off += n
    return out


def vr(b, n):
    return f"v[{b}:{b+n-1}]"


def stamp(a, n, wait=False, mode=1):
    if STAMPS == mode:
        a(f"{'s_memtime' if mode in (1, 9) else 's_memrealtime'} s[{72+2*n}:{73+2*n}]")
        if wait:
            a("s_waitcnt lgkmcnt(0)")


def gen(a):
    name = NAME + "_kernel"
    a(f"""
.globl {name}
.p2align 8
.type {name},@function
{name}:
""")
    SX, SW, SWS, SG, SD = 4, 8, 12, 16, 52
    SWA, SWB, SO = 4, 8, 16
    sW_, sP, sTG, sWV, sJ, sTP = 20, 21, 22, 23, 24, 25
    sXb, sWb, sM0x, sM0w, sA, sB, sT, sT2 = 26, 27, 28, 29, 30, 31, 32, 33
    sMASK = 34
    sKVp, sC, sN, sRS = 36, 37, 38, 39
    sDl, sU, sOm, sOh = 56, 57, 58, 59
    sNON, sRDY, sFB, sSPIN = 60, 61, 62, 63
    sCG, sT0, sTT, sKQ, sTG2 = 64, 65, 66, 67, 68
    sC2 = 70
    sD3 = 48
    sLI = sWV
    vL, vL16 = 1, 2
    NV = 168
    a(f"""
    s_cmp_ge_u32 s2, 256
    s_cbranch_scc1 L_done
    """)
    if STAMPS:
        a("s_memtime s[72:73]\ns_memrealtime s[96:97]")
    a(f"""
    s_load_dwordx2 s[{SX}:{SX+1}], s[0:1], 0            ; x
    s_bitcmp1_b32 s2, 2
    s_cselect_b32 s{sT}, 32, 8
    s_load_dwordx2 s[{SW}:{SW+1}], s[0:1], s{sT}
    s_load_dwordx2 s[{SG}:{SG+1}], s[0:1], 48           ; gate_w
    s_load_dwordx2 s[{SD}:{SD+1}], s[0:1], 64           ; debug
    s_load_dwordx2 s[{SWS}:{SWS+1}], s[0:1], 72         ; ws
    """)
    if CPF:
        a(f"""
        s_getpc_b64 s[{sA}:{sA+1}]
        v_subrev_u32 v10, 256, v0
        v_lshlrev_b32 v10, 7, v10
        v_cmp_gt_u32 vcc, L_done - {name} - 64, v10
        s_and_saveexec_b64 s[{sT}:{sT+1}], vcc
        s_cbranch_execz L_cpf
        global_load_dword v7, v10, s[{sA}:{sA+1}]
        L_cpf:
        s_mov_b64 exec, -1
        """)
    a(f"""
    v_lshrrev_b32 v10, 6, v0
    v_and_b32 v{vL}, 63, v0
    s_bfe_u32 s{sTG}, s2, 0x30003
    v_readfirstlane_b32 s{sWV}, v10
    s_and_b32 s{sP}, s2, 7
    s_lshl_b32 s{sP}, s{sP}, 2
    s_lshr_b32 s{sT2}, s2, 6
    s_add_u32 s{sP}, s{sP}, s{sT2}
    s_mov_b32 s{SX+2}, {XBYTES}
    s_mov_b32 s{SX+3}, 0x00020000
    s_mov_b32 s{SW+3}, s{SX+3}
    s_mov_b32 s{SG+3}, s{SX+3}
    s_mov_b32 s{SD+3}, s{SX+3}
    s_mov_b32 s{SWS+3}, s{SX+3}
    s_cmp_lt_u32 s{sWV}, 4
    s_cbranch_scc0 L_compute
    v_lshrrev_b32 v12, 3, v{vL}
    v_mul_u32_u24 v12, 1152, v12
    v_lshrrev_b32 v13, 4, v{vL}
    v_and_b32 v14, 7, v{vL}
    v_xor_b32 v14, v14, v13
    v_lshl_add_u32 v3, v14, 4, v12
    v_xor_b32 v14, 4, v14
    v_lshl_add_u32 v4, v14, 4, v12
    v_add_u32 v4, {8*1152 - 1024}, v4
    s_lshl_b32 s{sT}, s{sTG}, 2
    s_add_u32 s{sT}, s{sT}, s{sLI}
    s_mul_i32 s{sXb}, s{sT}, {64*1152}
    s_lshl_b32 s{sM0x}, s{sLI}, 13
    v_lshlrev_b32 v14, 2, v13
    v_xor_b32 v14, v14, v{vL}
    v_and_b32 v14, 15, v14
    s_mov_b32 s{sA}, 0x75752020
    s_mov_b32 s{sA+1}, 0x7446420
    s_mov_b32 s{sT}, 0x21aa0505
    v_mul_u32_u24 v18, 3, v13
    v_lshlrev_b32 v15, 2, v14
    v_lshrrev_b64 v[16:17], v15, s[{sA}:{sA+1}]
    v_lshlrev_b32 v19, 1, v14
    v_lshrrev_b32 v19, v19, s{sT}
    v_and_b32 v16, 15, v16
    v_and_b32 v19, 3, v19
    v_add_u32 v19, v19, v18
    v_mul_u32_u24 v19, 1152, v19
    v_lshl_add_u32 v5, v16, 3, v19
    v_xor_b32 v15, 8, v15
    v_lshrrev_b64 v[16:17], v15, s[{sA}:{sA+1}]
    v_lshrrev_b32 v19, 1, v15
    v_lshrrev_b32 v19, v19, s{sT}
    v_and_b32 v16, 15, v16
    v_and_b32 v19, 3, v19
    v_add_u32 v19, v19, v18
    v_mul_u32_u24 v19, 1152, v19
    v_lshl_add_u32 v21, v16, 3, v19
    s_and_b32 s{sT}, s{sP}, 15
    s_mul_i32 s{sT}, s{sT}, 72
    s_mul_i32 s{sWb}, s{sLI}, {16*3456}
    s_add_u32 s{sWb}, s{sWb}, s{sT}
    s_lshl_b32 s{sM0w}, s{sLI}, 12
    s_mov_b32 s{sMASK}, {WMASK & 0xffffffff:#x}
    s_mov_b32 s{sMASK+1}, {WMASK >> 32:#x}
    s_lshr_b64 s[{sC2}:{sC2+1}], s[{sMASK}:{sMASK+1}], 2
    s_or_b32 s{sC2+1}, s{sC2+1}, 0xc0000000
    s_mov_b32 s{SW+2}, {WQKV_BYTES}
    s_waitcnt lgkmcnt(0)
    """)

    def common():
        a(f"""
        s_mov_b32 s{SW+2}, {WQKV_BYTES}
        s_movk_i32 s{SG+2}, 1152
        s_movk_i32 s{SD+2}, 256
        s_mov_b32 s{SWS+2}, {WS_USED}
        v_lshlrev_b32 v{vL16}, 4, v{vL}
        s_mul_i32 s{sKVp}, s{sP}, {8*CHUNK}
        s_mul_i32 s{sKQ}, s{sWV}, 43
        s_lshr_b32 s{sKQ}, s{sKQ}, 7
        s_mul_i32 s{sT}, s{sKQ}, 3
        s_sub_u32 s{sTT}, s{sWV}, s{sT}
        s_mov_b32 s{sSPIN}, {SPIN_LIMIT}
        """)

    sFl, sI, sPd, sBt, sCur, sMode, sWS = 69, 40, 41, 42, 43, 39, 3

    def unit_decode(v):
        a(f"""
        v_readfirstlane_b32 s{sU}, v{v}
        s_nop 3
        s_lshr_b32 s{sTG2}, s{sU}, 8
        s_and_b32 s{sTG2}, s{sTG2}, 7
        s_and_b32 s{sU}, s{sU}, 0xff
        s_lshr_b32 s{sCG}, s{sU}, 1
        s_and_b32 s{sT0}, s{sU}, 1
        s_mul_i32 s{sT0}, s{sT0}, 3
        s_sub_u32 s{sT}, s{sU}, 18
        s_cmp_ge_u32 s{sU}, 18
        s_cselect_b32 s{sCG}, s{sT}, s{sCG}
        s_cselect_b32 s{sT0}, 6, s{sT0}
        s_add_u32 s{sT0}, s{sT0}, s{sTT}
        s_lshl_b32 s{sT}, s{sTG2}, 3
        s_add_u32 s{sT}, s{sT}, s{sT0}
        s_mul_i32 s{sFl}, s{sT}, {OTILE}
        s_mul_i32 s{sT}, s{sKQ}, {8*OPAIR}
        s_add_u32 s{sFl}, s{sFl}, s{sT}
        s_add_u32 s{sFl}, s{sFl}, {O_OFF}
        """)

    vK, vKH, vV, vIDX = 3, 4, 5, 6
    vG = [8, 9]
    vT = [10, 11, 12, 13, 14, 15]
    Qa, Qb = 16, 20
    QH = 24
    Kb = 32
    KHb = [40, 42]
    V0b = [44, 48]
    V1b = [52, 56]
    Oa, Ob = 64, 80
    S = [96, 128]
    vXr = [16, 17]; vWr = [18, 19, 20, 21]
    vXr2 = [22, 23]; vWr2 = [24, 25, 26, 27]
    vU = list(range(32, 48))
    F = [64, 32]
    AC = [96, 112, 128, 144]
    eK, eR, e0, e1, e2, e3, e4 = 160, 161, 162, 163, 164, 165, 166

    a.sec("compute")
    a("L_compute:")
    common()
    a(f"""
    s_sub_u32 s{sW_}, s{sWV}, 4
    s_lshr_b32 s{sJ}, s{sW_}, 2
    s_and_b32 s{sTP}, s{sW_}, 3
    s_load_dwordx2 s[44:45], s[0:1], 56          ; out
    s_mov_b32 s{SO+2}, {XBYTES}
    s_waitcnt lgkmcnt(0)
    s_mov_b64 s[{SO}:{SO+1}], s[44:45]
    """)
    a(f"""
    v_and_b32 v{vU[0]}, 31, v{vL}                ; tau
    v_lshrrev_b32 v{vU[1]}, 5, v{vL}             ; h
    v_and_b32 v{vU[9]}, 15, v{vL}                ; l&15
    v_lshrrev_b32 v{vU[10]}, 4, v{vL}            ; g
    s_lshl_b32 s{sT}, s{sTP}, 13
    v_lshlrev_b32 v{vU[2]}, 7, v{vU[9]}
    v_add_u32 v{vU[2]}, s{sT}, v{vU[2]}
    v_lshrrev_b32 v{vU[3]}, 1, v{vU[9]}
    v_xor_b32 v{vU[3]}, v{vU[3]}, v{vU[10]}
    v_lshl_add_u32 v{vXr[0]}, v{vU[3]}, 4, v{vU[2]}
    v_xor_b32 v{vXr[1]}, 64, v{vXr[0]}
    v_bfe_u32 v{vU[2]}, v{vL}, 2, 2              ; r
    v_lshl_add_u32 v{vU[3]}, v{vU[10]}, 3, v{vU[2]}
    v_lshlrev_b32 v{vU[3]}, 8, v{vU[3]}
    v_add_u32 v{vU[3]}, 32768, v{vU[3]}
    v_and_b32 v{vU[4]}, 3, v{vL}                 ; c
    v_lshlrev_b32 v{vU[4]}, 3, v{vU[4]}
    v_and_b32 v{vU[5]}, 16, v{vL}
    v_lshlrev_b32 v{vU[5]}, 1, v{vU[5]}          ; (g&1)*32
    v_add3_u32 v{vU[7]}, v{vU[3]}, v{vU[4]}, v{vU[5]}
    v_xor_b32 v{vWr[0]}, s{sJ}, v{vU[2]}
    v_lshl_add_u32 v{vWr[0]}, v{vWr[0]}, 6, v{vU[7]}
    v_xor_b32 v{vWr[1]}, 32, v{vWr[0]}
    s_mov_b32 s{sT}, 0x38102800
    s_cmp_eq_u32 s{sJ}, 1
    s_cselect_b32 s{sT}, s{sT}, 0x18100800
    v_lshrrev_b32 v{vU[6]}, v{vU[4]}, s{sT}
    v_and_b32 v{vU[6]}, 0xff, v{vU[6]}
    v_xor_b32 v{vU[6]}, v{vU[6]}, v{vU[5]}
    v_add_u32 v{vU[7]}, v{vU[3]}, v{vU[6]}
    s_add_u32 s{sT}, s{sJ}, 2
    v_xor_b32 v{vWr[2]}, s{sT}, v{vU[2]}
    v_lshl_add_u32 v{vWr[2]}, v{vWr[2]}, 6, v{vU[7]}
    v_xor_b32 v{vWr[3]}, 32, v{vWr[2]}
    """)
    for r0, r1 in zip(vXr + vWr, vXr2 + vWr2):
        a(f"v_add_u32 v{r1}, {2*G_SLOT}, v{r0}")
    for r in range(AC[0], AC[0] + 64):
        a(f"v_mov_b32 v{r}, 0")
    a(f"""
    s_lshl_b32 s{sT}, s{sJ}, 10
    s_add_u32 s{sT}, s{sT}, 512
    v_add_u32 v{vK}, s{sT}, v{vL16}
    v_lshlrev_b32 v{vKH}, 2, v{vL}
    s_lshl_b32 s{sT2}, s{sJ}, 8
    v_add_u32 v{vKH}, s{sT2}, v{vKH}
    v_mov_b32 v{vU[2]}, 4
    v_cmp_gt_u32 vcc, 19, v{vU[0]}
    v_mov_b32 v{vU[3]}, 19
    s_nop 0
    v_cndmask_b32 v{vU[2]}, v{vU[2]}, v{vU[0]}, vcc
    v_cmp_eq_u32 vcc, 4, v{vU[0]}
    v_mul_u32_u24 v{vU[4]}, {VH}, v{vU[1]}
    s_mul_i32 s{sT2}, s{sJ}, {2*VG}
    s_add_u32 s{sT2}, s{sT2}, 2560
    v_cndmask_b32 v{vU[2]}, v{vU[2]}, v{vU[3]}, vcc
    v_lshl_add_u32 v{vV}, v{vU[2]}, 4, v{vU[4]}
    v_add_u32 v{vV}, s{sT2}, v{vV}
    v_mov_b32 v{vIDX}, 0xdddddddd
    s_lshl_b32 s{sT}, s{sTG}, 3
    s_lshl_b32 s{sT2}, s{sTP}, 1
    s_add_u32 s{sT}, s{sT}, s{sT2}
    s_mul_i32 s{sA}, s{sT}, {OTILE}
    s_mul_i32 s{sT}, s{sP}, {OPAIR}
    s_add_u32 s{sA}, s{sA}, s{sT}
    s_add_u32 s{sA}, s{sA}, {O_OFF}
    s_lshl_b32 s{sT}, s{sJ}, 10
    s_add_u32 s{sOm}, s{sA}, s{sT}
    s_lshl_b32 s{sT}, s{sJ}, 7
    s_add_u32 s{sOh}, s{sA}, s{sT}
    s_mov_b32 s{sD3}, {(RING[1]-RING[0]) & 0xffffffff:#x}
    s_mov_b32 s{sD3+1}, {(RING[2]-RING[1]) & 0xffffffff:#x}
    s_mov_b32 s{sD3+2}, {(RING[0]-RING[2]) & 0xffffffff:#x}
    s_mov_b32 s{sC2}, {f32bits(CSCALE):#x}
    s_mov_b32 s{sC2+1}, {f32bits(CSCALE):#x}
    v_and_b32 v{vU[2]}, 3, v{vU[0]}
    v_and_b32 v{vU[3]}, 12, v{vU[0]}
    v_lshl_or_b32 v{vU[2]}, v{vU[3]}, 1, v{vU[2]}
    v_and_b32 v{vU[3]}, 16, v{vU[0]}
    v_lshrrev_b32 v{vU[3]}, 2, v{vU[3]}
    v_or_b32 v{vU[2]}, v{vU[2]}, v{vU[3]}        ; kappa
    s_lshl_b32 s{sT}, s{sJ}, 10
    s_mul_i32 s{sB}, s{sTP}, {TPAIR}
    s_add_u32 s{sT}, s{sT}, s{sB}
    s_add_u32 s{sT}, s{sT}, 512
    v_lshlrev_b32 v{eK}, 9, v{vU[1]}
    v_lshl_add_u32 v{eK}, v{vU[2]}, 4, v{eK}
    v_add_u32 v{eK}, s{sT}, v{eK}
    s_lshl_b32 s{sT}, s{sTP}, 8
    s_add_u32 s{sT}, s{sT}, {SCR}
    v_lshlrev_b32 v{eR}, 2, v{vU[0]}
    v_add_u32 v{eR}, s{sT}, v{eR}
    s_cmp_eq_u32 s{sJ}, 1
    s_cbranch_scc1 L_a1
    v_mul_u32_u24 v{vU[4]}, {VH}, v{vU[10]}
    s_add_u32 s{sT}, s{sB}, 2560
    v_add_u32 v{vU[4]}, s{sT}, v{vU[4]}
    v_mov_b32 v{vU[6]}, 19
    v_cmp_eq_u32 vcc, 4, v{vU[9]}
    v_add_u32 v{vU[3]}, 16, v{vU[9]}
    v_add_u32 v{vU[5]}, {2*VG // 16 - 2}, v{vU[9]}
    v_cndmask_b32 v{vU[6]}, v{vU[9]}, v{vU[6]}, vcc
    v_cmp_le_u32 vcc, 2, v{vU[9]}
    v_lshl_add_u32 v{e0}, v{vU[6]}, 4, v{vU[4]}
    v_mov_b32 v{vU[6]}, {2*VG // 16 + 19}
    v_cndmask_b32 v{vU[3]}, v{vU[3]}, v{vU[5]}, vcc
    v_cmp_eq_u32 vcc, 6, v{vU[9]}
    s_nop 1
    v_cndmask_b32 v{vU[3]}, v{vU[3]}, v{vU[6]}, vcc
    v_lshl_add_u32 v{e1}, v{vU[3]}, 4, v{vU[4]}
    s_branch L_a2
    L_a1:
    v_lshlrev_b32 v{e0}, 2, v{vU[2]}
    v_add_u32 v{e0}, s{sB}, v{e0}
    v_cmp_eq_u32 vcc, 1, v{vU[1]}
    v_add_u32 v{vU[5]}, 256, v{e0}
    v_add_u32 v{vU[6]}, 1024, v{eR}
    v_cndmask_b32 v{e0}, v{e0}, v{eR}, vcc
    v_cndmask_b32 v{e1}, v{vU[5]}, v{vU[6]}, vcc
    v_mov_b32 v{vU[5]}, 1.0
    v_mov_b32 v{vU[6]}, s{sC2}
    v_cndmask_b32 v{e2}, v{vU[5]}, v{vU[6]}, vcc
    v_lshrrev_b32 v{vU[3]}, 3, v{vU[2]}
    v_mul_u32_u24 v{vU[3]}, {VH}, v{vU[3]}
    v_and_b32 v{vU[5]}, 7, v{vU[2]}
    v_lshl_add_u32 v{e3}, v{vU[5]}, 1, v{vU[3]}
    s_add_u32 s{sT}, s{sB}, {2560 + 2*VG}
    v_add_u32 v{e3}, s{sT}, v{e3}
    L_a2:
    s_lshl_b32 s{sT}, s{sJ}, 10
    v_lshl_add_u32 v{e4}, v{vU[1]}, 7, v{eR}
    v_add_u32 v{e4}, s{sT}, v{e4}
    s_mov_b32 s{sMASK}, 0x7ffff
    s_mov_b32 s{sMASK+1}, 0x7ffff
    s_lshl_b32 s{sT}, s{sW_}, 2
    s_add_u32 s{sT}, s{sT}, {SYNC}
    v_mov_b32 v167, s{sT}
    """)
    a("s_waitcnt lgkmcnt(0)")

    def reads(n, ks, j):
        s = n % 3
        xr = vXr2 if s == 2 else vXr
        wr = vWr2 if s == 2 else vWr
        so = G_SLOT if s == 1 else 0
        b = F[ks]
        out = []
        for q in range(4):
            out.append(f"ds_read_b128 {vr(b+4*q,4)}, v{xr[ks]} offset:{so + 2048*q}")
            if q < 4 - j:
                out.append(f"ds_read_b64_tr_b16 {vr(b+16+4*q,2)}, v{wr[q]} offset:{so + ks*8192}")
                out.append(f"ds_read_b64_tr_b16 {vr(b+18+4*q,2)}, v{wr[q]} offset:{so + ks*8192 + 1024}")
        return out

    def mfmas(f, j):
        b = F[f]
        m = []
        for c in range(4 - j):
            for t in range(4):
                X, W, D = vr(b + 4 * t, 4), vr(b + 16 + 4 * c, 4), vr(AC[c] + 4 * t, 4)
                p, q = (X, W) if (j == 0 and c >= 2) else (W, X)
                m.append(f"v_mfma_f32_16x16x32_bf16 {D}, {p}, {q}, {D}")
        return m

    def mix(ms, rs, lead=0):
        rs = list(rs)
        for r in rs[:lead]:
            a(r)
        rs = rs[lead:]
        for i, m in enumerate(ms):
            a(m)
            k = -(-len(rs) // (len(ms) - i)) if GMIX == 2 else (1 if GMIX else 0)
            for r in rs[:k]:
                a(r)
            rs = rs[k:]
        for r in rs:
            a(r)

    if TLBW == 2:
        a(f"""
        s_cmp_eq_u32 s{sW_}, 7
        s_cbranch_scc0 L_tlb
        s_buffer_load_dword s3, s[{SWS}:{SWS+3}], s{sKVp}
        s_buffer_load_dword s3, s[{SWS}:{SWS+3}], s{sKVp} offset:{hex(8*CHUNK - 4)}
        s_mov_b32 s{sT}, {FLAG_OFF + 0x30000}
        s_buffer_load_dword s3, s[{SWS}:{SWS+3}], s{sT}
        s_buffer_load_dword s3, s[{SD}:{SD+3}], 0xfc
        L_tlb:
        """)
    stamp(a, 7, True, mode=9)
    a("s_barrier")
    stamp(a, 1, True)
    stamp(a, 1, True, mode=4)
    for r in reads(0, 0, 0):
        a(r)
    a(f"""
    s_mov_b32 s{sN}, 0
    s_cmp_eq_u32 s{sJ}, 1
    s_cbranch_scc1 L_g1
    """)
    for j in range(2):
        a(f"L_g{j}:")
        for n in range(3):
            a("s_waitcnt lgkmcnt(0)")
            mix(mfmas(0, j), reads(n, 1, j), 0 if GMIX else 99)
            a("s_waitcnt lgkmcnt(0)")
            if n == 2:
                a(f"""
                s_add_u32 s{sN}, s{sN}, 1
                s_cmp_eq_u32 s{sN}, 3
                s_cbranch_scc1 L_ge{j}
                """)
            a("s_barrier")
            mix(mfmas(1, j), reads(n + 1, 0, j), 0 if GMIX else 99)
        a(f"s_branch L_g{j}")
        a(f"L_ge{j}:")
        ms = mfmas(1, j)
        zs = [f"v_mov_b32 v{r}, 0" for r in range(Oa, Oa + 32)]
        for i, m in enumerate(ms):
            a(m)
            k = -(-len(zs) // (len(ms) - i))
            for z in zs[:k]:
                a(z)
            zs = zs[k:]
        stamp(a, 2)
        stamp(a, 2, mode=4)
        a(f"""
        s_mov_b32 s{sN}, 0
        s_mov_b32 s{sFB}, 0
        """)
        KP = [AC[0], AC[0] + 8]
        for A in KP:
            for i in range(4):
                a(f"v_cvt_pk_bf16_f32 v{A+i}, v{A+2*i}, v{A+2*i+1}")
        a(f"v_mov_b32 v{KHb[0]+1}, 0x3f803f80")
        for t, A in enumerate(KP):
            a(f"v_permlane16_swap_b32 v{A}, v{A+2}")
            a(f"v_permlane16_swap_b32 v{A+1}, v{A+3}")
            a(f"ds_write_b128 v{eK}, {vr(A,4)} offset:{TILE*t}")
        B0, B1 = AC[2], AC[2] + 8
        if j == 0:
            for cc in range(2):
                for t in range(2):
                    B = AC[2 + cc] + 8 * t
                    for i in range(4):
                        a(f"v_cvt_pk_bf16_f32 v{B+i}, v{B+2*i}, v{B+2*i+1}")
                    a(f"ds_write_b128 v{(e0, e1)[cc]}, {vr(B,4)} offset:{t*TILE}")
            a("s_branch L_ep")
        else:
            for B in (B0, B1):
                for i in range(4):
                    a(f"v_permlane16_swap_b32 v{B+i}, v{B+4+i}")
            a(f"""
            s_mov_b32 exec_lo, 0
            ds_write_b32 v{eR}, v{B0+4} offset:2048
            ds_write_b32 v{eR}, v{B1+4} offset:{2048+128}
            s_mov_b32 exec_lo, -1
            """)
            for t, B in enumerate((B0, B1)):
                for i in range(4):
                    a(f"v_mul_f32 v{B+i}, v{e2}, v{B+i}")
                for i in range(4):
                    a(f"v_cvt_pk_bf16_f32 v{B+16+i}, v{B+2*i}, v{B+2*i+1}")
                a(f"ds_write_b32 v{e0}, v{B+16} offset:{128*t}")
                a(f"ds_write_b32 v{e1}, v{B+17} offset:{128*t}")
            a("s_mov_b32 exec_hi, 0")
            for t, B in enumerate((B0, B1)):
                o = t * TILE + 14 * 16
                a(f"ds_write_b16 v{e3}, v{B+18} offset:{o}")
                a(f"ds_write_b16_d16_hi v{e3}, v{B+18} offset:{o+16}")
                a(f"ds_write_b16 v{e3}, v{B+19} offset:{o+32}")
                a(f"ds_write_b16_d16_hi v{e3}, v{B+19} offset:{o+48}")
            a("s_mov_b32 exec_hi, -1")
    a("L_ep:")
    for A, Q in ((AC[1], Qa), (AC[1] + 8, Qb)):
        for i in range(4):
            a(f"v_pk_mul_f32 {vr(A+2*i,2)}, {vr(A+2*i,2)}, s[{sC2}:{sC2+1}]")
        for i in range(4):
            a(f"v_cvt_pk_bf16_f32 v{Q+i}, v{A+2*i}, v{A+2*i+1}")
    a(f"v_mov_b32 v{KHb[1]+1}, 0x3f803f80")
    for Q in (Qa, Qb):
        a(f"v_permlane16_swap_b32 v{Q}, v{Q+2}")
        a(f"v_permlane16_swap_b32 v{Q+1}, v{Q+3}")

    def qk(dst, kb, q, acc=True):
        return f"v_mfma_f32_32x32x16_bf16 {vr(dst,16)}, {vr(kb,4)}, {vr(q,4)}, {vr(dst,16) if acc else 0}"

    def qkh(dst, khb, par):
        return f"v_mfma_f32_32x32x4_2b_bf16 {vr(dst,32)}, {vr(khb,2)}, {vr(QH,2)}, 0 cbsz:1 abid:{par}"

    def pv(o, vb, p):
        return f"v_smfmac_f32_32x32x32_bf16 {vr(o,16)}, {vr(vb,4)}, {vr(p,8)}, v{vIDX}"

    def vread(t, buf):
        if not VMASK:
            return f"""
            ds_read_b128 {vr(V0b[buf],4)}, v{vV} offset:{toff(t)}
            ds_read_b128 {vr(V1b[buf],4)}, v{vV} offset:{toff(t) + VG}
            """
        return f"""
        s_mov_b64 exec, s[{sMASK}:{sMASK+1}]
        ds_read_b128 {vr(V0b[buf],4)}, v{vV} offset:{toff(t)}
        ds_read_b128 {vr(V1b[buf],4)}, v{vV} offset:{toff(t) + VG}
        s_mov_b64 exec, -1
        """

    a(f"v_cmp_gt_u32 vcc, 32, v{vL}")
    for r in range(V0b[0], V1b[1] + 4):
        a(f"v_mov_b32 v{r}, 0")
    a("s_waitcnt vmcnt(0) lgkmcnt(0)")
    X, Y = S
    a(qk(Y, AC[0], Qa, False)); a(qk(Y + 16, AC[0], Qb, False))
    a("s_barrier")
    stamp(a, 3, True)
    a(f"""
    ds_read_b32 v{vG[0]}, v{eR} offset:2048
    ds_read_b32 v{vG[1]}, v{eR} offset:{2048+128}
    ds_read_b32 v{KHb[0]}, v{vKH}
    ds_read_b32 v{QH}, v{e4}
    ds_read_b128 {vr(Kb,4)}, v{vK}
    """)
    a(vread(0, 0))
    a(f"""
    s_mov_b32 s{sT}, {f32bits(-math.log2(math.e)):#x}
    s_cmp_ge_u32 s{sP}, 16
    s_cselect_b32 s{sT}, {f32bits(math.log2(math.e)):#x}, s{sT}
    s_nop 0
    """)
    for t in range(2):
        b = Y + 16 * t
        a(f"v_max3_f32 v{vT[t]}, v{b}, v{b+1}, v{b+2}")
        for i in range(3, 9, 2):
            a(f"v_max3_f32 v{vT[t]}, v{vT[t]}, v{b+i}, v{b+i+1}")
    a(f"""
    v_cndmask_b32 v{vT[0]}, v{vT[1]}, v{vT[0]}, vcc
    v_lshrrev_b32 v{vT[0]}, 16, v{vT[0]}
    v_xor_b32 v{QH+1}, {(f32bits(-SHIFT) & 0xffff0000) | 0x8000:#x}, v{vT[0]}
    s_waitcnt lgkmcnt(3)
    v_mul_f32 v{vG[0]}, s{sT}, v{vG[0]}
    """)
    a(qkh(X, KHb[0], 0))
    a(f"""
    v_mul_f32 v{vG[1]}, s{sT}, v{vG[1]}
    v_exp_f32 v{vG[0]}, v{vG[0]}
    v_exp_f32 v{vG[1]}, v{vG[1]}
    """)
    for r in range(Y + 24, Y + 32):
        a(f"v_mov_b32 v{r}, 0")
    a(f"""
    v_add_f32 v{vG[0]}, 1.0, v{vG[0]}
    v_add_f32 v{vG[1]}, 1.0, v{vG[1]}
    v_rcp_f32 v{vG[0]}, v{vG[0]}
    v_rcp_f32 v{vG[1]}, v{vG[1]}
    s_waitcnt lgkmcnt(0)
    s_nop 1
    """)
    a(qk(X, Kb, Qa)); a(qk(X + 16, Kb, Qb))

    def E(b, n=4):
        for r in range(b, b + n):
            a(f"v_exp_f32 v{r}, v{r}")

    stamp(a, 4)
    stamp(a, 3, mode=4)
    a("s_setprio 1")
    a("s_nop 9")
    a(".p2align 6")
    a("L_loop:")
    loop0 = len(a.lines) - 1
    for i in range(8):
        X = S[i & 1]; Y = S[(i + 1) & 1]
        tn = (i + 1) & 7
        khb = KHb[(tn >> 1) & 1]
        if i == 7:
            a(f"""
            s_cbranch_scc1 L_nb7
            s_barrier
            L_nb7:
            s_setprio 1
            v_add_u32 v{vKH}, s{sDl}, v{vKH}
            v_add_u32 v{vK}, s{sDl}, v{vK}
            ds_read_b32 v{khb}, v{vKH}
            v_add_u32 v{vV}, s{sDl}, v{vV}
            """)
        E(X, 2)
        a(pv(Ob, V1b[(i + 1) & 1], Y + 24))
        if i == PRIOI:
            a("s_setprio 0")
        kread = f"ds_read_b128 {vr(Kb,4)}, v{vK} offset:{toff(tn)}"
        if i in (0, 2, 4):
            kread += f"\nds_read_b32 v{KHb[((i>>1)+1)&1]}, v{vKH} offset:{((i>>1)+1)*TPAIR}"
        vrd = vread(tn, (i + 1) & 1)
        a(vrd if VPOS == 1 else kread)
        E(X + 2, 4)
        if i == 7:
            a(f"s_waitcnt lgkmcnt({2 if VPOS == 1 else 1})")
        a(qkh(Y, khb, tn & 1))
        a(vrd if VPOS == 0 else kread if VPOS == 1 else "")
        E(X + 6, 8)
        a(pv(Oa, V0b[i & 1], X))
        if VPOS == 3:
            a("s_waitcnt lgkmcnt(0)")
        if VPOS >= 2:
            a(vrd)
        E(X + 14, 4)
        a(pv(Oa, V1b[i & 1], X + 8))
        if VPOS != 3:
            a(f"s_waitcnt lgkmcnt({2 if VPOS == 2 else 0})")
        if i == 1:
            a(f"s_mov_b32 s{sDl}, s{sD3}")
        if i == 3:
            a(f"s_mov_b32 s{sD3+1}, s{sD3+2}")
        if i == 7:
            a(f"s_add_u32 s{sN}, s{sN}, 1")
        E(X + 18, 4)
        a(qk(Y, Kb, Qa))
        if i == 1:
            a(f"s_mov_b32 s{sD3}, s{sD3+1}")
        if i == 2:
            a(f"v_mov_b32 v7, s{sN}")
        if i == 5:
            a(f"s_mov_b32 s{sD3+2}, s{sDl}")
        if i == 6:
            a(f"s_cmp_eq_u32 s{sN}, 7")
        if i == 7:
            a(f"s_cmp_lt_u32 s{sN}, 8")
        E(X + 22, 4)
        a(pv(Ob, V0b[i & 1], X + 16))
        if VPOS >= 2:
            a("s_waitcnt lgkmcnt(0)")
        E(X + 26, 3)
        a(qk(Y + 16, Kb, Qb))
        if i == 3:
            a("ds_write_b32 v167, v7")
        E(X + 29, 3)
    if ALIGN:
        a.lines[loop0:] = align8(a.lines[loop0:])
    a(f"""
    s_cbranch_scc1 L_loop
    s_nop 0
    """)
    stamp(a, 5)
    stamp(a, 1, mode=3)
    stamp(a, 4, mode=4)
    a(pv(Ob, V1b[1], S[1] + 24))
    a(f"""
    v_mov_b32 v{vT[5]}, {SYNC + 48}
    ds_read_b32 v160, v{vT[5]}
    s_nop 9
    L_fin:
    """)
    for t, O in enumerate((Oa, Ob)):
        a(f"v_mov_b32 v{vT[2*t]}, v{O+10}")
        a(f"v_mov_b32 v{vT[2*t+1]}, v{O+10}")
    a(f"v_max3_f32 v{vT[4]}, |v{Oa}|, |v{Oa+1}|, |v{Ob}|")
    a(f"v_max_f32 v{vT[4]}, v{vT[4]}, |v{Ob+1}|")
    a(f"v_permlane32_swap_b32 v{vT[0]}, v{vT[1]}")
    a(f"v_permlane32_swap_b32 v{vT[2]}, v{vT[3]}")
    for i in range(2, 10):
        a(f"v_max3_f32 v{vT[4]}, v{vT[4]}, |v{Oa+i}|, |v{Ob+i}|")
    a(f"""
    s_cmp_eq_u32 s{sFB}, 0
    s_cbranch_scc0 L_store
    s_mov_b32 s{sT}, {f32bits(2.0**80):#x}
    s_mov_b32 s{sT2}, {f32bits(2.0**(-24-SHIFT)):#x}
    s_mov_b32 s{sA}, 0x7f800000
    v_cmp_nge_f32 vcc, s{sT}, v{vT[0]}
    v_cmp_nge_f32 s[44:45], s{sT}, v{vT[2]}
    v_cmp_nle_f32 s[46:47], s{sT2}, v{vT[0]}
    s_or_b64 vcc, vcc, s[44:45]
    v_cmp_nle_f32 s[44:45], s{sT2}, v{vT[2]}
    s_or_b64 vcc, vcc, s[46:47]
    v_cmp_ngt_f32 s[46:47], s{sA}, v{vT[4]}
    s_or_b64 vcc, vcc, s[44:45]
    s_nop 0
    s_or_b64 vcc, vcc, s[46:47]
    s_cbranch_vccnz L_exact
    L_store:
    v_rcp_f32 v{vT[0]}, v{vT[0]}
    v_rcp_f32 v{vT[2]}, v{vT[2]}
    v_lshrrev_b32 v{vT[4]}, 5, v{vL}
    v_mul_u32_u24 v{vT[4]}, {OTILE - 128}, v{vT[4]}
    v_lshl_add_u32 v{vT[4]}, v{vL}, 2, v{vT[4]}
    s_add_u32 s{sB}, s{sOm}, {OTILE}
    v_mul_f32 v{vT[0]}, v{vT[0]}, v{vG[0]}
    v_mul_f32 v{vT[2]}, v{vT[2]}, v{vG[1]}
    v_mov_b32 v{vT[1]}, v{vT[0]}
    v_mov_b32 v{vT[3]}, v{vT[2]}
    """)
    for t, O in enumerate((Oa, Ob)):
        for i in range(5):
            a(f"v_pk_mul_f32 {vr(O+2*i,2)}, {vr(O+2*i,2)}, {vr(vT[2*t],2)}")
        pk = 16 + 4 * t
        for i in range(4):
            a(f"v_cvt_pk_bf16_f32 v{pk+i}, v{O+2*i}, v{O+2*i+1}")
        a(f"v_cvt_pk_bf16_f32 v{24+t}, v{O+8}, v{O+9}")
        for r in list(range(pk, pk + 4)) + [24 + t]:
            a(f"v_min_u32 v{r}, -2, v{r}")
        a(f"buffer_store_dwordx4 {vr(pk,4)}, v{vL16}, s[{SWS}:{SWS+3}], s{sOm if t == 0 else sB} offen sc1")
    a(f"""
    s_nop 0
    v_permlane32_swap_b32 v24, v25
    s_setprio 0
    buffer_store_dword v24, v{vT[4]}, s[{SWS}:{SWS+3}], s{sOh} offen offset:2048 sc1
    v_mov_b32 v7, 8
    ds_write_b32 v167, v7
    s_waitcnt lgkmcnt(1)
    """)
    unit_decode(160)
    stamp(a, 6)
    stamp(a, 2, mode=3)

    a.sec("exact")
    X = S[0]
    a(f"""
    L_exact:
    s_mov_b32 s{sFB}, 1
    v_mov_b32 v{QH+1}, 0
    v_and_b32 v{vKH}, 31, v{vL}
    v_mov_b32 v{vT[2]}, 4
    v_cmp_gt_u32 vcc, 19, v{vKH}
    v_mov_b32 v{vT[3]}, 19
    v_lshrrev_b32 v{vT[4]}, 5, v{vL}
    v_cndmask_b32 v{vT[2]}, v{vT[2]}, v{vKH}, vcc
    v_cmp_eq_u32 vcc, 4, v{vKH}
    v_mul_u32_u24 v{vT[4]}, {VH}, v{vT[4]}
    v_lshlrev_b32 v{vKH}, 2, v{vKH}
    v_cndmask_b32 v{vT[2]}, v{vT[2]}, v{vT[3]}, vcc
    v_lshl_add_u32 v{vV}, v{vT[2]}, 4, v{vT[4]}
    v_mov_b32 v{vT[0]}, 0xff800000
    v_mov_b32 v{vT[1]}, 0xff800000
    """)
    for r in range(Oa, Oa + 32):
        a(f"v_mov_b32 v{r}, 0")
    for ps in range(2):
        a(f"""
        s_mov_b32 s{sN}, 0
        L_x{ps}:
        s_lshr_b32 s{sT}, s{sN}, 1
        s_mul_i32 s{sT}, s{sT}, {TPAIR}
        s_add_u32 s{sT}, s{sT}, s{sKVp}
        s_and_b32 s{sT2}, s{sN}, 1
        s_mul_i32 s{sB}, s{sT2}, {TILE}
        s_add_u32 s{sB}, s{sB}, s{sT}                ; + tile
        s_lshl_b32 s{sA}, s{sJ}, 10
        s_add_u32 s{sA}, s{sA}, s{sB}
        buffer_load_dwordx4 {vr(Kb,4)}, v{vL16}, s[{SWS}:{SWS+3}], s{sA} offen offset:512 sc1
        s_lshl_b32 s{sA}, s{sT2}, 7
        s_add_u32 s{sA}, s{sA}, s{sT}
        s_lshl_b32 s{sT2}, s{sJ}, 8
        s_add_u32 s{sA}, s{sA}, s{sT2}
        buffer_load_dword v{KHb[0]}, v{vKH}, s[{SWS}:{SWS+3}], s{sA} offen sc1
        """)
        if ps == 1:
            a(f"""
            s_mul_i32 s{sA}, s{sJ}, {2*VG}
            s_add_u32 s{sA}, s{sA}, s{sB}
            s_add_u32 s{sA}, s{sA}, 2560
            buffer_load_dwordx4 {vr(V0b[0],4)}, v{vV}, s[{SWS}:{SWS+3}], s{sA} offen sc1
            buffer_load_dwordx4 {vr(V1b[0],4)}, v{vV}, s[{SWS}:{SWS+3}], s{sA} offen offset:{VG} sc1
            """)
        a("s_waitcnt vmcnt(0)")
        a(qkh(X, KHb[0], 0))
        a("s_nop 15\ns_nop 3")
        a(qk(X, Kb, Qa)); a(qk(X + 16, Kb, Qb))
        a("s_nop 15")
        if ps == 0:
            for t in range(2):
                for i in range(0, 16, 2):
                    a(f"v_max3_f32 v{vT[t]}, v{vT[t]}, v{X+16*t+i}, v{X+16*t+i+1}")
        else:
            for i in range(16):
                a(f"v_sub_f32 v{X+i}, v{X+i}, v{vT[0]}")
                a(f"v_sub_f32 v{X+16+i}, v{X+16+i}, v{vT[1]}")
            E(X, 32)
            a("s_nop 1")
            a(pv(Oa, V0b[0], X)); a(pv(Oa, V1b[0], X + 8))
            a(pv(Ob, V0b[0], X + 16)); a(pv(Ob, V1b[0], X + 24))
        a(f"""
        s_add_u32 s{sN}, s{sN}, 1
        s_cmp_lt_u32 s{sN}, 64
        s_cbranch_scc1 L_x{ps}
        """)
        if ps == 0:
            a(f"""
            v_mov_b32 v{vT[2]}, v{vT[0]}
            v_mov_b32 v{vT[3]}, v{vT[1]}
            s_nop 1
            v_permlane32_swap_b32 v{vT[0]}, v{vT[2]}
            v_permlane32_swap_b32 v{vT[1]}, v{vT[3]}
            s_nop 1
            v_max_f32 v{vT[0]}, v{vT[0]}, v{vT[2]}
            v_max_f32 v{vT[1]}, v{vT[1]}, v{vT[3]}
            """)
    a("""
    s_nop 15
    s_branch L_fin
    """)

    vXE, vXO, vWS = 3, 4, 5
    vGt = [6, 7, 8]
    vGA, vF, vFo = 9, 10, 11
    vT = [12, 13, 14, 15, 16, 17, 18, 19]
    vWO = 20
    CP = 32

    def dma_x(n):
        slot = (n % 3) * G_SLOT
        s = f"s_add_u32 m0, s{sM0x}, {slot}\ns_add_u32 s{sT}, s{sXb}, {n*128}\n"
        for i in range(4):
            s += f"buffer_load_dwordx4 v{vXE}, s[{SX}:{SX+3}], s{sT} offen lds\n"
            s += f"buffer_load_dwordx4 v{vXO}, s[{SX}:{SX+3}], s{sT} offen offset:1024 lds\n"
            if i < 3:
                s += f"s_addk_i32 m0, 0x800\ns_addk_i32 s{sT}, {16*1152}\n"
        return s

    def dma_w(n):
        slot = (n % 3) * G_SLOT
        if n >= int(os.environ.get("WP0", "99")):
            s = f"s_add_u32 m0, s{sM0w}, {slot + 32768}\ns_and_b32 s{sT}, s{sP}, 7\ns_mul_i32 s{sT}, s{sT}, 147456\ns_add_u32 s{sT}, s{sT}, s{sM0w}\ns_add_u32 s{sT}, s{sT}, {n*16384}\nv_lshlrev_b32 v22, 4, v{vL}\n"
            for i in range(4):
                s += f"buffer_load_dwordx4 v22, s[{SW}:{SW+3}], s{sT} offen offset:{1024*i} lds\n"
            return s
        s = f"s_add_u32 m0, s{sM0w}, {slot + 32768}\ns_add_u32 s{sT}, s{sWb}, {n*64*3456}\n"
        s += f"s_mov_b64 exec, s[{sMASK}:{sMASK+1}]\n"
        for i in range(4):
            if i == 2:
                s += f"s_mov_b64 exec, s[{sC2}:{sC2+1}]\n"
            s += f"buffer_load_dwordx4 v{vWS if i < 2 else 21}, s[{SW}:{SW+3}], s{sT} offen offset:{1024*i} lds\n"
            if i < 3:
                s += f"s_addk_i32 s{sT}, {4*3456 - 1024}\n"
        s += "s_mov_b64 exec, -1\n"
        return s

    def gate_write(n):
        slot = (n % 3) * G_SLOT
        lab = a.label("L_gw")
        reg = vGt[n // 4]
        if slot < 65536:
            w = f"ds_write_b16 v{vGA}, v{reg} offset:{slot + 8}"
        else:
            w = f"v_add_u32 v{vT[7]}, {slot}, v{vGA}\nds_write_b16 v{vT[7]}, v{reg} offset:8"
        return f"""
        s_cmp_eq_u32 s{sLI}, {n % 4}
        s_cbranch_scc0 {lab}
        {w}
        {lab}:
        """

    def wo_load(q0, q1):
        assert q1 <= 72 or q0 >= 72
        srd_, base = (SWA, 0) if q1 <= 72 else (SWB, 72)
        lab = a.label("L_wo")
        a(f"""
        s_add_u32 s{sA}, s{sLI}, {q0}
        {lab}:
        s_lshl_b32 m0, s{sA}, 10
        s_sub_u32 s{sT}, s{sA}, {base}
        s_mul_i32 s{sT}, s{sT}, {8*1152}
        buffer_load_dwordx4 v{vWO}, s[{srd_}:{srd_+3}], s{sT} offen lds
        s_add_u32 s{sA}, s{sA}, 4
        s_cmp_lt_u32 s{sA}, {q1}
        s_cbranch_scc1 {lab}
        """)

    def pf8(tag, xs, ws):
        a(f"""
        s_lshr_b32 s{sT}, s{sP}, 3
        s_xor_b32 s{sT}, s{sT}, s{sP}
        s_bitcmp1_b32 s{sT}, 0
        s_cbranch_scc1 L_pd{tag}
        s_lshr_b32 s{sT}, s{sP}, 1
        s_lshl_b32 s{sT}, s{sT}, 3
        s_add_u32 s{sT}, s{sT}, s{sTG}               ; 0..127
        s_cmp_eq_u32 s{sLI}, 0
        s_cbranch_scc0 L_pw{tag}
        v_and_b32 v{vT[5]}, 3, v{vL}
        v_min_u32 v{vT[5]}, {xs[1] - xs[0] - 1}, v{vT[5]}
        v_lshrrev_b32 v{vT[4]}, 2, v{vL}
        v_mul_u32_u24 v{vT[4]}, 1152, v{vT[4]}
        v_lshl_add_u32 v{vT[5]}, v{vT[5]}, 7, v{vT[4]}
        s_mul_i32 s{sT}, s{sT}, {16*1152}
        buffer_load_dword v{vT[6]}, v{vT[5]}, s[{SX}:{SX+3}], s{sT} offen offset:{128*xs[0]}
        s_branch L_pe{tag}
        L_pw{tag}:
        s_and_b32 s{sT}, s{sT}, 63
        """)
        for q, (c0, c1) in enumerate(ws):
            a(f"""
            s_cmp_eq_u32 s{sLI}, {q+1}
            s_cbranch_scc0 L_pn{tag}{q}
            v_min_u32 v{vT[5]}, {27*(c1-c0) - 1}, v{vL}
            v_lshlrev_b32 v{vT[5]}, 7, v{vT[5]}
            s_mul_i32 s{sT}, s{sT}, {(c1-c0)*3456}
            s_add_u32 s{sT}, s{sT}, {c0*64*3456}
            buffer_load_dword v{vT[6]}, v{vT[5]}, s[{SW}:{SW+3}], s{sT} offen
            s_branch L_pe{tag}
            L_pn{tag}{q}:
            """)
        a(f"""
        L_pd{tag}:
        s_mov_b64 exec, 1
        buffer_load_ushort v{vT[6]}, v{vT[0]}, s[{SG}:{SG+3}], 0 offen
        s_mov_b64 exec, -1
        L_pe{tag}:
        """)

    a.sec("loader")
    a("s_setprio 3")
    stamp(a, 1, mode=9)
    a(dma_x(0))
    stamp(a, 2, mode=9)
    stamp(a, 3, mode=9)
    a(dma_w(0))
    stamp(a, 4, mode=9)
    common()
    a(f"""
    v_lshlrev_b32 v{vT[0]}, 1, v{vL}
    s_lshl_b32 s{sT}, s{sLI}, 7
    buffer_load_ushort v{vGt[0]}, v{vT[0]}, s[{SG}:{SG+3}], s{sT} offen
    buffer_load_ushort v{vGt[1]}, v{vT[0]}, s[{SG}:{SG+3}], s{sT} offen offset:512
    buffer_load_ushort v{vGt[2]}, v{vT[0]}, s[{SG}:{SG+3}], s{sT} offen offset:1024
    """)
    a(f"""
    v_and_b32 v{vT[2]}, 3, v{vL}
    v_xor_b32 v{vT[2]}, 3, v{vT[2]}
    v_lshlrev_b32 v{vT[2]}, 6, v{vT[2]}
    v_lshl_add_u32 v{vGA}, v{vL}, 8, v{vT[2]}
    v_add_u32 v{vGA}, {32768 + 48}, v{vGA}
    v_and_b32 v{vT[2]}, 8, v{vL}
    v_lshlrev_b32 v{vT[2]}, 2, v{vT[2]}
    v_xor_b32 v{vGA}, v{vGA}, v{vT[2]}
    """)
    if DPF == 8:
        pf8(0, (2, 6), [(2, 4), (4, 6)])
        a(dma_x(1)); a(dma_w(1))
    elif DPF == 9:
        pf8(0, (2, 5), [(2, 4), (4, 5)])
        a(dma_x(1)); a(dma_w(1))
    elif DPF == 7:
        a(f"""
        s_cmp_eq_u32 s{sLI}, 0
        s_cbranch_scc0 L_e1
        v_and_b32 v{vT[5]}, 7, v{vL}
        v_lshrrev_b32 v{vT[4]}, 3, v{vL}
        v_mul_u32_u24 v{vT[4]}, 1152, v{vT[4]}
        v_lshl_add_u32 v{vT[5]}, v{vT[5]}, 7, v{vT[4]}
        s_mul_i32 s{sT}, s2, {8*1152}
        buffer_load_dword v{vT[6]}, v{vT[5]}, s[{SX}:{SX+3}], s{sT} offen offset:128
        s_branch L_e4
        L_e1:
        s_cmp_eq_u32 s{sLI}, 3
        s_cbranch_scc1 L_e2
        v_lshlrev_b32 v{vT[5]}, 7, v{vL}
        s_and_b32 s{sT}, s{sP}, 15
        s_lshl_b32 s{sT}, s{sT}, 3
        s_add_u32 s{sT}, s{sT}, s{sTG}
        s_lshl_b32 s{sT}, s{sT}, 1
        s_add_u32 s{sT}, s{sT}, s{sLI}
        s_mul_i32 s{sT}, s{sT}, {2*3456}
        s_add_u32 s{sT}, s{sT}, {62*3456}
        s_mov_b32 exec_hi, 0x3fffff
        buffer_load_dword v{vT[6]}, v{vT[5]}, s[{SW}:{SW+3}], s{sT} offen
        s_branch L_e4
        L_e2:
        v_lshlrev_b32 v{vT[5]}, 20, v{vL}
        s_lshl_b32 s{sT}, s2, 7
        s_mov_b64 exec, 0xffff
        buffer_load_dword v{vT[6]}, v{vT[5]}, s[{SWS}:{SWS+3}], s{sT} offen sc1
        L_e4:
        s_mov_b64 exec, -1
        """)
        pre = int(os.environ.get("PRE", "0"))
        if pre:
            a(dma_x(1))
    else:
        a(f"""
        s_cmp_eq_u32 s{sLI}, 0
        s_cbranch_scc0 L_e1
        v_and_b32 v{vT[5]}, 1, v{vL}
        v_bfe_u32 v{vT[4]}, v{vL}, 1, 3
        v_mul_u32_u24 v{vT[4]}, 1152, v{vT[4]}
        v_lshl_add_u32 v{vT[5]}, v{vT[5]}, 7, v{vT[4]}
        s_mul_i32 s{sT}, s2, {8*1152}
        s_mov_b64 exec, 0xffff
        buffer_load_dword v{vT[6]}, v{vT[5]}, s[{SX}:{SX+3}], s{sT} offen offset:256
        s_branch L_e4
        L_e1:
        s_cmp_eq_u32 s{sLI}, 1
        s_cbranch_scc0 L_e2
        v_lshlrev_b32 v{vT[5]}, 7, v{vL}
        s_and_b32 s{sT}, s{sP}, 15
        s_lshl_b32 s{sT}, s{sT}, 3
        s_add_u32 s{sT}, s{sT}, s{sTG}
        s_mul_i32 s{sT}, s{sT}, 3456
        s_add_u32 s{sT}, s{sT}, {128*3456}
        s_mov_b64 exec, 0x7ffffff
        buffer_load_dword v{vT[6]}, v{vT[5]}, s[{SW}:{SW+3}], s{sT} offen
        s_branch L_e4
        L_e2:
        s_mov_b64 exec, 1
        buffer_load_ushort v{vT[6]}, v{vT[0]}, s[{SG}:{SG+3}], 0 offen
        L_e4:
        s_mov_b64 exec, -1
        """)
        a(dma_x(1)); a(dma_w(1))
    stamp(a, 5, mode=9)
    a(f"""
    v_lshlrev_b32 v{vT[2]}, 2, v{vL}
    v_add_u32 v{vT[2]}, {SYNC}, v{vT[2]}
    v_mov_b32 v{CP}, 0
    v_mov_b32 v{CP+1}, 0
    v_mov_b32 v{CP+2}, 0
    v_mov_b32 v{CP+3}, 0
    ds_write_b32 v{vT[2]}, v{CP}
    s_min_u32 s{sT}, s{sLI}, 2
    s_mul_i32 s{sT}, s{sT}, {G_SLOT}
    v_add_u32 v{vT[2]}, s{sT}, v{vGA}
    s_cmp_eq_u32 s{sLI}, 3
    s_cbranch_scc1 L_nz
    ds_write_b128 v{vT[2]}, {vr(CP,4)}
    L_nz:
    s_waitcnt vmcnt({13 if DPF != 7 else 9 if pre else 1})
    """)
    for n in range(3):
        a(gate_write(n))
    stamp(a, 6, mode=9)
    a("s_waitcnt lgkmcnt(0)")
    stamp(a, 7, mode=9)
    a("s_barrier")
    stamp(a, 8, mode=9)
    stamp(a, 1)
    if DPF == 7:
        if not pre:
            a(dma_x(1))
        a(dma_w(1))
    a(dma_x(2)); a(dma_w(2))
    if DPF == 8:
        pf8(1, (6, 9), [(6, 8), (8, 9)])
    if DPF == 9:
        pf8(1, (5, 9), [(5, 7), (7, 9)])
    if DPF == 4:
        a(f"""
        s_cmp_eq_u32 s{sLI}, 0
        s_cbranch_scc0 L_lp1
        v_and_b32 v{vT[5]}, 7, v{vL}
        v_min_u32 v{vT[5]}, 4, v{vT[5]}
        v_lshrrev_b32 v{vT[4]}, 3, v{vL}
        v_mul_u32_u24 v{vT[4]}, 1152, v{vT[4]}
        v_lshl_add_u32 v{vT[5]}, v{vT[5]}, 7, v{vT[4]}
        s_mul_i32 s{sT}, s2, {8*1152}
        buffer_load_dword v{vT[6]}, v{vT[5]}, s[{SX}:{SX+3}], s{sT} offen offset:512
        s_branch L_lp2
        L_lp1:
        v_min_u32 v{vT[5]}, 23, v{vL}
        v_lshlrev_b32 v{vT[5]}, 7, v{vT[5]}
        s_and_b32 s{sT}, s{sP}, 15
        s_lshl_b32 s{sT}, s{sT}, 3
        s_add_u32 s{sT}, s{sT}, s{sTG}
        s_mul_i32 s{sT}, s{sT}, 3
        s_add_u32 s{sT}, s{sT}, s{sLI}
        s_mul_i32 s{sT}, s{sT}, {320*3456 // 384}
        s_add_u32 s{sT}, s{sT}, {256*3456 - 320*3456 // 384}
        buffer_load_dword v{vT[6]}, v{vT[5]}, s[{SW}:{SW+3}], s{sT} offen
        L_lp2:
        """)
    vN = 24
    a(f"""
    s_lshl_b32 s{sT}, s{sP}, 12
    s_add_u32 s{sT}, s{sT}, {FLAG_OFF}
    v_lshlrev_b32 v{vN}, 7, v{vL}
    v_add_u32 v{vN}, s{sT}, v{vN}
    v_and_b32 v{vN+1}, 7, v{vL}
    v_lshlrev_b32 v{vN+1}, 12, v{vN+1}
    s_lshl_b32 s{sT}, s{sP}, 7
    s_add_u32 s{sT}, s{sT}, {OFLAG_OFF}
    v_cmp_gt_u32 vcc, 32, v{vL}
    v_add_u32 v{vN+1}, s{sT}, v{vN+1}
    s_cmp_eq_u32 s{sLI}, 3
    v_cndmask_b32 v{vN}, v{vN+1}, v{vN}, vcc
    s_cselect_b32 exec_lo, -1, 1
    s_cselect_b32 exec_hi, 0xff, 0
    buffer_load_dword v{vN+1}, v{vN}, s[{SWS}:{SWS+3}], 0 offen sc1
    s_mov_b64 exec, -1
    """)
    for n in range(8):
        extra = (2 if DPF in (4, 8, 9) else 1) if n < 2 else 1 if n >= 6 else 0
        a(f"s_waitcnt vmcnt({(12 if n + 2 <= 8 else 0) + extra}) lgkmcnt(0)")
        if STAMPS == 7:
            a(f"s_memtime s[90:91]\ns_waitcnt lgkmcnt(0)\ns_barrier\ns_memtime s[94:95]\ns_waitcnt lgkmcnt(0)\ns_sub_u32 s90, s94, s90\ns_add_u32 s{74+2*n}, s90, s72")
        elif STAMPS == 8:
            a(f"s_barrier\ns_memtime s[{74+2*n}:{75+2*n}]")
        else:
            a("s_barrier")
        if n + 3 <= 8:
            a(gate_write(n + 3))
            a(dma_x(n + 3)); a(dma_w(n + 3))
        if n == 5:
            a(f"""
            s_brev_b32 s{sA}, 1
            s_movk_i32 s{sB}, 0x400
            s_cmp_eq_u32 s{sLI}, 3
            s_cbranch_scc0 L_nn1
            s_mov_b32 s44, -1
            s_movk_i32 s45, 0xff
            """)
            for b in range(6):
                a(f"""
                v_and_b32 v{vN}, {1 << b}, v{vN+1}
                v_cmp_ne_u32 vcc, 0, v{vN}
                s_nop 0
                s_and_b64 s[46:47], s[44:45], vcc
                s_andn2_b64 s[44:45], s[44:45], vcc
                s_bcnt1_i32_b64 s{sT}, s[46:47]
                s_bcnt1_i32_b64 s{sT2}, s[44:45]
                s_cmp_lt_u32 s{sT}, s{sT2}
                s_cselect_b64 s[44:45], s[46:47], s[44:45]
                s_cselect_b32 s{sT}, {1 << b}, 0
                s_or_b32 s{sA}, s{sA}, s{sT}
                """)
            a(f"""
            s_lshl_b32 s{sB}, s{sP}, 2
            L_nn1:
            v_mov_b32 v{vN}, s{sA}
            v_mov_b32 v{vN+1}, 0
            v_mov_b32 v{vN+2}, s{sA}
            v_mov_b32 v{vN+3}, s{sB}
            s_mov_b64 exec, 1
            buffer_atomic_cmpswap v[{vN}:{vN+1}], v{vN+3}, s[{SD}:{SD+3}], 0 offen sc0 sc1
            s_mov_b64 exec, -1
            """)
        if n == 6:
            lab = a.label("L_cr")
            a(f"""
            s_cmp_ge_u32 s{sLI}, 2
            s_cbranch_scc1 {lab}
            s_cmp_eq_u32 s{sLI}, 0
            s_cselect_b32 s{sT}, 0x3f803f80, 0
            s_cselect_b32 s{sT2}, {14*16}, 0
            s_add_u32 s{sT2}, s{sT2}, {2560 + 4*16}
            v_and_b32 v{vT[0]}, 7, v{vL}
            v_mul_u32_u24 v{vT[0]}, {VH}, v{vT[0]}
            v_lshrrev_b32 v{vT[2]}, 3, v{vL}
            v_mul_u32_u24 v{vT[2]}, {TILE}, v{vT[2]}
            v_lshrrev_b32 v{vT[3]}, 4, v{vL}
            v_lshl_add_u32 v{vT[2]}, v{vT[3]}, 9, v{vT[2]}
            v_add3_u32 v{vT[0]}, v{vT[0]}, v{vT[2]}, s{sT2}
            v_mov_b32 v{CP}, s{sT}
            v_mov_b32 v{CP+1}, s{sT}
            v_mov_b32 v{CP+2}, s{sT}
            v_mov_b32 v{CP+3}, s{sT}
            ds_write_b128 v{vT[0]}, {vr(CP,4)}
            {lab}:
            """)
    a(f"""
    s_load_dwordx2 s[{SWA}:{SWA+1}], s[0:1], 16          ; A_wo
    s_load_dwordx2 s[{SWB}:{SWB+1}], s[0:1], 40          ; B_wo
    s_load_dwordx2 s[{SO}:{SO+1}], s[0:1], 56            ; out
    s_mov_b32 s{SWA+2}, {WO_BYTES}
    s_mov_b32 s{SWB+2}, {WO_BYTES}
    s_mov_b32 s{SO+2}, {XBYTES}
    s_mov_b32 s{sU}, 0
    s_mov_b32 s{sD3}, {(RING[1]-RING[0]) & 0xffffffff:#x}
    s_mov_b32 s{sD3+1}, {(RING[2]-RING[1]) & 0xffffffff:#x}
    s_mov_b32 s{sD3+2}, {(RING[0]-RING[2]) & 0xffffffff:#x}
    s_mul_i32 s{sT}, s{sLI}, {TPAIR}
    v_add_u32 v{vT[0]}, s{sT}, v{vL16}
    s_add_u32 s{sKVp}, s{sKVp}, s{sT}
    s_mov_b32 s{sM0x}, s{sT}
    s_mul_i32 s{sA}, s{sTG}, {CHUNK}
    s_add_u32 s{sA}, s{sA}, s{sKVp}
    s_lshl_b32 s{sT}, s{sLI}, 10
    s_lshl_b32 s{sB}, s{sP}, 12
    s_add_u32 s{sB}, s{sB}, s{sT}
    s_add_u32 s{sWb}, s{sB}, {FLAG_OFF}
    v_and_b32 v{vFo}, 7, v{vL}
    v_lshlrev_b32 v{vFo}, 7, v{vFo}
    v_mov_b32 v{vT[1]}, {SYNC + 52}
    s_lshl_b32 s{sT}, s{sTG}, 7
    v_mov_b32 v{vT[2]}, s{sT}
    v_lshrrev_b32 v{vT[3]}, 3, v{vL}
    v_mul_u32_u24 v{vT[3]}, 1152, v{vT[3]}
    v_bfe_u32 v{vT[4]}, v{vL}, 4, 1
    v_lshlrev_b32 v{vT[4]}, 2, v{vT[4]}
    v_and_b32 v{vT[5]}, 7, v{vL}
    v_xor_b32 v{vT[5]}, v{vT[5]}, v{vT[4]}
    v_lshl_add_u32 v{vWO}, v{vT[5]}, 4, v{vT[3]}
    s_waitcnt lgkmcnt(0)
    s_barrier
    """)
    stamp(a, 3, True)
    for i in range(10):
        a(f"ds_read_b128 {vr(CP+4*i,4)}, v{vT[0]} offset:{1024*i}")
    for i in range(10):
        if i == 9:
            a("s_mov_b32 exec_hi, 0")
        if i in (4, 8):
            a(f"s_add_u32 s{sA}, s{sA}, 4096")
        a(f"s_waitcnt lgkmcnt({9-i})")
        a(f"buffer_store_dwordx4 {vr(CP+4*i,4)}, v{vL16}, s[{SWS}:{SWS+3}], s{sA} offen offset:{1024*(i&3)} sc1")
    a(f"""
    s_mov_b64 exec, 1
    s_cmp_eq_u32 s{sLI}, 3
    s_cbranch_scc0 L_nn2
    s_waitcnt vmcnt(10)
    v_cmp_eq_u32 vcc, 0, v{vN}
    s_nop 1
    v_cndmask_b32 v{vN}, v{vN}, v{vN+2}, vcc
    ds_write_b32 v{vT[1]}, v{vN}
    L_nn2:
    ds_read_b32 v{vF}, v{vT[1]}
    s_waitcnt lgkmcnt(0)
    v_cmp_eq_u32 vcc, 0, v{vF}
    s_cbranch_vccnz L_nn2
    v_readfirstlane_b32 s{sNON}, v{vF}
    s_waitcnt vmcnt(0)
    buffer_store_dword v{vF}, v{vT[2]}, s[{SWS}:{SWS+3}], s{sWb} offen sc1
    s_mov_b64 exec, -1
    s_mov_b32 s{sRDY}, 0
    s_mov_b32 s{sN}, 0
    s_lshl_b32 s{sXb}, 1, s{sTG}
    L_ll:
    s_add_u32 s{sM0x}, s{sM0x}, s{sD3}
    s_mov_b32 s{sT}, s{sD3}
    s_mov_b32 s{sD3}, s{sD3+1}
    s_mov_b32 s{sD3+1}, s{sD3+2}
    s_mov_b32 s{sD3+2}, s{sT}
    L_poll:
    s_andn2_b32 s{sT}, s{sRDY}, s{sXb}
    s_cbranch_scc1 L_rdy
    buffer_load_dword v{vF}, v{vFo}, s[{SWS}:{SWS+3}], s{sWb} offen sc1
    s_waitcnt vmcnt(0)
    v_cmp_eq_u32 vcc, s{sNON}, v{vF}
    s_sub_u32 s{sSPIN}, s{sSPIN}, 1
    s_nop 0
    s_cselect_b32 s{sRDY}, -1, vcc_lo
    s_and_b32 s{sRDY}, s{sRDY}, 0xff
    s_branch L_poll
    L_rdy:
    s_ff1_i32_b32 s{sC}, s{sT}
    s_bitset1_b32 s{sXb}, s{sC}
    s_mul_i32 s{sA}, s{sC}, {CHUNK}
    s_add_u32 s{sA}, s{sA}, s{sKVp}
    """)
    for i in range(10):
        if i % 4 == 0:
            a(f"s_add_u32 m0, s{sM0x}, {1024*i}")
            a(f"s_add_u32 s{sT}, s{sA}, {1024*i}")
        if i == 9:
            a("s_mov_b32 exec_hi, 0")
        if True:
            a(f"buffer_load_dwordx4 v{vL16}, s[{SWS}:{SWS+3}], s{sT} offen offset:{1024*(i&3)} sc1 lds")
    a(f"""
    s_mov_b32 exec_hi, -1
    L_d9:
    s_cmp_eq_u32 s{sN}, 1
    s_cbranch_scc0 L_ncl
    s_lshl_b32 s{sT}, s{sTG}, 3
    s_lshl_b32 s{sT2}, s{sLI}, 1
    s_add_u32 s{sT}, s{sT}, s{sT2}
    s_mul_i32 s{sA}, s{sT}, {OTILE}
    s_mul_i32 s{sT}, s{sP}, {OPAIR}
    s_add_u32 s{sA}, s{sA}, s{sT}
    s_add_u32 s{sA}, s{sA}, {O_OFF}
    s_add_u32 s{sB}, s{sA}, {OTILE}
    v_mov_b32 v{CP}, -1
    v_mov_b32 v{CP+1}, -1
    v_mov_b32 v{CP+2}, -1
    v_mov_b32 v{CP+3}, -1
    buffer_store_dwordx4 {vr(CP,4)}, v{vL16}, s[{SWS}:{SWS+3}], s{sA} offen sc1
    buffer_store_dwordx4 {vr(CP,4)}, v{vL16}, s[{SWS}:{SWS+3}], s{sA} offen offset:1024 sc1
    buffer_store_dwordx4 {vr(CP,4)}, v{vL16}, s[{SWS}:{SWS+3}], s{sB} offen sc1
    buffer_store_dwordx4 {vr(CP,4)}, v{vL16}, s[{SWS}:{SWS+3}], s{sB} offen offset:1024 sc1
    s_mov_b64 exec, 0xffff
    buffer_store_dwordx4 {vr(CP,4)}, v{vL16}, s[{SWS}:{SWS+3}], s{sA} offen offset:2048 sc1
    buffer_store_dwordx4 {vr(CP,4)}, v{vL16}, s[{SWS}:{SWS+3}], s{sB} offen offset:2048 sc1
    s_mov_b64 exec, -1
    L_ncl:
    s_cmp_eq_u32 s{sLI}, 0
    s_cbranch_scc0 L_nfl
    s_cmp_eq_u32 s{sN}, 2
    s_cbranch_scc0 L_n2
    s_lshl_b32 s{sT}, s{sTG}, 12
    s_lshl_b32 s{sT2}, s{sP}, 7
    s_add_u32 s{sT}, s{sT}, s{sT2}
    s_add_u32 s{sT}, s{sT}, {OFLAG_OFF}
    v_mov_b32 v{vT[3]}, 0
    v_mov_b32 v{vF}, s{sNON}
    s_mov_b64 exec, 1
    buffer_store_dword v{vF}, v{vT[3]}, s[{SWS}:{SWS+3}], s{sT} offen sc1
    s_mov_b64 exec, -1
    L_n2:
    s_cmp_eq_u32 s{sN}, {CLAIM}
    s_cbranch_scc0 L_nfl
    s_and_b32 s{sA}, s2, 7
    v_and_b32 v{vT[5]}, 7, v{vL}
    v_lshlrev_b32 v{vT[4]}, 2, v{vT[5]}
    L_cl:
    s_lshl_b32 s{sT}, s{sA}, 2
    v_mov_b32 v{vT[3]}, s{sT}
    v_mov_b32 v{vF}, 1
    s_mov_b64 exec, 1
    buffer_atomic_add v{vF}, v{vT[3]}, s[{SD}:{SD+3}], 0 offen offset:128 sc0 sc1
    s_mov_b64 exec, -1
    s_waitcnt vmcnt(0)
    v_readfirstlane_b32 s{sB}, v{vF}
    s_nop 3
    s_cmp_lt_u32 s{sB}, 27
    s_cbranch_scc1 L_cl2
    """)
    if STEAL:
        a(f"""
        buffer_load_dword v{vF}, v{vT[4]}, s[{SD}:{SD+3}], 0 offen offset:128 sc1
        s_waitcnt vmcnt(0)
        v_lshl_or_b32 v{vF}, v{vF}, 3, v{vT[5]}
        s_nop 0
        v_readlane_b32 s{sA}, v{vF}, 0
        """)
        for q in range(1, 8):
            a(f"v_readlane_b32 s{sT}, v{vF}, {q}\ns_nop 3\ns_min_u32 s{sA}, s{sA}, s{sT}")
        a(f"""
        s_lshr_b32 s{sT}, s{sA}, 3
        s_and_b32 s{sA}, s{sA}, 7
        s_sub_u32 s{sSPIN}, s{sSPIN}, 1
        s_cselect_b32 s{sT}, 27, s{sT}
        s_cmp_lt_u32 s{sT}, 27
        s_cbranch_scc1 L_cl
        s_mov_b32 s{sSPIN}, {SPIN_LIMIT}
        """)
    a(f"""
    s_movk_i32 s{sB}, 0xff
    L_cl2:
    s_lshl_b32 s{sA}, s{sA}, 8
    s_or_b32 s{sA}, s{sA}, s{sB}
    v_mov_b32 v{vF}, s{sA}
    v_mov_b32 v{vT[3]}, {SYNC + 48}
    ds_write_b32 v{vT[3]}, v{vF}
    s_waitcnt lgkmcnt(0)
    L_nfl:
    s_cmp_eq_u32 s{sN}, {CLAIM + 1}
    s_cbranch_scc0 L_nw3
    v_mov_b32 v{vT[3]}, {SYNC + 48}
    ds_read_b32 v{vF}, v{vT[3]}
    s_waitcnt lgkmcnt(0)
    """)
    unit_decode(vF)
    a(f"""
    s_cmp_ge_u32 s{sU}, 27
    s_cbranch_scc1 L_on1
    s_lshl_b32 s{sT}, s{sCG}, 7
    v_add_u32 v{vWO}, s{sT}, v{vWO}
    """)
    wo_load(38, 42)
    wo_load(80, 121)
    a(f"""
    L_nw3:
    s_cmp_eq_u32 s{sN}, 6
    s_cbranch_scc0 L_on1
    s_cmp_ge_u32 s{sU}, 27
    s_cbranch_scc1 L_on1
    v_mul_u32_u24 v{vT[3]}, 1152, v{vL}
    s_lshl_b32 s{sT}, s{sCG}, 7
    s_mul_i32 s{sT2}, s{sLI}, {48*1152}
    s_add_u32 s{sT2}, s{sT2}, s{sT}
    s_add_u32 s{sT2}, s{sT2}, {392*1152}
    buffer_load_dword v{vT[4]}, v{vT[3]}, s[{SWB}:{SWB+3}], s{sT2} offen
    """)
    if TLBW:
        a(f"""
        s_mul_i32 s{sT}, s{sTG2}, {256*1152}
        v_lshlrev_b32 v{vT[3]}, 2, v{vT[3]}
        buffer_load_dword v{vT[4]}, v{vT[3]}, s[{SO}:{SO+3}], s{sT} offen
        """)
    a(f"""
    v_and_b32 v{vT[0]}, 31, v{vL}
    v_lshlrev_b32 v{vT[3]}, 7, v{vT[0]}
    v_lshlrev_b32 v{vT[0]}, 2, v{vT[0]}
    s_lshl_b32 s{sB}, s{sTG2}, 12
    s_add_u32 s{sB}, s{sB}, {OFLAG_OFF}
    L_on0:
    buffer_load_dword v{vF}, v{vT[0]}, s[{SD}:{SD+3}], 0 offen sc1
    buffer_load_dword v{vT[4]}, v{vT[3]}, s[{SWS}:{SWS+3}], s{sB} offen sc1
    s_waitcnt vmcnt(0)
    v_cmp_le_i32 vcc, 0, v{vF}
    v_cmp_ne_u32 s[44:45], v{vF}, v{vT[4]}
    s_sub_u32 s{sSPIN}, s{sSPIN}, 1
    s_cbranch_scc1 L_on1
    s_or_b64 vcc, vcc, s[44:45]
    s_cbranch_vccz L_on1
    s_sleep 8
    s_branch L_on0
    L_on1:
    s_waitcnt vmcnt(0)
    """)
    if STAMPS == 1:
        a(f"s_cmp_eq_u32 s{sN}, 0\ns_cbranch_scc0 L_st4")
        stamp(a, 4)
        a("L_st4:")
    if STAMPS == 6:
        a("s_barrier\ns_memtime s[88:89]\ns_waitcnt lgkmcnt(0)")
        for q in range(7):
            a(f"s_cmp_eq_u32 s{sN}, {q}\ns_cselect_b32 s{74+2*q}, s88, s{74+2*q}")
    elif STAMPS == 5:
        a("s_memtime s[88:89]\ns_waitcnt lgkmcnt(0)\ns_barrier\ns_memtime s[90:91]\ns_waitcnt lgkmcnt(0)\ns_sub_u32 s88, s90, s88\ns_add_u32 s88, s88, s72")
        for q in range(7):
            a(f"s_cmp_eq_u32 s{sN}, {q}\ns_cselect_b32 s{74+2*q}, s88, s{74+2*q}")
    else:
        a("s_barrier")
    a(f"""
    s_add_u32 s{sN}, s{sN}, 1
    s_cmp_lt_u32 s{sN}, 7
    s_cbranch_scc1 L_ll
    s_mov_b32 s{sSPIN}, {SPIN_LIMIT}
    s_cmp_ge_u32 s{sU}, 27
    s_cbranch_scc1 L_end
    """)
    wo_load(0, 38)
    wo_load(42, 72)
    wo_load(72, 80)
    a(f"""
    v_and_b32 v12, 7, v{vL}
    v_lshlrev_b32 v12, 2, v12
    v_add_u32 v12, {SYNC}, v12
    L_pg:
    s_sleep 2
    ds_read_b32 v13, v12
    s_waitcnt lgkmcnt(0)
    v_cmp_gt_u32 vcc, 7, v13
    s_cbranch_vccnz L_pg
    """)
    wo_load(121, 144)
    a(f"""
    s_lshl_b32 s{sT}, s{sLI}, 2
    s_add_u32 s{sT}, s{sT}, {SYNC + 32}
    v_mov_b32 v12, s{sT}
    v_mov_b32 v13, 8
    s_waitcnt vmcnt(0)
    ds_write_b32 v12, v13
    s_setprio 0
    s_branch L_tail
    """)
    a.sec("tail")

    vOH = 5
    vWm = [3, 4]; vWh = [8, 9]
    vT = [10, 11, 12, 13, 14, 6]
    vPw, vPr, vOut, vPr2, vDw, vDr = 163, 164, 165, 166, 167, 7
    WS_ = [16, 32]
    OF = 56
    ACC = [128, 144]
    DEPTH = int(os.environ.get("DEPTH", "2"))
    TPRIO = int(os.environ.get("TPRIO", "0"))

    def omain(i, j):
        return OF + 8 * i + 4 * j
    OHI = OF + 64

    def issue(i):
        a(f"""
        s_add_u32 s{sT}, s{sFl}, {i*OPAIR}
        buffer_load_dwordx4 {vr(omain(i,0),4)}, v{vL16}, s[{SWS}:{SWS+3}], s{sT} offen sc1
        buffer_load_dwordx4 {vr(omain(i,1),4)}, v{vL16}, s[{SWS}:{SWS+3}], s{sT} offen offset:1024 sc1
        buffer_load_dword v{OHI+i}, v{vOH}, s[{SWS}:{SWS+3}], s{sT} offen offset:2048 sc1
        """)

    a(f"""
    L_tail:
    s_cmp_ge_u32 s{sU}, 27
    s_cbranch_scc1 L_end
    s_cmp_ge_u32 s{sT0}, 8
    s_cbranch_scc1 L_end
    v_lshlrev_b32 v{vOH}, 2, v{vL}
    s_mov_b32 s{sI}, 0
    v_min_u32 v{vT[2]}, 11, v{vL}
    """)
    if LEARLY:
        a(f"""
        s_cmp_lt_u32 s{sWV}, 4
        s_cselect_b32 s{sT}, 8, 0
        v_max_u32 v{vT[2]}, s{sT}, v{vT[2]}
        """)
    a(f"""
    v_lshlrev_b32 v{vT[2]}, 2, v{vT[2]}
    v_add_u32 v{vT[2]}, {SYNC}, v{vT[2]}
    L_ws1:
    ds_read_b32 v{vT[3]}, v{vT[2]}
    s_waitcnt lgkmcnt(0)
    v_cmp_gt_u32 vcc, 8, v{vT[3]}
    s_cbranch_vccz L_go
    s_sleep 1
    s_branch L_ws1
    L_go:
    """)
    stamp(a, 3, mode=3)
    if TPRIO:
        a("s_setprio 3")
    for i in range(DEPTH):
        issue(i)
    a(f"""
    v_and_b32 v{vT[0]}, 31, v{vL}                ; tau
    v_lshrrev_b32 v{vT[1]}, 5, v{vL}             ; h
    v_bfe_u32 v{vT[2]}, v{vL}, 2, 2              ; r
    v_and_b32 v{vT[3]}, 3, v{vL}                 ; c
    v_bfe_u32 v{vT[4]}, v{vL}, 4, 1              ; sub
    v_lshlrev_b32 v{vT[3]}, 3, v{vT[3]}
    v_lshl_add_u32 v{vT[3]}, v{vT[4]}, 5, v{vT[3]}
    s_mul_i32 s{sT}, s{sKQ}, {288*128}
    v_add_u32 v{vT[3]}, s{sT}, v{vT[3]}
    v_lshrrev_b32 v{vT[4]}, 1, v{vT[2]}          ; r>>1
    v_lshl_add_u32 v{vT[5]}, v{vT[1]}, 2, v{vT[2]}
    v_lshl_add_u32 v{vT[5]}, v{vT[5]}, 7, v{vT[3]}
    v_lshl_add_u32 v{vWm[0]}, v{vT[4]}, 6, v{vT[5]}
    v_xor_b32 v{vWm[1]}, 64, v{vWm[0]}
    v_lshl_add_u32 v{vT[5]}, v{vT[4]}, 1, v{vT[1]}
    v_mul_u32_u24 v{vT[5]}, 18, v{vT[5]}
    v_and_b32 v{vT[2]}, 1, v{vT[2]}
    v_add3_u32 v{vT[5]}, v{vT[5]}, v{vT[2]}, 16
    v_lshl_add_u32 v{vT[5]}, v{vT[5]}, 7, v{vT[3]}
    v_lshl_add_u32 v{vWh[0]}, v{vT[1]}, 6, v{vT[5]}
    v_xor_b32 v{vWh[1]}, 64, v{vWh[0]}
    s_lshl_b32 s{sT}, s{sTT}, 13
    s_mul_i32 s{sT2}, s{sKQ}, {288*128}
    s_add_u32 s{sA}, s{sT}, s{sT2}
    v_add_u32 v{vPw}, s{sA}, v{vL16}
    s_lshl_b32 s{sT2}, s{sKQ}, 11
    s_add_u32 s{sA}, s{sT}, s{sT2}
    v_add_u32 v{vPr}, s{sA}, v{vL16}
    v_add_u32 v{vPr2}, {2*288*128}, v{vPr}
    s_lshl_b32 s{sT}, s{sWV}, 2
    s_add_u32 s{sT}, s{sT}, {SYNC + 64}
    v_mov_b32 v{vDw}, s{sT}
    s_sub_u32 s{sT}, s{sT0}, s{sTT}
    s_cmp_eq_u32 s{sT}, 6
    s_cselect_b32 s{sT}, 1, 2
    v_min_u32 v{vDr}, s{sT}, v{vL}
    s_mul_i32 s{sT}, s{sKQ}, 12
    s_add_u32 s{sT}, s{sT}, {SYNC + 64}
    v_lshlrev_b32 v{vDr}, 2, v{vDr}
    v_add_u32 v{vDr}, s{sT}, v{vDr}
    s_lshl_b32 s{sT}, s{sTG2}, 8
    s_lshl_b32 s{sT2}, s{sT0}, 5
    s_add_u32 s{sT}, s{sT}, s{sT2}
    s_mul_i32 s{sOm}, s{sT}, 1152
    s_lshl_b32 s{sT}, s{sCG}, 7
    s_add_u32 s{sOm}, s{sOm}, s{sT}
    s_lshl_b32 s{sT}, s{sKQ}, 5
    s_add_u32 s{sOm}, s{sOm}, s{sT}
    v_mul_u32_u24 v{vOut}, 1152, v{vT[0]}
    v_lshl_add_u32 v{vOut}, v{vT[1]}, 4, v{vOut}
    """)
    for r in range(ACC[0], ACC[0] + 32):
        a(f"v_mov_b32 v{r}, 0")
    stamp(a, 7)
    stamp(a, 4, mode=3)

    def wreads(blk, st):
        for f in range(2):
            b = WS_[st] + 8 * f
            m = 2 * blk + f
            for ct in range(2):
                if m < 16:
                    ad = vWm[ct ^ (m & 1)]
                    o0 = m * 18 * 128; o1 = o0 + 8 * 128
                else:
                    ad = vWh[ct]
                    o0 = (m - 16) * 8 * 18 * 128; o1 = o0 + 4 * 18 * 128
                a(f"ds_read_b64_tr_b16 {vr(b+4*ct,2)}, v{ad} offset:{o0}")
                a(f"ds_read_b64_tr_b16 {vr(b+4*ct+2,2)}, v{ad} offset:{o1}")

    def verify(i, skip):
        o0, o1 = omain(i, 0), omain(i, 1)
        a(f"""
        v_max3_u32 v{vT[2]}, v{o0}, v{o0+1}, v{o0+2}
        v_max3_u32 v{vT[3]}, v{o0+3}, v{o1}, v{o1+1}
        v_max3_u32 v{vT[2]}, v{vT[2]}, v{o1+2}, v{o1+3}
        v_max3_u32 v{vT[2]}, v{vT[2]}, v{vT[3]}, v{OHI+i}
        v_cmp_eq_u32 vcc, -1, v{vT[2]}
        s_cbranch_vccnz {skip}
        s_bitset1_b32 s{sI}, {i}
        """)

    def mm(st, o0, o1):
        for f, o in ((0, o0), (1, o1)):
            for ct in range(2):
                a(f"v_mfma_f32_32x32x16_bf16 {vr(ACC[ct],16)}, {vr(WS_[st]+8*f+4*ct,4)}, {vr(o,4)}, {vr(ACC[ct],16)}")

    wreads(0, 0)
    for i in range(8):
        a(f"s_waitcnt vmcnt({3*min(DEPTH-1, 7-i)}) lgkmcnt(0)")
        wreads(i + 1, (i + 1) & 1)
        verify(i, f"L_s{i}")
        mm(i & 1, omain(i, 0), omain(i, 1))
        a(f"L_s{i}:")
        if TPRIO and i in (0, 2, 4):
            a(f"s_setprio {2 - i // 2}")
        if i + DEPTH < 8:
            issue(i + DEPTH)
    a(f"""
    L_chk:
    s_cmp_eq_u32 s{sI}, 0xff
    s_cbranch_scc0 L_round
    L_hi:
    v_mov_b32 v{vT[2]}, 1
    s_waitcnt lgkmcnt(0)
    ds_write_b32 v{vDw}, v{vT[2]}
    """)
    mm(0, OHI, OHI + 4)
    stamp(a, 8)
    stamp(a, 7, mode=3)
    a(f"""
    L_qs:
    ds_read_b32 v{vT[3]}, v{vDr}
    s_waitcnt lgkmcnt(0)
    v_cmp_eq_u32 vcc, 0, v{vT[3]}
    s_cbranch_vccnz L_qs
    s_nop 6
    """)
    for i in range(8):
        a(f"ds_write_b128 v{vPw}, {vr(ACC[0]+4*i,4)} offset:{1024*i}")
    a("s_waitcnt lgkmcnt(0)")
    a("s_barrier                                    ; BT4")
    stamp(a, 8, True, mode=3)
    for src in range(4):
        for g in range(2):
            a(f"ds_read_b128 {vr(OF+8*src+4*g,4)}, v{vPr if src < 2 else vPr2} offset:{(src&1)*288*128 + g*1024}")
    a("s_waitcnt lgkmcnt(4)")
    for q in range(8):
        a(f"v_add_f32 v{OF+q}, v{OF+q}, v{OF+8+q}")
    a("s_waitcnt lgkmcnt(0)")
    for q in range(8):
        a(f"v_add_f32 v{OF+16+q}, v{OF+16+q}, v{OF+24+q}")
    for q in range(8):
        a(f"v_add_f32 v{OF+q}, v{OF+q}, v{OF+16+q}")
    for i in range(4):
        a(f"v_cvt_pk_bf16_f32 v{WS_[0]+i}, v{OF+2*i}, v{OF+2*i+1}")
    a(f"""
    s_nop 1
    v_permlane32_swap_b32 v{WS_[0]}, v{WS_[0]+2}
    v_permlane32_swap_b32 v{WS_[0]+1}, v{WS_[0]+3}
    buffer_store_dwordx4 {vr(WS_[0],4)}, v{vOut}, s[{SO}:{SO+3}], s{sOm} offen {os.environ.get('OUTF', '')}
    """)
    stamp(a, 9, mode=3)
    a("s_branch L_end")
    a(f"""
    L_round:
    s_sub_u32 s{sSPIN}, s{sSPIN}, 1
    s_cbranch_scc1 L_hi
    {"s_sleep " + os.environ["TSLEEP"] if "TSLEEP" in os.environ else ""}
    s_not_b32 s{sBt}, s{sI}
    """)
    if int(os.environ.get("HINT", "0")):
        a(f"""
        v_and_b32 v{vT[2]}, 7, v{vL}
        v_mul_u32_u24 v{vT[2]}, {OPAIR}, v{vT[2]}
        v_bfe_u32 v{vT[3]}, v{vL}, 3, 1
        v_lshl_add_u32 v{vT[2]}, v{vT[3]}, 7, v{vT[2]}
        s_mov_b64 exec, 0xffff
        buffer_load_dword v{vT[3]}, v{vT[2]}, s[{SWS}:{SWS+3}], s{sFl} offen offset:2048 sc1
        s_waitcnt vmcnt(0)
        v_cmp_eq_u32 vcc, -1, v{vT[3]}
        s_mov_b64 exec, -1
        s_nop 0
        s_lshr_b32 s{sT}, vcc_lo, 8
        s_or_b32 s{sT}, s{sT}, vcc_lo
        s_andn2_b32 s{sBt}, s{sBt}, s{sT}
        s_and_b32 s{sBt}, s{sBt}, 0xff
        s_cbranch_scc0 L_round
        """)
    stamp(a, 5, mode=3)
    for i in range(8):
        a(f"s_bitcmp1_b32 s{sBt}, {i}\ns_cbranch_scc0 L_ni{i}")
        issue(i)
        a(f"L_ni{i}:")
    for i in range(8):
        a(f"s_bitcmp1_b32 s{sBt}, {i}\ns_cbranch_scc0 L_nc{i}")
        wreads(i, 1)
        a("s_waitcnt vmcnt(0)")
        verify(i, f"L_nc{i}")
        a("s_waitcnt lgkmcnt(0)")
        mm(1, omain(i, 0), omain(i, 1))
        a(f"L_nc{i}:")
    a("s_branch L_chk")
    a.sec("end")
    a("L_end:")
    if DIAG >= 0:
        a(f"""
        s_cmp_eq_u32 s{sWV}, 9
        s_cbranch_scc0 L_done
        s_cmp_lt_u32 s2, {os.environ.get("DIAGWG", "256")}
        s_cbranch_scc0 L_done
        s_waitcnt vmcnt(0) lgkmcnt(0)
        s_memrealtime s[82:83]
        s_waitcnt lgkmcnt(0)
        s_mov_b32 s{sT}, 0
        """)
        if DIAG > 0:
            a(f"""
            s_sub_u32 s{sT}, s{72+2*DIAG}, s96
            s_lshl_b32 s{sT}, s{sT}, 2
            s_cmp_lt_u32 s{sWV}, 4
            s_cselect_b32 s{sT}, 0, s{sT}
            """)
        a(f"""
        s_add_u32 s{sT}, s{sT}, 10000
        L_dg:
        s_sleep 8
        s_memrealtime s[98:99]
        s_waitcnt lgkmcnt(0)
        s_sub_u32 s{sT2}, s98, s96
        s_cmp_lt_u32 s{sT2}, s{sT}
        s_cbranch_scc1 L_dg
        """)
    elif STAMPS:
        a(f"""
        s_waitcnt vmcnt(0) lgkmcnt(0)
        s_memtime s[92:93]
        s_memrealtime s[98:99]
        s_waitcnt lgkmcnt(0)
        s_mov_b64 exec, 1
        s_lshl_b32 s{sT}, s2, 4
        s_add_u32 s{sT}, s{sT}, s{sWV}
        s_lshl_b32 s{sT}, s{sT}, 6
        s_add_u32 s{sT}, s{sT}, {STAMP_OFF}
        v_mov_b32 v0, 0
        """)
        for n in range(14):
            a(f"v_mov_b32 v1, s{72+2*n}")
            a(f"buffer_store_dword v1, v0, s[{SWS}:{SWS+3}], s{sT} offen offset:{4*n}")
            a("s_nop 0")
    a("""
    L_done:
    s_endpgm
    """)
    return name, NV


def main():
    out = sys.argv[1] if len(sys.argv) > 1 else f"cdna_kernels/{NAME}.s"
    a = Asm()
    k, nv = gen(a)
    hdr = open(f"cdna_kernels/{NAME}.s.ref").read().split("\n")
    hdr = [l for l in hdr if l.startswith(";") and "@launch" not in l]
    txt = "\n".join(hdr) + "\n"
    txt += f"; @launch grid=(256,1,1) block=(768,1,1) lds={LDS_BYTES}\n"
    txt += '.amdgcn_target "amdgcn-amd-amdhsa--gfx950"\n.text\n'
    txt += a.text()
    txt += f""".section .rodata,"a"
.p2align 6
.amdhsa_kernel {k}
  .amdhsa_next_free_vgpr {nv}
  .amdhsa_next_free_sgpr {102 if STAMPS else 72}
  .amdhsa_accum_offset {(nv + 3) // 4 * 4}
  .amdhsa_group_segment_fixed_size 0
  .amdhsa_kernarg_size 80
  .amdhsa_user_sgpr_count 2
  .amdhsa_user_sgpr_kernarg_segment_ptr 1
  .amdhsa_system_sgpr_workgroup_id_x 1
.end_amdhsa_kernel
"""
    open(out, "w").write(txt)


if __name__ == "__main__":
    main()
```

```python
import math, os, struct, sys

NAME = "gated_mix__mha_block__mha_block__prompt"

VH = 320
VG = 2 * VH
TILE = 2048 + 4 * VG
TPAIR = 512 + 2 * TILE
CHUNK = 4 * TPAIR


def toff(t):
    return (t >> 1) * TPAIR + (t & 1) * TILE
KV_OFF = 0
FLAG_OFF = 0x0A00000
OFLAG_OFF = 0x0A20000
O_OFF = 0x0B00000
OPAIR = 2304
OTILE = 32 * OPAIR
WS_USED = 0x1000000
XBYTES = 2048 * 576 * 2
WQKV_BYTES = 576 * 1728 * 2
WO_BYTES = 576 * 576 * 2
CSCALE = (18 ** -0.5) * math.log2(math.e)

STAMPS = int(os.environ.get("STAMPS", "0"))
STAMP_OFF = 0x1000000
if STAMPS:
    WS_USED = 0x1100000
ALIGN = int(os.environ.get("ALIGN", "1"))
STEAL = int(os.environ.get("STEAL", "1"))
TLBW = int(os.environ.get("TLBW", "2"))
DIAG = int(os.environ.get("DIAG", "-1"))
PRIOI = int(os.environ.get("PRIOI", "6"))
VMASK = int(os.environ.get("VMASK", "1"))
VPOS = int(os.environ.get("VPOS", "3"))
CLAIM = int(os.environ.get("CLAIM", "4"))
LEARLY = int(os.environ.get("LEARLY", "0"))
GMIX = int(os.environ.get("GMIX", "0"))
SHIFT = float(os.environ.get("SHIFT", "42"))
CPF2 = int(os.environ.get("CPF2", "0"))
EARLYB = int(os.environ.get("EARLYB", "1"))
CPF = int(os.environ.get("CPF", "1"))
DPF = int(os.environ.get("DPF", "4"))

G_SLOT = 49152
LDS_BYTES = 163840
SCR = CHUNK
SYNC = LDS_BYTES - 1024
RING = [0, SYNC - CHUNK, CHUNK + 4096]
SPIN_LIMIT = 1 << 19


WMASK = ~((1 << 15) | (1 << 27) | (1 << 39) | (1 << 51)) & ((1 << 64) - 1)


def f32bits(x):
    return struct.unpack("<I", struct.pack("<f", x))[0]


class Asm:
    def __init__(self):
        self.secs = {"entry": []}
        self.lines = self.secs["entry"]
        self.nlab = 0

    def sec(self, name):
        self.lines = self.secs.setdefault(name, [])

    def __call__(self, s):
        for ln in s.strip("\n").split("\n"):
            ln = ln.strip()
            if not ln:
                continue
            if ln.endswith(":") or ln.startswith("."):
                self.lines.append(ln)
            else:
                self.lines.append("    " + ln)

    def label(self, base="L"):
        self.nlab += 1
        return f"{base}_{self.nlab}"

    def text(self):
        order = ["entry", "loader", "compute", "tail", "exact", "end"]
        assert sorted(order) == sorted(self.secs)
        return "\n".join("\n".join(self.secs[k]) for k in order) + "\n"


def isize(ln):
    t = ln.split(";")[0].strip()
    if not t or t.endswith(":"):
        return 0
    op = t.split()[0]
    if op.startswith(("v_mfma", "v_smfmac", "ds_", "buffer_")) or op.endswith("_e64"):
        return 8
    assert op in ("v_exp_f32", "v_add_u32", "v_mov_b32") or op.startswith("s_"), t
    assert "0x" not in t, t
    return 4


def align8(lines):
    out, off = [], 0
    for ln in lines:
        n = isize(ln)
        if n == 8 and off % 8:
            o = off
            for k in range(len(out) - 1, -1, -1):
                m = isize(out[k])
                if m == 8:
                    k = -1
                    break
                o -= m
                if m == 4 and o % 8 == 0 and out[k].split()[0] == "v_exp_f32":
                    out[k] = out[k].replace("v_exp_f32", "v_exp_f32_e64")
                    break
            else:
                k = -1
            if k != -1:
                off += 4
        out.append(ln)
        off += n
    return out


def vr(b, n):
    return f"v[{b}:{b+n-1}]"


def stamp(a, n, wait=False, mode=1):
    if STAMPS == mode:
        a(f"{'s_memtime' if mode in (1, 9) else 's_memrealtime'} s[{72+2*n}:{73+2*n}]")
        if wait:
            a("s_waitcnt lgkmcnt(0)")


def gen(a):
    name = NAME + "_kernel"
    a(f"""
.globl {name}
.p2align 8
.type {name},@function
{name}:
""")
    SX, SW, SWS, SG, SD = 4, 8, 12, 16, 52
    SWA, SWB, SO = 4, 8, 16
    sW_, sP, sTG, sWV, sJ, sTP = 20, 21, 22, 23, 24, 25
    sXb, sWb, sM0x, sM0w, sA, sB, sT, sT2 = 26, 27, 28, 29, 30, 31, 32, 33
    sMASK = 34
    sKVp, sC, sN, sRS = 36, 37, 38, 39
    sDl, sU, sOm, sOh = 56, 57, 58, 59
    sNON, sRDY, sFB, sSPIN = 60, 61, 62, 63
    sCG, sT0, sTT, sKQ, sTG2 = 64, 65, 66, 67, 68
    sC2 = 70
    sD3 = 48
    sLI = sWV
    vL, vL16 = 1, 2
    NV = 168
    a(f"""
    s_cmp_ge_u32 s2, 256
    s_cbranch_scc1 L_done
    """)
    if STAMPS:
        a("s_memtime s[72:73]\ns_memrealtime s[96:97]")
    a(f"""
    s_load_dwordx2 s[{SX}:{SX+1}], s[0:1], 0            ; x
    s_bitcmp1_b32 s2, 2
    s_cselect_b32 s{sT}, 32, 8
    s_load_dwordx2 s[{SW}:{SW+1}], s[0:1], s{sT}
    s_load_dwordx2 s[{SG}:{SG+1}], s[0:1], 48           ; gate_w
    s_load_dwordx2 s[{SD}:{SD+1}], s[0:1], 64           ; debug
    s_load_dwordx2 s[{SWS}:{SWS+1}], s[0:1], 72         ; ws
    """)
    if CPF:
        a(f"""
        s_getpc_b64 s[{sA}:{sA+1}]
        v_subrev_u32 v10, 256, v0
        v_lshlrev_b32 v10, 7, v10
        v_cmp_gt_u32 vcc, L_done - {name} - 64, v10
        s_and_saveexec_b64 s[{sT}:{sT+1}], vcc
        s_cbranch_execz L_cpf
        global_load_dword v7, v10, s[{sA}:{sA+1}]
        L_cpf:
        s_mov_b64 exec, -1
        """)
    a(f"""
    v_lshrrev_b32 v10, 6, v0
    v_and_b32 v{vL}, 63, v0
    s_bfe_u32 s{sTG}, s2, 0x30003
    v_readfirstlane_b32 s{sWV}, v10
    s_and_b32 s{sP}, s2, 7
    s_lshl_b32 s{sP}, s{sP}, 2
    s_lshr_b32 s{sT2}, s2, 6
    s_add_u32 s{sP}, s{sP}, s{sT2}
    s_mov_b32 s{SX+2}, {XBYTES}
    s_mov_b32 s{SX+3}, 0x00020000
    s_mov_b32 s{SW+3}, s{SX+3}
    s_mov_b32 s{SG+3}, s{SX+3}
    s_mov_b32 s{SD+3}, s{SX+3}
    s_mov_b32 s{SWS+3}, s{SX+3}
    s_cmp_lt_u32 s{sWV}, 4
    s_cbranch_scc0 L_compute
    v_lshrrev_b32 v12, 3, v{vL}
    v_mul_u32_u24 v12, 1152, v12
    v_lshrrev_b32 v13, 4, v{vL}
    v_and_b32 v14, 7, v{vL}
    v_xor_b32 v14, v14, v13
    v_lshl_add_u32 v3, v14, 4, v12
    v_xor_b32 v14, 4, v14
    v_lshl_add_u32 v4, v14, 4, v12
    v_add_u32 v4, {8*1152 - 1024}, v4
    s_lshl_b32 s{sT}, s{sTG}, 2
    s_add_u32 s{sT}, s{sT}, s{sLI}
    s_mul_i32 s{sXb}, s{sT}, {64*1152}
    s_lshl_b32 s{sM0x}, s{sLI}, 13
    v_lshlrev_b32 v14, 2, v13
    v_xor_b32 v14, v14, v{vL}
    v_and_b32 v14, 15, v14
    s_mov_b32 s{sA}, 0x75752020
    s_mov_b32 s{sA+1}, 0x7446420
    s_mov_b32 s{sT}, 0x21aa0505
    v_mul_u32_u24 v18, 3, v13
    v_lshlrev_b32 v15, 2, v14
    v_lshrrev_b64 v[16:17], v15, s[{sA}:{sA+1}]
    v_lshlrev_b32 v19, 1, v14
    v_lshrrev_b32 v19, v19, s{sT}
    v_and_b32 v16, 15, v16
    v_and_b32 v19, 3, v19
    v_add_u32 v19, v19, v18
    v_mul_u32_u24 v19, 1152, v19
    v_lshl_add_u32 v5, v16, 3, v19
    v_xor_b32 v15, 8, v15
    v_lshrrev_b64 v[16:17], v15, s[{sA}:{sA+1}]
    v_lshrrev_b32 v19, 1, v15
    v_lshrrev_b32 v19, v19, s{sT}
    v_and_b32 v16, 15, v16
    v_and_b32 v19, 3, v19
    v_add_u32 v19, v19, v18
    v_mul_u32_u24 v19, 1152, v19
    v_lshl_add_u32 v21, v16, 3, v19
    s_and_b32 s{sT}, s{sP}, 15
    s_mul_i32 s{sT}, s{sT}, 72
    s_mul_i32 s{sWb}, s{sLI}, {16*3456}
    s_add_u32 s{sWb}, s{sWb}, s{sT}
    s_lshl_b32 s{sM0w}, s{sLI}, 12
    s_mov_b32 s{sMASK}, {WMASK & 0xffffffff:#x}
    s_mov_b32 s{sMASK+1}, {WMASK >> 32:#x}
    s_lshr_b64 s[{sC2}:{sC2+1}], s[{sMASK}:{sMASK+1}], 2
    s_or_b32 s{sC2+1}, s{sC2+1}, 0xc0000000
    s_mov_b32 s{SW+2}, {WQKV_BYTES}
    s_waitcnt lgkmcnt(0)
    """)

    def common():
        a(f"""
        s_mov_b32 s{SW+2}, {WQKV_BYTES}
        s_movk_i32 s{SG+2}, 1152
        s_movk_i32 s{SD+2}, 256
        s_mov_b32 s{SWS+2}, {WS_USED}
        v_lshlrev_b32 v{vL16}, 4, v{vL}
        s_mul_i32 s{sKVp}, s{sP}, {8*CHUNK}
        s_mul_i32 s{sKQ}, s{sWV}, 43
        s_lshr_b32 s{sKQ}, s{sKQ}, 7
        s_mul_i32 s{sT}, s{sKQ}, 3
        s_sub_u32 s{sTT}, s{sWV}, s{sT}
        s_mov_b32 s{sSPIN}, {SPIN_LIMIT}
        """)

    sFl, sI, sPd, sBt, sCur, sMode, sWS = 69, 40, 41, 42, 43, 39, 3

    def unit_decode(v):
        a(f"""
        v_readfirstlane_b32 s{sU}, v{v}
        s_nop 3
        s_lshr_b32 s{sTG2}, s{sU}, 8
        s_and_b32 s{sTG2}, s{sTG2}, 7
        s_and_b32 s{sU}, s{sU}, 0xff
        s_lshr_b32 s{sCG}, s{sU}, 1
        s_and_b32 s{sT0}, s{sU}, 1
        s_mul_i32 s{sT0}, s{sT0}, 3
        s_sub_u32 s{sT}, s{sU}, 18
        s_cmp_ge_u32 s{sU}, 18
        s_cselect_b32 s{sCG}, s{sT}, s{sCG}
        s_cselect_b32 s{sT0}, 6, s{sT0}
        s_add_u32 s{sT0}, s{sT0}, s{sTT}
        s_lshl_b32 s{sT}, s{sTG2}, 3
        s_add_u32 s{sT}, s{sT}, s{sT0}
        s_mul_i32 s{sFl}, s{sT}, {OTILE}
        s_mul_i32 s{sT}, s{sKQ}, {8*OPAIR}
        s_add_u32 s{sFl}, s{sFl}, s{sT}
        s_add_u32 s{sFl}, s{sFl}, {O_OFF}
        """)

    vK, vKH, vV, vIDX = 3, 4, 5, 6
    vG = [8, 9]
    vT = [10, 11, 12, 13, 14, 15, 26]
    Qa, Qb = 16, 20
    QH = 24
    Kb = 32
    KHb = [40, 42]
    V0b = [44, 48]
    V1b = [52, 56]
    Oa, Ob = 64, 80
    S = [96, 128]
    vXr = [16, 17]; vWr = [18, 19, 20, 21]
    vXr2 = [22, 23]; vWr2 = [24, 25, 26, 27]
    vU = list(range(32, 48))
    F = [64, 32]
    AC = [96, 112, 128, 144]
    eK, eR, e0, e1, e2, e3, e4 = 160, 161, 162, 163, 164, 165, 166

    a.sec("compute")
    a("L_compute:")
    common()
    a(f"""
    s_sub_u32 s{sW_}, s{sWV}, 4
    s_lshr_b32 s{sJ}, s{sW_}, 2
    s_and_b32 s{sTP}, s{sW_}, 3
    s_load_dwordx2 s[44:45], s[0:1], 56          ; out
    s_mov_b32 s{SO+2}, {XBYTES}
    s_waitcnt lgkmcnt(0)
    s_mov_b64 s[{SO}:{SO+1}], s[44:45]
    """)
    a(f"""
    v_and_b32 v{vU[0]}, 31, v{vL}                ; tau
    v_lshrrev_b32 v{vU[1]}, 5, v{vL}             ; h
    v_and_b32 v{vU[9]}, 15, v{vL}                ; l&15
    v_lshrrev_b32 v{vU[10]}, 4, v{vL}            ; g
    s_lshl_b32 s{sT}, s{sTP}, 13
    v_lshlrev_b32 v{vU[2]}, 7, v{vU[9]}
    v_add_u32 v{vU[2]}, s{sT}, v{vU[2]}
    v_lshrrev_b32 v{vU[3]}, 1, v{vU[9]}
    v_xor_b32 v{vU[3]}, v{vU[3]}, v{vU[10]}
    v_lshl_add_u32 v{vXr[0]}, v{vU[3]}, 4, v{vU[2]}
    v_xor_b32 v{vXr[1]}, 64, v{vXr[0]}
    v_bfe_u32 v{vU[2]}, v{vL}, 2, 2              ; r
    v_lshl_add_u32 v{vU[3]}, v{vU[10]}, 3, v{vU[2]}
    v_lshlrev_b32 v{vU[3]}, 8, v{vU[3]}
    v_add_u32 v{vU[3]}, 32768, v{vU[3]}
    v_and_b32 v{vU[4]}, 3, v{vL}                 ; c
    v_lshlrev_b32 v{vU[4]}, 3, v{vU[4]}
    v_and_b32 v{vU[5]}, 16, v{vL}
    v_lshlrev_b32 v{vU[5]}, 1, v{vU[5]}          ; (g&1)*32
    v_add3_u32 v{vU[7]}, v{vU[3]}, v{vU[4]}, v{vU[5]}
    v_xor_b32 v{vWr[0]}, s{sJ}, v{vU[2]}
    v_lshl_add_u32 v{vWr[0]}, v{vWr[0]}, 6, v{vU[7]}
    v_xor_b32 v{vWr[1]}, 32, v{vWr[0]}
    s_mov_b32 s{sT}, 0x38102800
    s_cmp_eq_u32 s{sJ}, 1
    s_cselect_b32 s{sT}, s{sT}, 0x18100800
    v_lshrrev_b32 v{vU[6]}, v{vU[4]}, s{sT}
    v_and_b32 v{vU[6]}, 0xff, v{vU[6]}
    v_xor_b32 v{vU[6]}, v{vU[6]}, v{vU[5]}
    v_add_u32 v{vU[7]}, v{vU[3]}, v{vU[6]}
    s_add_u32 s{sT}, s{sJ}, 2
    v_xor_b32 v{vWr[2]}, s{sT}, v{vU[2]}
    v_lshl_add_u32 v{vWr[2]}, v{vWr[2]}, 6, v{vU[7]}
    v_xor_b32 v{vWr[3]}, 32, v{vWr[2]}
    """)
    for r0, r1 in zip(vXr + vWr, vXr2 + vWr2):
        a(f"v_add_u32 v{r1}, {2*G_SLOT}, v{r0}")
    for r in range(AC[0], AC[0] + 64):
        a(f"v_mov_b32 v{r}, 0")
    a(f"""
    s_lshl_b32 s{sT}, s{sJ}, 10
    s_add_u32 s{sT}, s{sT}, 512
    v_add_u32 v{vK}, s{sT}, v{vL16}
    v_lshlrev_b32 v{vKH}, 2, v{vL}
    s_lshl_b32 s{sT2}, s{sJ}, 8
    v_add_u32 v{vKH}, s{sT2}, v{vKH}
    v_mov_b32 v{vU[2]}, 4
    v_cmp_gt_u32 vcc, 19, v{vU[0]}
    v_mov_b32 v{vU[3]}, 19
    s_nop 0
    v_cndmask_b32 v{vU[2]}, v{vU[2]}, v{vU[0]}, vcc
    v_cmp_eq_u32 vcc, 4, v{vU[0]}
    v_mul_u32_u24 v{vU[4]}, {VH}, v{vU[1]}
    s_mul_i32 s{sT2}, s{sJ}, {2*VG}
    s_add_u32 s{sT2}, s{sT2}, 2560
    v_cndmask_b32 v{vU[2]}, v{vU[2]}, v{vU[3]}, vcc
    v_lshl_add_u32 v{vV}, v{vU[2]}, 4, v{vU[4]}
    v_add_u32 v{vV}, s{sT2}, v{vV}
    v_mov_b32 v{vIDX}, 0xdddddddd
    s_lshl_b32 s{sT}, s{sTG}, 3
    s_lshl_b32 s{sT2}, s{sTP}, 1
    s_add_u32 s{sT}, s{sT}, s{sT2}
    s_mul_i32 s{sA}, s{sT}, {OTILE}
    s_mul_i32 s{sT}, s{sP}, {OPAIR}
    s_add_u32 s{sA}, s{sA}, s{sT}
    s_add_u32 s{sA}, s{sA}, {O_OFF}
    s_lshl_b32 s{sT}, s{sJ}, 10
    s_add_u32 s{sOm}, s{sA}, s{sT}
    s_lshl_b32 s{sT}, s{sJ}, 7
    s_add_u32 s{sOh}, s{sA}, s{sT}
    s_mov_b32 s{sD3}, {(RING[1]-RING[0]) & 0xffffffff:#x}
    s_mov_b32 s{sD3+1}, {(RING[2]-RING[1]) & 0xffffffff:#x}
    s_mov_b32 s{sD3+2}, {(RING[0]-RING[2]) & 0xffffffff:#x}
    s_mov_b32 s{sC2}, {f32bits(CSCALE):#x}
    s_mov_b32 s{sC2+1}, {f32bits(CSCALE):#x}
    v_and_b32 v{vU[2]}, 3, v{vU[0]}
    v_and_b32 v{vU[3]}, 12, v{vU[0]}
    v_lshl_or_b32 v{vU[2]}, v{vU[3]}, 1, v{vU[2]}
    v_and_b32 v{vU[3]}, 16, v{vU[0]}
    v_lshrrev_b32 v{vU[3]}, 2, v{vU[3]}
    v_or_b32 v{vU[2]}, v{vU[2]}, v{vU[3]}        ; kappa
    s_lshl_b32 s{sT}, s{sJ}, 10
    s_mul_i32 s{sB}, s{sTP}, {TPAIR}
    s_add_u32 s{sT}, s{sT}, s{sB}
    s_add_u32 s{sT}, s{sT}, 512
    v_lshlrev_b32 v{eK}, 9, v{vU[1]}
    v_lshl_add_u32 v{eK}, v{vU[2]}, 4, v{eK}
    v_add_u32 v{eK}, s{sT}, v{eK}
    s_lshl_b32 s{sT}, s{sTP}, 8
    s_add_u32 s{sT}, s{sT}, {SCR}
    v_lshlrev_b32 v{eR}, 2, v{vU[0]}
    v_add_u32 v{eR}, s{sT}, v{eR}
    s_cmp_eq_u32 s{sJ}, 1
    s_cbranch_scc1 L_a1
    v_mul_u32_u24 v{vU[4]}, {VH}, v{vU[10]}
    s_add_u32 s{sT}, s{sB}, 2560
    v_add_u32 v{vU[4]}, s{sT}, v{vU[4]}
    v_mov_b32 v{vU[6]}, 19
    v_cmp_eq_u32 vcc, 4, v{vU[9]}
    v_add_u32 v{vU[3]}, 16, v{vU[9]}
    v_add_u32 v{vU[5]}, {2*VG // 16 - 2}, v{vU[9]}
    v_cndmask_b32 v{vU[6]}, v{vU[9]}, v{vU[6]}, vcc
    v_cmp_le_u32 vcc, 2, v{vU[9]}
    v_lshl_add_u32 v{e0}, v{vU[6]}, 4, v{vU[4]}
    v_mov_b32 v{vU[6]}, {2*VG // 16 + 19}
    v_cndmask_b32 v{vU[3]}, v{vU[3]}, v{vU[5]}, vcc
    v_cmp_eq_u32 vcc, 6, v{vU[9]}
    s_nop 1
    v_cndmask_b32 v{vU[3]}, v{vU[3]}, v{vU[6]}, vcc
    v_lshl_add_u32 v{e1}, v{vU[3]}, 4, v{vU[4]}
    s_branch L_a2
    L_a1:
    v_lshlrev_b32 v{e0}, 2, v{vU[2]}
    v_add_u32 v{e0}, s{sB}, v{e0}
    v_cmp_eq_u32 vcc, 1, v{vU[1]}
    v_add_u32 v{vU[5]}, 256, v{e0}
    v_add_u32 v{vU[6]}, 1024, v{eR}
    v_cndmask_b32 v{e0}, v{e0}, v{eR}, vcc
    v_cndmask_b32 v{e1}, v{vU[5]}, v{vU[6]}, vcc
    v_mov_b32 v{vU[5]}, 1.0
    v_mov_b32 v{vU[6]}, s{sC2}
    v_cndmask_b32 v{e2}, v{vU[5]}, v{vU[6]}, vcc
    v_lshrrev_b32 v{vU[3]}, 3, v{vU[2]}
    v_mul_u32_u24 v{vU[3]}, {VH}, v{vU[3]}
    v_and_b32 v{vU[5]}, 7, v{vU[2]}
    v_lshl_add_u32 v{e3}, v{vU[5]}, 1, v{vU[3]}
    s_add_u32 s{sT}, s{sB}, {2560 + 2*VG}
    v_add_u32 v{e3}, s{sT}, v{e3}
    L_a2:
    s_lshl_b32 s{sT}, s{sJ}, 10
    v_lshl_add_u32 v{e4}, v{vU[1]}, 7, v{eR}
    v_add_u32 v{e4}, s{sT}, v{e4}
    s_mov_b32 s{sMASK}, 0x7ffff
    s_mov_b32 s{sMASK+1}, 0x7ffff
    s_lshl_b32 s{sT}, s{sW_}, 2
    s_add_u32 s{sT}, s{sT}, {SYNC}
    v_mov_b32 v167, s{sT}
    """)
    a("s_waitcnt lgkmcnt(0)")

    def reads(n, ks, j):
        s = n % 3
        xr = vXr2 if s == 2 else vXr
        wr = vWr2 if s == 2 else vWr
        so = G_SLOT if s == 1 else 0
        b = F[ks]
        out = []
        for q in range(4):
            out.append(f"ds_read_b128 {vr(b+4*q,4)}, v{xr[ks]} offset:{so + 2048*q}")
            if q < 4 - j:
                out.append(f"ds_read_b64_tr_b16 {vr(b+16+4*q,2)}, v{wr[q]} offset:{so + ks*8192}")
                out.append(f"ds_read_b64_tr_b16 {vr(b+18+4*q,2)}, v{wr[q]} offset:{so + ks*8192 + 1024}")
        return out

    def mfmas(f, j):
        b = F[f]
        m = []
        for c in range(4 - j):
            for t in range(4):
                X, W, D = vr(b + 4 * t, 4), vr(b + 16 + 4 * c, 4), vr(AC[c] + 4 * t, 4)
                p, q = (X, W) if (j == 0 and c >= 2) else (W, X)
                m.append(f"v_mfma_f32_16x16x32_bf16 {D}, {p}, {q}, {D}")
        return m

    def mix(ms, rs, lead=0):
        rs = list(rs)
        for r in rs[:lead]:
            a(r)
        rs = rs[lead:]
        for i, m in enumerate(ms):
            a(m)
            k = -(-len(rs) // (len(ms) - i)) if GMIX == 2 else (1 if GMIX else 0)
            for r in rs[:k]:
                a(r)
            rs = rs[k:]
        for r in rs:
            a(r)

    if TLBW == 2:
        a(f"""
        s_cmp_eq_u32 s{sW_}, 7
        s_cbranch_scc0 L_tlb
        s_buffer_load_dword s3, s[{SWS}:{SWS+3}], s{sKVp}
        s_buffer_load_dword s3, s[{SWS}:{SWS+3}], s{sKVp} offset:{hex(8*CHUNK - 4)}
        s_mov_b32 s{sT}, {FLAG_OFF + 0x30000}
        s_buffer_load_dword s3, s[{SWS}:{SWS+3}], s{sT}
        s_buffer_load_dword s3, s[{SD}:{SD+3}], 0xfc
        L_tlb:
        """)
    stamp(a, 7, True, mode=9)
    a("s_barrier")
    stamp(a, 1, True)
    stamp(a, 1, True, mode=4)
    for r in reads(0, 0, 0):
        a(r)
    a(f"""
    s_mov_b32 s{sN}, 0
    s_cmp_eq_u32 s{sJ}, 1
    s_cbranch_scc1 L_g1
    """)
    for j in range(2):
        a(f"L_g{j}:")
        for n in range(3):
            a("s_waitcnt lgkmcnt(0)")
            mix(mfmas(0, j), reads(n, 1, j), 0 if GMIX else 99)
            a("s_waitcnt lgkmcnt(0)")
            if n == 2:
                a(f"""
                s_add_u32 s{sN}, s{sN}, 1
                s_cmp_eq_u32 s{sN}, 3
                s_cbranch_scc1 L_ge{j}
                """)
            a("s_barrier")
            mix(mfmas(1, j), reads(n + 1, 0, j), 0 if GMIX else 99)
        a(f"s_branch L_g{j}")
        a(f"L_ge{j}:")
        ms = mfmas(1, j)
        zs = [f"v_mov_b32 v{r}, 0" for r in range(Oa, Oa + 32)]
        for i, m in enumerate(ms):
            a(m)
            k = -(-len(zs) // (len(ms) - i))
            for z in zs[:k]:
                a(z)
            zs = zs[k:]
        stamp(a, 2)
        stamp(a, 2, mode=4)
        a(f"""
        s_mov_b32 s{sN}, 0
        s_mov_b32 s{sFB}, 0
        """)
        KP = [AC[0], AC[0] + 8]
        for A in KP:
            for i in range(4):
                a(f"v_cvt_pk_bf16_f32 v{A+i}, v{A+2*i}, v{A+2*i+1}")
        a(f"v_mov_b32 v{KHb[0]+1}, 0x3f803f80")
        for t, A in enumerate(KP):
            a(f"v_permlane16_swap_b32 v{A}, v{A+2}")
            a(f"v_permlane16_swap_b32 v{A+1}, v{A+3}")
            a(f"ds_write_b128 v{eK}, {vr(A,4)} offset:{TILE*t}")
        B0, B1 = AC[2], AC[2] + 8
        if j == 0:
            for cc in range(2):
                for t in range(2):
                    B = AC[2 + cc] + 8 * t
                    for i in range(4):
                        a(f"v_cvt_pk_bf16_f32 v{B+i}, v{B+2*i}, v{B+2*i+1}")
                    a(f"ds_write_b128 v{(e0, e1)[cc]}, {vr(B,4)} offset:{t*TILE}")
            a("s_branch L_ep")
        else:
            for B in (B0, B1):
                for i in range(4):
                    a(f"v_permlane16_swap_b32 v{B+i}, v{B+4+i}")
            a(f"""
            s_mov_b32 exec_lo, 0
            ds_write_b32 v{eR}, v{B0+4} offset:2048
            ds_write_b32 v{eR}, v{B1+4} offset:{2048+128}
            s_mov_b32 exec_lo, -1
            """)
            for t, B in enumerate((B0, B1)):
                for i in range(4):
                    a(f"v_mul_f32 v{B+i}, v{e2}, v{B+i}")
                for i in range(4):
                    a(f"v_cvt_pk_bf16_f32 v{B+16+i}, v{B+2*i}, v{B+2*i+1}")
                a(f"ds_write_b32 v{e0}, v{B+16} offset:{128*t}")
                a(f"ds_write_b32 v{e1}, v{B+17} offset:{128*t}")
            a("s_mov_b32 exec_hi, 0")
            for t, B in enumerate((B0, B1)):
                o = t * TILE + 14 * 16
                a(f"ds_write_b16 v{e3}, v{B+18} offset:{o}")
                a(f"ds_write_b16_d16_hi v{e3}, v{B+18} offset:{o+16}")
                a(f"ds_write_b16 v{e3}, v{B+19} offset:{o+32}")
                a(f"ds_write_b16_d16_hi v{e3}, v{B+19} offset:{o+48}")
            a("s_mov_b32 exec_hi, -1")
    def qk(dst, kb, q, acc=True):
        return f"v_mfma_f32_32x32x16_bf16 {vr(dst,16)}, {vr(kb,4)}, {vr(q,4)}, {vr(dst,16) if acc else 0}"

    def qkh(dst, khb, par):
        return f"v_mfma_f32_32x32x4_2b_bf16 {vr(dst,32)}, {vr(khb,2)}, {vr(QH,2)}, 0 cbsz:1 abid:{par}"

    def pv(o, vb, p):
        return f"v_smfmac_f32_32x32x32_bf16 {vr(o,16)}, {vr(vb,4)}, {vr(p,8)}, v{vIDX}"

    def vread(t, buf):
        if not VMASK:
            return f"""
            ds_read_b128 {vr(V0b[buf],4)}, v{vV} offset:{toff(t)}
            ds_read_b128 {vr(V1b[buf],4)}, v{vV} offset:{toff(t) + VG}
            """
        return f"""
        s_mov_b64 exec, s[{sMASK}:{sMASK+1}]
        ds_read_b128 {vr(V0b[buf],4)}, v{vV} offset:{toff(t)}
        ds_read_b128 {vr(V1b[buf],4)}, v{vV} offset:{toff(t) + VG}
        s_mov_b64 exec, -1
        """

    X, Y = S

    def prep():
        for A, Q in ((AC[1], Qa), (AC[1] + 8, Qb)):
            for i in range(4):
                a(f"v_pk_mul_f32 {vr(A+2*i,2)}, {vr(A+2*i,2)}, s[{sC2}:{sC2+1}]")
            for i in range(4):
                a(f"v_cvt_pk_bf16_f32 v{Q+i}, v{A+2*i}, v{A+2*i+1}")
        a(f"v_mov_b32 v{KHb[1]+1}, 0x3f803f80")
        for Q in (Qa, Qb):
            a(f"v_permlane16_swap_b32 v{Q}, v{Q+2}")
            a(f"v_permlane16_swap_b32 v{Q+1}, v{Q+3}")
        a(f"v_cmp_gt_u32 vcc, 32, v{vL}")
        for r in range(V0b[0], V1b[1] + 4):
            a(f"v_mov_b32 v{r}, 0")

    if EARLYB:
        a("s_waitcnt vmcnt(0) lgkmcnt(0)\ns_barrier")
        prep()
        a(qk(Y, AC[0], Qa, False)); a(qk(Y + 16, AC[0], Qb, False))
        a("s_branch L_ep2")
    a("L_ep:")
    prep()
    a("s_waitcnt vmcnt(0) lgkmcnt(0)")
    a(qk(Y, AC[0], Qa, False)); a(qk(Y + 16, AC[0], Qb, False))
    a("s_barrier")
    a("L_ep2:")
    stamp(a, 3, True)
    a(f"""
    ds_read_b32 v{vG[0]}, v{eR} offset:2048
    ds_read_b32 v{vG[1]}, v{eR} offset:{2048+128}
    ds_read_b32 v{KHb[0]}, v{vKH}
    ds_read_b32 v{QH}, v{e4}
    ds_read_b128 {vr(Kb,4)}, v{vK}
    """)
    a(vread(0, 0))
    a(f"""
    s_mov_b32 s{sT}, {f32bits(-math.log2(math.e)):#x}
    s_cmp_ge_u32 s{sP}, 16
    s_cselect_b32 s{sT}, {f32bits(math.log2(math.e)):#x}, s{sT}
    s_nop 0
    """)
    for t in range(2):
        b = Y + 16 * t
        a(f"v_max3_f32 v{vT[t]}, v{b}, v{b+1}, v{b+2}")
        for i in range(3, 9, 2):
            a(f"v_max3_f32 v{vT[t]}, v{vT[t]}, v{b+i}, v{b+i+1}")
    a(f"""
    v_cndmask_b32 v{vT[0]}, v{vT[1]}, v{vT[0]}, vcc
    v_lshrrev_b32 v{vT[0]}, 16, v{vT[0]}
    v_xor_b32 v{QH+1}, {(f32bits(-SHIFT) & 0xffff0000) | 0x8000:#x}, v{vT[0]}
    s_waitcnt lgkmcnt(3)
    v_mul_f32 v{vG[0]}, s{sT}, v{vG[0]}
    """)
    a(qkh(X, KHb[0], 0))
    a(f"""
    v_mul_f32 v{vG[1]}, s{sT}, v{vG[1]}
    v_exp_f32 v{vG[0]}, v{vG[0]}
    v_exp_f32 v{vG[1]}, v{vG[1]}
    """)
    for r in range(Y + 24, Y + 32):
        a(f"v_mov_b32 v{r}, 0")
    a(f"""
    v_add_f32 v{vG[0]}, 1.0, v{vG[0]}
    v_add_f32 v{vG[1]}, 1.0, v{vG[1]}
    v_rcp_f32 v{vG[0]}, v{vG[0]}
    v_rcp_f32 v{vG[1]}, v{vG[1]}
    s_waitcnt lgkmcnt(0)
    s_nop 1
    """)
    a(qk(X, Kb, Qa)); a(qk(X + 16, Kb, Qb))
    a(f"""
    v_lshrrev_b32 v{e3}, 5, v{vL}
    v_mul_u32_u24 v{e3}, {OTILE - 128}, v{e3}
    v_lshl_add_u32 v{e3}, v{vL}, 2, v{e3}
    """)

    def E(b, n=4):
        for r in range(b, b + n):
            a(f"v_exp_f32 v{r}, v{r}")

    stamp(a, 4)
    stamp(a, 3, mode=4)
    a("s_setprio 1")
    a("s_nop 6")
    a(".p2align 6")
    a("L_loop:")
    loop0 = len(a.lines) - 1
    for i in range(8):
        X = S[i & 1]; Y = S[(i + 1) & 1]
        tn = (i + 1) & 7
        khb = KHb[(tn >> 1) & 1]
        if i == 7:
            a(f"""
            s_cbranch_scc1 L_nb7
            s_barrier
            L_nb7:
            s_setprio 1
            v_add_u32 v{vKH}, s{sDl}, v{vKH}
            v_add_u32 v{vK}, s{sDl}, v{vK}
            ds_read_b32 v{khb}, v{vKH}
            v_add_u32 v{vV}, s{sDl}, v{vV}
            """)
        E(X, 2)
        a(pv(Ob, V1b[(i + 1) & 1], Y + 24))
        if i == PRIOI:
            a("s_setprio 0")
        kread = f"ds_read_b128 {vr(Kb,4)}, v{vK} offset:{toff(tn)}"
        if i in (0, 2, 4):
            kread += f"\nds_read_b32 v{KHb[((i>>1)+1)&1]}, v{vKH} offset:{((i>>1)+1)*TPAIR}"
        vrd = vread(tn, (i + 1) & 1)
        a(vrd if VPOS == 1 else kread)
        E(X + 2, 4)
        if i == 7:
            a(f"s_waitcnt lgkmcnt({2 if VPOS == 1 else 1})")
        a(qkh(Y, khb, tn & 1))
        a(vrd if VPOS == 0 else kread if VPOS == 1 else "")
        E(X + 6, 8)
        a(pv(Oa, V0b[i & 1], X))
        if VPOS == 3:
            a("s_waitcnt lgkmcnt(0)")
        if VPOS >= 2:
            a(vrd)
        E(X + 14, 4)
        a(pv(Oa, V1b[i & 1], X + 8))
        if VPOS != 3:
            a(f"s_waitcnt lgkmcnt({2 if VPOS == 2 else 0})")
        if i == 1:
            a(f"s_mov_b32 s{sDl}, s{sD3}")
        if i == 3:
            a(f"s_mov_b32 s{sD3+1}, s{sD3+2}")
        if i == 7:
            a(f"s_add_u32 s{sN}, s{sN}, 1")
        E(X + 18, 4)
        a(qk(Y, Kb, Qa))
        if i == 1:
            a(f"s_mov_b32 s{sD3}, s{sD3+1}")
        if i == 2:
            a(f"v_mov_b32 v7, s{sN}")
        if i == 5:
            a(f"s_mov_b32 s{sD3+2}, s{sDl}")
        if i == 6:
            a(f"s_cmp_eq_u32 s{sN}, 7")
        if i == 7:
            a(f"s_cmp_lt_u32 s{sN}, 8")
        E(X + 22, 4)
        a(pv(Ob, V0b[i & 1], X + 16))
        if VPOS >= 2:
            a("s_waitcnt lgkmcnt(0)")
        E(X + 26, 3)
        a(qk(Y + 16, Kb, Qb))
        if i == 3:
            a("ds_write_b32 v167, v7")
        E(X + 29, 3)
    if ALIGN:
        a.lines[loop0:] = align8(a.lines[loop0:])
    a(f"""
    s_cbranch_scc1 L_loop
    s_nop 0
    """)
    stamp(a, 5)
    stamp(a, 1, mode=3)
    stamp(a, 4, mode=4)
    a(pv(Ob, V1b[1], S[1] + 24))
    a(f"""
    v_mov_b32 v{vT[5]}, {SYNC + 48}
    ds_read_b32 v160, v{vT[5]}
    L_fin:
    """)
    PK, PH = [32, 36], [44, 45]
    for t, O in enumerate((Oa, Ob)):
        l0, l1 = vT[2 * t], vT[2 * t + 1]
        a(f"v_mov_b32 v{l0}, v{O+10}")
        a(f"v_mov_b32 v{l1}, v{O+10}")
        if t == 0:
            a(f"v_maximum3_f32 v{vT[4]}, v{vG[0]}, v{vG[1]}, v{O+10}")
        else:
            a(f"v_maximum3_f32 v{vT[4]}, v{vT[4]}, v{O+10}, v{O+10}")
        a(f"v_maximum3_f32 v{vT[4]}, v{vT[4]}, |v{O}|, |v{O+1}|")
        a(f"v_maximum3_f32 v{vT[4]}, v{vT[4]}, |v{O+2}|, |v{O+3}|")
        a(f"v_permlane32_swap_b32 v{l0}, v{l1}")
        for i in (4, 6):
            a(f"v_maximum3_f32 v{vT[4]}, v{vT[4]}, |v{O+i}|, |v{O+i+1}|")
        a(f"v_rcp_f32 v{l1}, v{l0}")
        a(f"v_maximum3_f32 v{vT[4]}, v{vT[4]}, |v{O+8}|, |v{O+9}|")
        if t == 1:
            a(f"""
            v_min_f32 v{l0}, v{l0}, v{vT[0]}
            v_cmp_nge_f32 vcc, s{sT}, v{vT[4]}
            v_cmp_nle_f32 s[44:45], s{sT2}, v{l0}
            """)
        a(f"v_mul_f32 v{vT[6]}, v{l1}, v{vG[t]}")
        for i in range(5):
            a(f"v_pk_mul_f32 {vr(O+2*i,2)}, {vr(O+2*i,2)}, {vr(vT[6],2)} op_sel_hi:[1,0]")
        for i in range(4):
            a(f"v_cvt_pk_bf16_f32 v{PK[t]+i}, v{O+2*i}, v{O+2*i+1}")
        a(f"v_cvt_pk_bf16_f32 v{PH[t]}, v{O+8}, v{O+9}")
        if t == 0:
            a(f"""
            s_mov_b32 s{sT}, {f32bits(2.0**90):#x}
            s_mov_b32 s{sT2}, {f32bits(2.0**(-24-SHIFT)):#x}
            s_add_u32 s{sB}, s{sOm}, {OTILE}
            """)
    a(f"""
    s_or_b64 vcc, vcc, s[44:45]
    s_cbranch_vccnz L_exact
    L_store:
    buffer_store_dwordx4 {vr(PK[0],4)}, v{vL16}, s[{SWS}:{SWS+3}], s{sOm} offen sc1
    v_permlane32_swap_b32 v{PH[0]}, v{PH[1]}
    buffer_store_dwordx4 {vr(PK[1],4)}, v{vL16}, s[{SWS}:{SWS+3}], s{sB} offen sc1
    s_setprio 0
    buffer_store_dword v{PH[0]}, v{e3}, s[{SWS}:{SWS+3}], s{sOh} offen offset:2048 sc1
    v_mov_b32 v7, 8
    ds_write_b32 v167, v7
    s_waitcnt lgkmcnt(1)
    """)
    unit_decode(160)
    stamp(a, 6)
    stamp(a, 2, mode=3)

    a.sec("exact")
    X = S[0]
    a(f"""
    L_exact:
    s_cmp_eq_u32 s{sFB}, 0
    s_cbranch_scc1 L_exact1
    """)
    for r in list(range(32, 40)) + [44, 45]:
        a(f"v_min_u32 v{r}, -2, v{r}")
    a(f"""
    s_nop 0
    s_branch L_store
    L_exact1:
    s_mov_b32 s{sFB}, 1
    v_mov_b32 v{QH+1}, 0
    v_and_b32 v{vKH}, 31, v{vL}
    v_mov_b32 v{vT[2]}, 4
    v_cmp_gt_u32 vcc, 19, v{vKH}
    v_mov_b32 v{vT[3]}, 19
    v_lshrrev_b32 v{vT[4]}, 5, v{vL}
    v_cndmask_b32 v{vT[2]}, v{vT[2]}, v{vKH}, vcc
    v_cmp_eq_u32 vcc, 4, v{vKH}
    v_mul_u32_u24 v{vT[4]}, {VH}, v{vT[4]}
    v_lshlrev_b32 v{vKH}, 2, v{vKH}
    v_cndmask_b32 v{vT[2]}, v{vT[2]}, v{vT[3]}, vcc
    v_lshl_add_u32 v{vV}, v{vT[2]}, 4, v{vT[4]}
    v_mov_b32 v{vT[0]}, 0xff800000
    v_mov_b32 v{vT[1]}, 0xff800000
    """)
    for r in range(Oa, Oa + 32):
        a(f"v_mov_b32 v{r}, 0")
    for ps in range(2):
        a(f"""
        s_mov_b32 s{sN}, 0
        L_x{ps}:
        s_lshr_b32 s{sT}, s{sN}, 1
        s_mul_i32 s{sT}, s{sT}, {TPAIR}
        s_add_u32 s{sT}, s{sT}, s{sKVp}
        s_and_b32 s{sT2}, s{sN}, 1
        s_mul_i32 s{sB}, s{sT2}, {TILE}
        s_add_u32 s{sB}, s{sB}, s{sT}                ; + tile
        s_lshl_b32 s{sA}, s{sJ}, 10
        s_add_u32 s{sA}, s{sA}, s{sB}
        buffer_load_dwordx4 {vr(Kb,4)}, v{vL16}, s[{SWS}:{SWS+3}], s{sA} offen offset:512 sc1
        s_lshl_b32 s{sA}, s{sT2}, 7
        s_add_u32 s{sA}, s{sA}, s{sT}
        s_lshl_b32 s{sT2}, s{sJ}, 8
        s_add_u32 s{sA}, s{sA}, s{sT2}
        buffer_load_dword v{KHb[0]}, v{vKH}, s[{SWS}:{SWS+3}], s{sA} offen sc1
        """)
        if ps == 1:
            a(f"""
            s_mul_i32 s{sA}, s{sJ}, {2*VG}
            s_add_u32 s{sA}, s{sA}, s{sB}
            s_add_u32 s{sA}, s{sA}, 2560
            buffer_load_dwordx4 {vr(V0b[0],4)}, v{vV}, s[{SWS}:{SWS+3}], s{sA} offen sc1
            buffer_load_dwordx4 {vr(V1b[0],4)}, v{vV}, s[{SWS}:{SWS+3}], s{sA} offen offset:{VG} sc1
            """)
        a("s_waitcnt vmcnt(0)")
        a(qkh(X, KHb[0], 0))
        a("s_nop 15\ns_nop 3")
        a(qk(X, Kb, Qa)); a(qk(X + 16, Kb, Qb))
        a("s_nop 15")
        if ps == 0:
            for t in range(2):
                for i in range(0, 16, 2):
                    a(f"v_max3_f32 v{vT[t]}, v{vT[t]}, v{X+16*t+i}, v{X+16*t+i+1}")
        else:
            for i in range(16):
                a(f"v_sub_f32 v{X+i}, v{X+i}, v{vT[0]}")
                a(f"v_sub_f32 v{X+16+i}, v{X+16+i}, v{vT[1]}")
            E(X, 32)
            a("s_nop 1")
            a(pv(Oa, V0b[0], X)); a(pv(Oa, V1b[0], X + 8))
            a(pv(Ob, V0b[0], X + 16)); a(pv(Ob, V1b[0], X + 24))
        a(f"""
        s_add_u32 s{sN}, s{sN}, 1
        s_cmp_lt_u32 s{sN}, 64
        s_cbranch_scc1 L_x{ps}
        """)
        if ps == 0:
            a(f"""
            v_mov_b32 v{vT[2]}, v{vT[0]}
            v_mov_b32 v{vT[3]}, v{vT[1]}
            s_nop 1
            v_permlane32_swap_b32 v{vT[0]}, v{vT[2]}
            v_permlane32_swap_b32 v{vT[1]}, v{vT[3]}
            s_nop 1
            v_max_f32 v{vT[0]}, v{vT[0]}, v{vT[2]}
            v_max_f32 v{vT[1]}, v{vT[1]}, v{vT[3]}
            """)
    a("""
    s_nop 15
    s_branch L_fin
    """)

    vXE, vXO, vWS = 3, 4, 5
    vGt = [6, 7, 8]
    vGA, vF, vFo = 9, 10, 11
    vT = [12, 13, 14, 15, 16, 17, 18, 19]
    vWO = 20
    CP = 32

    def dma_x(n):
        slot = (n % 3) * G_SLOT
        s = f"s_add_u32 m0, s{sM0x}, {slot}\ns_add_u32 s{sT}, s{sXb}, {n*128}\n"
        for i in range(4):
            s += f"buffer_load_dwordx4 v{vXE}, s[{SX}:{SX+3}], s{sT} offen lds\n"
            s += f"buffer_load_dwordx4 v{vXO}, s[{SX}:{SX+3}], s{sT} offen offset:1024 lds\n"
            if i < 3:
                s += f"s_addk_i32 m0, 0x800\ns_addk_i32 s{sT}, {16*1152}\n"
        return s

    def dma_w(n):
        slot = (n % 3) * G_SLOT
        if n >= int(os.environ.get("WP0", "99")):
            s = f"s_add_u32 m0, s{sM0w}, {slot + 32768}\ns_and_b32 s{sT}, s{sP}, 7\ns_mul_i32 s{sT}, s{sT}, 147456\ns_add_u32 s{sT}, s{sT}, s{sM0w}\ns_add_u32 s{sT}, s{sT}, {n*16384}\nv_lshlrev_b32 v22, 4, v{vL}\n"
            for i in range(4):
                s += f"buffer_load_dwordx4 v22, s[{SW}:{SW+3}], s{sT} offen offset:{1024*i} lds\n"
            return s
        s = f"s_add_u32 m0, s{sM0w}, {slot + 32768}\ns_add_u32 s{sT}, s{sWb}, {n*64*3456}\n"
        s += f"s_mov_b64 exec, s[{sMASK}:{sMASK+1}]\n"
        for i in range(4):
            if i == 2:
                s += f"s_mov_b64 exec, s[{sC2}:{sC2+1}]\n"
            s += f"buffer_load_dwordx4 v{vWS if i < 2 else 21}, s[{SW}:{SW+3}], s{sT} offen offset:{1024*i} lds\n"
            if i < 3:
                s += f"s_addk_i32 s{sT}, {4*3456 - 1024}\n"
        s += "s_mov_b64 exec, -1\n"
        return s

    def gate_write(n):
        slot = (n % 3) * G_SLOT
        lab = a.label("L_gw")
        reg = vGt[n // 4]
        if slot < 65536:
            w = f"ds_write_b16 v{vGA}, v{reg} offset:{slot + 8}"
        else:
            w = f"v_add_u32 v{vT[7]}, {slot}, v{vGA}\nds_write_b16 v{vT[7]}, v{reg} offset:8"
        return f"""
        s_cmp_eq_u32 s{sLI}, {n % 4}
        s_cbranch_scc0 {lab}
        {w}
        {lab}:
        """

    def wo_load(q0, q1):
        assert q1 <= 72 or q0 >= 72
        srd_, base = (SWA, 0) if q1 <= 72 else (SWB, 72)
        lab = a.label("L_wo")
        a(f"""
        s_add_u32 s{sA}, s{sLI}, {q0}
        {lab}:
        s_lshl_b32 m0, s{sA}, 10
        s_sub_u32 s{sT}, s{sA}, {base}
        s_mul_i32 s{sT}, s{sT}, {8*1152}
        buffer_load_dwordx4 v{vWO}, s[{srd_}:{srd_+3}], s{sT} offen lds
        s_add_u32 s{sA}, s{sA}, 4
        s_cmp_lt_u32 s{sA}, {q1}
        s_cbranch_scc1 {lab}
        """)

    def pf8(tag, xs, ws):
        a(f"""
        s_lshr_b32 s{sT}, s{sP}, 3
        s_xor_b32 s{sT}, s{sT}, s{sP}
        s_bitcmp1_b32 s{sT}, 0
        s_cbranch_scc1 L_pd{tag}
        s_lshr_b32 s{sT}, s{sP}, 1
        s_lshl_b32 s{sT}, s{sT}, 3
        s_add_u32 s{sT}, s{sT}, s{sTG}               ; 0..127
        s_cmp_eq_u32 s{sLI}, 0
        s_cbranch_scc0 L_pw{tag}
        v_and_b32 v{vT[5]}, 3, v{vL}
        v_min_u32 v{vT[5]}, {xs[1] - xs[0] - 1}, v{vT[5]}
        v_lshrrev_b32 v{vT[4]}, 2, v{vL}
        v_mul_u32_u24 v{vT[4]}, 1152, v{vT[4]}
        v_lshl_add_u32 v{vT[5]}, v{vT[5]}, 7, v{vT[4]}
        s_mul_i32 s{sT}, s{sT}, {16*1152}
        buffer_load_dword v{vT[6]}, v{vT[5]}, s[{SX}:{SX+3}], s{sT} offen offset:{128*xs[0]}
        s_branch L_pe{tag}
        L_pw{tag}:
        s_and_b32 s{sT}, s{sT}, 63
        """)
        for q, (c0, c1) in enumerate(ws):
            a(f"""
            s_cmp_eq_u32 s{sLI}, {q+1}
            s_cbranch_scc0 L_pn{tag}{q}
            v_min_u32 v{vT[5]}, {27*(c1-c0) - 1}, v{vL}
            v_lshlrev_b32 v{vT[5]}, 7, v{vT[5]}
            s_mul_i32 s{sT}, s{sT}, {(c1-c0)*3456}
            s_add_u32 s{sT}, s{sT}, {c0*64*3456}
            buffer_load_dword v{vT[6]}, v{vT[5]}, s[{SW}:{SW+3}], s{sT} offen
            s_branch L_pe{tag}
            L_pn{tag}{q}:
            """)
        a(f"""
        L_pd{tag}:
        s_mov_b64 exec, 1
        buffer_load_ushort v{vT[6]}, v{vT[0]}, s[{SG}:{SG+3}], 0 offen
        s_mov_b64 exec, -1
        L_pe{tag}:
        """)

    a.sec("loader")
    a("s_setprio 3")
    stamp(a, 1, mode=9)
    a(dma_x(0))
    stamp(a, 2, mode=9)
    stamp(a, 3, mode=9)
    a(dma_w(0))
    stamp(a, 4, mode=9)
    common()
    a(f"""
    v_lshlrev_b32 v{vT[0]}, 1, v{vL}
    s_lshl_b32 s{sT}, s{sLI}, 7
    buffer_load_ushort v{vGt[0]}, v{vT[0]}, s[{SG}:{SG+3}], s{sT} offen
    buffer_load_ushort v{vGt[1]}, v{vT[0]}, s[{SG}:{SG+3}], s{sT} offen offset:512
    buffer_load_ushort v{vGt[2]}, v{vT[0]}, s[{SG}:{SG+3}], s{sT} offen offset:1024
    """)
    a(f"""
    v_and_b32 v{vT[2]}, 3, v{vL}
    v_xor_b32 v{vT[2]}, 3, v{vT[2]}
    v_lshlrev_b32 v{vT[2]}, 6, v{vT[2]}
    v_lshl_add_u32 v{vGA}, v{vL}, 8, v{vT[2]}
    v_add_u32 v{vGA}, {32768 + 48}, v{vGA}
    v_and_b32 v{vT[2]}, 8, v{vL}
    v_lshlrev_b32 v{vT[2]}, 2, v{vT[2]}
    v_xor_b32 v{vGA}, v{vGA}, v{vT[2]}
    """)
    if DPF == 8:
        pf8(0, (2, 6), [(2, 4), (4, 6)])
        a(dma_x(1)); a(dma_w(1))
    elif DPF == 9:
        pf8(0, (2, 5), [(2, 4), (4, 5)])
        a(dma_x(1)); a(dma_w(1))
    elif DPF == 7:
        a(f"""
        s_cmp_eq_u32 s{sLI}, 0
        s_cbranch_scc0 L_e1
        v_and_b32 v{vT[5]}, 7, v{vL}
        v_lshrrev_b32 v{vT[4]}, 3, v{vL}
        v_mul_u32_u24 v{vT[4]}, 1152, v{vT[4]}
        v_lshl_add_u32 v{vT[5]}, v{vT[5]}, 7, v{vT[4]}
        s_mul_i32 s{sT}, s2, {8*1152}
        buffer_load_dword v{vT[6]}, v{vT[5]}, s[{SX}:{SX+3}], s{sT} offen offset:128
        s_branch L_e4
        L_e1:
        s_cmp_eq_u32 s{sLI}, 3
        s_cbranch_scc1 L_e2
        v_lshlrev_b32 v{vT[5]}, 7, v{vL}
        s_and_b32 s{sT}, s{sP}, 15
        s_lshl_b32 s{sT}, s{sT}, 3
        s_add_u32 s{sT}, s{sT}, s{sTG}
        s_lshl_b32 s{sT}, s{sT}, 1
        s_add_u32 s{sT}, s{sT}, s{sLI}
        s_mul_i32 s{sT}, s{sT}, {2*3456}
        s_add_u32 s{sT}, s{sT}, {62*3456}
        s_mov_b32 exec_hi, 0x3fffff
        buffer_load_dword v{vT[6]}, v{vT[5]}, s[{SW}:{SW+3}], s{sT} offen
        s_branch L_e4
        L_e2:
        v_lshlrev_b32 v{vT[5]}, 20, v{vL}
        s_lshl_b32 s{sT}, s2, 7
        s_mov_b64 exec, 0xffff
        buffer_load_dword v{vT[6]}, v{vT[5]}, s[{SWS}:{SWS+3}], s{sT} offen sc1
        L_e4:
        s_mov_b64 exec, -1
        """)
        pre = int(os.environ.get("PRE", "0"))
        if pre:
            a(dma_x(1))
    else:
        a(f"""
        s_cmp_eq_u32 s{sLI}, 0
        s_cbranch_scc0 L_e1
        v_and_b32 v{vT[5]}, 1, v{vL}
        v_bfe_u32 v{vT[4]}, v{vL}, 1, 3
        v_mul_u32_u24 v{vT[4]}, 1152, v{vT[4]}
        v_lshl_add_u32 v{vT[5]}, v{vT[5]}, 7, v{vT[4]}
        s_mul_i32 s{sT}, s2, {8*1152}
        s_mov_b64 exec, 0xffff
        buffer_load_dword v{vT[6]}, v{vT[5]}, s[{SX}:{SX+3}], s{sT} offen offset:256
        s_branch L_e4
        L_e1:
        s_cmp_eq_u32 s{sLI}, 1
        s_cbranch_scc0 L_e2
        v_lshlrev_b32 v{vT[5]}, 7, v{vL}
        s_and_b32 s{sT}, s{sP}, 15
        s_lshl_b32 s{sT}, s{sT}, 3
        s_add_u32 s{sT}, s{sT}, s{sTG}
        s_mul_i32 s{sT}, s{sT}, 3456
        s_add_u32 s{sT}, s{sT}, {128*3456}
        s_mov_b64 exec, 0x7ffffff
        buffer_load_dword v{vT[6]}, v{vT[5]}, s[{SW}:{SW+3}], s{sT} offen
        s_branch L_e4
        L_e2:
        s_mov_b64 exec, 1
        buffer_load_ushort v{vT[6]}, v{vT[0]}, s[{SG}:{SG+3}], 0 offen
        L_e4:
        s_mov_b64 exec, -1
        """)
        a(dma_x(1)); a(dma_w(1))
    stamp(a, 5, mode=9)
    a(f"""
    v_lshlrev_b32 v{vT[2]}, 2, v{vL}
    v_add_u32 v{vT[2]}, {SYNC}, v{vT[2]}
    v_mov_b32 v{CP}, 0
    v_mov_b32 v{CP+1}, 0
    v_mov_b32 v{CP+2}, 0
    v_mov_b32 v{CP+3}, 0
    ds_write_b32 v{vT[2]}, v{CP}
    s_min_u32 s{sT}, s{sLI}, 2
    s_mul_i32 s{sT}, s{sT}, {G_SLOT}
    v_add_u32 v{vT[2]}, s{sT}, v{vGA}
    s_cmp_eq_u32 s{sLI}, 3
    s_cbranch_scc1 L_nz
    ds_write_b128 v{vT[2]}, {vr(CP,4)}
    L_nz:
    s_waitcnt vmcnt({13 if DPF != 7 else 9 if pre else 1})
    """)
    for n in range(3):
        a(gate_write(n))
    stamp(a, 6, mode=9)
    a("s_waitcnt lgkmcnt(0)")
    stamp(a, 7, mode=9)
    a("s_barrier")
    stamp(a, 8, mode=9)
    stamp(a, 1)
    if DPF == 7:
        if not pre:
            a(dma_x(1))
        a(dma_w(1))
    a(dma_x(2)); a(dma_w(2))
    if DPF == 8:
        pf8(1, (6, 9), [(6, 8), (8, 9)])
    if DPF == 9:
        pf8(1, (5, 9), [(5, 7), (7, 9)])
    if DPF == 4:
        a(f"""
        s_cmp_eq_u32 s{sLI}, 0
        s_cbranch_scc0 L_lp1
        v_and_b32 v{vT[5]}, 7, v{vL}
        v_min_u32 v{vT[5]}, 4, v{vT[5]}
        v_lshrrev_b32 v{vT[4]}, 3, v{vL}
        v_mul_u32_u24 v{vT[4]}, 1152, v{vT[4]}
        v_lshl_add_u32 v{vT[5]}, v{vT[5]}, 7, v{vT[4]}
        s_mul_i32 s{sT}, s2, {8*1152}
        buffer_load_dword v{vT[6]}, v{vT[5]}, s[{SX}:{SX+3}], s{sT} offen offset:512
        s_branch L_lp2
        L_lp1:
        v_min_u32 v{vT[5]}, 23, v{vL}
        v_lshlrev_b32 v{vT[5]}, 7, v{vT[5]}
        s_and_b32 s{sT}, s{sP}, 15
        s_lshl_b32 s{sT}, s{sT}, 3
        s_add_u32 s{sT}, s{sT}, s{sTG}
        s_mul_i32 s{sT}, s{sT}, 3
        s_add_u32 s{sT}, s{sT}, s{sLI}
        s_mul_i32 s{sT}, s{sT}, {320*3456 // 384}
        s_add_u32 s{sT}, s{sT}, {256*3456 - 320*3456 // 384}
        buffer_load_dword v{vT[6]}, v{vT[5]}, s[{SW}:{SW+3}], s{sT} offen
        L_lp2:
        """)
    vN = 24
    a(f"""
    s_lshl_b32 s{sT}, s{sP}, 12
    s_add_u32 s{sT}, s{sT}, {FLAG_OFF}
    v_lshlrev_b32 v{vN}, 7, v{vL}
    v_add_u32 v{vN}, s{sT}, v{vN}
    v_and_b32 v{vN+1}, 7, v{vL}
    v_lshlrev_b32 v{vN+1}, 12, v{vN+1}
    s_lshl_b32 s{sT}, s{sP}, 7
    s_add_u32 s{sT}, s{sT}, {OFLAG_OFF}
    v_cmp_gt_u32 vcc, 32, v{vL}
    v_add_u32 v{vN+1}, s{sT}, v{vN+1}
    s_cmp_eq_u32 s{sLI}, 3
    v_cndmask_b32 v{vN}, v{vN+1}, v{vN}, vcc
    s_cselect_b32 exec_lo, -1, 1
    s_cselect_b32 exec_hi, 0xff, 0
    buffer_load_dword v{vN+1}, v{vN}, s[{SWS}:{SWS+3}], 0 offen sc1
    s_mov_b64 exec, -1
    """)
    for n in range(8):
        extra = (2 if DPF in (4, 8, 9) else 1) if n < 2 else 1 if n >= 6 else 0
        a(f"s_waitcnt vmcnt({(12 if n + 2 <= 8 else 0) + extra}) lgkmcnt(0)")
        if STAMPS == 7:
            a(f"s_memtime s[90:91]\ns_waitcnt lgkmcnt(0)\ns_barrier\ns_memtime s[94:95]\ns_waitcnt lgkmcnt(0)\ns_sub_u32 s90, s94, s90\ns_add_u32 s{74+2*n}, s90, s72")
        elif STAMPS == 8:
            a(f"s_barrier\ns_memtime s[{74+2*n}:{75+2*n}]")
        else:
            a("s_barrier")
        if n + 3 <= 8:
            a(gate_write(n + 3))
            a(dma_x(n + 3)); a(dma_w(n + 3))
        if n == 5:
            a(f"""
            s_brev_b32 s{sA}, 1
            s_movk_i32 s{sB}, 0x400
            s_cmp_eq_u32 s{sLI}, 3
            s_cbranch_scc0 L_nn1
            s_mov_b32 s44, -1
            s_movk_i32 s45, 0xff
            """)
            for b in range(6):
                a(f"""
                v_and_b32 v{vN}, {1 << b}, v{vN+1}
                v_cmp_ne_u32 vcc, 0, v{vN}
                s_nop 0
                s_and_b64 s[46:47], s[44:45], vcc
                s_andn2_b64 s[44:45], s[44:45], vcc
                s_bcnt1_i32_b64 s{sT}, s[46:47]
                s_bcnt1_i32_b64 s{sT2}, s[44:45]
                s_cmp_lt_u32 s{sT}, s{sT2}
                s_cselect_b64 s[44:45], s[46:47], s[44:45]
                s_cselect_b32 s{sT}, {1 << b}, 0
                s_or_b32 s{sA}, s{sA}, s{sT}
                """)
            a(f"""
            s_lshl_b32 s{sB}, s{sP}, 2
            L_nn1:
            v_mov_b32 v{vN}, s{sA}
            v_mov_b32 v{vN+1}, 0
            v_mov_b32 v{vN+2}, s{sA}
            v_mov_b32 v{vN+3}, s{sB}
            s_mov_b64 exec, 1
            buffer_atomic_cmpswap v[{vN}:{vN+1}], v{vN+3}, s[{SD}:{SD+3}], 0 offen sc0 sc1
            s_mov_b64 exec, -1
            """)
        if n == 6:
            lab = a.label("L_cr")
            a(f"""
            s_cmp_ge_u32 s{sLI}, 2
            s_cbranch_scc1 {lab}
            s_cmp_eq_u32 s{sLI}, 0
            s_cselect_b32 s{sT}, 0x3f803f80, 0
            s_cselect_b32 s{sT2}, {14*16}, 0
            s_add_u32 s{sT2}, s{sT2}, {2560 + 4*16}
            v_and_b32 v{vT[0]}, 7, v{vL}
            v_mul_u32_u24 v{vT[0]}, {VH}, v{vT[0]}
            v_lshrrev_b32 v{vT[2]}, 3, v{vL}
            v_mul_u32_u24 v{vT[2]}, {TILE}, v{vT[2]}
            v_lshrrev_b32 v{vT[3]}, 4, v{vL}
            v_lshl_add_u32 v{vT[2]}, v{vT[3]}, 9, v{vT[2]}
            v_add3_u32 v{vT[0]}, v{vT[0]}, v{vT[2]}, s{sT2}
            v_mov_b32 v{CP}, s{sT}
            v_mov_b32 v{CP+1}, s{sT}
            v_mov_b32 v{CP+2}, s{sT}
            v_mov_b32 v{CP+3}, s{sT}
            ds_write_b128 v{vT[0]}, {vr(CP,4)}
            {lab}:
            """)
    a(f"""
    s_load_dwordx2 s[{SWA}:{SWA+1}], s[0:1], 16          ; A_wo
    s_load_dwordx2 s[{SWB}:{SWB+1}], s[0:1], 40          ; B_wo
    s_load_dwordx2 s[{SO}:{SO+1}], s[0:1], 56            ; out
    s_mov_b32 s{SWA+2}, {WO_BYTES}
    s_mov_b32 s{SWB+2}, {WO_BYTES}
    s_mov_b32 s{SO+2}, {XBYTES}
    s_mov_b32 s{sU}, 0
    s_mov_b32 s{sD3}, {(RING[1]-RING[0]) & 0xffffffff:#x}
    s_mov_b32 s{sD3+1}, {(RING[2]-RING[1]) & 0xffffffff:#x}
    s_mov_b32 s{sD3+2}, {(RING[0]-RING[2]) & 0xffffffff:#x}
    s_mul_i32 s{sT}, s{sLI}, {TPAIR}
    v_add_u32 v{vT[0]}, s{sT}, v{vL16}
    s_add_u32 s{sKVp}, s{sKVp}, s{sT}
    s_mov_b32 s{sM0x}, s{sT}
    s_mul_i32 s{sA}, s{sTG}, {CHUNK}
    s_add_u32 s{sA}, s{sA}, s{sKVp}
    s_lshl_b32 s{sT}, s{sLI}, 10
    s_lshl_b32 s{sB}, s{sP}, 12
    s_add_u32 s{sB}, s{sB}, s{sT}
    s_add_u32 s{sWb}, s{sB}, {FLAG_OFF}
    v_and_b32 v{vFo}, 7, v{vL}
    v_lshlrev_b32 v{vFo}, 7, v{vFo}
    v_mov_b32 v{vT[1]}, {SYNC + 52}
    s_lshl_b32 s{sT}, s{sTG}, 7
    v_mov_b32 v{vT[2]}, s{sT}
    v_lshrrev_b32 v{vT[3]}, 3, v{vL}
    v_mul_u32_u24 v{vT[3]}, 1152, v{vT[3]}
    v_bfe_u32 v{vT[4]}, v{vL}, 4, 1
    v_lshlrev_b32 v{vT[4]}, 2, v{vT[4]}
    v_and_b32 v{vT[5]}, 7, v{vL}
    v_xor_b32 v{vT[5]}, v{vT[5]}, v{vT[4]}
    v_lshl_add_u32 v{vWO}, v{vT[5]}, 4, v{vT[3]}
    s_waitcnt lgkmcnt(0)
    s_barrier
    """)
    stamp(a, 3, True)
    for i in range(10):
        a(f"ds_read_b128 {vr(CP+4*i,4)}, v{vT[0]} offset:{1024*i}")
    for i in range(10):
        if i == 9:
            a("s_mov_b32 exec_hi, 0")
        if i in (4, 8):
            a(f"s_add_u32 s{sA}, s{sA}, 4096")
        a(f"s_waitcnt lgkmcnt({9-i})")
        a(f"buffer_store_dwordx4 {vr(CP+4*i,4)}, v{vL16}, s[{SWS}:{SWS+3}], s{sA} offen offset:{1024*(i&3)} sc1")
    a(f"""
    s_mov_b64 exec, 1
    s_cmp_eq_u32 s{sLI}, 3
    s_cbranch_scc0 L_nn2
    s_waitcnt vmcnt(10)
    v_cmp_eq_u32 vcc, 0, v{vN}
    s_nop 1
    v_cndmask_b32 v{vN}, v{vN}, v{vN+2}, vcc
    ds_write_b32 v{vT[1]}, v{vN}
    L_nn2:
    ds_read_b32 v{vF}, v{vT[1]}
    s_waitcnt lgkmcnt(0)
    v_cmp_eq_u32 vcc, 0, v{vF}
    s_cbranch_vccnz L_nn2
    v_readfirstlane_b32 s{sNON}, v{vF}
    s_waitcnt vmcnt(0)
    buffer_store_dword v{vF}, v{vT[2]}, s[{SWS}:{SWS+3}], s{sWb} offen sc1
    s_mov_b64 exec, -1
    s_mov_b32 s{sRDY}, 0
    s_mov_b32 s{sN}, 0
    s_lshl_b32 s{sXb}, 1, s{sTG}
    L_ll:
    s_add_u32 s{sM0x}, s{sM0x}, s{sD3}
    s_mov_b32 s{sT}, s{sD3}
    s_mov_b32 s{sD3}, s{sD3+1}
    s_mov_b32 s{sD3+1}, s{sD3+2}
    s_mov_b32 s{sD3+2}, s{sT}
    L_poll:
    s_andn2_b32 s{sT}, s{sRDY}, s{sXb}
    s_cbranch_scc1 L_rdy
    buffer_load_dword v{vF}, v{vFo}, s[{SWS}:{SWS+3}], s{sWb} offen sc1
    s_waitcnt vmcnt(0)
    v_cmp_eq_u32 vcc, s{sNON}, v{vF}
    s_sub_u32 s{sSPIN}, s{sSPIN}, 1
    s_nop 0
    s_cselect_b32 s{sRDY}, -1, vcc_lo
    s_and_b32 s{sRDY}, s{sRDY}, 0xff
    s_branch L_poll
    L_rdy:
    s_ff1_i32_b32 s{sC}, s{sT}
    s_bitset1_b32 s{sXb}, s{sC}
    s_mul_i32 s{sA}, s{sC}, {CHUNK}
    s_add_u32 s{sA}, s{sA}, s{sKVp}
    """)
    for i in range(10):
        if i % 4 == 0:
            a(f"s_add_u32 m0, s{sM0x}, {1024*i}")
            a(f"s_add_u32 s{sT}, s{sA}, {1024*i}")
        if i == 9:
            a("s_mov_b32 exec_hi, 0")
        if True:
            a(f"buffer_load_dwordx4 v{vL16}, s[{SWS}:{SWS+3}], s{sT} offen offset:{1024*(i&3)} sc1 lds")
    a(f"""
    s_mov_b32 exec_hi, -1
    L_d9:
    s_cmp_eq_u32 s{sN}, 1
    s_cbranch_scc0 L_ncl
    s_lshl_b32 s{sT}, s{sTG}, 3
    s_lshl_b32 s{sT2}, s{sLI}, 1
    s_add_u32 s{sT}, s{sT}, s{sT2}
    s_mul_i32 s{sA}, s{sT}, {OTILE}
    s_mul_i32 s{sT}, s{sP}, {OPAIR}
    s_add_u32 s{sA}, s{sA}, s{sT}
    s_add_u32 s{sA}, s{sA}, {O_OFF}
    s_add_u32 s{sB}, s{sA}, {OTILE}
    v_mov_b32 v{CP}, -1
    v_mov_b32 v{CP+1}, -1
    v_mov_b32 v{CP+2}, -1
    v_mov_b32 v{CP+3}, -1
    buffer_store_dwordx4 {vr(CP,4)}, v{vL16}, s[{SWS}:{SWS+3}], s{sA} offen sc1
    buffer_store_dwordx4 {vr(CP,4)}, v{vL16}, s[{SWS}:{SWS+3}], s{sA} offen offset:1024 sc1
    buffer_store_dwordx4 {vr(CP,4)}, v{vL16}, s[{SWS}:{SWS+3}], s{sB} offen sc1
    buffer_store_dwordx4 {vr(CP,4)}, v{vL16}, s[{SWS}:{SWS+3}], s{sB} offen offset:1024 sc1
    s_mov_b64 exec, 0xffff
    buffer_store_dwordx4 {vr(CP,4)}, v{vL16}, s[{SWS}:{SWS+3}], s{sA} offen offset:2048 sc1
    buffer_store_dwordx4 {vr(CP,4)}, v{vL16}, s[{SWS}:{SWS+3}], s{sB} offen offset:2048 sc1
    s_mov_b64 exec, -1
    L_ncl:
    s_cmp_eq_u32 s{sLI}, 0
    s_cbranch_scc0 L_nfl
    s_cmp_eq_u32 s{sN}, 2
    s_cbranch_scc0 L_n2
    s_lshl_b32 s{sT}, s{sTG}, 12
    s_lshl_b32 s{sT2}, s{sP}, 7
    s_add_u32 s{sT}, s{sT}, s{sT2}
    s_add_u32 s{sT}, s{sT}, {OFLAG_OFF}
    v_mov_b32 v{vT[3]}, 0
    v_mov_b32 v{vF}, s{sNON}
    s_mov_b64 exec, 1
    buffer_store_dword v{vF}, v{vT[3]}, s[{SWS}:{SWS+3}], s{sT} offen sc1
    s_mov_b64 exec, -1
    L_n2:
    s_cmp_eq_u32 s{sN}, {CLAIM}
    s_cbranch_scc0 L_nfl
    s_and_b32 s{sA}, s2, 7
    v_and_b32 v{vT[5]}, 7, v{vL}
    v_lshlrev_b32 v{vT[4]}, 2, v{vT[5]}
    L_cl:
    s_lshl_b32 s{sT}, s{sA}, 2
    v_mov_b32 v{vT[3]}, s{sT}
    v_mov_b32 v{vF}, 1
    s_mov_b64 exec, 1
    buffer_atomic_add v{vF}, v{vT[3]}, s[{SD}:{SD+3}], 0 offen offset:128 sc0 sc1
    s_mov_b64 exec, -1
    s_waitcnt vmcnt(0)
    v_readfirstlane_b32 s{sB}, v{vF}
    s_nop 3
    s_cmp_lt_u32 s{sB}, 27
    s_cbranch_scc1 L_cl2
    """)
    if STEAL:
        a(f"""
        buffer_load_dword v{vF}, v{vT[4]}, s[{SD}:{SD+3}], 0 offen offset:128 sc1
        s_waitcnt vmcnt(0)
        v_lshl_or_b32 v{vF}, v{vF}, 3, v{vT[5]}
        s_nop 0
        v_readlane_b32 s{sA}, v{vF}, 0
        """)
        for q in range(1, 8):
            a(f"v_readlane_b32 s{sT}, v{vF}, {q}\ns_nop 3\ns_min_u32 s{sA}, s{sA}, s{sT}")
        a(f"""
        s_lshr_b32 s{sT}, s{sA}, 3
        s_and_b32 s{sA}, s{sA}, 7
        s_sub_u32 s{sSPIN}, s{sSPIN}, 1
        s_cselect_b32 s{sT}, 27, s{sT}
        s_cmp_lt_u32 s{sT}, 27
        s_cbranch_scc1 L_cl
        s_mov_b32 s{sSPIN}, {SPIN_LIMIT}
        """)
    a(f"""
    s_movk_i32 s{sB}, 0xff
    L_cl2:
    s_lshl_b32 s{sA}, s{sA}, 8
    s_or_b32 s{sA}, s{sA}, s{sB}
    v_mov_b32 v{vF}, s{sA}
    v_mov_b32 v{vT[3]}, {SYNC + 48}
    ds_write_b32 v{vT[3]}, v{vF}
    s_waitcnt lgkmcnt(0)
    L_nfl:
    s_cmp_eq_u32 s{sN}, {CLAIM + 1}
    s_cbranch_scc0 L_nw3
    v_mov_b32 v{vT[3]}, {SYNC + 48}
    ds_read_b32 v{vF}, v{vT[3]}
    s_waitcnt lgkmcnt(0)
    """)
    unit_decode(vF)
    a(f"""
    s_cmp_ge_u32 s{sU}, 27
    s_cbranch_scc1 L_on1
    s_lshl_b32 s{sT}, s{sCG}, 7
    v_add_u32 v{vWO}, s{sT}, v{vWO}
    """)
    wo_load(38, 42)
    wo_load(80, 121)
    a(f"""
    L_nw3:
    s_cmp_eq_u32 s{sN}, 6
    s_cbranch_scc0 L_on1
    """)
    if CPF2:
        a(f"""
        s_getpc_b64 s[{sA}:{sA+1}]
        L_pc2:
        v_lshlrev_b32 v{vT[3]}, 7, v{vL}
        v_add_u32 v{vT[3]}, L_fin - L_pc2 - 64, v{vT[3]}
        v_min_u32 v{vT[3]}, L_exact - L_pc2, v{vT[3]}
        global_load_dword v{vT[4]}, v{vT[3]}, s[{sA}:{sA+1}]
        """)
    a(f"""
    s_cmp_ge_u32 s{sU}, 27
    s_cbranch_scc1 L_on1
    v_mul_u32_u24 v{vT[3]}, 1152, v{vL}
    s_lshl_b32 s{sT}, s{sCG}, 7
    s_mul_i32 s{sT2}, s{sLI}, {48*1152}
    s_add_u32 s{sT2}, s{sT2}, s{sT}
    s_add_u32 s{sT2}, s{sT2}, {392*1152}
    buffer_load_dword v{vT[4]}, v{vT[3]}, s[{SWB}:{SWB+3}], s{sT2} offen
    """)
    if TLBW:
        a(f"""
        s_mul_i32 s{sT}, s{sTG2}, {256*1152}
        v_lshlrev_b32 v{vT[3]}, 2, v{vT[3]}
        buffer_load_dword v{vT[4]}, v{vT[3]}, s[{SO}:{SO+3}], s{sT} offen
        """)
    a(f"""
    v_and_b32 v{vT[0]}, 31, v{vL}
    v_lshlrev_b32 v{vT[3]}, 7, v{vT[0]}
    v_lshlrev_b32 v{vT[0]}, 2, v{vT[0]}
    s_lshl_b32 s{sB}, s{sTG2}, 12
    s_add_u32 s{sB}, s{sB}, {OFLAG_OFF}
    L_on0:
    buffer_load_dword v{vF}, v{vT[0]}, s[{SD}:{SD+3}], 0 offen sc1
    buffer_load_dword v{vT[4]}, v{vT[3]}, s[{SWS}:{SWS+3}], s{sB} offen sc1
    s_waitcnt vmcnt(0)
    v_cmp_le_i32 vcc, 0, v{vF}
    v_cmp_ne_u32 s[44:45], v{vF}, v{vT[4]}
    s_sub_u32 s{sSPIN}, s{sSPIN}, 1
    s_cbranch_scc1 L_on1
    s_or_b64 vcc, vcc, s[44:45]
    s_cbranch_vccz L_on1
    s_sleep 8
    s_branch L_on0
    L_on1:
    s_waitcnt vmcnt(0)
    """)
    if STAMPS == 1:
        a(f"s_cmp_eq_u32 s{sN}, 0\ns_cbranch_scc0 L_st4")
        stamp(a, 4)
        a("L_st4:")
    if STAMPS == 6:
        a("s_barrier\ns_memtime s[88:89]\ns_waitcnt lgkmcnt(0)")
        for q in range(7):
            a(f"s_cmp_eq_u32 s{sN}, {q}\ns_cselect_b32 s{74+2*q}, s88, s{74+2*q}")
    elif STAMPS == 5:
        a("s_memtime s[88:89]\ns_waitcnt lgkmcnt(0)\ns_barrier\ns_memtime s[90:91]\ns_waitcnt lgkmcnt(0)\ns_sub_u32 s88, s90, s88\ns_add_u32 s88, s88, s72")
        for q in range(7):
            a(f"s_cmp_eq_u32 s{sN}, {q}\ns_cselect_b32 s{74+2*q}, s88, s{74+2*q}")
    else:
        a("s_barrier")
    a(f"""
    s_add_u32 s{sN}, s{sN}, 1
    s_cmp_lt_u32 s{sN}, 7
    s_cbranch_scc1 L_ll
    s_mov_b32 s{sSPIN}, {SPIN_LIMIT}
    s_cmp_ge_u32 s{sU}, 27
    s_cbranch_scc1 L_end
    """)
    wo_load(0, 38)
    wo_load(42, 72)
    wo_load(72, 80)
    a(f"""
    v_and_b32 v12, 7, v{vL}
    v_lshlrev_b32 v12, 2, v12
    v_add_u32 v12, {SYNC}, v12
    L_pg:
    s_sleep 2
    ds_read_b32 v13, v12
    s_waitcnt lgkmcnt(0)
    v_cmp_gt_u32 vcc, 7, v13
    s_cbranch_vccnz L_pg
    """)
    wo_load(121, 144)
    a(f"""
    s_lshl_b32 s{sT}, s{sLI}, 2
    s_add_u32 s{sT}, s{sT}, {SYNC + 32}
    v_mov_b32 v12, s{sT}
    v_mov_b32 v13, 8
    s_waitcnt vmcnt(0)
    ds_write_b32 v12, v13
    s_setprio 0
    s_branch L_tail
    """)
    a.sec("tail")

    vOH = 5
    vWm = [3, 4]; vWh = [8, 9]
    vT = [10, 11, 12, 13, 14, 6]
    vPw, vPr, vOut, vPr2, vDw, vDr = 163, 164, 165, 166, 167, 7
    WS_ = [16, 32]
    OF = 56
    ACC = [128, 144]
    DEPTH = int(os.environ.get("DEPTH", "2"))
    TPRIO = int(os.environ.get("TPRIO", "0"))

    def omain(i, j):
        return OF + 8 * i + 4 * j
    OHI = OF + 64

    def issue(i):
        a(f"""
        s_add_u32 s{sT}, s{sFl}, {i*OPAIR}
        buffer_load_dwordx4 {vr(omain(i,0),4)}, v{vL16}, s[{SWS}:{SWS+3}], s{sT} offen sc1
        buffer_load_dwordx4 {vr(omain(i,1),4)}, v{vL16}, s[{SWS}:{SWS+3}], s{sT} offen offset:1024 sc1
        buffer_load_dword v{OHI+i}, v{vOH}, s[{SWS}:{SWS+3}], s{sT} offen offset:2048 sc1
        """)

    a(f"""
    L_tail:
    s_cmp_ge_u32 s{sU}, 27
    s_cbranch_scc1 L_end
    s_cmp_ge_u32 s{sT0}, 8
    s_cbranch_scc1 L_end
    v_lshlrev_b32 v{vOH}, 2, v{vL}
    s_mov_b32 s{sI}, 0
    v_min_u32 v{vT[2]}, 11, v{vL}
    """)
    if LEARLY:
        a(f"""
        s_cmp_lt_u32 s{sWV}, 4
        s_cselect_b32 s{sT}, 8, 0
        v_max_u32 v{vT[2]}, s{sT}, v{vT[2]}
        """)
    a(f"""
    v_lshlrev_b32 v{vT[2]}, 2, v{vT[2]}
    v_add_u32 v{vT[2]}, {SYNC}, v{vT[2]}
    L_ws1:
    ds_read_b32 v{vT[3]}, v{vT[2]}
    s_waitcnt lgkmcnt(0)
    v_cmp_gt_u32 vcc, 8, v{vT[3]}
    s_cbranch_vccz L_go
    s_sleep 1
    s_branch L_ws1
    L_go:
    """)
    stamp(a, 3, mode=3)
    if TPRIO:
        a("s_setprio 3")
    for i in range(DEPTH):
        issue(i)
    a(f"""
    v_and_b32 v{vT[0]}, 31, v{vL}                ; tau
    v_lshrrev_b32 v{vT[1]}, 5, v{vL}             ; h
    v_bfe_u32 v{vT[2]}, v{vL}, 2, 2              ; r
    v_and_b32 v{vT[3]}, 3, v{vL}                 ; c
    v_bfe_u32 v{vT[4]}, v{vL}, 4, 1              ; sub
    v_lshlrev_b32 v{vT[3]}, 3, v{vT[3]}
    v_lshl_add_u32 v{vT[3]}, v{vT[4]}, 5, v{vT[3]}
    s_mul_i32 s{sT}, s{sKQ}, {288*128}
    v_add_u32 v{vT[3]}, s{sT}, v{vT[3]}
    v_lshrrev_b32 v{vT[4]}, 1, v{vT[2]}          ; r>>1
    v_lshl_add_u32 v{vT[5]}, v{vT[1]}, 2, v{vT[2]}
    v_lshl_add_u32 v{vT[5]}, v{vT[5]}, 7, v{vT[3]}
    v_lshl_add_u32 v{vWm[0]}, v{vT[4]}, 6, v{vT[5]}
    v_xor_b32 v{vWm[1]}, 64, v{vWm[0]}
    v_lshl_add_u32 v{vT[5]}, v{vT[4]}, 1, v{vT[1]}
    v_mul_u32_u24 v{vT[5]}, 18, v{vT[5]}
    v_and_b32 v{vT[2]}, 1, v{vT[2]}
    v_add3_u32 v{vT[5]}, v{vT[5]}, v{vT[2]}, 16
    v_lshl_add_u32 v{vT[5]}, v{vT[5]}, 7, v{vT[3]}
    v_lshl_add_u32 v{vWh[0]}, v{vT[1]}, 6, v{vT[5]}
    v_xor_b32 v{vWh[1]}, 64, v{vWh[0]}
    s_lshl_b32 s{sT}, s{sTT}, 13
    s_mul_i32 s{sT2}, s{sKQ}, {288*128}
    s_add_u32 s{sA}, s{sT}, s{sT2}
    v_add_u32 v{vPw}, s{sA}, v{vL16}
    s_lshl_b32 s{sT2}, s{sKQ}, 11
    s_add_u32 s{sA}, s{sT}, s{sT2}
    v_add_u32 v{vPr}, s{sA}, v{vL16}
    v_add_u32 v{vPr2}, {2*288*128}, v{vPr}
    s_lshl_b32 s{sT}, s{sWV}, 2
    s_add_u32 s{sT}, s{sT}, {SYNC + 64}
    v_mov_b32 v{vDw}, s{sT}
    s_sub_u32 s{sT}, s{sT0}, s{sTT}
    s_cmp_eq_u32 s{sT}, 6
    s_cselect_b32 s{sT}, 1, 2
    v_min_u32 v{vDr}, s{sT}, v{vL}
    s_mul_i32 s{sT}, s{sKQ}, 12
    s_add_u32 s{sT}, s{sT}, {SYNC + 64}
    v_lshlrev_b32 v{vDr}, 2, v{vDr}
    v_add_u32 v{vDr}, s{sT}, v{vDr}
    s_lshl_b32 s{sT}, s{sTG2}, 8
    s_lshl_b32 s{sT2}, s{sT0}, 5
    s_add_u32 s{sT}, s{sT}, s{sT2}
    s_mul_i32 s{sOm}, s{sT}, 1152
    s_lshl_b32 s{sT}, s{sCG}, 7
    s_add_u32 s{sOm}, s{sOm}, s{sT}
    s_lshl_b32 s{sT}, s{sKQ}, 5
    s_add_u32 s{sOm}, s{sOm}, s{sT}
    v_mul_u32_u24 v{vOut}, 1152, v{vT[0]}
    v_lshl_add_u32 v{vOut}, v{vT[1]}, 4, v{vOut}
    """)
    for r in range(ACC[0], ACC[0] + 32):
        a(f"v_mov_b32 v{r}, 0")
    stamp(a, 7)
    stamp(a, 4, mode=3)

    def wreads(blk, st):
        for f in range(2):
            b = WS_[st] + 8 * f
            m = 2 * blk + f
            for ct in range(2):
                if m < 16:
                    ad = vWm[ct ^ (m & 1)]
                    o0 = m * 18 * 128; o1 = o0 + 8 * 128
                else:
                    ad = vWh[ct]
                    o0 = (m - 16) * 8 * 18 * 128; o1 = o0 + 4 * 18 * 128
                a(f"ds_read_b64_tr_b16 {vr(b+4*ct,2)}, v{ad} offset:{o0}")
                a(f"ds_read_b64_tr_b16 {vr(b+4*ct+2,2)}, v{ad} offset:{o1}")

    def verify(i, skip):
        o0, o1 = omain(i, 0), omain(i, 1)
        a(f"""
        v_max3_u32 v{vT[2]}, v{o0}, v{o0+1}, v{o0+2}
        v_max3_u32 v{vT[3]}, v{o0+3}, v{o1}, v{o1+1}
        v_max3_u32 v{vT[2]}, v{vT[2]}, v{o1+2}, v{o1+3}
        v_max3_u32 v{vT[2]}, v{vT[2]}, v{vT[3]}, v{OHI+i}
        v_cmp_eq_u32 vcc, -1, v{vT[2]}
        s_cbranch_vccnz {skip}
        s_bitset1_b32 s{sI}, {i}
        """)

    def mm(st, o0, o1):
        for f, o in ((0, o0), (1, o1)):
            for ct in range(2):
                a(f"v_mfma_f32_32x32x16_bf16 {vr(ACC[ct],16)}, {vr(WS_[st]+8*f+4*ct,4)}, {vr(o,4)}, {vr(ACC[ct],16)}")

    wreads(0, 0)
    for i in range(8):
        a(f"s_waitcnt vmcnt({3*min(DEPTH-1, 7-i)}) lgkmcnt(0)")
        wreads(i + 1, (i + 1) & 1)
        verify(i, f"L_s{i}")
        mm(i & 1, omain(i, 0), omain(i, 1))
        a(f"L_s{i}:")
        if TPRIO and i in (0, 2, 4):
            a(f"s_setprio {2 - i // 2}")
        if i + DEPTH < 8:
            issue(i + DEPTH)
    a(f"""
    L_chk:
    s_cmp_eq_u32 s{sI}, 0xff
    s_cbranch_scc0 L_round
    L_hi:
    v_mov_b32 v{vT[2]}, 1
    s_waitcnt lgkmcnt(0)
    ds_write_b32 v{vDw}, v{vT[2]}
    """)
    mm(0, OHI, OHI + 4)
    stamp(a, 8)
    stamp(a, 7, mode=3)
    a(f"""
    L_qs:
    ds_read_b32 v{vT[3]}, v{vDr}
    s_waitcnt lgkmcnt(0)
    v_cmp_eq_u32 vcc, 0, v{vT[3]}
    s_cbranch_vccnz L_qs
    s_nop 6
    """)
    for i in range(8):
        a(f"ds_write_b128 v{vPw}, {vr(ACC[0]+4*i,4)} offset:{1024*i}")
    a("s_waitcnt lgkmcnt(0)")
    a("s_barrier                                    ; BT4")
    stamp(a, 8, True, mode=3)
    for src in range(4):
        for g in range(2):
            a(f"ds_read_b128 {vr(OF+8*src+4*g,4)}, v{vPr if src < 2 else vPr2} offset:{(src&1)*288*128 + g*1024}")
    a("s_waitcnt lgkmcnt(4)")
    for q in range(8):
        a(f"v_add_f32 v{OF+q}, v{OF+q}, v{OF+8+q}")
    a("s_waitcnt lgkmcnt(0)")
    for q in range(8):
        a(f"v_add_f32 v{OF+16+q}, v{OF+16+q}, v{OF+24+q}")
    for q in range(8):
        a(f"v_add_f32 v{OF+q}, v{OF+q}, v{OF+16+q}")
    for i in range(4):
        a(f"v_cvt_pk_bf16_f32 v{WS_[0]+i}, v{OF+2*i}, v{OF+2*i+1}")
    a(f"""
    s_nop 1
    v_permlane32_swap_b32 v{WS_[0]}, v{WS_[0]+2}
    v_permlane32_swap_b32 v{WS_[0]+1}, v{WS_[0]+3}
    buffer_store_dwordx4 {vr(WS_[0],4)}, v{vOut}, s[{SO}:{SO+3}], s{sOm} offen {os.environ.get('OUTF', '')}
    """)
    stamp(a, 9, mode=3)
    a("s_branch L_end")
    a(f"""
    L_round:
    s_sub_u32 s{sSPIN}, s{sSPIN}, 1
    s_cbranch_scc1 L_hi
    {"s_sleep " + os.environ["TSLEEP"] if "TSLEEP" in os.environ else ""}
    s_not_b32 s{sBt}, s{sI}
    """)
    if int(os.environ.get("HINT", "0")):
        a(f"""
        v_and_b32 v{vT[2]}, 7, v{vL}
        v_mul_u32_u24 v{vT[2]}, {OPAIR}, v{vT[2]}
        v_bfe_u32 v{vT[3]}, v{vL}, 3, 1
        v_lshl_add_u32 v{vT[2]}, v{vT[3]}, 7, v{vT[2]}
        s_mov_b64 exec, 0xffff
        buffer_load_dword v{vT[3]}, v{vT[2]}, s[{SWS}:{SWS+3}], s{sFl} offen offset:2048 sc1
        s_waitcnt vmcnt(0)
        v_cmp_eq_u32 vcc, -1, v{vT[3]}
        s_mov_b64 exec, -1
        s_nop 0
        s_lshr_b32 s{sT}, vcc_lo, 8
        s_or_b32 s{sT}, s{sT}, vcc_lo
        s_andn2_b32 s{sBt}, s{sBt}, s{sT}
        s_and_b32 s{sBt}, s{sBt}, 0xff
        s_cbranch_scc0 L_round
        """)
    stamp(a, 5, mode=3)
    for i in range(8):
        a(f"s_bitcmp1_b32 s{sBt}, {i}\ns_cbranch_scc0 L_ni{i}")
        issue(i)
        a(f"L_ni{i}:")
    for i in range(8):
        a(f"s_bitcmp1_b32 s{sBt}, {i}\ns_cbranch_scc0 L_nc{i}")
        wreads(i, 1)
        a("s_waitcnt vmcnt(0)")
        verify(i, f"L_nc{i}")
        a("s_waitcnt lgkmcnt(0)")
        mm(1, omain(i, 0), omain(i, 1))
        a(f"L_nc{i}:")
    a("s_branch L_chk")
    a.sec("end")
    a("L_end:")
    if DIAG >= 0:
        a(f"""
        s_cmp_eq_u32 s{sWV}, 9
        s_cbranch_scc0 L_done
        s_cmp_lt_u32 s2, {os.environ.get("DIAGWG", "256")}
        s_cbranch_scc0 L_done
        s_waitcnt vmcnt(0) lgkmcnt(0)
        s_memrealtime s[82:83]
        s_waitcnt lgkmcnt(0)
        s_mov_b32 s{sT}, 0
        """)
        if DIAG > 0:
            a(f"""
            s_sub_u32 s{sT}, s{72+2*DIAG}, s96
            s_lshl_b32 s{sT}, s{sT}, 2
            s_cmp_lt_u32 s{sWV}, 4
            s_cselect_b32 s{sT}, 0, s{sT}
            """)
        a(f"""
        s_add_u32 s{sT}, s{sT}, 10000
        L_dg:
        s_sleep 8
        s_memrealtime s[98:99]
        s_waitcnt lgkmcnt(0)
        s_sub_u32 s{sT2}, s98, s96
        s_cmp_lt_u32 s{sT2}, s{sT}
        s_cbranch_scc1 L_dg
        """)
    elif STAMPS:
        a(f"""
        s_waitcnt vmcnt(0) lgkmcnt(0)
        s_memtime s[92:93]
        s_memrealtime s[98:99]
        s_waitcnt lgkmcnt(0)
        s_mov_b64 exec, 1
        s_lshl_b32 s{sT}, s2, 4
        s_add_u32 s{sT}, s{sT}, s{sWV}
        s_lshl_b32 s{sT}, s{sT}, 6
        s_add_u32 s{sT}, s{sT}, {STAMP_OFF}
        v_mov_b32 v0, 0
        """)
        for n in range(14):
            a(f"v_mov_b32 v1, s{72+2*n}")
            a(f"buffer_store_dword v1, v0, s[{SWS}:{SWS+3}], s{sT} offen offset:{4*n}")
            a("s_nop 0")
    a("""
    L_done:
    s_endpgm
    """)
    return name, NV


DOC = '''; ---------------------------------------------------------------------------------------------
; ---------------------------------------------------------------------------------------------
'''


def main():
    out = sys.argv[1] if len(sys.argv) > 1 else f"cdna_kernels/{NAME}.s"
    a = Asm()
    k, nv = gen(a)
    hdr = open(f"cdna_kernels/{NAME}.s.ref").read().split("\n")
    hdr = [l for l in hdr if l.startswith(";") and "@launch" not in l]
    txt = "\n".join(hdr) + "\n"
    txt += f"; @launch grid=(256,1,1) block=(768,1,1) lds={LDS_BYTES}\n"
    txt += DOC
    txt += '.amdgcn_target "amdgcn-amd-amdhsa--gfx950"\n.text\n'
    txt += a.text()
    txt += f""".section .rodata,"a"
.p2align 6
.amdhsa_kernel {k}
  .amdhsa_next_free_vgpr {nv}
  .amdhsa_next_free_sgpr {102 if STAMPS else 72}
  .amdhsa_accum_offset {(nv + 3) // 4 * 4}
  .amdhsa_group_segment_fixed_size 0
  .amdhsa_kernarg_size 80
  .amdhsa_user_sgpr_count 2
  .amdhsa_user_sgpr_kernarg_segment_ptr 1
  .amdhsa_system_sgpr_workgroup_id_x 1
.end_amdhsa_kernel
"""
    open(out, "w").write(txt)


if __name__ == "__main__":
    main()
```

```python
import math, os, struct, sys

NAME = "gated_mix__mha_block__mha_block__prompt"

VH = 320
VG = 2 * VH
TILE = 2048 + 4 * VG
TPAIR = 512 + 2 * TILE
CHUNK = 4 * TPAIR


def toff(t):
    return (t >> 1) * TPAIR + (t & 1) * TILE
KV_OFF = 0
FLAG_OFF = 0x0A00000
OFLAG_OFF = 0x0A20000
O_OFF = 0x0B00000
OPAIR = 2304
OTILE = 32 * OPAIR
WS_USED = 0x1000000
XBYTES = 2048 * 576 * 2
WQKV_BYTES = 576 * 1728 * 2
WO_BYTES = 576 * 576 * 2
CSCALE = (18 ** -0.5) * math.log2(math.e)

STAMPS = int(os.environ.get("STAMPS", "0"))
STAMP_OFF = 0x1000000
if STAMPS:
    WS_USED = 0x1100000
ALIGN = int(os.environ.get("ALIGN", "1"))
STEAL = int(os.environ.get("STEAL", "1"))
TLBW = int(os.environ.get("TLBW", "2"))
DIAG = int(os.environ.get("DIAG", "-1"))
PRIOI = int(os.environ.get("PRIOI", "6"))
VMASK = int(os.environ.get("VMASK", "1"))
VPOS = int(os.environ.get("VPOS", "3"))
CLAIM = int(os.environ.get("CLAIM", "4"))
LEARLY = int(os.environ.get("LEARLY", "0"))
GMIX = int(os.environ.get("GMIX", "0"))
SHIFT = float(os.environ.get("SHIFT", "42"))
CPF2 = int(os.environ.get("CPF2", "0"))
EARLYB = int(os.environ.get("EARLYB", "1"))
BPOS = int(os.environ.get("BPOS", "1"))
THR = int(os.environ.get("THR", "-1"))
ROWOUT = int(os.environ.get("ROWOUT", "1"))
CPF = int(os.environ.get("CPF", "1"))
DPF = int(os.environ.get("DPF", "4"))

G_SLOT = 49152
LDS_BYTES = 163840
SCR = CHUNK
SYNC = LDS_BYTES - 1024
RING = [0, SYNC - CHUNK, CHUNK + 4096]
SPIN_LIMIT = 1 << 19


WMASK = ~((1 << 15) | (1 << 27) | (1 << 39) | (1 << 51)) & ((1 << 64) - 1)


def f32bits(x):
    return struct.unpack("<I", struct.pack("<f", x))[0]


class Asm:
    def __init__(self):
        self.secs = {"entry": []}
        self.lines = self.secs["entry"]
        self.nlab = 0

    def sec(self, name):
        self.lines = self.secs.setdefault(name, [])

    def __call__(self, s):
        for ln in s.strip("\n").split("\n"):
            ln = ln.strip()
            if not ln:
                continue
            if ln.endswith(":") or ln.startswith("."):
                self.lines.append(ln)
            else:
                self.lines.append("    " + ln)

    def label(self, base="L"):
        self.nlab += 1
        return f"{base}_{self.nlab}"

    def text(self):
        order = ["entry", "loader", "compute", "tail", "exact", "end"]
        assert sorted(order) == sorted(self.secs)
        return "\n".join("\n".join(self.secs[k]) for k in order) + "\n"


def isize(ln):
    t = ln.split(";")[0].strip()
    if not t or t.endswith(":"):
        return 0
    op = t.split()[0]
    if op.startswith(("v_mfma", "v_smfmac", "ds_", "buffer_")) or op.endswith("_e64"):
        return 8
    assert op in ("v_exp_f32", "v_add_u32", "v_mov_b32") or op.startswith("s_"), t
    assert "0x" not in t, t
    return 4


def align8(lines):
    out, off = [], 0
    for ln in lines:
        n = isize(ln)
        if n == 8 and off % 8:
            o = off
            for k in range(len(out) - 1, -1, -1):
                m = isize(out[k])
                if m == 8:
                    k = -1
                    break
                o -= m
                if m == 4 and o % 8 == 0 and out[k].split()[0] == "v_exp_f32":
                    out[k] = out[k].replace("v_exp_f32", "v_exp_f32_e64")
                    break
            else:
                k = -1
            if k != -1:
                off += 4
        out.append(ln)
        off += n
    return out


def vr(b, n):
    return f"v[{b}:{b+n-1}]"


def stamp(a, n, wait=False, mode=1):
    if STAMPS == mode:
        a(f"{'s_memtime' if mode in (1, 9) else 's_memrealtime'} s[{72+2*n}:{73+2*n}]")
        if wait:
            a("s_waitcnt lgkmcnt(0)")


def gen(a):
    name = NAME + "_kernel"
    a(f"""
.globl {name}
.p2align 8
.type {name},@function
{name}:
""")
    SX, SW, SWS, SG, SD = 4, 8, 12, 16, 52
    SWA, SWB, SO = 4, 8, 16
    sW_, sP, sTG, sWV, sJ, sTP = 20, 21, 22, 23, 24, 25
    sXb, sWb, sM0x, sM0w, sA, sB, sT, sT2 = 26, 27, 28, 29, 30, 31, 32, 33
    sMASK = 34
    sKVp, sC, sN, sRS = 36, 37, 38, 39
    sDl, sU, sOm, sOh = 56, 57, 58, 59
    sNON, sRDY, sFB, sSPIN = 60, 61, 62, 63
    sCG, sT0, sTT, sKQ, sTG2 = 64, 65, 66, 67, 68
    sC2 = 70
    sD3 = 48
    sLI = sWV
    vL, vL16 = 1, 2
    NV = 168
    a(f"""
    s_cmp_ge_u32 s2, 256
    s_cbranch_scc1 L_done
    """)
    if STAMPS:
        a("s_memtime s[72:73]\ns_memrealtime s[96:97]")
    a(f"""
    s_load_dwordx2 s[{SX}:{SX+1}], s[0:1], 0            ; x
    s_bitcmp1_b32 s2, 2
    s_cselect_b32 s{sT}, 32, 8
    s_load_dwordx2 s[{SW}:{SW+1}], s[0:1], s{sT}
    s_load_dwordx2 s[{SG}:{SG+1}], s[0:1], 48           ; gate_w
    s_load_dwordx2 s[{SD}:{SD+1}], s[0:1], 64           ; debug
    s_load_dwordx2 s[{SWS}:{SWS+1}], s[0:1], 72         ; ws
    """)
    if CPF:
        a(f"""
        s_getpc_b64 s[{sA}:{sA+1}]
        v_subrev_u32 v10, 256, v0
        v_lshlrev_b32 v10, 7, v10
        v_cmp_gt_u32 vcc, L_done - {name} - 64, v10
        s_and_saveexec_b64 s[{sT}:{sT+1}], vcc
        s_cbranch_execz L_cpf
        global_load_dword v7, v10, s[{sA}:{sA+1}]
        L_cpf:
        s_mov_b64 exec, -1
        """)
    a(f"""
    v_lshrrev_b32 v10, 6, v0
    v_and_b32 v{vL}, 63, v0
    s_bfe_u32 s{sTG}, s2, 0x30003
    v_readfirstlane_b32 s{sWV}, v10
    s_and_b32 s{sP}, s2, 7
    s_lshl_b32 s{sP}, s{sP}, 2
    s_lshr_b32 s{sT2}, s2, 6
    s_add_u32 s{sP}, s{sP}, s{sT2}
    s_mov_b32 s{SX+2}, {XBYTES}
    s_mov_b32 s{SX+3}, 0x00020000
    s_mov_b32 s{SW+3}, s{SX+3}
    s_mov_b32 s{SG+3}, s{SX+3}
    s_mov_b32 s{SD+3}, s{SX+3}
    s_mov_b32 s{SWS+3}, s{SX+3}
    s_cmp_lt_u32 s{sWV}, 4
    s_cbranch_scc0 L_compute
    v_lshrrev_b32 v12, 3, v{vL}
    v_mul_u32_u24 v12, 1152, v12
    v_lshrrev_b32 v13, 4, v{vL}
    v_and_b32 v14, 7, v{vL}
    v_xor_b32 v14, v14, v13
    v_lshl_add_u32 v3, v14, 4, v12
    v_xor_b32 v14, 4, v14
    v_lshl_add_u32 v4, v14, 4, v12
    v_add_u32 v4, {8*1152 - 1024}, v4
    s_lshl_b32 s{sT}, s{sTG}, 2
    s_add_u32 s{sT}, s{sT}, s{sLI}
    s_mul_i32 s{sXb}, s{sT}, {64*1152}
    s_lshl_b32 s{sM0x}, s{sLI}, 13
    v_lshlrev_b32 v14, 2, v13
    v_xor_b32 v14, v14, v{vL}
    v_and_b32 v14, 15, v14
    s_mov_b32 s{sA}, 0x75752020
    s_mov_b32 s{sA+1}, 0x7446420
    s_mov_b32 s{sT}, 0x21aa0505
    v_mul_u32_u24 v18, 3, v13
    v_lshlrev_b32 v15, 2, v14
    v_lshrrev_b64 v[16:17], v15, s[{sA}:{sA+1}]
    v_lshlrev_b32 v19, 1, v14
    v_lshrrev_b32 v19, v19, s{sT}
    v_and_b32 v16, 15, v16
    v_and_b32 v19, 3, v19
    v_add_u32 v19, v19, v18
    v_mul_u32_u24 v19, 1152, v19
    v_lshl_add_u32 v5, v16, 3, v19
    v_xor_b32 v15, 8, v15
    v_lshrrev_b64 v[16:17], v15, s[{sA}:{sA+1}]
    v_lshrrev_b32 v19, 1, v15
    v_lshrrev_b32 v19, v19, s{sT}
    v_and_b32 v16, 15, v16
    v_and_b32 v19, 3, v19
    v_add_u32 v19, v19, v18
    v_mul_u32_u24 v19, 1152, v19
    v_lshl_add_u32 v21, v16, 3, v19
    s_and_b32 s{sT}, s{sP}, 15
    s_mul_i32 s{sT}, s{sT}, 72
    s_mul_i32 s{sWb}, s{sLI}, {16*3456}
    s_add_u32 s{sWb}, s{sWb}, s{sT}
    s_lshl_b32 s{sM0w}, s{sLI}, 12
    s_mov_b32 s{sMASK}, {WMASK & 0xffffffff:#x}
    s_mov_b32 s{sMASK+1}, {WMASK >> 32:#x}
    s_lshr_b64 s[{sC2}:{sC2+1}], s[{sMASK}:{sMASK+1}], 2
    s_or_b32 s{sC2+1}, s{sC2+1}, 0xc0000000
    s_mov_b32 s{SW+2}, {WQKV_BYTES}
    s_waitcnt lgkmcnt(0)
    """)

    def common():
        a(f"""
        s_mov_b32 s{SW+2}, {WQKV_BYTES}
        s_movk_i32 s{SG+2}, 1152
        s_movk_i32 s{SD+2}, 256
        s_mov_b32 s{SWS+2}, {WS_USED}
        v_lshlrev_b32 v{vL16}, 4, v{vL}
        s_mul_i32 s{sKVp}, s{sP}, {8*CHUNK}
        s_mul_i32 s{sKQ}, s{sWV}, 43
        s_lshr_b32 s{sKQ}, s{sKQ}, 7
        s_mul_i32 s{sT}, s{sKQ}, 3
        s_sub_u32 s{sTT}, s{sWV}, s{sT}
        s_mov_b32 s{sSPIN}, {SPIN_LIMIT}
        """)

    sFl, sI, sPd, sBt, sCur, sMode, sWS = 69, 40, 41, 42, 43, 39, 3

    def unit_decode(v):
        a(f"""
        v_readfirstlane_b32 s{sU}, v{v}
        s_nop 3
        s_lshr_b32 s{sTG2}, s{sU}, 8
        s_and_b32 s{sTG2}, s{sTG2}, 7
        s_and_b32 s{sU}, s{sU}, 0xff
        s_lshr_b32 s{sCG}, s{sU}, 1
        s_and_b32 s{sT0}, s{sU}, 1
        s_mul_i32 s{sT0}, s{sT0}, 3
        s_sub_u32 s{sT}, s{sU}, 18
        s_cmp_ge_u32 s{sU}, 18
        s_cselect_b32 s{sCG}, s{sT}, s{sCG}
        s_cselect_b32 s{sT0}, 6, s{sT0}
        s_add_u32 s{sT0}, s{sT0}, s{sTT}
        s_lshl_b32 s{sT}, s{sTG2}, 3
        s_add_u32 s{sT}, s{sT}, s{sT0}
        s_mul_i32 s{sFl}, s{sT}, {OTILE}
        s_mul_i32 s{sT}, s{sKQ}, {8*OPAIR}
        s_add_u32 s{sFl}, s{sFl}, s{sT}
        s_add_u32 s{sFl}, s{sFl}, {O_OFF}
        """)

    vK, vKH, vV, vIDX = 3, 4, 5, 6
    vG = [8, 9]
    vT = [10, 11, 12, 13, 14, 15, 26]
    Qa, Qb = 16, 20
    QH = 24
    Kb = 32
    KHb = [40, 42]
    V0b = [44, 48]
    V1b = [52, 56]
    Oa, Ob = 64, 80
    S = [96, 128]
    vXr = [16, 17]; vWr = [18, 19, 20, 21]
    vXr2 = [22, 23]; vWr2 = [24, 25, 26, 27]
    vU = list(range(32, 48))
    F = [64, 32]
    AC = [96, 112, 128, 144]
    eK, eR, e0, e1, e2, e3, e4 = 160, 161, 162, 163, 164, 165, 166

    a.sec("compute")
    a("L_compute:")
    common()
    a(f"""
    s_sub_u32 s{sW_}, s{sWV}, 4
    s_lshr_b32 s{sJ}, s{sW_}, 2
    s_and_b32 s{sTP}, s{sW_}, 3
    s_load_dwordx2 s[44:45], s[0:1], 56          ; out
    s_mov_b32 s{SO+2}, {XBYTES}
    s_waitcnt lgkmcnt(0)
    s_mov_b64 s[{SO}:{SO+1}], s[44:45]
    """)
    a(f"""
    v_and_b32 v{vU[0]}, 31, v{vL}                ; tau
    v_lshrrev_b32 v{vU[1]}, 5, v{vL}             ; h
    v_and_b32 v{vU[9]}, 15, v{vL}                ; l&15
    v_lshrrev_b32 v{vU[10]}, 4, v{vL}            ; g
    s_lshl_b32 s{sT}, s{sTP}, 13
    v_lshlrev_b32 v{vU[2]}, 7, v{vU[9]}
    v_add_u32 v{vU[2]}, s{sT}, v{vU[2]}
    v_lshrrev_b32 v{vU[3]}, 1, v{vU[9]}
    v_xor_b32 v{vU[3]}, v{vU[3]}, v{vU[10]}
    v_lshl_add_u32 v{vXr[0]}, v{vU[3]}, 4, v{vU[2]}
    v_xor_b32 v{vXr[1]}, 64, v{vXr[0]}
    v_bfe_u32 v{vU[2]}, v{vL}, 2, 2              ; r
    v_lshl_add_u32 v{vU[3]}, v{vU[10]}, 3, v{vU[2]}
    v_lshlrev_b32 v{vU[3]}, 8, v{vU[3]}
    v_add_u32 v{vU[3]}, 32768, v{vU[3]}
    v_and_b32 v{vU[4]}, 3, v{vL}                 ; c
    v_lshlrev_b32 v{vU[4]}, 3, v{vU[4]}
    v_and_b32 v{vU[5]}, 16, v{vL}
    v_lshlrev_b32 v{vU[5]}, 1, v{vU[5]}          ; (g&1)*32
    v_add3_u32 v{vU[7]}, v{vU[3]}, v{vU[4]}, v{vU[5]}
    v_xor_b32 v{vWr[0]}, s{sJ}, v{vU[2]}
    v_lshl_add_u32 v{vWr[0]}, v{vWr[0]}, 6, v{vU[7]}
    v_xor_b32 v{vWr[1]}, 32, v{vWr[0]}
    s_mov_b32 s{sT}, 0x38102800
    s_cmp_eq_u32 s{sJ}, 1
    s_cselect_b32 s{sT}, s{sT}, 0x18100800
    v_lshrrev_b32 v{vU[6]}, v{vU[4]}, s{sT}
    v_and_b32 v{vU[6]}, 0xff, v{vU[6]}
    v_xor_b32 v{vU[6]}, v{vU[6]}, v{vU[5]}
    v_add_u32 v{vU[7]}, v{vU[3]}, v{vU[6]}
    s_add_u32 s{sT}, s{sJ}, 2
    v_xor_b32 v{vWr[2]}, s{sT}, v{vU[2]}
    v_lshl_add_u32 v{vWr[2]}, v{vWr[2]}, 6, v{vU[7]}
    v_xor_b32 v{vWr[3]}, 32, v{vWr[2]}
    """)
    for r0, r1 in zip(vXr + vWr, vXr2 + vWr2):
        a(f"v_add_u32 v{r1}, {2*G_SLOT}, v{r0}")
    for r in range(AC[0], AC[0] + 64):
        a(f"v_mov_b32 v{r}, 0")
    a(f"""
    s_lshl_b32 s{sT}, s{sJ}, 10
    s_add_u32 s{sT}, s{sT}, 512
    v_add_u32 v{vK}, s{sT}, v{vL16}
    v_lshlrev_b32 v{vKH}, 2, v{vL}
    s_lshl_b32 s{sT2}, s{sJ}, 8
    v_add_u32 v{vKH}, s{sT2}, v{vKH}
    v_mov_b32 v{vU[2]}, 4
    v_cmp_gt_u32 vcc, 19, v{vU[0]}
    v_mov_b32 v{vU[3]}, 19
    s_nop 0
    v_cndmask_b32 v{vU[2]}, v{vU[2]}, v{vU[0]}, vcc
    v_cmp_eq_u32 vcc, 4, v{vU[0]}
    v_mul_u32_u24 v{vU[4]}, {VH}, v{vU[1]}
    s_mul_i32 s{sT2}, s{sJ}, {2*VG}
    s_add_u32 s{sT2}, s{sT2}, 2560
    v_cndmask_b32 v{vU[2]}, v{vU[2]}, v{vU[3]}, vcc
    v_lshl_add_u32 v{vV}, v{vU[2]}, 4, v{vU[4]}
    v_add_u32 v{vV}, s{sT2}, v{vV}
    v_mov_b32 v{vIDX}, 0xdddddddd
    s_lshl_b32 s{sT}, s{sTG}, 3
    s_lshl_b32 s{sT2}, s{sTP}, 1
    s_add_u32 s{sT}, s{sT}, s{sT2}
    s_mul_i32 s{sA}, s{sT}, {OTILE}
    s_mul_i32 s{sT}, s{sP}, {OPAIR}
    s_add_u32 s{sA}, s{sA}, s{sT}
    s_add_u32 s{sA}, s{sA}, {O_OFF}
    s_lshl_b32 s{sT}, s{sJ}, 10
    s_add_u32 s{sOm}, s{sA}, s{sT}
    s_lshl_b32 s{sT}, s{sJ}, 7
    s_add_u32 s{sOh}, s{sA}, s{sT}
    s_mov_b32 s{sD3}, {(RING[1]-RING[0]) & 0xffffffff:#x}
    s_mov_b32 s{sD3+1}, {(RING[2]-RING[1]) & 0xffffffff:#x}
    s_mov_b32 s{sD3+2}, {(RING[0]-RING[2]) & 0xffffffff:#x}
    s_mov_b32 s{sC2}, {f32bits(CSCALE):#x}
    s_mov_b32 s{sC2+1}, {f32bits(CSCALE):#x}
    v_and_b32 v{vU[2]}, 3, v{vU[0]}
    v_and_b32 v{vU[3]}, 12, v{vU[0]}
    v_lshl_or_b32 v{vU[2]}, v{vU[3]}, 1, v{vU[2]}
    v_and_b32 v{vU[3]}, 16, v{vU[0]}
    v_lshrrev_b32 v{vU[3]}, 2, v{vU[3]}
    v_or_b32 v{vU[2]}, v{vU[2]}, v{vU[3]}        ; kappa
    s_lshl_b32 s{sT}, s{sJ}, 10
    s_mul_i32 s{sB}, s{sTP}, {TPAIR}
    s_add_u32 s{sT}, s{sT}, s{sB}
    s_add_u32 s{sT}, s{sT}, 512
    v_lshlrev_b32 v{eK}, 9, v{vU[1]}
    v_lshl_add_u32 v{eK}, v{vU[2]}, 4, v{eK}
    v_add_u32 v{eK}, s{sT}, v{eK}
    s_lshl_b32 s{sT}, s{sTP}, 8
    s_add_u32 s{sT}, s{sT}, {SCR}
    v_lshlrev_b32 v{eR}, 2, v{vU[0]}
    v_add_u32 v{eR}, s{sT}, v{eR}
    s_cmp_eq_u32 s{sJ}, 1
    s_cbranch_scc1 L_a1
    v_mul_u32_u24 v{vU[4]}, {VH}, v{vU[10]}
    s_add_u32 s{sT}, s{sB}, 2560
    v_add_u32 v{vU[4]}, s{sT}, v{vU[4]}
    v_mov_b32 v{vU[6]}, 19
    v_cmp_eq_u32 vcc, 4, v{vU[9]}
    v_add_u32 v{vU[3]}, 16, v{vU[9]}
    v_add_u32 v{vU[5]}, {2*VG // 16 - 2}, v{vU[9]}
    v_cndmask_b32 v{vU[6]}, v{vU[9]}, v{vU[6]}, vcc
    v_cmp_le_u32 vcc, 2, v{vU[9]}
    v_lshl_add_u32 v{e0}, v{vU[6]}, 4, v{vU[4]}
    v_mov_b32 v{vU[6]}, {2*VG // 16 + 19}
    v_cndmask_b32 v{vU[3]}, v{vU[3]}, v{vU[5]}, vcc
    v_cmp_eq_u32 vcc, 6, v{vU[9]}
    s_nop 1
    v_cndmask_b32 v{vU[3]}, v{vU[3]}, v{vU[6]}, vcc
    v_lshl_add_u32 v{e1}, v{vU[3]}, 4, v{vU[4]}
    s_branch L_a2
    L_a1:
    v_lshlrev_b32 v{e0}, 2, v{vU[2]}
    v_add_u32 v{e0}, s{sB}, v{e0}
    v_cmp_eq_u32 vcc, 1, v{vU[1]}
    v_add_u32 v{vU[5]}, 256, v{e0}
    v_add_u32 v{vU[6]}, 1024, v{eR}
    v_cndmask_b32 v{e0}, v{e0}, v{eR}, vcc
    v_cndmask_b32 v{e1}, v{vU[5]}, v{vU[6]}, vcc
    v_mov_b32 v{vU[5]}, 1.0
    v_mov_b32 v{vU[6]}, s{sC2}
    v_cndmask_b32 v{e2}, v{vU[5]}, v{vU[6]}, vcc
    v_lshrrev_b32 v{vU[3]}, 3, v{vU[2]}
    v_mul_u32_u24 v{vU[3]}, {VH}, v{vU[3]}
    v_and_b32 v{vU[5]}, 7, v{vU[2]}
    v_lshl_add_u32 v{e3}, v{vU[5]}, 1, v{vU[3]}
    s_add_u32 s{sT}, s{sB}, {2560 + 2*VG}
    v_add_u32 v{e3}, s{sT}, v{e3}
    L_a2:
    s_lshl_b32 s{sT}, s{sJ}, 10
    v_lshl_add_u32 v{e4}, v{vU[1]}, 7, v{eR}
    v_add_u32 v{e4}, s{sT}, v{e4}
    s_mov_b32 s{sMASK}, 0x7ffff
    s_mov_b32 s{sMASK+1}, 0x7ffff
    s_lshl_b32 s{sT}, s{sW_}, 2
    s_add_u32 s{sT}, s{sT}, {SYNC}
    v_mov_b32 v167, s{sT}
    """)
    a("s_waitcnt lgkmcnt(0)")

    def reads(n, ks, j):
        s = n % 3
        xr = vXr2 if s == 2 else vXr
        wr = vWr2 if s == 2 else vWr
        so = G_SLOT if s == 1 else 0
        b = F[ks]
        out = []
        for q in range(4):
            out.append(f"ds_read_b128 {vr(b+4*q,4)}, v{xr[ks]} offset:{so + 2048*q}")
            if q < 4 - j:
                out.append(f"ds_read_b64_tr_b16 {vr(b+16+4*q,2)}, v{wr[q]} offset:{so + ks*8192}")
                out.append(f"ds_read_b64_tr_b16 {vr(b+18+4*q,2)}, v{wr[q]} offset:{so + ks*8192 + 1024}")
        return out

    def mfmas(f, j):
        b = F[f]
        m = []
        for c in range(4 - j):
            for t in range(4):
                X, W, D = vr(b + 4 * t, 4), vr(b + 16 + 4 * c, 4), vr(AC[c] + 4 * t, 4)
                p, q = (X, W) if (j == 0 and c >= 2) else (W, X)
                m.append(f"v_mfma_f32_16x16x32_bf16 {D}, {p}, {q}, {D}")
        return m

    def mix(ms, rs, lead=0):
        rs = list(rs)
        for r in rs[:lead]:
            a(r)
        rs = rs[lead:]
        for i, m in enumerate(ms):
            a(m)
            k = -(-len(rs) // (len(ms) - i)) if GMIX == 2 else (1 if GMIX else 0)
            for r in rs[:k]:
                a(r)
            rs = rs[k:]
        for r in rs:
            a(r)

    if TLBW == 2:
        a(f"""
        s_cmp_eq_u32 s{sW_}, 7
        s_cbranch_scc0 L_tlb
        s_buffer_load_dword s3, s[{SWS}:{SWS+3}], s{sKVp}
        s_buffer_load_dword s3, s[{SWS}:{SWS+3}], s{sKVp} offset:{hex(8*CHUNK - 4)}
        s_mov_b32 s{sT}, {FLAG_OFF + 0x30000}
        s_buffer_load_dword s3, s[{SWS}:{SWS+3}], s{sT}
        s_buffer_load_dword s3, s[{SD}:{SD+3}], 0xfc
        L_tlb:
        """)
    stamp(a, 7, True, mode=9)
    a("s_barrier")
    stamp(a, 1, True)
    stamp(a, 1, True, mode=4)
    for r in reads(0, 0, 0):
        a(r)
    a(f"""
    s_mov_b32 s{sN}, 0
    s_cmp_eq_u32 s{sJ}, 1
    s_cbranch_scc1 L_g1
    """)
    for j in range(2):
        a(f"L_g{j}:")
        for n in range(3):
            a("s_waitcnt lgkmcnt(0)")
            mix(mfmas(0, j), reads(n, 1, j), 0 if GMIX else 99)
            a("s_waitcnt lgkmcnt(0)")
            if n == 2:
                a(f"""
                s_add_u32 s{sN}, s{sN}, 1
                s_cmp_eq_u32 s{sN}, 3
                s_cbranch_scc1 L_ge{j}
                """)
            a("s_barrier")
            mix(mfmas(1, j), reads(n + 1, 0, j), 0 if GMIX else 99)
        a(f"s_branch L_g{j}")
        a(f"L_ge{j}:")
        ms = mfmas(1, j)
        zs = [f"v_mov_b32 v{r}, 0" for r in range(Oa, Oa + 32)]
        for i, m in enumerate(ms):
            a(m)
            k = -(-len(zs) // (len(ms) - i))
            for z in zs[:k]:
                a(z)
            zs = zs[k:]
        stamp(a, 2)
        stamp(a, 2, mode=4)
        a(f"""
        s_mov_b32 s{sN}, 0
        s_mov_b32 s{sFB}, 0
        """)
        KP = [AC[0], AC[0] + 8]
        for A in KP:
            for i in range(4):
                a(f"v_cvt_pk_bf16_f32 v{A+i}, v{A+2*i}, v{A+2*i+1}")
        a(f"v_mov_b32 v{KHb[0]+1}, 0x3f803f80")
        for t, A in enumerate(KP):
            a(f"v_permlane16_swap_b32 v{A}, v{A+2}")
            a(f"v_permlane16_swap_b32 v{A+1}, v{A+3}")
            a(f"ds_write_b128 v{eK}, {vr(A,4)} offset:{TILE*t}")
        B0, B1 = AC[2], AC[2] + 8
        if j == 0:
            for cc in range(2):
                for t in range(2):
                    B = AC[2 + cc] + 8 * t
                    for i in range(4):
                        a(f"v_cvt_pk_bf16_f32 v{B+i}, v{B+2*i}, v{B+2*i+1}")
                    a(f"ds_write_b128 v{(e0, e1)[cc]}, {vr(B,4)} offset:{t*TILE}")
            a("s_branch L_ep")
        else:
            for B in (B0, B1):
                for i in range(4):
                    a(f"v_permlane16_swap_b32 v{B+i}, v{B+4+i}")
            a(f"""
            s_mov_b32 exec_lo, 0
            ds_write_b32 v{eR}, v{B0+4} offset:2048
            ds_write_b32 v{eR}, v{B1+4} offset:{2048+128}
            s_mov_b32 exec_lo, -1
            """)
            for t, B in enumerate((B0, B1)):
                for i in range(4):
                    a(f"v_mul_f32 v{B+i}, v{e2}, v{B+i}")
                for i in range(4):
                    a(f"v_cvt_pk_bf16_f32 v{B+16+i}, v{B+2*i}, v{B+2*i+1}")
                a(f"ds_write_b32 v{e0}, v{B+16} offset:{128*t}")
                a(f"ds_write_b32 v{e1}, v{B+17} offset:{128*t}")
            a("s_mov_b32 exec_hi, 0")
            for t, B in enumerate((B0, B1)):
                o = t * TILE + 14 * 16
                a(f"ds_write_b16 v{e3}, v{B+18} offset:{o}")
                a(f"ds_write_b16_d16_hi v{e3}, v{B+18} offset:{o+16}")
                a(f"ds_write_b16 v{e3}, v{B+19} offset:{o+32}")
                a(f"ds_write_b16_d16_hi v{e3}, v{B+19} offset:{o+48}")
            a("s_mov_b32 exec_hi, -1")
    def qk(dst, kb, q, acc=True):
        return f"v_mfma_f32_32x32x16_bf16 {vr(dst,16)}, {vr(kb,4)}, {vr(q,4)}, {vr(dst,16) if acc else 0}"

    def qkh(dst, khb, par):
        return f"v_mfma_f32_32x32x4_2b_bf16 {vr(dst,32)}, {vr(khb,2)}, {vr(QH,2)}, 0 cbsz:1 abid:{par}"

    def pv(o, vb, p):
        return f"v_smfmac_f32_32x32x32_bf16 {vr(o,16)}, {vr(vb,4)}, {vr(p,8)}, v{vIDX}"

    def vread(t, buf):
        if not VMASK:
            return f"""
            ds_read_b128 {vr(V0b[buf],4)}, v{vV} offset:{toff(t)}
            ds_read_b128 {vr(V1b[buf],4)}, v{vV} offset:{toff(t) + VG}
            """
        return f"""
        s_mov_b64 exec, s[{sMASK}:{sMASK+1}]
        ds_read_b128 {vr(V0b[buf],4)}, v{vV} offset:{toff(t)}
        ds_read_b128 {vr(V1b[buf],4)}, v{vV} offset:{toff(t) + VG}
        s_mov_b64 exec, -1
        """

    X, Y = S

    def prep():
        for A, Q in ((AC[1], Qa), (AC[1] + 8, Qb)):
            for i in range(4):
                a(f"v_pk_mul_f32 {vr(A+2*i,2)}, {vr(A+2*i,2)}, s[{sC2}:{sC2+1}]")
            for i in range(4):
                a(f"v_cvt_pk_bf16_f32 v{Q+i}, v{A+2*i}, v{A+2*i+1}")
        a(f"v_mov_b32 v{KHb[1]+1}, 0x3f803f80")
        for Q in (Qa, Qb):
            a(f"v_permlane16_swap_b32 v{Q}, v{Q+2}")
            a(f"v_permlane16_swap_b32 v{Q+1}, v{Q+3}")
        a(f"v_cmp_gt_u32 vcc, 32, v{vL}")
        for r in range(V0b[0], V1b[1] + 4):
            a(f"v_mov_b32 v{r}, 0")

    if EARLYB:
        a("s_waitcnt vmcnt(0) lgkmcnt(0)\ns_barrier")
        prep()
        a(qk(Y, AC[0], Qa, False)); a(qk(Y + 16, AC[0], Qb, False))
        a("s_branch L_ep2")
    a("L_ep:")
    prep()
    a("s_waitcnt vmcnt(0) lgkmcnt(0)")
    a(qk(Y, AC[0], Qa, False)); a(qk(Y + 16, AC[0], Qb, False))
    a("s_barrier")
    a("L_ep2:")
    stamp(a, 3, True)
    a(f"""
    ds_read_b32 v{vG[0]}, v{eR} offset:2048
    ds_read_b32 v{vG[1]}, v{eR} offset:{2048+128}
    ds_read_b32 v{KHb[0]}, v{vKH}
    ds_read_b32 v{QH}, v{e4}
    ds_read_b128 {vr(Kb,4)}, v{vK}
    """)
    a(vread(0, 0))
    a(f"""
    s_mov_b32 s{sT}, {f32bits(-math.log2(math.e)):#x}
    s_cmp_ge_u32 s{sP}, 16
    s_cselect_b32 s{sT}, {f32bits(math.log2(math.e)):#x}, s{sT}
    s_nop 0
    """)
    for t in range(2):
        b = Y + 16 * t
        a(f"v_max3_f32 v{vT[t]}, v{b}, v{b+1}, v{b+2}")
        for i in range(3, 9, 2):
            a(f"v_max3_f32 v{vT[t]}, v{vT[t]}, v{b+i}, v{b+i+1}")
    a(f"""
    v_cndmask_b32 v{vT[0]}, v{vT[1]}, v{vT[0]}, vcc
    v_lshrrev_b32 v{vT[0]}, 16, v{vT[0]}
    v_xor_b32 v{QH+1}, {(f32bits(-SHIFT) & 0xffff0000) | 0x8000:#x}, v{vT[0]}
    s_waitcnt lgkmcnt(3)
    v_mul_f32 v{vG[0]}, s{sT}, v{vG[0]}
    """)
    a(qkh(X, KHb[0], 0))
    a(f"""
    v_mul_f32 v{vG[1]}, s{sT}, v{vG[1]}
    v_exp_f32 v{vG[0]}, v{vG[0]}
    v_exp_f32 v{vG[1]}, v{vG[1]}
    """)
    for r in range(Y + 24, Y + 32):
        a(f"v_mov_b32 v{r}, 0")
    a(f"""
    v_add_f32 v{vG[0]}, 1.0, v{vG[0]}
    v_add_f32 v{vG[1]}, 1.0, v{vG[1]}
    v_rcp_f32 v{vG[0]}, v{vG[0]}
    v_rcp_f32 v{vG[1]}, v{vG[1]}
    s_waitcnt lgkmcnt(0)
    s_nop 1
    """)
    a(qk(X, Kb, Qa)); a(qk(X + 16, Kb, Qb))
    a(f"""
    v_lshrrev_b32 v{e3}, 5, v{vL}
    v_mul_u32_u24 v{e3}, {OTILE - 128}, v{e3}
    v_lshl_add_u32 v{e3}, v{vL}, 2, v{e3}
    """)

    def E(b, n=4):
        for r in range(b, b + n):
            a(f"v_exp_f32 v{r}, v{r}")

    stamp(a, 4)
    stamp(a, 3, mode=4)
    a("s_setprio 1")
    a("s_nop 6")
    a(".p2align 6")
    for _ in range(int(os.environ.get("PAD", "0"))):
        a("s_nop 0\ns_nop 0")
    a("L_loop:")
    loop0 = len(a.lines) - 1
    for i in range(8):
        X = S[i & 1]; Y = S[(i + 1) & 1]
        tn = (i + 1) & 7
        khb = KHb[(tn >> 1) & 1]
        bar = """
        s_cbranch_scc1 L_nb7
        s_barrier
        L_nb7:
        s_setprio 1
        """
        adds = f"""
        v_add_u32 v{vKH}, s{sDl}, v{vKH}
        v_add_u32 v{vK}, s{sDl}, v{vK}
        ds_read_b32 v{khb}, v{vKH}
        v_add_u32 v{vV}, s{sDl}, v{vV}
        """
        if i == 7 and BPOS == 0:
            a(bar); a(adds)
        if i == 7 and BPOS == 2:
            a(bar.replace("s_setprio 1", "").replace("s_cbranch", "s_setprio 1\ns_cbranch")); a(adds)
        E(X, 2)
        if i == 7 and BPOS == 1:
            a(bar)
        a(pv(Ob, V1b[(i + 1) & 1], Y + 24))
        if i == 7 and BPOS == 1:
            a(adds)
        if i == PRIOI:
            a("s_setprio 0")
        kread = f"ds_read_b128 {vr(Kb,4)}, v{vK} offset:{toff(tn)}"
        if i in (0, 2, 4):
            kread += f"\nds_read_b32 v{KHb[((i>>1)+1)&1]}, v{vKH} offset:{((i>>1)+1)*TPAIR}"
        vrd = vread(tn, (i + 1) & 1)
        a(vrd if VPOS == 1 else kread)
        E(X + 2, 4)
        if i == 7:
            a(f"s_waitcnt lgkmcnt({2 if VPOS == 1 else 1})")
        a(qkh(Y, khb, tn & 1))
        a(vrd if VPOS == 0 else kread if VPOS == 1 else "")
        E(X + 6, 8)
        a(pv(Oa, V0b[i & 1], X))
        if VPOS == 3:
            a("s_waitcnt lgkmcnt(0)")
        if VPOS >= 2:
            a(vrd)
        E(X + 14, 4)
        a(pv(Oa, V1b[i & 1], X + 8))
        if VPOS != 3:
            a(f"s_waitcnt lgkmcnt({2 if VPOS == 2 else 0})")
        if i == 1:
            a(f"s_mov_b32 s{sDl}, s{sD3}")
        if i == 3:
            a(f"s_mov_b32 s{sD3+1}, s{sD3+2}")
        if i == 7:
            a(f"s_add_u32 s{sN}, s{sN}, 1")
        E(X + 18, 4)
        a(qk(Y, Kb, Qa))
        if i == 1:
            a(f"s_mov_b32 s{sD3}, s{sD3+1}")
        if i == 2:
            a(f"v_mov_b32 v7, s{sN}")
        if i == 5:
            a(f"s_mov_b32 s{sD3+2}, s{sDl}")
        if i == 6:
            a(f"s_cmp_eq_u32 s{sN}, 7")
        if i == 7:
            a(f"s_cmp_lt_u32 s{sN}, 8")
        E(X + 22, 4)
        a(pv(Ob, V0b[i & 1], X + 16))
        if VPOS >= 2:
            a("s_waitcnt lgkmcnt(0)")
        E(X + 26, 3)
        a(qk(Y + 16, Kb, Qb))
        if i == 3:
            a("ds_write_b32 v167, v7")
        E(X + 29, 3)
    if ALIGN:
        a.lines[loop0:] = align8(a.lines[loop0:])
    a(f"""
    s_cbranch_scc1 L_loop
    s_nop 0
    """)
    stamp(a, 5)
    stamp(a, 1, mode=3)
    stamp(a, 4, mode=4)
    a(pv(Ob, V1b[1], S[1] + 24))
    a(f"""
    v_mov_b32 v{vT[5]}, {SYNC + 48}
    ds_read_b32 v160, v{vT[5]}
    L_fin:
    """)
    PK, PH = [32, 36], [44, 45]
    for t, O in enumerate((Oa, Ob)):
        l0, l1 = vT[2 * t], vT[2 * t + 1]
        a(f"v_mov_b32 v{l0}, v{O+10}")
        a(f"v_mov_b32 v{l1}, v{O+10}")
        if t == 0:
            a(f"v_maximum3_f32 v{vT[4]}, v{vG[0]}, v{vG[1]}, v{O+10}")
        else:
            a(f"v_maximum3_f32 v{vT[4]}, v{vT[4]}, v{O+10}, v{O+10}")
        a(f"v_maximum3_f32 v{vT[4]}, v{vT[4]}, |v{O}|, |v{O+1}|")
        a(f"v_maximum3_f32 v{vT[4]}, v{vT[4]}, |v{O+2}|, |v{O+3}|")
        a(f"v_permlane32_swap_b32 v{l0}, v{l1}")
        for i in (4, 6):
            a(f"v_maximum3_f32 v{vT[4]}, v{vT[4]}, |v{O+i}|, |v{O+i+1}|")
        a(f"v_rcp_f32 v{l1}, v{l0}")
        a(f"v_maximum3_f32 v{vT[4]}, v{vT[4]}, |v{O+8}|, |v{O+9}|")
        if t == 1:
            a(f"""
            v_min_f32 v{l0}, v{l0}, v{vT[0]}
            v_cmp_nge_f32 vcc, s{sT}, v{vT[4]}
            v_cmp_nle_f32 s[44:45], s{sT2}, v{l0}
            """)
        a(f"v_mul_f32 v{vT[6]}, v{l1}, v{vG[t]}")
        for i in range(5):
            a(f"v_pk_mul_f32 {vr(O+2*i,2)}, {vr(O+2*i,2)}, {vr(vT[6],2)} op_sel_hi:[1,0]")
        for i in range(4):
            a(f"v_cvt_pk_bf16_f32 v{PK[t]+i}, v{O+2*i}, v{O+2*i+1}")
        a(f"v_cvt_pk_bf16_f32 v{PH[t]}, v{O+8}, v{O+9}")
        if t == 0:
            a(f"""
            s_mov_b32 s{sT}, {f32bits(2.0**90):#x}
            s_mov_b32 s{sT2}, {f32bits(2.0**(-24-SHIFT)):#x}
            s_add_u32 s{sB}, s{sOm}, {OTILE}
            """)
    a(f"""
    s_or_b64 vcc, vcc, s[44:45]
    s_cbranch_vccnz L_exact
    L_store:
    buffer_store_dwordx4 {vr(PK[0],4)}, v{vL16}, s[{SWS}:{SWS+3}], s{sOm} offen sc1
    v_permlane32_swap_b32 v{PH[0]}, v{PH[1]}
    buffer_store_dwordx4 {vr(PK[1],4)}, v{vL16}, s[{SWS}:{SWS+3}], s{sB} offen sc1
    s_setprio 0
    buffer_store_dword v{PH[0]}, v{e3}, s[{SWS}:{SWS+3}], s{sOh} offen offset:2048 sc1
    v_mov_b32 v7, 8
    ds_write_b32 v167, v7
    s_waitcnt lgkmcnt(1)
    """)
    unit_decode(160)
    stamp(a, 6)
    stamp(a, 2, mode=3)

    a.sec("exact")
    X = S[0]
    a(f"""
    L_exact:
    s_cmp_eq_u32 s{sFB}, 0
    s_cbranch_scc1 L_exact1
    """)
    for r in list(range(32, 40)) + [44, 45]:
        a(f"v_min_u32 v{r}, -2, v{r}")
    a(f"""
    s_nop 0
    s_branch L_store
    L_exact1:
    s_mov_b32 s{sFB}, 1
    v_mov_b32 v{QH+1}, 0
    v_and_b32 v{vKH}, 31, v{vL}
    v_mov_b32 v{vT[2]}, 4
    v_cmp_gt_u32 vcc, 19, v{vKH}
    v_mov_b32 v{vT[3]}, 19
    v_lshrrev_b32 v{vT[4]}, 5, v{vL}
    v_cndmask_b32 v{vT[2]}, v{vT[2]}, v{vKH}, vcc
    v_cmp_eq_u32 vcc, 4, v{vKH}
    v_mul_u32_u24 v{vT[4]}, {VH}, v{vT[4]}
    v_lshlrev_b32 v{vKH}, 2, v{vKH}
    v_cndmask_b32 v{vT[2]}, v{vT[2]}, v{vT[3]}, vcc
    v_lshl_add_u32 v{vV}, v{vT[2]}, 4, v{vT[4]}
    v_mov_b32 v{vT[0]}, 0xff800000
    v_mov_b32 v{vT[1]}, 0xff800000
    """)
    for r in range(Oa, Oa + 32):
        a(f"v_mov_b32 v{r}, 0")
    for ps in range(2):
        a(f"""
        s_mov_b32 s{sN}, 0
        L_x{ps}:
        s_lshr_b32 s{sT}, s{sN}, 1
        s_mul_i32 s{sT}, s{sT}, {TPAIR}
        s_add_u32 s{sT}, s{sT}, s{sKVp}
        s_and_b32 s{sT2}, s{sN}, 1
        s_mul_i32 s{sB}, s{sT2}, {TILE}
        s_add_u32 s{sB}, s{sB}, s{sT}                ; + tile
        s_lshl_b32 s{sA}, s{sJ}, 10
        s_add_u32 s{sA}, s{sA}, s{sB}
        buffer_load_dwordx4 {vr(Kb,4)}, v{vL16}, s[{SWS}:{SWS+3}], s{sA} offen offset:512 sc1
        s_lshl_b32 s{sA}, s{sT2}, 7
        s_add_u32 s{sA}, s{sA}, s{sT}
        s_lshl_b32 s{sT2}, s{sJ}, 8
        s_add_u32 s{sA}, s{sA}, s{sT2}
        buffer_load_dword v{KHb[0]}, v{vKH}, s[{SWS}:{SWS+3}], s{sA} offen sc1
        """)
        if ps == 1:
            a(f"""
            s_mul_i32 s{sA}, s{sJ}, {2*VG}
            s_add_u32 s{sA}, s{sA}, s{sB}
            s_add_u32 s{sA}, s{sA}, 2560
            buffer_load_dwordx4 {vr(V0b[0],4)}, v{vV}, s[{SWS}:{SWS+3}], s{sA} offen sc1
            buffer_load_dwordx4 {vr(V1b[0],4)}, v{vV}, s[{SWS}:{SWS+3}], s{sA} offen offset:{VG} sc1
            """)
        a("s_waitcnt vmcnt(0)")
        a(qkh(X, KHb[0], 0))
        a("s_nop 15\ns_nop 3")
        a(qk(X, Kb, Qa)); a(qk(X + 16, Kb, Qb))
        a("s_nop 15")
        if ps == 0:
            for t in range(2):
                for i in range(0, 16, 2):
                    a(f"v_max3_f32 v{vT[t]}, v{vT[t]}, v{X+16*t+i}, v{X+16*t+i+1}")
        else:
            for i in range(16):
                a(f"v_sub_f32 v{X+i}, v{X+i}, v{vT[0]}")
                a(f"v_sub_f32 v{X+16+i}, v{X+16+i}, v{vT[1]}")
            E(X, 32)
            a("s_nop 1")
            a(pv(Oa, V0b[0], X)); a(pv(Oa, V1b[0], X + 8))
            a(pv(Ob, V0b[0], X + 16)); a(pv(Ob, V1b[0], X + 24))
        a(f"""
        s_add_u32 s{sN}, s{sN}, 1
        s_cmp_lt_u32 s{sN}, 64
        s_cbranch_scc1 L_x{ps}
        """)
        if ps == 0:
            a(f"""
            v_mov_b32 v{vT[2]}, v{vT[0]}
            v_mov_b32 v{vT[3]}, v{vT[1]}
            s_nop 1
            v_permlane32_swap_b32 v{vT[0]}, v{vT[2]}
            v_permlane32_swap_b32 v{vT[1]}, v{vT[3]}
            s_nop 1
            v_max_f32 v{vT[0]}, v{vT[0]}, v{vT[2]}
            v_max_f32 v{vT[1]}, v{vT[1]}, v{vT[3]}
            """)
    a("""
    s_nop 15
    s_branch L_fin
    """)

    vXE, vXO, vWS = 3, 4, 5
    vGt = [6, 7, 8]
    vGA, vF, vFo = 9, 10, 11
    vT = [12, 13, 14, 15, 16, 17, 18, 19]
    vWO = 20
    CP = 32

    def dma_x(n):
        slot = (n % 3) * G_SLOT
        s = f"s_add_u32 m0, s{sM0x}, {slot}\ns_add_u32 s{sT}, s{sXb}, {n*128}\n"
        for i in range(4):
            s += f"buffer_load_dwordx4 v{vXE}, s[{SX}:{SX+3}], s{sT} offen lds\n"
            s += f"buffer_load_dwordx4 v{vXO}, s[{SX}:{SX+3}], s{sT} offen offset:1024 lds\n"
            if i < 3:
                s += f"s_addk_i32 m0, 0x800\ns_addk_i32 s{sT}, {16*1152}\n"
        return s

    def dma_w(n):
        slot = (n % 3) * G_SLOT
        if n >= int(os.environ.get("WP0", "99")):
            s = f"s_add_u32 m0, s{sM0w}, {slot + 32768}\ns_and_b32 s{sT}, s{sP}, 7\ns_mul_i32 s{sT}, s{sT}, 147456\ns_add_u32 s{sT}, s{sT}, s{sM0w}\ns_add_u32 s{sT}, s{sT}, {n*16384}\nv_lshlrev_b32 v22, 4, v{vL}\n"
            for i in range(4):
                s += f"buffer_load_dwordx4 v22, s[{SW}:{SW+3}], s{sT} offen offset:{1024*i} lds\n"
            return s
        s = f"s_add_u32 m0, s{sM0w}, {slot + 32768}\ns_add_u32 s{sT}, s{sWb}, {n*64*3456}\n"
        s += f"s_mov_b64 exec, s[{sMASK}:{sMASK+1}]\n"
        for i in range(4):
            if i == 2:
                s += f"s_mov_b64 exec, s[{sC2}:{sC2+1}]\n"
            s += f"buffer_load_dwordx4 v{vWS if i < 2 else 21}, s[{SW}:{SW+3}], s{sT} offen offset:{1024*i} lds\n"
            if i < 3:
                s += f"s_addk_i32 s{sT}, {4*3456 - 1024}\n"
        s += "s_mov_b64 exec, -1\n"
        return s

    def gate_write(n):
        slot = (n % 3) * G_SLOT
        lab = a.label("L_gw")
        reg = vGt[n // 4]
        if slot < 65536:
            w = f"ds_write_b16 v{vGA}, v{reg} offset:{slot + 8}"
        else:
            w = f"v_add_u32 v{vT[7]}, {slot}, v{vGA}\nds_write_b16 v{vT[7]}, v{reg} offset:8"
        return f"""
        s_cmp_eq_u32 s{sLI}, {n % 4}
        s_cbranch_scc0 {lab}
        {w}
        {lab}:
        """

    def wo_load(q0, q1):
        assert q1 <= 72 or q0 >= 72
        srd_, base = (SWA, 0) if q1 <= 72 else (SWB, 72)
        lab = a.label("L_wo")
        a(f"""
        s_add_u32 s{sA}, s{sLI}, {q0}
        {lab}:
        s_lshl_b32 m0, s{sA}, 10
        s_sub_u32 s{sT}, s{sA}, {base}
        s_mul_i32 s{sT}, s{sT}, {8*1152}
        buffer_load_dwordx4 v{vWO}, s[{srd_}:{srd_+3}], s{sT} offen lds
        s_add_u32 s{sA}, s{sA}, 4
        s_cmp_lt_u32 s{sA}, {q1}
        s_cbranch_scc1 {lab}
        """)

    def pf8(tag, xs, ws):
        a(f"""
        s_lshr_b32 s{sT}, s{sP}, 3
        s_xor_b32 s{sT}, s{sT}, s{sP}
        s_bitcmp1_b32 s{sT}, 0
        s_cbranch_scc1 L_pd{tag}
        s_lshr_b32 s{sT}, s{sP}, 1
        s_lshl_b32 s{sT}, s{sT}, 3
        s_add_u32 s{sT}, s{sT}, s{sTG}               ; 0..127
        s_cmp_eq_u32 s{sLI}, 0
        s_cbranch_scc0 L_pw{tag}
        v_and_b32 v{vT[5]}, 3, v{vL}
        v_min_u32 v{vT[5]}, {xs[1] - xs[0] - 1}, v{vT[5]}
        v_lshrrev_b32 v{vT[4]}, 2, v{vL}
        v_mul_u32_u24 v{vT[4]}, 1152, v{vT[4]}
        v_lshl_add_u32 v{vT[5]}, v{vT[5]}, 7, v{vT[4]}
        s_mul_i32 s{sT}, s{sT}, {16*1152}
        buffer_load_dword v{vT[6]}, v{vT[5]}, s[{SX}:{SX+3}], s{sT} offen offset:{128*xs[0]}
        s_branch L_pe{tag}
        L_pw{tag}:
        s_and_b32 s{sT}, s{sT}, 63
        """)
        for q, (c0, c1) in enumerate(ws):
            a(f"""
            s_cmp_eq_u32 s{sLI}, {q+1}
            s_cbranch_scc0 L_pn{tag}{q}
            v_min_u32 v{vT[5]}, {27*(c1-c0) - 1}, v{vL}
            v_lshlrev_b32 v{vT[5]}, 7, v{vT[5]}
            s_mul_i32 s{sT}, s{sT}, {(c1-c0)*3456}
            s_add_u32 s{sT}, s{sT}, {c0*64*3456}
            buffer_load_dword v{vT[6]}, v{vT[5]}, s[{SW}:{SW+3}], s{sT} offen
            s_branch L_pe{tag}
            L_pn{tag}{q}:
            """)
        a(f"""
        L_pd{tag}:
        s_mov_b64 exec, 1
        buffer_load_ushort v{vT[6]}, v{vT[0]}, s[{SG}:{SG+3}], 0 offen
        s_mov_b64 exec, -1
        L_pe{tag}:
        """)

    a.sec("loader")
    a("s_setprio 3")
    stamp(a, 1, mode=9)
    a(dma_x(0))
    stamp(a, 2, mode=9)
    stamp(a, 3, mode=9)
    a(dma_w(0))
    stamp(a, 4, mode=9)
    common()
    a(f"""
    v_lshlrev_b32 v{vT[0]}, 1, v{vL}
    s_lshl_b32 s{sT}, s{sLI}, 7
    buffer_load_ushort v{vGt[0]}, v{vT[0]}, s[{SG}:{SG+3}], s{sT} offen
    buffer_load_ushort v{vGt[1]}, v{vT[0]}, s[{SG}:{SG+3}], s{sT} offen offset:512
    buffer_load_ushort v{vGt[2]}, v{vT[0]}, s[{SG}:{SG+3}], s{sT} offen offset:1024
    """)
    a(f"""
    v_and_b32 v{vT[2]}, 3, v{vL}
    v_xor_b32 v{vT[2]}, 3, v{vT[2]}
    v_lshlrev_b32 v{vT[2]}, 6, v{vT[2]}
    v_lshl_add_u32 v{vGA}, v{vL}, 8, v{vT[2]}
    v_add_u32 v{vGA}, {32768 + 48}, v{vGA}
    v_and_b32 v{vT[2]}, 8, v{vL}
    v_lshlrev_b32 v{vT[2]}, 2, v{vT[2]}
    v_xor_b32 v{vGA}, v{vGA}, v{vT[2]}
    """)
    if DPF == 8:
        pf8(0, (2, 6), [(2, 4), (4, 6)])
        a(dma_x(1)); a(dma_w(1))
    elif DPF == 9:
        pf8(0, (2, 5), [(2, 4), (4, 5)])
        a(dma_x(1)); a(dma_w(1))
    elif DPF == 7:
        a(f"""
        s_cmp_eq_u32 s{sLI}, 0
        s_cbranch_scc0 L_e1
        v_and_b32 v{vT[5]}, 7, v{vL}
        v_lshrrev_b32 v{vT[4]}, 3, v{vL}
        v_mul_u32_u24 v{vT[4]}, 1152, v{vT[4]}
        v_lshl_add_u32 v{vT[5]}, v{vT[5]}, 7, v{vT[4]}
        s_mul_i32 s{sT}, s2, {8*1152}
        buffer_load_dword v{vT[6]}, v{vT[5]}, s[{SX}:{SX+3}], s{sT} offen offset:128
        s_branch L_e4
        L_e1:
        s_cmp_eq_u32 s{sLI}, 3
        s_cbranch_scc1 L_e2
        v_lshlrev_b32 v{vT[5]}, 7, v{vL}
        s_and_b32 s{sT}, s{sP}, 15
        s_lshl_b32 s{sT}, s{sT}, 3
        s_add_u32 s{sT}, s{sT}, s{sTG}
        s_lshl_b32 s{sT}, s{sT}, 1
        s_add_u32 s{sT}, s{sT}, s{sLI}
        s_mul_i32 s{sT}, s{sT}, {2*3456}
        s_add_u32 s{sT}, s{sT}, {62*3456}
        s_mov_b32 exec_hi, 0x3fffff
        buffer_load_dword v{vT[6]}, v{vT[5]}, s[{SW}:{SW+3}], s{sT} offen
        s_branch L_e4
        L_e2:
        v_lshlrev_b32 v{vT[5]}, 20, v{vL}
        s_lshl_b32 s{sT}, s2, 7
        s_mov_b64 exec, 0xffff
        buffer_load_dword v{vT[6]}, v{vT[5]}, s[{SWS}:{SWS+3}], s{sT} offen sc1
        L_e4:
        s_mov_b64 exec, -1
        """)
        pre = int(os.environ.get("PRE", "0"))
        if pre:
            a(dma_x(1))
    else:
        a(f"""
        s_cmp_eq_u32 s{sLI}, 0
        s_cbranch_scc0 L_e1
        v_and_b32 v{vT[5]}, 1, v{vL}
        v_bfe_u32 v{vT[4]}, v{vL}, 1, 3
        v_mul_u32_u24 v{vT[4]}, 1152, v{vT[4]}
        v_lshl_add_u32 v{vT[5]}, v{vT[5]}, 7, v{vT[4]}
        s_mul_i32 s{sT}, s2, {8*1152}
        s_mov_b64 exec, 0xffff
        buffer_load_dword v{vT[6]}, v{vT[5]}, s[{SX}:{SX+3}], s{sT} offen offset:256
        s_branch L_e4
        L_e1:
        s_cmp_eq_u32 s{sLI}, 1
        s_cbranch_scc0 L_e2
        v_lshlrev_b32 v{vT[5]}, 7, v{vL}
        s_and_b32 s{sT}, s{sP}, 15
        s_lshl_b32 s{sT}, s{sT}, 3
        s_add_u32 s{sT}, s{sT}, s{sTG}
        s_mul_i32 s{sT}, s{sT}, 3456
        s_add_u32 s{sT}, s{sT}, {128*3456}
        s_mov_b64 exec, 0x7ffffff
        buffer_load_dword v{vT[6]}, v{vT[5]}, s[{SW}:{SW+3}], s{sT} offen
        s_branch L_e4
        L_e2:
        s_mov_b64 exec, 1
        buffer_load_ushort v{vT[6]}, v{vT[0]}, s[{SG}:{SG+3}], 0 offen
        L_e4:
        s_mov_b64 exec, -1
        """)
        a(dma_x(1)); a(dma_w(1))
    stamp(a, 5, mode=9)
    a(f"""
    v_lshlrev_b32 v{vT[2]}, 2, v{vL}
    v_add_u32 v{vT[2]}, {SYNC}, v{vT[2]}
    v_mov_b32 v{CP}, 0
    v_mov_b32 v{CP+1}, 0
    v_mov_b32 v{CP+2}, 0
    v_mov_b32 v{CP+3}, 0
    ds_write_b32 v{vT[2]}, v{CP}
    s_min_u32 s{sT}, s{sLI}, 2
    s_mul_i32 s{sT}, s{sT}, {G_SLOT}
    v_add_u32 v{vT[2]}, s{sT}, v{vGA}
    s_cmp_eq_u32 s{sLI}, 3
    s_cbranch_scc1 L_nz
    ds_write_b128 v{vT[2]}, {vr(CP,4)}
    L_nz:
    s_waitcnt vmcnt({13 if DPF != 7 else 9 if pre else 1})
    """)
    for n in range(3):
        a(gate_write(n))
    stamp(a, 6, mode=9)
    a("s_waitcnt lgkmcnt(0)")
    stamp(a, 7, mode=9)
    a("s_barrier")
    stamp(a, 8, mode=9)
    stamp(a, 1)
    if DPF == 7:
        if not pre:
            a(dma_x(1))
        a(dma_w(1))
    a(dma_x(2)); a(dma_w(2))
    if DPF == 8:
        pf8(1, (6, 9), [(6, 8), (8, 9)])
    if DPF == 9:
        pf8(1, (5, 9), [(5, 7), (7, 9)])
    if DPF == 4:
        a(f"""
        s_cmp_eq_u32 s{sLI}, 0
        s_cbranch_scc0 L_lp1
        v_and_b32 v{vT[5]}, 7, v{vL}
        v_min_u32 v{vT[5]}, 4, v{vT[5]}
        v_lshrrev_b32 v{vT[4]}, 3, v{vL}
        v_mul_u32_u24 v{vT[4]}, 1152, v{vT[4]}
        v_lshl_add_u32 v{vT[5]}, v{vT[5]}, 7, v{vT[4]}
        s_mul_i32 s{sT}, s2, {8*1152}
        buffer_load_dword v{vT[6]}, v{vT[5]}, s[{SX}:{SX+3}], s{sT} offen offset:512
        s_branch L_lp2
        L_lp1:
        v_min_u32 v{vT[5]}, 23, v{vL}
        v_lshlrev_b32 v{vT[5]}, 7, v{vT[5]}
        s_and_b32 s{sT}, s{sP}, 15
        s_lshl_b32 s{sT}, s{sT}, 3
        s_add_u32 s{sT}, s{sT}, s{sTG}
        s_mul_i32 s{sT}, s{sT}, 3
        s_add_u32 s{sT}, s{sT}, s{sLI}
        s_mul_i32 s{sT}, s{sT}, {320*3456 // 384}
        s_add_u32 s{sT}, s{sT}, {256*3456 - 320*3456 // 384}
        buffer_load_dword v{vT[6]}, v{vT[5]}, s[{SW}:{SW+3}], s{sT} offen
        L_lp2:
        """)
    vN = 24
    a(f"""
    s_lshl_b32 s{sT}, s{sP}, 12
    s_add_u32 s{sT}, s{sT}, {FLAG_OFF}
    v_lshlrev_b32 v{vN}, 7, v{vL}
    v_add_u32 v{vN}, s{sT}, v{vN}
    v_and_b32 v{vN+1}, 7, v{vL}
    v_lshlrev_b32 v{vN+1}, 12, v{vN+1}
    s_lshl_b32 s{sT}, s{sP}, 7
    s_add_u32 s{sT}, s{sT}, {OFLAG_OFF}
    v_cmp_gt_u32 vcc, 32, v{vL}
    v_add_u32 v{vN+1}, s{sT}, v{vN+1}
    s_cmp_eq_u32 s{sLI}, 3
    v_cndmask_b32 v{vN}, v{vN+1}, v{vN}, vcc
    s_cselect_b32 exec_lo, -1, 1
    s_cselect_b32 exec_hi, 0xff, 0
    buffer_load_dword v{vN+1}, v{vN}, s[{SWS}:{SWS+3}], 0 offen sc1
    s_mov_b64 exec, -1
    """)
    for n in range(8):
        extra = (2 if DPF in (4, 8, 9) else 1) if n < 2 else 1 if n >= 6 else 0
        a(f"s_waitcnt vmcnt({(12 if n + 2 <= 8 else 0) + extra}) lgkmcnt(0)")
        if STAMPS == 7:
            a(f"s_memtime s[90:91]\ns_waitcnt lgkmcnt(0)\ns_barrier\ns_memtime s[94:95]\ns_waitcnt lgkmcnt(0)\ns_sub_u32 s90, s94, s90\ns_add_u32 s{74+2*n}, s90, s72")
        elif STAMPS == 8:
            a(f"s_barrier\ns_memtime s[{74+2*n}:{75+2*n}]")
        else:
            a("s_barrier")
        if n + 3 <= 8:
            a(gate_write(n + 3))
            if THR >= 0:
                a(f"""
                s_lshr_b32 s{sT}, s{sP}, 3
                s_xor_b32 s{sT}, s{sT}, s{sP}
                s_bitcmp1_b32 s{sT}, 0
                s_cbranch_scc1 L_th{n}
                s_waitcnt vmcnt({THR + (2 if n == 0 else 0)})
                L_th{n}:
                """)
            a(dma_x(n + 3)); a(dma_w(n + 3))
        if n == 5:
            a(f"""
            s_brev_b32 s{sA}, 1
            s_movk_i32 s{sB}, 0x400
            s_cmp_eq_u32 s{sLI}, 3
            s_cbranch_scc0 L_nn1
            s_mov_b32 s44, -1
            s_movk_i32 s45, 0xff
            """)
            for b in range(6):
                a(f"""
                v_and_b32 v{vN}, {1 << b}, v{vN+1}
                v_cmp_ne_u32 vcc, 0, v{vN}
                s_nop 0
                s_and_b64 s[46:47], s[44:45], vcc
                s_andn2_b64 s[44:45], s[44:45], vcc
                s_bcnt1_i32_b64 s{sT}, s[46:47]
                s_bcnt1_i32_b64 s{sT2}, s[44:45]
                s_cmp_lt_u32 s{sT}, s{sT2}
                s_cselect_b64 s[44:45], s[46:47], s[44:45]
                s_cselect_b32 s{sT}, {1 << b}, 0
                s_or_b32 s{sA}, s{sA}, s{sT}
                """)
            a(f"""
            s_lshl_b32 s{sB}, s{sP}, 2
            L_nn1:
            v_mov_b32 v{vN}, s{sA}
            v_mov_b32 v{vN+1}, 0
            v_mov_b32 v{vN+2}, s{sA}
            v_mov_b32 v{vN+3}, s{sB}
            s_mov_b64 exec, 1
            buffer_atomic_cmpswap v[{vN}:{vN+1}], v{vN+3}, s[{SD}:{SD+3}], 0 offen sc0 sc1
            s_mov_b64 exec, -1
            """)
        if n == 6:
            lab = a.label("L_cr")
            a(f"""
            s_cmp_ge_u32 s{sLI}, 2
            s_cbranch_scc1 {lab}
            s_cmp_eq_u32 s{sLI}, 0
            s_cselect_b32 s{sT}, 0x3f803f80, 0
            s_cselect_b32 s{sT2}, {14*16}, 0
            s_add_u32 s{sT2}, s{sT2}, {2560 + 4*16}
            v_and_b32 v{vT[0]}, 7, v{vL}
            v_mul_u32_u24 v{vT[0]}, {VH}, v{vT[0]}
            v_lshrrev_b32 v{vT[2]}, 3, v{vL}
            v_mul_u32_u24 v{vT[2]}, {TILE}, v{vT[2]}
            v_lshrrev_b32 v{vT[3]}, 4, v{vL}
            v_lshl_add_u32 v{vT[2]}, v{vT[3]}, 9, v{vT[2]}
            v_add3_u32 v{vT[0]}, v{vT[0]}, v{vT[2]}, s{sT2}
            v_mov_b32 v{CP}, s{sT}
            v_mov_b32 v{CP+1}, s{sT}
            v_mov_b32 v{CP+2}, s{sT}
            v_mov_b32 v{CP+3}, s{sT}
            ds_write_b128 v{vT[0]}, {vr(CP,4)}
            {lab}:
            """)
    a(f"""
    s_load_dwordx2 s[{SWA}:{SWA+1}], s[0:1], 16          ; A_wo
    s_load_dwordx2 s[{SWB}:{SWB+1}], s[0:1], 40          ; B_wo
    s_load_dwordx2 s[{SO}:{SO+1}], s[0:1], 56            ; out
    s_mov_b32 s{SWA+2}, {WO_BYTES}
    s_mov_b32 s{SWB+2}, {WO_BYTES}
    s_mov_b32 s{SO+2}, {XBYTES}
    s_mov_b32 s{sU}, 0
    s_mov_b32 s{sD3}, {(RING[1]-RING[0]) & 0xffffffff:#x}
    s_mov_b32 s{sD3+1}, {(RING[2]-RING[1]) & 0xffffffff:#x}
    s_mov_b32 s{sD3+2}, {(RING[0]-RING[2]) & 0xffffffff:#x}
    s_mul_i32 s{sT}, s{sLI}, {TPAIR}
    v_add_u32 v{vT[0]}, s{sT}, v{vL16}
    s_add_u32 s{sKVp}, s{sKVp}, s{sT}
    s_mov_b32 s{sM0x}, s{sT}
    s_mul_i32 s{sA}, s{sTG}, {CHUNK}
    s_add_u32 s{sA}, s{sA}, s{sKVp}
    s_lshl_b32 s{sT}, s{sLI}, 10
    s_lshl_b32 s{sB}, s{sP}, 12
    s_add_u32 s{sB}, s{sB}, s{sT}
    s_add_u32 s{sWb}, s{sB}, {FLAG_OFF}
    v_and_b32 v{vFo}, 7, v{vL}
    v_lshlrev_b32 v{vFo}, 7, v{vFo}
    v_mov_b32 v{vT[1]}, {SYNC + 52}
    s_lshl_b32 s{sT}, s{sTG}, 7
    v_mov_b32 v{vT[2]}, s{sT}
    v_lshrrev_b32 v{vT[3]}, 3, v{vL}
    v_mul_u32_u24 v{vT[3]}, 1152, v{vT[3]}
    v_bfe_u32 v{vT[4]}, v{vL}, 4, 1
    v_lshlrev_b32 v{vT[4]}, 2, v{vT[4]}
    v_and_b32 v{vT[5]}, 7, v{vL}
    v_xor_b32 v{vT[5]}, v{vT[5]}, v{vT[4]}
    v_lshl_add_u32 v{vWO}, v{vT[5]}, 4, v{vT[3]}
    s_waitcnt lgkmcnt(0)
    s_barrier
    """)
    stamp(a, 3, True)
    for i in range(10):
        a(f"ds_read_b128 {vr(CP+4*i,4)}, v{vT[0]} offset:{1024*i}")
    for i in range(10):
        if i == 9:
            a("s_mov_b32 exec_hi, 0")
        if i in (4, 8):
            a(f"s_add_u32 s{sA}, s{sA}, 4096")
        a(f"s_waitcnt lgkmcnt({9-i})")
        a(f"buffer_store_dwordx4 {vr(CP+4*i,4)}, v{vL16}, s[{SWS}:{SWS+3}], s{sA} offen offset:{1024*(i&3)} sc1")
    a(f"""
    s_mov_b64 exec, 1
    s_cmp_eq_u32 s{sLI}, 3
    s_cbranch_scc0 L_nn2
    s_waitcnt vmcnt(10)
    v_cmp_eq_u32 vcc, 0, v{vN}
    s_nop 1
    v_cndmask_b32 v{vN}, v{vN}, v{vN+2}, vcc
    ds_write_b32 v{vT[1]}, v{vN}
    L_nn2:
    ds_read_b32 v{vF}, v{vT[1]}
    s_waitcnt lgkmcnt(0)
    v_cmp_eq_u32 vcc, 0, v{vF}
    s_cbranch_vccnz L_nn2
    v_readfirstlane_b32 s{sNON}, v{vF}
    s_waitcnt vmcnt(0)
    buffer_store_dword v{vF}, v{vT[2]}, s[{SWS}:{SWS+3}], s{sWb} offen sc1
    s_mov_b64 exec, -1
    s_mov_b32 s{sRDY}, 0
    s_mov_b32 s{sN}, 0
    s_lshl_b32 s{sXb}, 1, s{sTG}
    L_ll:
    s_add_u32 s{sM0x}, s{sM0x}, s{sD3}
    s_mov_b32 s{sT}, s{sD3}
    s_mov_b32 s{sD3}, s{sD3+1}
    s_mov_b32 s{sD3+1}, s{sD3+2}
    s_mov_b32 s{sD3+2}, s{sT}
    L_poll:
    s_andn2_b32 s{sT}, s{sRDY}, s{sXb}
    s_cbranch_scc1 L_rdy
    buffer_load_dword v{vF}, v{vFo}, s[{SWS}:{SWS+3}], s{sWb} offen sc1
    s_waitcnt vmcnt(0)
    v_cmp_eq_u32 vcc, s{sNON}, v{vF}
    s_sub_u32 s{sSPIN}, s{sSPIN}, 1
    s_nop 0
    s_cselect_b32 s{sRDY}, -1, vcc_lo
    s_and_b32 s{sRDY}, s{sRDY}, 0xff
    s_branch L_poll
    L_rdy:
    s_ff1_i32_b32 s{sC}, s{sT}
    s_bitset1_b32 s{sXb}, s{sC}
    s_mul_i32 s{sA}, s{sC}, {CHUNK}
    s_add_u32 s{sA}, s{sA}, s{sKVp}
    """)
    for i in range(10):
        if i % 4 == 0:
            a(f"s_add_u32 m0, s{sM0x}, {1024*i}")
            a(f"s_add_u32 s{sT}, s{sA}, {1024*i}")
        if i == 9:
            a("s_mov_b32 exec_hi, 0")
        if True:
            a(f"buffer_load_dwordx4 v{vL16}, s[{SWS}:{SWS+3}], s{sT} offen offset:{1024*(i&3)} sc1 lds")
    a(f"""
    s_mov_b32 exec_hi, -1
    L_d9:
    s_cmp_eq_u32 s{sN}, 1
    s_cbranch_scc0 L_ncl
    s_lshl_b32 s{sT}, s{sTG}, 3
    s_lshl_b32 s{sT2}, s{sLI}, 1
    s_add_u32 s{sT}, s{sT}, s{sT2}
    s_mul_i32 s{sA}, s{sT}, {OTILE}
    s_mul_i32 s{sT}, s{sP}, {OPAIR}
    s_add_u32 s{sA}, s{sA}, s{sT}
    s_add_u32 s{sA}, s{sA}, {O_OFF}
    s_add_u32 s{sB}, s{sA}, {OTILE}
    v_mov_b32 v{CP}, -1
    v_mov_b32 v{CP+1}, -1
    v_mov_b32 v{CP+2}, -1
    v_mov_b32 v{CP+3}, -1
    buffer_store_dwordx4 {vr(CP,4)}, v{vL16}, s[{SWS}:{SWS+3}], s{sA} offen sc1
    buffer_store_dwordx4 {vr(CP,4)}, v{vL16}, s[{SWS}:{SWS+3}], s{sA} offen offset:1024 sc1
    buffer_store_dwordx4 {vr(CP,4)}, v{vL16}, s[{SWS}:{SWS+3}], s{sB} offen sc1
    buffer_store_dwordx4 {vr(CP,4)}, v{vL16}, s[{SWS}:{SWS+3}], s{sB} offen offset:1024 sc1
    s_mov_b64 exec, 0xffff
    buffer_store_dwordx4 {vr(CP,4)}, v{vL16}, s[{SWS}:{SWS+3}], s{sA} offen offset:2048 sc1
    buffer_store_dwordx4 {vr(CP,4)}, v{vL16}, s[{SWS}:{SWS+3}], s{sB} offen offset:2048 sc1
    s_mov_b64 exec, -1
    L_ncl:
    s_cmp_eq_u32 s{sLI}, 0
    s_cbranch_scc0 L_nfl
    s_cmp_eq_u32 s{sN}, 2
    s_cbranch_scc0 L_n2
    s_lshl_b32 s{sT}, s{sTG}, 12
    s_lshl_b32 s{sT2}, s{sP}, 7
    s_add_u32 s{sT}, s{sT}, s{sT2}
    s_add_u32 s{sT}, s{sT}, {OFLAG_OFF}
    v_mov_b32 v{vT[3]}, 0
    v_mov_b32 v{vF}, s{sNON}
    s_mov_b64 exec, 1
    buffer_store_dword v{vF}, v{vT[3]}, s[{SWS}:{SWS+3}], s{sT} offen sc1
    s_mov_b64 exec, -1
    L_n2:
    s_cmp_eq_u32 s{sN}, {CLAIM}
    s_cbranch_scc0 L_nfl
    s_and_b32 s{sA}, s2, 7
    v_and_b32 v{vT[5]}, 7, v{vL}
    v_lshlrev_b32 v{vT[4]}, 2, v{vT[5]}
    L_cl:
    s_lshl_b32 s{sT}, s{sA}, 2
    v_mov_b32 v{vT[3]}, s{sT}
    v_mov_b32 v{vF}, 1
    s_mov_b64 exec, 1
    buffer_atomic_add v{vF}, v{vT[3]}, s[{SD}:{SD+3}], 0 offen offset:128 sc0 sc1
    s_mov_b64 exec, -1
    s_waitcnt vmcnt(0)
    v_readfirstlane_b32 s{sB}, v{vF}
    s_nop 3
    s_cmp_lt_u32 s{sB}, 27
    s_cbranch_scc1 L_cl2
    """)
    if STEAL:
        a(f"""
        buffer_load_dword v{vF}, v{vT[4]}, s[{SD}:{SD+3}], 0 offen offset:128 sc1
        s_waitcnt vmcnt(0)
        v_lshl_or_b32 v{vF}, v{vF}, 3, v{vT[5]}
        s_nop 0
        v_readlane_b32 s{sA}, v{vF}, 0
        """)
        for q in range(1, 8):
            a(f"v_readlane_b32 s{sT}, v{vF}, {q}\ns_nop 3\ns_min_u32 s{sA}, s{sA}, s{sT}")
        a(f"""
        s_lshr_b32 s{sT}, s{sA}, 3
        s_and_b32 s{sA}, s{sA}, 7
        s_sub_u32 s{sSPIN}, s{sSPIN}, 1
        s_cselect_b32 s{sT}, 27, s{sT}
        s_cmp_lt_u32 s{sT}, 27
        s_cbranch_scc1 L_cl
        s_mov_b32 s{sSPIN}, {SPIN_LIMIT}
        """)
    a(f"""
    s_movk_i32 s{sB}, 0xff
    L_cl2:
    s_lshl_b32 s{sA}, s{sA}, 8
    s_or_b32 s{sA}, s{sA}, s{sB}
    v_mov_b32 v{vF}, s{sA}
    v_mov_b32 v{vT[3]}, {SYNC + 48}
    ds_write_b32 v{vT[3]}, v{vF}
    s_waitcnt lgkmcnt(0)
    L_nfl:
    s_cmp_eq_u32 s{sN}, {CLAIM + 1}
    s_cbranch_scc0 L_nw3
    v_mov_b32 v{vT[3]}, {SYNC + 48}
    ds_read_b32 v{vF}, v{vT[3]}
    s_waitcnt lgkmcnt(0)
    """)
    unit_decode(vF)
    a(f"""
    s_cmp_ge_u32 s{sU}, 27
    s_cbranch_scc1 L_on1
    s_lshl_b32 s{sT}, s{sCG}, 7
    v_add_u32 v{vWO}, s{sT}, v{vWO}
    """)
    wo_load(38, 42)
    wo_load(80, 121)
    a(f"""
    L_nw3:
    s_cmp_eq_u32 s{sN}, 6
    s_cbranch_scc0 L_on1
    """)
    if CPF2:
        a(f"""
        s_getpc_b64 s[{sA}:{sA+1}]
        L_pc2:
        v_lshlrev_b32 v{vT[3]}, 7, v{vL}
        v_add_u32 v{vT[3]}, L_fin - L_pc2 - 64, v{vT[3]}
        v_min_u32 v{vT[3]}, L_exact - L_pc2, v{vT[3]}
        global_load_dword v{vT[4]}, v{vT[3]}, s[{sA}:{sA+1}]
        """)
    a(f"""
    s_cmp_ge_u32 s{sU}, 27
    s_cbranch_scc1 L_on1
    v_mul_u32_u24 v{vT[3]}, 1152, v{vL}
    s_lshl_b32 s{sT}, s{sCG}, 7
    s_mul_i32 s{sT2}, s{sLI}, {48*1152}
    s_add_u32 s{sT2}, s{sT2}, s{sT}
    s_add_u32 s{sT2}, s{sT2}, {392*1152}
    buffer_load_dword v{vT[4]}, v{vT[3]}, s[{SWB}:{SWB+3}], s{sT2} offen
    """)
    if TLBW:
        a(f"""
        s_mul_i32 s{sT}, s{sTG2}, {256*1152}
        v_lshlrev_b32 v{vT[3]}, 2, v{vT[3]}
        buffer_load_dword v{vT[4]}, v{vT[3]}, s[{SO}:{SO+3}], s{sT} offen
        """)
    a(f"""
    v_and_b32 v{vT[0]}, 31, v{vL}
    v_lshlrev_b32 v{vT[3]}, 7, v{vT[0]}
    v_lshlrev_b32 v{vT[0]}, 2, v{vT[0]}
    s_lshl_b32 s{sB}, s{sTG2}, 12
    s_add_u32 s{sB}, s{sB}, {OFLAG_OFF}
    L_on0:
    buffer_load_dword v{vF}, v{vT[0]}, s[{SD}:{SD+3}], 0 offen sc1
    buffer_load_dword v{vT[4]}, v{vT[3]}, s[{SWS}:{SWS+3}], s{sB} offen sc1
    s_waitcnt vmcnt(0)
    v_cmp_le_i32 vcc, 0, v{vF}
    v_cmp_ne_u32 s[44:45], v{vF}, v{vT[4]}
    s_sub_u32 s{sSPIN}, s{sSPIN}, 1
    s_cbranch_scc1 L_on1
    s_or_b64 vcc, vcc, s[44:45]
    s_cbranch_vccz L_on1
    s_sleep 8
    s_branch L_on0
    L_on1:
    s_waitcnt vmcnt(0)
    """)
    if STAMPS == 1:
        a(f"s_cmp_eq_u32 s{sN}, 0\ns_cbranch_scc0 L_st4")
        stamp(a, 4)
        a("L_st4:")
    if STAMPS == 6:
        a("s_barrier\ns_memtime s[88:89]\ns_waitcnt lgkmcnt(0)")
        for q in range(7):
            a(f"s_cmp_eq_u32 s{sN}, {q}\ns_cselect_b32 s{74+2*q}, s88, s{74+2*q}")
    elif STAMPS == 5:
        a("s_memtime s[88:89]\ns_waitcnt lgkmcnt(0)\ns_barrier\ns_memtime s[90:91]\ns_waitcnt lgkmcnt(0)\ns_sub_u32 s88, s90, s88\ns_add_u32 s88, s88, s72")
        for q in range(7):
            a(f"s_cmp_eq_u32 s{sN}, {q}\ns_cselect_b32 s{74+2*q}, s88, s{74+2*q}")
    else:
        a("s_barrier")
    a(f"""
    s_add_u32 s{sN}, s{sN}, 1
    s_cmp_lt_u32 s{sN}, 7
    s_cbranch_scc1 L_ll
    s_mov_b32 s{sSPIN}, {SPIN_LIMIT}
    s_cmp_ge_u32 s{sU}, 27
    s_cbranch_scc1 L_end
    """)
    wo_load(0, 38)
    wo_load(42, 72)
    wo_load(72, 80)
    a(f"""
    v_and_b32 v12, 7, v{vL}
    v_lshlrev_b32 v12, 2, v12
    v_add_u32 v12, {SYNC}, v12
    L_pg:
    s_sleep 2
    ds_read_b32 v13, v12
    s_waitcnt lgkmcnt(0)
    v_cmp_gt_u32 vcc, 7, v13
    s_cbranch_vccnz L_pg
    """)
    wo_load(121, 144)
    a(f"""
    s_lshl_b32 s{sT}, s{sLI}, 2
    s_add_u32 s{sT}, s{sT}, {SYNC + 32}
    v_mov_b32 v12, s{sT}
    v_mov_b32 v13, 8
    s_waitcnt vmcnt(0)
    ds_write_b32 v12, v13
    s_setprio 0
    s_branch L_tail
    """)
    a.sec("tail")

    vOH = 5
    vWm = [3, 4]; vWh = [8, 9]
    vT = [10, 11, 12, 13, 14, 6]
    vPw, vPr, vOut, vPr2, vDw, vDr = 163, 164, 165, 166, 167, 7
    WS_ = [16, 32]
    OF = 56
    ACC = [128, 144]
    PSTR = 1024 + 32 if ROWOUT else 1024
    DEPTH = int(os.environ.get("DEPTH", "2"))
    TPRIO = int(os.environ.get("TPRIO", "0"))

    def omain(i, j):
        return OF + 8 * i + 4 * j
    OHI = OF + 64

    def issue(i):
        a(f"""
        s_add_u32 s{sT}, s{sFl}, {i*OPAIR}
        buffer_load_dwordx4 {vr(omain(i,0),4)}, v{vL16}, s[{SWS}:{SWS+3}], s{sT} offen sc1
        buffer_load_dwordx4 {vr(omain(i,1),4)}, v{vL16}, s[{SWS}:{SWS+3}], s{sT} offen offset:1024 sc1
        buffer_load_dword v{OHI+i}, v{vOH}, s[{SWS}:{SWS+3}], s{sT} offen offset:2048 sc1
        """)

    a(f"""
    L_tail:
    s_cmp_ge_u32 s{sU}, 27
    s_cbranch_scc1 L_end
    s_cmp_ge_u32 s{sT0}, 8
    s_cbranch_scc1 L_end
    v_lshlrev_b32 v{vOH}, 2, v{vL}
    s_mov_b32 s{sI}, 0
    v_min_u32 v{vT[2]}, 11, v{vL}
    """)
    if LEARLY:
        a(f"""
        s_cmp_lt_u32 s{sWV}, 4
        s_cselect_b32 s{sT}, 8, 0
        v_max_u32 v{vT[2]}, s{sT}, v{vT[2]}
        """)
    a(f"""
    v_lshlrev_b32 v{vT[2]}, 2, v{vT[2]}
    v_add_u32 v{vT[2]}, {SYNC}, v{vT[2]}
    L_ws1:
    ds_read_b32 v{vT[3]}, v{vT[2]}
    s_waitcnt lgkmcnt(0)
    v_cmp_gt_u32 vcc, 8, v{vT[3]}
    s_cbranch_vccz L_go
    s_sleep 1
    s_branch L_ws1
    L_go:
    """)
    stamp(a, 3, mode=3)
    if TPRIO:
        a("s_setprio 3")
    for i in range(DEPTH):
        issue(i)
    a(f"""
    v_and_b32 v{vT[0]}, 31, v{vL}                ; tau
    v_lshrrev_b32 v{vT[1]}, 5, v{vL}             ; h
    v_bfe_u32 v{vT[2]}, v{vL}, 2, 2              ; r
    v_and_b32 v{vT[3]}, 3, v{vL}                 ; c
    v_bfe_u32 v{vT[4]}, v{vL}, 4, 1              ; sub
    v_lshlrev_b32 v{vT[3]}, 3, v{vT[3]}
    v_lshl_add_u32 v{vT[3]}, v{vT[4]}, 5, v{vT[3]}
    s_mul_i32 s{sT}, s{sKQ}, {288*128}
    v_add_u32 v{vT[3]}, s{sT}, v{vT[3]}
    v_lshrrev_b32 v{vT[4]}, 1, v{vT[2]}          ; r>>1
    v_lshl_add_u32 v{vT[5]}, v{vT[1]}, 2, v{vT[2]}
    v_lshl_add_u32 v{vT[5]}, v{vT[5]}, 7, v{vT[3]}
    v_lshl_add_u32 v{vWm[0]}, v{vT[4]}, 6, v{vT[5]}
    v_xor_b32 v{vWm[1]}, 64, v{vWm[0]}
    v_lshl_add_u32 v{vT[5]}, v{vT[4]}, 1, v{vT[1]}
    v_mul_u32_u24 v{vT[5]}, 18, v{vT[5]}
    v_and_b32 v{vT[2]}, 1, v{vT[2]}
    v_add3_u32 v{vT[5]}, v{vT[5]}, v{vT[2]}, 16
    v_lshl_add_u32 v{vT[5]}, v{vT[5]}, 7, v{vT[3]}
    v_lshl_add_u32 v{vWh[0]}, v{vT[1]}, 6, v{vT[5]}
    v_xor_b32 v{vWh[1]}, 64, v{vWh[0]}
    s_mul_i32 s{sT}, s{sTT}, {8*PSTR}
    s_mul_i32 s{sT2}, s{sKQ}, {288*128}
    s_add_u32 s{sA}, s{sT}, s{sT2}
    v_add_u32 v{vPw}, s{sA}, v{vL16}
    """)
    if ROWOUT:
        a(f"""
        s_lshl_b32 s{sT2}, s{sKQ}, 7
        s_add_u32 s{sA}, s{sT}, s{sT2}
        v_and_b32 v{vT[2]}, 7, v{vL}
        v_lshrrev_b32 v{vT[3]}, 3, v{vL}
        v_mul_u32_u24 v{vPr}, {PSTR}, v{vT[2]}
        v_lshl_add_u32 v{vPr}, v{vT[3]}, 4, v{vPr}
        v_add_u32 v{vPr}, s{sA}, v{vPr}
        v_mul_u32_u24 v{vOut}, 1152, v{vT[3]}
        v_lshl_add_u32 v{vOut}, v{vT[2]}, 4, v{vOut}
        """)
    else:
        a(f"""
        s_lshl_b32 s{sT2}, s{sKQ}, 11
        s_add_u32 s{sA}, s{sT}, s{sT2}
        v_add_u32 v{vPr}, s{sA}, v{vL16}
        v_mul_u32_u24 v{vOut}, 1152, v{vT[0]}
        v_lshl_add_u32 v{vOut}, v{vT[1]}, 4, v{vOut}
        """)
    a(f"""
    v_add_u32 v{vPr2}, {2*288*128}, v{vPr}
    s_lshl_b32 s{sT}, s{sWV}, 2
    s_add_u32 s{sT}, s{sT}, {SYNC + 64}
    v_mov_b32 v{vDw}, s{sT}
    s_sub_u32 s{sT}, s{sT0}, s{sTT}
    s_cmp_eq_u32 s{sT}, 6
    s_cselect_b32 s{sT}, 1, 2
    v_min_u32 v{vDr}, s{sT}, v{vL}
    s_mul_i32 s{sT}, s{sKQ}, 12
    s_add_u32 s{sT}, s{sT}, {SYNC + 64}
    v_lshlrev_b32 v{vDr}, 2, v{vDr}
    v_add_u32 v{vDr}, s{sT}, v{vDr}
    s_lshl_b32 s{sT}, s{sTG2}, 8
    s_lshl_b32 s{sT2}, s{sT0}, 5
    s_add_u32 s{sT}, s{sT}, s{sT2}
    s_mul_i32 s{sOm}, s{sT}, 1152
    s_lshl_b32 s{sT}, s{sCG}, 7
    s_add_u32 s{sOm}, s{sOm}, s{sT}
    s_mul_i32 s{sT}, s{sKQ}, {8*1152 if ROWOUT else 32}
    s_add_u32 s{sOm}, s{sOm}, s{sT}
    """)
    for r in range(ACC[0], ACC[0] + 32):
        a(f"v_mov_b32 v{r}, 0")
    stamp(a, 7)
    stamp(a, 4, mode=3)

    def wreads(blk, st):
        for f in range(2):
            b = WS_[st] + 8 * f
            m = 2 * blk + f
            for ct in range(2):
                if m < 16:
                    ad = vWm[ct ^ (m & 1)]
                    o0 = m * 18 * 128; o1 = o0 + 8 * 128
                else:
                    ad = vWh[ct]
                    o0 = (m - 16) * 8 * 18 * 128; o1 = o0 + 4 * 18 * 128
                a(f"ds_read_b64_tr_b16 {vr(b+4*ct,2)}, v{ad} offset:{o0}")
                a(f"ds_read_b64_tr_b16 {vr(b+4*ct+2,2)}, v{ad} offset:{o1}")

    def verify(i, skip):
        o0, o1 = omain(i, 0), omain(i, 1)
        a(f"""
        v_max3_u32 v{vT[2]}, v{o0}, v{o0+1}, v{o0+2}
        v_max3_u32 v{vT[3]}, v{o0+3}, v{o1}, v{o1+1}
        v_max3_u32 v{vT[2]}, v{vT[2]}, v{o1+2}, v{o1+3}
        v_max3_u32 v{vT[2]}, v{vT[2]}, v{vT[3]}, v{OHI+i}
        v_cmp_eq_u32 vcc, -1, v{vT[2]}
        s_cbranch_vccnz {skip}
        s_bitset1_b32 s{sI}, {i}
        """)

    def mm(st, o0, o1):
        for f, o in ((0, o0), (1, o1)):
            for ct in range(2):
                a(f"v_mfma_f32_32x32x16_bf16 {vr(ACC[ct],16)}, {vr(WS_[st]+8*f+4*ct,4)}, {vr(o,4)}, {vr(ACC[ct],16)}")

    wreads(0, 0)
    for i in range(8):
        a(f"s_waitcnt vmcnt({3*min(DEPTH-1, 7-i)}) lgkmcnt(0)")
        wreads(i + 1, (i + 1) & 1)
        verify(i, f"L_s{i}")
        mm(i & 1, omain(i, 0), omain(i, 1))
        a(f"L_s{i}:")
        if TPRIO and i in (0, 2, 4):
            a(f"s_setprio {2 - i // 2}")
        if i + DEPTH < 8:
            issue(i + DEPTH)
    a(f"""
    L_chk:
    s_cmp_eq_u32 s{sI}, 0xff
    s_cbranch_scc0 L_round
    L_hi:
    v_mov_b32 v{vT[2]}, 1
    s_waitcnt lgkmcnt(0)
    ds_write_b32 v{vDw}, v{vT[2]}
    """)
    mm(0, OHI, OHI + 4)
    stamp(a, 8)
    stamp(a, 7, mode=3)
    a(f"""
    L_qs:
    ds_read_b32 v{vT[3]}, v{vDr}
    s_waitcnt lgkmcnt(0)
    v_cmp_eq_u32 vcc, 0, v{vT[3]}
    s_cbranch_vccnz L_qs
    s_nop 6
    """)
    for i in range(8):
        a(f"ds_write_b128 v{vPw}, {vr(ACC[0]+4*i,4)} offset:{PSTR*i}")
    a("s_waitcnt lgkmcnt(0)")
    a("s_barrier                                    ; BT4")
    stamp(a, 8, True, mode=3)
    for src in range(4):
        for g in range(2):
            a(f"ds_read_b128 {vr(OF+8*src+4*g,4)}, v{vPr if src < 2 else vPr2} offset:{(src&1)*288*128 + g*(512 if ROWOUT else 1024)}")
    a("s_waitcnt lgkmcnt(4)")
    for q in range(8):
        a(f"v_add_f32 v{OF+q}, v{OF+q}, v{OF+8+q}")
    a("s_waitcnt lgkmcnt(0)")
    for q in range(8):
        a(f"v_add_f32 v{OF+16+q}, v{OF+16+q}, v{OF+24+q}")
    for q in range(8):
        a(f"v_add_f32 v{OF+q}, v{OF+q}, v{OF+16+q}")
    for i in range(4):
        a(f"v_cvt_pk_bf16_f32 v{WS_[0]+i}, v{OF+2*i}, v{OF+2*i+1}")
    if not ROWOUT:
        a(f"""
        s_nop 1
        v_permlane32_swap_b32 v{WS_[0]}, v{WS_[0]+2}
        v_permlane32_swap_b32 v{WS_[0]+1}, v{WS_[0]+3}
        """)
    a(f"""
    buffer_store_dwordx4 {vr(WS_[0],4)}, v{vOut}, s[{SO}:{SO+3}], s{sOm} offen {os.environ.get('OUTF', '')}
    """)
    stamp(a, 9, mode=3)
    a("s_branch L_end")
    a(f"""
    L_round:
    s_sub_u32 s{sSPIN}, s{sSPIN}, 1
    s_cbranch_scc1 L_hi
    {"s_sleep " + os.environ["TSLEEP"] if "TSLEEP" in os.environ else ""}
    s_not_b32 s{sBt}, s{sI}
    """)
    if int(os.environ.get("HINT", "0")):
        a(f"""
        v_and_b32 v{vT[2]}, 7, v{vL}
        v_mul_u32_u24 v{vT[2]}, {OPAIR}, v{vT[2]}
        v_bfe_u32 v{vT[3]}, v{vL}, 3, 1
        v_lshl_add_u32 v{vT[2]}, v{vT[3]}, 7, v{vT[2]}
        s_mov_b64 exec, 0xffff
        buffer_load_dword v{vT[3]}, v{vT[2]}, s[{SWS}:{SWS+3}], s{sFl} offen offset:2048 sc1
        s_waitcnt vmcnt(0)
        v_cmp_eq_u32 vcc, -1, v{vT[3]}
        s_mov_b64 exec, -1
        s_nop 0
        s_lshr_b32 s{sT}, vcc_lo, 8
        s_or_b32 s{sT}, s{sT}, vcc_lo
        s_andn2_b32 s{sBt}, s{sBt}, s{sT}
        s_and_b32 s{sBt}, s{sBt}, 0xff
        s_cbranch_scc0 L_round
        """)
    stamp(a, 5, mode=3)
    for i in range(8):
        a(f"s_bitcmp1_b32 s{sBt}, {i}\ns_cbranch_scc0 L_ni{i}")
        issue(i)
        a(f"L_ni{i}:")
    for i in range(8):
        a(f"s_bitcmp1_b32 s{sBt}, {i}\ns_cbranch_scc0 L_nc{i}")
        wreads(i, 1)
        a("s_waitcnt vmcnt(0)")
        verify(i, f"L_nc{i}")
        a("s_waitcnt lgkmcnt(0)")
        mm(1, omain(i, 0), omain(i, 1))
        a(f"L_nc{i}:")
    a("s_branch L_chk")
    a.sec("end")
    a("L_end:")
    if DIAG >= 0:
        a(f"""
        s_cmp_eq_u32 s{sWV}, 9
        s_cbranch_scc0 L_done
        s_cmp_lt_u32 s2, {os.environ.get("DIAGWG", "256")}
        s_cbranch_scc0 L_done
        s_waitcnt vmcnt(0) lgkmcnt(0)
        s_memrealtime s[82:83]
        s_waitcnt lgkmcnt(0)
        s_mov_b32 s{sT}, 0
        """)
        if DIAG > 0:
            a(f"""
            s_sub_u32 s{sT}, s{72+2*DIAG}, s96
            s_lshl_b32 s{sT}, s{sT}, 2
            s_cmp_lt_u32 s{sWV}, 4
            s_cselect_b32 s{sT}, 0, s{sT}
            """)
        a(f"""
        s_add_u32 s{sT}, s{sT}, 10000
        L_dg:
        s_sleep 8
        s_memrealtime s[98:99]
        s_waitcnt lgkmcnt(0)
        s_sub_u32 s{sT2}, s98, s96
        s_cmp_lt_u32 s{sT2}, s{sT}
        s_cbranch_scc1 L_dg
        """)
    elif STAMPS:
        a(f"""
        s_waitcnt vmcnt(0) lgkmcnt(0)
        s_memtime s[92:93]
        s_memrealtime s[98:99]
        s_waitcnt lgkmcnt(0)
        s_mov_b64 exec, 1
        s_lshl_b32 s{sT}, s2, 4
        s_add_u32 s{sT}, s{sT}, s{sWV}
        s_lshl_b32 s{sT}, s{sT}, 6
        s_add_u32 s{sT}, s{sT}, {STAMP_OFF}
        v_mov_b32 v0, 0
        """)
        for n in range(14):
            a(f"v_mov_b32 v1, s{72+2*n}")
            a(f"buffer_store_dword v1, v0, s[{SWS}:{SWS+3}], s{sT} offen offset:{4*n}")
            a("s_nop 0")
    a("""
    L_done:
    s_endpgm
    """)
    return name, NV


DOC = '''; ---------------------------------------------------------------------------------------------
; ---------------------------------------------------------------------------------------------
'''


def main():
    out = sys.argv[1] if len(sys.argv) > 1 else f"cdna_kernels/{NAME}.s"
    a = Asm()
    k, nv = gen(a)
    hdr = open(f"cdna_kernels/{NAME}.s.ref").read().split("\n")
    hdr = [l for l in hdr if l.startswith(";") and "@launch" not in l]
    txt = "\n".join(hdr) + "\n"
    txt += f"; @launch grid=(256,1,1) block=(768,1,1) lds={LDS_BYTES}\n"
    txt += DOC
    txt += '.amdgcn_target "amdgcn-amd-amdhsa--gfx950"\n.text\n'
    txt += a.text()
    txt += f""".section .rodata,"a"
.p2align 6
.amdhsa_kernel {k}
  .amdhsa_next_free_vgpr {nv}
  .amdhsa_next_free_sgpr {102 if STAMPS else 72}
  .amdhsa_accum_offset {(nv + 3) // 4 * 4}
  .amdhsa_group_segment_fixed_size 0
  .amdhsa_kernarg_size 80
  .amdhsa_user_sgpr_count 2
  .amdhsa_user_sgpr_kernarg_segment_ptr 1
  .amdhsa_system_sgpr_workgroup_id_x 1
.end_amdhsa_kernel
"""
    open(out, "w").write(txt)


if __name__ == "__main__":
    main()
```

```python
import math, os, struct, sys

NAME = "gated_mix__mha_block__mha_block__prompt"

VH = 320
VG = 2 * VH
TILE = 2048 + 4 * VG
TPAIR = 512 + 2 * TILE
CHUNK = 4 * TPAIR


def toff(t):
    return (t >> 1) * TPAIR + (t & 1) * TILE
KV_OFF = 0
FLAG_OFF = 0x0A00000
OFLAG_OFF = 0x0A20000
O_OFF = 0x0B00000
OPAIR = 2304
OTILE = 32 * OPAIR
WS_USED = 0x1000000
XBYTES = 2048 * 576 * 2
WQKV_BYTES = 576 * 1728 * 2
WO_BYTES = 576 * 576 * 2
CSCALE = (18 ** -0.5) * math.log2(math.e)

STAMPS = int(os.environ.get("STAMPS", "0"))
STAMP_OFF = 0x1000000
if STAMPS:
    WS_USED = 0x1100000
ALIGN = int(os.environ.get("ALIGN", "1"))
STEAL = int(os.environ.get("STEAL", "1"))
TLBW = int(os.environ.get("TLBW", "2"))
DIAG = int(os.environ.get("DIAG", "-1"))
PRIOI = int(os.environ.get("PRIOI", "6"))
VMASK = int(os.environ.get("VMASK", "1"))
VPOS = int(os.environ.get("VPOS", "3"))
CLAIM = int(os.environ.get("CLAIM", "4"))
LEARLY = int(os.environ.get("LEARLY", "0"))
GMIX = int(os.environ.get("GMIX", "0"))
SHIFT = float(os.environ.get("SHIFT", "42"))
CPF2 = int(os.environ.get("CPF2", "0"))
EARLYB = int(os.environ.get("EARLYB", "1"))
BPOS = int(os.environ.get("BPOS", "1"))
THR = int(os.environ.get("THR", "-1"))
ROWOUT = int(os.environ.get("ROWOUT", "1"))
HI4 = int(os.environ.get("HI4", "0"))
DYN = int(os.environ.get("DYN", "0"))
DSPEC = int(os.environ.get("DSPEC", "0"))
ABORT = int(os.environ.get("ABORT", "0"))
ATOM = int(os.environ.get("ATOM", "0"))
NORD = int(os.environ.get("NORD", "1"))
INPL = int(os.environ.get("INPL", "0"))
CPF = int(os.environ.get("CPF", "1"))
DPF = int(os.environ.get("DPF", "4"))

G_SLOT = 49152
LDS_BYTES = 163840
SCR = CHUNK
SYNC = LDS_BYTES - 1024
RING = [0, SYNC - CHUNK, CHUNK + 4096]
SPIN_LIMIT = 1 << 19


WMASK = ~((1 << 15) | (1 << 27) | (1 << 39) | (1 << 51)) & ((1 << 64) - 1)


def f32bits(x):
    return struct.unpack("<I", struct.pack("<f", x))[0]


class Asm:
    def __init__(self):
        self.secs = {"entry": []}
        self.lines = self.secs["entry"]
        self.nlab = 0

    def sec(self, name):
        self.lines = self.secs.setdefault(name, [])

    def __call__(self, s):
        for ln in s.strip("\n").split("\n"):
            ln = ln.strip()
            if not ln:
                continue
            if ln.endswith(":") or ln.startswith("."):
                self.lines.append(ln)
            else:
                self.lines.append("    " + ln)

    def label(self, base="L"):
        self.nlab += 1
        return f"{base}_{self.nlab}"

    def text(self):
        order = ["entry", "loader", "compute", "tail", "exact", "end"]
        assert sorted(order) == sorted(self.secs)
        return "\n".join("\n".join(self.secs[k]) for k in order) + "\n"


def isize(ln):
    t = ln.split(";")[0].strip()
    if not t or t.endswith(":"):
        return 0
    op = t.split()[0]
    if op.startswith(("v_mfma", "v_smfmac", "ds_", "buffer_")) or op.endswith("_e64"):
        return 8
    assert op in ("v_exp_f32", "v_add_u32", "v_mov_b32") or op.startswith("s_"), t
    assert "0x" not in t, t
    return 4


def align8(lines):
    out, off = [], 0
    for ln in lines:
        n = isize(ln)
        if n == 8 and off % 8:
            o = off
            for k in range(len(out) - 1, -1, -1):
                m = isize(out[k])
                if m == 8:
                    k = -1
                    break
                o -= m
                if m == 4 and o % 8 == 0 and out[k].split()[0] == "v_exp_f32":
                    out[k] = out[k].replace("v_exp_f32", "v_exp_f32_e64")
                    break
            else:
                k = -1
            if k != -1:
                off += 4
        out.append(ln)
        off += n
    return out


def vr(b, n):
    return f"v[{b}:{b+n-1}]"


def stamp(a, n, wait=False, mode=1):
    if STAMPS == mode:
        a(f"{'s_memtime' if mode in (1, 9) else 's_memrealtime'} s[{72+2*n}:{73+2*n}]")
        if wait:
            a("s_waitcnt lgkmcnt(0)")


def gen(a):
    name = NAME + "_kernel"
    a(f"""
.globl {name}
.p2align 8
.type {name},@function
{name}:
""")
    SX, SW, SWS, SG, SD = 4, 8, 12, 16, 52
    SWA, SWB, SO = 4, 8, 16
    sW_, sP, sTG, sWV, sJ, sTP = 20, 21, 22, 23, 24, 25
    sXb, sWb, sM0x, sM0w, sA, sB, sT, sT2 = 26, 27, 28, 29, 30, 31, 32, 33
    sMASK = 34
    sKVp, sC, sN, sRS = 36, 37, 38, 39
    sDl, sU, sOm, sOh = 56, 57, 58, 59
    sNON, sRDY, sFB, sSPIN = 60, 61, 62, 63
    sCG, sT0, sTT, sKQ, sTG2 = 64, 65, 66, 67, 68
    sC2 = 70
    sD3 = 48
    sLI = sWV
    vL, vL16 = 1, 2
    NV = 168
    a(f"""
    s_cmp_ge_u32 s2, 256
    s_cbranch_scc1 L_done
    """)
    if STAMPS:
        a("s_memtime s[72:73]\ns_memrealtime s[96:97]")
    a(f"""
    s_load_dwordx2 s[{SX}:{SX+1}], s[0:1], 0            ; x
    s_bitcmp1_b32 s2, 2
    s_cselect_b32 s{sT}, 32, 8
    s_load_dwordx2 s[{SW}:{SW+1}], s[0:1], s{sT}
    s_load_dwordx2 s[{SG}:{SG+1}], s[0:1], 48           ; gate_w
    s_load_dwordx2 s[{SD}:{SD+1}], s[0:1], 64           ; debug
    s_load_dwordx2 s[{SWS}:{SWS+1}], s[0:1], 72         ; ws
    """)
    if CPF:
        a(f"""
        s_getpc_b64 s[{sA}:{sA+1}]
        v_subrev_u32 v10, 256, v0
        v_lshlrev_b32 v10, 7, v10
        v_cmp_gt_u32 vcc, L_done - {name} - 64, v10
        s_and_saveexec_b64 s[{sT}:{sT+1}], vcc
        s_cbranch_execz L_cpf
        global_load_dword v7, v10, s[{sA}:{sA+1}]
        L_cpf:
        s_mov_b64 exec, -1
        """)
    a(f"""
    v_lshrrev_b32 v10, 6, v0
    v_and_b32 v{vL}, 63, v0
    s_bfe_u32 s{sTG}, s2, 0x30003
    v_readfirstlane_b32 s{sWV}, v10
    s_and_b32 s{sP}, s2, 7
    s_lshl_b32 s{sP}, s{sP}, 2
    s_lshr_b32 s{sT2}, s2, 6
    s_add_u32 s{sP}, s{sP}, s{sT2}
    s_mov_b32 s{SX+2}, {XBYTES}
    s_mov_b32 s{SX+3}, 0x00020000
    s_mov_b32 s{SW+3}, s{SX+3}
    s_mov_b32 s{SG+3}, s{SX+3}
    s_mov_b32 s{SD+3}, s{SX+3}
    s_mov_b32 s{SWS+3}, s{SX+3}
    s_cmp_lt_u32 s{sWV}, 4
    s_cbranch_scc0 L_compute
    v_lshrrev_b32 v12, 3, v{vL}
    v_mul_u32_u24 v12, 1152, v12
    v_lshrrev_b32 v13, 4, v{vL}
    v_and_b32 v14, 7, v{vL}
    v_xor_b32 v14, v14, v13
    v_lshl_add_u32 v3, v14, 4, v12
    v_xor_b32 v14, 4, v14
    v_lshl_add_u32 v4, v14, 4, v12
    v_add_u32 v4, {8*1152 - 1024}, v4
    s_lshl_b32 s{sT}, s{sTG}, 2
    s_add_u32 s{sT}, s{sT}, s{sLI}
    s_mul_i32 s{sXb}, s{sT}, {64*1152}
    s_lshl_b32 s{sM0x}, s{sLI}, 13
    v_lshlrev_b32 v14, 2, v13
    v_xor_b32 v14, v14, v{vL}
    v_and_b32 v14, 15, v14
    s_mov_b32 s{sA}, 0x75752020
    s_mov_b32 s{sA+1}, 0x7446420
    s_mov_b32 s{sT}, 0x21aa0505
    v_mul_u32_u24 v18, 3, v13
    v_lshlrev_b32 v15, 2, v14
    v_lshrrev_b64 v[16:17], v15, s[{sA}:{sA+1}]
    v_lshlrev_b32 v19, 1, v14
    v_lshrrev_b32 v19, v19, s{sT}
    v_and_b32 v16, 15, v16
    v_and_b32 v19, 3, v19
    v_add_u32 v19, v19, v18
    v_mul_u32_u24 v19, 1152, v19
    v_lshl_add_u32 v5, v16, 3, v19
    v_xor_b32 v15, 8, v15
    v_lshrrev_b64 v[16:17], v15, s[{sA}:{sA+1}]
    v_lshrrev_b32 v19, 1, v15
    v_lshrrev_b32 v19, v19, s{sT}
    v_and_b32 v16, 15, v16
    v_and_b32 v19, 3, v19
    v_add_u32 v19, v19, v18
    v_mul_u32_u24 v19, 1152, v19
    v_lshl_add_u32 v21, v16, 3, v19
    s_and_b32 s{sT}, s{sP}, 15
    s_mul_i32 s{sT}, s{sT}, 72
    s_mul_i32 s{sWb}, s{sLI}, {16*3456}
    s_add_u32 s{sWb}, s{sWb}, s{sT}
    s_lshl_b32 s{sM0w}, s{sLI}, 12
    s_mov_b32 s{sMASK}, {WMASK & 0xffffffff:#x}
    s_mov_b32 s{sMASK+1}, {WMASK >> 32:#x}
    s_lshr_b64 s[{sC2}:{sC2+1}], s[{sMASK}:{sMASK+1}], 2
    s_or_b32 s{sC2+1}, s{sC2+1}, 0xc0000000
    s_mov_b32 s{SW+2}, {WQKV_BYTES}
    s_waitcnt lgkmcnt(0)
    """)

    def common():
        a(f"""
        s_mov_b32 s{SW+2}, {WQKV_BYTES}
        s_movk_i32 s{SG+2}, 1152
        s_movk_i32 s{SD+2}, 256
        s_mov_b32 s{SWS+2}, {WS_USED}
        v_lshlrev_b32 v{vL16}, 4, v{vL}
        s_mul_i32 s{sKVp}, s{sP}, {8*CHUNK}
        s_mul_i32 s{sKQ}, s{sWV}, 43
        s_lshr_b32 s{sKQ}, s{sKQ}, 7
        s_mul_i32 s{sT}, s{sKQ}, 3
        s_sub_u32 s{sTT}, s{sWV}, s{sT}
        s_mov_b32 s{sSPIN}, {SPIN_LIMIT}
        """)

    sFl, sI, sPd, sBt, sCur, sMode, sWS = 69, 40, 41, 42, 43, 39, 3

    def unit_decode(v):
        a(f"""
        v_readfirstlane_b32 s{sU}, v{v}
        s_nop 3
        s_lshr_b32 s{sTG2}, s{sU}, 8
        s_and_b32 s{sTG2}, s{sTG2}, 7
        s_and_b32 s{sU}, s{sU}, 0xff
        s_lshr_b32 s{sCG}, s{sU}, 1
        s_and_b32 s{sT0}, s{sU}, 1
        s_mul_i32 s{sT0}, s{sT0}, 3
        s_sub_u32 s{sT}, s{sU}, 18
        s_cmp_ge_u32 s{sU}, 18
        s_cselect_b32 s{sCG}, s{sT}, s{sCG}
        s_cselect_b32 s{sT0}, 6, s{sT0}
        s_add_u32 s{sT0}, s{sT0}, s{sTT}
        s_lshl_b32 s{sT}, s{sTG2}, 3
        s_add_u32 s{sT}, s{sT}, s{sT0}
        s_mul_i32 s{sFl}, s{sT}, {OTILE}
        s_mul_i32 s{sT}, s{sKQ}, {8*OPAIR}
        s_add_u32 s{sFl}, s{sFl}, s{sT}
        s_add_u32 s{sFl}, s{sFl}, {O_OFF}
        """)

    vK, vKH, vV, vIDX = 3, 4, 5, 6
    vG = [8, 9]
    vT = [10, 11, 12, 13, 14, 15, 26]
    Qa, Qb = 16, 20
    QH = 24
    Kb = 32
    KHb = [40, 42]
    V0b = [44, 48]
    V1b = [52, 56]
    Oa, Ob = 64, 80
    S = [96, 128]
    vXr = [16, 17]; vWr = [18, 19, 20, 21]
    vXr2 = [22, 23]; vWr2 = [24, 25, 26, 27]
    vU = list(range(32, 48))
    F = [64, 32]
    AC = [96, 112, 128, 144]
    eK, eR, e0, e1, e2, e3, e4 = 160, 161, 162, 163, 164, 165, 166

    a.sec("compute")
    a("L_compute:")
    common()
    a(f"""
    s_sub_u32 s{sW_}, s{sWV}, 4
    s_lshr_b32 s{sJ}, s{sW_}, 2
    s_and_b32 s{sTP}, s{sW_}, 3
    s_load_dwordx2 s[44:45], s[0:1], 56          ; out
    s_mov_b32 s{SO+2}, {XBYTES}
    s_waitcnt lgkmcnt(0)
    s_mov_b64 s[{SO}:{SO+1}], s[44:45]
    """)
    a(f"""
    v_and_b32 v{vU[0]}, 31, v{vL}                ; tau
    v_lshrrev_b32 v{vU[1]}, 5, v{vL}             ; h
    v_and_b32 v{vU[9]}, 15, v{vL}                ; l&15
    v_lshrrev_b32 v{vU[10]}, 4, v{vL}            ; g
    s_lshl_b32 s{sT}, s{sTP}, 13
    v_lshlrev_b32 v{vU[2]}, 7, v{vU[9]}
    v_add_u32 v{vU[2]}, s{sT}, v{vU[2]}
    v_lshrrev_b32 v{vU[3]}, 1, v{vU[9]}
    v_xor_b32 v{vU[3]}, v{vU[3]}, v{vU[10]}
    v_lshl_add_u32 v{vXr[0]}, v{vU[3]}, 4, v{vU[2]}
    v_xor_b32 v{vXr[1]}, 64, v{vXr[0]}
    v_bfe_u32 v{vU[2]}, v{vL}, 2, 2              ; r
    v_lshl_add_u32 v{vU[3]}, v{vU[10]}, 3, v{vU[2]}
    v_lshlrev_b32 v{vU[3]}, 8, v{vU[3]}
    v_add_u32 v{vU[3]}, 32768, v{vU[3]}
    v_and_b32 v{vU[4]}, 3, v{vL}                 ; c
    v_lshlrev_b32 v{vU[4]}, 3, v{vU[4]}
    v_and_b32 v{vU[5]}, 16, v{vL}
    v_lshlrev_b32 v{vU[5]}, 1, v{vU[5]}          ; (g&1)*32
    v_add3_u32 v{vU[7]}, v{vU[3]}, v{vU[4]}, v{vU[5]}
    v_xor_b32 v{vWr[0]}, s{sJ}, v{vU[2]}
    v_lshl_add_u32 v{vWr[0]}, v{vWr[0]}, 6, v{vU[7]}
    v_xor_b32 v{vWr[1]}, 32, v{vWr[0]}
    s_mov_b32 s{sT}, 0x38102800
    s_cmp_eq_u32 s{sJ}, 1
    s_cselect_b32 s{sT}, s{sT}, 0x18100800
    v_lshrrev_b32 v{vU[6]}, v{vU[4]}, s{sT}
    v_and_b32 v{vU[6]}, 0xff, v{vU[6]}
    v_xor_b32 v{vU[6]}, v{vU[6]}, v{vU[5]}
    v_add_u32 v{vU[7]}, v{vU[3]}, v{vU[6]}
    s_add_u32 s{sT}, s{sJ}, 2
    v_xor_b32 v{vWr[2]}, s{sT}, v{vU[2]}
    v_lshl_add_u32 v{vWr[2]}, v{vWr[2]}, 6, v{vU[7]}
    v_xor_b32 v{vWr[3]}, 32, v{vWr[2]}
    """)
    for r0, r1 in zip(vXr + vWr, vXr2 + vWr2):
        a(f"v_add_u32 v{r1}, {2*G_SLOT}, v{r0}")
    for r in range(AC[0], AC[0] + 64):
        a(f"v_mov_b32 v{r}, 0")
    a(f"""
    s_lshl_b32 s{sT}, s{sJ}, 10
    s_add_u32 s{sT}, s{sT}, 512
    v_add_u32 v{vK}, s{sT}, v{vL16}
    v_lshlrev_b32 v{vKH}, 2, v{vL}
    s_lshl_b32 s{sT2}, s{sJ}, 8
    v_add_u32 v{vKH}, s{sT2}, v{vKH}
    v_mov_b32 v{vU[2]}, 4
    v_cmp_gt_u32 vcc, 19, v{vU[0]}
    v_mov_b32 v{vU[3]}, 19
    s_nop 0
    v_cndmask_b32 v{vU[2]}, v{vU[2]}, v{vU[0]}, vcc
    v_cmp_eq_u32 vcc, 4, v{vU[0]}
    v_mul_u32_u24 v{vU[4]}, {VH}, v{vU[1]}
    s_mul_i32 s{sT2}, s{sJ}, {2*VG}
    s_add_u32 s{sT2}, s{sT2}, 2560
    v_cndmask_b32 v{vU[2]}, v{vU[2]}, v{vU[3]}, vcc
    v_lshl_add_u32 v{vV}, v{vU[2]}, 4, v{vU[4]}
    v_add_u32 v{vV}, s{sT2}, v{vV}
    v_mov_b32 v{vIDX}, 0xdddddddd
    s_lshl_b32 s{sT}, s{sTG}, 3
    s_lshl_b32 s{sT2}, s{sTP}, 1
    s_add_u32 s{sT}, s{sT}, s{sT2}
    s_mul_i32 s{sA}, s{sT}, {OTILE}
    s_mul_i32 s{sT}, s{sP}, {OPAIR}
    s_add_u32 s{sA}, s{sA}, s{sT}
    s_add_u32 s{sA}, s{sA}, {O_OFF}
    s_lshl_b32 s{sT}, s{sJ}, 10
    s_add_u32 s{sOm}, s{sA}, s{sT}
    s_lshl_b32 s{sT}, s{sJ}, 7
    s_add_u32 s{sOh}, s{sA}, s{sT}
    s_mov_b32 s{sD3}, {(RING[1]-RING[0]) & 0xffffffff:#x}
    s_mov_b32 s{sD3+1}, {(RING[2]-RING[1]) & 0xffffffff:#x}
    s_mov_b32 s{sD3+2}, {(RING[0]-RING[2]) & 0xffffffff:#x}
    s_mov_b32 s{sC2}, {f32bits(CSCALE):#x}
    s_mov_b32 s{sC2+1}, {f32bits(CSCALE):#x}
    v_and_b32 v{vU[2]}, 3, v{vU[0]}
    v_and_b32 v{vU[3]}, 12, v{vU[0]}
    v_lshl_or_b32 v{vU[2]}, v{vU[3]}, 1, v{vU[2]}
    v_and_b32 v{vU[3]}, 16, v{vU[0]}
    v_lshrrev_b32 v{vU[3]}, 2, v{vU[3]}
    v_or_b32 v{vU[2]}, v{vU[2]}, v{vU[3]}        ; kappa
    s_lshl_b32 s{sT}, s{sJ}, 10
    s_mul_i32 s{sB}, s{sTP}, {TPAIR}
    s_add_u32 s{sT}, s{sT}, s{sB}
    s_add_u32 s{sT}, s{sT}, 512
    v_lshlrev_b32 v{eK}, 9, v{vU[1]}
    v_lshl_add_u32 v{eK}, v{vU[2]}, 4, v{eK}
    v_add_u32 v{eK}, s{sT}, v{eK}
    s_lshl_b32 s{sT}, s{sTP}, 8
    s_add_u32 s{sT}, s{sT}, {SCR}
    v_lshlrev_b32 v{eR}, 2, v{vU[0]}
    v_add_u32 v{eR}, s{sT}, v{eR}
    s_cmp_eq_u32 s{sJ}, 1
    s_cbranch_scc1 L_a1
    v_mul_u32_u24 v{vU[4]}, {VH}, v{vU[10]}
    s_add_u32 s{sT}, s{sB}, 2560
    v_add_u32 v{vU[4]}, s{sT}, v{vU[4]}
    v_mov_b32 v{vU[6]}, 19
    v_cmp_eq_u32 vcc, 4, v{vU[9]}
    v_add_u32 v{vU[3]}, 16, v{vU[9]}
    v_add_u32 v{vU[5]}, {2*VG // 16 - 2}, v{vU[9]}
    v_cndmask_b32 v{vU[6]}, v{vU[9]}, v{vU[6]}, vcc
    v_cmp_le_u32 vcc, 2, v{vU[9]}
    v_lshl_add_u32 v{e0}, v{vU[6]}, 4, v{vU[4]}
    v_mov_b32 v{vU[6]}, {2*VG // 16 + 19}
    v_cndmask_b32 v{vU[3]}, v{vU[3]}, v{vU[5]}, vcc
    v_cmp_eq_u32 vcc, 6, v{vU[9]}
    s_nop 1
    v_cndmask_b32 v{vU[3]}, v{vU[3]}, v{vU[6]}, vcc
    v_lshl_add_u32 v{e1}, v{vU[3]}, 4, v{vU[4]}
    s_branch L_a2
    L_a1:
    v_lshlrev_b32 v{e0}, 2, v{vU[2]}
    v_add_u32 v{e0}, s{sB}, v{e0}
    v_cmp_eq_u32 vcc, 1, v{vU[1]}
    v_add_u32 v{vU[5]}, 256, v{e0}
    v_add_u32 v{vU[6]}, 1024, v{eR}
    v_cndmask_b32 v{e0}, v{e0}, v{eR}, vcc
    v_cndmask_b32 v{e1}, v{vU[5]}, v{vU[6]}, vcc
    v_mov_b32 v{vU[5]}, 1.0
    v_mov_b32 v{vU[6]}, s{sC2}
    v_cndmask_b32 v{e2}, v{vU[5]}, v{vU[6]}, vcc
    v_lshrrev_b32 v{vU[3]}, 3, v{vU[2]}
    v_mul_u32_u24 v{vU[3]}, {VH}, v{vU[3]}
    v_and_b32 v{vU[5]}, 7, v{vU[2]}
    v_lshl_add_u32 v{e3}, v{vU[5]}, 1, v{vU[3]}
    s_add_u32 s{sT}, s{sB}, {2560 + 2*VG}
    v_add_u32 v{e3}, s{sT}, v{e3}
    L_a2:
    s_lshl_b32 s{sT}, s{sJ}, 10
    v_lshl_add_u32 v{e4}, v{vU[1]}, 7, v{eR}
    v_add_u32 v{e4}, s{sT}, v{e4}
    s_mov_b32 s{sMASK}, 0x7ffff
    s_mov_b32 s{sMASK+1}, 0x7ffff
    s_lshl_b32 s{sT}, s{sW_}, 2
    s_add_u32 s{sT}, s{sT}, {SYNC}
    v_mov_b32 v167, s{sT}
    """)
    a("s_waitcnt lgkmcnt(0)")

    def reads(n, ks, j):
        s = n % 3
        xr = vXr2 if s == 2 else vXr
        wr = vWr2 if s == 2 else vWr
        so = G_SLOT if s == 1 else 0
        b = F[ks]
        out = []
        for q in range(4):
            out.append(f"ds_read_b128 {vr(b+4*q,4)}, v{xr[ks]} offset:{so + 2048*q}")
            if q < 4 - j:
                out.append(f"ds_read_b64_tr_b16 {vr(b+16+4*q,2)}, v{wr[q]} offset:{so + ks*8192}")
                out.append(f"ds_read_b64_tr_b16 {vr(b+18+4*q,2)}, v{wr[q]} offset:{so + ks*8192 + 1024}")
        return out

    def mfmas(f, j):
        b = F[f]
        m = []
        for c in range(4 - j):
            for t in range(4):
                X, W, D = vr(b + 4 * t, 4), vr(b + 16 + 4 * c, 4), vr(AC[c] + 4 * t, 4)
                p, q = (X, W) if (j == 0 and c >= 2) else (W, X)
                m.append(f"v_mfma_f32_16x16x32_bf16 {D}, {p}, {q}, {D}")
        return m

    def mix(ms, rs, lead=0):
        rs = list(rs)
        for r in rs[:lead]:
            a(r)
        rs = rs[lead:]
        for i, m in enumerate(ms):
            a(m)
            k = -(-len(rs) // (len(ms) - i)) if GMIX == 2 else (1 if GMIX else 0)
            for r in rs[:k]:
                a(r)
            rs = rs[k:]
        for r in rs:
            a(r)

    if TLBW == 2:
        a(f"""
        s_cmp_eq_u32 s{sW_}, 7
        s_cbranch_scc0 L_tlb
        s_buffer_load_dword s3, s[{SWS}:{SWS+3}], s{sKVp}
        s_buffer_load_dword s3, s[{SWS}:{SWS+3}], s{sKVp} offset:{hex(8*CHUNK - 4)}
        s_mov_b32 s{sT}, {FLAG_OFF + 0x30000}
        s_buffer_load_dword s3, s[{SWS}:{SWS+3}], s{sT}
        s_buffer_load_dword s3, s[{SD}:{SD+3}], 0xfc
        L_tlb:
        """)
    stamp(a, 7, True, mode=9)
    a("s_barrier")
    stamp(a, 1, True)
    stamp(a, 1, True, mode=4)
    for r in reads(0, 0, 0):
        a(r)
    a(f"""
    s_mov_b32 s{sN}, 0
    s_cmp_eq_u32 s{sJ}, 1
    s_cbranch_scc1 L_g1
    """)
    for j in range(2):
        a(f"L_g{j}:")
        for n in range(3):
            a("s_waitcnt lgkmcnt(0)")
            mix(mfmas(0, j), reads(n, 1, j), 0 if GMIX else 99)
            a("s_waitcnt lgkmcnt(0)")
            if n == 2:
                a(f"""
                s_add_u32 s{sN}, s{sN}, 1
                s_cmp_eq_u32 s{sN}, 3
                s_cbranch_scc1 L_ge{j}
                """)
            a("s_barrier")
            mix(mfmas(1, j), reads(n + 1, 0, j), 0 if GMIX else 99)
        a(f"s_branch L_g{j}")
        a(f"L_ge{j}:")
        ms = mfmas(1, j)
        zs = [f"v_mov_b32 v{r}, 0" for r in range(Oa, Oa + 32)]
        for i, m in enumerate(ms):
            a(m)
            k = -(-len(zs) // (len(ms) - i))
            for z in zs[:k]:
                a(z)
            zs = zs[k:]
        stamp(a, 2)
        stamp(a, 2, mode=4)
        a(f"""
        s_mov_b32 s{sN}, 0
        s_mov_b32 s{sFB}, 0
        """)
        KP = [AC[0], AC[0] + 8]
        for A in KP:
            for i in range(4):
                a(f"v_cvt_pk_bf16_f32 v{A+i}, v{A+2*i}, v{A+2*i+1}")
        a(f"v_mov_b32 v{KHb[0]+1}, 0x3f803f80")
        for t, A in enumerate(KP):
            a(f"v_permlane16_swap_b32 v{A}, v{A+2}")
            a(f"v_permlane16_swap_b32 v{A+1}, v{A+3}")
            a(f"ds_write_b128 v{eK}, {vr(A,4)} offset:{TILE*t}")
        B0, B1 = AC[2], AC[2] + 8
        if j == 0:
            for cc in range(2):
                for t in range(2):
                    B = AC[2 + cc] + 8 * t
                    for i in range(4):
                        a(f"v_cvt_pk_bf16_f32 v{B+i}, v{B+2*i}, v{B+2*i+1}")
                    a(f"ds_write_b128 v{(e0, e1)[cc]}, {vr(B,4)} offset:{t*TILE}")
            a("s_branch L_ep")
        else:
            for B in (B0, B1):
                for i in range(4):
                    a(f"v_permlane16_swap_b32 v{B+i}, v{B+4+i}")
            a(f"""
            s_mov_b32 exec_lo, 0
            ds_write_b32 v{eR}, v{B0+4} offset:2048
            ds_write_b32 v{eR}, v{B1+4} offset:{2048+128}
            s_mov_b32 exec_lo, -1
            """)
            for t, B in enumerate((B0, B1)):
                for i in range(4):
                    a(f"v_mul_f32 v{B+i}, v{e2}, v{B+i}")
                for i in range(4):
                    a(f"v_cvt_pk_bf16_f32 v{B+16+i}, v{B+2*i}, v{B+2*i+1}")
                a(f"ds_write_b32 v{e0}, v{B+16} offset:{128*t}")
                a(f"ds_write_b32 v{e1}, v{B+17} offset:{128*t}")
            a("s_mov_b32 exec_hi, 0")
            for t, B in enumerate((B0, B1)):
                o = t * TILE + 14 * 16
                a(f"ds_write_b16 v{e3}, v{B+18} offset:{o}")
                a(f"ds_write_b16_d16_hi v{e3}, v{B+18} offset:{o+16}")
                a(f"ds_write_b16 v{e3}, v{B+19} offset:{o+32}")
                a(f"ds_write_b16_d16_hi v{e3}, v{B+19} offset:{o+48}")
            a("s_mov_b32 exec_hi, -1")
    def qk(dst, kb, q, acc=True):
        return f"v_mfma_f32_32x32x16_bf16 {vr(dst,16)}, {vr(kb,4)}, {vr(q,4)}, {vr(dst,16) if acc else 0}"

    def qkh(dst, khb, par):
        return f"v_mfma_f32_32x32x4_2b_bf16 {vr(dst,32)}, {vr(khb,2)}, {vr(QH,2)}, 0 cbsz:1 abid:{par}"

    def pv(o, vb, p):
        return f"v_smfmac_f32_32x32x32_bf16 {vr(o,16)}, {vr(vb,4)}, {vr(p,8)}, v{vIDX}"

    def vread(t, buf):
        if not VMASK:
            return f"""
            ds_read_b128 {vr(V0b[buf],4)}, v{vV} offset:{toff(t)}
            ds_read_b128 {vr(V1b[buf],4)}, v{vV} offset:{toff(t) + VG}
            """
        return f"""
        s_mov_b64 exec, s[{sMASK}:{sMASK+1}]
        ds_read_b128 {vr(V0b[buf],4)}, v{vV} offset:{toff(t)}
        ds_read_b128 {vr(V1b[buf],4)}, v{vV} offset:{toff(t) + VG}
        s_mov_b64 exec, -1
        """

    X, Y = S

    def prep():
        for A, Q in ((AC[1], Qa), (AC[1] + 8, Qb)):
            for i in range(4):
                a(f"v_pk_mul_f32 {vr(A+2*i,2)}, {vr(A+2*i,2)}, s[{sC2}:{sC2+1}]")
            for i in range(4):
                a(f"v_cvt_pk_bf16_f32 v{Q+i}, v{A+2*i}, v{A+2*i+1}")
        a(f"v_mov_b32 v{KHb[1]+1}, 0x3f803f80")
        for Q in (Qa, Qb):
            a(f"v_permlane16_swap_b32 v{Q}, v{Q+2}")
            a(f"v_permlane16_swap_b32 v{Q+1}, v{Q+3}")
        a(f"v_cmp_gt_u32 vcc, 32, v{vL}")
        for r in range(V0b[0], V1b[1] + 4):
            a(f"v_mov_b32 v{r}, 0")

    if EARLYB:
        a("s_waitcnt vmcnt(0) lgkmcnt(0)\ns_barrier")
        prep()
        a(qk(Y, AC[0], Qa, False)); a(qk(Y + 16, AC[0], Qb, False))
        a("s_branch L_ep2")
    a("L_ep:")
    prep()
    a("s_waitcnt vmcnt(0) lgkmcnt(0)")
    a(qk(Y, AC[0], Qa, False)); a(qk(Y + 16, AC[0], Qb, False))
    a("s_barrier")
    a("L_ep2:")
    stamp(a, 3, True)
    a(f"""
    ds_read_b32 v{vG[0]}, v{eR} offset:2048
    ds_read_b32 v{vG[1]}, v{eR} offset:{2048+128}
    ds_read_b32 v{KHb[0]}, v{vKH}
    ds_read_b32 v{QH}, v{e4}
    ds_read_b128 {vr(Kb,4)}, v{vK}
    """)
    a(vread(0, 0))
    a(f"""
    s_mov_b32 s{sT}, {f32bits(-math.log2(math.e)):#x}
    s_cmp_ge_u32 s{sP}, 16
    s_cselect_b32 s{sT}, {f32bits(math.log2(math.e)):#x}, s{sT}
    s_nop 0
    """)
    for t in range(2):
        b = Y + 16 * t
        a(f"v_max3_f32 v{vT[t]}, v{b}, v{b+1}, v{b+2}")
        for i in range(3, 9, 2):
            a(f"v_max3_f32 v{vT[t]}, v{vT[t]}, v{b+i}, v{b+i+1}")
    a(f"""
    v_cndmask_b32 v{vT[0]}, v{vT[1]}, v{vT[0]}, vcc
    v_lshrrev_b32 v{vT[0]}, 16, v{vT[0]}
    v_xor_b32 v{QH+1}, {(f32bits(-SHIFT) & 0xffff0000) | 0x8000:#x}, v{vT[0]}
    s_waitcnt lgkmcnt(3)
    v_mul_f32 v{vG[0]}, s{sT}, v{vG[0]}
    """)
    a(qkh(X, KHb[0], 0))
    a(f"""
    v_mul_f32 v{vG[1]}, s{sT}, v{vG[1]}
    v_exp_f32 v{vG[0]}, v{vG[0]}
    v_exp_f32 v{vG[1]}, v{vG[1]}
    """)
    for r in range(Y + 24, Y + 32):
        a(f"v_mov_b32 v{r}, 0")
    a(f"""
    v_add_f32 v{vG[0]}, 1.0, v{vG[0]}
    v_add_f32 v{vG[1]}, 1.0, v{vG[1]}
    v_rcp_f32 v{vG[0]}, v{vG[0]}
    v_rcp_f32 v{vG[1]}, v{vG[1]}
    s_waitcnt lgkmcnt(0)
    s_nop 1
    """)
    a(qk(X, Kb, Qa)); a(qk(X + 16, Kb, Qb))
    a(f"""
    v_lshrrev_b32 v{e3}, 5, v{vL}
    v_mul_u32_u24 v{e3}, {OTILE - 128}, v{e3}
    v_lshl_add_u32 v{e3}, v{vL}, 2, v{e3}
    """)

    def E(b, n=4):
        for r in range(b, b + n):
            a(f"v_exp_f32 v{r}, v{r}")

    stamp(a, 4)
    stamp(a, 3, mode=4)
    a("s_setprio 1")
    a("s_nop 6")
    a(".p2align 6")
    for _ in range(int(os.environ.get("PAD", "0"))):
        a("s_nop 0\ns_nop 0")
    a("L_loop:")
    loop0 = len(a.lines) - 1
    for i in range(8):
        X = S[i & 1]; Y = S[(i + 1) & 1]
        tn = (i + 1) & 7
        khb = KHb[(tn >> 1) & 1]
        bar = """
        s_cbranch_scc1 L_nb7
        s_barrier
        L_nb7:
        s_setprio 1
        """
        adds = f"""
        v_add_u32 v{vKH}, s{sDl}, v{vKH}
        v_add_u32 v{vK}, s{sDl}, v{vK}
        ds_read_b32 v{khb}, v{vKH}
        v_add_u32 v{vV}, s{sDl}, v{vV}
        """
        if i == 7 and BPOS == 0:
            a(bar); a(adds)
        if i == 7 and BPOS == 2:
            a(bar.replace("s_setprio 1", "").replace("s_cbranch", "s_setprio 1\ns_cbranch")); a(adds)
        E(X, 2)
        if i == 7 and BPOS == 1:
            a(bar)
        a(pv(Ob, V1b[(i + 1) & 1], Y + 24))
        if i == 7 and BPOS == 1:
            a(adds)
        if i == PRIOI:
            a("s_setprio 0")
        kread = f"ds_read_b128 {vr(Kb,4)}, v{vK} offset:{toff(tn)}"
        if i in (0, 2, 4):
            kread += f"\nds_read_b32 v{KHb[((i>>1)+1)&1]}, v{vKH} offset:{((i>>1)+1)*TPAIR}"
        vrd = vread(tn, (i + 1) & 1)
        a(vrd if VPOS == 1 else kread)
        E(X + 2, 4)
        if i == 7:
            a(f"s_waitcnt lgkmcnt({2 if VPOS == 1 else 1})")
        a(qkh(Y, khb, tn & 1))
        a(vrd if VPOS == 0 else kread if VPOS == 1 else "")
        E(X + 6, 8)
        a(pv(Oa, V0b[i & 1], X))
        if VPOS == 3:
            a("s_waitcnt lgkmcnt(0)")
        if VPOS >= 2:
            a(vrd)
        E(X + 14, 4)
        a(pv(Oa, V1b[i & 1], X + 8))
        if VPOS != 3:
            a(f"s_waitcnt lgkmcnt({2 if VPOS == 2 else 0})")
        if i == 1:
            a(f"s_mov_b32 s{sDl}, s{sD3}")
        if i == 3:
            a(f"s_mov_b32 s{sD3+1}, s{sD3+2}")
        if i == 7:
            a(f"s_add_u32 s{sN}, s{sN}, 1")
        E(X + 18, 4)
        a(qk(Y, Kb, Qa))
        if i == 1:
            a(f"s_mov_b32 s{sD3}, s{sD3+1}")
        if i == 2:
            a(f"v_mov_b32 v7, s{sN}")
        if i == 5:
            a(f"s_mov_b32 s{sD3+2}, s{sDl}")
        if i == 6:
            a(f"s_cmp_eq_u32 s{sN}, 7")
        if i == 7:
            a(f"s_cmp_lt_u32 s{sN}, 8")
        E(X + 22, 4)
        a(pv(Ob, V0b[i & 1], X + 16))
        if VPOS >= 2:
            a("s_waitcnt lgkmcnt(0)")
        E(X + 26, 3)
        a(qk(Y + 16, Kb, Qb))
        if i == 3:
            a("ds_write_b32 v167, v7")
        E(X + 29, 3)
    if ALIGN:
        a.lines[loop0:] = align8(a.lines[loop0:])
    a(f"""
    s_cbranch_scc1 L_loop
    s_nop 0
    """)
    stamp(a, 5)
    stamp(a, 1, mode=3)
    stamp(a, 4, mode=4)
    a(pv(Ob, V1b[1], S[1] + 24))
    a(f"""
    v_mov_b32 v{vT[5]}, {SYNC + 48}
    ds_read_b32 v160, v{vT[5]}
    L_fin:
    """)
    PK, PH = [32, 36], [44, 45]
    for t, O in enumerate((Oa, Ob)):
        l0, l1 = vT[2 * t], vT[2 * t + 1]
        a(f"v_mov_b32 v{l0}, v{O+10}")
        a(f"v_mov_b32 v{l1}, v{O+10}")
        if t == 0:
            a(f"v_maximum3_f32 v{vT[4]}, v{vG[0]}, v{vG[1]}, v{O+10}")
        else:
            a(f"v_maximum3_f32 v{vT[4]}, v{vT[4]}, v{O+10}, v{O+10}")
        a(f"v_maximum3_f32 v{vT[4]}, v{vT[4]}, |v{O}|, |v{O+1}|")
        a(f"v_maximum3_f32 v{vT[4]}, v{vT[4]}, |v{O+2}|, |v{O+3}|")
        a(f"v_permlane32_swap_b32 v{l0}, v{l1}")
        for i in (4, 6):
            a(f"v_maximum3_f32 v{vT[4]}, v{vT[4]}, |v{O+i}|, |v{O+i+1}|")
        a(f"v_rcp_f32 v{l1}, v{l0}")
        a(f"v_maximum3_f32 v{vT[4]}, v{vT[4]}, |v{O+8}|, |v{O+9}|")
        if t == 1:
            a(f"""
            v_min_f32 v{l0}, v{l0}, v{vT[0]}
            v_cmp_nge_f32 vcc, s{sT}, v{vT[4]}
            v_cmp_nle_f32 s[44:45], s{sT2}, v{l0}
            """)
        a(f"v_mul_f32 v{vT[6]}, v{l1}, v{vG[t]}")
        for i in range(5):
            a(f"v_pk_mul_f32 {vr(O+2*i,2)}, {vr(O+2*i,2)}, {vr(vT[6],2)} op_sel_hi:[1,0]")
        for i in range(4):
            a(f"v_cvt_pk_bf16_f32 v{PK[t]+i}, v{O+2*i}, v{O+2*i+1}")
        a(f"v_cvt_pk_bf16_f32 v{PH[t]}, v{O+8}, v{O+9}")
        if t == 0:
            a(f"""
            s_mov_b32 s{sT}, {f32bits(2.0**90):#x}
            s_mov_b32 s{sT2}, {f32bits(2.0**(-24-SHIFT)):#x}
            s_add_u32 s{sB}, s{sOm}, {OTILE}
            """)
    a(f"""
    s_or_b64 vcc, vcc, s[44:45]
    s_cbranch_vccnz L_exact
    L_store:
    """)
    if HI4:
        a(f"""
        v_permlane32_swap_b32 v{PH[0]}, v{PH[1]}
        buffer_store_dwordx4 {vr(PK[0],4)}, v{vL16}, s[{SWS}:{SWS+3}], s{sOm} offen sc1
        buffer_store_dwordx4 {vr(PK[1],4)}, v{vL16}, s[{SWS}:{SWS+3}], s{sB} offen sc1
        v_mov_b32_dpp v{PH[0]+1}, v{PH[0]} quad_perm:[1,1,1,1] row_mask:0xf bank_mask:0xf
        v_mov_b32_dpp v{PH[0]+2}, v{PH[0]} quad_perm:[2,2,2,2] row_mask:0xf bank_mask:0xf
        v_mov_b32_dpp v{PH[0]+3}, v{PH[0]} quad_perm:[3,3,3,3] row_mask:0xf bank_mask:0xf
        s_mov_b32 exec_lo, 0x11111111
        s_mov_b32 exec_hi, 0x11111111
        buffer_store_dwordx4 {vr(PH[0],4)}, v{e3}, s[{SWS}:{SWS+3}], s{sOh} offen offset:2048 sc1
        s_mov_b64 exec, -1
        s_setprio 0
        """)
    else:
        a(f"""
        buffer_store_dwordx4 {vr(PK[0],4)}, v{vL16}, s[{SWS}:{SWS+3}], s{sOm} offen sc1
        v_permlane32_swap_b32 v{PH[0]}, v{PH[1]}
        buffer_store_dwordx4 {vr(PK[1],4)}, v{vL16}, s[{SWS}:{SWS+3}], s{sB} offen sc1
        s_setprio 0
        buffer_store_dword v{PH[0]}, v{e3}, s[{SWS}:{SWS+3}], s{sOh} offen offset:2048 sc1
        """)
    a(f"""
    v_mov_b32 v7, 8
    ds_write_b32 v167, v7
    s_waitcnt lgkmcnt(1)
    """)
    unit_decode(160)
    stamp(a, 6)
    stamp(a, 2, mode=3)

    a.sec("exact")
    X = S[0]
    a(f"""
    L_exact:
    s_cmp_eq_u32 s{sFB}, 0
    s_cbranch_scc1 L_exact1
    """)
    for r in list(range(32, 40)) + [44, 45]:
        a(f"v_min_u32 v{r}, -2, v{r}")
    a(f"""
    s_nop 0
    s_branch L_store
    L_exact1:
    s_mov_b32 s{sFB}, 1
    v_mov_b32 v{QH+1}, 0
    v_and_b32 v{vKH}, 31, v{vL}
    v_mov_b32 v{vT[2]}, 4
    v_cmp_gt_u32 vcc, 19, v{vKH}
    v_mov_b32 v{vT[3]}, 19
    v_lshrrev_b32 v{vT[4]}, 5, v{vL}
    v_cndmask_b32 v{vT[2]}, v{vT[2]}, v{vKH}, vcc
    v_cmp_eq_u32 vcc, 4, v{vKH}
    v_mul_u32_u24 v{vT[4]}, {VH}, v{vT[4]}
    v_lshlrev_b32 v{vKH}, 2, v{vKH}
    v_cndmask_b32 v{vT[2]}, v{vT[2]}, v{vT[3]}, vcc
    v_lshl_add_u32 v{vV}, v{vT[2]}, 4, v{vT[4]}
    v_mov_b32 v{vT[0]}, 0xff800000
    v_mov_b32 v{vT[1]}, 0xff800000
    """)
    for r in range(Oa, Oa + 32):
        a(f"v_mov_b32 v{r}, 0")
    for ps in range(2):
        a(f"""
        s_mov_b32 s{sN}, 0
        L_x{ps}:
        s_lshr_b32 s{sT}, s{sN}, 1
        s_mul_i32 s{sT}, s{sT}, {TPAIR}
        s_add_u32 s{sT}, s{sT}, s{sKVp}
        s_and_b32 s{sT2}, s{sN}, 1
        s_mul_i32 s{sB}, s{sT2}, {TILE}
        s_add_u32 s{sB}, s{sB}, s{sT}                ; + tile
        s_lshl_b32 s{sA}, s{sJ}, 10
        s_add_u32 s{sA}, s{sA}, s{sB}
        buffer_load_dwordx4 {vr(Kb,4)}, v{vL16}, s[{SWS}:{SWS+3}], s{sA} offen offset:512 sc1
        s_lshl_b32 s{sA}, s{sT2}, 7
        s_add_u32 s{sA}, s{sA}, s{sT}
        s_lshl_b32 s{sT2}, s{sJ}, 8
        s_add_u32 s{sA}, s{sA}, s{sT2}
        buffer_load_dword v{KHb[0]}, v{vKH}, s[{SWS}:{SWS+3}], s{sA} offen sc1
        """)
        if ps == 1:
            a(f"""
            s_mul_i32 s{sA}, s{sJ}, {2*VG}
            s_add_u32 s{sA}, s{sA}, s{sB}
            s_add_u32 s{sA}, s{sA}, 2560
            buffer_load_dwordx4 {vr(V0b[0],4)}, v{vV}, s[{SWS}:{SWS+3}], s{sA} offen sc1
            buffer_load_dwordx4 {vr(V1b[0],4)}, v{vV}, s[{SWS}:{SWS+3}], s{sA} offen offset:{VG} sc1
            """)
        a("s_waitcnt vmcnt(0)")
        a(qkh(X, KHb[0], 0))
        a("s_nop 15\ns_nop 3")
        a(qk(X, Kb, Qa)); a(qk(X + 16, Kb, Qb))
        a("s_nop 15")
        if ps == 0:
            for t in range(2):
                for i in range(0, 16, 2):
                    a(f"v_max3_f32 v{vT[t]}, v{vT[t]}, v{X+16*t+i}, v{X+16*t+i+1}")
        else:
            for i in range(16):
                a(f"v_sub_f32 v{X+i}, v{X+i}, v{vT[0]}")
                a(f"v_sub_f32 v{X+16+i}, v{X+16+i}, v{vT[1]}")
            E(X, 32)
            a("s_nop 1")
            a(pv(Oa, V0b[0], X)); a(pv(Oa, V1b[0], X + 8))
            a(pv(Ob, V0b[0], X + 16)); a(pv(Ob, V1b[0], X + 24))
        a(f"""
        s_add_u32 s{sN}, s{sN}, 1
        s_cmp_lt_u32 s{sN}, 64
        s_cbranch_scc1 L_x{ps}
        """)
        if ps == 0:
            a(f"""
            v_mov_b32 v{vT[2]}, v{vT[0]}
            v_mov_b32 v{vT[3]}, v{vT[1]}
            s_nop 1
            v_permlane32_swap_b32 v{vT[0]}, v{vT[2]}
            v_permlane32_swap_b32 v{vT[1]}, v{vT[3]}
            s_nop 1
            v_max_f32 v{vT[0]}, v{vT[0]}, v{vT[2]}
            v_max_f32 v{vT[1]}, v{vT[1]}, v{vT[3]}
            """)
    a("""
    s_nop 15
    s_branch L_fin
    """)

    vXE, vXO, vWS = 3, 4, 5
    vGt = [6, 7, 8]
    vGA, vF, vFo = 9, 10, 11
    vT = [12, 13, 14, 15, 16, 17, 18, 19]
    vWO = 20
    CP = 32

    def dma_x(n):
        slot = (n % 3) * G_SLOT
        s = f"s_add_u32 m0, s{sM0x}, {slot}\ns_add_u32 s{sT}, s{sXb}, {n*128}\n"
        for i in range(4):
            s += f"buffer_load_dwordx4 v{vXE}, s[{SX}:{SX+3}], s{sT} offen lds\n"
            s += f"buffer_load_dwordx4 v{vXO}, s[{SX}:{SX+3}], s{sT} offen offset:1024 lds\n"
            if i < 3:
                s += f"s_addk_i32 m0, 0x800\ns_addk_i32 s{sT}, {16*1152}\n"
        return s

    def dma_w(n):
        slot = (n % 3) * G_SLOT
        if n >= int(os.environ.get("WP0", "99")):
            s = f"s_add_u32 m0, s{sM0w}, {slot + 32768}\ns_and_b32 s{sT}, s{sP}, 7\ns_mul_i32 s{sT}, s{sT}, 147456\ns_add_u32 s{sT}, s{sT}, s{sM0w}\ns_add_u32 s{sT}, s{sT}, {n*16384}\nv_lshlrev_b32 v22, 4, v{vL}\n"
            for i in range(4):
                s += f"buffer_load_dwordx4 v22, s[{SW}:{SW+3}], s{sT} offen offset:{1024*i} lds\n"
            return s
        s = f"s_add_u32 m0, s{sM0w}, {slot + 32768}\ns_add_u32 s{sT}, s{sWb}, {n*64*3456}\n"
        s += f"s_mov_b64 exec, s[{sMASK}:{sMASK+1}]\n"
        for i in range(4):
            if i == 2:
                s += f"s_mov_b64 exec, s[{sC2}:{sC2+1}]\n"
            s += f"buffer_load_dwordx4 v{vWS if i < 2 else 21}, s[{SW}:{SW+3}], s{sT} offen offset:{1024*i} lds\n"
            if i < 3:
                s += f"s_addk_i32 s{sT}, {4*3456 - 1024}\n"
        s += "s_mov_b64 exec, -1\n"
        return s

    def gate_write(n):
        slot = (n % 3) * G_SLOT
        lab = a.label("L_gw")
        reg = vGt[n // 4]
        if slot < 65536:
            w = f"ds_write_b16 v{vGA}, v{reg} offset:{slot + 8}"
        else:
            w = f"v_add_u32 v{vT[7]}, {slot}, v{vGA}\nds_write_b16 v{vT[7]}, v{reg} offset:8"
        return f"""
        s_cmp_eq_u32 s{sLI}, {n % 4}
        s_cbranch_scc0 {lab}
        {w}
        {lab}:
        """

    def wo_load(q0, q1):
        assert q1 <= 72 or q0 >= 72
        srd_, base = (SWA, 0) if q1 <= 72 else (SWB, 72)
        lab = a.label("L_wo")
        a(f"""
        s_add_u32 s{sA}, s{sLI}, {q0}
        {lab}:
        s_lshl_b32 m0, s{sA}, 10
        s_sub_u32 s{sT}, s{sA}, {base}
        s_mul_i32 s{sT}, s{sT}, {8*1152}
        buffer_load_dwordx4 v{vWO}, s[{srd_}:{srd_+3}], s{sT} offen lds
        s_add_u32 s{sA}, s{sA}, 4
        s_cmp_lt_u32 s{sA}, {q1}
        s_cbranch_scc1 {lab}
        """)

    def pf8(tag, xs, ws):
        a(f"""
        s_lshr_b32 s{sT}, s{sP}, 3
        s_xor_b32 s{sT}, s{sT}, s{sP}
        s_bitcmp1_b32 s{sT}, 0
        s_cbranch_scc1 L_pd{tag}
        s_lshr_b32 s{sT}, s{sP}, 1
        s_lshl_b32 s{sT}, s{sT}, 3
        s_add_u32 s{sT}, s{sT}, s{sTG}               ; 0..127
        s_cmp_eq_u32 s{sLI}, 0
        s_cbranch_scc0 L_pw{tag}
        v_and_b32 v{vT[5]}, 3, v{vL}
        v_min_u32 v{vT[5]}, {xs[1] - xs[0] - 1}, v{vT[5]}
        v_lshrrev_b32 v{vT[4]}, 2, v{vL}
        v_mul_u32_u24 v{vT[4]}, 1152, v{vT[4]}
        v_lshl_add_u32 v{vT[5]}, v{vT[5]}, 7, v{vT[4]}
        s_mul_i32 s{sT}, s{sT}, {16*1152}
        buffer_load_dword v{vT[6]}, v{vT[5]}, s[{SX}:{SX+3}], s{sT} offen offset:{128*xs[0]}
        s_branch L_pe{tag}
        L_pw{tag}:
        s_and_b32 s{sT}, s{sT}, 63
        """)
        for q, (c0, c1) in enumerate(ws):
            a(f"""
            s_cmp_eq_u32 s{sLI}, {q+1}
            s_cbranch_scc0 L_pn{tag}{q}
            v_min_u32 v{vT[5]}, {27*(c1-c0) - 1}, v{vL}
            v_lshlrev_b32 v{vT[5]}, 7, v{vT[5]}
            s_mul_i32 s{sT}, s{sT}, {(c1-c0)*3456}
            s_add_u32 s{sT}, s{sT}, {c0*64*3456}
            buffer_load_dword v{vT[6]}, v{vT[5]}, s[{SW}:{SW+3}], s{sT} offen
            s_branch L_pe{tag}
            L_pn{tag}{q}:
            """)
        a(f"""
        L_pd{tag}:
        s_mov_b64 exec, 1
        buffer_load_ushort v{vT[6]}, v{vT[0]}, s[{SG}:{SG+3}], 0 offen
        s_mov_b64 exec, -1
        L_pe{tag}:
        """)

    a.sec("loader")
    a("s_setprio 3")
    stamp(a, 1, mode=9)
    a(dma_x(0))
    stamp(a, 2, mode=9)
    stamp(a, 3, mode=9)
    a(dma_w(0))
    stamp(a, 4, mode=9)
    common()
    a(f"""
    v_lshlrev_b32 v{vT[0]}, 1, v{vL}
    s_lshl_b32 s{sT}, s{sLI}, 7
    buffer_load_ushort v{vGt[0]}, v{vT[0]}, s[{SG}:{SG+3}], s{sT} offen
    buffer_load_ushort v{vGt[1]}, v{vT[0]}, s[{SG}:{SG+3}], s{sT} offen offset:512
    buffer_load_ushort v{vGt[2]}, v{vT[0]}, s[{SG}:{SG+3}], s{sT} offen offset:1024
    """)
    a(f"""
    v_and_b32 v{vT[2]}, 3, v{vL}
    v_xor_b32 v{vT[2]}, 3, v{vT[2]}
    v_lshlrev_b32 v{vT[2]}, 6, v{vT[2]}
    v_lshl_add_u32 v{vGA}, v{vL}, 8, v{vT[2]}
    v_add_u32 v{vGA}, {32768 + 48}, v{vGA}
    v_and_b32 v{vT[2]}, 8, v{vL}
    v_lshlrev_b32 v{vT[2]}, 2, v{vT[2]}
    v_xor_b32 v{vGA}, v{vGA}, v{vT[2]}
    """)
    if DPF == 8:
        pf8(0, (2, 6), [(2, 4), (4, 6)])
        a(dma_x(1)); a(dma_w(1))
    elif DPF == 9:
        pf8(0, (2, 5), [(2, 4), (4, 5)])
        a(dma_x(1)); a(dma_w(1))
    elif DPF == 7:
        a(f"""
        s_cmp_eq_u32 s{sLI}, 0
        s_cbranch_scc0 L_e1
        v_and_b32 v{vT[5]}, 7, v{vL}
        v_lshrrev_b32 v{vT[4]}, 3, v{vL}
        v_mul_u32_u24 v{vT[4]}, 1152, v{vT[4]}
        v_lshl_add_u32 v{vT[5]}, v{vT[5]}, 7, v{vT[4]}
        s_mul_i32 s{sT}, s2, {8*1152}
        buffer_load_dword v{vT[6]}, v{vT[5]}, s[{SX}:{SX+3}], s{sT} offen offset:128
        s_branch L_e4
        L_e1:
        s_cmp_eq_u32 s{sLI}, 3
        s_cbranch_scc1 L_e2
        v_lshlrev_b32 v{vT[5]}, 7, v{vL}
        s_and_b32 s{sT}, s{sP}, 15
        s_lshl_b32 s{sT}, s{sT}, 3
        s_add_u32 s{sT}, s{sT}, s{sTG}
        s_lshl_b32 s{sT}, s{sT}, 1
        s_add_u32 s{sT}, s{sT}, s{sLI}
        s_mul_i32 s{sT}, s{sT}, {2*3456}
        s_add_u32 s{sT}, s{sT}, {62*3456}
        s_mov_b32 exec_hi, 0x3fffff
        buffer_load_dword v{vT[6]}, v{vT[5]}, s[{SW}:{SW+3}], s{sT} offen
        s_branch L_e4
        L_e2:
        v_lshlrev_b32 v{vT[5]}, 20, v{vL}
        s_lshl_b32 s{sT}, s2, 7
        s_mov_b64 exec, 0xffff
        buffer_load_dword v{vT[6]}, v{vT[5]}, s[{SWS}:{SWS+3}], s{sT} offen sc1
        L_e4:
        s_mov_b64 exec, -1
        """)
        pre = int(os.environ.get("PRE", "0"))
        if pre:
            a(dma_x(1))
    else:
        a(f"""
        s_cmp_eq_u32 s{sLI}, 0
        s_cbranch_scc0 L_e1
        v_and_b32 v{vT[5]}, 1, v{vL}
        v_bfe_u32 v{vT[4]}, v{vL}, 1, 3
        v_mul_u32_u24 v{vT[4]}, 1152, v{vT[4]}
        v_lshl_add_u32 v{vT[5]}, v{vT[5]}, 7, v{vT[4]}
        s_mul_i32 s{sT}, s2, {8*1152}
        s_mov_b64 exec, 0xffff
        buffer_load_dword v{vT[6]}, v{vT[5]}, s[{SX}:{SX+3}], s{sT} offen offset:256
        s_branch L_e4
        L_e1:
        s_cmp_eq_u32 s{sLI}, 1
        s_cbranch_scc0 L_e2
        v_lshlrev_b32 v{vT[5]}, 7, v{vL}
        s_and_b32 s{sT}, s{sP}, 15
        s_lshl_b32 s{sT}, s{sT}, 3
        s_add_u32 s{sT}, s{sT}, s{sTG}
        s_mul_i32 s{sT}, s{sT}, 3456
        s_add_u32 s{sT}, s{sT}, {128*3456}
        s_mov_b64 exec, 0x7ffffff
        buffer_load_dword v{vT[6]}, v{vT[5]}, s[{SW}:{SW+3}], s{sT} offen
        s_branch L_e4
        L_e2:
        s_mov_b64 exec, 1
        buffer_load_ushort v{vT[6]}, v{vT[0]}, s[{SG}:{SG+3}], 0 offen
        L_e4:
        s_mov_b64 exec, -1
        """)
        a(dma_x(1)); a(dma_w(1))
    stamp(a, 5, mode=9)
    a(f"""
    v_lshlrev_b32 v{vT[2]}, 2, v{vL}
    v_add_u32 v{vT[2]}, {SYNC}, v{vT[2]}
    v_mov_b32 v{CP}, 0
    v_mov_b32 v{CP+1}, 0
    v_mov_b32 v{CP+2}, 0
    v_mov_b32 v{CP+3}, 0
    ds_write_b32 v{vT[2]}, v{CP}
    s_min_u32 s{sT}, s{sLI}, 2
    s_mul_i32 s{sT}, s{sT}, {G_SLOT}
    v_add_u32 v{vT[2]}, s{sT}, v{vGA}
    s_cmp_eq_u32 s{sLI}, 3
    s_cbranch_scc1 L_nz
    ds_write_b128 v{vT[2]}, {vr(CP,4)}
    L_nz:
    s_waitcnt vmcnt({13 if DPF != 7 else 9 if pre else 1})
    """)
    for n in range(3):
        a(gate_write(n))
    stamp(a, 6, mode=9)
    a("s_waitcnt lgkmcnt(0)")
    stamp(a, 7, mode=9)
    a("s_barrier")
    stamp(a, 8, mode=9)
    stamp(a, 1)
    if DPF == 7:
        if not pre:
            a(dma_x(1))
        a(dma_w(1))
    a(dma_x(2)); a(dma_w(2))
    if DPF == 8:
        pf8(1, (6, 9), [(6, 8), (8, 9)])
    if DPF == 9:
        pf8(1, (5, 9), [(5, 7), (7, 9)])
    if DPF == 4:
        a(f"""
        s_cmp_eq_u32 s{sLI}, 0
        s_cbranch_scc0 L_lp1
        v_and_b32 v{vT[5]}, 7, v{vL}
        v_min_u32 v{vT[5]}, 4, v{vT[5]}
        v_lshrrev_b32 v{vT[4]}, 3, v{vL}
        v_mul_u32_u24 v{vT[4]}, 1152, v{vT[4]}
        v_lshl_add_u32 v{vT[5]}, v{vT[5]}, 7, v{vT[4]}
        s_mul_i32 s{sT}, s2, {8*1152}
        buffer_load_dword v{vT[6]}, v{vT[5]}, s[{SX}:{SX+3}], s{sT} offen offset:512
        s_branch L_lp2
        L_lp1:
        v_min_u32 v{vT[5]}, 23, v{vL}
        v_lshlrev_b32 v{vT[5]}, 7, v{vT[5]}
        s_and_b32 s{sT}, s{sP}, 15
        s_lshl_b32 s{sT}, s{sT}, 3
        s_add_u32 s{sT}, s{sT}, s{sTG}
        s_mul_i32 s{sT}, s{sT}, 3
        s_add_u32 s{sT}, s{sT}, s{sLI}
        s_mul_i32 s{sT}, s{sT}, {320*3456 // 384}
        s_add_u32 s{sT}, s{sT}, {256*3456 - 320*3456 // 384}
        buffer_load_dword v{vT[6]}, v{vT[5]}, s[{SW}:{SW+3}], s{sT} offen
        L_lp2:
        """)
    vN = 24
    a(f"""
    s_lshl_b32 s{sT}, s{sP}, 12
    s_add_u32 s{sT}, s{sT}, {FLAG_OFF}
    v_lshlrev_b32 v{vN}, 7, v{vL}
    v_add_u32 v{vN}, s{sT}, v{vN}
    v_and_b32 v{vN+1}, 7, v{vL}
    v_lshlrev_b32 v{vN+1}, 12, v{vN+1}
    s_lshl_b32 s{sT}, s{sP}, 7
    s_add_u32 s{sT}, s{sT}, {OFLAG_OFF}
    v_cmp_gt_u32 vcc, 32, v{vL}
    v_add_u32 v{vN+1}, s{sT}, v{vN+1}
    s_cmp_eq_u32 s{sLI}, 3
    v_cndmask_b32 v{vN}, v{vN+1}, v{vN}, vcc
    s_cselect_b32 exec_lo, -1, 1
    s_cselect_b32 exec_hi, 0xff, 0
    buffer_load_dword v{vN+1}, v{vN}, s[{SWS}:{SWS+3}], 0 offen sc1
    s_mov_b64 exec, -1
    """)
    for n in range(8):
        extra = (2 if DPF in (4, 8, 9) else 1) if n < 2 else 1 if n >= 6 else 0
        a(f"s_waitcnt vmcnt({(12 if n + 2 <= 8 else 0) + extra}) lgkmcnt(0)")
        if STAMPS == 7:
            a(f"s_memtime s[90:91]\ns_waitcnt lgkmcnt(0)\ns_barrier\ns_memtime s[94:95]\ns_waitcnt lgkmcnt(0)\ns_sub_u32 s90, s94, s90\ns_add_u32 s{74+2*n}, s90, s72")
        elif STAMPS == 8:
            a(f"s_barrier\ns_memtime s[{74+2*n}:{75+2*n}]")
        else:
            a("s_barrier")
        if n + 3 <= 8:
            a(gate_write(n + 3))
            if THR >= 0:
                a(f"""
                s_lshr_b32 s{sT}, s{sP}, 3
                s_xor_b32 s{sT}, s{sT}, s{sP}
                s_bitcmp1_b32 s{sT}, 0
                s_cbranch_scc1 L_th{n}
                s_waitcnt vmcnt({THR + (2 if n == 0 else 0)})
                L_th{n}:
                """)
            a(dma_x(n + 3)); a(dma_w(n + 3))
        if n == 5:
            a(f"""
            s_brev_b32 s{sA}, 1
            s_movk_i32 s{sB}, 0x400
            s_cmp_eq_u32 s{sLI}, 3
            s_cbranch_scc0 L_nn1
            s_mov_b32 s44, -1
            s_movk_i32 s45, 0xff
            """)
            for b in range(6):
                a(f"""
                v_and_b32 v{vN}, {1 << b}, v{vN+1}
                v_cmp_ne_u32 vcc, 0, v{vN}
                s_nop 0
                s_and_b64 s[46:47], s[44:45], vcc
                s_andn2_b64 s[44:45], s[44:45], vcc
                s_bcnt1_i32_b64 s{sT}, s[46:47]
                s_bcnt1_i32_b64 s{sT2}, s[44:45]
                s_cmp_lt_u32 s{sT}, s{sT2}
                s_cselect_b64 s[44:45], s[46:47], s[44:45]
                s_cselect_b32 s{sT}, {1 << b}, 0
                s_or_b32 s{sA}, s{sA}, s{sT}
                """)
            a(f"""
            s_lshl_b32 s{sB}, s{sP}, 2
            L_nn1:
            v_mov_b32 v{vN}, s{sA}
            v_mov_b32 v{vN+1}, 0
            v_mov_b32 v{vN+2}, s{sA}
            v_mov_b32 v{vN+3}, s{sB}
            s_mov_b64 exec, 1
            buffer_atomic_cmpswap v[{vN}:{vN+1}], v{vN+3}, s[{SD}:{SD+3}], 0 offen sc0 sc1
            s_mov_b64 exec, -1
            """)
        if n == 6:
            lab = a.label("L_cr")
            a(f"""
            s_cmp_ge_u32 s{sLI}, 2
            s_cbranch_scc1 {lab}
            s_cmp_eq_u32 s{sLI}, 0
            s_cselect_b32 s{sT}, 0x3f803f80, 0
            s_cselect_b32 s{sT2}, {14*16}, 0
            s_add_u32 s{sT2}, s{sT2}, {2560 + 4*16}
            v_and_b32 v{vT[0]}, 7, v{vL}
            v_mul_u32_u24 v{vT[0]}, {VH}, v{vT[0]}
            v_lshrrev_b32 v{vT[2]}, 3, v{vL}
            v_mul_u32_u24 v{vT[2]}, {TILE}, v{vT[2]}
            v_lshrrev_b32 v{vT[3]}, 4, v{vL}
            v_lshl_add_u32 v{vT[2]}, v{vT[3]}, 9, v{vT[2]}
            v_add3_u32 v{vT[0]}, v{vT[0]}, v{vT[2]}, s{sT2}
            v_mov_b32 v{CP}, s{sT}
            v_mov_b32 v{CP+1}, s{sT}
            v_mov_b32 v{CP+2}, s{sT}
            v_mov_b32 v{CP+3}, s{sT}
            ds_write_b128 v{vT[0]}, {vr(CP,4)}
            {lab}:
            """)
    a(f"""
    s_load_dwordx2 s[{SWA}:{SWA+1}], s[0:1], 16          ; A_wo
    s_load_dwordx2 s[{SWB}:{SWB+1}], s[0:1], 40          ; B_wo
    s_load_dwordx2 s[{SO}:{SO+1}], s[0:1], 56            ; out
    s_mov_b32 s{SWA+2}, {WO_BYTES}
    s_mov_b32 s{SWB+2}, {WO_BYTES}
    s_mov_b32 s{SO+2}, {XBYTES}
    s_mov_b32 s{sU}, 0
    s_mov_b32 s{sD3}, {(RING[1]-RING[0]) & 0xffffffff:#x}
    s_mov_b32 s{sD3+1}, {(RING[2]-RING[1]) & 0xffffffff:#x}
    s_mov_b32 s{sD3+2}, {(RING[0]-RING[2]) & 0xffffffff:#x}
    s_mul_i32 s{sT}, s{sLI}, {TPAIR}
    v_add_u32 v{vT[0]}, s{sT}, v{vL16}
    s_add_u32 s{sKVp}, s{sKVp}, s{sT}
    s_mov_b32 s{sM0x}, s{sT}
    s_mul_i32 s{sA}, s{sTG}, {CHUNK}
    s_add_u32 s{sA}, s{sA}, s{sKVp}
    s_lshl_b32 s{sT}, s{sLI}, 10
    s_lshl_b32 s{sB}, s{sP}, 12
    s_add_u32 s{sB}, s{sB}, s{sT}
    s_add_u32 s{sWb}, s{sB}, {FLAG_OFF}
    v_and_b32 v{vFo}, 7, v{vL}
    v_lshlrev_b32 v{vFo}, 7, v{vFo}
    v_mov_b32 v{vT[1]}, {SYNC + 52}
    s_lshl_b32 s{sT}, s{sTG}, 7
    v_mov_b32 v{vT[2]}, s{sT}
    v_lshrrev_b32 v{vT[3]}, 3, v{vL}
    v_mul_u32_u24 v{vT[3]}, 1152, v{vT[3]}
    v_bfe_u32 v{vT[4]}, v{vL}, 4, 1
    v_lshlrev_b32 v{vT[4]}, 2, v{vT[4]}
    v_and_b32 v{vT[5]}, 7, v{vL}
    v_xor_b32 v{vT[5]}, v{vT[5]}, v{vT[4]}
    v_lshl_add_u32 v{vWO}, v{vT[5]}, 4, v{vT[3]}
    s_waitcnt lgkmcnt(0)
    s_barrier
    """)
    stamp(a, 3, True)
    for i in range(10):
        a(f"ds_read_b128 {vr(CP+4*i,4)}, v{vT[0]} offset:{1024*i}")
    for i in range(10):
        if i == 9:
            a("s_mov_b32 exec_hi, 0")
        if i in (4, 8):
            a(f"s_add_u32 s{sA}, s{sA}, 4096")
        a(f"s_waitcnt lgkmcnt({9-i})")
        a(f"buffer_store_dwordx4 {vr(CP+4*i,4)}, v{vL16}, s[{SWS}:{SWS+3}], s{sA} offen offset:{1024*(i&3)} sc1")
    a(f"""
    s_mov_b64 exec, 1
    s_cmp_eq_u32 s{sLI}, 3
    s_cbranch_scc0 L_nn2
    s_waitcnt vmcnt(10)
    v_cmp_eq_u32 vcc, 0, v{vN}
    s_nop 1
    v_cndmask_b32 v{vN}, v{vN}, v{vN+2}, vcc
    ds_write_b32 v{vT[1]}, v{vN}
    L_nn2:
    ds_read_b32 v{vF}, v{vT[1]}
    s_waitcnt lgkmcnt(0)
    v_cmp_eq_u32 vcc, 0, v{vF}
    s_cbranch_vccnz L_nn2
    v_readfirstlane_b32 s{sNON}, v{vF}
    s_waitcnt vmcnt(0)
    buffer_store_dword v{vF}, v{vT[2]}, s[{SWS}:{SWS+3}], s{sWb} offen sc1
    s_mov_b64 exec, -1
    s_mov_b32 s{sRDY}, 0
    s_mov_b32 s{sN}, 0
    s_lshl_b32 s{sXb}, 1, s{sTG}
    L_ll:
    s_add_u32 s{sM0x}, s{sM0x}, s{sD3}
    s_mov_b32 s{sT}, s{sD3}
    s_mov_b32 s{sD3}, s{sD3+1}
    s_mov_b32 s{sD3+1}, s{sD3+2}
    s_mov_b32 s{sD3+2}, s{sT}
    L_poll:
    s_andn2_b32 s{sT}, s{sRDY}, s{sXb}
    s_cbranch_scc1 L_rdy
    buffer_load_dword v{vF}, v{vFo}, s[{SWS}:{SWS+3}], s{sWb} offen sc1
    s_waitcnt vmcnt(0)
    v_cmp_eq_u32 vcc, s{sNON}, v{vF}
    s_sub_u32 s{sSPIN}, s{sSPIN}, 1
    s_nop 0
    s_cselect_b32 s{sRDY}, -1, vcc_lo
    s_and_b32 s{sRDY}, s{sRDY}, 0xff
    s_branch L_poll
    L_rdy:
    s_ff1_i32_b32 s{sC}, s{sT}
    s_bitset1_b32 s{sXb}, s{sC}
    s_mul_i32 s{sA}, s{sC}, {CHUNK}
    s_add_u32 s{sA}, s{sA}, s{sKVp}
    """)
    for i in range(10):
        if i % 4 == 0:
            a(f"s_add_u32 m0, s{sM0x}, {1024*i}")
            a(f"s_add_u32 s{sT}, s{sA}, {1024*i}")
        if i == 9:
            a("s_mov_b32 exec_hi, 0")
        if True:
            a(f"buffer_load_dwordx4 v{vL16}, s[{SWS}:{SWS+3}], s{sT} offen offset:{1024*(i&3)} sc1 lds")
    a(f"""
    s_mov_b32 exec_hi, -1
    L_d9:
    s_cmp_eq_u32 s{sN}, 1
    s_cbranch_scc0 L_ncl
    s_lshl_b32 s{sT}, s{sTG}, 3
    s_lshl_b32 s{sT2}, s{sLI}, 1
    s_add_u32 s{sT}, s{sT}, s{sT2}
    s_mul_i32 s{sA}, s{sT}, {OTILE}
    s_mul_i32 s{sT}, s{sP}, {OPAIR}
    s_add_u32 s{sA}, s{sA}, s{sT}
    s_add_u32 s{sA}, s{sA}, {O_OFF}
    s_add_u32 s{sB}, s{sA}, {OTILE}
    v_mov_b32 v{CP}, -1
    v_mov_b32 v{CP+1}, -1
    v_mov_b32 v{CP+2}, -1
    v_mov_b32 v{CP+3}, -1
    buffer_store_dwordx4 {vr(CP,4)}, v{vL16}, s[{SWS}:{SWS+3}], s{sA} offen sc1
    buffer_store_dwordx4 {vr(CP,4)}, v{vL16}, s[{SWS}:{SWS+3}], s{sA} offen offset:1024 sc1
    buffer_store_dwordx4 {vr(CP,4)}, v{vL16}, s[{SWS}:{SWS+3}], s{sB} offen sc1
    buffer_store_dwordx4 {vr(CP,4)}, v{vL16}, s[{SWS}:{SWS+3}], s{sB} offen offset:1024 sc1
    s_mov_b64 exec, 0xffff
    buffer_store_dwordx4 {vr(CP,4)}, v{vL16}, s[{SWS}:{SWS+3}], s{sA} offen offset:2048 sc1
    buffer_store_dwordx4 {vr(CP,4)}, v{vL16}, s[{SWS}:{SWS+3}], s{sB} offen offset:2048 sc1
    s_mov_b64 exec, -1
    L_ncl:
    s_cmp_eq_u32 s{sLI}, 0
    s_cbranch_scc0 L_nfl
    s_cmp_eq_u32 s{sN}, 2
    s_cbranch_scc0 L_n2
    s_lshl_b32 s{sT}, s{sTG}, 12
    s_lshl_b32 s{sT2}, s{sP}, 7
    s_add_u32 s{sT}, s{sT}, s{sT2}
    s_add_u32 s{sT}, s{sT}, {OFLAG_OFF}
    v_mov_b32 v{vT[3]}, 0
    v_mov_b32 v{vF}, s{sNON}
    s_mov_b64 exec, 1
    buffer_store_dword v{vF}, v{vT[3]}, s[{SWS}:{SWS+3}], s{sT} offen sc1
    s_mov_b64 exec, -1
    L_n2:
    s_cmp_eq_u32 s{sN}, {CLAIM}
    s_cbranch_scc0 L_nfl
    s_and_b32 s{sA}, s2, 7
    v_and_b32 v{vT[5]}, 7, v{vL}
    v_lshlrev_b32 v{vT[4]}, 2, v{vT[5]}
    L_cl:
    s_lshl_b32 s{sT}, s{sA}, 2
    v_mov_b32 v{vT[3]}, s{sT}
    v_mov_b32 v{vF}, 1
    s_mov_b64 exec, 1
    buffer_atomic_add v{vF}, v{vT[3]}, s[{SD}:{SD+3}], 0 offen offset:128 sc0 sc1
    s_mov_b64 exec, -1
    s_waitcnt vmcnt(0)
    v_readfirstlane_b32 s{sB}, v{vF}
    s_nop 3
    s_cmp_lt_u32 s{sB}, 27
    s_cbranch_scc1 L_cl2
    """)
    if STEAL:
        a(f"""
        buffer_load_dword v{vF}, v{vT[4]}, s[{SD}:{SD+3}], 0 offen offset:128 sc1
        s_waitcnt vmcnt(0)
        v_lshl_or_b32 v{vF}, v{vF}, 3, v{vT[5]}
        s_nop 0
        v_readlane_b32 s{sA}, v{vF}, 0
        """)
        for q in range(1, 8):
            a(f"v_readlane_b32 s{sT}, v{vF}, {q}\ns_nop 3\ns_min_u32 s{sA}, s{sA}, s{sT}")
        a(f"""
        s_lshr_b32 s{sT}, s{sA}, 3
        s_and_b32 s{sA}, s{sA}, 7
        s_sub_u32 s{sSPIN}, s{sSPIN}, 1
        s_cselect_b32 s{sT}, 27, s{sT}
        s_cmp_lt_u32 s{sT}, 27
        s_cbranch_scc1 L_cl
        s_mov_b32 s{sSPIN}, {SPIN_LIMIT}
        """)
    a(f"""
    s_movk_i32 s{sB}, 0xff
    L_cl2:
    s_lshl_b32 s{sA}, s{sA}, 8
    s_or_b32 s{sA}, s{sA}, s{sB}
    v_mov_b32 v{vF}, s{sA}
    v_mov_b32 v{vT[3]}, {SYNC + 48}
    ds_write_b32 v{vT[3]}, v{vF}
    s_waitcnt lgkmcnt(0)
    L_nfl:
    s_cmp_eq_u32 s{sN}, {CLAIM + 1}
    s_cbranch_scc0 L_nw3
    v_mov_b32 v{vT[3]}, {SYNC + 48}
    ds_read_b32 v{vF}, v{vT[3]}
    s_waitcnt lgkmcnt(0)
    """)
    unit_decode(vF)
    a(f"""
    s_cmp_ge_u32 s{sU}, 27
    s_cbranch_scc1 L_on1
    s_lshl_b32 s{sT}, s{sCG}, 7
    v_add_u32 v{vWO}, s{sT}, v{vWO}
    """)
    wo_load(38, 42)
    wo_load(80, 121)
    a(f"""
    L_nw3:
    s_cmp_eq_u32 s{sN}, 6
    s_cbranch_scc0 L_on1
    """)
    if CPF2:
        a(f"""
        s_getpc_b64 s[{sA}:{sA+1}]
        L_pc2:
        v_lshlrev_b32 v{vT[3]}, 7, v{vL}
        v_add_u32 v{vT[3]}, L_fin - L_pc2 - 64, v{vT[3]}
        v_min_u32 v{vT[3]}, L_exact - L_pc2, v{vT[3]}
        global_load_dword v{vT[4]}, v{vT[3]}, s[{sA}:{sA+1}]
        """)
    a(f"""
    s_cmp_ge_u32 s{sU}, 27
    s_cbranch_scc1 L_on1
    v_mul_u32_u24 v{vT[3]}, 1152, v{vL}
    s_lshl_b32 s{sT}, s{sCG}, 7
    s_mul_i32 s{sT2}, s{sLI}, {48*1152}
    s_add_u32 s{sT2}, s{sT2}, s{sT}
    s_add_u32 s{sT2}, s{sT2}, {392*1152}
    buffer_load_dword v{vT[4]}, v{vT[3]}, s[{SWB}:{SWB+3}], s{sT2} offen
    """)
    if TLBW and int(os.environ.get("OTOUCH", "0")):
        a(f"""
        s_mul_i32 s{sT}, s{sTG2}, {256*1152}
        v_lshlrev_b32 v{vT[3]}, 2, v{vT[3]}
        buffer_load_dword v{vT[4]}, v{vT[3]}, s[{SO}:{SO+3}], s{sT} offen
        """)
    a(f"""
    v_and_b32 v{vT[0]}, 31, v{vL}
    v_lshlrev_b32 v{vT[3]}, 7, v{vT[0]}
    v_lshlrev_b32 v{vT[0]}, 2, v{vT[0]}
    s_lshl_b32 s{sB}, s{sTG2}, 12
    s_add_u32 s{sB}, s{sB}, {OFLAG_OFF}
    L_on0:
    buffer_load_dword v{vF}, v{vT[0]}, s[{SD}:{SD+3}], 0 offen sc1
    buffer_load_dword v{vT[4]}, v{vT[3]}, s[{SWS}:{SWS+3}], s{sB} offen sc1
    s_waitcnt vmcnt(0)
    v_cmp_le_i32 vcc, 0, v{vF}
    v_cmp_ne_u32 s[44:45], v{vF}, v{vT[4]}
    s_sub_u32 s{sSPIN}, s{sSPIN}, 1
    s_cbranch_scc1 L_on1
    s_or_b64 vcc, vcc, s[44:45]
    s_cbranch_vccz L_on1
    s_sleep 8
    s_branch L_on0
    L_on1:
    s_waitcnt vmcnt(0)
    """)
    if STAMPS == 1:
        a(f"s_cmp_eq_u32 s{sN}, 0\ns_cbranch_scc0 L_st4")
        stamp(a, 4)
        a("L_st4:")
    if STAMPS == 6:
        a("s_barrier\ns_memtime s[88:89]\ns_waitcnt lgkmcnt(0)")
        for q in range(7):
            a(f"s_cmp_eq_u32 s{sN}, {q}\ns_cselect_b32 s{74+2*q}, s88, s{74+2*q}")
    elif STAMPS == 5:
        a("s_memtime s[88:89]\ns_waitcnt lgkmcnt(0)\ns_barrier\ns_memtime s[90:91]\ns_waitcnt lgkmcnt(0)\ns_sub_u32 s88, s90, s88\ns_add_u32 s88, s88, s72")
        for q in range(7):
            a(f"s_cmp_eq_u32 s{sN}, {q}\ns_cselect_b32 s{74+2*q}, s88, s{74+2*q}")
    else:
        a("s_barrier")
    a(f"""
    s_add_u32 s{sN}, s{sN}, 1
    s_cmp_lt_u32 s{sN}, 7
    s_cbranch_scc1 L_ll
    s_mov_b32 s{sSPIN}, {SPIN_LIMIT}
    s_cmp_ge_u32 s{sU}, 27
    s_cbranch_scc1 L_end
    """)
    wo_load(0, 38)
    wo_load(42, 72)
    wo_load(72, 80)
    a(f"""
    v_and_b32 v12, 7, v{vL}
    v_lshlrev_b32 v12, 2, v12
    v_add_u32 v12, {SYNC}, v12
    L_pg:
    s_sleep 2
    ds_read_b32 v13, v12
    s_waitcnt lgkmcnt(0)
    v_cmp_gt_u32 vcc, 7, v13
    s_cbranch_vccnz L_pg
    """)
    wo_load(121, 144)
    a(f"""
    s_lshl_b32 s{sT}, s{sLI}, 2
    s_add_u32 s{sT}, s{sT}, {SYNC + 32}
    v_mov_b32 v12, s{sT}
    v_mov_b32 v13, 8
    s_waitcnt vmcnt(0)
    ds_write_b32 v12, v13
    s_setprio 0
    s_branch L_tail
    """)
    a.sec("tail")

    vOH = 5
    vWm = [3, 4]; vWh = [8, 9]
    vT = [10, 11, 12, 13, 14, 6]
    vPw, vPr, vOut, vPr2, vDw, vDr = 163, 164, 165, 166, 167, 7
    WS_ = [16, 32]
    OF = 56
    ACC = [128, 144]
    PSTR = 1024 + 32 if ROWOUT else 1024
    DEPTH = int(os.environ.get("DEPTH", "2"))
    TPRIO = int(os.environ.get("TPRIO", "0"))

    ORDER = ([0, 2, 4, 6, 1, 3, 5, 7] if NORD else list(range(8))) + [8]

    def omain(i, j):
        return OF + 8 * i + 4 * j
    OHI = OF + 64

    def issue(i):
        a(f"""
        s_add_u32 s{sT}, s{(sFl, sWS)[i & 1] if NORD else sFl}, {i*OPAIR}
        buffer_load_dwordx4 {vr(omain(i,0),4)}, v{vL16}, s[{SWS}:{SWS+3}], s{sT} offen sc1
        buffer_load_dwordx4 {vr(omain(i,1),4)}, v{vL16}, s[{SWS}:{SWS+3}], s{sT} offen offset:1024 sc1
        buffer_load_dword v{OHI+i}, v{vOH}, s[{SWS}:{SWS+3}], s{sT} offen offset:2048 sc1
        """)

    a(f"""
    L_tail:
    s_cmp_ge_u32 s{sU}, 27
    s_cbranch_scc1 L_end
    s_cmp_ge_u32 s{sT0}, 8
    s_cbranch_scc1 L_end
    v_lshlrev_b32 v{vOH}, 2, v{vL}
    s_mov_b32 s{sI}, 0
    """)
    if NORD:
        a(f"""
        s_and_b32 s{sMode}, s{sKQ}, 1
        s_mul_i32 s{sT}, s{sMode}, {OPAIR}
        s_sub_u32 s{sWS}, s{sFl}, s{sT}
        s_add_u32 s{sFl}, s{sFl}, s{sT}
        """)
    a(f"""
    v_min_u32 v{vT[2]}, 11, v{vL}
    """)
    if LEARLY:
        a(f"""
        s_cmp_lt_u32 s{sWV}, 4
        s_cselect_b32 s{sT}, 8, 0
        v_max_u32 v{vT[2]}, s{sT}, v{vT[2]}
        """)
    a(f"""
    v_lshlrev_b32 v{vT[2]}, 2, v{vT[2]}
    v_add_u32 v{vT[2]}, {SYNC}, v{vT[2]}
    """)
    tFo, tFd, vA = 160, 161, [48, 49]
    vH = [50, 51, 52, 53]
    sOff, sLate = [sPd, sBt], sCur
    if DYN:
        a(f"""
        s_lshl_b32 s{sT}, s{sTT}, 2
        s_add_u32 s{sT}, s{sT}, {SYNC + 112}
        v_mov_b32 v{vT[4]}, s{sT}
        v_and_b32 v{tFo}, 31, v{vL}
        v_mul_u32_u24 v{tFo}, {OPAIR}, v{tFo}
        v_lshrrev_b32 v{tFd}, 5, v{vL}
        v_lshl_add_u32 v{tFo}, v{tFd}, 7, v{tFo}
        L_ws1:
        s_cmp_lt_u32 s{sWV}, {0 if ATOM == 2 else 3}
        s_cbranch_scc0 L_ws2
        {f"v_mov_b32 v{tFd}, 0" if ATOM else ""}
        {f"buffer_atomic_or v{tFd}, v{tFo}, s[{SWS}:{SWS+3}], s{sFl} offen offset:2048 sc0 sc1" if ATOM else f"buffer_load_dword v{tFd}, v{tFo}, s[{SWS}:{SWS+3}], s{sFl} offen offset:2048 sc1"}
        s_waitcnt vmcnt(0)
        v_cmp_eq_u32 vcc, -1, v{tFd}
        s_nop 1
        s_nor_b32 s{sT}, vcc_lo, vcc_hi
        v_mov_b32 v{tFd}, s{sT}
        ds_write_b32 v{vT[4]}, v{tFd}
        L_ws2:
        ds_read_b32 v{vT[3]}, v{vT[2]}
        ds_read_b32 v{tFd}, v{vT[4]}
        s_waitcnt lgkmcnt(0)
        v_cmp_gt_u32 vcc, 8, v{vT[3]}
        s_cbranch_vccz L_go
        s_sleep 1
        s_branch L_ws1
        L_go:
        v_readfirstlane_b32 s{sRDY}, v{tFd}
        v_and_b32 v{tFo}, 7, v{vL}
        v_mul_u32_u24 v{tFo}, {OPAIR}, v{tFo}
        v_bfe_u32 v{tFd}, v{vL}, 3, 1
        v_lshl_add_u32 v{tFo}, v{tFd}, 7, v{tFo}
        s_lshl_b32 s{sT}, s{sKQ}, 3
        s_lshr_b32 s{sRDY}, s{sRDY}, s{sT}
        s_mov_b32 s{sLate}, 0
        s_and_b32 s{sRDY}, s{sRDY}, 0xff
        s_mov_b32 s{sT}, s{sRDY}
        s_cbranch_scc0 L_pw0
        L_f0:
        """)
    else:
        a(f"""
        L_ws1:
        ds_read_b32 v{vT[3]}, v{vT[2]}
        s_waitcnt lgkmcnt(0)
        v_cmp_gt_u32 vcc, 8, v{vT[3]}
        s_cbranch_vccz L_go
        s_sleep 1
        s_branch L_ws1
        L_go:
        """)
    stamp(a, 3, mode=3)

    def loads(i):
        a(f"""
        buffer_load_dwordx4 {vr(omain(i,0),4)}, v{vL16}, s[{SWS}:{SWS+3}], s{sOff[i&1]} offen sc1
        buffer_load_dwordx4 {vr(omain(i,1),4)}, v{vL16}, s[{SWS}:{SWS+3}], s{sOff[i&1]} offen offset:1024 sc1
        buffer_load_dword v{OHI+i}, v{vOH}, s[{SWS}:{SWS+3}], s{sOff[i&1]} offen offset:2048 sc1
        """)

    def fetch_o(i):
        a(f"""
        s_ff1_i32_b32 s{sB}, s{sT}
        s_bitset1_b32 s{sI}, s{sB}
        s_mul_i32 s{sOff[i&1]}, s{sB}, {OPAIR}
        s_add_u32 s{sOff[i&1]}, s{sOff[i&1]}, s{sFl}
        """)
        loads(i)
        a(f"s_mul_i32 s{sB}, s{sB}, {36*128}")

    def poll():
        if ATOM:
            a(f"""
            v_mov_b32 v{tFd}, 0
            s_mov_b64 exec, 0xffff
            buffer_atomic_or v{tFd}, v{tFo}, s[{SWS}:{SWS+3}], s{sFl} offen offset:2048 sc0 sc1
            s_mov_b64 exec, -1
            """)
        else:
            a(f"buffer_load_dword v{tFd}, v{tFo}, s[{SWS}:{SWS+3}], s{sFl} offen offset:2048 sc1")
        a(f"""
        s_waitcnt vmcnt(0)
        v_cmp_eq_u32 vcc, -1, v{tFd}
        s_sub_u32 s{sSPIN}, s{sSPIN}, 1
        s_cselect_b32 s{sT}, 0, vcc_lo
        s_cselect_b32 s{sSPIN}, 0, s{sSPIN}
        s_lshr_b32 s{sT2}, s{sT}, 8
        s_or_b32 s{sT}, s{sT}, s{sT2}
        s_andn2_b32 s{sRDY}, 0xff, s{sT}
        """)

    if DYN:
        fetch_o(0)
    else:
        for i in range(DEPTH):
            issue(ORDER[i])
    a(f"""
    v_and_b32 v{vT[0]}, 31, v{vL}                ; tau
    v_lshrrev_b32 v{vT[1]}, 5, v{vL}             ; h
    v_bfe_u32 v{vT[2]}, v{vL}, 2, 2              ; r
    v_and_b32 v{vT[3]}, 3, v{vL}                 ; c
    v_bfe_u32 v{vT[4]}, v{vL}, 4, 1              ; sub
    v_lshlrev_b32 v{vT[3]}, 3, v{vT[3]}
    v_lshl_add_u32 v{vT[3]}, v{vT[4]}, 5, v{vT[3]}
    s_mul_i32 s{sT}, s{sKQ}, {288*128}
    v_add_u32 v{vT[3]}, s{sT}, v{vT[3]}
    v_lshrrev_b32 v{vT[4]}, 1, v{vT[2]}          ; r>>1
    v_lshl_add_u32 v{vT[5]}, v{vT[1]}, 2, v{vT[2]}
    v_lshl_add_u32 v{vT[5]}, v{vT[5]}, 7, v{vT[3]}
    v_lshl_add_u32 v{vWm[0]}, v{vT[4]}, 6, v{vT[5]}
    """)
    vWo = [48, 49]
    if NORD:
        a(f"""
        s_mul_i32 s{sT}, s{sMode}, {36*128}
        v_subrev_u32 v{vWo[0]}, s{sT}, v{vWm[0]}
        v_xor_b32 v{vWo[1]}, 64, v{vWo[0]}
        v_add_u32 v{vWm[0]}, s{sT}, v{vWm[0]}
        v_xor_b32 v{vT[4]}, s{sMode}, v{vT[4]}
        """)
    a(f"""
    v_xor_b32 v{vWm[1]}, 64, v{vWm[0]}
    {f'v_mov_b32 v{vT[5]}, v{vT[1]}' if DYN else f'v_lshl_add_u32 v{vT[5]}, v{vT[4]}, 1, v{vT[1]}'}
    v_mul_u32_u24 v{vT[5]}, 18, v{vT[5]}
    v_and_b32 v{vT[2]}, 1, v{vT[2]}
    v_add3_u32 v{vT[5]}, v{vT[5]}, v{vT[2]}, 16
    v_lshl_add_u32 v{vT[5]}, v{vT[5]}, 7, v{vT[3]}
    v_lshl_add_u32 v{vWh[0]}, v{vT[1]}, 6, v{vT[5]}
    v_xor_b32 v{vWh[1]}, 64, v{vWh[0]}
    s_mul_i32 s{sT}, s{sTT}, {8*PSTR}
    s_mul_i32 s{sT2}, s{sKQ}, {288*128}
    s_add_u32 s{sA}, s{sT}, s{sT2}
    v_add_u32 v{vPw}, s{sA}, v{vL16}
    """)
    if ROWOUT:
        a(f"""
        s_lshl_b32 s{sT2}, s{sKQ}, 7
        s_add_u32 s{sA}, s{sT}, s{sT2}
        v_and_b32 v{vT[2]}, 7, v{vL}
        v_lshrrev_b32 v{vT[3]}, 3, v{vL}
        v_mul_u32_u24 v{vPr}, {PSTR}, v{vT[2]}
        v_lshl_add_u32 v{vPr}, v{vT[3]}, 4, v{vPr}
        v_add_u32 v{vPr}, s{sA}, v{vPr}
        v_mul_u32_u24 v{vOut}, 1152, v{vT[3]}
        v_lshl_add_u32 v{vOut}, v{vT[2]}, 4, v{vOut}
        """)
    else:
        a(f"""
        s_lshl_b32 s{sT2}, s{sKQ}, 11
        s_add_u32 s{sA}, s{sT}, s{sT2}
        v_add_u32 v{vPr}, s{sA}, v{vL16}
        v_mul_u32_u24 v{vOut}, 1152, v{vT[0]}
        v_lshl_add_u32 v{vOut}, v{vT[1]}, 4, v{vOut}
        """)
    a(f"""
    v_add_u32 v{vPr2}, {2*288*128}, v{vPr}
    s_lshl_b32 s{sT}, s{sWV}, 2
    s_add_u32 s{sT}, s{sT}, {SYNC + 64}
    v_mov_b32 v{vDw}, s{sT}
    s_sub_u32 s{sT}, s{sT0}, s{sTT}
    s_cmp_eq_u32 s{sT}, 6
    s_cselect_b32 s{sT}, 1, 2
    v_min_u32 v{vDr}, s{sT}, v{vL}
    s_mul_i32 s{sT}, s{sKQ}, 12
    s_add_u32 s{sT}, s{sT}, {SYNC + 64}
    v_lshlrev_b32 v{vDr}, 2, v{vDr}
    v_add_u32 v{vDr}, s{sT}, v{vDr}
    s_lshl_b32 s{sT}, s{sTG2}, 8
    s_lshl_b32 s{sT2}, s{sT0}, 5
    s_add_u32 s{sT}, s{sT}, s{sT2}
    s_mul_i32 s{sOm}, s{sT}, 1152
    s_lshl_b32 s{sT}, s{sCG}, 7
    s_add_u32 s{sOm}, s{sOm}, s{sT}
    s_mul_i32 s{sT}, s{sKQ}, {8*1152 if ROWOUT else 32}
    s_add_u32 s{sOm}, s{sOm}, s{sT}
    """)
    for r in range(ACC[0], ACC[0] + 32):
        a(f"v_mov_b32 v{r}, 0")
    stamp(a, 7)
    stamp(a, 4, mode=3)

    def wreads(blk, st):
        for f in range(2):
            b = WS_[st] + 8 * f
            m = 2 * blk + f
            for ct in range(2):
                if m < 16:
                    ad = (vWo if NORD and blk & 1 else vWm)[ct ^ (m & 1)]
                    o0 = m * 18 * 128; o1 = o0 + 8 * 128
                else:
                    ad = vWh[ct]
                    o0 = (m - 16) * 8 * 18 * 128; o1 = o0 + 4 * 18 * 128
                a(f"ds_read_b64_tr_b16 {vr(b+4*ct,2)}, v{ad} offset:{o0}")
                a(f"ds_read_b64_tr_b16 {vr(b+4*ct+2,2)}, v{ad} offset:{o1}")

    def verify(i, skip):
        o0, o1 = omain(i, 0), omain(i, 1)
        a(f"""
        v_max3_u32 v{vT[2]}, v{o0}, v{o0+1}, v{o0+2}
        v_max3_u32 v{vT[3]}, v{o0+3}, v{o1}, v{o1+1}
        v_max3_u32 v{vT[2]}, v{vT[2]}, v{o1+2}, v{o1+3}
        v_max3_u32 v{vT[2]}, v{vT[2]}, v{vT[3]}, v{OHI+i}
        v_cmp_eq_u32 vcc, -1, v{vT[2]}
        s_cbranch_vccnz {skip}
        s_bitset1_b32 s{sI}, {i}
        """)

    def mm(st, o0, o1):
        for f, o in ((0, o0), (1, o1)):
            for ct in range(2):
                a(f"v_mfma_f32_32x32x16_bf16 {vr(ACC[ct],16)}, {vr(WS_[st]+8*f+4*ct,4)}, {vr(o,4)}, {vr(ACC[ct],16)}")

    def fetch_w(i):
        a(f"""
        v_add_u32 v{vA[0]}, s{sB}, v{vWm[0]}
        v_xor_b32 v{vA[1]}, 64, v{vA[0]}
        """)
        for f in range(2):
            b = WS_[i & 1] + 8 * f
            for ct in range(2):
                a(f"ds_read_b64_tr_b16 {vr(b+4*ct,2)}, v{vA[ct ^ f]} offset:{f*18*128}")
                a(f"ds_read_b64_tr_b16 {vr(b+4*ct+2,2)}, v{vA[ct ^ f]} offset:{f*18*128 + 1024}")
        if i & 1:
            a(f"v_add_u32 v{vT[4]}, s{sB}, v{vWh[0]}")
            a(f"v_cndmask_b32 v{vH[i>>1]}, v{vH[i>>1]}, v{vT[4]}, s[{sMASK}:{sMASK+1}]")
        else:
            a(f"v_add_u32 v{vH[i>>1]}, s{sB}, v{vWh[0]}")

    if DYN:
        a(f"s_mov_b32 s{sMASK}, 0xff00ff00\ns_mov_b32 s{sMASK+1}, 0xff00ff00")
        fetch_w(0)
        for i in range(8):
            a(f"L_t{i}:")
            if i < 7:
                if i >= 7 - DSPEC:
                    a(f"s_movk_i32 s{sRDY}, 0xff")
                a(f"""
                s_andn2_b32 s{sT}, s{sRDY}, s{sI}
                s_waitcnt lgkmcnt(0)
                s_cbranch_scc0 L_lt{i}
                L_f{i+1}:
                """)
                fetch_o(i + 1)
                fetch_w(i + 1)
                a(f"""
                s_cmp_eq_u32 s{sLate}, 1
                s_mov_b32 s{sLate}, 0
                s_cbranch_scc1 L_t{i+1}
                s_waitcnt vmcnt(3)
                """)
            else:
                a("s_waitcnt lgkmcnt(0)")
                for q in range(4):
                    b = WS_[0] + 8 * (q >> 1) + 2 * (q & 1)
                    a(f"ds_read_b64_tr_b16 {vr(b,2)}, v{vH[q]}")
                    a(f"v_xor_b32 v{vT[4]}, 64, v{vH[q]}")
                    a(f"ds_read_b64_tr_b16 {vr(b+4,2)}, v{vT[4]}")
                a("s_waitcnt vmcnt(0)")
            o0, o1 = omain(i, 0), omain(i, 1)
            a(f"""
            L_p{i}:
            v_max3_u32 v{vT[2]}, v{o0}, v{o0+1}, v{o0+2}
            v_max3_u32 v{vT[3]}, v{o0+3}, v{o1}, v{o1+1}
            v_max3_u32 v{vT[2]}, v{vT[2]}, v{o1+2}, v{o1+3}
            v_max3_u32 v{vT[2]}, v{vT[2]}, v{vT[3]}, v{OHI+i}
            v_cmp_eq_u32 vcc, -1, v{vT[2]}
            s_cbranch_vccnz L_rl{i}
            L_m{i}:
            """)
            mm(i & 1, o0, o1)
            if i < 7:
                a(f"s_cmp_eq_u32 s{sLate}, 1\ns_cbranch_scc1 L_pc{i+1}")
        a(f"""
        v_mov_b32 v{vT[2]}, 1
        s_waitcnt lgkmcnt(0)
        ds_write_b32 v{vDw}, v{vT[2]}
        """)
    else:
        wreads(0, 0)
        for i in range(8):
            a(f"s_waitcnt vmcnt({3*min(DEPTH-1, 7-i)}) lgkmcnt(0)")
            wreads(ORDER[i + 1], (i + 1) & 1)
            if INPL:
                a(f"s_mov_b32 s{sPd}, {INPL}\nL_v{i}:")
            verify(ORDER[i], f"L_ip{i}" if INPL else "L_abort" if ABORT and i < 7 - ABORT + 1 else f"L_s{i}")
            mm(i & 1, omain(ORDER[i], 0), omain(ORDER[i], 1))
            a(f"L_s{i}:")
            if TPRIO and i in (0, 2, 4):
                a(f"s_setprio {2 - i // 2}")
            if i + DEPTH < 8:
                issue(ORDER[i + DEPTH])
        a(f"""
        L_chk:
        s_cmp_eq_u32 s{sI}, 0xff
        s_cbranch_scc0 L_round
        L_hi:
        v_mov_b32 v{vT[2]}, 1
        s_waitcnt lgkmcnt(0)
        ds_write_b32 v{vDw}, v{vT[2]}
        """)
    mm(0, OHI, OHI + 4)
    stamp(a, 8)
    stamp(a, 7, mode=3)
    a(f"""
    L_qs:
    ds_read_b32 v{vT[3]}, v{vDr}
    s_waitcnt lgkmcnt(0)
    v_cmp_eq_u32 vcc, 0, v{vT[3]}
    s_cbranch_vccnz L_qs
    s_nop 6
    """)
    for i in range(8):
        a(f"ds_write_b128 v{vPw}, {vr(ACC[0]+4*i,4)} offset:{PSTR*i}")
    a("s_waitcnt lgkmcnt(0)")
    a("s_barrier                                    ; BT4")
    stamp(a, 8, True, mode=3)
    for src in range(4):
        for g in range(2):
            a(f"ds_read_b128 {vr(OF+8*src+4*g,4)}, v{vPr if src < 2 else vPr2} offset:{(src&1)*288*128 + g*(512 if ROWOUT else 1024)}")
    a("s_waitcnt lgkmcnt(4)")
    for q in range(8):
        a(f"v_add_f32 v{OF+q}, v{OF+q}, v{OF+8+q}")
    a("s_waitcnt lgkmcnt(0)")
    for q in range(8):
        a(f"v_add_f32 v{OF+16+q}, v{OF+16+q}, v{OF+24+q}")
    for q in range(8):
        a(f"v_add_f32 v{OF+q}, v{OF+q}, v{OF+16+q}")
    for i in range(4):
        a(f"v_cvt_pk_bf16_f32 v{WS_[0]+i}, v{OF+2*i}, v{OF+2*i+1}")
    if not ROWOUT:
        a(f"""
        s_nop 1
        v_permlane32_swap_b32 v{WS_[0]}, v{WS_[0]+2}
        v_permlane32_swap_b32 v{WS_[0]+1}, v{WS_[0]+3}
        """)
    a(f"""
    buffer_store_dwordx4 {vr(WS_[0],4)}, v{vOut}, s[{SO}:{SO+3}], s{sOm} offen {os.environ.get('OUTF', 'sc1')}
    """)
    stamp(a, 9, mode=3)
    a("s_branch L_end")
    if DYN:
        for i in range(8):
            a(f"L_pw{i}:")
            poll()
            a(f"""
            L_pc{i}:
            s_andn2_b32 s{sT}, s{sRDY}, s{sI}
            s_cbranch_scc1 L_f{i}
            s_branch L_pw{i}
            """)
            if i < 7:
                a(f"L_lt{i}:")
                poll()
                a(f"s_mov_b32 s{sLate}, 1\ns_branch L_p{i}")
            a(f"""
            L_rl{i}:
            s_sub_u32 s{sSPIN}, s{sSPIN}, 1
            s_cselect_b32 s{sSPIN}, 0, s{sSPIN}
            s_cbranch_scc1 L_m{i}
            """)
            loads(i)
            a(f"s_waitcnt vmcnt(0)\ns_branch L_p{i}")
    else:
        if INPL:
            for i in range(8):
                a(f"L_ip{i}:\ns_sub_u32 s{sPd}, s{sPd}, 1\ns_cbranch_scc1 L_s{i}")
                issue(ORDER[i])
                a(f"s_waitcnt vmcnt(0)\ns_branch L_v{i}")
        if ABORT:
            a("L_abort:\ns_waitcnt lgkmcnt(0)")
            wreads(8, 0)
        a(f"""
        L_round:
        s_sub_u32 s{sSPIN}, s{sSPIN}, 1
        s_cbranch_scc1 L_hi
        {"s_sleep " + os.environ["TSLEEP"] if "TSLEEP" in os.environ else ""}
        s_not_b32 s{sBt}, s{sI}
        """)
        if int(os.environ.get("HINT", "0")):
            a(f"""
            v_and_b32 v{vT[2]}, 7, v{vL}
            v_mul_u32_u24 v{vT[2]}, {OPAIR}, v{vT[2]}
            v_bfe_u32 v{vT[3]}, v{vL}, 3, 1
            v_lshl_add_u32 v{vT[2]}, v{vT[3]}, 7, v{vT[2]}
            s_mov_b64 exec, 0xffff
            buffer_load_dword v{vT[3]}, v{vT[2]}, s[{SWS}:{SWS+3}], s{sFl} offen offset:2048 sc1
            s_waitcnt vmcnt(0)
            v_cmp_eq_u32 vcc, -1, v{vT[3]}
            s_mov_b64 exec, -1
            s_nop 0
            s_lshr_b32 s{sT}, vcc_lo, 8
            s_or_b32 s{sT}, s{sT}, vcc_lo
            s_andn2_b32 s{sBt}, s{sBt}, s{sT}
            s_and_b32 s{sBt}, s{sBt}, 0xff
            s_cbranch_scc0 L_round
            """)
        stamp(a, 5, mode=3)
        for i in range(8):
            a(f"s_bitcmp1_b32 s{sBt}, {i}\ns_cbranch_scc0 L_ni{i}")
            issue(i)
            a(f"L_ni{i}:")
        for i in range(8):
            a(f"s_bitcmp1_b32 s{sBt}, {i}\ns_cbranch_scc0 L_nc{i}")
            wreads(i, 1)
            a("s_waitcnt vmcnt(0)")
            verify(i, f"L_nc{i}")
            a("s_waitcnt lgkmcnt(0)")
            mm(1, omain(i, 0), omain(i, 1))
            a(f"L_nc{i}:")
        a("s_branch L_chk")
    a.sec("end")
    a("L_end:")
    if DIAG >= 0:
        a(f"""
        s_cmp_eq_u32 s{sWV}, 9
        s_cbranch_scc0 L_done
        s_cmp_lt_u32 s2, {os.environ.get("DIAGWG", "256")}
        s_cbranch_scc0 L_done
        s_waitcnt vmcnt(0) lgkmcnt(0)
        s_memrealtime s[82:83]
        s_waitcnt lgkmcnt(0)
        s_mov_b32 s{sT}, 0
        """)
        if DIAG > 0:
            a(f"""
            s_sub_u32 s{sT}, s{72+2*DIAG}, s96
            s_lshl_b32 s{sT}, s{sT}, 2
            s_cmp_lt_u32 s{sWV}, 4
            s_cselect_b32 s{sT}, 0, s{sT}
            """)
        a(f"""
        s_add_u32 s{sT}, s{sT}, 10000
        L_dg:
        s_sleep 8
        s_memrealtime s[98:99]
        s_waitcnt lgkmcnt(0)
        s_sub_u32 s{sT2}, s98, s96
        s_cmp_lt_u32 s{sT2}, s{sT}
        s_cbranch_scc1 L_dg
        """)
    elif STAMPS:
        a(f"""
        s_waitcnt vmcnt(0) lgkmcnt(0)
        s_memtime s[92:93]
        s_memrealtime s[98:99]
        s_waitcnt lgkmcnt(0)
        s_mov_b64 exec, 1
        s_lshl_b32 s{sT}, s2, 4
        s_add_u32 s{sT}, s{sT}, s{sWV}
        s_lshl_b32 s{sT}, s{sT}, 6
        s_add_u32 s{sT}, s{sT}, {STAMP_OFF}
        v_mov_b32 v0, 0
        """)
        for n in range(14):
            a(f"v_mov_b32 v1, s{72+2*n}")
            a(f"buffer_store_dword v1, v0, s[{SWS}:{SWS+3}], s{sT} offen offset:{4*n}")
            a("s_nop 0")
    a("""
    L_done:
    s_endpgm
    """)
    return name, NV


DOC = '''; ---------------------------------------------------------------------------------------------
; ---------------------------------------------------------------------------------------------
'''


def main():
    out = sys.argv[1] if len(sys.argv) > 1 else f"cdna_kernels/{NAME}.s"
    a = Asm()
    k, nv = gen(a)
    hdr = open(f"cdna_kernels/{NAME}.s.ref").read().split("\n")
    hdr = [l for l in hdr if l.startswith(";") and "@launch" not in l]
    txt = "\n".join(hdr) + "\n"
    txt += f"; @launch grid=(256,1,1) block=(768,1,1) lds={LDS_BYTES}\n"
    txt += DOC
    txt += '.amdgcn_target "amdgcn-amd-amdhsa--gfx950"\n.text\n'
    txt += a.text()
    txt += f""".section .rodata,"a"
.p2align 6
.amdhsa_kernel {k}
  .amdhsa_next_free_vgpr {nv}
  .amdhsa_next_free_sgpr {102 if STAMPS else 72}
  .amdhsa_accum_offset {(nv + 3) // 4 * 4}
  .amdhsa_group_segment_fixed_size 0
  .amdhsa_kernarg_size 80
  .amdhsa_user_sgpr_count 2
  .amdhsa_user_sgpr_kernarg_segment_ptr 1
  .amdhsa_system_sgpr_workgroup_id_x 1
.end_amdhsa_kernel
"""
    open(out, "w").write(txt)


if __name__ == "__main__":
    main()
```

```python
import math, os, struct, sys

NAME = "gated_mix__mha_block__mha_block__prompt"

VH = 320
VG = 2 * VH
TILE = 2048 + 4 * VG
TPAIR = 512 + 2 * TILE
CHUNK = 4 * TPAIR


def toff(t):
    return (t >> 1) * TPAIR + (t & 1) * TILE
KV_OFF = 0
FLAG_OFF = 0x0A00000
OFLAG_OFF = 0x0A20000
O_OFF = 0x0B00000
OPAIR = 2304
OTILE = 32 * OPAIR
WS_USED = 0x1000000
XBYTES = 2048 * 576 * 2
WQKV_BYTES = 576 * 1728 * 2
WO_BYTES = 576 * 576 * 2
CSCALE = (18 ** -0.5) * math.log2(math.e)

STAMPS = int(os.environ.get("STAMPS", "0"))
STAMP_OFF = 0x1000000
if STAMPS:
    WS_USED = 0x1100000
ALIGN = int(os.environ.get("ALIGN", "1"))
STEAL = int(os.environ.get("STEAL", "1"))
TLBW = int(os.environ.get("TLBW", "2"))
DIAG = int(os.environ.get("DIAG", "-1"))
PRIOI = int(os.environ.get("PRIOI", "6"))
VMASK = int(os.environ.get("VMASK", "1"))
VPOS = int(os.environ.get("VPOS", "3"))
CLAIM = int(os.environ.get("CLAIM", "4"))
LEARLY = int(os.environ.get("LEARLY", "0"))
GMIX = int(os.environ.get("GMIX", "0"))
SHIFT = float(os.environ.get("SHIFT", "42"))
CPF2 = int(os.environ.get("CPF2", "0"))
EARLYB = int(os.environ.get("EARLYB", "1"))
BPOS = int(os.environ.get("BPOS", "1"))
THR = int(os.environ.get("THR", "-1"))
ROWOUT = int(os.environ.get("ROWOUT", "1"))
HI4 = int(os.environ.get("HI4", "0"))
DYN = int(os.environ.get("DYN", "0"))
DSPEC = int(os.environ.get("DSPEC", "0"))
ABORT = int(os.environ.get("ABORT", "0"))
ATOM = int(os.environ.get("ATOM", "0"))
NORD = int(os.environ.get("NORD", "1"))
INPL = int(os.environ.get("INPL", "0"))
CPFN = int(os.environ.get("CPFN", "5"))
CPF = int(os.environ.get("CPF", "1"))
DPF = int(os.environ.get("DPF", "4"))

G_SLOT = 49152
LDS_BYTES = 163840
SCR = CHUNK
SYNC = LDS_BYTES - 1024
RING = [0, SYNC - CHUNK, CHUNK + 4096]
SPIN_LIMIT = 1 << 19


WMASK = ~((1 << 15) | (1 << 27) | (1 << 39) | (1 << 51)) & ((1 << 64) - 1)


def f32bits(x):
    return struct.unpack("<I", struct.pack("<f", x))[0]


class Asm:
    def __init__(self):
        self.secs = {"entry": []}
        self.lines = self.secs["entry"]
        self.nlab = 0

    def sec(self, name):
        self.lines = self.secs.setdefault(name, [])

    def __call__(self, s):
        for ln in s.strip("\n").split("\n"):
            ln = ln.strip()
            if not ln:
                continue
            if ln.endswith(":") or ln.startswith("."):
                self.lines.append(ln)
            else:
                self.lines.append("    " + ln)

    def label(self, base="L"):
        self.nlab += 1
        return f"{base}_{self.nlab}"

    def text(self):
        order = ["entry", "loader", "compute", "tail", "exact", "end"]
        assert sorted(order) == sorted(self.secs)
        return "\n".join("\n".join(self.secs[k]) for k in order) + "\n"


def isize(ln):
    t = ln.split(";")[0].strip()
    if not t or t.endswith(":"):
        return 0
    op = t.split()[0]
    if op.startswith(("v_mfma", "v_smfmac", "ds_", "buffer_")) or op.endswith("_e64"):
        return 8
    assert op in ("v_exp_f32", "v_add_u32", "v_mov_b32") or op.startswith("s_"), t
    assert "0x" not in t, t
    return 4


def align8(lines):
    out, off = [], 0
    for ln in lines:
        n = isize(ln)
        if n == 8 and off % 8:
            o = off
            for k in range(len(out) - 1, -1, -1):
                m = isize(out[k])
                if m == 8:
                    k = -1
                    break
                o -= m
                if m == 4 and o % 8 == 0 and out[k].split()[0] == "v_exp_f32":
                    out[k] = out[k].replace("v_exp_f32", "v_exp_f32_e64")
                    break
            else:
                k = -1
            if k != -1:
                off += 4
        out.append(ln)
        off += n
    return out


def vr(b, n):
    return f"v[{b}:{b+n-1}]"


def stamp(a, n, wait=False, mode=1):
    if STAMPS == mode:
        a(f"{'s_memtime' if mode in (1, 9) else 's_memrealtime'} s[{72+2*n}:{73+2*n}]")
        if wait:
            a("s_waitcnt lgkmcnt(0)")


def gen(a):
    name = NAME + "_kernel"
    a(f"""
.globl {name}
.p2align 8
.type {name},@function
{name}:
""")
    SX, SW, SWS, SG, SD = 4, 8, 12, 16, 52
    SWA, SWB, SO = 4, 8, 16
    sW_, sP, sTG, sWV, sJ, sTP = 20, 21, 22, 23, 24, 25
    sXb, sWb, sM0x, sM0w, sA, sB, sT, sT2 = 26, 27, 28, 29, 30, 31, 32, 33
    sMASK = 34
    sKVp, sC, sN, sRS = 36, 37, 38, 39
    sDl, sU, sOm, sOh = 56, 57, 58, 59
    sNON, sRDY, sFB, sSPIN = 60, 61, 62, 63
    sCG, sT0, sTT, sKQ, sTG2 = 64, 65, 66, 67, 68
    sC2 = 70
    sD3 = 48
    sLI = sWV
    vL, vL16 = 1, 2
    NV = 168
    a(f"""
    s_cmp_ge_u32 s2, 256
    s_cbranch_scc1 L_done
    """)
    if STAMPS:
        a("s_memtime s[72:73]\ns_memrealtime s[96:97]")
    a(f"""
    s_load_dwordx2 s[{SX}:{SX+1}], s[0:1], 0            ; x
    s_bitcmp1_b32 s2, 2
    s_cselect_b32 s{sT}, 32, 8
    s_load_dwordx2 s[{SW}:{SW+1}], s[0:1], s{sT}
    s_load_dwordx2 s[{SG}:{SG+1}], s[0:1], 48           ; gate_w
    s_load_dwordx2 s[{SD}:{SD+1}], s[0:1], 64           ; debug
    s_load_dwordx2 s[{SWS}:{SWS+1}], s[0:1], 72         ; ws
    """)
    if CPF == 2:
        a(f"""
        s_getpc_b64 s[{sA}:{sA+1}]
        s_lshr_b32 s{sKQ}, s2, 3
        s_mul_i32 s{sKQ}, s{sKQ}, {CPFN}
        v_subrev_u32 v10, 256, v0
        v_cmp_gt_u32 vcc, {CPFN}, v10
        v_add_lshl_u32 v10, v10, s{sKQ}, 7
        v_min_u32 v10, L_done - {name} - 64, v10
        s_and_saveexec_b64 s[{sT}:{sT+1}], vcc
        s_cbranch_execz L_cpf
        global_load_dword v7, v10, s[{sA}:{sA+1}]
        L_cpf:
        s_mov_b64 exec, -1
        """)
    elif CPF:
        a(f"""
        s_getpc_b64 s[{sA}:{sA+1}]
        v_subrev_u32 v10, 256, v0
        v_lshlrev_b32 v10, 7, v10
        v_cmp_gt_u32 vcc, L_done - {name} - 64, v10
        s_and_saveexec_b64 s[{sT}:{sT+1}], vcc
        s_cbranch_execz L_cpf
        global_load_dword v7, v10, s[{sA}:{sA+1}]
        L_cpf:
        s_mov_b64 exec, -1
        """)
    a(f"""
    v_lshrrev_b32 v10, 6, v0
    v_and_b32 v{vL}, 63, v0
    s_bfe_u32 s{sTG}, s2, 0x30003
    v_readfirstlane_b32 s{sWV}, v10
    s_and_b32 s{sP}, s2, 7
    s_lshl_b32 s{sP}, s{sP}, 2
    s_lshr_b32 s{sT2}, s2, 6
    s_add_u32 s{sP}, s{sP}, s{sT2}
    s_mov_b32 s{SX+2}, {XBYTES}
    s_mov_b32 s{SX+3}, 0x00020000
    s_mov_b32 s{SW+3}, s{SX+3}
    s_mov_b32 s{SG+3}, s{SX+3}
    s_mov_b32 s{SD+3}, s{SX+3}
    s_mov_b32 s{SWS+3}, s{SX+3}
    s_cmp_lt_u32 s{sWV}, 4
    s_cbranch_scc0 L_compute
    v_lshrrev_b32 v12, 3, v{vL}
    v_mul_u32_u24 v12, 1152, v12
    v_lshrrev_b32 v13, 4, v{vL}
    v_and_b32 v14, 7, v{vL}
    v_xor_b32 v14, v14, v13
    v_lshl_add_u32 v3, v14, 4, v12
    v_xor_b32 v14, 4, v14
    v_lshl_add_u32 v4, v14, 4, v12
    v_add_u32 v4, {8*1152 - 1024}, v4
    s_lshl_b32 s{sT}, s{sTG}, 2
    s_add_u32 s{sT}, s{sT}, s{sLI}
    s_mul_i32 s{sXb}, s{sT}, {64*1152}
    s_lshl_b32 s{sM0x}, s{sLI}, 13
    v_lshlrev_b32 v14, 2, v13
    v_xor_b32 v14, v14, v{vL}
    v_and_b32 v14, 15, v14
    s_mov_b32 s{sA}, 0x75752020
    s_mov_b32 s{sA+1}, 0x7446420
    s_mov_b32 s{sT}, 0x21aa0505
    v_mul_u32_u24 v18, 3, v13
    v_lshlrev_b32 v15, 2, v14
    v_lshrrev_b64 v[16:17], v15, s[{sA}:{sA+1}]
    v_lshlrev_b32 v19, 1, v14
    v_lshrrev_b32 v19, v19, s{sT}
    v_and_b32 v16, 15, v16
    v_and_b32 v19, 3, v19
    v_add_u32 v19, v19, v18
    v_mul_u32_u24 v19, 1152, v19
    v_lshl_add_u32 v5, v16, 3, v19
    v_xor_b32 v15, 8, v15
    v_lshrrev_b64 v[16:17], v15, s[{sA}:{sA+1}]
    v_lshrrev_b32 v19, 1, v15
    v_lshrrev_b32 v19, v19, s{sT}
    v_and_b32 v16, 15, v16
    v_and_b32 v19, 3, v19
    v_add_u32 v19, v19, v18
    v_mul_u32_u24 v19, 1152, v19
    v_lshl_add_u32 v21, v16, 3, v19
    s_and_b32 s{sT}, s{sP}, 15
    s_mul_i32 s{sT}, s{sT}, 72
    s_mul_i32 s{sWb}, s{sLI}, {16*3456}
    s_add_u32 s{sWb}, s{sWb}, s{sT}
    s_lshl_b32 s{sM0w}, s{sLI}, 12
    s_mov_b32 s{sMASK}, {WMASK & 0xffffffff:#x}
    s_mov_b32 s{sMASK+1}, {WMASK >> 32:#x}
    s_lshr_b64 s[{sC2}:{sC2+1}], s[{sMASK}:{sMASK+1}], 2
    s_or_b32 s{sC2+1}, s{sC2+1}, 0xc0000000
    s_mov_b32 s{SW+2}, {WQKV_BYTES}
    s_waitcnt lgkmcnt(0)
    """)

    def common():
        a(f"""
        s_mov_b32 s{SW+2}, {WQKV_BYTES}
        s_movk_i32 s{SG+2}, 1152
        s_movk_i32 s{SD+2}, 256
        s_mov_b32 s{SWS+2}, {WS_USED}
        v_lshlrev_b32 v{vL16}, 4, v{vL}
        s_mul_i32 s{sKVp}, s{sP}, {8*CHUNK}
        s_mul_i32 s{sKQ}, s{sWV}, 43
        s_lshr_b32 s{sKQ}, s{sKQ}, 7
        s_mul_i32 s{sT}, s{sKQ}, 3
        s_sub_u32 s{sTT}, s{sWV}, s{sT}
        s_mov_b32 s{sSPIN}, {SPIN_LIMIT}
        """)

    sFl, sI, sPd, sBt, sCur, sMode, sWS = 69, 40, 41, 42, 43, 39, 3

    def unit_decode(v):
        a(f"""
        v_readfirstlane_b32 s{sU}, v{v}
        s_nop 3
        s_lshr_b32 s{sTG2}, s{sU}, 8
        s_and_b32 s{sTG2}, s{sTG2}, 7
        s_and_b32 s{sU}, s{sU}, 0xff
        s_lshr_b32 s{sCG}, s{sU}, 1
        s_and_b32 s{sT0}, s{sU}, 1
        s_mul_i32 s{sT0}, s{sT0}, 3
        s_sub_u32 s{sT}, s{sU}, 18
        s_cmp_ge_u32 s{sU}, 18
        s_cselect_b32 s{sCG}, s{sT}, s{sCG}
        s_cselect_b32 s{sT0}, 6, s{sT0}
        s_add_u32 s{sT0}, s{sT0}, s{sTT}
        s_lshl_b32 s{sT}, s{sTG2}, 3
        s_add_u32 s{sT}, s{sT}, s{sT0}
        s_mul_i32 s{sFl}, s{sT}, {OTILE}
        s_mul_i32 s{sT}, s{sKQ}, {8*OPAIR}
        s_add_u32 s{sFl}, s{sFl}, s{sT}
        s_add_u32 s{sFl}, s{sFl}, {O_OFF}
        """)

    vK, vKH, vV, vIDX = 3, 4, 5, 6
    vG = [8, 9]
    vT = [10, 11, 12, 13, 14, 15, 26]
    Qa, Qb = 16, 20
    QH = 24
    Kb = 32
    KHb = [40, 42]
    V0b = [44, 48]
    V1b = [52, 56]
    Oa, Ob = 64, 80
    S = [96, 128]
    vXr = [16, 17]; vWr = [18, 19, 20, 21]
    vXr2 = [22, 23]; vWr2 = [24, 25, 26, 27]
    vU = list(range(32, 48))
    F = [64, 32]
    AC = [96, 112, 128, 144]
    eK, eR, e0, e1, e2, e3, e4 = 160, 161, 162, 163, 164, 165, 166

    a.sec("compute")
    a("L_compute:")
    common()
    a(f"""
    s_sub_u32 s{sW_}, s{sWV}, 4
    s_lshr_b32 s{sJ}, s{sW_}, 2
    s_and_b32 s{sTP}, s{sW_}, 3
    s_load_dwordx2 s[44:45], s[0:1], 56          ; out
    s_mov_b32 s{SO+2}, {XBYTES}
    s_waitcnt lgkmcnt(0)
    s_mov_b64 s[{SO}:{SO+1}], s[44:45]
    """)
    a(f"""
    v_and_b32 v{vU[0]}, 31, v{vL}                ; tau
    v_lshrrev_b32 v{vU[1]}, 5, v{vL}             ; h
    v_and_b32 v{vU[9]}, 15, v{vL}                ; l&15
    v_lshrrev_b32 v{vU[10]}, 4, v{vL}            ; g
    s_lshl_b32 s{sT}, s{sTP}, 13
    v_lshlrev_b32 v{vU[2]}, 7, v{vU[9]}
    v_add_u32 v{vU[2]}, s{sT}, v{vU[2]}
    v_lshrrev_b32 v{vU[3]}, 1, v{vU[9]}
    v_xor_b32 v{vU[3]}, v{vU[3]}, v{vU[10]}
    v_lshl_add_u32 v{vXr[0]}, v{vU[3]}, 4, v{vU[2]}
    v_xor_b32 v{vXr[1]}, 64, v{vXr[0]}
    v_bfe_u32 v{vU[2]}, v{vL}, 2, 2              ; r
    v_lshl_add_u32 v{vU[3]}, v{vU[10]}, 3, v{vU[2]}
    v_lshlrev_b32 v{vU[3]}, 8, v{vU[3]}
    v_add_u32 v{vU[3]}, 32768, v{vU[3]}
    v_and_b32 v{vU[4]}, 3, v{vL}                 ; c
    v_lshlrev_b32 v{vU[4]}, 3, v{vU[4]}
    v_and_b32 v{vU[5]}, 16, v{vL}
    v_lshlrev_b32 v{vU[5]}, 1, v{vU[5]}          ; (g&1)*32
    v_add3_u32 v{vU[7]}, v{vU[3]}, v{vU[4]}, v{vU[5]}
    v_xor_b32 v{vWr[0]}, s{sJ}, v{vU[2]}
    v_lshl_add_u32 v{vWr[0]}, v{vWr[0]}, 6, v{vU[7]}
    v_xor_b32 v{vWr[1]}, 32, v{vWr[0]}
    s_mov_b32 s{sT}, 0x38102800
    s_cmp_eq_u32 s{sJ}, 1
    s_cselect_b32 s{sT}, s{sT}, 0x18100800
    v_lshrrev_b32 v{vU[6]}, v{vU[4]}, s{sT}
    v_and_b32 v{vU[6]}, 0xff, v{vU[6]}
    v_xor_b32 v{vU[6]}, v{vU[6]}, v{vU[5]}
    v_add_u32 v{vU[7]}, v{vU[3]}, v{vU[6]}
    s_add_u32 s{sT}, s{sJ}, 2
    v_xor_b32 v{vWr[2]}, s{sT}, v{vU[2]}
    v_lshl_add_u32 v{vWr[2]}, v{vWr[2]}, 6, v{vU[7]}
    v_xor_b32 v{vWr[3]}, 32, v{vWr[2]}
    """)
    for r0, r1 in zip(vXr + vWr, vXr2 + vWr2):
        a(f"v_add_u32 v{r1}, {2*G_SLOT}, v{r0}")
    for r in range(AC[0], AC[0] + 64):
        a(f"v_mov_b32 v{r}, 0")
    a(f"""
    s_lshl_b32 s{sT}, s{sJ}, 10
    s_add_u32 s{sT}, s{sT}, 512
    v_add_u32 v{vK}, s{sT}, v{vL16}
    v_lshlrev_b32 v{vKH}, 2, v{vL}
    s_lshl_b32 s{sT2}, s{sJ}, 8
    v_add_u32 v{vKH}, s{sT2}, v{vKH}
    v_mov_b32 v{vU[2]}, 4
    v_cmp_gt_u32 vcc, 19, v{vU[0]}
    v_mov_b32 v{vU[3]}, 19
    s_nop 0
    v_cndmask_b32 v{vU[2]}, v{vU[2]}, v{vU[0]}, vcc
    v_cmp_eq_u32 vcc, 4, v{vU[0]}
    v_mul_u32_u24 v{vU[4]}, {VH}, v{vU[1]}
    s_mul_i32 s{sT2}, s{sJ}, {2*VG}
    s_add_u32 s{sT2}, s{sT2}, 2560
    v_cndmask_b32 v{vU[2]}, v{vU[2]}, v{vU[3]}, vcc
    v_lshl_add_u32 v{vV}, v{vU[2]}, 4, v{vU[4]}
    v_add_u32 v{vV}, s{sT2}, v{vV}
    v_mov_b32 v{vIDX}, 0xdddddddd
    s_lshl_b32 s{sT}, s{sTG}, 3
    s_lshl_b32 s{sT2}, s{sTP}, 1
    s_add_u32 s{sT}, s{sT}, s{sT2}
    s_mul_i32 s{sA}, s{sT}, {OTILE}
    s_mul_i32 s{sT}, s{sP}, {OPAIR}
    s_add_u32 s{sA}, s{sA}, s{sT}
    s_add_u32 s{sA}, s{sA}, {O_OFF}
    s_lshl_b32 s{sT}, s{sJ}, 10
    s_add_u32 s{sOm}, s{sA}, s{sT}
    s_lshl_b32 s{sT}, s{sJ}, 7
    s_add_u32 s{sOh}, s{sA}, s{sT}
    s_mov_b32 s{sD3}, {(RING[1]-RING[0]) & 0xffffffff:#x}
    s_mov_b32 s{sD3+1}, {(RING[2]-RING[1]) & 0xffffffff:#x}
    s_mov_b32 s{sD3+2}, {(RING[0]-RING[2]) & 0xffffffff:#x}
    s_mov_b32 s{sC2}, {f32bits(CSCALE):#x}
    s_mov_b32 s{sC2+1}, {f32bits(CSCALE):#x}
    v_and_b32 v{vU[2]}, 3, v{vU[0]}
    v_and_b32 v{vU[3]}, 12, v{vU[0]}
    v_lshl_or_b32 v{vU[2]}, v{vU[3]}, 1, v{vU[2]}
    v_and_b32 v{vU[3]}, 16, v{vU[0]}
    v_lshrrev_b32 v{vU[3]}, 2, v{vU[3]}
    v_or_b32 v{vU[2]}, v{vU[2]}, v{vU[3]}        ; kappa
    s_lshl_b32 s{sT}, s{sJ}, 10
    s_mul_i32 s{sB}, s{sTP}, {TPAIR}
    s_add_u32 s{sT}, s{sT}, s{sB}
    s_add_u32 s{sT}, s{sT}, 512
    v_lshlrev_b32 v{eK}, 9, v{vU[1]}
    v_lshl_add_u32 v{eK}, v{vU[2]}, 4, v{eK}
    v_add_u32 v{eK}, s{sT}, v{eK}
    s_lshl_b32 s{sT}, s{sTP}, 8
    s_add_u32 s{sT}, s{sT}, {SCR}
    v_lshlrev_b32 v{eR}, 2, v{vU[0]}
    v_add_u32 v{eR}, s{sT}, v{eR}
    s_cmp_eq_u32 s{sJ}, 1
    s_cbranch_scc1 L_a1
    v_mul_u32_u24 v{vU[4]}, {VH}, v{vU[10]}
    s_add_u32 s{sT}, s{sB}, 2560
    v_add_u32 v{vU[4]}, s{sT}, v{vU[4]}
    v_mov_b32 v{vU[6]}, 19
    v_cmp_eq_u32 vcc, 4, v{vU[9]}
    v_add_u32 v{vU[3]}, 16, v{vU[9]}
    v_add_u32 v{vU[5]}, {2*VG // 16 - 2}, v{vU[9]}
    v_cndmask_b32 v{vU[6]}, v{vU[9]}, v{vU[6]}, vcc
    v_cmp_le_u32 vcc, 2, v{vU[9]}
    v_lshl_add_u32 v{e0}, v{vU[6]}, 4, v{vU[4]}
    v_mov_b32 v{vU[6]}, {2*VG // 16 + 19}
    v_cndmask_b32 v{vU[3]}, v{vU[3]}, v{vU[5]}, vcc
    v_cmp_eq_u32 vcc, 6, v{vU[9]}
    s_nop 1
    v_cndmask_b32 v{vU[3]}, v{vU[3]}, v{vU[6]}, vcc
    v_lshl_add_u32 v{e1}, v{vU[3]}, 4, v{vU[4]}
    s_branch L_a2
    L_a1:
    v_lshlrev_b32 v{e0}, 2, v{vU[2]}
    v_add_u32 v{e0}, s{sB}, v{e0}
    v_cmp_eq_u32 vcc, 1, v{vU[1]}
    v_add_u32 v{vU[5]}, 256, v{e0}
    v_add_u32 v{vU[6]}, 1024, v{eR}
    v_cndmask_b32 v{e0}, v{e0}, v{eR}, vcc
    v_cndmask_b32 v{e1}, v{vU[5]}, v{vU[6]}, vcc
    v_mov_b32 v{vU[5]}, 1.0
    v_mov_b32 v{vU[6]}, s{sC2}
    v_cndmask_b32 v{e2}, v{vU[5]}, v{vU[6]}, vcc
    v_lshrrev_b32 v{vU[3]}, 3, v{vU[2]}
    v_mul_u32_u24 v{vU[3]}, {VH}, v{vU[3]}
    v_and_b32 v{vU[5]}, 7, v{vU[2]}
    v_lshl_add_u32 v{e3}, v{vU[5]}, 1, v{vU[3]}
    s_add_u32 s{sT}, s{sB}, {2560 + 2*VG}
    v_add_u32 v{e3}, s{sT}, v{e3}
    L_a2:
    s_lshl_b32 s{sT}, s{sJ}, 10
    v_lshl_add_u32 v{e4}, v{vU[1]}, 7, v{eR}
    v_add_u32 v{e4}, s{sT}, v{e4}
    s_mov_b32 s{sMASK}, 0x7ffff
    s_mov_b32 s{sMASK+1}, 0x7ffff
    s_lshl_b32 s{sT}, s{sW_}, 2
    s_add_u32 s{sT}, s{sT}, {SYNC}
    v_mov_b32 v167, s{sT}
    """)
    a("s_waitcnt lgkmcnt(0)")

    def reads(n, ks, j):
        s = n % 3
        xr = vXr2 if s == 2 else vXr
        wr = vWr2 if s == 2 else vWr
        so = G_SLOT if s == 1 else 0
        b = F[ks]
        out = []
        for q in range(4):
            out.append(f"ds_read_b128 {vr(b+4*q,4)}, v{xr[ks]} offset:{so + 2048*q}")
            if q < 4 - j:
                out.append(f"ds_read_b64_tr_b16 {vr(b+16+4*q,2)}, v{wr[q]} offset:{so + ks*8192}")
                out.append(f"ds_read_b64_tr_b16 {vr(b+18+4*q,2)}, v{wr[q]} offset:{so + ks*8192 + 1024}")
        return out

    def mfmas(f, j):
        b = F[f]
        m = []
        for c in range(4 - j):
            for t in range(4):
                X, W, D = vr(b + 4 * t, 4), vr(b + 16 + 4 * c, 4), vr(AC[c] + 4 * t, 4)
                p, q = (X, W) if (j == 0 and c >= 2) else (W, X)
                m.append(f"v_mfma_f32_16x16x32_bf16 {D}, {p}, {q}, {D}")
        return m

    def mix(ms, rs, lead=0):
        rs = list(rs)
        for r in rs[:lead]:
            a(r)
        rs = rs[lead:]
        for i, m in enumerate(ms):
            a(m)
            k = -(-len(rs) // (len(ms) - i)) if GMIX == 2 else (1 if GMIX else 0)
            for r in rs[:k]:
                a(r)
            rs = rs[k:]
        for r in rs:
            a(r)

    if TLBW == 2:
        a(f"""
        s_cmp_eq_u32 s{sW_}, 7
        s_cbranch_scc0 L_tlb
        s_buffer_load_dword s3, s[{SWS}:{SWS+3}], s{sKVp}
        s_buffer_load_dword s3, s[{SWS}:{SWS+3}], s{sKVp} offset:{hex(8*CHUNK - 4)}
        s_mov_b32 s{sT}, {FLAG_OFF + 0x30000}
        s_buffer_load_dword s3, s[{SWS}:{SWS+3}], s{sT}
        s_buffer_load_dword s3, s[{SD}:{SD+3}], 0xfc
        L_tlb:
        """)
    stamp(a, 7, True, mode=9)
    a("s_barrier")
    stamp(a, 1, True)
    stamp(a, 1, True, mode=4)
    for r in reads(0, 0, 0):
        a(r)
    a(f"""
    s_mov_b32 s{sN}, 0
    s_cmp_eq_u32 s{sJ}, 1
    s_cbranch_scc1 L_g1
    """)
    for j in range(2):
        a(f"L_g{j}:")
        for n in range(3):
            a("s_waitcnt lgkmcnt(0)")
            mix(mfmas(0, j), reads(n, 1, j), 0 if GMIX else 99)
            a("s_waitcnt lgkmcnt(0)")
            if n == 2:
                a(f"""
                s_add_u32 s{sN}, s{sN}, 1
                s_cmp_eq_u32 s{sN}, 3
                s_cbranch_scc1 L_ge{j}
                """)
            a("s_barrier")
            mix(mfmas(1, j), reads(n + 1, 0, j), 0 if GMIX else 99)
        a(f"s_branch L_g{j}")
        a(f"L_ge{j}:")
        ms = mfmas(1, j)
        zs = [f"v_mov_b32 v{r}, 0" for r in range(Oa, Oa + 32)]
        for i, m in enumerate(ms):
            a(m)
            k = -(-len(zs) // (len(ms) - i))
            for z in zs[:k]:
                a(z)
            zs = zs[k:]
        stamp(a, 2)
        stamp(a, 2, mode=4)
        a(f"""
        s_mov_b32 s{sN}, 0
        s_mov_b32 s{sFB}, 0
        """)
        KP = [AC[0], AC[0] + 8]
        for A in KP:
            for i in range(4):
                a(f"v_cvt_pk_bf16_f32 v{A+i}, v{A+2*i}, v{A+2*i+1}")
        a(f"v_mov_b32 v{KHb[0]+1}, 0x3f803f80")
        for t, A in enumerate(KP):
            a(f"v_permlane16_swap_b32 v{A}, v{A+2}")
            a(f"v_permlane16_swap_b32 v{A+1}, v{A+3}")
            a(f"ds_write_b128 v{eK}, {vr(A,4)} offset:{TILE*t}")
        B0, B1 = AC[2], AC[2] + 8
        if j == 0:
            for cc in range(2):
                for t in range(2):
                    B = AC[2 + cc] + 8 * t
                    for i in range(4):
                        a(f"v_cvt_pk_bf16_f32 v{B+i}, v{B+2*i}, v{B+2*i+1}")
                    a(f"ds_write_b128 v{(e0, e1)[cc]}, {vr(B,4)} offset:{t*TILE}")
            a("s_branch L_ep")
        else:
            for B in (B0, B1):
                for i in range(4):
                    a(f"v_permlane16_swap_b32 v{B+i}, v{B+4+i}")
            a(f"""
            s_mov_b32 exec_lo, 0
            ds_write_b32 v{eR}, v{B0+4} offset:2048
            ds_write_b32 v{eR}, v{B1+4} offset:{2048+128}
            s_mov_b32 exec_lo, -1
            """)
            for t, B in enumerate((B0, B1)):
                for i in range(4):
                    a(f"v_mul_f32 v{B+i}, v{e2}, v{B+i}")
                for i in range(4):
                    a(f"v_cvt_pk_bf16_f32 v{B+16+i}, v{B+2*i}, v{B+2*i+1}")
                a(f"ds_write_b32 v{e0}, v{B+16} offset:{128*t}")
                a(f"ds_write_b32 v{e1}, v{B+17} offset:{128*t}")
            a("s_mov_b32 exec_hi, 0")
            for t, B in enumerate((B0, B1)):
                o = t * TILE + 14 * 16
                a(f"ds_write_b16 v{e3}, v{B+18} offset:{o}")
                a(f"ds_write_b16_d16_hi v{e3}, v{B+18} offset:{o+16}")
                a(f"ds_write_b16 v{e3}, v{B+19} offset:{o+32}")
                a(f"ds_write_b16_d16_hi v{e3}, v{B+19} offset:{o+48}")
            a("s_mov_b32 exec_hi, -1")
    def qk(dst, kb, q, acc=True):
        return f"v_mfma_f32_32x32x16_bf16 {vr(dst,16)}, {vr(kb,4)}, {vr(q,4)}, {vr(dst,16) if acc else 0}"

    def qkh(dst, khb, par):
        return f"v_mfma_f32_32x32x4_2b_bf16 {vr(dst,32)}, {vr(khb,2)}, {vr(QH,2)}, 0 cbsz:1 abid:{par}"

    def pv(o, vb, p):
        return f"v_smfmac_f32_32x32x32_bf16 {vr(o,16)}, {vr(vb,4)}, {vr(p,8)}, v{vIDX}"

    def vread(t, buf):
        if not VMASK:
            return f"""
            ds_read_b128 {vr(V0b[buf],4)}, v{vV} offset:{toff(t)}
            ds_read_b128 {vr(V1b[buf],4)}, v{vV} offset:{toff(t) + VG}
            """
        return f"""
        s_mov_b64 exec, s[{sMASK}:{sMASK+1}]
        ds_read_b128 {vr(V0b[buf],4)}, v{vV} offset:{toff(t)}
        ds_read_b128 {vr(V1b[buf],4)}, v{vV} offset:{toff(t) + VG}
        s_mov_b64 exec, -1
        """

    X, Y = S

    def prep():
        for A, Q in ((AC[1], Qa), (AC[1] + 8, Qb)):
            for i in range(4):
                a(f"v_pk_mul_f32 {vr(A+2*i,2)}, {vr(A+2*i,2)}, s[{sC2}:{sC2+1}]")
            for i in range(4):
                a(f"v_cvt_pk_bf16_f32 v{Q+i}, v{A+2*i}, v{A+2*i+1}")
        a(f"v_mov_b32 v{KHb[1]+1}, 0x3f803f80")
        for Q in (Qa, Qb):
            a(f"v_permlane16_swap_b32 v{Q}, v{Q+2}")
            a(f"v_permlane16_swap_b32 v{Q+1}, v{Q+3}")
        a(f"v_cmp_gt_u32 vcc, 32, v{vL}")
        for r in range(V0b[0], V1b[1] + 4):
            a(f"v_mov_b32 v{r}, 0")

    if EARLYB:
        a("s_waitcnt vmcnt(0) lgkmcnt(0)\ns_barrier")
        prep()
        a(qk(Y, AC[0], Qa, False)); a(qk(Y + 16, AC[0], Qb, False))
        a("s_branch L_ep2")
    a("L_ep:")
    prep()
    a("s_waitcnt vmcnt(0) lgkmcnt(0)")
    a(qk(Y, AC[0], Qa, False)); a(qk(Y + 16, AC[0], Qb, False))
    a("s_barrier")
    a("L_ep2:")
    stamp(a, 3, True)
    a(f"""
    ds_read_b32 v{vG[0]}, v{eR} offset:2048
    ds_read_b32 v{vG[1]}, v{eR} offset:{2048+128}
    ds_read_b32 v{KHb[0]}, v{vKH}
    ds_read_b32 v{QH}, v{e4}
    ds_read_b128 {vr(Kb,4)}, v{vK}
    """)
    a(vread(0, 0))
    a(f"""
    s_mov_b32 s{sT}, {f32bits(-math.log2(math.e)):#x}
    s_cmp_ge_u32 s{sP}, 16
    s_cselect_b32 s{sT}, {f32bits(math.log2(math.e)):#x}, s{sT}
    s_nop 0
    """)
    for t in range(2):
        b = Y + 16 * t
        a(f"v_max3_f32 v{vT[t]}, v{b}, v{b+1}, v{b+2}")
        for i in range(3, 9, 2):
            a(f"v_max3_f32 v{vT[t]}, v{vT[t]}, v{b+i}, v{b+i+1}")
    a(f"""
    v_cndmask_b32 v{vT[0]}, v{vT[1]}, v{vT[0]}, vcc
    v_lshrrev_b32 v{vT[0]}, 16, v{vT[0]}
    v_xor_b32 v{QH+1}, {(f32bits(-SHIFT) & 0xffff0000) | 0x8000:#x}, v{vT[0]}
    s_waitcnt lgkmcnt(3)
    v_mul_f32 v{vG[0]}, s{sT}, v{vG[0]}
    """)
    a(qkh(X, KHb[0], 0))
    a(f"""
    v_mul_f32 v{vG[1]}, s{sT}, v{vG[1]}
    v_exp_f32 v{vG[0]}, v{vG[0]}
    v_exp_f32 v{vG[1]}, v{vG[1]}
    """)
    for r in range(Y + 24, Y + 32):
        a(f"v_mov_b32 v{r}, 0")
    a(f"""
    v_add_f32 v{vG[0]}, 1.0, v{vG[0]}
    v_add_f32 v{vG[1]}, 1.0, v{vG[1]}
    v_rcp_f32 v{vG[0]}, v{vG[0]}
    v_rcp_f32 v{vG[1]}, v{vG[1]}
    s_waitcnt lgkmcnt(0)
    s_nop 1
    """)
    a(qk(X, Kb, Qa)); a(qk(X + 16, Kb, Qb))
    a(f"""
    v_lshrrev_b32 v{e3}, 5, v{vL}
    v_mul_u32_u24 v{e3}, {OTILE - 128}, v{e3}
    v_lshl_add_u32 v{e3}, v{vL}, 2, v{e3}
    """)

    def E(b, n=4):
        for r in range(b, b + n):
            a(f"v_exp_f32 v{r}, v{r}")

    stamp(a, 4)
    stamp(a, 3, mode=4)
    a("s_setprio 1")
    a("s_nop 6")
    a(".p2align 6")
    for _ in range(int(os.environ.get("PAD", "0"))):
        a("s_nop 0\ns_nop 0")
    a("L_loop:")
    loop0 = len(a.lines) - 1
    for i in range(8):
        X = S[i & 1]; Y = S[(i + 1) & 1]
        tn = (i + 1) & 7
        khb = KHb[(tn >> 1) & 1]
        bar = """
        s_cbranch_scc1 L_nb7
        s_barrier
        L_nb7:
        s_setprio 1
        """
        adds = f"""
        v_add_u32 v{vKH}, s{sDl}, v{vKH}
        v_add_u32 v{vK}, s{sDl}, v{vK}
        ds_read_b32 v{khb}, v{vKH}
        v_add_u32 v{vV}, s{sDl}, v{vV}
        """
        if i == 7 and BPOS == 0:
            a(bar); a(adds)
        if i == 7 and BPOS == 2:
            a(bar.replace("s_setprio 1", "").replace("s_cbranch", "s_setprio 1\ns_cbranch")); a(adds)
        E(X, 2)
        if i == 7 and BPOS == 1:
            a(bar)
        a(pv(Ob, V1b[(i + 1) & 1], Y + 24))
        if i == 7 and BPOS == 1:
            a(adds)
        if i == PRIOI:
            a("s_setprio 0")
        kread = f"ds_read_b128 {vr(Kb,4)}, v{vK} offset:{toff(tn)}"
        if i in (0, 2, 4):
            kread += f"\nds_read_b32 v{KHb[((i>>1)+1)&1]}, v{vKH} offset:{((i>>1)+1)*TPAIR}"
        vrd = vread(tn, (i + 1) & 1)
        a(vrd if VPOS == 1 else kread)
        E(X + 2, 4)
        if i == 7:
            a(f"s_waitcnt lgkmcnt({2 if VPOS == 1 else 1})")
        a(qkh(Y, khb, tn & 1))
        a(vrd if VPOS == 0 else kread if VPOS == 1 else "")
        E(X + 6, 8)
        a(pv(Oa, V0b[i & 1], X))
        if VPOS == 3:
            a("s_waitcnt lgkmcnt(0)")
        if VPOS >= 2:
            a(vrd)
        E(X + 14, 4)
        a(pv(Oa, V1b[i & 1], X + 8))
        if VPOS != 3:
            a(f"s_waitcnt lgkmcnt({2 if VPOS == 2 else 0})")
        if i == 1:
            a(f"s_mov_b32 s{sDl}, s{sD3}")
        if i == 3:
            a(f"s_mov_b32 s{sD3+1}, s{sD3+2}")
        if i == 7:
            a(f"s_add_u32 s{sN}, s{sN}, 1")
        E(X + 18, 4)
        a(qk(Y, Kb, Qa))
        if i == 1:
            a(f"s_mov_b32 s{sD3}, s{sD3+1}")
        if i == 2:
            a(f"v_mov_b32 v7, s{sN}")
        if i == 5:
            a(f"s_mov_b32 s{sD3+2}, s{sDl}")
        if i == 6:
            a(f"s_cmp_eq_u32 s{sN}, 7")
        if i == 7:
            a(f"s_cmp_lt_u32 s{sN}, 8")
        E(X + 22, 4)
        a(pv(Ob, V0b[i & 1], X + 16))
        if VPOS >= 2:
            a("s_waitcnt lgkmcnt(0)")
        E(X + 26, 3)
        a(qk(Y + 16, Kb, Qb))
        if i == 3:
            a("ds_write_b32 v167, v7")
        E(X + 29, 3)
    if ALIGN:
        a.lines[loop0:] = align8(a.lines[loop0:])
    a(f"""
    s_cbranch_scc1 L_loop
    s_nop 0
    """)
    stamp(a, 5)
    stamp(a, 1, mode=3)
    stamp(a, 4, mode=4)
    a(pv(Ob, V1b[1], S[1] + 24))
    a(f"""
    v_mov_b32 v{vT[5]}, {SYNC + 48}
    ds_read_b32 v160, v{vT[5]}
    L_fin:
    """)
    PK, PH = [32, 36], [44, 45]
    for t, O in enumerate((Oa, Ob)):
        l0, l1 = vT[2 * t], vT[2 * t + 1]
        a(f"v_mov_b32 v{l0}, v{O+10}")
        a(f"v_mov_b32 v{l1}, v{O+10}")
        if t == 0:
            a(f"v_maximum3_f32 v{vT[4]}, v{vG[0]}, v{vG[1]}, v{O+10}")
        else:
            a(f"v_maximum3_f32 v{vT[4]}, v{vT[4]}, v{O+10}, v{O+10}")
        a(f"v_maximum3_f32 v{vT[4]}, v{vT[4]}, |v{O}|, |v{O+1}|")
        a(f"v_maximum3_f32 v{vT[4]}, v{vT[4]}, |v{O+2}|, |v{O+3}|")
        a(f"v_permlane32_swap_b32 v{l0}, v{l1}")
        for i in (4, 6):
            a(f"v_maximum3_f32 v{vT[4]}, v{vT[4]}, |v{O+i}|, |v{O+i+1}|")
        a(f"v_rcp_f32 v{l1}, v{l0}")
        a(f"v_maximum3_f32 v{vT[4]}, v{vT[4]}, |v{O+8}|, |v{O+9}|")
        if t == 1:
            a(f"""
            v_min_f32 v{l0}, v{l0}, v{vT[0]}
            v_cmp_nge_f32 vcc, s{sT}, v{vT[4]}
            v_cmp_nle_f32 s[44:45], s{sT2}, v{l0}
            """)
        a(f"v_mul_f32 v{vT[6]}, v{l1}, v{vG[t]}")
        for i in range(5):
            a(f"v_pk_mul_f32 {vr(O+2*i,2)}, {vr(O+2*i,2)}, {vr(vT[6],2)} op_sel_hi:[1,0]")
        for i in range(4):
            a(f"v_cvt_pk_bf16_f32 v{PK[t]+i}, v{O+2*i}, v{O+2*i+1}")
        a(f"v_cvt_pk_bf16_f32 v{PH[t]}, v{O+8}, v{O+9}")
        if t == 0:
            a(f"""
            s_mov_b32 s{sT}, {f32bits(2.0**90):#x}
            s_mov_b32 s{sT2}, {f32bits(2.0**(-24-SHIFT)):#x}
            s_add_u32 s{sB}, s{sOm}, {OTILE}
            """)
    a(f"""
    s_or_b64 vcc, vcc, s[44:45]
    s_cbranch_vccnz L_exact
    L_store:
    """)
    if HI4:
        a(f"""
        v_permlane32_swap_b32 v{PH[0]}, v{PH[1]}
        buffer_store_dwordx4 {vr(PK[0],4)}, v{vL16}, s[{SWS}:{SWS+3}], s{sOm} offen sc1
        buffer_store_dwordx4 {vr(PK[1],4)}, v{vL16}, s[{SWS}:{SWS+3}], s{sB} offen sc1
        v_mov_b32_dpp v{PH[0]+1}, v{PH[0]} quad_perm:[1,1,1,1] row_mask:0xf bank_mask:0xf
        v_mov_b32_dpp v{PH[0]+2}, v{PH[0]} quad_perm:[2,2,2,2] row_mask:0xf bank_mask:0xf
        v_mov_b32_dpp v{PH[0]+3}, v{PH[0]} quad_perm:[3,3,3,3] row_mask:0xf bank_mask:0xf
        s_mov_b32 exec_lo, 0x11111111
        s_mov_b32 exec_hi, 0x11111111
        buffer_store_dwordx4 {vr(PH[0],4)}, v{e3}, s[{SWS}:{SWS+3}], s{sOh} offen offset:2048 sc1
        s_mov_b64 exec, -1
        s_setprio 0
        """)
    else:
        a(f"""
        buffer_store_dwordx4 {vr(PK[0],4)}, v{vL16}, s[{SWS}:{SWS+3}], s{sOm} offen sc1
        v_permlane32_swap_b32 v{PH[0]}, v{PH[1]}
        buffer_store_dwordx4 {vr(PK[1],4)}, v{vL16}, s[{SWS}:{SWS+3}], s{sB} offen sc1
        s_setprio 0
        buffer_store_dword v{PH[0]}, v{e3}, s[{SWS}:{SWS+3}], s{sOh} offen offset:2048 sc1
        """)
    a(f"""
    v_mov_b32 v7, 8
    ds_write_b32 v167, v7
    s_waitcnt lgkmcnt(1)
    """)
    unit_decode(160)
    stamp(a, 6)
    stamp(a, 2, mode=3)

    a.sec("exact")
    X = S[0]
    a(f"""
    L_exact:
    s_cmp_eq_u32 s{sFB}, 0
    s_cbranch_scc1 L_exact1
    """)
    for r in list(range(32, 40)) + [44, 45]:
        a(f"v_min_u32 v{r}, -2, v{r}")
    a(f"""
    s_nop 0
    s_branch L_store
    L_exact1:
    s_mov_b32 s{sFB}, 1
    v_mov_b32 v{QH+1}, 0
    v_and_b32 v{vKH}, 31, v{vL}
    v_mov_b32 v{vT[2]}, 4
    v_cmp_gt_u32 vcc, 19, v{vKH}
    v_mov_b32 v{vT[3]}, 19
    v_lshrrev_b32 v{vT[4]}, 5, v{vL}
    v_cndmask_b32 v{vT[2]}, v{vT[2]}, v{vKH}, vcc
    v_cmp_eq_u32 vcc, 4, v{vKH}
    v_mul_u32_u24 v{vT[4]}, {VH}, v{vT[4]}
    v_lshlrev_b32 v{vKH}, 2, v{vKH}
    v_cndmask_b32 v{vT[2]}, v{vT[2]}, v{vT[3]}, vcc
    v_lshl_add_u32 v{vV}, v{vT[2]}, 4, v{vT[4]}
    v_mov_b32 v{vT[0]}, 0xff800000
    v_mov_b32 v{vT[1]}, 0xff800000
    """)
    for r in range(Oa, Oa + 32):
        a(f"v_mov_b32 v{r}, 0")
    for ps in range(2):
        a(f"""
        s_mov_b32 s{sN}, 0
        L_x{ps}:
        s_lshr_b32 s{sT}, s{sN}, 1
        s_mul_i32 s{sT}, s{sT}, {TPAIR}
        s_add_u32 s{sT}, s{sT}, s{sKVp}
        s_and_b32 s{sT2}, s{sN}, 1
        s_mul_i32 s{sB}, s{sT2}, {TILE}
        s_add_u32 s{sB}, s{sB}, s{sT}                ; + tile
        s_lshl_b32 s{sA}, s{sJ}, 10
        s_add_u32 s{sA}, s{sA}, s{sB}
        buffer_load_dwordx4 {vr(Kb,4)}, v{vL16}, s[{SWS}:{SWS+3}], s{sA} offen offset:512 sc1
        s_lshl_b32 s{sA}, s{sT2}, 7
        s_add_u32 s{sA}, s{sA}, s{sT}
        s_lshl_b32 s{sT2}, s{sJ}, 8
        s_add_u32 s{sA}, s{sA}, s{sT2}
        buffer_load_dword v{KHb[0]}, v{vKH}, s[{SWS}:{SWS+3}], s{sA} offen sc1
        """)
        if ps == 1:
            a(f"""
            s_mul_i32 s{sA}, s{sJ}, {2*VG}
            s_add_u32 s{sA}, s{sA}, s{sB}
            s_add_u32 s{sA}, s{sA}, 2560
            buffer_load_dwordx4 {vr(V0b[0],4)}, v{vV}, s[{SWS}:{SWS+3}], s{sA} offen sc1
            buffer_load_dwordx4 {vr(V1b[0],4)}, v{vV}, s[{SWS}:{SWS+3}], s{sA} offen offset:{VG} sc1
            """)
        a("s_waitcnt vmcnt(0)")
        a(qkh(X, KHb[0], 0))
        a("s_nop 15\ns_nop 3")
        a(qk(X, Kb, Qa)); a(qk(X + 16, Kb, Qb))
        a("s_nop 15")
        if ps == 0:
            for t in range(2):
                for i in range(0, 16, 2):
                    a(f"v_max3_f32 v{vT[t]}, v{vT[t]}, v{X+16*t+i}, v{X+16*t+i+1}")
        else:
            for i in range(16):
                a(f"v_sub_f32 v{X+i}, v{X+i}, v{vT[0]}")
                a(f"v_sub_f32 v{X+16+i}, v{X+16+i}, v{vT[1]}")
            E(X, 32)
            a("s_nop 1")
            a(pv(Oa, V0b[0], X)); a(pv(Oa, V1b[0], X + 8))
            a(pv(Ob, V0b[0], X + 16)); a(pv(Ob, V1b[0], X + 24))
        a(f"""
        s_add_u32 s{sN}, s{sN}, 1
        s_cmp_lt_u32 s{sN}, 64
        s_cbranch_scc1 L_x{ps}
        """)
        if ps == 0:
            a(f"""
            v_mov_b32 v{vT[2]}, v{vT[0]}
            v_mov_b32 v{vT[3]}, v{vT[1]}
            s_nop 1
            v_permlane32_swap_b32 v{vT[0]}, v{vT[2]}
            v_permlane32_swap_b32 v{vT[1]}, v{vT[3]}
            s_nop 1
            v_max_f32 v{vT[0]}, v{vT[0]}, v{vT[2]}
            v_max_f32 v{vT[1]}, v{vT[1]}, v{vT[3]}
            """)
    a("""
    s_nop 15
    s_branch L_fin
    """)

    vXE, vXO, vWS = 3, 4, 5
    vGt = [6, 7, 8]
    vGA, vF, vFo = 9, 10, 11
    vT = [12, 13, 14, 15, 16, 17, 18, 19]
    vWO = 20
    CP = 32

    def dma_x(n):
        slot = (n % 3) * G_SLOT
        s = f"s_add_u32 m0, s{sM0x}, {slot}\ns_add_u32 s{sT}, s{sXb}, {n*128}\n"
        for i in range(4):
            s += f"buffer_load_dwordx4 v{vXE}, s[{SX}:{SX+3}], s{sT} offen lds\n"
            s += f"buffer_load_dwordx4 v{vXO}, s[{SX}:{SX+3}], s{sT} offen offset:1024 lds\n"
            if i < 3:
                s += f"s_addk_i32 m0, 0x800\ns_addk_i32 s{sT}, {16*1152}\n"
        return s

    def dma_w(n):
        slot = (n % 3) * G_SLOT
        if n >= int(os.environ.get("WP0", "99")):
            s = f"s_add_u32 m0, s{sM0w}, {slot + 32768}\ns_and_b32 s{sT}, s{sP}, 7\ns_mul_i32 s{sT}, s{sT}, 147456\ns_add_u32 s{sT}, s{sT}, s{sM0w}\ns_add_u32 s{sT}, s{sT}, {n*16384}\nv_lshlrev_b32 v22, 4, v{vL}\n"
            for i in range(4):
                s += f"buffer_load_dwordx4 v22, s[{SW}:{SW+3}], s{sT} offen offset:{1024*i} lds\n"
            return s
        s = f"s_add_u32 m0, s{sM0w}, {slot + 32768}\ns_add_u32 s{sT}, s{sWb}, {n*64*3456}\n"
        s += f"s_mov_b64 exec, s[{sMASK}:{sMASK+1}]\n"
        for i in range(4):
            if i == 2:
                s += f"s_mov_b64 exec, s[{sC2}:{sC2+1}]\n"
            s += f"buffer_load_dwordx4 v{vWS if i < 2 else 21}, s[{SW}:{SW+3}], s{sT} offen offset:{1024*i} lds\n"
            if i < 3:
                s += f"s_addk_i32 s{sT}, {4*3456 - 1024}\n"
        s += "s_mov_b64 exec, -1\n"
        return s

    def gate_write(n):
        slot = (n % 3) * G_SLOT
        lab = a.label("L_gw")
        reg = vGt[n // 4]
        if slot < 65536:
            w = f"ds_write_b16 v{vGA}, v{reg} offset:{slot + 8}"
        else:
            w = f"v_add_u32 v{vT[7]}, {slot}, v{vGA}\nds_write_b16 v{vT[7]}, v{reg} offset:8"
        return f"""
        s_cmp_eq_u32 s{sLI}, {n % 4}
        s_cbranch_scc0 {lab}
        {w}
        {lab}:
        """

    def wo_load(q0, q1):
        assert q1 <= 72 or q0 >= 72
        srd_, base = (SWA, 0) if q1 <= 72 else (SWB, 72)
        lab = a.label("L_wo")
        a(f"""
        s_add_u32 s{sA}, s{sLI}, {q0}
        {lab}:
        s_lshl_b32 m0, s{sA}, 10
        s_sub_u32 s{sT}, s{sA}, {base}
        s_mul_i32 s{sT}, s{sT}, {8*1152}
        buffer_load_dwordx4 v{vWO}, s[{srd_}:{srd_+3}], s{sT} offen lds
        s_add_u32 s{sA}, s{sA}, 4
        s_cmp_lt_u32 s{sA}, {q1}
        s_cbranch_scc1 {lab}
        """)

    def pf8(tag, xs, ws):
        a(f"""
        s_lshr_b32 s{sT}, s{sP}, 3
        s_xor_b32 s{sT}, s{sT}, s{sP}
        s_bitcmp1_b32 s{sT}, 0
        s_cbranch_scc1 L_pd{tag}
        s_lshr_b32 s{sT}, s{sP}, 1
        s_lshl_b32 s{sT}, s{sT}, 3
        s_add_u32 s{sT}, s{sT}, s{sTG}               ; 0..127
        s_cmp_eq_u32 s{sLI}, 0
        s_cbranch_scc0 L_pw{tag}
        v_and_b32 v{vT[5]}, 3, v{vL}
        v_min_u32 v{vT[5]}, {xs[1] - xs[0] - 1}, v{vT[5]}
        v_lshrrev_b32 v{vT[4]}, 2, v{vL}
        v_mul_u32_u24 v{vT[4]}, 1152, v{vT[4]}
        v_lshl_add_u32 v{vT[5]}, v{vT[5]}, 7, v{vT[4]}
        s_mul_i32 s{sT}, s{sT}, {16*1152}
        buffer_load_dword v{vT[6]}, v{vT[5]}, s[{SX}:{SX+3}], s{sT} offen offset:{128*xs[0]}
        s_branch L_pe{tag}
        L_pw{tag}:
        s_and_b32 s{sT}, s{sT}, 63
        """)
        for q, (c0, c1) in enumerate(ws):
            a(f"""
            s_cmp_eq_u32 s{sLI}, {q+1}
            s_cbranch_scc0 L_pn{tag}{q}
            v_min_u32 v{vT[5]}, {27*(c1-c0) - 1}, v{vL}
            v_lshlrev_b32 v{vT[5]}, 7, v{vT[5]}
            s_mul_i32 s{sT}, s{sT}, {(c1-c0)*3456}
            s_add_u32 s{sT}, s{sT}, {c0*64*3456}
            buffer_load_dword v{vT[6]}, v{vT[5]}, s[{SW}:{SW+3}], s{sT} offen
            s_branch L_pe{tag}
            L_pn{tag}{q}:
            """)
        a(f"""
        L_pd{tag}:
        s_mov_b64 exec, 1
        buffer_load_ushort v{vT[6]}, v{vT[0]}, s[{SG}:{SG+3}], 0 offen
        s_mov_b64 exec, -1
        L_pe{tag}:
        """)

    a.sec("loader")
    a("s_setprio 3")
    stamp(a, 1, mode=9)
    a(dma_x(0))
    stamp(a, 2, mode=9)
    stamp(a, 3, mode=9)
    a(dma_w(0))
    stamp(a, 4, mode=9)
    common()
    a(f"""
    v_lshlrev_b32 v{vT[0]}, 1, v{vL}
    s_lshl_b32 s{sT}, s{sLI}, 7
    buffer_load_ushort v{vGt[0]}, v{vT[0]}, s[{SG}:{SG+3}], s{sT} offen
    buffer_load_ushort v{vGt[1]}, v{vT[0]}, s[{SG}:{SG+3}], s{sT} offen offset:512
    buffer_load_ushort v{vGt[2]}, v{vT[0]}, s[{SG}:{SG+3}], s{sT} offen offset:1024
    """)
    a(f"""
    v_and_b32 v{vT[2]}, 3, v{vL}
    v_xor_b32 v{vT[2]}, 3, v{vT[2]}
    v_lshlrev_b32 v{vT[2]}, 6, v{vT[2]}
    v_lshl_add_u32 v{vGA}, v{vL}, 8, v{vT[2]}
    v_add_u32 v{vGA}, {32768 + 48}, v{vGA}
    v_and_b32 v{vT[2]}, 8, v{vL}
    v_lshlrev_b32 v{vT[2]}, 2, v{vT[2]}
    v_xor_b32 v{vGA}, v{vGA}, v{vT[2]}
    """)
    if DPF == 8:
        pf8(0, (2, 6), [(2, 4), (4, 6)])
        a(dma_x(1)); a(dma_w(1))
    elif DPF == 9:
        pf8(0, (2, 5), [(2, 4), (4, 5)])
        a(dma_x(1)); a(dma_w(1))
    elif DPF == 7:
        a(f"""
        s_cmp_eq_u32 s{sLI}, 0
        s_cbranch_scc0 L_e1
        v_and_b32 v{vT[5]}, 7, v{vL}
        v_lshrrev_b32 v{vT[4]}, 3, v{vL}
        v_mul_u32_u24 v{vT[4]}, 1152, v{vT[4]}
        v_lshl_add_u32 v{vT[5]}, v{vT[5]}, 7, v{vT[4]}
        s_mul_i32 s{sT}, s2, {8*1152}
        buffer_load_dword v{vT[6]}, v{vT[5]}, s[{SX}:{SX+3}], s{sT} offen offset:128
        s_branch L_e4
        L_e1:
        s_cmp_eq_u32 s{sLI}, 3
        s_cbranch_scc1 L_e2
        v_lshlrev_b32 v{vT[5]}, 7, v{vL}
        s_and_b32 s{sT}, s{sP}, 15
        s_lshl_b32 s{sT}, s{sT}, 3
        s_add_u32 s{sT}, s{sT}, s{sTG}
        s_lshl_b32 s{sT}, s{sT}, 1
        s_add_u32 s{sT}, s{sT}, s{sLI}
        s_mul_i32 s{sT}, s{sT}, {2*3456}
        s_add_u32 s{sT}, s{sT}, {62*3456}
        s_mov_b32 exec_hi, 0x3fffff
        buffer_load_dword v{vT[6]}, v{vT[5]}, s[{SW}:{SW+3}], s{sT} offen
        s_branch L_e4
        L_e2:
        v_lshlrev_b32 v{vT[5]}, 20, v{vL}
        s_lshl_b32 s{sT}, s2, 7
        s_mov_b64 exec, 0xffff
        buffer_load_dword v{vT[6]}, v{vT[5]}, s[{SWS}:{SWS+3}], s{sT} offen sc1
        L_e4:
        s_mov_b64 exec, -1
        """)
        pre = int(os.environ.get("PRE", "0"))
        if pre:
            a(dma_x(1))
    else:
        a(f"""
        s_cmp_eq_u32 s{sLI}, 0
        s_cbranch_scc0 L_e1
        v_and_b32 v{vT[5]}, 1, v{vL}
        v_bfe_u32 v{vT[4]}, v{vL}, 1, 3
        v_mul_u32_u24 v{vT[4]}, 1152, v{vT[4]}
        v_lshl_add_u32 v{vT[5]}, v{vT[5]}, 7, v{vT[4]}
        s_mul_i32 s{sT}, s2, {8*1152}
        s_mov_b64 exec, 0xffff
        buffer_load_dword v{vT[6]}, v{vT[5]}, s[{SX}:{SX+3}], s{sT} offen offset:256
        s_branch L_e4
        L_e1:
        s_cmp_eq_u32 s{sLI}, 1
        s_cbranch_scc0 L_e2
        v_lshlrev_b32 v{vT[5]}, 7, v{vL}
        s_and_b32 s{sT}, s{sP}, 15
        s_lshl_b32 s{sT}, s{sT}, 3
        s_add_u32 s{sT}, s{sT}, s{sTG}
        s_mul_i32 s{sT}, s{sT}, 3456
        s_add_u32 s{sT}, s{sT}, {128*3456}
        s_mov_b64 exec, 0x7ffffff
        buffer_load_dword v{vT[6]}, v{vT[5]}, s[{SW}:{SW+3}], s{sT} offen
        s_branch L_e4
        L_e2:
        s_mov_b64 exec, 1
        buffer_load_ushort v{vT[6]}, v{vT[0]}, s[{SG}:{SG+3}], 0 offen
        L_e4:
        s_mov_b64 exec, -1
        """)
        a(dma_x(1)); a(dma_w(1))
    stamp(a, 5, mode=9)
    a(f"""
    v_lshlrev_b32 v{vT[2]}, 2, v{vL}
    v_add_u32 v{vT[2]}, {SYNC}, v{vT[2]}
    v_mov_b32 v{CP}, 0
    v_mov_b32 v{CP+1}, 0
    v_mov_b32 v{CP+2}, 0
    v_mov_b32 v{CP+3}, 0
    ds_write_b32 v{vT[2]}, v{CP}
    s_min_u32 s{sT}, s{sLI}, 2
    s_mul_i32 s{sT}, s{sT}, {G_SLOT}
    v_add_u32 v{vT[2]}, s{sT}, v{vGA}
    s_cmp_eq_u32 s{sLI}, 3
    s_cbranch_scc1 L_nz
    ds_write_b128 v{vT[2]}, {vr(CP,4)}
    L_nz:
    s_waitcnt vmcnt({13 if DPF != 7 else 9 if pre else 1})
    """)
    for n in range(3):
        a(gate_write(n))
    stamp(a, 6, mode=9)
    a("s_waitcnt lgkmcnt(0)")
    stamp(a, 7, mode=9)
    a("s_barrier")
    stamp(a, 8, mode=9)
    stamp(a, 1)
    if DPF == 7:
        if not pre:
            a(dma_x(1))
        a(dma_w(1))
    a(dma_x(2)); a(dma_w(2))
    if DPF == 8:
        pf8(1, (6, 9), [(6, 8), (8, 9)])
    if DPF == 9:
        pf8(1, (5, 9), [(5, 7), (7, 9)])
    if DPF == 4:
        a(f"""
        s_cmp_eq_u32 s{sLI}, 0
        s_cbranch_scc0 L_lp1
        v_and_b32 v{vT[5]}, 7, v{vL}
        v_min_u32 v{vT[5]}, 4, v{vT[5]}
        v_lshrrev_b32 v{vT[4]}, 3, v{vL}
        v_mul_u32_u24 v{vT[4]}, 1152, v{vT[4]}
        v_lshl_add_u32 v{vT[5]}, v{vT[5]}, 7, v{vT[4]}
        s_mul_i32 s{sT}, s2, {8*1152}
        buffer_load_dword v{vT[6]}, v{vT[5]}, s[{SX}:{SX+3}], s{sT} offen offset:512
        s_branch L_lp2
        L_lp1:
        v_min_u32 v{vT[5]}, 23, v{vL}
        v_lshlrev_b32 v{vT[5]}, 7, v{vT[5]}
        s_and_b32 s{sT}, s{sP}, 15
        s_lshl_b32 s{sT}, s{sT}, 3
        s_add_u32 s{sT}, s{sT}, s{sTG}
        s_mul_i32 s{sT}, s{sT}, 3
        s_add_u32 s{sT}, s{sT}, s{sLI}
        s_mul_i32 s{sT}, s{sT}, {320*3456 // 384}
        s_add_u32 s{sT}, s{sT}, {256*3456 - 320*3456 // 384}
        buffer_load_dword v{vT[6]}, v{vT[5]}, s[{SW}:{SW+3}], s{sT} offen
        L_lp2:
        """)
    vN = 24
    a(f"""
    s_lshl_b32 s{sT}, s{sP}, 12
    s_add_u32 s{sT}, s{sT}, {FLAG_OFF}
    v_lshlrev_b32 v{vN}, 7, v{vL}
    v_add_u32 v{vN}, s{sT}, v{vN}
    v_and_b32 v{vN+1}, 7, v{vL}
    v_lshlrev_b32 v{vN+1}, 12, v{vN+1}
    s_lshl_b32 s{sT}, s{sP}, 7
    s_add_u32 s{sT}, s{sT}, {OFLAG_OFF}
    v_cmp_gt_u32 vcc, 32, v{vL}
    v_add_u32 v{vN+1}, s{sT}, v{vN+1}
    s_cmp_eq_u32 s{sLI}, 3
    v_cndmask_b32 v{vN}, v{vN+1}, v{vN}, vcc
    s_cselect_b32 exec_lo, -1, 1
    s_cselect_b32 exec_hi, 0xff, 0
    buffer_load_dword v{vN+1}, v{vN}, s[{SWS}:{SWS+3}], 0 offen sc1
    s_mov_b64 exec, -1
    """)
    for n in range(8):
        extra = (2 if DPF in (4, 8, 9) else 1) if n < 2 else 1 if n >= 6 else 0
        a(f"s_waitcnt vmcnt({(12 if n + 2 <= 8 else 0) + extra}) lgkmcnt(0)")
        if STAMPS == 7:
            a(f"s_memtime s[90:91]\ns_waitcnt lgkmcnt(0)\ns_barrier\ns_memtime s[94:95]\ns_waitcnt lgkmcnt(0)\ns_sub_u32 s90, s94, s90\ns_add_u32 s{74+2*n}, s90, s72")
        elif STAMPS == 8:
            a(f"s_barrier\ns_memtime s[{74+2*n}:{75+2*n}]")
        else:
            a("s_barrier")
        if n + 3 <= 8:
            a(gate_write(n + 3))
            if THR >= 0:
                a(f"""
                s_lshr_b32 s{sT}, s{sP}, 3
                s_xor_b32 s{sT}, s{sT}, s{sP}
                s_bitcmp1_b32 s{sT}, 0
                s_cbranch_scc1 L_th{n}
                s_waitcnt vmcnt({THR + (2 if n == 0 else 0)})
                L_th{n}:
                """)
            a(dma_x(n + 3)); a(dma_w(n + 3))
        if n == 5:
            a(f"""
            s_brev_b32 s{sA}, 1
            s_movk_i32 s{sB}, 0x400
            s_cmp_eq_u32 s{sLI}, 3
            s_cbranch_scc0 L_nn1
            s_mov_b32 s44, -1
            s_movk_i32 s45, 0xff
            """)
            for b in range(6):
                a(f"""
                v_and_b32 v{vN}, {1 << b}, v{vN+1}
                v_cmp_ne_u32 vcc, 0, v{vN}
                s_nop 0
                s_and_b64 s[46:47], s[44:45], vcc
                s_andn2_b64 s[44:45], s[44:45], vcc
                s_bcnt1_i32_b64 s{sT}, s[46:47]
                s_bcnt1_i32_b64 s{sT2}, s[44:45]
                s_cmp_lt_u32 s{sT}, s{sT2}
                s_cselect_b64 s[44:45], s[46:47], s[44:45]
                s_cselect_b32 s{sT}, {1 << b}, 0
                s_or_b32 s{sA}, s{sA}, s{sT}
                """)
            a(f"""
            s_lshl_b32 s{sB}, s{sP}, 2
            L_nn1:
            v_mov_b32 v{vN}, s{sA}
            v_mov_b32 v{vN+1}, 0
            v_mov_b32 v{vN+2}, s{sA}
            v_mov_b32 v{vN+3}, s{sB}
            s_mov_b64 exec, 1
            buffer_atomic_cmpswap v[{vN}:{vN+1}], v{vN+3}, s[{SD}:{SD+3}], 0 offen sc0 sc1
            s_mov_b64 exec, -1
            """)
        if n == 6:
            lab = a.label("L_cr")
            a(f"""
            s_cmp_ge_u32 s{sLI}, 2
            s_cbranch_scc1 {lab}
            s_cmp_eq_u32 s{sLI}, 0
            s_cselect_b32 s{sT}, 0x3f803f80, 0
            s_cselect_b32 s{sT2}, {14*16}, 0
            s_add_u32 s{sT2}, s{sT2}, {2560 + 4*16}
            v_and_b32 v{vT[0]}, 7, v{vL}
            v_mul_u32_u24 v{vT[0]}, {VH}, v{vT[0]}
            v_lshrrev_b32 v{vT[2]}, 3, v{vL}
            v_mul_u32_u24 v{vT[2]}, {TILE}, v{vT[2]}
            v_lshrrev_b32 v{vT[3]}, 4, v{vL}
            v_lshl_add_u32 v{vT[2]}, v{vT[3]}, 9, v{vT[2]}
            v_add3_u32 v{vT[0]}, v{vT[0]}, v{vT[2]}, s{sT2}
            v_mov_b32 v{CP}, s{sT}
            v_mov_b32 v{CP+1}, s{sT}
            v_mov_b32 v{CP+2}, s{sT}
            v_mov_b32 v{CP+3}, s{sT}
            ds_write_b128 v{vT[0]}, {vr(CP,4)}
            {lab}:
            """)
    a(f"""
    s_load_dwordx2 s[{SWA}:{SWA+1}], s[0:1], 16          ; A_wo
    s_load_dwordx2 s[{SWB}:{SWB+1}], s[0:1], 40          ; B_wo
    s_load_dwordx2 s[{SO}:{SO+1}], s[0:1], 56            ; out
    s_mov_b32 s{SWA+2}, {WO_BYTES}
    s_mov_b32 s{SWB+2}, {WO_BYTES}
    s_mov_b32 s{SO+2}, {XBYTES}
    s_mov_b32 s{sU}, 0
    s_mov_b32 s{sD3}, {(RING[1]-RING[0]) & 0xffffffff:#x}
    s_mov_b32 s{sD3+1}, {(RING[2]-RING[1]) & 0xffffffff:#x}
    s_mov_b32 s{sD3+2}, {(RING[0]-RING[2]) & 0xffffffff:#x}
    s_mul_i32 s{sT}, s{sLI}, {TPAIR}
    v_add_u32 v{vT[0]}, s{sT}, v{vL16}
    s_add_u32 s{sKVp}, s{sKVp}, s{sT}
    s_mov_b32 s{sM0x}, s{sT}
    s_mul_i32 s{sA}, s{sTG}, {CHUNK}
    s_add_u32 s{sA}, s{sA}, s{sKVp}
    s_lshl_b32 s{sT}, s{sLI}, 10
    s_lshl_b32 s{sB}, s{sP}, 12
    s_add_u32 s{sB}, s{sB}, s{sT}
    s_add_u32 s{sWb}, s{sB}, {FLAG_OFF}
    v_and_b32 v{vFo}, 7, v{vL}
    v_lshlrev_b32 v{vFo}, 7, v{vFo}
    v_mov_b32 v{vT[1]}, {SYNC + 52}
    s_lshl_b32 s{sT}, s{sTG}, 7
    v_mov_b32 v{vT[2]}, s{sT}
    v_lshrrev_b32 v{vT[3]}, 3, v{vL}
    v_mul_u32_u24 v{vT[3]}, 1152, v{vT[3]}
    v_bfe_u32 v{vT[4]}, v{vL}, 4, 1
    v_lshlrev_b32 v{vT[4]}, 2, v{vT[4]}
    v_and_b32 v{vT[5]}, 7, v{vL}
    v_xor_b32 v{vT[5]}, v{vT[5]}, v{vT[4]}
    v_lshl_add_u32 v{vWO}, v{vT[5]}, 4, v{vT[3]}
    s_waitcnt lgkmcnt(0)
    s_barrier
    """)
    stamp(a, 3, True)
    for i in range(10):
        a(f"ds_read_b128 {vr(CP+4*i,4)}, v{vT[0]} offset:{1024*i}")
    for i in range(10):
        if i == 9:
            a("s_mov_b32 exec_hi, 0")
        if i in (4, 8):
            a(f"s_add_u32 s{sA}, s{sA}, 4096")
        a(f"s_waitcnt lgkmcnt({9-i})")
        a(f"buffer_store_dwordx4 {vr(CP+4*i,4)}, v{vL16}, s[{SWS}:{SWS+3}], s{sA} offen offset:{1024*(i&3)} sc1")
    a(f"""
    s_mov_b64 exec, 1
    s_cmp_eq_u32 s{sLI}, 3
    s_cbranch_scc0 L_nn2
    s_waitcnt vmcnt(10)
    v_cmp_eq_u32 vcc, 0, v{vN}
    s_nop 1
    v_cndmask_b32 v{vN}, v{vN}, v{vN+2}, vcc
    ds_write_b32 v{vT[1]}, v{vN}
    L_nn2:
    ds_read_b32 v{vF}, v{vT[1]}
    s_waitcnt lgkmcnt(0)
    v_cmp_eq_u32 vcc, 0, v{vF}
    s_cbranch_vccnz L_nn2
    v_readfirstlane_b32 s{sNON}, v{vF}
    s_waitcnt vmcnt(0)
    buffer_store_dword v{vF}, v{vT[2]}, s[{SWS}:{SWS+3}], s{sWb} offen sc1
    s_mov_b64 exec, -1
    s_mov_b32 s{sRDY}, 0
    s_mov_b32 s{sN}, 0
    s_lshl_b32 s{sXb}, 1, s{sTG}
    L_ll:
    s_add_u32 s{sM0x}, s{sM0x}, s{sD3}
    s_mov_b32 s{sT}, s{sD3}
    s_mov_b32 s{sD3}, s{sD3+1}
    s_mov_b32 s{sD3+1}, s{sD3+2}
    s_mov_b32 s{sD3+2}, s{sT}
    L_poll:
    s_andn2_b32 s{sT}, s{sRDY}, s{sXb}
    s_cbranch_scc1 L_rdy
    buffer_load_dword v{vF}, v{vFo}, s[{SWS}:{SWS+3}], s{sWb} offen sc1
    s_waitcnt vmcnt(0)
    v_cmp_eq_u32 vcc, s{sNON}, v{vF}
    s_sub_u32 s{sSPIN}, s{sSPIN}, 1
    s_nop 0
    s_cselect_b32 s{sRDY}, -1, vcc_lo
    s_and_b32 s{sRDY}, s{sRDY}, 0xff
    s_branch L_poll
    L_rdy:
    s_ff1_i32_b32 s{sC}, s{sT}
    s_bitset1_b32 s{sXb}, s{sC}
    s_mul_i32 s{sA}, s{sC}, {CHUNK}
    s_add_u32 s{sA}, s{sA}, s{sKVp}
    """)
    for i in range(10):
        if i % 4 == 0:
            a(f"s_add_u32 m0, s{sM0x}, {1024*i}")
            a(f"s_add_u32 s{sT}, s{sA}, {1024*i}")
        if i == 9:
            a("s_mov_b32 exec_hi, 0")
        if True:
            a(f"buffer_load_dwordx4 v{vL16}, s[{SWS}:{SWS+3}], s{sT} offen offset:{1024*(i&3)} sc1 lds")
    a(f"""
    s_mov_b32 exec_hi, -1
    L_d9:
    s_cmp_eq_u32 s{sN}, 1
    s_cbranch_scc0 L_ncl
    s_lshl_b32 s{sT}, s{sTG}, 3
    s_lshl_b32 s{sT2}, s{sLI}, 1
    s_add_u32 s{sT}, s{sT}, s{sT2}
    s_mul_i32 s{sA}, s{sT}, {OTILE}
    s_mul_i32 s{sT}, s{sP}, {OPAIR}
    s_add_u32 s{sA}, s{sA}, s{sT}
    s_add_u32 s{sA}, s{sA}, {O_OFF}
    s_add_u32 s{sB}, s{sA}, {OTILE}
    v_mov_b32 v{CP}, -1
    v_mov_b32 v{CP+1}, -1
    v_mov_b32 v{CP+2}, -1
    v_mov_b32 v{CP+3}, -1
    buffer_store_dwordx4 {vr(CP,4)}, v{vL16}, s[{SWS}:{SWS+3}], s{sA} offen sc1
    buffer_store_dwordx4 {vr(CP,4)}, v{vL16}, s[{SWS}:{SWS+3}], s{sA} offen offset:1024 sc1
    buffer_store_dwordx4 {vr(CP,4)}, v{vL16}, s[{SWS}:{SWS+3}], s{sB} offen sc1
    buffer_store_dwordx4 {vr(CP,4)}, v{vL16}, s[{SWS}:{SWS+3}], s{sB} offen offset:1024 sc1
    s_mov_b64 exec, 0xffff
    buffer_store_dwordx4 {vr(CP,4)}, v{vL16}, s[{SWS}:{SWS+3}], s{sA} offen offset:2048 sc1
    buffer_store_dwordx4 {vr(CP,4)}, v{vL16}, s[{SWS}:{SWS+3}], s{sB} offen offset:2048 sc1
    s_mov_b64 exec, -1
    L_ncl:
    s_cmp_eq_u32 s{sLI}, 0
    s_cbranch_scc0 L_nfl
    s_cmp_eq_u32 s{sN}, 2
    s_cbranch_scc0 L_n2
    s_lshl_b32 s{sT}, s{sTG}, 12
    s_lshl_b32 s{sT2}, s{sP}, 7
    s_add_u32 s{sT}, s{sT}, s{sT2}
    s_add_u32 s{sT}, s{sT}, {OFLAG_OFF}
    v_mov_b32 v{vT[3]}, 0
    v_mov_b32 v{vF}, s{sNON}
    s_mov_b64 exec, 1
    buffer_store_dword v{vF}, v{vT[3]}, s[{SWS}:{SWS+3}], s{sT} offen sc1
    s_mov_b64 exec, -1
    L_n2:
    s_cmp_eq_u32 s{sN}, {CLAIM}
    s_cbranch_scc0 L_nfl
    s_and_b32 s{sA}, s2, 7
    v_and_b32 v{vT[5]}, 7, v{vL}
    v_lshlrev_b32 v{vT[4]}, 2, v{vT[5]}
    L_cl:
    s_lshl_b32 s{sT}, s{sA}, 2
    v_mov_b32 v{vT[3]}, s{sT}
    v_mov_b32 v{vF}, 1
    s_mov_b64 exec, 1
    buffer_atomic_add v{vF}, v{vT[3]}, s[{SD}:{SD+3}], 0 offen offset:128 sc0 sc1
    s_mov_b64 exec, -1
    s_waitcnt vmcnt(0)
    v_readfirstlane_b32 s{sB}, v{vF}
    s_nop 3
    s_cmp_lt_u32 s{sB}, 27
    s_cbranch_scc1 L_cl2
    """)
    if STEAL:
        a(f"""
        buffer_load_dword v{vF}, v{vT[4]}, s[{SD}:{SD+3}], 0 offen offset:128 sc1
        s_waitcnt vmcnt(0)
        v_lshl_or_b32 v{vF}, v{vF}, 3, v{vT[5]}
        s_nop 0
        v_readlane_b32 s{sA}, v{vF}, 0
        """)
        for q in range(1, 8):
            a(f"v_readlane_b32 s{sT}, v{vF}, {q}\ns_nop 3\ns_min_u32 s{sA}, s{sA}, s{sT}")
        a(f"""
        s_lshr_b32 s{sT}, s{sA}, 3
        s_and_b32 s{sA}, s{sA}, 7
        s_sub_u32 s{sSPIN}, s{sSPIN}, 1
        s_cselect_b32 s{sT}, 27, s{sT}
        s_cmp_lt_u32 s{sT}, 27
        s_cbranch_scc1 L_cl
        s_mov_b32 s{sSPIN}, {SPIN_LIMIT}
        """)
    a(f"""
    s_movk_i32 s{sB}, 0xff
    L_cl2:
    s_lshl_b32 s{sA}, s{sA}, 8
    s_or_b32 s{sA}, s{sA}, s{sB}
    v_mov_b32 v{vF}, s{sA}
    v_mov_b32 v{vT[3]}, {SYNC + 48}
    ds_write_b32 v{vT[3]}, v{vF}
    s_waitcnt lgkmcnt(0)
    L_nfl:
    s_cmp_eq_u32 s{sN}, {CLAIM + 1}
    s_cbranch_scc0 L_nw3
    v_mov_b32 v{vT[3]}, {SYNC + 48}
    ds_read_b32 v{vF}, v{vT[3]}
    s_waitcnt lgkmcnt(0)
    """)
    unit_decode(vF)
    a(f"""
    s_cmp_ge_u32 s{sU}, 27
    s_cbranch_scc1 L_on1
    s_lshl_b32 s{sT}, s{sCG}, 7
    v_add_u32 v{vWO}, s{sT}, v{vWO}
    """)
    wo_load(38, 42)
    wo_load(80, 121)
    a(f"""
    L_nw3:
    s_cmp_eq_u32 s{sN}, 6
    s_cbranch_scc0 L_on1
    """)
    if CPF2:
        a(f"""
        s_getpc_b64 s[{sA}:{sA+1}]
        L_pc2:
        v_lshlrev_b32 v{vT[3]}, 7, v{vL}
        v_add_u32 v{vT[3]}, L_fin - L_pc2 - 64, v{vT[3]}
        v_min_u32 v{vT[3]}, L_exact - L_pc2, v{vT[3]}
        global_load_dword v{vT[4]}, v{vT[3]}, s[{sA}:{sA+1}]
        """)
    a(f"""
    s_cmp_ge_u32 s{sU}, 27
    s_cbranch_scc1 L_on1
    v_mul_u32_u24 v{vT[3]}, 1152, v{vL}
    s_lshl_b32 s{sT}, s{sCG}, 7
    s_mul_i32 s{sT2}, s{sLI}, {48*1152}
    s_add_u32 s{sT2}, s{sT2}, s{sT}
    s_add_u32 s{sT2}, s{sT2}, {392*1152}
    buffer_load_dword v{vT[4]}, v{vT[3]}, s[{SWB}:{SWB+3}], s{sT2} offen
    """)
    if TLBW and int(os.environ.get("OTOUCH", "0")):
        a(f"""
        s_mul_i32 s{sT}, s{sTG2}, {256*1152}
        v_lshlrev_b32 v{vT[3]}, 2, v{vT[3]}
        buffer_load_dword v{vT[4]}, v{vT[3]}, s[{SO}:{SO+3}], s{sT} offen
        """)
    a(f"""
    v_and_b32 v{vT[0]}, 31, v{vL}
    v_lshlrev_b32 v{vT[3]}, 7, v{vT[0]}
    v_lshlrev_b32 v{vT[0]}, 2, v{vT[0]}
    s_lshl_b32 s{sB}, s{sTG2}, 12
    s_add_u32 s{sB}, s{sB}, {OFLAG_OFF}
    L_on0:
    buffer_load_dword v{vF}, v{vT[0]}, s[{SD}:{SD+3}], 0 offen sc1
    buffer_load_dword v{vT[4]}, v{vT[3]}, s[{SWS}:{SWS+3}], s{sB} offen sc1
    s_waitcnt vmcnt(0)
    v_cmp_le_i32 vcc, 0, v{vF}
    v_cmp_ne_u32 s[44:45], v{vF}, v{vT[4]}
    s_sub_u32 s{sSPIN}, s{sSPIN}, 1
    s_cbranch_scc1 L_on1
    s_or_b64 vcc, vcc, s[44:45]
    s_cbranch_vccz L_on1
    s_sleep 8
    s_branch L_on0
    L_on1:
    s_waitcnt vmcnt(0)
    """)
    if STAMPS == 1:
        a(f"s_cmp_eq_u32 s{sN}, 0\ns_cbranch_scc0 L_st4")
        stamp(a, 4)
        a("L_st4:")
    if STAMPS == 6:
        a("s_barrier\ns_memtime s[88:89]\ns_waitcnt lgkmcnt(0)")
        for q in range(7):
            a(f"s_cmp_eq_u32 s{sN}, {q}\ns_cselect_b32 s{74+2*q}, s88, s{74+2*q}")
    elif STAMPS == 5:
        a("s_memtime s[88:89]\ns_waitcnt lgkmcnt(0)\ns_barrier\ns_memtime s[90:91]\ns_waitcnt lgkmcnt(0)\ns_sub_u32 s88, s90, s88\ns_add_u32 s88, s88, s72")
        for q in range(7):
            a(f"s_cmp_eq_u32 s{sN}, {q}\ns_cselect_b32 s{74+2*q}, s88, s{74+2*q}")
    else:
        a("s_barrier")
    a(f"""
    s_add_u32 s{sN}, s{sN}, 1
    s_cmp_lt_u32 s{sN}, 7
    s_cbranch_scc1 L_ll
    s_mov_b32 s{sSPIN}, {SPIN_LIMIT}
    s_cmp_ge_u32 s{sU}, 27
    s_cbranch_scc1 L_end
    """)
    wo_load(0, 38)
    wo_load(42, 72)
    wo_load(72, 80)
    a(f"""
    v_and_b32 v12, 7, v{vL}
    v_lshlrev_b32 v12, 2, v12
    v_add_u32 v12, {SYNC}, v12
    L_pg:
    s_sleep 2
    ds_read_b32 v13, v12
    s_waitcnt lgkmcnt(0)
    v_cmp_gt_u32 vcc, 7, v13
    s_cbranch_vccnz L_pg
    """)
    wo_load(121, 144)
    a(f"""
    s_lshl_b32 s{sT}, s{sLI}, 2
    s_add_u32 s{sT}, s{sT}, {SYNC + 32}
    v_mov_b32 v12, s{sT}
    v_mov_b32 v13, 8
    s_waitcnt vmcnt(0)
    ds_write_b32 v12, v13
    s_setprio 0
    s_branch L_tail
    """)
    a.sec("tail")

    vOH = 5
    vWm = [3, 4]; vWh = [8, 9]
    vT = [10, 11, 12, 13, 14, 6]
    vPw, vPr, vOut, vPr2, vDw, vDr = 163, 164, 165, 166, 167, 7
    WS_ = [16, 32]
    OF = 56
    ACC = [128, 144]
    PSTR = 1024 + 32 if ROWOUT else 1024
    DEPTH = int(os.environ.get("DEPTH", "2"))
    TPRIO = int(os.environ.get("TPRIO", "0"))

    ORDER = ([0, 2, 4, 6, 1, 3, 5, 7] if NORD else list(range(8))) + [8]

    def omain(i, j):
        return OF + 8 * i + 4 * j
    OHI = OF + 64

    def issue(i):
        a(f"""
        s_add_u32 s{sT}, s{(sFl, sWS)[i & 1] if NORD else sFl}, {i*OPAIR}
        buffer_load_dwordx4 {vr(omain(i,0),4)}, v{vL16}, s[{SWS}:{SWS+3}], s{sT} offen sc1
        buffer_load_dwordx4 {vr(omain(i,1),4)}, v{vL16}, s[{SWS}:{SWS+3}], s{sT} offen offset:1024 sc1
        buffer_load_dword v{OHI+i}, v{vOH}, s[{SWS}:{SWS+3}], s{sT} offen offset:2048 sc1
        """)

    a(f"""
    L_tail:
    s_cmp_ge_u32 s{sU}, 27
    s_cbranch_scc1 L_end
    s_cmp_ge_u32 s{sT0}, 8
    s_cbranch_scc1 L_end
    v_lshlrev_b32 v{vOH}, 2, v{vL}
    s_mov_b32 s{sI}, 0
    """)
    if NORD:
        a(f"""
        s_and_b32 s{sMode}, s{sKQ}, 1
        s_mul_i32 s{sT}, s{sMode}, {OPAIR}
        s_sub_u32 s{sWS}, s{sFl}, s{sT}
        s_add_u32 s{sFl}, s{sFl}, s{sT}
        """)
    a(f"""
    v_min_u32 v{vT[2]}, 11, v{vL}
    """)
    if LEARLY:
        a(f"""
        s_cmp_lt_u32 s{sWV}, 4
        s_cselect_b32 s{sT}, 8, 0
        v_max_u32 v{vT[2]}, s{sT}, v{vT[2]}
        """)
    a(f"""
    v_lshlrev_b32 v{vT[2]}, 2, v{vT[2]}
    v_add_u32 v{vT[2]}, {SYNC}, v{vT[2]}
    """)
    tFo, tFd, vA = 160, 161, [48, 49]
    vH = [50, 51, 52, 53]
    sOff, sLate = [sPd, sBt], sCur
    if DYN:
        a(f"""
        s_lshl_b32 s{sT}, s{sTT}, 2
        s_add_u32 s{sT}, s{sT}, {SYNC + 112}
        v_mov_b32 v{vT[4]}, s{sT}
        v_and_b32 v{tFo}, 31, v{vL}
        v_mul_u32_u24 v{tFo}, {OPAIR}, v{tFo}
        v_lshrrev_b32 v{tFd}, 5, v{vL}
        v_lshl_add_u32 v{tFo}, v{tFd}, 7, v{tFo}
        L_ws1:
        s_cmp_lt_u32 s{sWV}, {0 if ATOM == 2 else 3}
        s_cbranch_scc0 L_ws2
        {f"v_mov_b32 v{tFd}, 0" if ATOM else ""}
        {f"buffer_atomic_or v{tFd}, v{tFo}, s[{SWS}:{SWS+3}], s{sFl} offen offset:2048 sc0 sc1" if ATOM else f"buffer_load_dword v{tFd}, v{tFo}, s[{SWS}:{SWS+3}], s{sFl} offen offset:2048 sc1"}
        s_waitcnt vmcnt(0)
        v_cmp_eq_u32 vcc, -1, v{tFd}
        s_nop 1
        s_nor_b32 s{sT}, vcc_lo, vcc_hi
        v_mov_b32 v{tFd}, s{sT}
        ds_write_b32 v{vT[4]}, v{tFd}
        L_ws2:
        ds_read_b32 v{vT[3]}, v{vT[2]}
        ds_read_b32 v{tFd}, v{vT[4]}
        s_waitcnt lgkmcnt(0)
        v_cmp_gt_u32 vcc, 8, v{vT[3]}
        s_cbranch_vccz L_go
        s_sleep 1
        s_branch L_ws1
        L_go:
        v_readfirstlane_b32 s{sRDY}, v{tFd}
        v_and_b32 v{tFo}, 7, v{vL}
        v_mul_u32_u24 v{tFo}, {OPAIR}, v{tFo}
        v_bfe_u32 v{tFd}, v{vL}, 3, 1
        v_lshl_add_u32 v{tFo}, v{tFd}, 7, v{tFo}
        s_lshl_b32 s{sT}, s{sKQ}, 3
        s_lshr_b32 s{sRDY}, s{sRDY}, s{sT}
        s_mov_b32 s{sLate}, 0
        s_and_b32 s{sRDY}, s{sRDY}, 0xff
        s_mov_b32 s{sT}, s{sRDY}
        s_cbranch_scc0 L_pw0
        L_f0:
        """)
    else:
        a(f"""
        L_ws1:
        ds_read_b32 v{vT[3]}, v{vT[2]}
        s_waitcnt lgkmcnt(0)
        v_cmp_gt_u32 vcc, 8, v{vT[3]}
        s_cbranch_vccz L_go
        s_sleep 1
        s_branch L_ws1
        L_go:
        """)
    stamp(a, 3, mode=3)

    def loads(i):
        a(f"""
        buffer_load_dwordx4 {vr(omain(i,0),4)}, v{vL16}, s[{SWS}:{SWS+3}], s{sOff[i&1]} offen sc1
        buffer_load_dwordx4 {vr(omain(i,1),4)}, v{vL16}, s[{SWS}:{SWS+3}], s{sOff[i&1]} offen offset:1024 sc1
        buffer_load_dword v{OHI+i}, v{vOH}, s[{SWS}:{SWS+3}], s{sOff[i&1]} offen offset:2048 sc1
        """)

    def fetch_o(i):
        a(f"""
        s_ff1_i32_b32 s{sB}, s{sT}
        s_bitset1_b32 s{sI}, s{sB}
        s_mul_i32 s{sOff[i&1]}, s{sB}, {OPAIR}
        s_add_u32 s{sOff[i&1]}, s{sOff[i&1]}, s{sFl}
        """)
        loads(i)
        a(f"s_mul_i32 s{sB}, s{sB}, {36*128}")

    def poll():
        if ATOM:
            a(f"""
            v_mov_b32 v{tFd}, 0
            s_mov_b64 exec, 0xffff
            buffer_atomic_or v{tFd}, v{tFo}, s[{SWS}:{SWS+3}], s{sFl} offen offset:2048 sc0 sc1
            s_mov_b64 exec, -1
            """)
        else:
            a(f"buffer_load_dword v{tFd}, v{tFo}, s[{SWS}:{SWS+3}], s{sFl} offen offset:2048 sc1")
        a(f"""
        s_waitcnt vmcnt(0)
        v_cmp_eq_u32 vcc, -1, v{tFd}
        s_sub_u32 s{sSPIN}, s{sSPIN}, 1
        s_cselect_b32 s{sT}, 0, vcc_lo
        s_cselect_b32 s{sSPIN}, 0, s{sSPIN}
        s_lshr_b32 s{sT2}, s{sT}, 8
        s_or_b32 s{sT}, s{sT}, s{sT2}
        s_andn2_b32 s{sRDY}, 0xff, s{sT}
        """)

    if DYN:
        fetch_o(0)
    else:
        for i in range(DEPTH):
            issue(ORDER[i])
    a(f"""
    v_and_b32 v{vT[0]}, 31, v{vL}                ; tau
    v_lshrrev_b32 v{vT[1]}, 5, v{vL}             ; h
    v_bfe_u32 v{vT[2]}, v{vL}, 2, 2              ; r
    v_and_b32 v{vT[3]}, 3, v{vL}                 ; c
    v_bfe_u32 v{vT[4]}, v{vL}, 4, 1              ; sub
    v_lshlrev_b32 v{vT[3]}, 3, v{vT[3]}
    v_lshl_add_u32 v{vT[3]}, v{vT[4]}, 5, v{vT[3]}
    s_mul_i32 s{sT}, s{sKQ}, {288*128}
    v_add_u32 v{vT[3]}, s{sT}, v{vT[3]}
    v_lshrrev_b32 v{vT[4]}, 1, v{vT[2]}          ; r>>1
    v_lshl_add_u32 v{vT[5]}, v{vT[1]}, 2, v{vT[2]}
    v_lshl_add_u32 v{vT[5]}, v{vT[5]}, 7, v{vT[3]}
    v_lshl_add_u32 v{vWm[0]}, v{vT[4]}, 6, v{vT[5]}
    """)
    vWo = [48, 49]
    if NORD:
        a(f"""
        s_mul_i32 s{sT}, s{sMode}, {36*128}
        v_subrev_u32 v{vWo[0]}, s{sT}, v{vWm[0]}
        v_xor_b32 v{vWo[1]}, 64, v{vWo[0]}
        v_add_u32 v{vWm[0]}, s{sT}, v{vWm[0]}
        v_xor_b32 v{vT[4]}, s{sMode}, v{vT[4]}
        """)
    a(f"""
    v_xor_b32 v{vWm[1]}, 64, v{vWm[0]}
    {f'v_mov_b32 v{vT[5]}, v{vT[1]}' if DYN else f'v_lshl_add_u32 v{vT[5]}, v{vT[4]}, 1, v{vT[1]}'}
    v_mul_u32_u24 v{vT[5]}, 18, v{vT[5]}
    v_and_b32 v{vT[2]}, 1, v{vT[2]}
    v_add3_u32 v{vT[5]}, v{vT[5]}, v{vT[2]}, 16
    v_lshl_add_u32 v{vT[5]}, v{vT[5]}, 7, v{vT[3]}
    v_lshl_add_u32 v{vWh[0]}, v{vT[1]}, 6, v{vT[5]}
    v_xor_b32 v{vWh[1]}, 64, v{vWh[0]}
    s_mul_i32 s{sT}, s{sTT}, {8*PSTR}
    s_mul_i32 s{sT2}, s{sKQ}, {288*128}
    s_add_u32 s{sA}, s{sT}, s{sT2}
    v_add_u32 v{vPw}, s{sA}, v{vL16}
    """)
    if ROWOUT:
        a(f"""
        s_lshl_b32 s{sT2}, s{sKQ}, 7
        s_add_u32 s{sA}, s{sT}, s{sT2}
        v_and_b32 v{vT[2]}, 7, v{vL}
        v_lshrrev_b32 v{vT[3]}, 3, v{vL}
        v_mul_u32_u24 v{vPr}, {PSTR}, v{vT[2]}
        v_lshl_add_u32 v{vPr}, v{vT[3]}, 4, v{vPr}
        v_add_u32 v{vPr}, s{sA}, v{vPr}
        v_mul_u32_u24 v{vOut}, 1152, v{vT[3]}
        v_lshl_add_u32 v{vOut}, v{vT[2]}, 4, v{vOut}
        """)
    else:
        a(f"""
        s_lshl_b32 s{sT2}, s{sKQ}, 11
        s_add_u32 s{sA}, s{sT}, s{sT2}
        v_add_u32 v{vPr}, s{sA}, v{vL16}
        v_mul_u32_u24 v{vOut}, 1152, v{vT[0]}
        v_lshl_add_u32 v{vOut}, v{vT[1]}, 4, v{vOut}
        """)
    a(f"""
    v_add_u32 v{vPr2}, {2*288*128}, v{vPr}
    s_lshl_b32 s{sT}, s{sWV}, 2
    s_add_u32 s{sT}, s{sT}, {SYNC + 64}
    v_mov_b32 v{vDw}, s{sT}
    s_sub_u32 s{sT}, s{sT0}, s{sTT}
    s_cmp_eq_u32 s{sT}, 6
    s_cselect_b32 s{sT}, 1, 2
    v_min_u32 v{vDr}, s{sT}, v{vL}
    s_mul_i32 s{sT}, s{sKQ}, 12
    s_add_u32 s{sT}, s{sT}, {SYNC + 64}
    v_lshlrev_b32 v{vDr}, 2, v{vDr}
    v_add_u32 v{vDr}, s{sT}, v{vDr}
    s_lshl_b32 s{sT}, s{sTG2}, 8
    s_lshl_b32 s{sT2}, s{sT0}, 5
    s_add_u32 s{sT}, s{sT}, s{sT2}
    s_mul_i32 s{sOm}, s{sT}, 1152
    s_lshl_b32 s{sT}, s{sCG}, 7
    s_add_u32 s{sOm}, s{sOm}, s{sT}
    s_mul_i32 s{sT}, s{sKQ}, {8*1152 if ROWOUT else 32}
    s_add_u32 s{sOm}, s{sOm}, s{sT}
    """)
    for r in range(ACC[0], ACC[0] + 32):
        a(f"v_mov_b32 v{r}, 0")
    stamp(a, 7)
    stamp(a, 4, mode=3)

    def wreads(blk, st):
        for f in range(2):
            b = WS_[st] + 8 * f
            m = 2 * blk + f
            for ct in range(2):
                if m < 16:
                    ad = (vWo if NORD and blk & 1 else vWm)[ct ^ (m & 1)]
                    o0 = m * 18 * 128; o1 = o0 + 8 * 128
                else:
                    ad = vWh[ct]
                    o0 = (m - 16) * 8 * 18 * 128; o1 = o0 + 4 * 18 * 128
                a(f"ds_read_b64_tr_b16 {vr(b+4*ct,2)}, v{ad} offset:{o0}")
                a(f"ds_read_b64_tr_b16 {vr(b+4*ct+2,2)}, v{ad} offset:{o1}")

    def verify(i, skip):
        o0, o1 = omain(i, 0), omain(i, 1)
        a(f"""
        v_max3_u32 v{vT[2]}, v{o0}, v{o0+1}, v{o0+2}
        v_max3_u32 v{vT[3]}, v{o0+3}, v{o1}, v{o1+1}
        v_max3_u32 v{vT[2]}, v{vT[2]}, v{o1+2}, v{o1+3}
        v_max3_u32 v{vT[2]}, v{vT[2]}, v{vT[3]}, v{OHI+i}
        v_cmp_eq_u32 vcc, -1, v{vT[2]}
        s_cbranch_vccnz {skip}
        s_bitset1_b32 s{sI}, {i}
        """)

    def mm(st, o0, o1):
        for f, o in ((0, o0), (1, o1)):
            for ct in range(2):
                a(f"v_mfma_f32_32x32x16_bf16 {vr(ACC[ct],16)}, {vr(WS_[st]+8*f+4*ct,4)}, {vr(o,4)}, {vr(ACC[ct],16)}")

    def fetch_w(i):
        a(f"""
        v_add_u32 v{vA[0]}, s{sB}, v{vWm[0]}
        v_xor_b32 v{vA[1]}, 64, v{vA[0]}
        """)
        for f in range(2):
            b = WS_[i & 1] + 8 * f
            for ct in range(2):
                a(f"ds_read_b64_tr_b16 {vr(b+4*ct,2)}, v{vA[ct ^ f]} offset:{f*18*128}")
                a(f"ds_read_b64_tr_b16 {vr(b+4*ct+2,2)}, v{vA[ct ^ f]} offset:{f*18*128 + 1024}")
        if i & 1:
            a(f"v_add_u32 v{vT[4]}, s{sB}, v{vWh[0]}")
            a(f"v_cndmask_b32 v{vH[i>>1]}, v{vH[i>>1]}, v{vT[4]}, s[{sMASK}:{sMASK+1}]")
        else:
            a(f"v_add_u32 v{vH[i>>1]}, s{sB}, v{vWh[0]}")

    if DYN:
        a(f"s_mov_b32 s{sMASK}, 0xff00ff00\ns_mov_b32 s{sMASK+1}, 0xff00ff00")
        fetch_w(0)
        for i in range(8):
            a(f"L_t{i}:")
            if i < 7:
                if i >= 7 - DSPEC:
                    a(f"s_movk_i32 s{sRDY}, 0xff")
                a(f"""
                s_andn2_b32 s{sT}, s{sRDY}, s{sI}
                s_waitcnt lgkmcnt(0)
                s_cbranch_scc0 L_lt{i}
                L_f{i+1}:
                """)
                fetch_o(i + 1)
                fetch_w(i + 1)
                a(f"""
                s_cmp_eq_u32 s{sLate}, 1
                s_mov_b32 s{sLate}, 0
                s_cbranch_scc1 L_t{i+1}
                s_waitcnt vmcnt(3)
                """)
            else:
                a("s_waitcnt lgkmcnt(0)")
                for q in range(4):
                    b = WS_[0] + 8 * (q >> 1) + 2 * (q & 1)
                    a(f"ds_read_b64_tr_b16 {vr(b,2)}, v{vH[q]}")
                    a(f"v_xor_b32 v{vT[4]}, 64, v{vH[q]}")
                    a(f"ds_read_b64_tr_b16 {vr(b+4,2)}, v{vT[4]}")
                a("s_waitcnt vmcnt(0)")
            o0, o1 = omain(i, 0), omain(i, 1)
            a(f"""
            L_p{i}:
            v_max3_u32 v{vT[2]}, v{o0}, v{o0+1}, v{o0+2}
            v_max3_u32 v{vT[3]}, v{o0+3}, v{o1}, v{o1+1}
            v_max3_u32 v{vT[2]}, v{vT[2]}, v{o1+2}, v{o1+3}
            v_max3_u32 v{vT[2]}, v{vT[2]}, v{vT[3]}, v{OHI+i}
            v_cmp_eq_u32 vcc, -1, v{vT[2]}
            s_cbranch_vccnz L_rl{i}
            L_m{i}:
            """)
            mm(i & 1, o0, o1)
            if i < 7:
                a(f"s_cmp_eq_u32 s{sLate}, 1\ns_cbranch_scc1 L_pc{i+1}")
        a(f"""
        v_mov_b32 v{vT[2]}, 1
        s_waitcnt lgkmcnt(0)
        ds_write_b32 v{vDw}, v{vT[2]}
        """)
    else:
        wreads(0, 0)
        for i in range(8):
            a(f"s_waitcnt vmcnt({3*min(DEPTH-1, 7-i)}) lgkmcnt(0)")
            wreads(ORDER[i + 1], (i + 1) & 1)
            if INPL:
                a(f"s_mov_b32 s{sPd}, {INPL}\nL_v{i}:")
            verify(ORDER[i], f"L_ip{i}" if INPL else "L_abort" if ABORT and i < 7 - ABORT + 1 else f"L_s{i}")
            mm(i & 1, omain(ORDER[i], 0), omain(ORDER[i], 1))
            a(f"L_s{i}:")
            if TPRIO and i in (0, 2, 4):
                a(f"s_setprio {2 - i // 2}")
            if i + DEPTH < 8:
                issue(ORDER[i + DEPTH])
        a(f"""
        L_chk:
        s_cmp_eq_u32 s{sI}, 0xff
        s_cbranch_scc0 L_round
        L_hi:
        v_mov_b32 v{vT[2]}, 1
        s_waitcnt lgkmcnt(0)
        ds_write_b32 v{vDw}, v{vT[2]}
        """)
    mm(0, OHI, OHI + 4)
    stamp(a, 8)
    stamp(a, 7, mode=3)
    a(f"""
    L_qs:
    ds_read_b32 v{vT[3]}, v{vDr}
    s_waitcnt lgkmcnt(0)
    v_cmp_eq_u32 vcc, 0, v{vT[3]}
    s_cbranch_vccnz L_qs
    s_nop 6
    """)
    for i in range(8):
        a(f"ds_write_b128 v{vPw}, {vr(ACC[0]+4*i,4)} offset:{PSTR*i}")
    a("s_waitcnt lgkmcnt(0)")
    a("s_barrier                                    ; BT4")
    stamp(a, 8, True, mode=3)
    for src in range(4):
        for g in range(2):
            a(f"ds_read_b128 {vr(OF+8*src+4*g,4)}, v{vPr if src < 2 else vPr2} offset:{(src&1)*288*128 + g*(512 if ROWOUT else 1024)}")
    a("s_waitcnt lgkmcnt(4)")
    for q in range(8):
        a(f"v_add_f32 v{OF+q}, v{OF+q}, v{OF+8+q}")
    a("s_waitcnt lgkmcnt(0)")
    for q in range(8):
        a(f"v_add_f32 v{OF+16+q}, v{OF+16+q}, v{OF+24+q}")
    for q in range(8):
        a(f"v_add_f32 v{OF+q}, v{OF+q}, v{OF+16+q}")
    for i in range(4):
        a(f"v_cvt_pk_bf16_f32 v{WS_[0]+i}, v{OF+2*i}, v{OF+2*i+1}")
    if not ROWOUT:
        a(f"""
        s_nop 1
        v_permlane32_swap_b32 v{WS_[0]}, v{WS_[0]+2}
        v_permlane32_swap_b32 v{WS_[0]+1}, v{WS_[0]+3}
        """)
    a(f"""
    buffer_store_dwordx4 {vr(WS_[0],4)}, v{vOut}, s[{SO}:{SO+3}], s{sOm} offen {os.environ.get('OUTF', 'sc1')}
    """)
    stamp(a, 9, mode=3)
    a("s_branch L_end")
    if DYN:
        for i in range(8):
            a(f"L_pw{i}:")
            poll()
            a(f"""
            L_pc{i}:
            s_andn2_b32 s{sT}, s{sRDY}, s{sI}
            s_cbranch_scc1 L_f{i}
            s_branch L_pw{i}
            """)
            if i < 7:
                a(f"L_lt{i}:")
                poll()
                a(f"s_mov_b32 s{sLate}, 1\ns_branch L_p{i}")
            a(f"""
            L_rl{i}:
            s_sub_u32 s{sSPIN}, s{sSPIN}, 1
            s_cselect_b32 s{sSPIN}, 0, s{sSPIN}
            s_cbranch_scc1 L_m{i}
            """)
            loads(i)
            a(f"s_waitcnt vmcnt(0)\ns_branch L_p{i}")
    else:
        if INPL:
            for i in range(8):
                a(f"L_ip{i}:\ns_sub_u32 s{sPd}, s{sPd}, 1\ns_cbranch_scc1 L_s{i}")
                issue(ORDER[i])
                a(f"s_waitcnt vmcnt(0)\ns_branch L_v{i}")
        if ABORT:
            a("L_abort:\ns_waitcnt lgkmcnt(0)")
            wreads(8, 0)
        a(f"""
        L_round:
        s_sub_u32 s{sSPIN}, s{sSPIN}, 1
        s_cbranch_scc1 L_hi
        {"s_sleep " + os.environ["TSLEEP"] if "TSLEEP" in os.environ else ""}
        s_not_b32 s{sBt}, s{sI}
        """)
        if int(os.environ.get("HINT", "0")):
            a(f"""
            v_and_b32 v{vT[2]}, 7, v{vL}
            v_mul_u32_u24 v{vT[2]}, {OPAIR}, v{vT[2]}
            v_bfe_u32 v{vT[3]}, v{vL}, 3, 1
            v_lshl_add_u32 v{vT[2]}, v{vT[3]}, 7, v{vT[2]}
            s_mov_b64 exec, 0xffff
            buffer_load_dword v{vT[3]}, v{vT[2]}, s[{SWS}:{SWS+3}], s{sFl} offen offset:2048 sc1
            s_waitcnt vmcnt(0)
            v_cmp_eq_u32 vcc, -1, v{vT[3]}
            s_mov_b64 exec, -1
            s_nop 0
            s_lshr_b32 s{sT}, vcc_lo, 8
            s_or_b32 s{sT}, s{sT}, vcc_lo
            s_andn2_b32 s{sBt}, s{sBt}, s{sT}
            s_and_b32 s{sBt}, s{sBt}, 0xff
            s_cbranch_scc0 L_round
            """)
        stamp(a, 5, mode=3)
        for i in range(8):
            a(f"s_bitcmp1_b32 s{sBt}, {i}\ns_cbranch_scc0 L_ni{i}")
            issue(i)
            a(f"L_ni{i}:")
        for i in range(8):
            a(f"s_bitcmp1_b32 s{sBt}, {i}\ns_cbranch_scc0 L_nc{i}")
            wreads(i, 1)
            a("s_waitcnt vmcnt(0)")
            verify(i, f"L_nc{i}")
            a("s_waitcnt lgkmcnt(0)")
            mm(1, omain(i, 0), omain(i, 1))
            a(f"L_nc{i}:")
        a("s_branch L_chk")
    a.sec("end")
    a("L_end:")
    if DIAG >= 0:
        a(f"""
        s_cmp_eq_u32 s{sWV}, 9
        s_cbranch_scc0 L_done
        s_cmp_lt_u32 s2, {os.environ.get("DIAGWG", "256")}
        s_cbranch_scc0 L_done
        s_waitcnt vmcnt(0) lgkmcnt(0)
        s_memrealtime s[82:83]
        s_waitcnt lgkmcnt(0)
        s_mov_b32 s{sT}, 0
        """)
        if DIAG > 0:
            a(f"""
            s_sub_u32 s{sT}, s{72+2*DIAG}, s96
            s_lshl_b32 s{sT}, s{sT}, 2
            s_cmp_lt_u32 s{sWV}, 4
            s_cselect_b32 s{sT}, 0, s{sT}
            """)
        a(f"""
        s_add_u32 s{sT}, s{sT}, 10000
        L_dg:
        s_sleep 8
        s_memrealtime s[98:99]
        s_waitcnt lgkmcnt(0)
        s_sub_u32 s{sT2}, s98, s96
        s_cmp_lt_u32 s{sT2}, s{sT}
        s_cbranch_scc1 L_dg
        """)
    elif STAMPS:
        a(f"""
        s_waitcnt vmcnt(0) lgkmcnt(0)
        s_memtime s[92:93]
        s_memrealtime s[98:99]
        s_waitcnt lgkmcnt(0)
        s_mov_b64 exec, 1
        s_lshl_b32 s{sT}, s2, 4
        s_add_u32 s{sT}, s{sT}, s{sWV}
        s_lshl_b32 s{sT}, s{sT}, 6
        s_add_u32 s{sT}, s{sT}, {STAMP_OFF}
        v_mov_b32 v0, 0
        """)
        for n in range(14):
            a(f"v_mov_b32 v1, s{72+2*n}")
            a(f"buffer_store_dword v1, v0, s[{SWS}:{SWS+3}], s{sT} offen offset:{4*n}")
            a("s_nop 0")
    a("""
    L_done:
    s_endpgm
    """)
    return name, NV


DOC = '''; ---------------------------------------------------------------------------------------------
; ---------------------------------------------------------------------------------------------
'''


def main():
    out = sys.argv[1] if len(sys.argv) > 1 else f"cdna_kernels/{NAME}.s"
    a = Asm()
    k, nv = gen(a)
    hdr = open(f"cdna_kernels/{NAME}.s.ref").read().split("\n")
    hdr = [l for l in hdr if l.startswith(";") and "@launch" not in l]
    txt = "\n".join(hdr) + "\n"
    txt += f"; @launch grid=(256,1,1) block=(768,1,1) lds={LDS_BYTES}\n"
    txt += DOC
    txt += '.amdgcn_target "amdgcn-amd-amdhsa--gfx950"\n.text\n'
    txt += a.text()
    txt += f""".section .rodata,"a"
.p2align 6
.amdhsa_kernel {k}
  .amdhsa_next_free_vgpr {nv}
  .amdhsa_next_free_sgpr {102 if STAMPS else 72}
  .amdhsa_accum_offset {(nv + 3) // 4 * 4}
  .amdhsa_group_segment_fixed_size 0
  .amdhsa_kernarg_size 80
  .amdhsa_user_sgpr_count 2
  .amdhsa_user_sgpr_kernarg_segment_ptr 1
  .amdhsa_system_sgpr_workgroup_id_x 1
.end_amdhsa_kernel
"""
    open(out, "w").write(txt)


if __name__ == "__main__":
    main()
```
